```python
import torch

def _softmax(x, axis=-1):
    return torch.softmax(x, dim=axis)
def _gelu(x):
    return torch.nn.functional.gelu(x, approximate="tanh")
def _silu(x):
    return torch.nn.functional.silu(x)
def _sigmoid(x):
    return torch.sigmoid(x)
def _layernorm(x, axis=-1, eps=1e-5):
    m = x.mean(dim=axis, keepdim=True)
    v = x.var(dim=axis, keepdim=True, unbiased=False)
    return (x - m) / torch.sqrt(v + eps)
def _scatter_add(tgt, idx, src, axis=0):
    return tgt.clone().index_add_(axis, idx, src)
def _segment_sum(src, seg, n):
    out = torch.zeros((n,) + src.shape[1:], dtype=src.dtype)
    return out.index_add_(0, seg, src)
def _pad(x, pw):
    flat = tuple(v for pair in reversed(pw) for v in pair)
    return torch.nn.functional.pad(x, flat)

kernel_name = 'recurrent_scan__softmax_full_mha__geglu_ffn__prompt'

def setup_inputs():

    _w = (lambda a: (lambda t: t.to(torch.bfloat16) if t.is_floating_point() else t)(torch.as_tensor(a)))
    def _A_setup():
        B, S, D = 1, 2048, 640
        return {
            "x": _w((lambda *s: torch.randn(*s, dtype=torch.bfloat16) * 0.05)(B, S, D)),
            "wqkv": _w((lambda *s: torch.randn(*s, dtype=torch.bfloat16) * 0.05)(D, 3 * D)),
            "wo": _w((lambda *s: torch.randn(*s, dtype=torch.bfloat16) * 0.05)(D, D)),
        }
    _A_in = _A_setup()

    def _B_setup():
        B, S, D, F = 1, 2048, 640, 1728
        return {
            "x": _w((lambda *s: torch.randn(*s, dtype=torch.bfloat16) * 0.05)(B, S, D)),
            "w_gate": _w((lambda *s: torch.randn(*s, dtype=torch.bfloat16) * 0.05)(D, F)),
            "w_up": _w((lambda *s: torch.randn(*s, dtype=torch.bfloat16) * 0.05)(D, F)),
            "w_down": _w((lambda *s: torch.randn(*s, dtype=torch.bfloat16) * 0.05)(F, D)),
        }
    _B_in = _B_setup()

    return {
        "A_x": _A_in["x"],
        "A_wqkv": _A_in["wqkv"],
        "A_wo": _A_in["wo"],
        "B_x": _B_in["x"],
        "B_w_gate": _B_in["w_gate"],
        "B_w_up": _B_in["w_up"],
        "B_w_down": _B_in["w_down"],
    }

def reference(A_x, A_wqkv, A_wo, B_x, B_w_gate, B_w_up, B_w_down):
    def _A_ref(x, wqkv, wo):
        B, S, D = x.shape
        H = 32; Dh = D // H
        qkv = (lambda x, *d: x.permute(*d))((x @ wqkv).reshape(B, S, 3, H, Dh), 2, 0, 3, 1, 4)
        q, k, v = qkv[0], qkv[1], qkv[2]
        scale = Dh ** -0.5
        scores = torch.einsum("bhqd,bhkd->bhqk", q, k) * scale
        p = _softmax(scores, axis=-1)
        o = torch.einsum("bhqk,bhkd->bhqd", p, v)
        return (lambda x, *d: x.permute(*d))(o, 0, 2, 1, 3).reshape(B, S, D) @ wo

    def _B_ref(x, w_gate, w_up, w_down):
        return (_gelu(x @ w_gate) * (x @ w_up)) @ w_down

    x = A_x
    xn = _layernorm(x, axis=-1)
    s = _A_ref(xn, A_wqkv, A_wo)
    g = _silu(_B_ref(xn, B_w_gate, B_w_up, B_w_down))
    return x + s * g
```

```python
import re

class Asm:
    def __init__(self):
        self.lines = []
    def __call__(self, s=""):
        for l in s.split("\n"):
            self.lines.append(l if (l.endswith(":") or l.startswith(".") or l.startswith(";")) else "    " + l.strip())
    def ext(self, ls):
        for l in ls: self(l)
    def text(self): return "\n".join(self.lines) + "\n"

def v(a, n=1): return f"v{a}" if n == 1 else f"v[{a}:{a+n-1}]"
def s(a, n=1): return f"s{a}" if n == 1 else f"s[{a}:{a+n-1}]"

def mf32(d, a, b, c=None):
    return f"v_mfma_f32_32x32x16_bf16 {v(d,16)}, {v(a,4)}, {v(b,4)}, {v(d,16) if c is None else c}"
def mf8(d, a, b, c=None):
    return f"v_mfma_f32_32x32x8_bf16 {v(d,16)}, {v(a,2)}, {v(b,2)}, {v(d,16) if c is None else c}"
def mf16(d, a, b, c=None):
    return f"v_mfma_f32_16x16x32_bf16 {v(d,4)}, {v(a,4)}, {v(b,4)}, {v(d,4) if c is None else c}"

_reg = re.compile(r"^(-|abs\()?([vsa])(\d+)\)?$|^(-)?([vsa])\[(\d+):(\d+)\]$")
def regs_of(op):
    op = op.strip()
    if op in ("vcc",): return {("s", 106), ("s", 107)}
    if op == "vcc_lo": return {("s", 106)}
    if op == "vcc_hi": return {("s", 107)}
    if op == "m0": return {("s", 124)}
    if op == "exec": return {("s", 126), ("s", 127)}
    if op == "exec_lo": return {("s", 126)}
    if op == "exec_hi": return {("s", 127)}
    m = _reg.match(op)
    if not m: return set()
    if m.group(2): return {(m.group(2), int(m.group(3)))}
    return {(m.group(5), i) for i in range(int(m.group(6)), int(m.group(7)) + 1)}

TRANS = ("v_exp_f32", "v_log_f32", "v_rcp_f32", "v_rsq_f32", "v_sqrt_f32", "v_sin_f32", "v_cos_f32")
def parse(line):
    l = line.split(";")[0].strip()
    if not l or l.endswith(":") or l.startswith("."): return None
    parts = l.split(None, 1)
    op = parts[0]
    args = []
    if len(parts) > 1:
        raw = [a.strip() for a in re.sub(r" op_sel.*", "", parts[1]).split(",")]
        for a in raw:
            args.append(a.split()[0] if a else a)
    d = dict(op=op, args=args, text=l, wr=set(), rd=set(), cls="other", srcC=set(), srcAB=set())
    if op.startswith("v_mfma"):
        d["cls"] = "mfma"; d["wr"] = regs_of(args[0]); d["srcAB"] = regs_of(args[1]) | regs_of(args[2]); d["srcC"] = regs_of(args[3])
        d["rd"] = d["srcAB"] | d["srcC"]
        d["passes"] = 4 if "16x16" in op else 8
    elif op.startswith("v_"):
        d["cls"] = "valu"
        d["wr"] = regs_of(args[0])
        rest = args[1:]
        if op.startswith(("v_add_co", "v_addc_co", "v_sub_co")):
            d["wr"] |= regs_of(args[1]); rest = args[2:]
        for a in rest: d["rd"] |= regs_of(a)
        if op.startswith(("v_fmac", "v_dot2c", "v_permlane", "v_writelane", "v_swap")): d["rd"] |= regs_of(args[0])
        if op.startswith(("v_permlane", "v_swap")): d["wr"] |= regs_of(args[1])
        if op.startswith("v_cmpx"): d["wr"] |= regs_of("exec")
    elif op.startswith(("buffer_", "global_")):
        d["cls"] = "vmem"
        lds = " lds" in l
        if "store" in op or ("atomic" in op):
            for a in args: d["rd"] |= regs_of(a)
            d["data"] = regs_of(args[0]) if op.startswith("buffer_") else regs_of(args[1])
            d["wide"] = op.endswith(("x3", "x4"))
            if "atomic" in op and " sc0" in l: d["wr"] = regs_of(args[0])
        elif op in ("buffer_inv", "buffer_wbl2"):
            pass
        elif lds:
            for a in args: d["rd"] |= regs_of(a)
            d["rd"] |= regs_of("m0"); d["dma"] = True
        else:
            d["wr"] = regs_of(args[0])
            for a in args[1:]: d["rd"] |= regs_of(a)
    elif op.startswith("ds_"):
        d["cls"] = "ds"
        if op.startswith(("ds_read", "ds_bpermute", "ds_permute", "ds_swizzle")):
            d["wr"] = regs_of(args[0])
            for a in args[1:]: d["rd"] |= regs_of(a)
        else:
            for a in args: d["rd"] |= regs_of(a)
    elif op.startswith("s_"):
        d["cls"] = "salu"
        if op.startswith(("s_cmp", "s_bitcmp", "s_branch", "s_cbranch", "s_waitcnt", "s_nop", "s_barrier", "s_endpgm", "s_sleep", "s_setprio")):
            for a in args: d["rd"] |= regs_of(a)
        else:
            d["wr"] = regs_of(args[0])
            for a in args[1:]: d["rd"] |= regs_of(a)
            if "saveexec" in op: d["wr"] |= regs_of("exec")
    return d

def states(i):
    if i["op"] == "s_nop": return int(i["args"][0], 0) + 1
    return 1

def need(p, c):
    n = 0
    pv = {r for r in p["wr"] if r[0] in "va"}; ps = {r for r in p["wr"] if r[0] == "s"}
    if p["cls"] == "valu":
        if c["cls"] == "mfma" and pv & c["rd"]: n = max(n, 3 if p["op"].startswith("v_dot") else 2)
        if c["cls"] == "mfma" and (ps & regs_of("exec")): n = max(n, 4)
        if c["op"].startswith("v_permlane") and pv & c["rd"]: n = max(n, 2)
        if c["op"].startswith(("v_readlane", "v_readfirstlane")) and pv & c["rd"]: n = max(n, 1)
        if "dpp" in c["text"] and c["cls"] == "valu" and pv & c["rd"]: n = max(n, 2)
        if p["op"].startswith(TRANS) and c["cls"] == "valu" and not c["op"].startswith(TRANS) and pv & c["rd"]: n = max(n, 1)
        if p["op"].startswith(TRANS) and c["cls"] in ("vmem", "ds") and pv & c["rd"]: n = max(n, 1)
        if p["op"].startswith("v_dot"):
            if c["op"] == p["op"]:
                ab = set()
                for a in c["args"][1:3]: ab |= regs_of(a)
                if pv & ab: n = max(n, 3)
            elif pv & (c["rd"] | c["wr"]): n = max(n, 3)
        if ps:
            if c["cls"] == "vmem" and ps & c["rd"]: n = max(n, 5)
            if c["cls"] == "valu" and ps & c["rd"]:
                n = max(n, 4 if c["op"].startswith(("v_readlane", "v_writelane")) else 2)
            if c["cls"] == "salu" and ps & c["rd"]: n = max(n, 1)
    if p["cls"] == "salu" and regs_of("m0") & p["wr"] and c.get("dma"): n = max(n, 1)
    if p["cls"] == "mfma":
        T = {4: (6, 8, 3), 8: (10, 12, 7)}[p["passes"]]
        if c["cls"] == "mfma":
            if p["wr"] & c["srcAB"]: n = max(n, T[1])
            if p["wr"] & c["srcC"] and not (p["wr"] == c["srcC"] and p["passes"] == c["passes"]): n = max(n, T[0])
            if p["wr"] & c["wr"] and not (p["wr"] & c["srcC"]): n = max(n, T[0])
        elif c["cls"] in ("valu", "vmem", "ds"):
            if p["wr"] & (c["rd"] | c["wr"]): n = max(n, T[1])
            if c["cls"] == "valu" and p["srcC"] & c["wr"]: n = max(n, T[2])
    if p["cls"] == "vmem" and p.get("wide") and p["data"] & c["wr"]:
        n = max(n, 2 if c["cls"] in ("valu", "mfma") else 1)
    return n

def check_hazards(text):
    lines = text.split("\n")
    ins = []; labels = {}
    for ln, l in enumerate(lines):
        t = l.split(";")[0].strip()
        if t.endswith(":"): labels[t[:-1]] = len(ins); continue
        p = parse(l)
        if p: p["ln"] = ln + 1; ins.append(p)
    problems = set()
    W = 21
    def succ(i):
        op = ins[i]["op"]
        if op == "s_endpgm": return []
        if op == "s_branch": return [labels[ins[i]["args"][0]]]
        if op.startswith("s_cbranch"): return [i + 1, labels[ins[i]["args"][0]]]
        if op in ("s_setpc_b64", "s_swappc_b64"): return []
        return [i + 1]
    for i, p in enumerate(ins):
        if p["cls"] in ("ds",) or (p["cls"] == "salu" and not (regs_of("m0") & p["wr"])) or (p["cls"] == "vmem" and not p.get("wide")): continue
        stack = [(j, 0) for j in succ(i)]; seen = set()
        while stack:
            j, dist = stack.pop()
            if j >= len(ins) or dist >= W or (j, dist) in seen: continue
            seen.add((j, dist))
            c = ins[j]
            n = need(p, c)
            if n > dist: problems.add((p["ln"], c["ln"], n, dist, p["text"], c["text"]))
            for k in succ(j): stack.append((k, dist + states(c)))
    return sorted(problems)
```

```python
import sys, math, struct
from asmlib import *

NAME = "recurrent_scan__softmax_full_mha__geglu_ffn__prompt"
QK_OFF = 0
V_OFF = 160 * 32768
H_OFF = V_OFF + 32 * 81920
O_OFF = H_OFF + 128 * 55296
FLAG_OFF = O_OFF + 128 * 20480
WS_BYTES = FLAG_OFF + 65536
def f2u(x): return "0x%08x" % struct.unpack("<I", struct.pack("<f", x))[0]
LOG2E = math.log2(math.e)
QSCALE = 20 ** -0.5 * LOG2E
GC0 = -2.0 * LOG2E * math.sqrt(2.0 / math.pi)
GC1 = GC0 * 0.044715
SC1 = " sc1"

P_X, P_WQKV, P_WO, P_WG, P_WU, P_WD, P_OUT, P_DBG, P_WS = 4, 6, 8, 12, 14, 16, 18, 20, 22
S_WS = 24
S_A = 28
S_B = 32
S_C = 36
S_WV = 40

def srd(a, d, p, nbytes):
    a(f"s_mov_b32 {s(d)}, {s(p)}")
    a(f"s_mov_b32 {s(d+1)}, {s(p+1)}")
    a(f"s_mov_b32 {s(d+2)}, {nbytes}")
    a(f"s_mov_b32 {s(d+3)}, 0x00020000")

def load_args(a):
    a("s_load_dwordx16 s[4:19], s[0:1], 0")
    a("s_load_dwordx4 s[20:23], s[0:1], 64")

def gen_g1(a, pfx):
    X, ACC, G, WF = 96, 32, 64, 16
    vL, vTR, vTR2, vDC, vDN, vDF, vST, vS, vC0, vC1, vK, vSTH = 1, 2, 3, 4, 5, 6, 7, 8, 9, 10, 11, 12
    sRB, sCG, sTT, sM, sN, sNT, sNQ, sP0 = 41, 42, 43, 44, 45, 46, 47, 48
    sOC, sD1C, sON, sD1N, sD2N = 49, 50, 51, 52, 53
    sT0, sT1, sT2, sT3, sSO = 54, 55, 56, 57, 58
    sONE, sLO, sHI = 59, 60, 61
    SC, SN = S_B, S_C
    a(f"v_and_b32 {v(vL)}, 63, v0")
    a(f"v_lshrrev_b32 v13, 6, v0")
    a(f"s_and_b32 {s(sT0)}, s2, 7")
    a(f"v_readfirstlane_b32 {s(S_WV)}, v13")
    a(f"s_lshr_b32 {s(sT1)}, s2, 3")
    a(f"s_lshr_b32 {s(sRB)}, {s(sT0)}, 1")
    a(f"s_lshl_b32 {s(sRB)}, {s(sRB)}, 2")
    a(f"s_and_b32 {s(sT2)}, {s(sT1)}, 3")
    a(f"s_add_u32 {s(sRB)}, {s(sRB)}, {s(sT2)}")
    a(f"s_and_b32 {s(sCG)}, {s(sT0)}, 1")
    a(f"s_lshl_b32 {s(sCG)}, {s(sCG)}, 3")
    a(f"s_lshr_b32 {s(sT2)}, {s(sT1)}, 2")
    a(f"s_add_u32 {s(sCG)}, {s(sCG)}, {s(sT2)}")
    a(f"s_lshl_b32 {s(sTT)}, {s(sRB)}, 2")
    a(f"s_add_u32 {s(sTT)}, {s(sTT)}, {s(S_WV)}")
    vXA = ACC
    a(f"v_lshrrev_b32 v14, 3, {v(vL)}")
    a(f"v_mul_u32_u24 {v(vXA)}, 1280, v14")
    a(f"v_and_b32 v15, 7, {v(vL)}")
    a(f"v_lshl_add_u32 {v(vXA)}, v15, 4, {v(vXA)}")
    a(f"s_mul_i32 {s(sT0)}, {s(sTT)}, 40960")
    a(f"s_add_u32 {s(sT1)}, {s(sT0)}, 10240")
    a(f"s_add_u32 {s(sT2)}, {s(sT0)}, 20480")
    a(f"s_add_u32 {s(sT3)}, {s(sT0)}, 30720")
    a("s_waitcnt lgkmcnt(0)")
    srd(a, S_A, P_X, 2048 * 1280)
    for b in range(10):
        for i in range(4):
            a(f"buffer_load_dwordx4 {v(X+16*b+4*i,4)}, {v(vXA)}, {s(S_A,4)}, {s(sT0+i)} offen offset:{b*128}")
    srd(a, S_WS, P_WS, WS_BYTES)
    a(f"s_cmp_lt_u32 {s(sCG)}, 15")
    a(f"s_cselect_b32 {s(sNQ)}, 2, 0")
    a(f"s_cselect_b32 {s(sNT)}, 4, 6")
    a(f"s_add_u32 {s(sP0)}, {s(sCG)}, 9")
    a(f"s_lshl_b32 {s(sT0)}, {s(sCG)}, 1")
    a(f"s_cmp_lt_u32 {s(sCG)}, 9")
    a(f"s_cselect_b32 {s(sNT)}, 6, {s(sNT)}")
    a(f"s_cselect_b32 {s(sP0)}, {s(sT0)}, {s(sP0)}")
    a(f"s_lshl_b32 {s(sM)}, {s(S_WV)}, 12")
    a(f"v_bfe_u32 v14, {v(vL)}, 2, 3")
    a(f"v_lshl_add_u32 v14, v13, 5, v14")
    a(f"v_lshrrev_b32 v15, 5, {v(vL)}")
    a(f"v_lshlrev_b32 {v(vDC)}, 6, v15")
    a(f"v_and_b32 {v(vDN)}, 3, {v(vL)}")
    a(f"v_lshl_add_u32 {v(vDC)}, {v(vDN)}, 4, {v(vDC)}")
    a(f"v_mul_u32_u24 {v(vDF)}, 3456, v14")
    a(f"v_add_u32 {v(vDF)}, {v(vDF)}, {v(vDC)}")
    a(f"v_mul_u32_u24 {v(vDN)}, 3840, v14")
    a(f"v_add_u32 {v(vDN)}, {v(vDN)}, {v(vDC)}")
    a(f"s_mov_b32 {s(SN+3)}, 0x00020000")
    a(f"s_mov_b32 {s(SC+3)}, 0x00020000")
    a(f"s_mov_b32 {s(sN)}, 0")

    def next_params(nreg, tag):
        a(f"s_cmp_lt_u32 {s(nreg)}, {s(sNQ)}")
        a(f"s_cbranch_scc1 {pfx}_np_q{tag}")
        a(f"s_sub_u32 {s(sT0)}, {s(nreg)}, {s(sNQ)}")
        a(f"s_lshr_b32 {s(sT1)}, {s(sT0)}, 1")
        a(f"s_add_u32 {s(sT1)}, {s(sT1)}, {s(sP0)}")
        a(f"s_lshl_b32 {s(sON)}, {s(sT1)}, 7")
        a(f"s_bitcmp1_b32 {s(sT0)}, 0")
        a(f"s_cselect_b32 {s(SN)}, {s(P_WU)}, {s(P_WG)}")
        a(f"s_cselect_b32 {s(SN+1)}, {s(P_WU+1)}, {s(P_WG+1)}")
        a(f"s_cmp_lt_u32 {s(nreg)}, {s(sNT)}")
        a(f"s_cselect_b32 {s(SN+2)}, {640*3456}, 0")
        a(f"s_mov_b32 {s(sD1N)}, {8*3456-1024}")
        a(f"s_mov_b32 {s(sD2N)}, {128*3456-3*(8*3456-1024)}")
        a(f"v_mov_b32 {v(vDN)}, {v(vDF)}")
        a(f"s_branch {pfx}_np_e{tag}")
        a(f"{pfx}_np_q{tag}:")
        a(f"s_lshl_b32 {s(sT0)}, {s(sCG)}, 1")
        a(f"s_add_u32 {s(sT0)}, {s(sT0)}, {s(nreg)}")
        a(f"s_lshl_b32 {s(sON)}, {s(sT0)}, 7")
        a(f"s_mov_b32 {s(SN)}, {s(P_WQKV)}")
        a(f"s_mov_b32 {s(SN+1)}, {s(P_WQKV+1)}")
        a(f"s_mov_b32 {s(SN+2)}, {640*3840}")
        a(f"s_mov_b32 {s(sD1N)}, {8*3840-1024}")
        a(f"s_mov_b32 {s(sD2N)}, {128*3840-3*(8*3840-1024)}")
        a(f"{pfx}_np_e{tag}:")
    def dma_group(slot, cur):
        vd, sr, so, d1, d2 = (vDC, SC, sOC, sD1C, None) if cur else (vDN, SN, sON, sD1N, sD2N)
        out = [[f"s_add_u32 m0, {s(sM)}, {slot*16384}"]]
        for i in range(4):
            g = [f"buffer_load_dwordx4 {v(vd)}, {s(sr,4)}, {s(so)} offen offset:{i*1024} lds"]
            if i < 3: g.append(f"s_add_u32 {s(so)}, {s(so)}, {s(d1)}")
            elif d2 is not None: g.append(f"s_add_u32 {s(so)}, {s(so)}, {s(d2)}")
            out.append(g)
        return out
    next_params(sN, "0")
    for st in range(4):
        gr = dma_group(st, False)
        a.ext(gr[0]); a("s_nop 0")
        for g in gr[1:]: a.ext(g)
    vW0, vW1, vR0 = ACC + 1, ACC + 2, ACC + 4
    vSa, vQa = ACC + 8, ACC + 12
    a(f"s_add_u32 {s(sT0)}, {s(sM)}, 65536")
    a(f"v_lshrrev_b32 v14, 4, {v(vL)}")
    a(f"v_and_b32 v15, 7, {v(vL)}")
    a(f"v_xor_b32 v14, v14, v15")
    a(f"v_lshlrev_b32 v14, 4, v14")
    a(f"v_lshrrev_b32 v15, 3, {v(vL)}")
    a(f"v_lshl_add_u32 v14, v15, 7, v14")
    a(f"v_add_u32 {v(vW0)}, {s(sT0)}, v14")
    a(f"v_xor_b32 {v(vW1)}, 64, {v(vW0)}")
    a(f"v_bfe_u32 v14, {v(vL)}, 1, 3")
    a(f"v_lshrrev_b32 v15, 5, {v(vL)}")
    a(f"v_xor_b32 v14, v14, v15")
    a(f"v_lshlrev_b32 v14, 4, v14")
    a(f"v_and_b32 v15, 31, {v(vL)}")
    a(f"v_lshl_add_u32 v14, v15, 7, v14")
    a(f"v_add_u32 {v(vR0)}, {s(sT0)}, v14")
    for q in range(1, 4): a(f"v_xor_b32 {v(vR0+q)}, {32*q}, {v(vR0)}")
    for i in range(8): a(f"v_mov_b32 {v(vSa+i)}, 0")
    a(f"s_mov_b32 {s(sONE)}, 0x3f803f80")
    a(f"s_mov_b32 {s(sLO)}, 0x00003f80")
    a(f"s_mov_b32 {s(sHI)}, 0x3f800000")
    a(f"v_lshrrev_b32 v14, 5, {v(vL)}")
    a(f"v_lshlrev_b32 {v(vTR)}, 10, v14")
    a(f"v_bfe_u32 v15, {v(vL)}, 2, 2")
    a(f"v_lshl_add_u32 {v(vTR)}, v15, 6, {v(vTR)}")
    a(f"v_bfe_u32 v15, {v(vL)}, 4, 1")
    a(f"v_lshl_add_u32 {v(vTR)}, v15, 5, {v(vTR)}")
    a(f"v_and_b32 v15, 1, {v(vL)}")
    a(f"v_lshl_add_u32 {v(vTR)}, v15, 4, {v(vTR)}")
    a(f"v_bfe_u32 v15, {v(vL)}, 1, 1")
    a(f"v_lshl_add_u32 {v(vTR)}, v15, 3, {v(vTR)}")
    a(f"v_add_u32 {v(vTR2)}, 0x10000, {v(vTR)}")
    a(f"v_lshlrev_b32 {v(vST)}, 15, v14")
    a(f"v_and_b32 v15, 31, {v(vL)}")
    a(f"v_lshl_add_u32 {v(vST)}, v15, 4, {v(vST)}")
    a(f"v_bfe_u32 v15, {v(vL)}, 4, 1")
    a(f"v_mul_u32_u24 {v(vSTH)}, 55296, v15")
    a(f"v_lshl_add_u32 {v(vSTH)}, v14, 8, {v(vSTH)}")
    a(f"v_and_b32 v15, 15, {v(vL)}")
    a(f"v_lshl_add_u32 {v(vSTH)}, v15, 4, {v(vSTH)}")
    def stats(b):
        for r in range(16):
            a(f"v_dot2c_f32_bf16 {v(vSa+(r&3))}, {s(sONE)}, {v(X+16*b+r)}")
            a(f"v_dot2c_f32_bf16 {v(vQa+(r&3))}, {v(X+16*b+r)}, {v(X+16*b+r)}")
    for b in range(10):
        a(f"s_waitcnt vmcnt({56-4*(b+1)})")
        for i in range(4): a(f"ds_write_b128 {v(vW1 if i&1 else vW0)}, {v(X+16*b+4*i,4)} offset:{i*1024}")
        for q in range(4): a(f"ds_read_b128 {v(X+16*b+4*q,4)}, {v(vR0+q)}")
        if b > 0:
            a("s_waitcnt lgkmcnt(8)")
            stats(b - 1)
    a("s_waitcnt lgkmcnt(0)")
    stats(9)
    a("s_nop 2")
    a(f"v_add_f32 {v(vSa)}, {v(vSa)}, {v(vSa+1)}")
    a(f"v_add_f32 {v(vSa+2)}, {v(vSa+2)}, {v(vSa+3)}")
    a(f"v_add_f32 {v(vQa)}, {v(vQa)}, {v(vQa+1)}")
    a(f"v_add_f32 {v(vQa+2)}, {v(vQa+2)}, {v(vQa+3)}")
    a(f"v_add_f32 {v(vSa)}, {v(vSa)}, {v(vSa+2)}")
    a(f"v_add_f32 {v(vQa)}, {v(vQa)}, {v(vQa+2)}")
    a(f"v_mov_b32 {v(vSa+1)}, {v(vSa)}")
    a(f"v_mov_b32 {v(vQa+1)}, {v(vQa)}")
    a("s_nop 1")
    a(f"v_permlane32_swap_b32 {v(vSa)}, {v(vSa+1)}")
    a(f"v_permlane32_swap_b32 {v(vQa)}, {v(vQa+1)}")
    a(f"v_add_f32 {v(vSa)}, {v(vSa)}, {v(vSa+1)}")
    a(f"v_add_f32 {v(vQa)}, {v(vQa)}, {v(vQa+1)}")
    vNM = ACC + 3
    a(f"v_mul_f32 {v(vSa)}, {f2u(1/640)}, {v(vSa)}")
    a(f"v_mul_f32 {v(vQa)}, {f2u(1/640)}, {v(vQa)}")
    a(f"v_fma_f32 {v(vQa)}, -{v(vSa)}, {v(vSa)}, {v(vQa)}")
    a(f"v_max_f32 {v(vQa)}, 0, {v(vQa)}")
    a(f"v_cvt_pk_bf16_f32 {v(vNM)}, {v(vQa)}, -{v(vSa)}")
    a(f"v_lshlrev_b32 {v(vQa)}, 16, {v(vNM)}")
    a(f"v_and_b32 {v(vNM)}, 0xffff0000, {v(vNM)}")
    a(f"v_add_f32 {v(vQa)}, {f2u(1e-5)}, {v(vQa)}")
    a(f"v_cvt_pk_bf16_f32 {v(vQa)}, {v(vQa)}, {v(vQa)}")
    a(f"v_lshlrev_b32 {v(vQa)}, 16, {v(vQa)}")
    a(f"v_sqrt_f32 {v(vQa)}, {v(vQa)}")
    a("s_nop 0")
    a(f"v_cvt_pk_bf16_f32 {v(vQa)}, {v(vQa)}, {v(vQa)}")
    a(f"v_lshlrev_b32 {v(vQa)}, 16, {v(vQa)}")
    a(f"v_rcp_f32 {v(vS)}, {v(vQa)}")
    a(f"v_mul_f32 {v(vK)}, {v(vQa)}, {v(vQa)}")
    a(f"v_mul_f32 {v(vC0)}, {f2u(GC0)}, {v(vS)}")
    a(f"v_mul_f32 {v(vC1)}, {v(vS)}, {v(vS)}")
    a(f"v_mul_f32 {v(vC1)}, {v(vC1)}, {v(vS)}")
    a(f"v_mul_f32 {v(vC1)}, {f2u(GC1)}, {v(vC1)}")
    a(f"s_cmp_lt_u32 {s(sCG)}, 5")
    a(f"s_cselect_b32 {s(sT0)}, {f2u(QSCALE)}, 1.0")
    a(f"v_mul_f32 {v(vS)}, {s(sT0)}, {v(vS)}")
    def trd(tile, k):
        kk = k % 40
        slot, ks = kk // 8, kk % 8
        base, off = (vTR2, 0) if slot == 4 else (vTR, slot * 16384)
        d = WF + 8 * tile + 4 * (k & 1)
        return [f"ds_read_b64_tr_b16 {v(d+2*t,2)}, {v(base)} offset:{off+ks*2048+tile*512+t*256}" for t in range(2)]
    a("s_waitcnt vmcnt(12)")
    a("s_barrier")
    for k in range(2):
        for t in range(2): a.ext(trd(t, k))
    T = G
    for r0 in range(0, 160, 4):
        for j in range(4):
            a(f"v_dot2_f32_bf16 {v(T+2*j)}, {v(X+r0+j)}, {s(sLO)}, {v(vNM)}")
            a(f"v_dot2_f32_bf16 {v(T+2*j+1)}, {v(X+r0+j)}, {s(sHI)}, {v(vNM)}")
        for j in range(4):
            a(f"v_cvt_pk_bf16_f32 {v(X+r0+j)}, {v(T+2*j)}, {v(T+2*j+1)}")
    a(f"{pfx}_loop:")
    a(f"s_mov_b32 {s(SC)}, {s(SN)}")
    a(f"s_mov_b32 {s(SC+1)}, {s(SN+1)}")
    a(f"s_mov_b32 {s(SC+2)}, {s(SN+2)}")
    a(f"s_mov_b32 {s(sOC)}, {s(sON)}")
    a(f"s_mov_b32 {s(sD1C)}, {s(sD1N)}")
    a(f"v_mov_b32 {v(vDC)}, {v(vDN)}")
    a(f"s_add_u32 {s(sT3)}, {s(sN)}, 1")
    next_params(sT3, "1")
    a("s_waitcnt lgkmcnt(0)")
    pend = []
    for k in range(40):
        for t in range(2):
            a(mf32(ACC + 16 * t, WF + 8 * t + 4 * (k & 1), X + 4 * k, "0" if k == 0 else None))
            if t == 0 and k % 8 == 6:
                a("s_waitcnt vmcnt(8) lgkmcnt(4)")
                a("s_barrier")
                st = k // 8
                pend = dma_group(4, True) if st == 0 else dma_group(st - 1, False)
            else:
                a("s_waitcnt lgkmcnt(4)")
            a.ext(trd(t, k + 2))
            if pend: a.ext(pend.pop(0))
    for g in pend: a.ext(g)
    a(f"s_cmp_lt_u32 {s(sN)}, {s(sNQ)}")
    a(f"s_cbranch_scc1 {pfx}_eq")
    a(f"s_bitcmp1_b32 {s(sN)}, 0")
    a(f"s_cbranch_scc1 {pfx}_eu")
    a("s_nop 7")
    for r0 in range(0, 32, 4):
        R = range(r0, r0 + 4)
        for r in R: a(f"v_mul_f32 {v(G+r)}, {v(ACC+r)}, {v(ACC+r)}")
        for r in R: a(f"v_fma_f32 {v(G+r)}, {v(G+r)}, {v(vC1)}, {v(vC0)}")
        for r in R: a(f"v_mul_f32 {v(G+r)}, {v(G+r)}, {v(ACC+r)}")
        for r in R: a(f"v_exp_f32 {v(G+r)}, {v(G+r)}")
        for r in R: a(f"v_fma_f32 {v(G+r)}, {v(G+r)}, {v(vK)}, {v(vK)}")
        for r in R: a(f"v_rcp_f32 {v(G+r)}, {v(G+r)}")
        for r in R: a(f"v_mul_f32 {v(G+r)}, {v(G+r)}, {v(ACC+r)}")
    a(f"s_branch {pfx}_enext")
    a(f"{pfx}_eu:")
    a(f"s_sub_u32 {s(sT0)}, {s(sN)}, {s(sNQ)}")
    a(f"s_lshr_b32 {s(sT0)}, {s(sT0)}, 1")
    a(f"s_add_u32 {s(sT0)}, {s(sT0)}, {s(sP0)}")
    a(f"s_lshl_b32 {s(sT0)}, {s(sT0)}, 11")
    a(f"s_mul_i32 {s(sSO)}, {s(sTT)}, {2*55296}")
    a(f"s_add_u32 {s(sSO)}, {s(sSO)}, {s(sT0)}")
    a(f"s_add_u32 {s(sSO)}, {s(sSO)}, {H_OFF}")
    a("s_nop 0")
    for p in range(4):
        for r in range(8 * p, 8 * p + 8): a(f"v_mul_f32 {v(ACC+r)}, {v(ACC+r)}, {v(G+r)}")
        for j in range(4): a(f"v_cvt_pk_bf16_f32 {v(G+8*p+j)}, {v(ACC+8*p+2*j)}, {v(ACC+8*p+2*j+1)}")
        a(f"buffer_store_dwordx4 {v(G+8*p,4)}, {v(vSTH)}, {s(S_WS,4)}, {s(sSO)} offen offset:{p*512}{SC1}")
    a(f"s_branch {pfx}_enext")
    a(f"{pfx}_eq:")
    a(f"s_lshl_b32 {s(sT0)}, {s(sCG)}, 1")
    a(f"s_add_u32 {s(sT0)}, {s(sT0)}, {s(sN)}")
    a(f"s_lshl_b32 {s(sSO)}, {s(sT0)}, 18")
    a(f"s_lshl_b32 {s(sT1)}, {s(sTT)}, 9")
    a(f"s_add_u32 {s(sSO)}, {s(sSO)}, {s(sT1)}")
    a("s_nop 4")
    for p in range(4):
        for r in range(8 * p, 8 * p + 8): a(f"v_mul_f32 {v(ACC+r)}, {v(ACC+r)}, {v(vS)}")
        for j in range(4): a(f"v_cvt_pk_bf16_f32 {v(G+4*p+j)}, {v(ACC+8*p+2*j)}, {v(ACC+8*p+2*j+1)}")
    a(f"s_cmp_ge_u32 {s(sCG)}, 10")
    a(f"s_cbranch_scc1 {pfx}_ev")
    for p in range(4):
        a(f"buffer_store_dwordx4 {v(G+4*p,4)}, {v(vST)}, {s(S_WS,4)}, {s(sSO)} offen{SC1}")
        if p < 3: a(f"s_add_u32 {s(sSO)}, {s(sSO)}, 65536")
    a(f"s_branch {pfx}_enext")
    a(f"{pfx}_ev:")
    t0, t1, t2, t3, t4 = ACC, ACC + 1, ACC + 2, ACC + 3, ACC + 4
    a(f"s_add_u32 {s(sT1)}, {s(sM)}, 65536")
    a(f"v_and_b32 {v(t0)}, 31, {v(vL)}")
    a(f"v_lshrrev_b32 {v(t1)}, 5, {v(vL)}")
    a(f"v_lshlrev_b32 {v(t2)}, 6, {v(t0)}")
    a(f"v_lshl_add_u32 {v(t2)}, {v(t1)}, 4, {v(t2)}")
    a(f"v_add_u32 {v(t2)}, {s(sT1)}, {v(t2)}")
    a(f"v_bfe_u32 {v(t3)}, {v(vL)}, 2, 2")
    a(f"v_lshl_add_u32 {v(t3)}, {v(t1)}, 2, {v(t3)}")
    a(f"v_lshlrev_b32 {v(t3)}, 6, {v(t3)}")
    a(f"v_bfe_u32 {v(t4)}, {v(vL)}, 4, 1")
    a(f"v_lshl_add_u32 {v(t3)}, {v(t4)}, 5, {v(t3)}")
    a(f"v_and_b32 {v(t4)}, 3, {v(vL)}")
    a(f"v_lshl_add_u32 {v(t3)}, {v(t4)}, 3, {v(t3)}")
    a(f"v_add_u32 {v(t3)}, {s(sT1)}, {v(t3)}")
    a("s_barrier")
    for p in range(4):
        a(f"ds_write_b128 {v(t2)}, {v(G+4*p,4)} offset:{(p>>1)*2048+(p&1)*32}")
    for p in range(4):
        for u in range(2):
            a(f"ds_read_b64_tr_b16 {v(G+16+4*p+2*u,2)}, {v(t3)} offset:{(p>>1)*2048+(p&1)*1024+u*512}")
    a(f"s_sub_u32 {s(sT0)}, {s(sT0)}, 20")
    a(f"s_lshl_b32 {s(sT0)}, {s(sT0)}, 6")
    a(f"s_mul_i32 {s(sSO)}, {s(sTT)}, 1280")
    a(f"s_add_u32 {s(sSO)}, {s(sSO)}, {V_OFF}")
    a(f"s_mov_b32 {s(sT1)}, {81920-320}")
    a(f"v_mul_u32_u24 {v(t1)}, 320, {v(t1)}")
    for t in range(2):
        c, h, ad = ACC + 8 + 4 * t, ACC + 9 + 4 * t, ACC + 10 + 4 * t
        a(f"v_add_u32 {v(c)}, {s(sT0)}, {v(t0)}")
        if t: a(f"v_add_u32 {v(c)}, 32, {v(c)}")
        a(f"v_mul_u32_u24 {v(h)}, 3277, {v(c)}")
        a(f"v_lshrrev_b32 {v(h)}, 16, {v(h)}")
        a(f"v_lshl_add_u32 {v(ad)}, {v(c)}, 4, {v(t1)}")
        a(f"v_mad_u32_u24 {v(ad)}, {v(h)}, {s(sT1)}, {v(ad)}")
    for p in range(4):
        a(f"s_waitcnt lgkmcnt({6-2*p})")
        a(f"buffer_store_dwordx4 {v(G+16+4*p,4)}, {v(ACC+10+4*(p>>1))}, {s(S_WS,4)}, {s(sSO)} offen offset:{(p&1)*640}{SC1}")
    a(f"{pfx}_enext:")
    a(f"s_add_u32 {s(sN)}, {s(sN)}, 1")
    a(f"s_cmp_lt_u32 {s(sN)}, {s(sNT)}")
    a(f"s_cbranch_scc1 {pfx}_loop")

def gen_att(a, pfx, idreg):
    vL, vK1, vK2, vV0, vV1 = 1, 2, 3, 4, 5
    P, S, O, Q, KV = 24, 32, 64, 128, 152
    sHD, sQB, sKH, sQH, sK1, sK2, sV, sG, sIT = 41, 42, 43, 44, 45, 46, 47, 48, 49
    sK1b, sK2b, sVb = 50, 51, 52
    sT0, sT1, sT2, sT3 = 54, 55, 56, 57
    sVM = 58
    a(f"v_and_b32 {v(vL)}, 63, v0")
    a(f"v_lshrrev_b32 v6, 6, v0")
    a(f"s_and_b32 {s(sT0)}, {s(idreg)}, 7")
    a(f"v_readfirstlane_b32 {s(S_WV)}, v6")
    a(f"s_lshl_b32 {s(sHD)}, {s(sT0)}, 2")
    a(f"s_bfe_u32 {s(sT1)}, {s(idreg)}, {3 | (2<<16)}")
    a(f"s_add_u32 {s(sHD)}, {s(sHD)}, {s(sT1)}")
    a(f"s_bfe_u32 {s(sQB)}, {s(idreg)}, {5 | (3<<16)}")
    a(f"s_and_b32 {s(sQH)}, {s(S_WV)}, 1")
    a(f"s_lshr_b32 {s(sKH)}, {s(S_WV)}, 1")
    a(f"s_lshr_b32 {s(sT0)}, {s(sHD)}, 1")
    a(f"s_mul_i32 {s(sT0)}, {s(sT0)}, 5")
    a(f"s_and_b32 {s(sT1)}, {s(sHD)}, 1")
    a(f"s_mul_i32 {s(sT2)}, {s(sT1)}, 3")
    a(f"s_add_u32 {s(sT2)}, {s(sT2)}, {s(sT0)}")
    a(f"s_lshl_b32 {s(sK1b)}, {s(sT2)}, 15")
    a(f"s_add_u32 {s(sT0)}, {s(sT0)}, 2")
    a(f"s_lshl_b32 {s(sK2b)}, {s(sT0)}, 15")
    a(f"s_lshl_b32 {s(sT1)}, {s(sT1)}, 3")
    a(f"s_add_u32 {s(sK2b)}, {s(sK2b)}, {s(sT1)}")
    a(f"v_and_b32 v6, 31, {v(vL)}")
    a(f"v_lshrrev_b32 v7, 5, {v(vL)}")
    a(f"v_lshlrev_b32 {v(vK2)}, 4, v6")
    a(f"v_lshl_add_u32 {v(vK1)}, v7, 15, {v(vK2)}")
    a(f"v_mul_u32_u24 {v(vV0)}, 320, v7")
    a(f"v_add_u32 {v(vV0)}, {v(vV0)}, {v(vK2)}")
    a(f"v_add_u32 {v(vV1)}, 640, {v(vV0)}")
    a(f"s_mov_b32 {s(sVM)}, 0xfffff")
    a(f"s_mov_b32 {s(sVM+1)}, 0xfffff")
    a(f"v_cmp_eq_u32 vcc, 20, v6")
    a(f"v_mov_b32 v8, 0x3f803f80")
    a(f"v_mov_b32 v9, 0x00003f80")
    a(f"v_cndmask_b32 v10, 0, v8, vcc")
    for u in range(4):
        for r in range(4, 12): a(f"v_mov_b32 {v(KV+14*u+r)}, v10")
        a(f"v_mov_b32 {v(KV+14*u+12)}, v8")
        a(f"v_mov_b32 {v(KV+14*u+13)}, v9")
    for q in range(4):
        a(f"v_mov_b32 {v(Q+6*q+4)}, 0"); a(f"v_mov_b32 {v(Q+6*q+5)}, 0")
    for r in range(64): a(f"v_mov_b32 {v(O+r)}, 0")
    for r in range(8): a(f"v_mov_b32 {v(P+r)}, 0")
    a("s_waitcnt lgkmcnt(0)")
    srd(a, S_WS, P_WS, WS_BYTES)
    a(f"; @@ATT_WAIT@@")
    a(f"s_lshl_b32 {s(sT0)}, {s(sQB)}, 12")
    a(f"s_lshl_b32 {s(sT1)}, {s(sQH)}, 11")
    a(f"s_add_u32 {s(sT0)}, {s(sT0)}, {s(sT1)}")
    a(f"s_lshl_b32 {s(sT1)}, {s(sKH)}, 10")
    a(f"s_add_u32 {s(sT2)}, {s(sT0)}, {s(sT1)}")
    a(f"s_xor_b32 {s(sT3)}, {s(sT2)}, 1024")
    a(f"s_add_u32 {s(sT0)}, {s(sT2)}, {s(sK1b)}")
    a(f"s_add_u32 {s(sT1)}, {s(sT3)}, {s(sK1b)}")
    a(f"s_add_u32 {s(sT2)}, {s(sT2)}, {s(sK2b)}")
    a(f"s_add_u32 {s(sT3)}, {s(sT3)}, {s(sK2b)}")
    for q in range(4):
        a(f"buffer_load_dwordx4 {v(Q+6*q,4)}, {v(vK1)}, {s(S_WS,4)}, {s(sT0+(q>>1))} offen offset:{(q&1)*512}{SC1}")
    a("s_mov_b32 exec_hi, 0")
    for q in range(4):
        a(f"buffer_load_dwordx2 {v(Q+6*q+4,2)}, {v(vK2)}, {s(S_WS,4)}, {s(sT2+(q>>1))} offen offset:{(q&1)*512}{SC1}")
    a("s_mov_b32 exec_hi, -1")
    a(f"s_lshl_b32 {s(sT0)}, {s(sKH)}, 14")
    a(f"s_add_u32 {s(sT0)}, {s(sT0)}, {80*32768}")
    a(f"s_add_u32 {s(sK1b)}, {s(sK1b)}, {s(sT0)}")
    a(f"s_add_u32 {s(sK2b)}, {s(sK2b)}, {s(sT0)}")
    a(f"s_mul_i32 {s(sVb)}, {s(sHD)}, 81920")
    a(f"s_mul_i32 {s(sT0)}, {s(sKH)}, 40960")
    a(f"s_add_u32 {s(sVb)}, {s(sVb)}, {s(sT0)}")
    a(f"s_add_u32 {s(sVb)}, {s(sVb)}, {V_OFF}")
    a(f"s_mov_b32 {s(sG)}, {s(sQB)}")
    def setgrp():
        return [f"s_lshl_b32 {s(sT0)}, {s(sG)}, 11", f"s_add_u32 {s(sK1)}, {s(sK1b)}, {s(sT0)}", f"s_add_u32 {s(sK2)}, {s(sK2b)}, {s(sT0)}",
                f"s_mul_i32 {s(sT0)}, {s(sG)}, 5120", f"s_add_u32 {s(sV)}, {s(sVb)}, {s(sT0)}"]
    def kvload(u):
        b = KV + 14 * u
        return [f"buffer_load_dwordx4 {v(b,4)}, {v(vK1)}, {s(S_WS,4)}, {s(sK1)} offen offset:{u*512}{SC1}",
                "s_mov_b32 exec_hi, 0",
                f"buffer_load_dwordx2 {v(b+12,2)}, {v(vK2)}, {s(S_WS,4)}, {s(sK2)} offen offset:{u*512}{SC1}",
                f"s_mov_b64 exec, {s(sVM,2)}",
                f"buffer_load_dwordx4 {v(b+4,4)}, {v(vV0)}, {s(S_WS,4)}, {s(sV)} offen offset:{u*1280}{SC1}",
                f"buffer_load_dwordx4 {v(b+8,4)}, {v(vV1)}, {s(S_WS,4)}, {s(sV)} offen offset:{u*1280}{SC1}",
                "s_mov_b64 exec, -1"]
    a.ext(setgrp())
    for u in range(3): a.ext(kvload(u))
    a(f"s_mov_b32 {s(sIT)}, 8")
    a("s_waitcnt vmcnt(8)")
    a(mf32(S, KV, Q, "0"))
    a(mf8(S, KV + 12, Q + 4))
    a("s_nop 11")
    a(".p2align 3")
    a(f"{pfx}_loop:")
    for u in range(4):
        b = KV + 14 * u; bn = KV + 14 * ((u + 1) & 3); bp = KV + 14 * ((u - 1) & 3)
        salu = []
        if u == 0: salu = [f"s_add_u32 {s(sG)}, {s(sG)}, 1", f"s_and_b32 {s(sG)}, {s(sG)}, 7"] + setgrp()
        if u == 3: salu = [f"s_sub_u32 {s(sIT)}, {s(sIT)}, 1", f"s_cmp_lg_u32 {s(sIT)}, 0"]
        for q in range(4):
            Sc = S + 16 * (q & 1); Sn = S + 16 * ((q + 1) & 1)
            qn, qp = (q + 1) & 3, (q - 1) & 3
            kn = b if q < 3 else bn
            kp = b if q > 0 else bp
            ex = [f"v_exp_f32 {v(Sc+i)}, {v(Sc+i)}" for i in range(16)]
            cv = [f"v_cvt_pk_bf16_f32 {v(P+i)}, {v(Sc+2*i)}, {v(Sc+2*i+1)}" for i in range(8)]
            def free():
                if salu: a(salu.pop(0))
            a.ext(ex[0:2])
            a(mf32(O + 16 * qp, kp + 8, P + 4))
            if q == 0: a.ext(kvload((u + 3) & 3))
            elif q == 3: a("s_waitcnt vmcnt(8)")
            else: free()
            a.ext(ex[2:6] + cv[0:2])
            a(mf32(Sn, kn, Q + 6 * qn, "0"))
            free()
            a.ext(ex[6:9] + cv[2:4])
            a(mf8(Sn, kn + 12, Q + 6 * qn + 4))
            a.ext(ex[9:13] + cv[4:5])
            a(mf32(O + 16 * q, b + 4, P))
            free()
            a.ext(ex[13:16] + cv[5:8])
        assert not salu
    a(f"s_cbranch_scc1 {pfx}_loop")
    a("s_nop 0")
    a(mf32(O + 48, KV + 14 * 3 + 8, P + 4))
    a(f"s_mul_i32 {s(sT0)}, {s(S_WV)}, 6144")
    a(f"s_xor_b32 {s(sT1)}, {s(S_WV)}, 2")
    a(f"s_mul_i32 {s(sT1)}, {s(sT1)}, 6144")
    a(f"v_lshlrev_b32 v6, 4, {v(vL)}")
    a(f"v_add_u32 v7, {s(sT1)}, v6")
    a(f"v_add_u32 v6, {s(sT0)}, v6")
    for j in range(3): a(f"ds_write_b128 v6, {v(O+32+4*j,4)} offset:{j*1024}")
    a(f"v_bfe_u32 v8, {v(vL)}, 4, 1")
    a(f"v_mul_u32_u24 v8, 20480, v8")
    a(f"v_and_b32 v9, 15, {v(vL)}")
    a(f"v_lshl_add_u32 v8, v9, 4, v8")
    a(f"v_lshrrev_b32 v9, 5, {v(vL)}")
    a(f"v_lshl_add_u32 v9, v9, 8, v8")
    for j in range(3): a(f"ds_write_b128 v6, {v(O+48+4*j,4)} offset:{3072+j*1024}")
    a(f"s_lshl_b32 {s(sT0)}, {s(sQB)}, 3")
    a(f"s_lshl_b32 {s(sT1)}, {s(sQH)}, 2")
    a(f"s_add_u32 {s(sT0)}, {s(sT0)}, {s(sT1)}")
    a(f"s_lshl_b32 {s(sT1)}, {s(sKH)}, 1")
    a(f"s_add_u32 {s(sT0)}, {s(sT0)}, {s(sT1)}")
    a(f"s_mul_i32 {s(sT0)}, {s(sT0)}, 40960")
    a(f"s_add_u32 {s(sT0)}, {s(sT0)}, {O_OFF}")
    a(f"s_lshl_b32 {s(sT1)}, {s(sHD)}, 9")
    a(f"s_add_u32 {s(sT1)}, {s(sT1)}, {s(sT0)}")
    a(f"s_lshr_b32 {s(sT2)}, {s(sHD)}, 1")
    a(f"s_lshl_b32 {s(sT2)}, {s(sT2)}, 8")
    a(f"s_and_b32 {s(sT3)}, {s(sHD)}, 1")
    a(f"s_lshl_b32 {s(sT3)}, {s(sT3)}, 3")
    a(f"s_add_u32 {s(sT2)}, {s(sT2)}, {s(sT3)}")
    a(f"s_add_u32 {s(sT2)}, {s(sT2)}, {s(sT0)}")
    a(f"s_add_u32 {s(sT2)}, {s(sT2)}, 16384")
    a("s_waitcnt lgkmcnt(0)")
    a("s_barrier")
    R = S
    for t in range(2):
        for j in range(3): a(f"ds_read_b128 {v(R+16*t+4*j,4)}, v7 offset:{t*3072+j*1024}")
    for t in range(2):
        a(f"s_waitcnt lgkmcnt({3-3*t})")
        o = O + 16 * t
        for r in range(12): a(f"v_add_f32 {v(o+r)}, {v(o+r)}, {v(R+16*t+r)}")
        a(f"v_mov_b32 v10, {v(o+8)}")
        a(f"v_mov_b32 v11, {v(o+8)}")
        a("s_nop 1")
        a("v_permlane32_swap_b32 v10, v11")
        a(f"v_rcp_f32 v12, v11")
        a("s_nop 0")
        for r in range(12): a(f"v_mul_f32 {v(o+r)}, {v(o+r)}, v12")
        for j in range(6): a(f"v_cvt_pk_bf16_f32 {v(14+j if t==0 else P+j)}, {v(o+2*j)}, {v(o+2*j+1)}")
        d = 14 if t == 0 else P
        a(f"buffer_store_dwordx4 {v(d,4)}, v9, {s(S_WS,4)}, {s(sT1)} offen{SC1}")
        a("s_mov_b32 exec_hi, 0")
        a(f"buffer_store_dwordx2 {v(d+4,2)}, v8, {s(S_WS,4)}, {s(sT2)} offen{SC1}")
        a("s_mov_b32 exec_hi, -1")
        if t == 0:
            a(f"s_add_u32 {s(sT1)}, {s(sT1)}, 40960")
            a(f"s_add_u32 {s(sT2)}, {s(sT2)}, 40960")

def gen_g2(a, pfx, standalone):
    vL, vTR, vTR3, vF, vXO = 1, 2, 3, 4, 5
    vD = 6
    XR = 12
    WF, AD, AS = 22, 42, 62
    HF = 82
    OF, WR = 82, 162
    T = 242
    sRT, sC8, sM, sWO, sHO, sIT = 41, 42, 43, 44, 45, 46
    sT0, sT1, sT2, sT3 = 54, 55, 56, 57
    SW, SX = S_B, S_A
    if standalone:
        a(f"v_and_b32 {v(vL)}, 63, v0")
        a(f"v_lshrrev_b32 {v(T)}, 6, v0")
        a("s_nop 0")
        a(f"v_readfirstlane_b32 {s(S_WV)}, {v(T)}")
    a(f"s_and_b32 {s(sT0)}, s2, 7")
    a(f"s_lshl_b32 {s(sRT)}, {s(sT0)}, 2")
    a(f"s_bfe_u32 {s(sT1)}, s2, {3 | (2<<16)}")
    a(f"s_add_u32 {s(sRT)}, {s(sRT)}, {s(sT1)}")
    a(f"s_lshl_b32 {s(sRT)}, {s(sRT)}, 2")
    a(f"s_add_u32 {s(sRT)}, {s(sRT)}, {s(S_WV)}")
    a(f"s_lshr_b32 {s(sC8)}, s2, 5")
    a(f"s_mul_i32 {s(sC8)}, {s(sC8)}, 160")
    a(f"s_mul_i32 {s(sM)}, {s(S_WV)}, 5120")
    def dma_addr(kind):
        for i in range(5):
            c, ir, ch, r, t = T, T + 1, T + 2, T + 3, T + 4
            a(f"v_add_u32 {v(c)}, {64*i}, {v(vL)}")
            a(f"v_mul_u32_u24 {v(ir)}, 6554, {v(c)}")
            a(f"v_lshrrev_b32 {v(ir)}, 16, {v(ir)}")
            a(f"v_mul_u32_u24 {v(ch)}, 10, {v(ir)}")
            a(f"v_sub_u32 {v(ch)}, {v(c)}, {v(ch)}")
            if kind == "wd":
                a(f"v_and_b32 {v(r)}, 0x13, {v(ir)}")
                a(f"v_bfe_u32 {v(t)}, {v(ir)}, 2, 1")
                a(f"v_lshl_add_u32 {v(r)}, {v(t)}, 3, {v(r)}")
                a(f"v_bfe_u32 {v(t)}, {v(ir)}, 3, 1")
                a(f"v_lshl_add_u32 {v(r)}, {v(t)}, 2, {v(r)}")
            elif kind == "wo":
                a(f"v_lshrrev_b32 {v(t)}, 4, {v(ir)}")
                a(f"v_lshl_add_u32 {v(r)}, {v(t)}, 2, {v(ir)}")
            else:
                a(f"v_lshrrev_b32 {v(r)}, 4, {v(ir)}")
                a(f"v_bfe_u32 {v(t)}, {v(ir)}, 2, 1")
                a(f"v_lshl_add_u32 {v(r)}, {v(r)}, 1, {v(t)}")
                a(f"v_bfe_u32 {v(t)}, {v(ir)}, 3, 1")
                a(f"v_lshl_add_u32 {v(r)}, {v(r)}, 1, {v(t)}")
                a(f"v_mul_u32_u24 {v(r)}, 20, {v(r)}")
                a(f"v_and_b32 {v(t)}, 3, {v(ir)}")
                a(f"v_add3_u32 {v(r)}, {v(r)}, {v(t)}, 16")
            a(f"v_mul_u32_u24 {v(r)}, 1280, {v(r)}")
            a(f"v_lshl_add_u32 {v(vD+i)}, {v(ch)}, 4, {v(r)}")
    def dma_stage(slot, step):
        out = []
        for i in range(5):
            out.append([f"s_add_u32 m0, {s(sM)}, {slot*20480+i*1024}", "s_nop 0",
                        f"buffer_load_dwordx4 {v(vD+i)}, {s(SW,4)}, {s(sWO)} offen lds"])
        out[-1].append(f"s_add_u32 {s(sWO)}, {s(sWO)}, {step}")
        return out
    def hload(st):
        return [f"buffer_load_dwordx4 {v(HF+16*st+4*j,4)}, {v(vF)}, {s(S_WS,4)}, {s(sHO)} offen offset:{j*1024}{SC1}" for j in range(4)] + \
               [f"s_add_u32 {s(sHO)}, {s(sHO)}, 4096"]
    def trd(d, slot, ks, mt):
        base, off = (vTR3, 0) if slot == 3 else (vTR, slot * 20480)
        return [f"ds_read_b64_tr_b16 {v(d+2*u,2)}, {v(base)} offset:{off+ks*5120+u*1280+8*mt}" for u in range(2)]
    dma_addr("wd")
    a(f"v_lshrrev_b32 {v(T)}, 5, {v(vL)}")
    a(f"v_bfe_u32 {v(T+1)}, {v(vL)}, 2, 3")
    a(f"v_lshl_add_u32 {v(T)}, {v(T)}, 4, {v(T+1)}")
    a(f"v_mul_u32_u24 {v(vTR)}, 160, {v(T)}")
    a(f"v_and_b32 {v(T)}, 3, {v(vL)}")
    a(f"v_mul_u32_u24 {v(T)}, 40, {v(T)}")
    a(f"v_add_u32 {v(vTR)}, {v(vTR)}, {v(T)}")
    a(f"v_add_u32 {v(vTR3)}, {3*20480}, {v(vTR)}")
    a(f"v_lshlrev_b32 {v(vF)}, 4, {v(vL)}")
    a(f"v_and_b32 {v(T)}, 15, {v(vL)}")
    a(f"v_mul_u32_u24 {v(vXO)}, 1280, {v(T)}")
    a(f"v_lshrrev_b32 {v(T)}, 4, {v(vL)}")
    a(f"v_mul_u32_u24 {v(T)}, 40, {v(T)}")
    a(f"v_add_u32 {v(vXO)}, {v(vXO)}, {v(T)}")
    for r in range(20): a(f"v_mov_b32 {v(AD+r)}, 0")
    if standalone:
        a("s_waitcnt lgkmcnt(0)")
        srd(a, S_WS, P_WS, WS_BYTES)
    srd(a, SW, P_WD, 1728 * 1280)
    srd(a, SX, P_X, 2048 * 1280)
    a(f"s_mul_i32 {s(sWO)}, {s(S_WV)}, {32*1280}")
    a(f"s_add_u32 {s(sWO)}, {s(sWO)}, {s(sC8)}")
    a(f"s_mul_i32 {s(sHO)}, {s(sRT)}, 55296")
    a(f"s_add_u32 {s(sHO)}, {s(sHO)}, {H_OFF}")
    a("; @@G2_WAIT_H@@")
    for st in range(3):
        for g in dma_stage(st, 128 * 1280): a.ext(g)
        a.ext(hload(st))
    a(f"s_mov_b32 {s(sIT)}, 0")
    a("s_waitcnt vmcnt(18)")
    a("s_barrier")
    for g in dma_stage(3, 128 * 1280): a.ext(g)
    a.ext(hload(3))
    for mt in range(5): a.ext(trd(WF + 4 * mt, 0, 0, mt))
    a(f"{pfx}_dloop:")
    for sl in range(4):
        for ks in range(4):
            pend = []
            if ks == 3:
                a("s_waitcnt vmcnt(18) lgkmcnt(0)")
                a("s_barrier")
                pend = dma_stage(sl, 128 * 1280)
            nsl, nks = (sl, ks + 1) if ks < 3 else ((sl + 1) & 3, 0)
            for mt in range(5):
                if ks != 3: a("s_waitcnt lgkmcnt(8)")
                a(mf16(AD + 4 * mt, WF + 4 * mt, HF + 16 * sl + 4 * ks))
                a.ext(trd(WF + 4 * mt, nsl, nks, mt))
                if pend: a.ext(pend.pop(0))
            if ks == 3: a.ext(hload(sl))
            if sl == 1 and ks == 1:
                a(f"s_cmp_eq_u32 {s(sIT)}, 3")
                a(f"s_cbranch_scc1 {pfx}_ddone")
    a(f"s_add_u32 {s(sIT)}, {s(sIT)}, 1")
    a(f"s_branch {pfx}_dloop")
    a(f"{pfx}_ddone:")
    srd(a, SW, P_WO, 640 * 1280)
    dma_addr("wo")
    a(f"s_mul_i32 {s(sWO)}, {s(S_WV)}, {40*1280}")
    a(f"s_add_u32 {s(sWO)}, {s(sWO)}, {s(sC8)}")
    a("s_waitcnt vmcnt(0) lgkmcnt(0)")
    a("s_barrier")
    for st in range(4):
        for g in dma_stage(st, 160 * 1280): a.ext(g)
    a(f"s_mul_i32 {s(sT0)}, {s(sRT)}, {16*1280}")
    a(f"s_add_u32 {s(sT0)}, {s(sT0)}, {s(sC8)}")
    a(f"buffer_load_dwordx4 {v(XR,4)}, {v(vXO)}, {s(SX,4)}, {s(sT0)} offen")
    a(f"buffer_load_dwordx4 {v(XR+4,4)}, {v(vXO)}, {s(SX,4)}, {s(sT0)} offen offset:16")
    a(f"buffer_load_dwordx2 {v(XR+8,2)}, {v(vXO)}, {s(SX,4)}, {s(sT0)} offen offset:32")
    dma_addr("wl")
    for r0 in range(0, 20, 4):
        R = range(r0, r0 + 4)
        for r in R: a(f"v_mul_f32 {v(AS+r)}, {f2u(-LOG2E)}, {v(AD+r)}")
        for r in R: a(f"v_exp_f32 {v(AS+r)}, {v(AS+r)}")
        for r in R: a(f"v_add_f32 {v(AS+r)}, 1.0, {v(AS+r)}")
        for r in R: a(f"v_rcp_f32 {v(AS+r)}, {v(AS+r)}")
        for r in R: a(f"v_mul_f32 {v(AD+r)}, {v(AD+r)}, {v(AS+r)}")
    a("s_waitcnt vmcnt(18)")
    a("s_barrier")
    for ks in range(4):
        for mt in range(5): a.ext(trd(WR + 20 * ks + 4 * mt, 0, ks, mt))
        a("s_waitcnt lgkmcnt(0)")
    a("s_barrier")
    a(f"s_mul_i32 {s(sWO)}, {s(S_WV)}, {160*1280}")
    a(f"s_add_u32 {s(sWO)}, {s(sWO)}, {s(sC8)}")
    for g in dma_stage(0, 0): a.ext(g)
    srd(a, SX, P_OUT, 2048 * 1280)
    a(f"s_mul_i32 {s(sHO)}, {s(sRT)}, 20480")
    a(f"s_add_u32 {s(sHO)}, {s(sHO)}, {O_OFF}")
    a("s_waitcnt vmcnt(0)")
    a("s_barrier")
    for mt in range(5): a.ext(trd(WF + 4 * mt, 1, 0, mt))
    a("; @@G2_WAIT_O@@")
    for k in range(20):
        a(f"buffer_load_dwordx4 {v(OF+4*k,4)}, {v(vF)}, {s(S_WS,4)}, {s(sHO)} offen offset:{(k&3)*1024}{SC1}")
        if k & 3 == 3 and k < 19: a(f"s_add_u32 {s(sHO)}, {s(sHO)}, 4096")
    for k in range(20):
        a(f"s_waitcnt vmcnt({19-k})")
        for mt in range(5):
            if k < 4:
                a(mf16(AS + 4 * mt, WR + 20 * k + 4 * mt, OF + 4 * k, "0" if k == 0 else None))
            else:
                a(f"s_waitcnt lgkmcnt({8 if k < 19 else 8-2*mt})")
                a(mf16(AS + 4 * mt, WF + 4 * mt, OF + 4 * k))
                if k < 19: a.ext(trd(WF + 4 * mt, ((k + 1) >> 2) & 3, (k + 1) & 3, mt))
    for j in range(10):
        a(f"v_lshlrev_b32 {v(WR+2*j)}, 16, {v(XR+j)}")
        a(f"v_and_b32 {v(WR+2*j+1)}, 0xffff0000, {v(XR+j)}")
    for r in range(20): a(f"v_fma_f32 {v(WR+r)}, {v(AS+r)}, {v(AD+r)}, {v(WR+r)}")
    for j in range(10): a(f"v_cvt_pk_bf16_f32 {v(XR+j)}, {v(WR+2*j)}, {v(WR+2*j+1)}")
    a(f"buffer_store_dwordx4 {v(XR,4)}, {v(vXO)}, {s(SX,4)}, {s(sT0)} offen")
    a(f"buffer_store_dwordx4 {v(XR+4,4)}, {v(vXO)}, {s(SX,4)}, {s(sT0)} offen offset:16")
    a(f"buffer_store_dwordx2 {v(XR+8,2)}, {v(vXO)}, {s(SX,4)}, {s(sT0)} offen offset:32")

def kd(name, nv=256):
    return f""".amdhsa_kernel {name}
  .amdhsa_next_free_vgpr {nv}
  .amdhsa_next_free_sgpr 96
  .amdhsa_accum_offset {nv}
  .amdhsa_group_segment_fixed_size 0
  .amdhsa_kernarg_size 80
  .amdhsa_user_sgpr_count 2
  .amdhsa_user_sgpr_kernarg_segment_ptr 1
  .amdhsa_system_sgpr_workgroup_id_x 1
  .amdhsa_float_denorm_mode_32 3
.end_amdhsa_kernel
"""
def head(a, name, n):
    a(f".globl {name}"); a(".p2align 8"); a(f".type {name},@function"); a(f"{name}:")
    a(f"s_cmp_ge_u32 s2, {n}")
    a(f"s_cbranch_scc1 {name}_end")
    load_args(a)
def tail(a, name):
    a(f"{name}_end:"); a("s_endpgm")

def build3():
    a = Asm()
    for k in ("g1", "att", "g2"):
        a(f"; @launch kernel={k}_kernel grid=(256,1,1) block=(256,1,1) lds=81920")
    a('.amdgcn_target "amdgcn-amd-amdhsa--gfx950"')
    a(".text")
    head(a, "g1_kernel", 256); gen_g1(a, "g1"); tail(a, "g1_kernel")
    head(a, "att_kernel", 256); gen_att(a, "att", 2); tail(a, "att_kernel")
    head(a, "g2_kernel", 256); gen_g2(a, "g2", True); tail(a, "g2_kernel")
    a('.section .rodata,"a"')
    for k in ("g1", "att", "g2"):
        a(".p2align 6"); a.lines.append(kd(k + "_kernel"))
    return a.text()

if __name__ == "__main__":
    t = build3()
    out = sys.argv[1] if len(sys.argv) > 1 else f"cdna_kernels/{NAME}.s"
    body = t[:t.index('.section .rodata')]
    pr = check_hazards(body)
    for p in pr: print("HAZARD", p)
    open(out, "w").write(t)
    print("written", out, len(t), "bytes;", len(pr), "hazards")
```

```python
import sys, math, struct
from asmlib import *

NAME = "recurrent_scan__softmax_full_mha__geglu_ffn__prompt"
QK_OFF = 0
V_OFF = 160 * 32768
H_OFF = V_OFF + 32 * 81920
O_OFF = H_OFF + 128 * 55296
FLAG_OFF = O_OFF + 128 * 20480
def f2u(x): return "0x%08x" % struct.unpack("<I", struct.pack("<f", x))[0]
LOG2E = math.log2(math.e)
QSCALE = 20 ** -0.5 * LOG2E
GC0 = -2.0 * LOG2E * math.sqrt(2.0 / math.pi)
GC1 = GC0 * 0.044715
SC1 = " sc1"

P_X, P_WQKV, P_WO, P_WG, P_WU, P_WD, P_OUT, P_DBG, P_WS = 4, 6, 8, 12, 14, 16, 18, 20, 22
S_WS = 24
S_A = 28
S_B = 32
S_C = 36
S_WV = 40

def srd(a, d, p, nbytes):
    a(f"s_mov_b32 {s(d)}, {s(p)}")
    a(f"s_mov_b32 {s(d+1)}, {s(p+1)}")
    a(f"s_mov_b32 {s(d+2)}, {nbytes}")
    a(f"s_mov_b32 {s(d+3)}, 0x00020000")

F1_OFF = FLAG_OFF
F2_OFF = FLAG_OFF + 16384
F3_OFF = FLAG_OFF + 32768
WS_BYTES = FLAG_OFF + 32768 + 65536
V_NONCE = 11
class Cfg:
    fused = True
    prioA = 1; prioGm = 0; prioGv = 2; prioD = 0
    rot = True
def setprio(a, p):
    if Cfg.fused: a(f"s_setprio {p}")
def publish(a, soff):
    a("s_mov_b64 exec, 1")
    a(f"buffer_store_dword {v(V_NONCE)}, off, {s(S_WS,4)}, {s(soff)} sc1")
    a("s_mov_b64 exec, -1")
def poll(a, lbl, vaddr, soff, vt, scnt, sleep):
    a(f"s_mov_b32 {s(scnt)}, 0x20000")
    a(f"{lbl}:")
    if vaddr is None: a(f"buffer_load_dword {v(vt)}, off, {s(S_WS,4)}, {s(soff)} sc1")
    else: a(f"buffer_load_dword {v(vt)}, {v(vaddr)}, {s(S_WS,4)}, {s(soff)} offen sc1")
    a("s_waitcnt vmcnt(0)")
    a(f"v_cmp_ne_u32 vcc, {v(vt)}, {v(V_NONCE)}")
    a(f"s_sub_u32 {s(scnt)}, {s(scnt)}, 1")
    a(f"s_cbranch_scc1 {lbl}_ok")
    a(f"s_cbranch_vccz {lbl}_ok")
    if sleep: a(f"s_sleep {sleep}")
    a(f"s_branch {lbl}")
    a(f"{lbl}_ok:")
def nonce_load(a, vz):
    a(f"global_load_dword {v(V_NONCE)}, {v(vz)}, {s(P_DBG,2)} sc1")
def nonce_check(a, lbl, vz, st, scnt):
    a(f"s_mov_b32 {s(scnt)}, 0x20000")
    a(f"{lbl}:")
    a(f"v_readfirstlane_b32 {s(st)}, {v(V_NONCE)}")
    a(f"s_sub_u32 {s(scnt)}, {s(scnt)}, 1")
    a(f"s_cbranch_scc1 {lbl}_ok")
    a(f"s_cmp_lg_u32 {s(st)}, 0")
    a(f"s_cbranch_scc1 {lbl}_ok")
    a("s_sleep 2")
    a(f"v_mov_b32 {v(vz)}, 0")
    nonce_load(a, vz)
    a("s_waitcnt vmcnt(0)")
    a(f"s_branch {lbl}")
    a(f"{lbl}_ok:")

STAMPS = False
class St:
    n = 0; names = {}; cur = None
def stamp(a, name):
    if not STAMPS: return
    l = St.names.setdefault(St.cur, [])
    if name not in l: l.append(name)
    i = l.index(name)
    a("s_waitcnt lgkmcnt(0)")
    a("s_memtime s[62:63]" if STAMPS == "cyc" else "s_memrealtime s[62:63]")
    a("s_waitcnt lgkmcnt(0)")
    a(f"s_mov_b32 {s(64+i)}, s62")
def stamp_begin(a, role):
    St.cur = role
    if not STAMPS: return
    for i in range(32): a(f"s_mov_b32 {s(64+i)}, 0")
def stamp_end(a, slot, idreg):
    if not STAMPS: return
    a("s_waitcnt vmcnt(0) lgkmcnt(0)")
    stamp(a, "end")
    a("s_mov_b64 exec, -1")
    a("v_mov_b32 v20, 0")
    for i in range(32): a(f"v_writelane_b32 v20, {s(64+i)}, {i}")
    a(f"s_and_b32 s62, {s(idreg)}, 255")
    a("s_lshl_b32 s62, s62, 2")
    a(f"s_add_u32 s62, s62, {s(S_WV)}")
    a(f"s_add_u32 s62, s62, {slot*1024}")
    a("s_lshl_b32 s62, s62, 7")
    a(f"s_add_u32 s62, s62, {WS_BYTES}")
    a(f"s_mov_b32 {s(S_WS+2)}, {WS_BYTES + (1<<20)}")
    a("v_lshlrev_b32 v21, 2, v1")
    a("s_mov_b32 exec_hi, 0")
    a(f"buffer_store_dword v20, v21, {s(S_WS,4)}, s62 offen")

def load_args(a):
    a("s_load_dwordx16 s[4:19], s[0:1], 0")
    a("s_load_dwordx4 s[20:23], s[0:1], 64")

def gen_g1(a, pfx):
    X, ACC, G, WF = 96, 32, 64, 16
    vL, vTR, vTR2, vDC, vDN, vDF, vST, vS, vC0, vC1, vK, vSTH = 1, 2, 3, 4, 5, 6, 7, 8, 9, 10, 13, 12
    sRB, sCG, sTT, sM, sN, sNT, sNQ, sP0 = 41, 42, 43, 44, 45, 46, 47, 48
    sOC, sD1C, sON, sD1N, sD2N = 49, 50, 51, 52, 53
    sT0, sT1, sT2, sT3, sSO = 54, 55, 56, 57, 58
    sONE, sLO, sHI = 59, 60, 61
    sROT, sXB, sXC, sPUB, sF = 96, 97, 98, 99, 100
    SC, SN = S_B, S_C
    a(f"v_and_b32 {v(vL)}, 63, v0")
    a(f"v_lshrrev_b32 v13, 6, v0")
    a(f"s_and_b32 {s(sT0)}, s2, 7")
    a(f"v_readfirstlane_b32 {s(S_WV)}, v13")
    a(f"s_lshr_b32 {s(sT1)}, s2, 3")
    a(f"s_lshr_b32 {s(sRB)}, {s(sT0)}, 1")
    a(f"s_lshl_b32 {s(sRB)}, {s(sRB)}, 2")
    a(f"s_and_b32 {s(sT2)}, {s(sT1)}, 3")
    a(f"s_add_u32 {s(sRB)}, {s(sRB)}, {s(sT2)}")
    a(f"s_and_b32 {s(sCG)}, {s(sT0)}, 1")
    a(f"s_lshl_b32 {s(sCG)}, {s(sCG)}, 3")
    a(f"s_lshr_b32 {s(sT2)}, {s(sT1)}, 2")
    a(f"s_add_u32 {s(sCG)}, {s(sCG)}, {s(sT2)}")
    a(f"s_lshl_b32 {s(sTT)}, {s(sRB)}, 2")
    a(f"s_add_u32 {s(sTT)}, {s(sTT)}, {s(S_WV)}")
    a(f"s_and_b32 {s(sROT)}, {s(sT1)}, 3")
    a(f"s_add_u32 {s(sROT)}, {s(sROT)}, {s(sT2)}")
    if Cfg.rot:
        for _ in range(2):
            a(f"s_cmp_ge_u32 {s(sROT)}, 5")
            a(f"s_cselect_b32 {s(sT0)}, 5, 0")
            a(f"s_sub_u32 {s(sROT)}, {s(sROT)}, {s(sT0)}")
    else:
        a(f"s_mov_b32 {s(sROT)}, 0")
    vXA0, vXA1 = ACC, ACC + 1
    a(f"v_lshrrev_b32 v14, 3, {v(vL)}")
    a(f"v_mul_u32_u24 {v(vXA0)}, 1280, v14")
    a(f"v_and_b32 v15, 7, {v(vL)}")
    a(f"v_lshrrev_b32 v14, 4, {v(vL)}")
    a(f"v_xor_b32 v15, v14, v15")
    a(f"v_lshl_add_u32 {v(vXA0)}, v15, 4, {v(vXA0)}")
    a(f"v_xor_b32 {v(vXA1)}, 64, {v(vXA0)}")
    a(f"s_lshl_b32 {s(sM)}, {s(S_WV)}, 12")
    a(f"s_mul_i32 {s(sXB)}, {s(sTT)}, 40960")
    a(f"s_lshl_b32 {s(sXC)}, {s(sROT)}, 8")
    def xdma(b):
        slot = b % 5
        a(f"s_add_u32 m0, {s(sM)}, {slot*16384}")
        a(f"s_add_u32 {s(sT0)}, {s(sXB)}, {s(sXC)}")
        for i in range(4):
            a(f"buffer_load_dwordx4 {v(vXA1 if i&1 else vXA0)}, {s(S_A,4)}, {s(sT0)} offen offset:{i*1024} lds")
            if i < 3: a(f"s_add_u32 {s(sT0)}, {s(sT0)}, 9216")
        a(f"s_add_u32 {s(sXC)}, {s(sXC)}, 128")
        if b & 1:
            a(f"s_cmp_ge_u32 {s(sXC)}, 1280")
            a(f"s_cselect_b32 {s(sXC)}, 0, {s(sXC)}")
    a("s_waitcnt lgkmcnt(0)")
    srd(a, S_A, P_X, 2048 * 1280)
    for b in range(5): xdma(b)
    srd(a, S_WS, P_WS, WS_BYTES)
    if Cfg.fused:
        a(f"s_or_b32 {s(sT0)}, s2, {s(S_WV)}")
        a(f"s_cmp_lg_u32 {s(sT0)}, 0")
        a(f"s_cbranch_scc1 {pfx}_nn")
        a(f"s_memrealtime {s(sT0,2)}")
        a("s_waitcnt lgkmcnt(0)")
        a(f"s_or_b32 {s(sT0)}, {s(sT0)}, 1")
        a(f"v_mov_b32 v14, 0")
        a(f"v_mov_b32 v15, {s(sT0)}")
        a("s_mov_b64 exec, 1")
        a(f"global_store_dword v14, v15, {s(P_DBG,2)} sc1")
        a("s_mov_b64 exec, -1")
        a(f"{pfx}_nn:")
    a(f"s_cmp_lt_u32 {s(sCG)}, 15")
    a(f"s_cselect_b32 {s(sNQ)}, 2, 0")
    a(f"s_cselect_b32 {s(sNT)}, 4, 6")
    a(f"s_add_u32 {s(sP0)}, {s(sCG)}, 9")
    a(f"s_lshl_b32 {s(sT0)}, {s(sCG)}, 1")
    a(f"s_cmp_lt_u32 {s(sCG)}, 9")
    a(f"s_cselect_b32 {s(sNT)}, 6, {s(sNT)}")
    a(f"s_cselect_b32 {s(sP0)}, {s(sT0)}, {s(sP0)}")
    a(f"v_bfe_u32 v14, {v(vL)}, 2, 3")
    a(f"v_lshl_add_u32 v14, v13, 5, v14")
    a(f"v_lshrrev_b32 v15, 5, {v(vL)}")
    a(f"v_lshlrev_b32 {v(vDC)}, 6, v15")
    a(f"v_and_b32 {v(vDN)}, 3, {v(vL)}")
    a(f"v_lshl_add_u32 {v(vDC)}, {v(vDN)}, 4, {v(vDC)}")
    a(f"v_mul_u32_u24 {v(vDF)}, 3456, v14")
    a(f"v_add_u32 {v(vDF)}, {v(vDF)}, {v(vDC)}")
    a(f"v_mul_u32_u24 {v(vDN)}, 3840, v14")
    a(f"v_add_u32 {v(vDN)}, {v(vDN)}, {v(vDC)}")
    a(f"s_mov_b32 {s(SN+3)}, 0x00020000")
    a(f"s_mov_b32 {s(SC+3)}, 0x00020000")
    a(f"s_mov_b32 {s(sN)}, 0")

    def next_params(nreg, tag):
        a(f"s_cmp_lt_u32 {s(nreg)}, {s(sNQ)}")
        a(f"s_cbranch_scc1 {pfx}_np_q{tag}")
        a(f"s_sub_u32 {s(sT0)}, {s(nreg)}, {s(sNQ)}")
        a(f"s_lshr_b32 {s(sT1)}, {s(sT0)}, 1")
        a(f"s_add_u32 {s(sT1)}, {s(sT1)}, {s(sP0)}")
        a(f"s_lshl_b32 {s(sON)}, {s(sT1)}, 7")
        a(f"s_mul_i32 {s(sT1)}, {s(sROT)}, {128*3456}")
        a(f"s_add_u32 {s(sON)}, {s(sON)}, {s(sT1)}")
        a(f"s_bitcmp1_b32 {s(sT0)}, 0")
        a(f"s_cselect_b32 {s(SN)}, {s(P_WU)}, {s(P_WG)}")
        a(f"s_cselect_b32 {s(SN+1)}, {s(P_WU+1)}, {s(P_WG+1)}")
        a(f"s_cmp_lt_u32 {s(nreg)}, {s(sNT)}")
        a(f"s_cselect_b32 {s(SN+2)}, {640*3456}, 0")
        a(f"s_mov_b32 {s(sD1N)}, {8*3456-1024}")
        a(f"s_mov_b32 {s(sD2N)}, {128*3456-3*(8*3456-1024)}")
        a(f"v_mov_b32 {v(vDN)}, {v(vDF)}")
        a(f"s_branch {pfx}_np_e{tag}")
        a(f"{pfx}_np_q{tag}:")
        a(f"s_lshl_b32 {s(sT0)}, {s(sCG)}, 1")
        a(f"s_add_u32 {s(sT0)}, {s(sT0)}, {s(nreg)}")
        a(f"s_lshl_b32 {s(sON)}, {s(sT0)}, 7")
        a(f"s_mul_i32 {s(sT0)}, {s(sROT)}, {128*3840}")
        a(f"s_add_u32 {s(sON)}, {s(sON)}, {s(sT0)}")
        a(f"s_mov_b32 {s(SN)}, {s(P_WQKV)}")
        a(f"s_mov_b32 {s(SN+1)}, {s(P_WQKV+1)}")
        a(f"s_mov_b32 {s(SN+2)}, {640*3840}")
        a(f"s_mov_b32 {s(sD1N)}, {8*3840-1024}")
        a(f"s_mov_b32 {s(sD2N)}, {128*3840-3*(8*3840-1024)}")
        a(f"{pfx}_np_e{tag}:")
    def dma_group(slot, cur):
        vd, sr, so, d1, d2 = (vDC, SC, sOC, sD1C, None) if cur else (vDN, SN, sON, sD1N, sD2N)
        out = [[f"s_add_u32 m0, {s(sM)}, {slot*16384}"]]
        for i in range(4):
            g = [f"buffer_load_dwordx4 {v(vd)}, {s(sr,4)}, {s(so)} offen offset:{i*1024} lds"]
            if i < 3: g.append(f"s_add_u32 {s(so)}, {s(so)}, {s(d1)}")
            elif d2 is not None:
                g += [f"s_add_u32 {s(so)}, {s(so)}, {s(d2)}", f"s_cmp_ge_u32 {s(so)}, {s(sr+2)}",
                      f"s_cselect_b32 {s(sT0)}, {s(sr+2)}, 0", f"s_sub_u32 {s(so)}, {s(so)}, {s(sT0)}"]
            out.append(g)
        return out
    next_params(sN, "0")
    vR0, vR4 = ACC + 4, ACC + 16
    vSa, vQa = ACC + 8, ACC + 12
    a(f"v_bfe_u32 v14, {v(vL)}, 1, 3")
    a(f"v_lshrrev_b32 v15, 5, {v(vL)}")
    a(f"v_xor_b32 v14, v14, v15")
    a(f"v_lshlrev_b32 v14, 4, v14")
    a(f"v_and_b32 v15, 31, {v(vL)}")
    a(f"v_lshl_add_u32 v14, v15, 7, v14")
    a(f"v_add_u32 {v(vR0)}, {s(sM)}, v14")
    for q in range(1, 4): a(f"v_xor_b32 {v(vR0+q)}, {32*q}, {v(vR0)}")
    for q in range(4): a(f"v_add_u32 {v(vR4+q)}, 0x10000, {v(vR0+q)}")
    for i in range(8): a(f"v_mov_b32 {v(vSa+i)}, 0")
    a(f"s_mov_b32 {s(sONE)}, 0x3f803f80")
    a(f"s_mov_b32 {s(sLO)}, 0x00003f80")
    a(f"s_mov_b32 {s(sHI)}, 0x3f800000")
    a(f"v_lshrrev_b32 v14, 5, {v(vL)}")
    a(f"v_lshlrev_b32 {v(vTR)}, 10, v14")
    a(f"v_bfe_u32 v15, {v(vL)}, 2, 2")
    a(f"v_lshl_add_u32 {v(vTR)}, v15, 6, {v(vTR)}")
    a(f"v_bfe_u32 v15, {v(vL)}, 4, 1")
    a(f"v_lshl_add_u32 {v(vTR)}, v15, 5, {v(vTR)}")
    a(f"v_and_b32 v15, 1, {v(vL)}")
    a(f"v_lshl_add_u32 {v(vTR)}, v15, 4, {v(vTR)}")
    a(f"v_bfe_u32 v15, {v(vL)}, 1, 1")
    a(f"v_lshl_add_u32 {v(vTR)}, v15, 3, {v(vTR)}")
    a(f"v_add_u32 {v(vTR2)}, 0x10000, {v(vTR)}")
    a(f"v_lshlrev_b32 {v(vST)}, 15, v14")
    a(f"v_and_b32 v15, 31, {v(vL)}")
    a(f"v_lshl_add_u32 {v(vST)}, v15, 4, {v(vST)}")
    a(f"v_bfe_u32 v15, {v(vL)}, 4, 1")
    a(f"v_mul_u32_u24 {v(vSTH)}, 55296, v15")
    a(f"v_lshl_add_u32 {v(vSTH)}, v14, 8, {v(vSTH)}")
    a(f"v_and_b32 v15, 15, {v(vL)}")
    a(f"v_lshl_add_u32 {v(vSTH)}, v15, 4, {v(vSTH)}")
    def stats(b):
        for r in range(16):
            a(f"v_dot2c_f32_bf16 {v(vSa+(r&3))}, {s(sONE)}, {v(X+16*b+r)}")
            a(f"v_dot2c_f32_bf16 {v(vQa+(r&3))}, {v(X+16*b+r)}, {v(X+16*b+r)}")
    stamp(a, "issued")
    for b in range(10):
        slot = b % 5
        a("s_waitcnt vmcnt(16)")
        if b == 0: stamp(a, "x0")
        for q in range(4):
            a(f"ds_read_b128 {v(X+16*b+4*q,4)}, {v((vR4 if slot == 4 else vR0)+q)} offset:{0 if slot == 4 else slot*16384}")
        if b > 0: stats(b - 1)
        a("s_waitcnt lgkmcnt(0)")
        if b < 5: xdma(b + 5)
        elif b < 9:
            gr = dma_group(b - 5, False)
            a.ext(gr[0]); a("s_nop 0")
            for g in gr[1:]: a.ext(g)
    if Cfg.fused:
        a("v_mov_b32 v14, 0")
        nonce_load(a, 14)
        a(f"s_cmp_eq_u32 {s(S_WV)}, 0")
        a(f"s_cselect_b32 {s(sPUB)}, {s(sNQ)}, -1")
        a(f"s_cmp_eq_u32 {s(sNQ)}, 0")
        a(f"s_cselect_b32 {s(sPUB)}, -1, {s(sPUB)}")
        a(f"s_lshl_b32 {s(sF)}, {s(sCG)}, 4")
        a(f"s_add_u32 {s(sF)}, {s(sF)}, {s(sRB)}")
        a(f"s_lshl_b32 {s(sF)}, {s(sF)}, 6")
        a(f"s_add_u32 {s(sF)}, {s(sF)}, {F1_OFF}")
    stats(9)
    a("s_nop 2")
    a(f"v_add_f32 {v(vSa)}, {v(vSa)}, {v(vSa+1)}")
    a(f"v_add_f32 {v(vSa+2)}, {v(vSa+2)}, {v(vSa+3)}")
    a(f"v_add_f32 {v(vQa)}, {v(vQa)}, {v(vQa+1)}")
    a(f"v_add_f32 {v(vQa+2)}, {v(vQa+2)}, {v(vQa+3)}")
    a(f"v_add_f32 {v(vSa)}, {v(vSa)}, {v(vSa+2)}")
    a(f"v_add_f32 {v(vQa)}, {v(vQa)}, {v(vQa+2)}")
    a(f"v_mov_b32 {v(vSa+1)}, {v(vSa)}")
    a(f"v_mov_b32 {v(vQa+1)}, {v(vQa)}")
    a("s_nop 1")
    a(f"v_permlane32_swap_b32 {v(vSa)}, {v(vSa+1)}")
    a(f"v_permlane32_swap_b32 {v(vQa)}, {v(vQa+1)}")
    a(f"v_add_f32 {v(vSa)}, {v(vSa)}, {v(vSa+1)}")
    a(f"v_add_f32 {v(vQa)}, {v(vQa)}, {v(vQa+1)}")
    vNM = ACC + 3
    a(f"v_mul_f32 {v(vSa)}, {f2u(1/640)}, {v(vSa)}")
    a(f"v_mul_f32 {v(vQa)}, {f2u(1/640)}, {v(vQa)}")
    a(f"v_fma_f32 {v(vQa)}, -{v(vSa)}, {v(vSa)}, {v(vQa)}")
    a(f"v_max_f32 {v(vQa)}, 0, {v(vQa)}")
    a(f"v_cvt_pk_bf16_f32 {v(vNM)}, {v(vQa)}, -{v(vSa)}")
    a(f"v_lshlrev_b32 {v(vQa)}, 16, {v(vNM)}")
    a(f"v_and_b32 {v(vNM)}, 0xffff0000, {v(vNM)}")
    a(f"v_add_f32 {v(vQa)}, {f2u(1e-5)}, {v(vQa)}")
    a(f"v_cvt_pk_bf16_f32 {v(vQa)}, {v(vQa)}, {v(vQa)}")
    a(f"v_lshlrev_b32 {v(vQa)}, 16, {v(vQa)}")
    a(f"v_sqrt_f32 {v(vQa)}, {v(vQa)}")
    a("s_nop 0")
    a(f"v_cvt_pk_bf16_f32 {v(vQa)}, {v(vQa)}, {v(vQa)}")
    a(f"v_lshlrev_b32 {v(vQa)}, 16, {v(vQa)}")
    a(f"v_rcp_f32 {v(vS)}, {v(vQa)}")
    a(f"v_mul_f32 {v(vK)}, {v(vQa)}, {v(vQa)}")
    a(f"v_mul_f32 {v(vC0)}, {f2u(GC0)}, {v(vS)}")
    a(f"v_mul_f32 {v(vC1)}, {v(vS)}, {v(vS)}")
    a(f"v_mul_f32 {v(vC1)}, {v(vC1)}, {v(vS)}")
    a(f"v_mul_f32 {v(vC1)}, {f2u(GC1)}, {v(vC1)}")
    a(f"s_cmp_lt_u32 {s(sCG)}, 5")
    a(f"s_cselect_b32 {s(sT0)}, {f2u(QSCALE)}, 1.0")
    a(f"v_mul_f32 {v(vS)}, {s(sT0)}, {v(vS)}")
    def trd(tile, k):
        kk = k % 40
        slot, ks = kk // 8, kk % 8
        base, off = (vTR2, 0) if slot == 4 else (vTR, slot * 16384)
        d = WF + 8 * tile + 4 * (k & 1)
        return [f"ds_read_b64_tr_b16 {v(d+2*t,2)}, {v(base)} offset:{off+ks*2048+tile*512+t*256}" for t in range(2)]
    stamp(a, "xstats")
    a("s_waitcnt vmcnt(12)")
    a("s_barrier")
    stamp(a, "w0")
    for k in range(2):
        for t in range(2): a.ext(trd(t, k))
    T = G
    for r0 in range(0, 160, 4):
        for j in range(4):
            a(f"v_dot2_f32_bf16 {v(T+2*j)}, {v(X+r0+j)}, {s(sLO)}, {v(vNM)}")
            a(f"v_dot2_f32_bf16 {v(T+2*j+1)}, {v(X+r0+j)}, {s(sHI)}, {v(vNM)}")
        for j in range(4):
            a(f"v_cvt_pk_bf16_f32 {v(X+r0+j)}, {v(T+2*j)}, {v(T+2*j+1)}")
    stamp(a, "centered")
    a(f"{pfx}_loop:")
    a(f"s_mov_b32 {s(SC)}, {s(SN)}")
    a(f"s_mov_b32 {s(SC+1)}, {s(SN+1)}")
    a(f"s_mov_b32 {s(SC+2)}, {s(SN+2)}")
    a(f"s_mov_b32 {s(sOC)}, {s(sON)}")
    a(f"s_mov_b32 {s(sD1C)}, {s(sD1N)}")
    a(f"v_mov_b32 {v(vDC)}, {v(vDN)}")
    a(f"s_add_u32 {s(sT3)}, {s(sN)}, 1")
    next_params(sT3, "1")
    a("s_waitcnt lgkmcnt(0)")
    setprio(a, Cfg.prioGm)
    pend = []
    for k in range(40):
        for t in range(2):
            a(mf32(ACC + 16 * t, WF + 8 * t + 4 * (k & 1), X + 4 * k, "0" if k == 0 else None))
            if t == 0 and k % 8 == 6:
                a("s_waitcnt vmcnt(8) lgkmcnt(4)")
                a("s_barrier")
                st = k // 8
                if k == 22 and Cfg.fused:
                    a(f"s_cmp_lg_u32 {s(sN)}, {s(sPUB)}")
                    a(f"s_cbranch_scc1 {pfx}_nopub")
                    publish(a, sF)
                    stamp(a, "pub1")
                    a(f"{pfx}_nopub:")
                pend = dma_group(4, True) if st == 0 else dma_group(st - 1, False)
            else:
                a("s_waitcnt lgkmcnt(4)")
            a.ext(trd(t, k + 2))
            if pend: a.ext(pend.pop(0))
    for g in pend: a.ext(g)
    setprio(a, Cfg.prioGv)
    if STAMPS:
        for n in range(6):
            a(f"s_cmp_lg_u32 {s(sN)}, {n}"); a(f"s_cbranch_scc1 {pfx}_stm{n}"); stamp(a, f"mm{n}"); a(f"{pfx}_stm{n}:")
    a(f"s_cmp_lt_u32 {s(sN)}, {s(sNQ)}")
    a(f"s_cbranch_scc1 {pfx}_eq")
    a(f"s_bitcmp1_b32 {s(sN)}, 0")
    a(f"s_cbranch_scc1 {pfx}_eu")
    a("s_nop 7")
    for r0 in range(0, 32, 4):
        R = range(r0, r0 + 4)
        for r in R: a(f"v_mul_f32 {v(G+r)}, {v(ACC+r)}, {v(ACC+r)}")
        for r in R: a(f"v_fma_f32 {v(G+r)}, {v(G+r)}, {v(vC1)}, {v(vC0)}")
        for r in R: a(f"v_mul_f32 {v(G+r)}, {v(G+r)}, {v(ACC+r)}")
        for r in R: a(f"v_exp_f32 {v(G+r)}, {v(G+r)}")
        for r in R: a(f"v_fma_f32 {v(G+r)}, {v(G+r)}, {v(vK)}, {v(vK)}")
        for r in R: a(f"v_rcp_f32 {v(G+r)}, {v(G+r)}")
        for r in R: a(f"v_mul_f32 {v(G+r)}, {v(G+r)}, {v(ACC+r)}")
    a(f"s_branch {pfx}_enext")
    a(f"{pfx}_eu:")
    a(f"s_sub_u32 {s(sT0)}, {s(sN)}, {s(sNQ)}")
    a(f"s_lshr_b32 {s(sT0)}, {s(sT0)}, 1")
    a(f"s_add_u32 {s(sT0)}, {s(sT0)}, {s(sP0)}")
    a(f"s_lshl_b32 {s(sT0)}, {s(sT0)}, 11")
    a(f"s_mul_i32 {s(sSO)}, {s(sTT)}, {2*55296}")
    a(f"s_add_u32 {s(sSO)}, {s(sSO)}, {s(sT0)}")
    a(f"s_add_u32 {s(sSO)}, {s(sSO)}, {H_OFF}")
    a("s_nop 0")
    for p in range(4):
        for r in range(8 * p, 8 * p + 8): a(f"v_mul_f32 {v(ACC+r)}, {v(ACC+r)}, {v(G+r)}")
        for j in range(4): a(f"v_cvt_pk_bf16_f32 {v(G+8*p+j)}, {v(ACC+8*p+2*j)}, {v(ACC+8*p+2*j+1)}")
        a(f"buffer_store_dwordx4 {v(G+8*p,4)}, {v(vSTH)}, {s(S_WS,4)}, {s(sSO)} offen offset:{p*512}{SC1}")
    a(f"s_branch {pfx}_enext")
    a(f"{pfx}_eq:")
    a(f"s_lshl_b32 {s(sT0)}, {s(sCG)}, 1")
    a(f"s_add_u32 {s(sT0)}, {s(sT0)}, {s(sN)}")
    a(f"s_lshl_b32 {s(sSO)}, {s(sT0)}, 18")
    a(f"s_lshl_b32 {s(sT1)}, {s(sTT)}, 9")
    a(f"s_add_u32 {s(sSO)}, {s(sSO)}, {s(sT1)}")
    a("s_nop 4")
    for p in range(4):
        for r in range(8 * p, 8 * p + 8): a(f"v_mul_f32 {v(ACC+r)}, {v(ACC+r)}, {v(vS)}")
        for j in range(4): a(f"v_cvt_pk_bf16_f32 {v(G+4*p+j)}, {v(ACC+8*p+2*j)}, {v(ACC+8*p+2*j+1)}")
    a(f"s_cmp_ge_u32 {s(sCG)}, 10")
    a(f"s_cbranch_scc1 {pfx}_ev")
    for p in range(4):
        a(f"buffer_store_dwordx4 {v(G+4*p,4)}, {v(vST)}, {s(S_WS,4)}, {s(sSO)} offen{SC1}")
        if p < 3: a(f"s_add_u32 {s(sSO)}, {s(sSO)}, 65536")
    a(f"s_branch {pfx}_enext")
    a(f"{pfx}_ev:")
    t0, t1, t2, t3, t4 = ACC, ACC + 1, ACC + 2, ACC + 3, ACC + 4
    a(f"s_add_u32 {s(sT1)}, {s(sM)}, 65536")
    a(f"v_and_b32 {v(t0)}, 31, {v(vL)}")
    a(f"v_lshrrev_b32 {v(t1)}, 5, {v(vL)}")
    a(f"v_lshlrev_b32 {v(t2)}, 6, {v(t0)}")
    a(f"v_lshl_add_u32 {v(t2)}, {v(t1)}, 4, {v(t2)}")
    a(f"v_add_u32 {v(t2)}, {s(sT1)}, {v(t2)}")
    a(f"v_bfe_u32 {v(t3)}, {v(vL)}, 2, 2")
    a(f"v_lshl_add_u32 {v(t3)}, {v(t1)}, 2, {v(t3)}")
    a(f"v_lshlrev_b32 {v(t3)}, 6, {v(t3)}")
    a(f"v_bfe_u32 {v(t4)}, {v(vL)}, 4, 1")
    a(f"v_lshl_add_u32 {v(t3)}, {v(t4)}, 5, {v(t3)}")
    a(f"v_and_b32 {v(t4)}, 3, {v(vL)}")
    a(f"v_lshl_add_u32 {v(t3)}, {v(t4)}, 3, {v(t3)}")
    a(f"v_add_u32 {v(t3)}, {s(sT1)}, {v(t3)}")
    a("s_barrier")
    for p in range(4):
        a(f"ds_write_b128 {v(t2)}, {v(G+4*p,4)} offset:{(p>>1)*2048+(p&1)*32}")
    for p in range(4):
        for u in range(2):
            a(f"ds_read_b64_tr_b16 {v(G+16+4*p+2*u,2)}, {v(t3)} offset:{(p>>1)*2048+(p&1)*1024+u*512}")
    a(f"s_sub_u32 {s(sT0)}, {s(sT0)}, 20")
    a(f"s_lshl_b32 {s(sT0)}, {s(sT0)}, 6")
    a(f"s_mul_i32 {s(sSO)}, {s(sTT)}, 1280")
    a(f"s_add_u32 {s(sSO)}, {s(sSO)}, {V_OFF}")
    a(f"s_mov_b32 {s(sT1)}, {81920-320}")
    a(f"v_mul_u32_u24 {v(t1)}, 320, {v(t1)}")
    for t in range(2):
        c, h, ad = ACC + 8 + 4 * t, ACC + 9 + 4 * t, ACC + 10 + 4 * t
        a(f"v_add_u32 {v(c)}, {s(sT0)}, {v(t0)}")
        if t: a(f"v_add_u32 {v(c)}, 32, {v(c)}")
        a(f"v_mul_u32_u24 {v(h)}, 3277, {v(c)}")
        a(f"v_lshrrev_b32 {v(h)}, 16, {v(h)}")
        a(f"v_lshl_add_u32 {v(ad)}, {v(c)}, 4, {v(t1)}")
        a(f"v_mad_u32_u24 {v(ad)}, {v(h)}, {s(sT1)}, {v(ad)}")
    for p in range(4):
        a(f"s_waitcnt lgkmcnt({6-2*p})")
        a(f"buffer_store_dwordx4 {v(G+16+4*p,4)}, {v(ACC+10+4*(p>>1))}, {s(S_WS,4)}, {s(sSO)} offen offset:{(p&1)*640}{SC1}")
    a(f"{pfx}_enext:")
    if STAMPS:
        for n in range(6):
            a(f"s_cmp_lg_u32 {s(sN)}, {n}"); a(f"s_cbranch_scc1 {pfx}_ste{n}"); stamp(a, f"ep{n}"); a(f"{pfx}_ste{n}:")
    if Cfg.fused:
        a(f"s_cmp_lg_u32 {s(sN)}, 0")
        a(f"s_cbranch_scc1 {pfx}_nc_ok")
        nonce_check(a, f"{pfx}_nc", 14, sT0, sT1)
    a(f"s_add_u32 {s(sN)}, {s(sN)}, 1")
    a(f"s_cmp_lt_u32 {s(sN)}, {s(sNT)}")
    a(f"s_cbranch_scc1 {pfx}_loop")
    if Cfg.fused:
        a(f"s_lshl_b32 {s(sF)}, {s(sRB)}, 4")
        a(f"s_add_u32 {s(sF)}, {s(sF)}, {s(sCG)}")
        a(f"s_lshl_b32 {s(sF)}, {s(sF)}, 6")
        a(f"s_add_u32 {s(sF)}, {s(sF)}, {F2_OFF}")

def gen_att(a, pfx, idreg):
    vL, vK1, vK2, vV0, vV1 = 1, 2, 3, 4, 5
    P, S, O, Q, KV = 24, 32, 64, 128, 152
    sHD, sQB, sKH, sQH, sK1, sK2, sV, sG, sIT = 41, 42, 43, 44, 45, 46, 47, 48, 49
    sK1b, sK2b, sVb = 50, 51, 52
    sT0, sT1, sT2, sT3 = 54, 55, 56, 57
    sVM = 58
    a(f"v_and_b32 {v(vL)}, 63, v0")
    a(f"v_lshrrev_b32 v6, 6, v0")
    a(f"s_and_b32 {s(sT0)}, {s(idreg)}, 7")
    a(f"v_readfirstlane_b32 {s(S_WV)}, v6")
    a(f"s_lshl_b32 {s(sHD)}, {s(sT0)}, 2")
    a(f"s_bfe_u32 {s(sT1)}, {s(idreg)}, {3 | (2<<16)}")
    a(f"s_add_u32 {s(sHD)}, {s(sHD)}, {s(sT1)}")
    a(f"s_bfe_u32 {s(sQB)}, {s(idreg)}, {5 | (3<<16)}")
    a(f"s_and_b32 {s(sQH)}, {s(S_WV)}, 1")
    a(f"s_lshr_b32 {s(sKH)}, {s(S_WV)}, 1")
    a(f"s_lshr_b32 {s(sT0)}, {s(sHD)}, 1")
    a(f"s_mul_i32 {s(sT0)}, {s(sT0)}, 5")
    a(f"s_and_b32 {s(sT1)}, {s(sHD)}, 1")
    a(f"s_mul_i32 {s(sT2)}, {s(sT1)}, 3")
    a(f"s_add_u32 {s(sT2)}, {s(sT2)}, {s(sT0)}")
    a(f"s_lshl_b32 {s(sK1b)}, {s(sT2)}, 15")
    a(f"s_add_u32 {s(sT0)}, {s(sT0)}, 2")
    a(f"s_lshl_b32 {s(sK2b)}, {s(sT0)}, 15")
    a(f"s_lshl_b32 {s(sT1)}, {s(sT1)}, 3")
    a(f"s_add_u32 {s(sK2b)}, {s(sK2b)}, {s(sT1)}")
    a(f"v_and_b32 v6, 31, {v(vL)}")
    a(f"v_lshrrev_b32 v7, 5, {v(vL)}")
    a(f"v_lshlrev_b32 {v(vK2)}, 4, v6")
    a(f"v_lshl_add_u32 {v(vK1)}, v7, 15, {v(vK2)}")
    a(f"v_mul_u32_u24 {v(vV0)}, 320, v7")
    a(f"v_add_u32 {v(vV0)}, {v(vV0)}, {v(vK2)}")
    a(f"v_add_u32 {v(vV1)}, 640, {v(vV0)}")
    a(f"s_mov_b32 {s(sVM)}, 0xfffff")
    a(f"s_mov_b32 {s(sVM+1)}, 0xfffff")
    a(f"v_cmp_eq_u32 vcc, 20, v6")
    a(f"v_mov_b32 v8, 0x3f803f80")
    a(f"v_mov_b32 v9, 0x00003f80")
    a(f"v_cndmask_b32 v10, 0, v8, vcc")
    for u in range(4):
        for r in range(4, 12): a(f"v_mov_b32 {v(KV+14*u+r)}, v10")
        a(f"v_mov_b32 {v(KV+14*u+12)}, v8")
        a(f"v_mov_b32 {v(KV+14*u+13)}, v9")
    for q in range(4):
        a(f"v_mov_b32 {v(Q+6*q+4)}, 0"); a(f"v_mov_b32 {v(Q+6*q+5)}, 0")
    for r in range(64): a(f"v_mov_b32 {v(O+r)}, 0")
    for r in range(8): a(f"v_mov_b32 {v(P+r)}, 0")
    a("s_waitcnt lgkmcnt(0)")
    srd(a, S_WS, P_WS, WS_BYTES)
    if Cfg.fused:
        a(f"v_mov_b32 {v(V_NONCE)}, 0")
        a("s_nop 0")
        nonce_check(a, f"{pfx}_nc", 12, sT0, sT1)
        a(f"s_mul_i32 {s(sT0)}, {s(sHD)}, 20")
        a(f"s_add_u32 {s(sT1)}, {s(sT0)}, 19")
        a(f"s_lshr_b32 {s(sT0)}, {s(sT0)}, 7")
        a(f"s_lshr_b32 {s(sT1)}, {s(sT1)}, 7")
        a(f"s_sub_u32 {s(sT1)}, {s(sT1)}, {s(sT0)}")
        a(f"v_bfe_u32 v12, {v(vL)}, 3, 1")
        a(f"v_mul_u32_u24 v12, {s(sT1)}, v12")
        a(f"v_add_u32 v12, {s(sT0)}, v12")
        a(f"v_bfe_u32 v13, {v(vL)}, 4, 1")
        a(f"v_mad_u32_u24 v13, v13, 5, 5")
        a(f"s_lshl_b32 {s(sT2)}, {s(sKH)}, 3")
        a(f"v_and_b32 v14, 7, {v(vL)}")
        a(f"v_add_u32 v14, {s(sT2)}, v14")
        a(f"s_lshl_b32 {s(sT2)}, {s(sQB)}, 1")
        a(f"s_add_u32 {s(sT2)}, {s(sT2)}, {s(sQH)}")
        a("s_mov_b32 exec_lo, 0")
        a(f"v_mov_b32 v13, 0")
        a(f"v_mov_b32 v14, {s(sT2)}")
        a("s_mov_b32 exec_lo, -1")
        a(f"v_add_u32 v12, v12, v13")
        a(f"v_lshl_add_u32 v12, v12, 4, v14")
        a(f"v_lshlrev_b32 v12, 6, v12")
        a(f"s_nop 0")
        a(f"v_readlane_b32 {s(sT2)}, v12, 31")
        a(f"s_mov_b32 {s(sT3)}, {F1_OFF}")
        a(f"s_nop 1")
        a(f"s_add_u32 {s(sT2)}, {s(sT2)}, {s(sT3)}")
        stamp(a, "a_ready")
        poll(a, f"{pfx}_p0", None, sT2, 13, sT0, 4)
        poll(a, f"{pfx}_p1", 12, sT3, 13, sT0, 1)
        stamp(a, "a_go")
        setprio(a, Cfg.prioA)
    a(f"s_lshl_b32 {s(sT0)}, {s(sQB)}, 12")
    a(f"s_lshl_b32 {s(sT1)}, {s(sQH)}, 11")
    a(f"s_add_u32 {s(sT0)}, {s(sT0)}, {s(sT1)}")
    a(f"s_lshl_b32 {s(sT1)}, {s(sKH)}, 10")
    a(f"s_add_u32 {s(sT2)}, {s(sT0)}, {s(sT1)}")
    a(f"s_xor_b32 {s(sT3)}, {s(sT2)}, 1024")
    a(f"s_add_u32 {s(sT0)}, {s(sT2)}, {s(sK1b)}")
    a(f"s_add_u32 {s(sT1)}, {s(sT3)}, {s(sK1b)}")
    a(f"s_add_u32 {s(sT2)}, {s(sT2)}, {s(sK2b)}")
    a(f"s_add_u32 {s(sT3)}, {s(sT3)}, {s(sK2b)}")
    for q in range(4):
        a(f"buffer_load_dwordx4 {v(Q+6*q,4)}, {v(vK1)}, {s(S_WS,4)}, {s(sT0+(q>>1))} offen offset:{(q&1)*512}{SC1}")
    a("s_mov_b32 exec_hi, 0")
    for q in range(4):
        a(f"buffer_load_dwordx2 {v(Q+6*q+4,2)}, {v(vK2)}, {s(S_WS,4)}, {s(sT2+(q>>1))} offen offset:{(q&1)*512}{SC1}")
    a("s_mov_b32 exec_hi, -1")
    a(f"s_lshl_b32 {s(sT0)}, {s(sKH)}, 14")
    a(f"s_add_u32 {s(sT0)}, {s(sT0)}, {80*32768}")
    a(f"s_add_u32 {s(sK1b)}, {s(sK1b)}, {s(sT0)}")
    a(f"s_add_u32 {s(sK2b)}, {s(sK2b)}, {s(sT0)}")
    a(f"s_mul_i32 {s(sVb)}, {s(sHD)}, 81920")
    a(f"s_mul_i32 {s(sT0)}, {s(sKH)}, 40960")
    a(f"s_add_u32 {s(sVb)}, {s(sVb)}, {s(sT0)}")
    a(f"s_add_u32 {s(sVb)}, {s(sVb)}, {V_OFF}")
    a(f"s_mov_b32 {s(sG)}, {s(sQB)}")
    def setgrp():
        return [f"s_lshl_b32 {s(sT0)}, {s(sG)}, 11", f"s_add_u32 {s(sK1)}, {s(sK1b)}, {s(sT0)}", f"s_add_u32 {s(sK2)}, {s(sK2b)}, {s(sT0)}",
                f"s_mul_i32 {s(sT0)}, {s(sG)}, 5120", f"s_add_u32 {s(sV)}, {s(sVb)}, {s(sT0)}"]
    def kvload(u):
        b = KV + 14 * u
        return [f"buffer_load_dwordx4 {v(b,4)}, {v(vK1)}, {s(S_WS,4)}, {s(sK1)} offen offset:{u*512}{SC1}",
                "s_mov_b32 exec_hi, 0",
                f"buffer_load_dwordx2 {v(b+12,2)}, {v(vK2)}, {s(S_WS,4)}, {s(sK2)} offen offset:{u*512}{SC1}",
                f"s_mov_b64 exec, {s(sVM,2)}",
                f"buffer_load_dwordx4 {v(b+4,4)}, {v(vV0)}, {s(S_WS,4)}, {s(sV)} offen offset:{u*1280}{SC1}",
                f"buffer_load_dwordx4 {v(b+8,4)}, {v(vV1)}, {s(S_WS,4)}, {s(sV)} offen offset:{u*1280}{SC1}",
                "s_mov_b64 exec, -1"]
    a.ext(setgrp())
    for u in range(3): a.ext(kvload(u))
    a(f"s_mov_b32 {s(sIT)}, 8")
    stamp(a, "issued")
    a("s_waitcnt vmcnt(8)")
    stamp(a, "q_kv0")
    a(mf32(S, KV, Q, "0"))
    a(mf8(S, KV + 12, Q + 4))
    a("s_nop 11")
    a(".p2align 3")
    a(f"{pfx}_loop:")
    for u in range(4):
        b = KV + 14 * u; bn = KV + 14 * ((u + 1) & 3); bp = KV + 14 * ((u - 1) & 3)
        salu = []
        if u == 0: salu = [f"s_add_u32 {s(sG)}, {s(sG)}, 1", f"s_and_b32 {s(sG)}, {s(sG)}, 7"] + setgrp()
        if u == 3: salu = [f"s_sub_u32 {s(sIT)}, {s(sIT)}, 1", f"s_cmp_lg_u32 {s(sIT)}, 0"]
        for q in range(4):
            Sc = S + 16 * (q & 1); Sn = S + 16 * ((q + 1) & 1)
            qn, qp = (q + 1) & 3, (q - 1) & 3
            kn = b if q < 3 else bn
            kp = b if q > 0 else bp
            ex = [f"v_exp_f32 {v(Sc+i)}, {v(Sc+i)}" for i in range(16)]
            cv = [f"v_cvt_pk_bf16_f32 {v(P+i)}, {v(Sc+2*i)}, {v(Sc+2*i+1)}" for i in range(8)]
            def free():
                if salu: a(salu.pop(0))
            a.ext(ex[0:2])
            a(mf32(O + 16 * qp, kp + 8, P + 4))
            if q == 0: a.ext(kvload((u + 3) & 3))
            elif q == 3: a("s_waitcnt vmcnt(8)")
            else: free()
            a.ext(ex[2:6] + cv[0:2])
            a(mf32(Sn, kn, Q + 6 * qn, "0"))
            free()
            a.ext(ex[6:9] + cv[2:4])
            a(mf8(Sn, kn + 12, Q + 6 * qn + 4))
            a.ext(ex[9:13] + cv[4:5])
            a(mf32(O + 16 * q, b + 4, P))
            free()
            a.ext(ex[13:16] + cv[5:8])
        assert not salu
    a(f"s_cbranch_scc1 {pfx}_loop")
    a("s_nop 0")
    a(mf32(O + 48, KV + 14 * 3 + 8, P + 4))
    stamp(a, "loopdone")
    a(f"s_mul_i32 {s(sT0)}, {s(S_WV)}, 6144")
    a(f"s_xor_b32 {s(sT1)}, {s(S_WV)}, 2")
    a(f"s_mul_i32 {s(sT1)}, {s(sT1)}, 6144")
    a(f"v_lshlrev_b32 v6, 4, {v(vL)}")
    a(f"v_add_u32 v7, {s(sT1)}, v6")
    a(f"v_add_u32 v6, {s(sT0)}, v6")
    for j in range(3): a(f"ds_write_b128 v6, {v(O+32+4*j,4)} offset:{j*1024}")
    a(f"v_bfe_u32 v8, {v(vL)}, 4, 1")
    a(f"v_mul_u32_u24 v8, 20480, v8")
    a(f"v_and_b32 v9, 15, {v(vL)}")
    a(f"v_lshl_add_u32 v8, v9, 4, v8")
    a(f"v_lshrrev_b32 v9, 5, {v(vL)}")
    a(f"v_lshl_add_u32 v9, v9, 8, v8")
    for j in range(3): a(f"ds_write_b128 v6, {v(O+48+4*j,4)} offset:{3072+j*1024}")
    a(f"s_lshl_b32 {s(sT0)}, {s(sQB)}, 3")
    a(f"s_lshl_b32 {s(sT1)}, {s(sQH)}, 2")
    a(f"s_add_u32 {s(sT0)}, {s(sT0)}, {s(sT1)}")
    a(f"s_lshl_b32 {s(sT1)}, {s(sKH)}, 1")
    a(f"s_add_u32 {s(sT0)}, {s(sT0)}, {s(sT1)}")
    a(f"s_mul_i32 {s(sT0)}, {s(sT0)}, 40960")
    a(f"s_add_u32 {s(sT0)}, {s(sT0)}, {O_OFF}")
    a(f"s_lshl_b32 {s(sT1)}, {s(sHD)}, 9")
    a(f"s_add_u32 {s(sT1)}, {s(sT1)}, {s(sT0)}")
    a(f"s_lshr_b32 {s(sT2)}, {s(sHD)}, 1")
    a(f"s_lshl_b32 {s(sT2)}, {s(sT2)}, 8")
    a(f"s_and_b32 {s(sT3)}, {s(sHD)}, 1")
    a(f"s_lshl_b32 {s(sT3)}, {s(sT3)}, 3")
    a(f"s_add_u32 {s(sT2)}, {s(sT2)}, {s(sT3)}")
    a(f"s_add_u32 {s(sT2)}, {s(sT2)}, {s(sT0)}")
    a(f"s_add_u32 {s(sT2)}, {s(sT2)}, 16384")
    a("s_waitcnt lgkmcnt(0)")
    a("s_barrier")
    R = S
    for t in range(2):
        for j in range(3): a(f"ds_read_b128 {v(R+16*t+4*j,4)}, v7 offset:{t*3072+j*1024}")
    for t in range(2):
        a(f"s_waitcnt lgkmcnt({3-3*t})")
        o = O + 16 * t
        for r in range(12): a(f"v_add_f32 {v(o+r)}, {v(o+r)}, {v(R+16*t+r)}")
        a(f"v_mov_b32 v10, {v(o+8)}")
        a(f"v_mov_b32 v13, {v(o+8)}")
        a("s_nop 1")
        a("v_permlane32_swap_b32 v10, v13")
        a(f"v_rcp_f32 v12, v13")
        a("s_nop 0")
        for r in range(12): a(f"v_mul_f32 {v(o+r)}, {v(o+r)}, v12")
        for j in range(6): a(f"v_cvt_pk_bf16_f32 {v(14+j if t==0 else P+j)}, {v(o+2*j)}, {v(o+2*j+1)}")
        d = 14 if t == 0 else P
        a(f"buffer_store_dwordx4 {v(d,4)}, v9, {s(S_WS,4)}, {s(sT1)} offen{SC1}")
        a("s_mov_b32 exec_hi, 0")
        a(f"buffer_store_dwordx2 {v(d+4,2)}, v8, {s(S_WS,4)}, {s(sT2)} offen{SC1}")
        a("s_mov_b32 exec_hi, -1")
        if t == 0:
            a(f"s_add_u32 {s(sT1)}, {s(sT1)}, 40960")
            a(f"s_add_u32 {s(sT2)}, {s(sT2)}, 40960")
    if Cfg.fused:
        a(f"s_lshl_b32 {s(sT0)}, {s(sQB)}, 2")
        a(f"s_lshl_b32 {s(sT1)}, {s(sQH)}, 1")
        a(f"s_add_u32 {s(sT0)}, {s(sT0)}, {s(sT1)}")
        a(f"s_add_u32 {s(sT0)}, {s(sT0)}, {s(sKH)}")
        a(f"s_lshl_b32 {s(sT0)}, {s(sT0)}, 5")
        a(f"s_add_u32 {s(sT0)}, {s(sT0)}, {s(sHD)}")
        a(f"s_lshl_b32 {s(sT0)}, {s(sT0)}, 6")
        a(f"s_add_u32 {s(sT0)}, {s(sT0)}, {F3_OFF}")
        stamp(a, "o_stored")
        a("s_waitcnt vmcnt(0)")
        publish(a, sT0)
        stamp(a, "o_pub")

def gen_g2(a, pfx, standalone):
    vL, vTR, vTR3, vF, vXO = 1, 2, 3, 4, 5
    vD = 6
    XR = 12
    WF, AD, AS = 22, 42, 62
    HF = 82
    OF, WR = 82, 162
    T = 242
    sRT, sC8, sM, sWO, sHO, sIT = 41, 42, 43, 44, 45, 46
    sT0, sT1, sT2, sT3 = 54, 55, 56, 57
    SW, SX = S_B, S_A
    if standalone:
        a(f"v_and_b32 {v(vL)}, 63, v0")
        a(f"v_lshrrev_b32 {v(T)}, 6, v0")
        a("s_nop 0")
        a(f"v_readfirstlane_b32 {s(S_WV)}, {v(T)}")
    a(f"s_and_b32 {s(sT0)}, s2, 7")
    a(f"s_lshl_b32 {s(sRT)}, {s(sT0)}, 2")
    a(f"s_bfe_u32 {s(sT1)}, s2, {3 | (2<<16)}")
    a(f"s_add_u32 {s(sRT)}, {s(sRT)}, {s(sT1)}")
    a(f"s_lshl_b32 {s(sRT)}, {s(sRT)}, 2")
    a(f"s_add_u32 {s(sRT)}, {s(sRT)}, {s(S_WV)}")
    a(f"s_lshr_b32 {s(sC8)}, s2, 5")
    a(f"s_mul_i32 {s(sC8)}, {s(sC8)}, 160")
    a(f"s_mul_i32 {s(sM)}, {s(S_WV)}, 5120")
    def dma_addr(kind):
        for i in range(5):
            c, ir, ch, r, t = T, T + 1, T + 2, T + 3, T + 4
            a(f"v_add_u32 {v(c)}, {64*i}, {v(vL)}")
            a(f"v_mul_u32_u24 {v(ir)}, 6554, {v(c)}")
            a(f"v_lshrrev_b32 {v(ir)}, 16, {v(ir)}")
            a(f"v_mul_u32_u24 {v(ch)}, 10, {v(ir)}")
            a(f"v_sub_u32 {v(ch)}, {v(c)}, {v(ch)}")
            if kind == "wd":
                a(f"v_and_b32 {v(r)}, 0x13, {v(ir)}")
                a(f"v_bfe_u32 {v(t)}, {v(ir)}, 2, 1")
                a(f"v_lshl_add_u32 {v(r)}, {v(t)}, 3, {v(r)}")
                a(f"v_bfe_u32 {v(t)}, {v(ir)}, 3, 1")
                a(f"v_lshl_add_u32 {v(r)}, {v(t)}, 2, {v(r)}")
            elif kind == "wo":
                a(f"v_lshrrev_b32 {v(t)}, 4, {v(ir)}")
                a(f"v_lshl_add_u32 {v(r)}, {v(t)}, 2, {v(ir)}")
            else:
                a(f"v_lshrrev_b32 {v(r)}, 4, {v(ir)}")
                a(f"v_bfe_u32 {v(t)}, {v(ir)}, 2, 1")
                a(f"v_lshl_add_u32 {v(r)}, {v(r)}, 1, {v(t)}")
                a(f"v_bfe_u32 {v(t)}, {v(ir)}, 3, 1")
                a(f"v_lshl_add_u32 {v(r)}, {v(r)}, 1, {v(t)}")
                a(f"v_mul_u32_u24 {v(r)}, 20, {v(r)}")
                a(f"v_and_b32 {v(t)}, 3, {v(ir)}")
                a(f"v_add3_u32 {v(r)}, {v(r)}, {v(t)}, 16")
            a(f"v_mul_u32_u24 {v(r)}, 1280, {v(r)}")
            a(f"v_lshl_add_u32 {v(vD+i)}, {v(ch)}, 4, {v(r)}")
    def dma_stage(slot, step):
        out = []
        for i in range(5):
            out.append([f"s_add_u32 m0, {s(sM)}, {slot*20480+i*1024}", "s_nop 0",
                        f"buffer_load_dwordx4 {v(vD+i)}, {s(SW,4)}, {s(sWO)} offen lds"])
        out[-1].append(f"s_add_u32 {s(sWO)}, {s(sWO)}, {step}")
        return out
    def hload(st):
        return [f"buffer_load_dwordx4 {v(HF+16*st+4*j,4)}, {v(vF)}, {s(S_WS,4)}, {s(sHO)} offen offset:{j*1024}{SC1}" for j in range(4)] + \
               [f"s_add_u32 {s(sHO)}, {s(sHO)}, 4096"]
    def trd(d, slot, ks, mt):
        base, off = (vTR3, 0) if slot == 3 else (vTR, slot * 20480)
        return [f"ds_read_b64_tr_b16 {v(d+2*u,2)}, {v(base)} offset:{off+ks*5120+u*1280+8*mt}" for u in range(2)]
    dma_addr("wd")
    a(f"v_lshrrev_b32 {v(T)}, 5, {v(vL)}")
    a(f"v_bfe_u32 {v(T+1)}, {v(vL)}, 2, 3")
    a(f"v_lshl_add_u32 {v(T)}, {v(T)}, 4, {v(T+1)}")
    a(f"v_mul_u32_u24 {v(vTR)}, 160, {v(T)}")
    a(f"v_and_b32 {v(T)}, 3, {v(vL)}")
    a(f"v_mul_u32_u24 {v(T)}, 40, {v(T)}")
    a(f"v_add_u32 {v(vTR)}, {v(vTR)}, {v(T)}")
    a(f"v_add_u32 {v(vTR3)}, {3*20480}, {v(vTR)}")
    a(f"v_lshlrev_b32 {v(vF)}, 4, {v(vL)}")
    a(f"v_and_b32 {v(T)}, 15, {v(vL)}")
    a(f"v_mul_u32_u24 {v(vXO)}, 1280, {v(T)}")
    a(f"v_lshrrev_b32 {v(T)}, 4, {v(vL)}")
    a(f"v_mul_u32_u24 {v(T)}, 40, {v(T)}")
    a(f"v_add_u32 {v(vXO)}, {v(vXO)}, {v(T)}")
    for r in range(20): a(f"v_mov_b32 {v(AD+r)}, 0")
    if standalone:
        a("s_waitcnt lgkmcnt(0)")
        srd(a, S_WS, P_WS, WS_BYTES)
    srd(a, SW, P_WD, 1728 * 1280)
    srd(a, SX, P_X, 2048 * 1280)
    a(f"s_mul_i32 {s(sWO)}, {s(S_WV)}, {32*1280}")
    a(f"s_add_u32 {s(sWO)}, {s(sWO)}, {s(sC8)}")
    a(f"s_mul_i32 {s(sHO)}, {s(sRT)}, 55296")
    a(f"s_add_u32 {s(sHO)}, {s(sHO)}, {H_OFF}")
    if not standalone:
        a("s_waitcnt vmcnt(4) lgkmcnt(0)")
        a("s_barrier")
    for st in range(3):
        for g in dma_stage(st, 128 * 1280): a.ext(g)
    if not standalone:
        a("s_waitcnt vmcnt(15)")
        a("s_barrier")
        a(f"s_cmp_lg_u32 {s(S_WV)}, 0")
        a(f"s_cbranch_scc1 {pfx}_nopub")
        publish(a, 100)
        a(f"{pfx}_nopub:")
        stamp(a, "pub2")
        a(f"s_lshr_b32 {s(sT0)}, {s(sRT)}, 3")
        a(f"s_lshl_b32 {s(sT0)}, {s(sT0)}, 10")
        a(f"s_add_u32 {s(sT0)}, {s(sT0)}, {F2_OFF}")
        a(f"v_and_b32 {v(T)}, 15, {v(vL)}")
        a(f"v_lshlrev_b32 {v(T)}, 6, {v(T)}")
        poll(a, f"{pfx}_p2", T, sT0, T + 1, sT1, 8)
        stamp(a, "h_go")
    for st in range(3): a.ext(hload(st))
    a(f"s_mov_b32 {s(sIT)}, 0")
    setprio(a, Cfg.prioD)
    stamp(a, "d_issued")
    a("s_waitcnt vmcnt(0)")
    a("s_barrier")
    stamp(a, "d_first")
    for g in dma_stage(3, 128 * 1280): a.ext(g)
    a.ext(hload(3))
    for mt in range(5): a.ext(trd(WF + 4 * mt, 0, 0, mt))
    a(f"{pfx}_dloop:")
    for sl in range(4):
        for ks in range(4):
            pend = []
            if ks == 3:
                a("s_waitcnt vmcnt(18) lgkmcnt(0)")
                a("s_barrier")
                pend = dma_stage(sl, 128 * 1280)
            nsl, nks = (sl, ks + 1) if ks < 3 else ((sl + 1) & 3, 0)
            for mt in range(5):
                if ks != 3: a("s_waitcnt lgkmcnt(8)")
                a(mf16(AD + 4 * mt, WF + 4 * mt, HF + 16 * sl + 4 * ks))
                a.ext(trd(WF + 4 * mt, nsl, nks, mt))
                if pend: a.ext(pend.pop(0))
            if ks == 3: a.ext(hload(sl))
            if sl == 1 and ks == 1:
                a(f"s_cmp_eq_u32 {s(sIT)}, 3")
                a(f"s_cbranch_scc1 {pfx}_ddone")
    a(f"s_add_u32 {s(sIT)}, {s(sIT)}, 1")
    a(f"s_branch {pfx}_dloop")
    a(f"{pfx}_ddone:")
    setprio(a, Cfg.prioGv)
    stamp(a, "d_done")
    srd(a, SW, P_WO, 640 * 1280)
    dma_addr("wo")
    a(f"s_mul_i32 {s(sWO)}, {s(S_WV)}, {40*1280}")
    a(f"s_add_u32 {s(sWO)}, {s(sWO)}, {s(sC8)}")
    a("s_waitcnt vmcnt(0) lgkmcnt(0)")
    a("s_barrier")
    for st in range(4):
        for g in dma_stage(st, 160 * 1280): a.ext(g)
    a(f"s_mul_i32 {s(sT0)}, {s(sRT)}, {16*1280}")
    a(f"s_add_u32 {s(sT0)}, {s(sT0)}, {s(sC8)}")
    a(f"buffer_load_dwordx4 {v(XR,4)}, {v(vXO)}, {s(SX,4)}, {s(sT0)} offen")
    a(f"buffer_load_dwordx4 {v(XR+4,4)}, {v(vXO)}, {s(SX,4)}, {s(sT0)} offen offset:16")
    a(f"buffer_load_dwordx2 {v(XR+8,2)}, {v(vXO)}, {s(SX,4)}, {s(sT0)} offen offset:32")
    dma_addr("wl")
    for r0 in range(0, 20, 4):
        R = range(r0, r0 + 4)
        for r in R: a(f"v_mul_f32 {v(AS+r)}, {f2u(-LOG2E)}, {v(AD+r)}")
        for r in R: a(f"v_exp_f32 {v(AS+r)}, {v(AS+r)}")
        for r in R: a(f"v_add_f32 {v(AS+r)}, 1.0, {v(AS+r)}")
        for r in R: a(f"v_rcp_f32 {v(AS+r)}, {v(AS+r)}")
        for r in R: a(f"v_mul_f32 {v(AD+r)}, {v(AD+r)}, {v(AS+r)}")
    a("s_waitcnt vmcnt(18)")
    a("s_barrier")
    for ks in range(4):
        for mt in range(5): a.ext(trd(WR + 20 * ks + 4 * mt, 0, ks, mt))
        a("s_waitcnt lgkmcnt(0)")
    a("s_barrier")
    a(f"s_mul_i32 {s(sWO)}, {s(S_WV)}, {160*1280}")
    a(f"s_add_u32 {s(sWO)}, {s(sWO)}, {s(sC8)}")
    for g in dma_stage(0, 0): a.ext(g)
    srd(a, SX, P_OUT, 2048 * 1280)
    a(f"s_mul_i32 {s(sHO)}, {s(sRT)}, 20480")
    a(f"s_add_u32 {s(sHO)}, {s(sHO)}, {O_OFF}")
    a("s_waitcnt vmcnt(0)")
    a("s_barrier")
    for mt in range(5): a.ext(trd(WF + 4 * mt, 1, 0, mt))
    stamp(a, "wo_ready")
    if not standalone:
        a(f"s_lshr_b32 {s(sT1)}, {s(sRT)}, 2")
        a(f"s_lshl_b32 {s(sT1)}, {s(sT1)}, 11")
        a(f"s_add_u32 {s(sT1)}, {s(sT1)}, {F3_OFF}")
        a(f"v_and_b32 {v(T)}, 31, {v(vL)}")
        a(f"v_lshlrev_b32 {v(T)}, 6, {v(T)}")
        poll(a, f"{pfx}_p3a", None, sT1, T + 1, sT2, 4)
        poll(a, f"{pfx}_p3", T, sT1, T + 1, sT2, 0)
        stamp(a, "o_go")
    for k in range(20):
        a(f"buffer_load_dwordx4 {v(OF+4*k,4)}, {v(vF)}, {s(S_WS,4)}, {s(sHO)} offen offset:{(k&3)*1024}{SC1}")
        if k & 3 == 3 and k < 19: a(f"s_add_u32 {s(sHO)}, {s(sHO)}, 4096")
    for k in range(20):
        a(f"s_waitcnt vmcnt({19-k})")
        for mt in range(5):
            if k < 4:
                a(mf16(AS + 4 * mt, WR + 20 * k + 4 * mt, OF + 4 * k, "0" if k == 0 else None))
            else:
                a(f"s_waitcnt lgkmcnt({8 if k < 19 else 8-2*mt})")
                a(mf16(AS + 4 * mt, WF + 4 * mt, OF + 4 * k))
                if k < 19: a.ext(trd(WF + 4 * mt, ((k + 1) >> 2) & 3, (k + 1) & 3, mt))
    stamp(a, "wo_done")
    for j in range(10):
        a(f"v_lshlrev_b32 {v(WR+2*j)}, 16, {v(XR+j)}")
        a(f"v_and_b32 {v(WR+2*j+1)}, 0xffff0000, {v(XR+j)}")
    for r in range(20): a(f"v_fma_f32 {v(WR+r)}, {v(AS+r)}, {v(AD+r)}, {v(WR+r)}")
    for j in range(10): a(f"v_cvt_pk_bf16_f32 {v(XR+j)}, {v(WR+2*j)}, {v(WR+2*j+1)}")
    a(f"buffer_store_dwordx4 {v(XR,4)}, {v(vXO)}, {s(SX,4)}, {s(sT0)} offen")
    a(f"buffer_store_dwordx4 {v(XR+4,4)}, {v(vXO)}, {s(SX,4)}, {s(sT0)} offen offset:16")
    a(f"buffer_store_dwordx2 {v(XR+8,2)}, {v(vXO)}, {s(SX,4)}, {s(sT0)} offen offset:32")

def kd(name, nv=256):
    return f""".amdhsa_kernel {name}
  .amdhsa_next_free_vgpr {nv}
  .amdhsa_next_free_sgpr 102
  .amdhsa_accum_offset {nv}
  .amdhsa_group_segment_fixed_size 0
  .amdhsa_kernarg_size 80
  .amdhsa_user_sgpr_count 2
  .amdhsa_user_sgpr_kernarg_segment_ptr 1
  .amdhsa_system_sgpr_workgroup_id_x 1
  .amdhsa_float_denorm_mode_32 3
.end_amdhsa_kernel
"""
def head(a, name, n):
    a(f".globl {name}"); a(".p2align 8"); a(f".type {name},@function"); a(f"{name}:")
    a(f"s_cmp_ge_u32 s2, {n}")
    a(f"s_cbranch_scc1 {name}_end")
    load_args(a)
def tail(a, name):
    a(f"{name}_end:"); a("s_endpgm")

def build1():
    Cfg.fused = True
    a = Asm()
    name = NAME + "_kernel"
    a("; @launch grid=(512,1,1) block=(256,1,1) lds=81920")
    a('.amdgcn_target "amdgcn-amd-amdhsa--gfx950"')
    a(".text")
    head(a, name, 512)
    a("s_cmp_ge_u32 s2, 256")
    a("s_cbranch_scc1 L_att")
    stamp_begin(a, 0); stamp(a, "start"); gen_g1(a, "g1"); gen_g2(a, "g2", False); stamp_end(a, 0, 2)
    a("s_endpgm")
    a("L_att:")
    stamp_begin(a, 1); stamp(a, "start"); gen_att(a, "att", 2); stamp_end(a, 1, 2)
    tail(a, name)
    a('.section .rodata,"a"')
    a(".p2align 6"); a.lines.append(kd(name))
    return a.text()

def build3():
    Cfg.fused = False
    a = Asm()
    for k in ("g1", "att", "g2"):
        a(f"; @launch kernel={k}_kernel grid=(256,1,1) block=(256,1,1) lds=81920")
    a('.amdgcn_target "amdgcn-amd-amdhsa--gfx950"')
    a(".text")
    head(a, "g1_kernel", 256); stamp_begin(a, 0); stamp(a, "start"); gen_g1(a, "g1"); stamp_end(a, 0, 2); tail(a, "g1_kernel")
    head(a, "att_kernel", 256); stamp_begin(a, 1); stamp(a, "start"); gen_att(a, "att", 2); stamp_end(a, 1, 2); tail(a, "att_kernel")
    head(a, "g2_kernel", 256); stamp_begin(a, 2); stamp(a, "start"); gen_g2(a, "g2", True); stamp_end(a, 2, 2); tail(a, "g2_kernel")
    a('.section .rodata,"a"')
    for k in ("g1", "att", "g2"):
        a(".p2align 6"); a.lines.append(kd(k + "_kernel"))
    return a.text()

if __name__ == "__main__":
    if "--stamps" in sys.argv:
        sys.argv.remove("--stamps"); STAMPS = True
    if "--cyc" in sys.argv:
        sys.argv.remove("--cyc"); STAMPS = "cyc"
    three = "--three" in sys.argv
    if three: sys.argv.remove("--three")
    for x in list(sys.argv):
        if "=" in x:
            k_, v_ = x.split("="); setattr(Cfg, k_, int(v_)); sys.argv.remove(x)
    t = build3() if three else build1()
    if STAMPS:
        import json; json.dump(St.names, open(sys.argv[1].replace(".s", ".json"), "w"))
    out = sys.argv[1] if len(sys.argv) > 1 else f"cdna_kernels/{NAME}.s"
    body = t[:t.index('.section .rodata')]
    pr = check_hazards(body)
    for p in pr: print("HAZARD", p)
    open(out, "w").write(t)
    print("written", out, len(t), "bytes;", len(pr), "hazards")
```

```python
import sys, math, struct
from asmlib import *

NAME = "recurrent_scan__softmax_full_mha__geglu_ffn__prompt"
QK_OFF = 0
V_OFF = 160 * 32768
H_OFF = V_OFF + 32 * 81920
O_OFF = H_OFF + 128 * 55296
OL_OFF = O_OFF + 128 * 16384
FLAG_OFF = O_OFF + 128 * 20480
def f2u(x): return "0x%08x" % struct.unpack("<I", struct.pack("<f", x))[0]
LOG2E = math.log2(math.e)
QSCALE = 20 ** -0.5 * LOG2E
GC0 = -2.0 * LOG2E * math.sqrt(2.0 / math.pi)
GC1 = GC0 * 0.044715
SC1 = " sc1"

P_X, P_WQKV, P_WO, P_WG, P_WU, P_WD, P_OUT, P_DBG, P_WS = 4, 6, 8, 12, 14, 16, 18, 20, 22
S_WS = 24
S_A = 28
S_B = 32
S_C = 36
S_WV = 40

def srd(a, d, p, nbytes):
    a(f"s_mov_b32 {s(d)}, {s(p)}")
    a(f"s_mov_b32 {s(d+1)}, {s(p+1)}")
    a(f"s_mov_b32 {s(d+2)}, {nbytes}")
    a(f"s_mov_b32 {s(d+3)}, 0x00020000")

WR_OFF = FLAG_OFF
FLAG_OFF = WR_OFF + 8 * 74 * 5120
F4_OFF = FLAG_OFF + 32768 + 65536
F2B_OFF = F4_OFF + 8192
F1_OFF = FLAG_OFF
F2_OFF = FLAG_OFF + 16384
F3_OFF = FLAG_OFF + 32768
WS_BYTES = F2B_OFF + 16384
V_NONCE = 11
class Cfg:
    fused = True
    prioA = 1; prioGm = 0; prioGv = 2; prioD = 0
    rot = True
    ns = 3; drot = 0; cpf = 2; nw0 = 2; pubk = 7; aord = 1; x_norl = 0; hiN = 0; p3s = 2; p4s = 8; p2s = 2; chks = 3; x_hot = 0; x_nokv = 0; wpf = 0; x_nolo = 0; p0s = 4; p1s = 1; prioS = 2; onl = 6; carry = 3; gap = 3; gap0 = 3; x_body = 0; tch = 0; bal = 0
def setprio(a, p):
    if Cfg.fused: a(f"s_setprio {p}")
def publish(a, soff):
    a("s_mov_b64 exec, 1")
    a(f"buffer_store_dword {v(V_NONCE)}, off, {s(S_WS,4)}, {s(soff)} sc1")
    a("s_mov_b64 exec, -1")
def poll(a, lbl, vaddr, soff, vt, scnt, sleep):
    a(f"s_mov_b32 {s(scnt)}, 0x20000")
    a(f"{lbl}:")
    if vaddr is None: a(f"buffer_load_dword {v(vt)}, off, {s(S_WS,4)}, {s(soff)} sc1")
    else: a(f"buffer_load_dword {v(vt)}, {v(vaddr)}, {s(S_WS,4)}, {s(soff)} offen sc1")
    a("s_waitcnt vmcnt(0)")
    a(f"v_cmp_ne_u32 vcc, {v(vt)}, {v(V_NONCE)}")
    a(f"s_sub_u32 {s(scnt)}, {s(scnt)}, 1")
    a(f"s_cbranch_scc1 {lbl}_ok")
    a(f"s_cbranch_vccz {lbl}_ok")
    if sleep: a(f"s_sleep {sleep}")
    a(f"s_branch {lbl}")
    a(f"{lbl}_ok:")
def nonce_load(a, vz):
    a(f"global_load_dword {v(V_NONCE)}, {v(vz)}, {s(P_DBG,2)} sc1")
def nonce_check(a, lbl, vz, st, scnt):
    a(f"s_mov_b32 {s(scnt)}, 0x20000")
    a(f"{lbl}:")
    a(f"v_readfirstlane_b32 {s(st)}, {v(V_NONCE)}")
    a(f"s_sub_u32 {s(scnt)}, {s(scnt)}, 1")
    a(f"s_cbranch_scc1 {lbl}_ok")
    a(f"s_cmp_lg_u32 {s(st)}, 0")
    a(f"s_cbranch_scc1 {lbl}_ok")
    a("s_sleep 2")
    a(f"v_mov_b32 {v(vz)}, 0")
    nonce_load(a, vz)
    a("s_waitcnt vmcnt(0)")
    a(f"s_branch {lbl}")
    a(f"{lbl}_ok:")

STAMPS = False
class St:
    n = 0; names = {}; cur = None
def stamp(a, name):
    if not STAMPS: return
    l = St.names.setdefault(St.cur, [])
    if name not in l: l.append(name)
    i = l.index(name)
    a("s_waitcnt lgkmcnt(0)")
    a("s_memtime s[62:63]" if STAMPS == "cyc" else "s_memrealtime s[62:63]")
    a("s_waitcnt lgkmcnt(0)")
    a(f"s_mov_b32 {s(64+i)}, s62")
def stamp_begin(a, role):
    St.cur = role
    if not STAMPS: return
    for i in range(32): a(f"s_mov_b32 {s(64+i)}, 0")
def stamp_end(a, slot, idreg):
    if not STAMPS: return
    a("s_waitcnt vmcnt(0) lgkmcnt(0)")
    stamp(a, "end")
    a("s_mov_b64 exec, -1")
    a("v_mov_b32 v20, 0")
    for i in range(32): a(f"v_writelane_b32 v20, {s(64+i)}, {i}")
    a(f"s_and_b32 s62, {s(idreg)}, 255")
    a("s_lshl_b32 s62, s62, 2")
    a(f"s_add_u32 s62, s62, {s(S_WV)}")
    a(f"s_add_u32 s62, s62, {slot*1024}")
    a("s_lshl_b32 s62, s62, 7")
    a(f"s_add_u32 s62, s62, {WS_BYTES}")
    a(f"s_mov_b32 {s(S_WS+2)}, {WS_BYTES + (1<<20)}")
    a("v_lshlrev_b32 v21, 2, v1")
    a("s_mov_b32 exec_hi, 0")
    a(f"buffer_store_dword v20, v21, {s(S_WS,4)}, s62 offen")

def load_args(a):
    a("s_load_dwordx16 s[4:19], s[0:1], 0")
    a("s_load_dwordx4 s[20:23], s[0:1], 64")

def gen_g1(a, pfx):
    X, ACC, G, WF = 96, 32, 64, 16
    vL = 1
    vTA, vTB, vTA2, vTB2, vD, vDR, vDCo, vST = 2, 3, 4, 5, 6, 7, 8, 9
    CN = (10, 12, 13, 14, 15, 0)
    vA0, vB0, vK0, vA1, vB1, vK1 = CN
    vA, vB, vK = (vA0, vA1), (vB0, vB1), (vK0, vK1)
    VR, VA = G + 16, G + 24
    sRB, sCG, sTT, sM, sN, sNT, sNQ, sP0 = 41, 42, 43, 44, 45, 46, 47, 48
    sO, sDA, sDB, sDC, sS = 49, 50, 51, 52, 53
    sT0, sT1, sT2, sT3, sSO = 54, 55, 56, 57, 58
    sSW, sCHK = 59, 97
    sROT, sXB, sXC, sPUB, sF, sU = 96, 97, 98, 99, 100, 101
    SW = S_B
    t0, t1, t2 = G, G + 1, G + 2
    a(f"v_and_b32 {v(vL)}, 63, v0")
    a(f"v_lshrrev_b32 {v(t2)}, 6, v0")
    a(f"s_and_b32 {s(sT0)}, s2, 7")
    a(f"v_readfirstlane_b32 {s(S_WV)}, {v(t2)}")
    a(f"s_lshr_b32 {s(sT1)}, s2, 3")
    a(f"s_lshr_b32 {s(sRB)}, {s(sT0)}, 1")
    a(f"s_lshl_b32 {s(sRB)}, {s(sRB)}, 2")
    a(f"s_and_b32 {s(sROT)}, {s(sT1)}, 3")
    a(f"s_add_u32 {s(sRB)}, {s(sRB)}, {s(sROT)}")
    a(f"s_lshr_b32 {s(sT2)}, {s(sT1)}, 2")
    if Cfg.rot == 2: a(f"s_mov_b32 {s(sROT)}, {s(sT2)}")
    elif Cfg.rot == 3:
        a(f"s_and_b32 {s(sROT)}, {s(sROT)}, 1")
        a(f"s_lshl_b32 {s(sROT)}, {s(sROT)}, 1")
        a(f"s_add_u32 {s(sROT)}, {s(sROT)}, {s(sT2)}")
    else: a(f"s_add_u32 {s(sROT)}, {s(sROT)}, {s(sT2)}")
    a(f"s_lshl_b32 {s(sTT)}, {s(sRB)}, 2")
    a(f"s_add_u32 {s(sTT)}, {s(sTT)}, {s(S_WV)}")
    a(f"s_mul_i32 {s(sT3)}, {s(sROT)}, 13")
    a(f"s_lshr_b32 {s(sT3)}, {s(sT3)}, 6")
    a(f"s_mul_i32 {s(sT3)}, {s(sT3)}, 5")
    a(f"s_sub_u32 {s(sROT)}, {s(sROT)}, {s(sT3)}")
    if not Cfg.rot: a(f"s_mov_b32 {s(sROT)}, 0")
    vXA = ACC
    a(f"v_lshrrev_b32 {v(t0)}, 4, {v(vL)}")
    a(f"v_mul_u32_u24 {v(vXA)}, 1280, {v(t0)}")
    a(f"v_and_b32 {v(t1)}, 15, {v(vL)}")
    a(f"v_xor_b32 {v(vXA+1)}, {v(t0)}, {v(t1)}")
    a(f"v_lshl_add_u32 {v(vXA)}, {v(vXA+1)}, 4, {v(vXA)}")
    for i in range(1, 4): a(f"v_xor_b32 {v(vXA+i)}, {64*i}, {v(vXA)}")
    a(f"s_lshl_b32 {s(sM)}, {s(S_WV)}, 12")
    a(f"s_mul_i32 {s(sXB)}, {s(sTT)}, 40960")
    a(f"s_lshl_b32 {s(sXC)}, {s(sROT)}, 8")
    def xdma(b):
        out = []
        for i in range(4):
            g = []
            if i == 0:
                g += [f"s_add_u32 m0, {s(sM)}, {(b%5)*16384}", f"s_add_u32 {s(sU)}, {s(sXB)}, {s(sXC)}"]
            g.append(f"buffer_load_dwordx4 {v(vXA+i)}, {s(S_A,4)}, {s(sU)} offen offset:{i*1024} lds")
            if i < 3: g.append(f"s_add_u32 {s(sU)}, {s(sU)}, 4096")
            else:
                g += [f"s_add_u32 {s(sXC)}, {s(sXC)}, 256", f"s_cmp_ge_u32 {s(sXC)}, 1280", f"s_cselect_b32 {s(sXC)}, 0, {s(sXC)}"]
                if b == 4: g.append(f"s_add_u32 {s(sXB)}, {s(sXB)}, 20480")
            out.append(g)
        return out
    su = Asm()
    su(f"s_and_b32 {s(sCG)}, {s(sT0)}, 1")
    su(f"s_add_u32 {s(sCG)}, {s(sCG)}, {s(sT2)}" if Cfg.bal else f"s_lshl_b32 {s(sCG)}, {s(sCG)}, 3")
    su(f"s_add_u32 {s(sCG)}, {s(sCG)}, {s(sT2)}")
    srd(su, S_WS, P_WS, WS_BYTES)
    su(f"s_cmp_lt_u32 {s(sCG)}, 15\ns_cselect_b32 {s(sNQ)}, 2, 0\ns_cselect_b32 {s(sSW)}, 1, -1@")
    su(f"s_cmp_lt_u32 {s(sCG)}, 10\ns_cselect_b32 {s(sNT)}, 6, 4\ns_cselect_b32 {s(sP0)}, 17, 1@")
    su(f"s_mov_b32 {s(SW+3)}, 0x00020000")
    su(f"s_mov_b32 {s(sN)}, -1")
    vR0, vR4 = ACC + 4, ACC + 8
    vSm, vGr, vNM, vON = ACC + 12, (ACC + 16, ACC + 20), ACC + 24, ACC + 28
    vSE, vBP, vMu = G + 6, G + 5, (G + 12, G + 13)
    CTS = ((WF, WF + 8, G + 16), (ACC, G + 16, ACC + 8))
    sMA, sMB = 60, 38
    su(f"v_xor_b32 {v(vR0)}, {v(t0)}, {v(t1)}")
    su(f"v_lshlrev_b32 {v(vR0)}, 4, {v(vR0)}")
    su(f"v_lshl_add_u32 {v(vR0)}, {v(t1)}, 8, {v(vR0)}")
    su(f"v_add_u32 {v(vR0)}, {s(sM)}, {v(vR0)}")
    for q in range(1, 4): su(f"v_xor_b32 {v(vR0+q)}, {64*q}, {v(vR0)}")
    for q in range(4): su(f"v_add_u32 {v(vR4+q)}, 0x10000, {v(vR0+q)}")
    for i in range(4): su(f"v_mov_b32 {v(vON+i)}, 0x3f803f80")
    for i in (0, 1, 4, 5): su(f"v_mov_b32 {v(vSE+i)}, 0")
    su(f"s_mov_b32 {s(sMA)}, 0xaaaaaaaa"); su(f"s_mov_b32 {s(sMA+1)}, 0xaaaaaaaa")
    su(f"s_mov_b32 {s(sMB)}, 0xcccccccc"); su(f"s_mov_b32 {s(sMB+1)}, 0xcccccccc")
    su(f"v_and_b32 {v(vBP)}, 1, {v(vL)}")
    su(f"v_lshlrev_b32 {v(vBP)}, 4, {v(vBP)}")
    su(f"v_mov_b32 {v(vSE+2)}, 0x3f80")
    su(f"v_lshlrev_b32 {v(vSE+2)}, {v(vBP)}, {v(vSE+2)}")
    su(f"v_bfe_u32 {v(vBP)}, {v(vL)}, 2, 2")
    su(f"v_cmp_eq_u32 vcc, {v(vBP)}, {v(t0)}")
    su(f"v_lshl_add_u32 {v(vBP)}, {v(vBP)}, 4, {v(t1)}")
    su(f"v_lshlrev_b32 {v(vBP)}, 2, {v(vBP)}")
    su(f"v_cndmask_b32 {v(vSE+2)}, 0, {v(vSE+2)}, vcc")
    su(f"v_cndmask_b32 {v(vSE+3)}, 0, {v(vSE+2)}, {s(sMB,2)}")
    su(f"v_cndmask_b32 {v(vSE+2)}, {v(vSE+2)}, 0, {s(sMB,2)}")
    t3, t4 = G + 3, G + 4
    su(f"v_bfe_u32 {v(t3)}, {v(vL)}, 4, 1")
    su(f"v_bfe_u32 {v(t4)}, {v(vL)}, 2, 2")
    su(f"v_lshl_add_u32 {v(vDR)}, {v(t3)}, 3, {v(t4)}")
    su(f"v_lshl_add_u32 {v(vDR)}, {v(t2)}, 5, {v(vDR)}")
    su(f"v_lshlrev_b32 {v(vDCo)}, 1, {v(t3)}")
    su(f"v_and_b32 {v(vD)}, 3, {v(vL)}")
    su(f"v_xor_b32 {v(vDCo)}, {v(vDCo)}, {v(vD)}")
    su(f"v_lshlrev_b32 {v(vDCo)}, 4, {v(vDCo)}")
    su(f"v_lshrrev_b32 {v(t2)}, 5, {v(vL)}")
    su(f"v_lshl_add_u32 {v(vDCo)}, {v(t2)}, 6, {v(vDCo)}")
    su(f"v_lshlrev_b32 {v(vTA)}, 11, {v(t2)}")
    su(f"v_mad_u32_u24 {v(vTA)}, {v(t3)}, {s(sT3)}, {v(vTA)}")
    su(f"v_lshl_add_u32 {v(vTA)}, {v(t4)}, 6, {v(vTA)}")
    su(f"v_lshl_add_u32 {v(vTA)}, {v(vD)}, 3, {v(vTA)}")
    su(f"v_xor_b32 {v(vTB)}, 32, {v(vTA)}")
    su(f"v_add_u32 {v(vTA2)}, 0x10000, {v(vTA)}")
    su(f"v_add_u32 {v(vTB2)}, 0x10000, {v(vTB)}")
    su(f"v_lshl_add_u32 {v(vST)}, {v(t3)}, 1, {v(t2)}")
    su(f"v_lshlrev_b32 {v(vST)}, 15, {v(vST)}")
    su(f"v_lshl_add_u32 {v(vST)}, {v(t1)}, 4, {v(vST)}")
    su(f"s_lshl_b32 {s(sT1)}, {s(sCG)}, 7")
    su(f"s_sub_u32 {s(sT1)}, {s(sT1)}, 1280")
    su(f"s_and_b32 {s(sT1)}, {s(sT1)}, 1023")
    su(f"s_mov_b32 {s(sT2)}, {81920-320}")
    su(f"v_mul_u32_u24 {v(t0)}, 320, {v(t0)}")
    su(f"v_add_u32 {v(t1)}, {s(sT1)}, {v(t1)}")
    for i in range(8):
        su(f"v_mul_u32_u24 {v(t2)}, 3277, {v(t1)}")
        su(f"v_lshrrev_b32 {v(t2)}, 16, {v(t2)}")
        su(f"v_lshl_add_u32 {v(VA+i)}, {v(t1)}, 4, {v(t0)}")
        su(f"v_mad_u32_u24 {v(VA+i)}, {v(t2)}, {s(sT2)}, {v(VA+i)}")
        if i < 7: su(f"v_add_u32 {v(t1)}, 16, {v(t1)}")
    def params_a():
        return [f"s_add_u32 {s(sT0)}, {s(sN)}, 1",
                f"s_sub_u32 {s(sT1)}, {s(sT0)}, {s(sNQ)}",
                f"s_lshr_b32 {s(sT1)}, {s(sT1)}, 1",
                f"s_mul_i32 {s(sT1)}, {s(sT1)}, {s(sP0)}",
                f"s_add_u32 {s(sT1)}, {s(sT1)}, {s(sCG)}",
                f"s_lshl_b32 {s(sT2)}, {s(sCG)}, 1",
                f"s_add_u32 {s(sT2)}, {s(sT2)}, {s(sT0)}",
                f"s_movk_i32 {s(sS)}, 3456",
                f"s_cmp_lt_u32 {s(sT0)}, {s(sNQ)}\ns_cselect_b32 {s(sT1)}, {s(sT2)}, {s(sT1)}\ns_cselect_b32 {s(sS)}, 3840, {s(sS)}",
                f"s_mul_i32 {s(sT2)}, {s(sROT)}, {s(sS)}",
                f"s_add_u32 {s(sT1)}, {s(sT1)}, {s(sT2)}"]
    def params_b():
        return [f"s_bitcmp1_b32 {s(sT0)}, 0\ns_cselect_b32 {s(SW)}, {s(P_WU)}, {s(P_WG)}\ns_cselect_b32 {s(SW+1)}, {s(P_WU+1)}, {s(P_WG+1)}",
                f"s_cmp_lt_u32 {s(sT0)}, {s(sNQ)}\ns_cselect_b32 {s(SW)}, {s(P_WQKV)}, {s(SW)}\ns_cselect_b32 {s(SW+1)}, {s(P_WQKV+1)}, {s(SW+1)}",
                f"s_mul_i32 {s(SW+2)}, {s(sS)}, 640",
                f"s_cmp_lt_u32 {s(sT0)}, {s(sNT)}\ns_cselect_b32 {s(SW+2)}, {s(SW+2)}, 0",
                f"s_lshl_b32 {s(sO)}, {s(sT1)}, 7",
                f"s_lshl_b32 {s(sDA)}, {s(sS)}, 2",
                f"s_mul_i32 {s(sDB)}, {s(sS)}, 12",
                f"s_mul_i32 {s(sDC)}, {s(sS)}, 108",
                f"s_sub_u32 {s(sDA)}, {s(sDA)}, 1024",
                f"s_sub_u32 {s(sDB)}, {s(sDB)}, 1024",
                f"s_add_u32 {s(sDC)}, {s(sDC)}, 3072"]
    def params_v(): return f"v_mad_u32_u24 {v(vD)}, {v(vDR)}, {s(sS)}, {v(vDCo)}"
    def wdma(slot):
        out = []
        for i in range(4):
            g = []
            if i == 0: g += [f"s_add_u32 m0, {s(sM)}, {slot*16384}", "s_nop 0"]
            g.append(f"buffer_load_dwordx4 {v(vD)}, {s(SW,4)}, {s(sO)} offen offset:{i*1024} lds")
            g.append(f"s_add_u32 {s(sO)}, {s(sO)}, {s((sDA, sDB, sDA, sDC)[i])}")
            if i == 3:
                g += [f"s_cmp_ge_u32 {s(sO)}, {s(SW+2)}", f"s_cselect_b32 {s(sU)}, {s(SW+2)}, 0", f"s_sub_u32 {s(sO)}, {s(sO)}, {s(sU)}"]
            out.append(g)
        return out
    items = []; keep = []
    for l in su.lines:
        l = l.strip()
        if l.startswith("s_cmp"): keep = [l]; continue
        if keep:
            keep.append(l.rstrip("@"))
            if l.endswith("@"): items.append("\n".join(keep)); keep = []
            continue
        items.append(l)
    items += params_a() + params_b() + [params_v()]
    a(f"s_movk_i32 {s(sT3)}, 288")
    a("s_waitcnt lgkmcnt(0)")
    srd(a, S_A, P_X, 2048 * 1280)
    per = -(-len(items) // 16)
    if Cfg.tch & 1:
        a(f"s_mul_i32 {s(sU)}, {s(sT2)}, 2560")
        a(f"s_add_u32 {s(sU)}, {s(sU)}, {s(sXB)}")
        a(f"s_add_u32 {s(sU)}, {s(sU)}, 20480")
        a(f"v_lshlrev_b32 {v(WF)}, 7, {v(vL)}")
        a("s_mov_b64 exec, 0xfffff")
        a(f"buffer_load_dword {v(WF+1)}, {v(WF)}, {s(S_A,4)}, {s(sU)} offen")
        a("s_mov_b64 exec, -1")
    for b in range(5):
        for g in xdma(b):
            a.ext(g)
            if b > 0:
                for _ in range(per):
                    if items: a(items.pop(0))
    assert not items
    if Cfg.tch & 2:
        a(f"s_and_b32 {s(sT0)}, {s(sTT)}, 15")
        a(f"s_mul_i32 {s(sT0)}, {s(sT0)}, 40")
        a(f"s_mul_i32 {s(sT0)}, {s(sT0)}, {s(sS)}")
        a(f"s_mul_i32 {s(sT2)}, {s(sROT)}, {s(sS)}")
        a(f"s_lshl_b32 {s(sT2)}, {s(sT2)}, 7")
        a(f"s_sub_u32 {s(sT2)}, {s(sO)}, {s(sT2)}")
        a(f"s_add_u32 {s(sT0)}, {s(sT0)}, {s(sT2)}")
        a(f"v_mul_u32_u24 {v(WF+2)}, {s(sS)}, {v(vL)}")
        a("s_mov_b32 exec_hi, 0xff")
        a(f"buffer_load_dword {v(WF+3)}, {v(WF+2)}, {s(SW,4)}, {s(sT0)} offen")
        if Cfg.tch & 4: a(f"buffer_load_dword {v(WF+4)}, {v(WF+2)}, {s(SW,4)}, {s(sT0)} offen offset:128")
        a("s_mov_b32 exec_hi, -1")
    a(f"s_mov_b32 {s(sN)}, 0")

    def stats(b):
        o = []
        for q in range(4):
            f = X + 16 * b + 4 * q
            first = (b % 5 == 0 and q == 0)
            o.append(mf16(vSm, vON, f, "0" if first else None))
            o.append(mf16(vGr[b // 5], f, f, "0" if first else None))
        return o
    def mean(rt):
        return [f"v_mul_f32 {v(vMu[rt])}, {f2u(-1/640)}, {v(vSm)}",
                f"v_cvt_pk_bf16_f32 {v(vNM)}, {v(vMu[rt])}, {v(vMu[rt])}",
                f"v_lshlrev_b32 {v(vNM)}, 16, {v(vNM)}",
                f"v_mov_b32 {v(vNM+1)}, {v(vNM)}", f"v_mov_b32 {v(vNM+2)}, {v(vNM)}", f"v_mov_b32 {v(vNM+3)}, {v(vNM)}", "s_nop 1"]
    def diag(rt):
        g = vGr[rt]
        return [f"v_cndmask_b32 {v(g)}, {v(g)}, {v(g+1)}, {s(sMA,2)}",
                f"v_cndmask_b32 {v(g+2)}, {v(g+2)}, {v(g+3)}, {s(sMA,2)}",
                f"v_cndmask_b32 {v(g)}, {v(g)}, {v(g+2)}, {s(sMB,2)}",
                f"ds_bpermute_b32 {v(vK[rt])}, {v(vBP)}, {v(g)}"]
    def finalize2(rt):
        k = vK[rt]
        return [f"v_mul_f32 {v(k)}, {f2u(1/640)}, {v(k)}",
                f"v_fma_f32 {v(k)}, -{v(vMu[rt])}, {v(vMu[rt])}, {v(k)}",
                f"v_max_f32 {v(k)}, 0, {v(k)}",
                f"v_cvt_pk_bf16_f32 {v(k)}, {v(k)}, {v(k)}",
                f"v_lshlrev_b32 {v(k)}, 16, {v(k)}",
                f"v_add_f32 {v(k)}, {f2u(1e-5)}, {v(k)}",
                f"v_cvt_pk_bf16_f32 {v(k)}, {v(k)}, {v(k)}",
                f"v_lshlrev_b32 {v(k)}, 16, {v(k)}",
                f"v_sqrt_f32 {v(k)}, {v(k)}", "s_nop 0",
                f"v_cvt_pk_bf16_f32 {v(k)}, {v(k)}, {v(k)}",
                f"v_lshlrev_b32 {v(k)}, 16, {v(k)}",
                f"v_rcp_f32 {v(vA[rt])}, {v(k)}", "s_nop 0",
                f"v_mul_f32 {v(vA[rt])}, {s(sT3)}, {v(vA[rt])}"]
    def center(rt):
        steps = []; CT = CTS[rt]
        for j in range(22):
            m = [[], []]; c = [[], []]
            if j < 20:
                f = X + 80 * rt + 4 * j; d = CT[j % 3]
                m = [[mf16(d, vSE + 2, f, v(vNM, 4))], [mf16(d + 4, vSE, f, v(vNM, 4))]]
            if j >= 2:
                f = X + 80 * rt + 4 * (j - 2); d = CT[(j - 2) % 3]
                cv = [f"v_cvt_pk_bf16_f32 {v(f+i)}, {v(d+2*i)}, {v(d+2*i+1)}" for i in range(4)]
                c = [cv[:2], cv[2:]]
            st = m[0] + c[0] + m[1] + c[1]
            if j in (0, 1): st.append("s_nop 2")
            if j == 20: st.append("s_nop 3")
            steps.append(st)
        return steps
    def weave(steps, groups):
        n = len(groups); done = 0
        for i, st in enumerate(steps):
            a.ext(st[:1])
            while done < n and done * len(steps) <= i * n:
                a.ext(groups[done]); done += 1
            a.ext(st[1:])
        for g in groups[done:]: a.ext(g)
    a(f"s_cmp_lt_u32 {s(sCG)}, 5")
    a(f"s_cselect_b32 {s(sT3)}, {f2u(QSCALE)}, 1.0")
    def xread(b):
        slot = b % 5
        return [f"ds_read_b128 {v(X+16*b+4*q,4)}, {v((vR4 if slot == 4 else vR0)+q)} offset:{0 if slot == 4 else slot*16384}" for q in range(4)]
    pairs = lambda l: [l[2*i:2*i+2] for i in range(len(l) // 2)]
    NC = Cfg.carry
    wg = [wdma(st) for st in range(4)]
    wg[3] = wg[3][:4 - NC]; wg[3][-1] = wg[3][-1][:-1]
    vm = 20; issued = [0]
    def wx(b):
        a(f"s_waitcnt vmcnt({20 + issued[0] - 4 * (b + 1)})")
    dq = []
    def step(st, pop):
        a.ext(st[:1])
        if pop and dq:
            a.ext(dq.pop(0)); issued[0] += 1
        a.ext(st[1:])
    wx(0)
    stamp(a, "x0")
    a.ext(xread(0))
    for b in range(5):
        if b < 4:
            wx(b + 1); a.ext(xread(b + 1)); a("s_waitcnt lgkmcnt(4)")
        else:
            a("s_waitcnt lgkmcnt(0)")
        dq += xdma(b + 5)
        for i, st in enumerate(pairs(stats(b))): step(st, i % 2 == 0)
    a.ext(dq.pop(0)); issued[0] += 1
    a("s_nop 4")
    a.ext(mean(0))
    c0 = center(0)
    for i, st in enumerate(c0):
        step(st, i % 2 == 1)
        if i == 3: a.ext(diag(0))
        if i == 17:
            assert not dq
            stamp(a, "p1")
            wx(5); a.ext(xread(5))
    f0 = finalize2(0)
    for b in range(5, 10):
        if b < 9:
            wx(b + 1); a.ext(xread(b + 1)); a("s_waitcnt lgkmcnt(4)")
            dq += wg[b - 5]
        else:
            a("s_waitcnt lgkmcnt(0)")
        for i, st in enumerate(pairs(stats(b))):
            step(st, i % 2 == 0)
            if i % 2 == 1: a.ext(f0[:2]); f0 = f0[2:]
    assert not f0
    if Cfg.fused:
        a(f"s_or_b32 {s(sT0)}, s2, {s(S_WV)}")
        a(f"s_cmp_lg_u32 {s(sT0)}, 0")
        a(f"s_cbranch_scc1 {pfx}_nn")
        a(f"s_memrealtime {s(sT0,2)}")
        a("s_waitcnt lgkmcnt(0)")
        a(f"s_or_b32 {s(sT0)}, {s(sT0)}, 1")
        a(f"v_mov_b32 {v(t0)}, 0")
        a(f"v_mov_b32 {v(t1)}, {s(sT0)}")
        a("s_mov_b64 exec, 1")
        a(f"global_store_dword {v(t0)}, {v(t1)}, {s(P_DBG,2)} sc1")
        a("s_mov_b64 exec, -1")
        a(f"{pfx}_nn:")
    stamp(a, "p2")
    a("s_nop 3")
    a.ext(mean(1))
    c1 = center(1)
    for i, st in enumerate(c1[:16]): step(st, i % 2 == 0)
    assert not dq
    a.ext(diag(1))
    stamp(a, "xstats")
    def trd(k, ct):
        kk = k % 20
        slot, ks = kk // 4, kk % 4
        base = ((vTA, vTB), (vTA2, vTB2))[slot == 4][ct & 1]
        off = 0 if slot == 4 else slot * 16384
        return [f"ds_read_b64_tr_b16 {v(WF+4*ct+2*t,2)}, {v(base)} offset:{off+ks*4096+t*1024+(ct>>1)*512}" for t in range(2)]
    a(f"s_waitcnt vmcnt({12 - NC})")
    a("s_barrier")
    stamp(a, "w0")
    for ct in range(4): a.ext(trd(0, ct))
    for st in c1[16:]: a.ext(st)
    a("s_waitcnt lgkmcnt(8)")
    a.ext(finalize2(1))
    a(f"s_cmp_eq_u32 {s(sNQ)}, 0")
    a(f"s_cselect_b32 {s(sPUB)}, -1, 2")
    a(f"s_lshl_b32 {s(sF)}, {s(sCG)}, 4")
    a(f"s_add_u32 {s(sF)}, {s(sF)}, {s(sRB)}")
    a(f"s_lshl_b32 {s(sF)}, {s(sF)}, 6")
    a(f"s_add_u32 {s(sF)}, {s(sF)}, {F1_OFF}")
    a(f"s_cmp_eq_u32 {s(S_WV)}, 0")
    a(f"s_cselect_b32 {s(sCHK)}, 5, -1")
    stamp(a, "centered")
    def ffn_consts():
        for rt in range(2):
            a(f"v_rcp_f32 {v(vB[rt])}, {v(vK[rt])}")
            a(f"v_mul_f32 {v(vK[rt])}, {v(vK[rt])}, {v(vK[rt])}")
            a(f"v_mul_f32 {v(vA[rt])}, {f2u(GC0)}, {v(vB[rt])}")
            a(f"v_mul_f32 {v(vB[rt])}, {v(vB[rt])}, {v(vB[rt])}")
            a(f"v_mul_f32 {v(vB[rt])}, {v(vB[rt])}, {v(vA[rt])}")
            a(f"v_mul_f32 {v(vB[rt])}, {f2u(0.044715)}, {v(vB[rt])}")
        a(f"v_lshlrev_b32 {v(vST)}, 4, {v(vL)}")
        a(f"s_lshr_b32 {s(sT0)}, s2, 7")
        a(f"s_lshl_b32 {s(sT0)}, {s(sT0)}, 12")
        a(f"s_add_u32 {s(sT0)}, {s(sT0)}, {F4_OFF}")
        a(f"s_and_b32 {s(sT1)}, s2, 7")
        a(f"s_lshl_b32 {s(sT1)}, {s(sT1)}, 1")
        a(f"s_bfe_u32 {s(sT2)}, s2, {4 | (1<<16)}")
        a(f"s_add_u32 {s(sT1)}, {s(sT1)}, {s(sT2)}")
        a(f"s_lshl_b32 {s(sT1)}, {s(sT1)}, 10")
        a(f"s_add_u32 {s(sT1)}, {s(sT1)}, {F2_OFF - 48*64}")
        a(f"v_mov_b32 {v(vDR)}, {s(sT0)}")
        a("s_mov_b32 exec_lo, 0")
        a("s_mov_b32 exec_hi, 0xffff0000")
        a(f"v_mov_b32 {v(vDR)}, {s(sT1)}")
        a("s_mov_b64 exec, -1")
        a(f"v_lshl_add_u32 {v(vDR)}, {v(vL)}, 6, {v(vDR)}")
        a(f"v_mov_b32 {v(vDCo)}, 0")
    def wdma_items(slot):
        ld = lambda i: f"buffer_load_dwordx4 {v(vD)}, {s(SW,4)}, {s(sO)} offen offset:{i*1024} lds"
        ad = lambda d: f"s_add_u32 {s(sO)}, {s(sO)}, {s(d)}"
        return [[ld(0)], [ad(sDA), ld(1)], [ad(sDB), ld(2)], [ad(sDA), ld(3)],
                [ad(sDC), f"s_cmp_ge_u32 {s(sO)}, {s(SW+2)}", f"s_cselect_b32 {s(sU)}, {s(SW+2)}, 0"],
                [f"s_sub_u32 {s(sO)}, {s(sO)}, {s(sU)}"]]
    def pack(items, n=3):
        out = []; cur = []
        for it in items:
            l = it.split("\n")
            if len(cur) + len(l) > n: out.append(cur); cur = []
            cur += l
        if cur: out.append(cur)
        return out
    def body(tag, swap):
        a("s_waitcnt lgkmcnt(6)")
        if not swap:
            a(f"s_cmp_lt_u32 {s(sN)}, {Cfg.hiN}")
            a(f"s_cbranch_scc1 {pfx}_hi")
            setprio(a, Cfg.prioGm)
            a(f"{pfx}_hi:")
        def spread(dma, other, gap):
            out = []; other = list(other)
            for it in dma:
                out.append(it)
                if any(" lds" in x for x in it):
                    for _ in range(gap - 1): out.append(other.pop(0) if other else [])
            return out + other
        q = spread(wdma_items(3)[4 - Cfg.carry:], pack(params_a()), Cfg.gap0)
        for k in range(20):
            for ct in range(4):
                w = WF + 4 * ct
                mm = lambda rt: mf16(ACC + 16 * rt + 4 * ct, X + 80 * rt + 4 * k if swap else w, w if swap else X + 80 * rt + 4 * k, "0" if k == 0 else None)
                a(mm(0))
                if ct == 0 and k % 4 == 3:
                    assert not q, (k, q)
                    if k == Cfg.pubk and not swap:
                        a(f"s_cbranch_scc1 {pfx}_pub")
                    if not Cfg.x_body & 4: a("s_waitcnt vmcnt(8)")
                    if not Cfg.x_body & 1: a("s_barrier")
                    if k == Cfg.pubk and not swap: a(f"{pfx}_pubret:")
                    dm = wdma_items((k // 4 - 1) % 5); q = []
                    if k == 3:
                        dm = spread(dm[:3], [], 2) + dm[3:4] + pack(params_b()) + [[f"s_cmp_eq_u32 {s(sN)}, {s(sSW)}", f"s_cbranch_scc1 {pfx}_sw{tag}", f"{pfx}_swr{tag}:"]]
                    if k == 7 and not swap:
                        T0 = sum(x << (3 * i) for i, x in enumerate((1, 4, 2, 3, 0)))
                        T1 = sum(x << (3 * i) for i, x in enumerate((3, 0, 1, 4, 2)))
                        it = [f"s_lshl_b32 {s(sT0)}, {s(sCG)}, 1", f"s_add_u32 {s(sT0)}, {s(sT0)}, {s(sN)}", f"s_mul_i32 {s(sT1)}, {s(sT0)}, 52",
                              f"s_lshr_b32 {s(sT1)}, {s(sT1)}, 8", f"s_mul_i32 {s(sT1)}, {s(sT1)}, 5", f"s_sub_u32 {s(sT0)}, {s(sT0)}, {s(sT1)}",
                              f"s_mul_i32 {s(sT0)}, {s(sT0)}, 3"]
                        for tb, m in ((T0, sMA), (T1, sMB)):
                            it += [f"s_lshr_b32 {s(sT1)}, {tb << 4}, {s(sT0)}", f"s_and_b32 {s(sT2)}, {s(sT1)}, 0x30",
                                   f"s_bitcmp1_b32 {s(sT1)}, 6\ns_cselect_b32 {s(m)}, 0, 0xffff\ns_mov_b32 {s(m+1)}, 0",
                                   f"s_lshl_b64 {s(m,2)}, {s(m,2)}, {s(sT2)}"]
                        q += pack(it)
                    if k == 15 and not swap:
                        q += [[f"s_cmp_eq_u32 {s(sN)}, {s(sCHK)}", f"s_cbranch_scc1 {pfx}_chk", f"{pfx}_chkr:"]]
                    if k == 11:
                        if swap:
                            q += pack([f"s_mul_i32 {s(sSO)}, {s(sTT)}, 1280", f"s_add_u32 {s(sSO)}, {s(sSO)}, {V_OFF}"])
                        else:
                            q += pack([f"s_sub_u32 {s(sT0)}, {s(sN)}, {s(sNQ)}", f"s_lshr_b32 {s(sT0)}, {s(sT0)}, 1", f"s_mul_i32 {s(sT0)}, {s(sT0)}, {s(sP0)}", f"s_add_u32 {s(sT0)}, {s(sT0)}, {s(sCG)}",
                                f"s_lshl_b32 {s(sT0)}, {s(sT0)}, 11", f"s_mul_i32 {s(sSO)}, {s(sTT)}, {2*55296}", f"s_add_u32 {s(sSO)}, {s(sSO)}, {s(sT0)}",
                                f"s_add_u32 {s(sSO)}, {s(sSO)}, {H_OFF}",
                                f"s_lshl_b32 {s(sT0)}, {s(sCG)}, 1", f"s_add_u32 {s(sT0)}, {s(sT0)}, {s(sN)}", f"s_lshl_b32 {s(sT0)}, {s(sT0)}, 18",
                                f"s_lshl_b32 {s(sT1)}, {s(sTT)}, 9", f"s_add_u32 {s(sT0)}, {s(sT0)}, {s(sT1)}",
                                f"s_mov_b32 {s(sT1)}, 55296",
                                f"s_cmp_lt_u32 {s(sN)}, {s(sNQ)}\ns_cselect_b32 {s(sSO)}, {s(sT0)}, {s(sSO)}\ns_cselect_b32 {s(sT1)}, {4*32768}, {s(sT1)}",
                                f"s_add_u32 {s(sT3)}, {s(sSO)}, {s(sT1)}"])
                    if k == 3: q = dm
                    elif k == 19: q = spread(dm[:4 - Cfg.carry], [], {1: 1, 2: 2, 3: 3}[Cfg.carry])[:3]
                    else:
                        q = spread(dm[:3], q, Cfg.gap)
                        q = q[:3 * Cfg.gap] + dm[3:] + q[3 * Cfg.gap:]
                elif ct == 3 and k % 4 == 2:
                    while q and not q[-1]: q.pop()
                    assert not q, (k, q)
                    a(f"s_add_u32 m0, {s(sM)}, {(((k + 1) // 4 - 1) % 5) * 16384}")
                    if k + 1 == Cfg.pubk and not swap: a(f"s_cmp_eq_u32 {s(sN)}, {s(sPUB)}")
                elif q: a.ext([x for x in q.pop(0) if not (Cfg.x_body & 2 and " lds" in x)])
                a(mm(1))
                a("s_waitcnt lgkmcnt(4)")
                a.ext(trd(k + 1, ct))
        assert not q
        setprio(a, Cfg.prioGv)
        if STAMPS:
            for n in range(6):
                a(f"s_cmp_lg_u32 {s(sN)}, {n}"); a(f"s_cbranch_scc1 {pfx}_stm{tag}{n}"); stamp(a, f"mm{n}"); a(f"{pfx}_stm{tag}{n}:")
    def ep_stamp(tag):
        if STAMPS:
            for n in range(6):
                a(f"s_cmp_lg_u32 {s(sN)}, {n}"); a(f"s_cbranch_scc1 {pfx}_ste{tag}{n}"); stamp(a, f"ep{n}"); a(f"{pfx}_ste{tag}{n}:")
    a(f"s_cmp_eq_u32 {s(sNQ)}, 0")
    a(f"s_cbranch_scc1 {pfx}_toffn")
    a(f"s_cmp_lt_u32 {s(sCG)}, 10")
    a(f"s_cbranch_scc1 {pfx}_loop")
    a(f"v_lshrrev_b32 {v(t0)}, 4, {v(vL)}")
    a(f"v_lshlrev_b32 {v(t0)}, 4, {v(t0)}")
    for rt in range(2):
        for i in range(4): a(f"ds_bpermute_b32 {v(VR+4*rt+i)}, {v(t0)}, {v(vA[rt])} offset:{4*i}")
    a("s_waitcnt lgkmcnt(0)")
    a(f"{pfx}_vloop:")
    body("v", True)
    for ct in range(4):
        for rt in range(2):
            for i in range(4): a(f"v_mul_f32 {v(ACC+16*rt+4*ct+i)}, {v(ACC+16*rt+4*ct+i)}, {v(VR+4*rt+i)}")
        for rt in range(2):
            for j in range(2): a(f"v_cvt_pk_bf16_f32 {v(G+4*ct+2*rt+j)}, {v(ACC+16*rt+4*ct+2*j)}, {v(ACC+16*rt+4*ct+2*j+1)}")
        a(f"buffer_store_dwordx4 {v(G+4*ct,4)}, {v(VA+ct)}, {s(S_WS,4)}, {s(sSO)} offen{SC1}")
    ep_stamp("v")
    a(f"s_cmp_eq_u32 {s(sN)}, 1")
    a(f"s_cbranch_scc1 {pfx}_qdone")
    for ct in range(4): a(f"v_mov_b32 {v(VA+ct)}, {v(VA+4+ct)}")
    a(f"v_mov_b32 {v(V_NONCE)}, 0")
    a(f"s_mov_b32 {s(sN)}, 1")
    nonce_load(a, V_NONCE)
    a(f"s_branch {pfx}_vloop")
    for tag in "vn":
        a(f"{pfx}_sw{tag}:"); a(params_v()); a(f"s_branch {pfx}_swr{tag}")
    a(f"{pfx}_chk:")
    a(f"buffer_load_dword {v(vDCo)}, {v(vDR)}, {s(S_WS,4)}, 0 offen sc1")
    a(f"s_branch {pfx}_chkr")
    a(f"{pfx}_pub:")
    a(f"s_waitcnt vmcnt({4 + Cfg.carry if Cfg.pubk == 7 else 8})")
    a("s_barrier")
    a(f"s_mov_b32 {s(sPUB)}, 4")
    a(f"s_cmp_lg_u32 {s(S_WV)}, 0")
    a(f"s_cbranch_scc1 {pfx}_pubret")
    publish(a, sF)
    a(f"s_lshl_b32 {s(sF)}, {s(sRB)}, 4")
    a(f"s_add_u32 {s(sF)}, {s(sF)}, {s(sCG)}")
    a(f"s_lshl_b32 {s(sF)}, {s(sF)}, 6")
    a(f"s_add_u32 {s(sF)}, {s(sF)}, {F2_OFF}")
    if STAMPS:
        a(f"s_cmp_lg_u32 {s(sN)}, 2"); a(f"s_cbranch_scc1 {pfx}_pubret")
    stamp(a, "pub1")
    a(f"s_branch {pfx}_pubret")
    a(f"{pfx}_eq:")
    for j in range(2):
        for rt in range(2):
            b = ACC + 16 * rt + 8 * j; d = G + 8 * j + 4 * rt
            for r in range(8): a(f"v_mul_f32 {v(b+r)}, {v(b+r)}, {v(vA[rt])}")
            for r in range(4): a(f"v_cvt_pk_bf16_f32 {v(d+r)}, {v(b+2*r)}, {v(b+2*r+1)}")
            if rt == 1:
                for r2 in range(2):
                    d2 = G + 8 * j + 4 * r2
                    a(f"v_permlane16_swap_b32 {v(d2)}, {v(d2+2)}")
                    a(f"v_permlane16_swap_b32 {v(d2+1)}, {v(d2+3)}")
                a(f"s_mov_b64 exec, {s((sMA, sMB)[j],2)}")
                a(f"v_swap_b32 {v(G+8*j+2)}, {v(G+8*j+4)}")
                a(f"v_swap_b32 {v(G+8*j+3)}, {v(G+8*j+5)}")
                a("s_mov_b64 exec, -1")
                for r2 in range(2):
                    d2 = G + 8 * j + 4 * r2
                    a(f"buffer_store_dwordx4 {v(d2,4)}, {v(vST)}, {s(S_WS,4)}, {s(sT3 if j else sSO)} offen offset:{r2*256}{SC1}")
    ep_stamp("q")
    a(f"s_cmp_eq_u32 {s(sN)}, 1")
    a(f"s_cbranch_scc1 {pfx}_qdone")
    a(f"v_mov_b32 {v(V_NONCE)}, 0")
    a(f"s_mov_b32 {s(sN)}, 1")
    nonce_load(a, V_NONCE)
    a(f"s_branch {pfx}_loop")
    a(f"{pfx}_qdone:")
    nonce_check(a, f"{pfx}_nc", V_NONCE, sT0, sT1)
    a(f"s_mov_b32 {s(sN)}, 2")
    a(f"{pfx}_toffn:")
    ffn_consts()
    a(f"{pfx}_loop:")
    body("n", False)
    a(f"s_cmp_lt_u32 {s(sN)}, {s(sNQ)}")
    a(f"s_cbranch_scc1 {pfx}_eq")
    a(f"s_bitcmp1_b32 {s(sN)}, 0")
    a(f"s_cbranch_scc1 {pfx}_eu")
    for r0 in range(0, 32, 4):
        R = range(r0, r0 + 4); rt = r0 // 16
        for r in R: a(f"v_mul_f32 {v(G+r)}, {v(ACC+r)}, {v(ACC+r)}")
        for r in R: a(f"v_fma_f32 {v(G+r)}, {v(G+r)}, {v(vB[rt])}, {v(vA[rt])}")
        for r in R: a(f"v_mul_f32 {v(G+r)}, {v(G+r)}, {v(ACC+r)}")
        for r in R: a(f"v_exp_f32 {v(G+r)}, {v(G+r)}")
        for r in R: a(f"v_fma_f32 {v(G+r)}, {v(G+r)}, {v(vK[rt])}, {v(vK[rt])}")
        for r in R: a(f"v_rcp_f32 {v(G+r)}, {v(G+r)}")
        for r in R: a(f"v_mul_f32 {v(G+r)}, {v(G+r)}, {v(ACC+r)}")
    ep_stamp("g")
    a(f"s_add_u32 {s(sN)}, {s(sN)}, 1")
    a(f"s_branch {pfx}_loop")
    a(f"{pfx}_eu:")
    a(f"s_cmp_eq_u32 {s(sN)}, 5")
    a(f"s_cbranch_scc1 {pfx}_heavy")
    upv = []; ups = []
    for p in range(4):
        pv = [f"v_mul_f32 {v(ACC+r)}, {v(ACC+r)}, {v(G+r)}" for r in range(8 * p, 8 * p + 8)]
        pv += [f"v_cvt_pk_bf16_f32 {v(G+8*p+j)}, {v(ACC+8*p+2*j)}, {v(ACC+8*p+2*j+1)}" for j in range(4)]
        ps = f"buffer_store_dwordx4 {v(G+8*p,4)}, {v(vST)}, {s(S_WS,4)}, {s(sT3 if p >> 1 else sSO)} offen offset:{(p&1)*1024}{SC1}"
        a.ext(pv); a(ps); upv += pv; ups.append(ps)
    ep_stamp("u")
    a(f"s_add_u32 {s(sN)}, {s(sN)}, 1")
    a(f"s_cmp_lt_u32 {s(sN)}, {s(sNT)}")
    a(f"s_cbranch_scc1 {pfx}_loop")
    a(f"s_cmp_lg_u32 {s(sNQ)}, 0")
    a(f"s_cbranch_scc1 {pfx}_nc2_ok")
    a(f"v_mov_b32 {v(V_NONCE)}, 0")
    a("s_nop 0")
    nonce_check(a, f"{pfx}_nc2", V_NONCE, sT0, sT1)
    a(f"s_lshl_b32 {s(sF)}, {s(sRB)}, 4")
    a(f"s_add_u32 {s(sF)}, {s(sF)}, {s(sCG)}")
    a(f"s_lshl_b32 {s(sF)}, {s(sF)}, 6")
    a(f"s_add_u32 {s(sF)}, {s(sF)}, {F2_OFF}")
    a(f"s_sub_u32 {s(sT0)}, {s(sCG)}, 10")
    a(f"s_lshl_b32 {s(sPUB)}, {s(sT0)}, 6")
    a(f"s_add_u32 {s(sPUB)}, {s(sPUB)}, {s(sTT)}")
    a(f"s_lshl_b32 {s(sT0)}, {s(sT0)}, 3")
    a(f"s_lshr_b32 {s(sT1)}, {s(sRB)}, 1")
    a(f"s_add_u32 {s(sT0)}, {s(sT0)}, {s(sT1)}")
    a(f"s_and_b32 {s(sT1)}, {s(sRB)}, 1")
    a(f"s_lshl_b32 {s(sT1)}, {s(sT1)}, 6")
    a(f"s_add_u32 {s(sT0)}, {s(sT0)}, {s(sT1)}")
    a(f"s_lshl_b32 {s(sT0)}, {s(sT0)}, 6")
    a(f"s_add_u32 {s(sT3)}, {s(sT0)}, {F4_OFF}")
    a("s_waitcnt vmcnt(4) lgkmcnt(0)")
    a("s_barrier")
    gen_relayout(a, pfx, sPUB, vL, (58, 59, 60, 61, 96, 97, 98, 101, 47, 48, 49), sF, sT3)
    g2_start(a, "g2l", [], [])
    a(f"s_branch {pfx}_g1end")
    a(f"{pfx}_heavy:")
    a(f"s_add_u32 {s(sF)}, {s(sF)}, {F2B_OFF - F2_OFF}")
    g2_start(a, "g2h", upv, ups)
    a(f"{pfx}_g1end:")

def gen_att(a, pfx, idreg):
    vL, vK1, vK2, vV0, vV1, vQ1, vQ2 = 1, 2, 3, 4, 5, 20, 21
    P, S, O, Q, KV = 24, 32, 64, 128, 152
    sHD, sQB, sKH, sQH, sK1, sK2, sV, sG, sIT = 41, 42, 43, 44, 45, 46, 47, 48, 49
    sK1b, sK2b, sVb = 50, 51, 52
    sT0, sT1, sT2, sT3 = 54, 55, 56, 57
    sVM = 58
    sQ = 96
    sLB, sDK, sDV, sG4 = 53, 60, 61, 100
    vLin, vLK1, vLK2, vLV, vMB, vMI, vM = 208, 209, 210, 211, 212, 213, 214
    vXW, vXR, vOM, vOL = 215, 216, 217, 218
    sOM, sOL, sF3 = 28, 30, 31
    a(f"v_and_b32 {v(vL)}, 63, v0")
    a(f"v_lshrrev_b32 v6, 6, v0")
    a(f"s_and_b32 {s(sT0)}, {s(idreg)}, 7")
    a(f"v_readfirstlane_b32 {s(S_WV)}, v6")
    a(f"s_lshl_b32 {s(sHD)}, {s(sT0)}, 2")
    a(f"s_bfe_u32 {s(sT1)}, {s(idreg)}, {3 | (2<<16)}")
    a(f"s_add_u32 {s(sHD)}, {s(sHD)}, {s(sT1)}")
    if Cfg.cpf == 1:
        a(f"s_getpc_b64 {s(sT0,2)}")
        a(f"{pfx}_pc:")
        a(f"s_sub_u32 {s(sT0)}, {s(sT0)}, {pfx}_pc-{NAME}_kernel")
        a(f"s_subb_u32 {s(sT1)}, {s(sT1)}, 0")
        a(f"s_bfe_u32 {s(sT2)}, {s(idreg)}, {3 | (5<<16)}")
        a(f"s_lshl_b32 {s(sT2)}, {s(sT2)}, 2")
        a(f"s_add_u32 {s(sT2)}, {s(sT2)}, {s(S_WV)}")
        a(f"s_lshl_b32 {s(sT2)}, {s(sT2)}, 8")
        a(f"s_cmp_ge_u32 {s(sT2)}, {NAME}_kernel_end-{NAME}_kernel-256")
        a(f"s_cbranch_scc1 {pfx}_nopf")
        a(f"v_lshl_add_u32 v12, {v(vL)}, 2, {s(sT2)}")
        a(f"global_load_dword v13, v12, {s(sT0,2)}")
        a(f"{pfx}_nopf:")

    a(f"s_bfe_u32 {s(sQB)}, {s(idreg)}, {5 | (3<<16)}")
    a(f"s_and_b32 {s(sQH)}, {s(S_WV)}, 1")
    a(f"s_lshr_b32 {s(sKH)}, {s(S_WV)}, 1")
    a(f"s_lshr_b32 {s(sT0)}, {s(sHD)}, 1")
    a(f"s_mul_i32 {s(sT0)}, {s(sT0)}, 5")
    a(f"s_and_b32 {s(sT1)}, {s(sHD)}, 1")
    a(f"s_mul_i32 {s(sT2)}, {s(sT1)}, 3")
    a(f"s_add_u32 {s(sT2)}, {s(sT2)}, {s(sT0)}")
    a(f"s_lshl_b32 {s(sK1b)}, {s(sT2)}, 15")
    a(f"s_add_u32 {s(sT0)}, {s(sT0)}, 2")
    a(f"s_lshl_b32 {s(sK2b)}, {s(sT0)}, 15")
    a(f"s_lshl_b32 {s(sT1)}, {s(sT1)}, 8")
    a(f"s_add_u32 {s(sK2b)}, {s(sK2b)}, {s(sT1)}")
    a(f"v_and_b32 v6, 31, {v(vL)}")
    a(f"v_lshrrev_b32 v7, 5, {v(vL)}")
    a(f"v_lshlrev_b32 {v(vQ2)}, 4, v6")
    a(f"v_lshl_add_u32 {v(vQ1)}, v7, 15, {v(vQ2)}")
    a(f"v_and_b32 {v(vK2)}, 7, v6")
    a(f"v_bfe_u32 v8, v6, 3, 1")
    a(f"v_lshl_add_u32 {v(vK2)}, v8, 4, {v(vK2)}")
    a(f"v_lshrrev_b32 v8, 4, v6")
    a(f"v_lshl_add_u32 {v(vK2)}, v8, 3, {v(vK2)}")
    a(f"v_lshlrev_b32 {v(vK2)}, 4, {v(vK2)}")
    a(f"v_lshl_add_u32 {v(vK1)}, v7, 15, {v(vK2)}")
    a(f"v_mul_u32_u24 {v(vV0)}, 320, v7")
    a(f"v_add_u32 {v(vV0)}, {v(vV0)}, {v(vQ2)}")
    for r in (vQ2, vK2):
        a(f"v_lshrrev_b32 v8, 8, {v(r)}")
        a(f"v_and_b32 {v(r)}, 0xff, {v(r)}")
        a(f"v_lshl_add_u32 {v(r)}, v8, 3, {v(r)}")
    a(f"v_add_u32 {v(vV1)}, 640, {v(vV0)}")
    a(f"s_mov_b32 {s(sVM)}, 0xfffff")
    a(f"s_mov_b32 {s(sVM+1)}, 0xfffff")
    a(f"v_cmp_eq_u32 vcc, 20, v6")
    a(f"v_mov_b32 v8, 0x3f803f80")
    a("s_nop 0")
    a(f"v_cndmask_b32 v10, 0, v8, vcc")
    for u in range(4):
        for r in range(4, 12): a(f"v_mov_b32 {v(KV+14*u+r)}, v10")
    for q in range(4):
        a(f"v_mov_b32 {v(Q+6*q+4)}, 0"); a(f"v_mov_b32 {v(Q+6*q+5)}, 0")
    for r in range(64): a(f"v_mov_b32 {v(O+r)}, 0")
    for r in range(8): a(f"v_mov_b32 {v(P+r)}, 0")
    a("s_waitcnt lgkmcnt(0)")
    srd(a, S_WS, P_WS, WS_BYTES)
    if Cfg.fused:
        a(f"v_mov_b32 {v(V_NONCE)}, 0")
        a("s_nop 0")
        nonce_check(a, f"{pfx}_nc", 12, sT0, sT1)
        if Cfg.wpf:
            a(f"s_and_b32 {s(sT0)}, {s(idreg)}, 255")
            a(f"s_lshl_b32 {s(sT0)}, {s(sT0)}, 2")
            a(f"s_add_u32 {s(sT0)}, {s(sT0)}, {s(S_WV)}")
            srd(a, S_B, P_WD, 1728 * 1280)
            srd(a, S_C, P_WO, 640 * 1280)
            a(f"s_mul_i32 {s(sT1)}, {s(sT0)}, {17*128}")
            a(f"s_mul_i32 {s(sT2)}, {s(sT0)}, {7*128}")
            a(f"v_lshlrev_b32 v12, 7, {v(vL)}")
            a("s_mov_b64 exec, 0x1ffff")
            a(f"buffer_load_dword v13, v12, {s(S_B,4)}, {s(sT1)} offen")
            a("s_mov_b64 exec, 0x7f")
            a(f"buffer_load_dword v14, v12, {s(S_C,4)}, {s(sT2)} offen")
            a("s_mov_b64 exec, -1")
            a("s_waitcnt vmcnt(0)")
        pass
    a(f"s_lshl_b32 {s(sT0)}, {s(sQB)}, 12")
    a(f"s_lshl_b32 {s(sT1)}, {s(sQH)}, 11")
    a(f"s_add_u32 {s(sT0)}, {s(sT0)}, {s(sT1)}")
    a(f"s_lshl_b32 {s(sT1)}, {s(sKH)}, 10")
    a(f"s_add_u32 {s(sT3)}, {s(sT0)}, {s(sT1)}")
    a(f"s_xor_b32 {s(sT2)}, {s(sT3)}, 1024")
    a(f"s_add_u32 {s(sQ)}, {s(sT2)}, {s(sK1b)}")
    a(f"s_add_u32 {s(sQ+1)}, {s(sT3)}, {s(sK1b)}")
    a(f"s_add_u32 {s(sQ+2)}, {s(sT2)}, {s(sK2b)}")
    a(f"s_add_u32 {s(sQ+3)}, {s(sT3)}, {s(sK2b)}")
    a(f"s_lshl_b32 {s(sT0)}, {s(sKH)}, 14")
    a(f"s_add_u32 {s(sT0)}, {s(sT0)}, {80*32768}")
    a(f"s_add_u32 {s(sK1b)}, {s(sK1b)}, {s(sT0)}")
    a(f"s_add_u32 {s(sK2b)}, {s(sK2b)}, {s(sT0)}")
    a(f"s_mul_i32 {s(sVb)}, {s(sHD)}, 81920")
    a(f"s_mul_i32 {s(sT0)}, {s(sKH)}, 40960")
    a(f"s_add_u32 {s(sVb)}, {s(sVb)}, {s(sT0)}")
    a(f"s_add_u32 {s(sVb)}, {s(sVb)}, {V_OFF}")
    a(f"s_mov_b32 {s(sG)}, {s(sQB)}")
    def setgrp():
        return [f"s_lshl_b32 {s(sT0)}, {s(sG)}, 11", f"s_add_u32 {s(sK1)}, {s(sK1b)}, {s(sT0)}", f"s_add_u32 {s(sK2)}, {s(sK2b)}, {s(sT0)}",
                f"s_mul_i32 {s(sT0)}, {s(sG)}, 5120", f"s_add_u32 {s(sV)}, {s(sVb)}, {s(sT0)}"]
    a.ext(setgrp())
    a(f"s_mov_b32 {s(sIT)}, 4")
    a(f"s_mul_i32 {s(sT0)}, {s(sKH)}, 10240")
    a(f"s_mul_i32 {s(sLB)}, {s(sQH)}, 5120")
    a(f"s_add_u32 {s(sLB)}, {s(sLB)}, {s(sT0)}")
    a(f"v_lshlrev_b32 {v(vLin)}, 4, {v(vL)}")
    a(f"v_add_u32 {v(vLK1)}, {s(sT0)}, {v(vLin)}")
    a(f"s_add_u32 {s(sT1)}, {s(sT0)}, 2048")
    a(f"v_add_u32 {v(vLV)}, {s(sT1)}, {v(vV0)}")
    a(f"s_add_u32 {s(sT1)}, {s(sT0)}, 4608")
    a(f"v_add_u32 {v(vLK2)}, {s(sT1)}, {v(vK2)}")
    a(f"s_lshl_b32 {s(sT0)}, {s(sQH)}, 10")
    a(f"s_add_u32 {s(sDK)}, {s(sK1b)}, {s(sT0)}")
    a(f"s_add_u32 {s(sT0)}, {s(sK2b)}, {s(sT0)}")
    a(f"s_mul_i32 {s(sT1)}, {s(sQH)}, 2560")
    a(f"s_add_u32 {s(sDV)}, {s(sVb)}, {s(sT1)}")
    a(f"s_add_u32 {s(sT1)}, {s(sDV)}, 2048")
    a(f"v_add_u32 {v(vMB)}, {s(sT1)}, {v(vLin)}")
    a(f"v_mov_b32 {v(vMI)}, 5120")
    a(f"v_bfe_u32 v8, {v(vL)}, 4, 1")
    a(f"v_and_b32 v9, 15, {v(vL)}")
    a(f"v_lshlrev_b32 v9, 4, v9")
    a(f"v_lshl_add_u32 v8, v8, 9, v9")
    a("s_mov_b32 exec_lo, 0")
    a(f"v_add_u32 {v(vMB)}, {s(sT0)}, v8")
    a(f"v_mov_b32 {v(vMI)}, 2048")
    a("s_mov_b32 exec_lo, -1")
    a(f"s_mul_i32 {s(sT0)}, {s(S_WV)}, 6144")
    a(f"s_xor_b32 {s(sT1)}, {s(S_WV)}, 2")
    a(f"s_mul_i32 {s(sT1)}, {s(sT1)}, 6144")
    a(f"v_add_u32 {v(vXW)}, {s(sT0)}, {v(vLin)}")
    a(f"v_add_u32 {v(vXR)}, {s(sT1)}, {v(vLin)}")
    a(f"v_bfe_u32 v8, {v(vL)}, 4, 1")
    a(f"v_lshl_add_u32 {v(vOM)}, v8, 14, v9")
    a(f"v_lshl_add_u32 {v(vOM)}, v7, 8, {v(vOM)}")
    a(f"s_lshl_b32 {s(sT0)}, {s(sQB)}, 2")
    a(f"s_lshl_b32 {s(sT1)}, {s(sQH)}, 1")
    a(f"s_add_u32 {s(sT0)}, {s(sT0)}, {s(sT1)}")
    a(f"s_add_u32 {s(sT0)}, {s(sT0)}, {s(sKH)}")
    a(f"s_lshl_b32 {s(sF3)}, {s(sT0)}, 5")
    a(f"s_add_u32 {s(sF3)}, {s(sF3)}, {s(sHD)}")
    a(f"s_lshl_b32 {s(sF3)}, {s(sF3)}, 6")
    a(f"s_add_u32 {s(sF3)}, {s(sF3)}, {F3_OFF}")
    a(f"s_lshl_b32 {s(sT1)}, {s(sHD)}, 9")
    a(f"s_lshl_b32 {s(sT2)}, {s(sT0)}, 16")
    a(f"s_add_u32 {s(sOM)}, {s(sT1)}, {s(sT2)}")
    a(f"s_add_u32 {s(sOM)}, {s(sOM)}, {O_OFF}")
    a(f"s_add_u32 {s(sOM+1)}, {s(sOM)}, 32768")
    a(f"s_lshl_b32 {s(sT2)}, {s(sT0)}, 14")
    a(f"s_add_u32 {s(sOL)}, {s(sT1)}, {s(sT2)}")
    a(f"s_add_u32 {s(sOL)}, {s(sOL)}, {OL_OFF}")
    if Cfg.fused:
        a(f"s_mul_i32 {s(sT0)}, {s(sHD)}, 20")
        a(f"s_add_u32 {s(sT1)}, {s(sT0)}, 19")
        a(f"s_lshr_b32 {s(sT0)}, {s(sT0)}, 7")
        a(f"s_lshr_b32 {s(sT1)}, {s(sT1)}, 7")
        a(f"s_sub_u32 {s(sT1)}, {s(sT1)}, {s(sT0)}")
        a(f"v_bfe_u32 v12, {v(vL)}, 3, 1")
        a(f"v_mul_u32_u24 v12, {s(sT1)}, v12")
        a(f"v_add_u32 v12, {s(sT0)}, v12")
        a(f"v_bfe_u32 v13, {v(vL)}, 4, 1")
        a(f"v_mad_u32_u24 v13, v13, 5, 5")
        a(f"s_lshl_b32 {s(sT2)}, {s(sKH)}, 3")
        a(f"v_and_b32 v14, 7, {v(vL)}")
        a(f"v_add_u32 v14, {s(sT2)}, v14")
        a(f"s_lshl_b32 {s(sT2)}, {s(sQB)}, 1")
        a(f"s_add_u32 {s(sT2)}, {s(sT2)}, {s(sQH)}")
        a("s_mov_b32 exec_lo, 0")
        a(f"v_mov_b32 v13, 0")
        a(f"v_mov_b32 v14, {s(sT2)}")
        a("s_mov_b32 exec_lo, -1")
        a(f"v_add_u32 v12, v12, v13")
        a(f"v_lshl_add_u32 v12, v12, 4, v14")
        a(f"v_lshlrev_b32 v12, 6, v12")
        a(f"s_nop 0")
        a(f"v_readlane_b32 {s(sT2)}, v12, 31")
        a(f"s_mov_b32 {s(sT3)}, {F1_OFF}")
        a(f"s_nop 1")
        a(f"s_add_u32 {s(sT2)}, {s(sT2)}, {s(sT3)}")
        stamp(a, "a_ready")
        setprio(a, 3)
        if Cfg.p0s >= 0: poll(a, f"{pfx}_p0", None, sT2, 13, sT0, Cfg.p0s)
        poll(a, f"{pfx}_p1", 12, sT3, 13, sT0, Cfg.p1s)
        stamp(a, "a_go")
    for q in range(4):
        a(f"buffer_load_dwordx4 {v(Q+6*q,4)}, {v(vQ1)}, {s(S_WS,4)}, {s(sQ+(q>>1))} offen offset:{(q&1)*512}{SC1}")
    a("s_mov_b32 exec_hi, 0")
    for q in range(4):
        a(f"buffer_load_dwordx2 {v(Q+6*q+4,2)}, {v(vQ2)}, {s(S_WS,4)}, {s(sQ+2+(q>>1))} offen offset:{(q&1)*512}{SC1}")
    a("s_mov_b32 exec_hi, -1")
    def kvload(u):
        b = KV + 14 * u
        return [f"buffer_load_dwordx4 {v(b,4)}, {v(vK1)}, {s(S_WS,4)}, {s(sK1)} offen offset:{u*512}{SC1}",
                f"buffer_load_dwordx2 {v(b+12,2)}, {v(vK2)}, {s(S_WS,4)}, {s(sK2)} offen offset:{u*512}{SC1}",
                f"s_mov_b64 exec, {s(sVM,2)}",
                f"buffer_load_dwordx4 {v(b+4,4)}, {v(vV0)}, {s(S_WS,4)}, {s(sV)} offen offset:{u*1280}{SC1}",
                f"buffer_load_dwordx4 {v(b+8,4)}, {v(vV1)}, {s(S_WS,4)}, {s(sV)} offen offset:{u*1280}{SC1}",
                "s_mov_b64 exec, -1"]
    for u in range(3): a.ext(kvload(u))
    setprio(a, Cfg.prioA)
    stamp(a, "issued")
    a("s_waitcnt vmcnt(8)")
    stamp(a, "q_kv0")
    a(mf32(S, KV, Q, "0"))
    a(mf8(S, KV + 12, Q + 4))
    a("s_nop 11")
    def kvread(u, nxt):
        b = KV + 14 * u; o = nxt * 20480 + (u >> 1) * 5120; sub = u & 1
        return [[f"ds_read_b128 {v(b,4)}, {v(vLK1)} offset:{o+sub*1024}",
                 f"ds_read_b64 {v(b+12,2)}, {v(vLK2)} offset:{o+sub*256}"],
                [f"s_mov_b64 exec, {s(sVM,2)}",
                 f"ds_read_b128 {v(b+4,4)}, {v(vLV)} offset:{o+sub*1280}",
                 f"ds_read_b128 {v(b+8,4)}, {v(vLV)} offset:{o+sub*1280+640}",
                 "s_mov_b64 exec, -1"]]
    def loop(tag, lds):
        a(".p2align 3")
        a(f"{pfx}_loop{tag}:")
        ndma = [0, 0, 0, 0]
        for u in range(4):
            b = KV + 14 * u; bn = KV + 14 * ((u + 1) & 3); bp = KV + 14 * ((u - 1) & 3)
            items = []
            if not lds:
                if u == 0: items = [f"s_xor_b32 {s(sG4)}, {s(sG)}, 4", f"s_add_u32 {s(sG)}, {s(sG)}, 1", f"s_and_b32 {s(sG)}, {s(sG)}, 7"] + setgrp()
                dm = lambda va, so, off: f"buffer_load_dwordx4 {v(va)}, {s(S_WS,4)}, {so} offen offset:{off} sc1 lds"
                if u == 1: items = [f"s_lshl_b32 {s(sT0)}, {s(sG4)}, 11", f"s_mov_b32 m0, {s(sLB)}", [f"s_add_u32 {s(sT0)}, {s(sT0)}, {s(sDK)}", dm(vK1, s(sT0), 0)],
                                    f"s_add_u32 m0, {s(sLB)}, 512", [f"s_mul_i32 {s(sT1)}, {s(sG4)}, 5120", dm(vK1, s(sT0), 512)],
                                    f"s_add_u32 m0, {s(sLB)}, 2048"]
                if u == 2: items = [[f"s_add_u32 {s(sT1)}, {s(sT1)}, {s(sDV)}", dm(vLin, s(sT1), 0)],
                                    [f"v_mad_u32_u24 {v(vM)}, {v(vMI)}, {s(sG4)}, {v(vMB)}"], [dm(vLin, s(sT1), 1024)],
                                    f"s_add_u32 m0, {s(sLB)}, 4096", [f"s_add_u32 {s(sLB)}, {s(sLB)}, 20480", dm(vM, "0", 0)]]
            if lds and u == 1:
                items = [f"s_cmp_eq_u32 {s(sIT)}, 1", [f"s_cbranch_scc1 {pfx}_mb", f"{pfx}_mbr:"]]
            if u == 3:
                items = [f"s_sub_u32 {s(sIT)}, {s(sIT)}, 1", f"s_cmp_lg_u32 {s(sIT)}, 0"]
                if lds: items += [f"v_add_u32 {v(r)}, 0x5000, {v(r)}" for r in (vLK1, vLK2, vLV)]
            ld = kvread((u + 3) & 3, u > 0) if lds else [kvload((u + 3) & 3)[:2], kvload((u + 3) & 3)[2:]]
            if Cfg.x_nokv: ld = [[], []]
            vmw = {0: 8, 1: 10, 2: 13, 3: 11}[u]
            for q in range(4):
                Sc = S + 16 * (q & 1); Sn = S + 16 * ((q + 1) & 1)
                qn, qp = (q + 1) & 3, (q - 1) & 3
                kn = b if q < 3 else bn
                kp = b if q > 0 else bp
                ex = [f"v_exp_f32 {v(Sc+i)}, {v(Sc+i)}" for i in range(16)]
                cv = [f"v_cvt_pk_bf16_f32 {v(P+i)}, {v(Sc+2*i)}, {v(Sc+2*i+1)}" for i in range(8)]
                def free():
                    if items:
                        it = items.pop(0)
                        a.ext(it if isinstance(it, list) else [it])
                a(mf32(Sn, kn, Q + 6 * qn, "0"))
                if q == 0: a.ext(ld[0])
                else: free()
                a.ext(ex[0:4])
                a(mf32(O + 16 * qp, kp + 8, P + 4))
                if q == 0: a.ext(ld[1])
                else: free()
                a.ext(ex[4:8] + cv[0:2])
                a(mf8(Sn, kn + 12, Q + 6 * qn + 4))
                a.ext(ex[8:9] + cv[2:4] + ex[9:12])
                a(mf32(O + 16 * q, b + 4, P))
                if q == 2:
                    assert not any("lds" in str(it) for it in items)
                    a("s_waitcnt vmcnt(0) lgkmcnt(8)" if lds else f"s_waitcnt vmcnt({vmw})")
                else: free()
                a.ext(ex[12:16] + cv[4:8])
            assert not items
        a(f"s_cbranch_scc1 {pfx}_loop{tag}")
    loop("a", False)
    a(f"s_mov_b32 {s(sIT)}, 4")
    a("s_waitcnt vmcnt(4)")
    a("s_barrier")
    stamp(a, "half")
    a(f"s_branch {pfx}_loopb")
    a(f"{pfx}_mb:")
    a("s_barrier")
    a(f"s_branch {pfx}_mbr")
    loop("b", True)
    for j in range(2): a(f"ds_write_b128 {v(vXW)}, {v(O+4*j,4)} offset:{j*1024}")
    a(mf32(O + 48, KV + 14 * 3 + 8, P + 4))
    stamp(a, "loopdone")
    a(f"ds_write_b128 {v(vXW)}, {v(O+8,4)} offset:2048")
    for j in range(3): a(f"ds_write_b128 {v(vXW)}, {v(O+16+4*j,4)} offset:{3072+j*1024}")
    a("s_waitcnt lgkmcnt(0)")
    a("s_barrier")
    R = S
    for t in range(2):
        for j in (2, 0, 1): a(f"ds_read_b128 {v(R+16*t+4*j,4)}, {v(vXR)} offset:{t*3072+j*1024}")
    for t in range(2):
        o = O + 32 + 16 * t; r = R + 16 * t; d = (14, P)[t]
        pa = lambda i: f"v_pk_add_f32 {v(o+i,2)}, {v(o+i,2)}, {v(r+i,2)}"
        a(f"s_waitcnt lgkmcnt({5-3*t})")
        a(f"v_add_f32 v12, {v(o+8)}, {v(r+8)}")
        a(f"v_add_f32 v13, {v(o+8)}, {v(r+8)}")
        a(pa(8)); a(pa(10))
        a("v_permlane32_swap_b32 v12, v13")
        a(f"s_waitcnt lgkmcnt({3-3*t})")
        a(f"v_rcp_f32 v12, v13")
        for i in range(0, 8, 2): a(pa(i))
        for i in range(0, 12, 2): a(f"v_pk_mul_f32 {v(o+i,2)}, {v(o+i,2)}, v[12:13] op_sel_hi:[1,0]")
        for j in range(6): a(f"v_cvt_pk_bf16_f32 {v(d+j if j < 4 else 18+2*t+j-4)}, {v(o+2*j)}, {v(o+2*j+1)}")
        a(f"buffer_store_dwordx4 {v(d,4)}, {v(vOM)}, {s(S_WS,4)}, {s(sOM+t)} offen{SC1}")
    a("s_mov_b32 exec_hi, 0")
    a(f"buffer_store_dwordx4 v[18:21], {v(vLin)}, {s(S_WS,4)}, {s(sOL)} offen{SC1}")
    stamp(a, "o_stored")
    a("s_waitcnt vmcnt(0)")
    publish(a, sF3)
    stamp(a, "o_pub")

def gen_relayout(a, pfx, idreg, vL, sT, sFH, sFR):
    sK, sC, sPA, sPB, sPC, sPD, sB, sM, sD0, sD1, sF1 = sT
    SW = S_C
    T = 160
    IR, CH = T + 8, T + 13
    a(f"s_mov_b32 {s(SW+3)}, 0x00020000")
    for i in range(5):
        a(f"v_add_u32 {v(T)}, {64*i}, {v(vL)}")
        a(f"v_mul_u32_u24 {v(IR+i)}, 6554, {v(T)}")
        a(f"v_lshrrev_b32 {v(IR+i)}, 16, {v(IR+i)}")
        a(f"v_mul_u32_u24 {v(CH+i)}, 10, {v(IR+i)}")
        a(f"v_sub_u32 {v(CH+i)}, {v(T)}, {v(CH+i)}")
        a(f"v_lshlrev_b32 {v(CH+i)}, 4, {v(CH+i)}")
    a(f"s_mul_i32 {s(sM)}, {s(S_WV)}, 5120")
    a(f"s_mov_b32 {s(sF1)}, 0")
    a(f"{pfx}_rl_loop:")
    a(f"s_and_b32 {s(sC)}, {s(idreg)}, 7")
    a(f"s_lshr_b32 {s(sK)}, {s(idreg)}, 3")
    a(f"s_cmp_lt_u32 {s(sK)}, 54")
    a(f"s_cselect_b32 {s(SW)}, {s(P_WD)}, {s(P_WO)}")
    a(f"s_cselect_b32 {s(SW+1)}, {s(P_WD+1)}, {s(P_WO+1)}")
    a(f"s_mov_b32 {s(sB)}, {640*1280}")
    a(f"s_cselect_b32 {s(SW+2)}, {1728*1280}, {s(sB)}")
    a(f"s_cselect_b32 {s(sPA)}, 8, 20")
    a(f"s_cselect_b32 {s(sPC)}, 16, 8")
    a(f"s_cselect_b32 {s(sPD)}, 0, 54")
    a(f"s_cselect_b32 {s(sD1)}, 32, 40")
    a(f"s_cmp_ge_u32 {s(sK)}, 70")
    a(f"s_cselect_b32 {s(sPA)}, 80, {s(sPA)}")
    a(f"s_cselect_b32 {s(sPB)}, 40, 4")
    a(f"s_cselect_b32 {s(sPC)}, 20, {s(sPC)}")
    a(f"s_cselect_b32 {s(sPD)}, 70, {s(sPD)}")
    a(f"s_cselect_b32 {s(sD1)}, 160, {s(sD1)}")
    a(f"s_cselect_b32 {s(sB)}, 16, 0")
    a(f"s_sub_u32 {s(sPD)}, {s(sK)}, {s(sPD)}")
    a(f"s_mul_i32 {s(sPD)}, {s(sPD)}, {s(sD1)}")
    a(f"s_add_u32 {s(sB)}, {s(sB)}, {s(sPD)}")
    a(f"s_mul_i32 {s(sB)}, {s(sB)}, 1280")
    a(f"s_mul_i32 {s(sPD)}, {s(sC)}, 160")
    a(f"s_add_u32 {s(sB)}, {s(sB)}, {s(sPD)}")
    a(f"s_movk_i32 {s(sPD)}, 1280")
    for i in range(5):
        r, t = T, T + 1
        a(f"v_and_b32 {v(r)}, 3, {v(IR+i)}")
        a(f"v_lshrrev_b32 {v(t)}, 4, {v(IR+i)}")
        a(f"v_mad_u32_u24 {v(r)}, {v(t)}, {s(sPA)}, {v(r)}")
        a(f"v_bfe_u32 {v(t)}, {v(IR+i)}, 3, 1")
        a(f"v_mad_u32_u24 {v(r)}, {v(t)}, {s(sPB)}, {v(r)}")
        a(f"v_bfe_u32 {v(t)}, {v(IR+i)}, 2, 1")
        a(f"v_mad_u32_u24 {v(r)}, {v(t)}, {s(sPC)}, {v(r)}")
        a(f"s_add_u32 m0, {s(sM)}, {i*1024}")
        a(f"v_mad_u32_u24 {v(r)}, {v(r)}, {s(sPD)}, {v(CH+i)}")
        if not Cfg.x_norl & 1: a(f"buffer_load_dwordx4 {v(r)}, {s(SW,4)}, {s(sB)} offen lds")
    a(f"s_mul_i32 {s(sD1)}, {s(sC)}, 74")
    a(f"s_add_u32 {s(sD1)}, {s(sD1)}, {s(sK)}")
    a(f"s_mul_i32 {s(sD1)}, {s(sD1)}, 5120")
    a(f"s_add_u32 {s(sD1)}, {s(sD1)}, {WR_OFF}")
    a(f"s_cmp_ge_u32 {s(idreg)}, 384")
    a(f"s_cbranch_scc1 {pfx}_rl_two")
    a(f"s_mov_b32 {s(sD0)}, {s(sD1)}")
    a(f"s_add_u32 {s(idreg)}, {s(idreg)}, 384")
    a(f"s_add_u32 {s(sM)}, {s(sM)}, 20480")
    a(f"s_cmp_lt_u32 {s(idreg)}, 592")
    a(f"s_cbranch_scc1 {pfx}_rl_loop")
    a(f"s_branch {pfx}_rl_one")
    a(f"{pfx}_rl_two:")
    a(f"s_mov_b32 {s(sF1)}, 1")
    a(f"{pfx}_rl_one:")
    a(f"s_mul_i32 {s(sM)}, {s(S_WV)}, 5120")
    a(f"v_lshrrev_b32 {v(T)}, 4, {v(vL)}")
    a(f"v_bfe_u32 {v(T+1)}, {v(vL)}, 2, 2")
    a(f"v_lshl_add_u32 {v(T)}, {v(T)}, 3, {v(T+1)}")
    a(f"v_mul_u32_u24 {v(T)}, 160, {v(T)}")
    a(f"v_and_b32 {v(T+1)}, 3, {v(vL)}")
    a(f"v_mad_u32_u24 {v(T)}, {v(T+1)}, 40, {v(T)}")
    a(f"v_add_u32 {v(T)}, {s(sM)}, {v(T)}")
    a(f"v_lshlrev_b32 {v(T+1)}, 4, {v(vL)}")
    a(f"v_add_u32 {v(T+2)}, 4096, {v(T+1)}")
    a("s_waitcnt vmcnt(0)")
    a("s_barrier")
    a(f"s_cmp_lg_u32 {s(S_WV)}, 0")
    a(f"s_cbranch_scc1 {pfx}_rl_np")
    publish(a, sFH)
    a(f"{pfx}_rl_np:")
    pass
    for z in range(2):
        D = T + 20 + 20 * z
        if z:
            a(f"s_cmp_eq_u32 {s(sF1)}, 0")
            a(f"s_cbranch_scc1 {pfx}_rl_fin")
        for mt in range(5):
            for u in range(2):
                a(f"ds_read_b64_tr_b16 {v(D+4*mt+2*u,2)}, {v(T)} offset:{z*20480+u*640+8*mt}")
        a("s_waitcnt lgkmcnt(0)")
        for mt in range(5 if not Cfg.x_norl & 2 else 0):
            a(f"buffer_store_dwordx4 {v(D+4*mt,4)}, {v(T+1 if mt < 4 else T+2)}, {s(S_WS,4)}, {s(sD1 if z else sD0)} offen offset:{(mt&3)*1024} sc1")
    a(f"{pfx}_rl_fin:")
    a("s_waitcnt vmcnt(0)")
    a("s_barrier")
    a(f"s_cmp_lg_u32 {s(S_WV)}, 0")
    a(f"s_cbranch_scc1 {pfx}_rl_done")
    publish(a, sFR)
    stamp(a, "rl_pub")
    a(f"{pfx}_rl_done:")

class G2:
    vL, vF, vF2, vW4, vXO = 1, 2, 3, 4, 5
    vBA, vBR = 6, 10
    vFA, vFR = 7, 8
    XR, AS, AD, HF = 12, 22, 96, 116
    WFS = (180, 200)
    WRS = (200, 220, 48, 68)
    sRT, sC8, sM, sW, sH, sIT, sC0, sC1, sPB, sFB = 41, 42, 43, 44, 45, 46, 47, 48, 49, 50
    sT0, sT1, sT2, sT3 = 54, 55, 56, 57
    @staticmethod
    def OF(k): return 116 + 4 * k if k < 16 else 240 + 4 * (k - 16)
    @staticmethod
    def wdma(slot):
        g = G2
        o = [[f"s_add_u32 m0, {s(g.sM)}, {slot*20480}", "s_nop 0"]]
        for i in range(4): o.append([f"buffer_load_dwordx4 {v(g.vF)}, {s(S_WS,4)}, {s(g.sW)} offen offset:{i*1024} sc1 lds"])
        o[0] += o.pop(1)
        o.append([f"s_add_u32 m0, {s(g.sM)}, {slot*20480+4096}", "s_nop 0",
                  f"buffer_load_dwordx4 {v(g.vW4)}, {s(S_WS,4)}, {s(g.sW)} offen sc1 lds", f"s_add_u32 {s(g.sW)}, {s(g.sW)}, 20480"])
        return o
    @staticmethod
    def hload(st):
        g = G2
        o = [[f"buffer_load_dwordx4 {v(g.HF+16*st+4*j,4)}, {v(g.vF)}, {s(S_WS,4)}, {s(g.sH)} offen offset:{j*1024} sc1"] for j in range(4)]
        o[-1].append(f"s_add_u32 {s(g.sH)}, {s(g.sH)}, 4096")
        return o

def g2_start(a, pfx, valu, stores):
    g = G2
    heavy = bool(valu)
    vL, sT0, sT1, sT2 = g.vL, g.sT0, g.sT1, g.sT2
    a(f"s_lshr_b32 {s(g.sC8)}, s2, 5")
    a(f"s_and_b32 {s(sT1)}, s2, 7")
    a(f"s_lshl_b32 {s(g.sRT)}, {s(sT1)}, 2")
    a(f"s_bfe_u32 {s(sT1)}, s2, {3 | (2<<16)}")
    a(f"s_add_u32 {s(g.sRT)}, {s(g.sRT)}, {s(sT1)}")
    a(f"s_lshl_b32 {s(g.sRT)}, {s(g.sRT)}, 2")
    a(f"s_add_u32 {s(g.sRT)}, {s(g.sRT)}, {s(S_WV)}")
    a(f"s_mul_i32 {s(g.sW)}, {s(g.sC8)}, {74*5120}")
    a(f"s_mul_i32 {s(g.sM)}, {s(S_WV)}, 5120")
    a(f"s_add_u32 {s(g.sW)}, {s(g.sW)}, {s(g.sM)}")
    a(f"s_add_u32 {s(g.sW)}, {s(g.sW)}, {WR_OFF}")
    a(f"s_mul_i32 {s(g.sH)}, {s(g.sRT)}, 55296")
    a(f"s_add_u32 {s(g.sH)}, {s(g.sH)}, {H_OFF}")
    a(f"v_lshlrev_b32 {v(g.vF)}, 4, {v(vL)}")
    a(f"v_add_u32 {v(g.vW4)}, 4096, {v(g.vF)}")
    a(f"s_mov_b32 {s(sT0)}, 0")
    a(f"s_cmp_eq_u32 {s(S_WV)}, 0")
    a(f"s_cselect_b32 {s(g.sC0)}, 0, -1")
    a(f"s_cselect_b32 {s(g.sC1)}, 1, -1")
    a(f"s_cselect_b32 {s(g.sPB)}, {0 if heavy else -1}, -1")
    a("s_waitcnt vmcnt(0) lgkmcnt(0)")
    a(f"s_cbranch_scc0 {pfx}_p4_ok")
    a(f"v_cmp_ne_u32 vcc, {v(g.vFR)}, {v(V_NONCE)}")
    a("s_nop 1")
    a(f"s_cbranch_vccz {pfx}_p4_ok")
    poll(a, f"{pfx}_p4", g.vFA, sT0, g.vFR, sT2, Cfg.p4s)
    a("s_barrier")
    stamp(a, "h_go")
    work = list(valu) + [
        f"v_add_u32 {v(g.vF2)}, {3*20480}, {v(g.vF)}",
        f"v_and_b32 {v(g.AD)}, 15, {v(vL)}",
        f"v_mul_u32_u24 {v(g.vXO)}, 1280, {v(g.AD)}",
        f"v_lshrrev_b32 {v(g.AD)}, 4, {v(vL)}",
        f"v_mad_u32_u24 {v(g.vXO)}, {v(g.AD)}, 40, {v(g.vXO)}",
        f"v_min_u32 {v(g.vBA)}, 9, {v(vL)}",
        f"v_lshlrev_b32 {v(g.vBA)}, 6, {v(g.vBA)}"] + [f"v_mov_b32 {v(g.AD+r)}, 0" for r in range(20)]
    groups = g.wdma(0) + g.hload(0) + g.wdma(1) + g.hload(1)
    per = -(-len(work) // len(groups))
    for gr in groups:
        a.ext(gr); a.ext(work[:per]); work = work[per:]
    a.ext(stores)
    a(f"s_lshr_b32 {s(g.sFB)}, {s(g.sRT)}, 3")
    a(f"s_lshl_b32 {s(g.sFB)}, {s(g.sFB)}, 10")
    a(f"s_add_u32 {s(g.sFB)}, {s(g.sFB)}, {F2B_OFF}")

def gen_g2(a, pfx):
    g = G2
    vL, vF, vF2, vW4, vXO, XR, AS, AD, HF, WFS, WRS, OF = g.vL, g.vF, g.vF2, g.vW4, g.vXO, g.XR, g.AS, g.AD, g.HF, g.WFS, g.WRS, g.OF
    sRT, sC8, sM, sW, sH, sIT, sC0, sC1, sPB, sFB = g.sRT, g.sC8, g.sM, g.sW, g.sH, g.sIT, g.sC0, g.sC1, g.sPB, g.sFB
    sT0, sT1, sT2, sT3 = g.sT0, g.sT1, g.sT2, g.sT3
    wdma, hload = g.wdma, g.hload
    WF = WFS[0]; T = 88; U = 48
    SX = S_A
    def emit(gs):
        for x in gs: a.ext(x)
    def wrd(d, slot, ks, mt):
        base, off = (vF2, 0) if slot == 3 else (vF, slot * 20480)
        return f"ds_read_b128 {v(d+4*mt,4)}, {v(base)} offset:{off+ks*5120+mt*1024}"
    a(f"s_mov_b32 {s(sIT)}, 0")
    setprio(a, Cfg.prioD)
    a("s_waitcnt vmcnt(9)")
    a("s_barrier")
    for ks in range(2):
        for mt in range(5): a(wrd(WFS[ks], 0, ks, mt))
    emit(wdma(2)); emit(hload(2)); emit(wdma(3))
    stamp(a, "d_issued")
    a("s_waitcnt lgkmcnt(9)")
    def stage(sl, pend0, vm, after, nks_=4, pre_bar=None, post_bar=None):
        pend = list(pend0)
        for ks in range(nks_):
            nsl, nks = (sl, ks + 2) if ks < 2 else ((sl + 1) & 3, ks - 2)
            d = WFS[ks & 1]
            for mt in range(5):
                a(mf16(AD + 4 * mt, d + 4 * mt, HF + 16 * sl + 4 * ks))
                if ks == 2 and mt == 0:
                    assert not pend
                    a(f"s_waitcnt vmcnt({vm}) lgkmcnt(0)")
                    if pre_bar: a.ext(pre_bar)
                    a("s_barrier")
                    if post_bar: a.ext(post_bar)
                    pend = list(after)
                else:
                    a("s_waitcnt lgkmcnt(8)")
                a(wrd(d, nsl, nks, mt))
                if pend and (5 * ks + mt) % 2 == 0: a.ext(pend.pop(0))
        assert not pend
    a(f"{pfx}_dloop:")
    for sl in range(4):
        p0 = hload((sl - 1) & 3)
        pre = post = None
        if sl == Cfg.chks: p0 = [[f"s_cmp_eq_u32 {s(sIT)}, {s(sC0)}", f"s_cbranch_scc1 {pfx}_c0", f"{pfx}_c0r:"]] + p0
        if sl == 0:
            pre = [f"s_cmp_eq_u32 {s(sIT)}, {s(sC1)}", f"s_cbranch_scc1 {pfx}_c1", f"{pfx}_c1_ok:"]
            post = [f"s_cmp_eq_u32 {s(sIT)}, {s(sPB)}", f"s_cbranch_scc1 {pfx}_pb", f"{pfx}_pbr:"]
        stage(sl, p0, 18, wdma(sl), pre_bar=pre, post_bar=post)
        if sl == 1:
            a(f"s_cmp_eq_u32 {s(sIT)}, 2")
            a(f"s_cbranch_scc1 {pfx}_dtail")
    a(f"s_add_u32 {s(sIT)}, {s(sIT)}, 1")
    a(f"s_branch {pfx}_dloop")
    a(f"{pfx}_pb:")
    publish(a, 100)
    stamp(a, "pub2")
    a(f"s_branch {pfx}_pbr")
    a(f"{pfx}_c0:")
    a(f"buffer_load_dword {v(g.vBR)}, {v(g.vBA)}, {s(S_WS,4)}, {s(sFB)} offen sc1")
    a(f"s_branch {pfx}_c0r")
    a(f"{pfx}_c1:")
    setprio(a, Cfg.prioGv)
    a(f"s_waitcnt vmcnt({4 + 9 * (4 - Cfg.chks)})")
    a(f"v_cmp_ne_u32 vcc, {v(g.vBR)}, {v(V_NONCE)}")
    a("s_nop 1")
    a(f"s_cbranch_vccz {pfx}_p2_ok")
    poll(a, f"{pfx}_p2", g.vBA, sFB, g.vBR, sT2, Cfg.p2s)
    setprio(a, Cfg.prioD)
    stamp(a, "h2_go")
    a(f"s_branch {pfx}_c1_ok")
    a(f"{pfx}_dtail:")
    stage(2, hload(1)[:2], 16, wdma(2))
    stage(3, [], 12, wdma(3))
    stage(0, [], 10, wdma(0))
    stage(1, [], 0, [], nks_=2)
    setprio(a, Cfg.prioGv)
    stamp(a, "d_done")
    srd(a, SX, P_X, 2048 * 1280)
    a(f"s_mul_i32 {s(sT3)}, {s(sRT)}, {16*1280}")
    a(f"s_mul_i32 {s(sT1)}, {s(sC8)}, 160")
    a(f"s_add_u32 {s(sT3)}, {s(sT3)}, {s(sT1)}")
    a("s_waitcnt vmcnt(10)")
    a("s_barrier")
    for ks in range(3):
        for mt in range(5): a(wrd(WRS[1 + ks], 2, ks, mt))
    a(f"buffer_load_dwordx4 {v(XR,4)}, {v(vXO)}, {s(SX,4)}, {s(sT3)} offen")
    a(f"buffer_load_dwordx4 {v(XR+4,4)}, {v(vXO)}, {s(SX,4)}, {s(sT3)} offen offset:16")
    a(f"buffer_load_dwordx2 {v(XR+8,2)}, {v(vXO)}, {s(SX,4)}, {s(sT3)} offen offset:32")
    a("s_waitcnt lgkmcnt(0)")
    a("s_barrier")
    emit(wdma(1))
    a(f"s_cmp_ge_u32 {s(S_WV)}, 2")
    a(f"s_cbranch_scc1 {pfx}_now5")
    emit(wdma(2))
    a(f"{pfx}_now5:")
    setprio(a, Cfg.prioS)
    for r0 in range(0, 20, 4):
        R = range(r0, r0 + 4)
        for r in R: a(f"v_mul_f32 {v(AS+r)}, {f2u(-LOG2E)}, {v(AD+r)}")
        for r in R: a(f"v_exp_f32 {v(AS+r)}, {v(AS+r)}")
        for r in R: a(f"v_add_f32 {v(AS+r)}, 1.0, {v(AS+r)}")
        for r in R: a(f"v_rcp_f32 {v(AS+r)}, {v(AS+r)}")
        for r in R: a(f"v_mul_f32 {v(AD+r)}, {v(AD+r)}, {v(AS+r)}")
    srd(a, SX, P_OUT, 2048 * 1280)
    a(f"s_lshl_b32 {s(sH)}, {s(sRT)}, 14")
    a(f"s_add_u32 {s(sH)}, {s(sH)}, {O_OFF}")
    a(f"s_lshr_b32 {s(sT1)}, {s(sRT)}, 2")
    a(f"s_lshl_b32 {s(sW)}, {s(sT1)}, 14")
    a(f"s_and_b32 {s(sT0)}, {s(S_WV)}, 1")
    a(f"s_lshl_b32 {s(sT0)}, {s(sT0)}, 8")
    a(f"s_add_u32 {s(sW)}, {s(sW)}, {s(sT0)}")
    a(f"s_lshr_b32 {s(sT0)}, {s(S_WV)}, 1")
    a(f"s_lshl_b32 {s(sT0)}, {s(sT0)}, 3")
    a(f"s_add_u32 {s(sW)}, {s(sW)}, {s(sT0)}")
    a(f"s_add_u32 {s(sW)}, {s(sW)}, {OL_OFF}")
    a(f"v_lshrrev_b32 {v(T+2)}, 4, {v(vL)}")
    a(f"v_and_b32 {v(T+3)}, 0xff, {v(vF)}")
    a(f"v_lshl_add_u32 {v(T+2)}, {v(T+2)}, 10, {v(T+3)}")
    a(f"s_lshl_b32 {s(sT1)}, {s(sT1)}, 11")
    a(f"s_add_u32 {s(sT1)}, {s(sT1)}, {F3_OFF}")
    a(f"v_and_b32 {v(T)}, 31, {v(vL)}")
    a(f"v_lshlrev_b32 {v(T)}, 6, {v(T)}")
    setprio(a, Cfg.prioGv)
    stamp(a, "wo_ready")
    a("s_waitcnt vmcnt(0)")
    a(f"s_cmp_lg_u32 {s(S_WV)}, 0")
    a(f"s_cbranch_scc1 {pfx}_p3_ok")
    poll(a, f"{pfx}_p3", T, sT1, T + 1, sT2, Cfg.p3s)
    a("s_barrier")
    stamp(a, "o_go")
    NL = Cfg.onl
    ol = []
    for k in range(16):
        o = [f"buffer_load_dwordx4 {v(OF(k),4)}, {v(vF)}, {s(S_WS,4)}, {s(sH)} offen offset:{(k&3)*1024}{SC1}"]
        if k & 3 == 3 and k < 15: o.append(f"s_add_u32 {s(sH)}, {s(sH)}, 4096")
        ol.append(o)
    for k in range(16, 20):
        for sec in range(2):
            o = [f"buffer_load_dwordx2 {v(OF(k)+2*sec,2)}, {v(T+2)}, {s(S_WS,4)}, {s(sW)} offen offset:{sec*512}{SC1}"]
            if sec and k < 19: o.append(f"s_add_u32 {s(sW)}, {s(sW)}, 4096")
            ol.append(o)
    need = lambda k: k + 1 if k < 16 else 16 + 2 * (k - 15)
    for k in range(NL): a.ext(ol[k])
    def wloc(k):
        st = 54 + k
        if st >= 72: return (2, st - 72)
        return ((st >> 2) & 3, st & 3)
    a(f"s_waitcnt vmcnt({NL-1})")
    nl = NL
    for k in range(20):
        for mt in range(5):
            src = WF if (k == 0 or k >= 5) else WRS[k - 1]
            a(mf16(AS + 4 * mt, src + 4 * mt, OF(k), "0" if k == 0 else None))
            w = []
            if mt == 4 and k < 19: w.append(f"vmcnt({nl-need(k+1)})")
            if k == 4 and mt == 4: w.append("lgkmcnt(0)")
            if k >= 5 and not (k == 19 and mt == 4): w.append(f"lgkmcnt({3 if k < 19 else 3-mt})")
            if w: a("s_waitcnt " + " ".join(w))
            if k == 0: a(wrd(WF, *wloc(5), mt))
            if 5 <= k < 19: a(wrd(WF, *wloc(k + 1), mt))
            if nl < 24 and (mt == 0 or (mt == 2 and k % 4 == 1)):
                a.ext(ol[nl]); nl += 1
            if 8 <= k < 18 and mt in (1, 3):
                j = k - 8
                a(f"v_lshlrev_b32 {v(U+2*j)}, 16, {v(XR+j)}" if mt == 1 else f"v_and_b32 {v(U+2*j+1)}, 0xffff0000, {v(XR+j)}")
    stamp(a, "wo_done")
    for lo, hi in ((0, 8), (8, 16), (16, 20)):
        for r in range(lo, hi): a(f"v_fma_f32 {v(U+r)}, {v(AS+r)}, {v(AD+r)}, {v(U+r)}")
        for j in range(lo // 2, hi // 2): a(f"v_cvt_pk_bf16_f32 {v(XR+j)}, {v(U+2*j)}, {v(U+2*j+1)}")
        n = (hi - lo) // 2
        a(f"buffer_store_dwordx{n} {v(XR+lo//2,n)}, {v(vXO)}, {s(SX,4)}, {s(sT3)} offen offset:{2*lo}")

def kd(name, nv=256):
    return f""".amdhsa_kernel {name}
  .amdhsa_next_free_vgpr {nv}
  .amdhsa_next_free_sgpr 102
  .amdhsa_accum_offset {nv}
  .amdhsa_group_segment_fixed_size 0
  .amdhsa_kernarg_size 80
  .amdhsa_user_sgpr_count 2
  .amdhsa_user_sgpr_kernarg_segment_ptr 1
  .amdhsa_system_sgpr_workgroup_id_x 1
  .amdhsa_float_denorm_mode_32 3
.end_amdhsa_kernel
"""
def head(a, name, n):
    a(f".globl {name}"); a(".p2align 8"); a(f".type {name},@function"); a(f"{name}:")
    a(f"s_cmp_ge_u32 s2, {n}")
    a(f"s_cbranch_scc1 {name}_end")
    load_args(a)
def tail(a, name):
    a(f"{name}_end:"); a("s_endpgm")

def build1():
    Cfg.fused = True
    a = Asm()
    name = NAME + "_kernel"
    a("; @launch grid=(512,1,1) block=(256,1,1) lds=81920")
    a('.amdgcn_target "amdgcn-amd-amdhsa--gfx950"')
    a(".text")
    head(a, name, 512)
    if Cfg.cpf == 2:
        a("s_getpc_b64 s[54:55]")
        a("L_pc:")
        a("s_and_b32 s56, s2, 0x1f8")
        a("v_lshrrev_b32 v2, 5, v0")
        a("v_and_b32 v3, 1, v0")
        a("v_add3_u32 v2, v2, v3, s56")
        a("v_lshlrev_b32 v2, 7, v2")
        a(f"v_min_u32 v2, {name}_end-L_pc, v2")
        a("s_mov_b64 exec, 3")
        a("global_load_dword v255, v2, s[54:55]")
        a("s_mov_b64 exec, -1")
    a("s_cmp_ge_u32 s2, 256")
    a("s_cbranch_scc1 L_att")
    stamp_begin(a, 0); stamp(a, "start"); gen_g1(a, "g1"); gen_g2(a, "g2"); stamp_end(a, 0, 2)
    a("s_endpgm")
    a("L_att:")
    stamp_begin(a, 1); stamp(a, "start"); gen_att(a, "att", 2); stamp_end(a, 1, 2)
    tail(a, name)
    a('.section .rodata,"a"')
    a(".p2align 6"); a.lines.append(kd(name))
    return a.text()

if __name__ == "__main__":
    if "--stamps" in sys.argv:
        sys.argv.remove("--stamps"); STAMPS = True
    if "--cyc" in sys.argv:
        sys.argv.remove("--cyc"); STAMPS = "cyc"
    three = "--three" in sys.argv
    if three: sys.argv.remove("--three")
    for x in list(sys.argv):
        if "=" in x:
            k_, v_ = x.split("="); setattr(Cfg, k_, int(v_)); sys.argv.remove(x)
    t = build1()
    if STAMPS:
        import json; json.dump(St.names, open(sys.argv[1].replace(".s", ".json"), "w"))
    out = sys.argv[1] if len(sys.argv) > 1 else f"cdna_kernels/{NAME}.s"
    body = t[:t.index('.section .rodata')]
    pr = check_hazards(body)
    for p in pr: print("HAZARD", p)
    open(out, "w").write(t)
    print("written", out, len(t), "bytes;", len(pr), "hazards")
```

```python
import sys, math, struct
from asmlib import *

NAME = "recurrent_scan__softmax_full_mha__geglu_ffn__prompt"
QK_OFF = 0
V_OFF = 160 * 32768
H_OFF = V_OFF + 32 * 81920
O_OFF = H_OFF + 128 * 55296
OL_OFF = O_OFF + 128 * 16384
FLAG_OFF = O_OFF + 128 * 20480
def f2u(x): return "0x%08x" % struct.unpack("<I", struct.pack("<f", x))[0]
LOG2E = math.log2(math.e)
QSCALE = 20 ** -0.5 * LOG2E
GC0 = -2.0 * LOG2E * math.sqrt(2.0 / math.pi)
GC1 = GC0 * 0.044715
SC1 = " sc1"

P_X, P_WQKV, P_WO, P_WG, P_WU, P_WD, P_OUT, P_DBG, P_WS = 4, 6, 8, 12, 14, 16, 18, 20, 22
S_WS = 24
S_A = 28
S_B = 32
S_C = 36
S_WV = 40

def srd(a, d, p, nbytes):
    a(f"s_mov_b32 {s(d)}, {s(p)}")
    a(f"s_mov_b32 {s(d+1)}, {s(p+1)}")
    a(f"s_mov_b32 {s(d+2)}, {nbytes}")
    a(f"s_mov_b32 {s(d+3)}, 0x00020000")

WR_OFF = FLAG_OFF
FLAG_OFF = WR_OFF + 8 * 74 * 5120
F4_OFF = FLAG_OFF + 32768 + 65536
F2B_OFF = F4_OFF + 8192
F1_OFF = FLAG_OFF
F2_OFF = FLAG_OFF + 16384
F3_OFF = FLAG_OFF + 32768
WS_BYTES = F2B_OFF + 16384
V_NONCE = 11
class Cfg:
    fused = True
    prioA = 1; prioGm = 0; prioGv = 2; prioD = 0
    rot = True
    ns = 3; drot = 0; cpf = 2; nw0 = 2; pubk = 7; aord = 1; x_norl = 0; hiN = 0; p3s = 2; p4s = 8; p2s = 2; chks = 3; x_hot = 0; x_nokv = 0; wpf = 0; x_nolo = 0; p0s = 4; p1s = 1; prioS = 2; onl = 6; carry = 3; gap = 3; gap0 = 3; x_body = 0; tch = 0; bal = 0; diag = 0; dsel = 0
def setprio(a, p):
    if Cfg.fused: a(f"s_setprio {p}")
def publish(a, soff):
    a("s_mov_b64 exec, 1")
    a(f"buffer_store_dword {v(V_NONCE)}, off, {s(S_WS,4)}, {s(soff)} sc1")
    a("s_mov_b64 exec, -1")
def poll(a, lbl, vaddr, soff, vt, scnt, sleep):
    a(f"s_mov_b32 {s(scnt)}, 0x20000")
    a(f"{lbl}:")
    if vaddr is None: a(f"buffer_load_dword {v(vt)}, off, {s(S_WS,4)}, {s(soff)} sc1")
    else: a(f"buffer_load_dword {v(vt)}, {v(vaddr)}, {s(S_WS,4)}, {s(soff)} offen sc1")
    a("s_waitcnt vmcnt(0)")
    a(f"v_cmp_ne_u32 vcc, {v(vt)}, {v(V_NONCE)}")
    a(f"s_sub_u32 {s(scnt)}, {s(scnt)}, 1")
    a(f"s_cbranch_scc1 {lbl}_ok")
    a(f"s_cbranch_vccz {lbl}_ok")
    if sleep: a(f"s_sleep {sleep}")
    a(f"s_branch {lbl}")
    a(f"{lbl}_ok:")
def nonce_load(a, vz):
    a(f"global_load_dword {v(V_NONCE)}, {v(vz)}, {s(P_DBG,2)} sc1")
def nonce_check(a, lbl, vz, st, scnt):
    a(f"s_mov_b32 {s(scnt)}, 0x20000")
    a(f"{lbl}:")
    a(f"v_readfirstlane_b32 {s(st)}, {v(V_NONCE)}")
    a(f"s_sub_u32 {s(scnt)}, {s(scnt)}, 1")
    a(f"s_cbranch_scc1 {lbl}_ok")
    a(f"s_cmp_lg_u32 {s(st)}, 0")
    a(f"s_cbranch_scc1 {lbl}_ok")
    a("s_sleep 2")
    a(f"v_mov_b32 {v(vz)}, 0")
    nonce_load(a, vz)
    a("s_waitcnt vmcnt(0)")
    a(f"s_branch {lbl}")
    a(f"{lbl}_ok:")

STAMPS = False
class St:
    n = 0; names = {}; cur = None
def stamp(a, name):
    if not STAMPS: return
    l = St.names.setdefault(St.cur, [])
    if name not in l: l.append(name)
    i = l.index(name)
    a("s_waitcnt lgkmcnt(0)")
    a("s_memtime s[62:63]" if STAMPS == "cyc" else "s_memrealtime s[62:63]")
    a("s_waitcnt lgkmcnt(0)")
    a(f"s_mov_b32 {s(64+i)}, s62")
def stamp_begin(a, role):
    St.cur = role
    if not STAMPS: return
    for i in range(32): a(f"s_mov_b32 {s(64+i)}, 0")
def stamp_end(a, slot, idreg):
    if not STAMPS: return
    a("s_waitcnt vmcnt(0) lgkmcnt(0)")
    stamp(a, "end")
    a("s_mov_b64 exec, -1")
    a("v_mov_b32 v20, 0")
    for i in range(32): a(f"v_writelane_b32 v20, {s(64+i)}, {i}")
    a(f"s_and_b32 s62, {s(idreg)}, 255")
    a("s_lshl_b32 s62, s62, 2")
    a(f"s_add_u32 s62, s62, {s(S_WV)}")
    a(f"s_add_u32 s62, s62, {slot*1024}")
    a("s_lshl_b32 s62, s62, 7")
    a(f"s_add_u32 s62, s62, {WS_BYTES}")
    a(f"s_mov_b32 {s(S_WS+2)}, {WS_BYTES + (1<<20)}")
    a("v_lshlrev_b32 v21, 2, v1")
    a("s_mov_b32 exec_hi, 0")
    a(f"buffer_store_dword v20, v21, {s(S_WS,4)}, s62 offen")

def load_args(a):
    a("s_load_dwordx16 s[4:19], s[0:1], 0")
    a("s_load_dwordx4 s[20:23], s[0:1], 64")

def gen_g1(a, pfx):
    X, ACC, G, WF = 96, 32, 64, 16
    vL = 1
    vTA, vTB, vTA2, vTB2, vD, vDR, vDCo, vST = 2, 3, 4, 5, 6, 7, 8, 9
    CN = (10, 12, 13, 14, 15, 0)
    vA0, vB0, vK0, vA1, vB1, vK1 = CN
    vA, vB, vK = (vA0, vA1), (vB0, vB1), (vK0, vK1)
    VR, VA = G + 16, G + 24
    sRB, sCG, sTT, sM, sN, sNT, sNQ, sP0 = 41, 42, 43, 44, 45, 46, 47, 48
    sO, sDA, sDB, sDC, sS = 49, 50, 51, 52, 53
    sT0, sT1, sT2, sT3, sSO = 54, 55, 56, 57, 58
    sSW, sCHK = 59, 97
    sROT, sXB, sXC, sPUB, sF, sU = 96, 97, 98, 99, 100, 101
    SW = S_B
    t0, t1, t2 = G, G + 1, G + 2
    a(f"v_and_b32 {v(vL)}, 63, v0")
    a(f"v_lshrrev_b32 {v(t2)}, 6, v0")
    a(f"s_and_b32 {s(sT0)}, s2, 7")
    a(f"v_readfirstlane_b32 {s(S_WV)}, {v(t2)}")
    a(f"s_lshr_b32 {s(sT1)}, s2, 3")
    a(f"s_lshr_b32 {s(sRB)}, {s(sT0)}, 1")
    a(f"s_lshl_b32 {s(sRB)}, {s(sRB)}, 2")
    a(f"s_and_b32 {s(sROT)}, {s(sT1)}, 3")
    a(f"s_add_u32 {s(sRB)}, {s(sRB)}, {s(sROT)}")
    a(f"s_lshr_b32 {s(sT2)}, {s(sT1)}, 2")
    if Cfg.rot == 2: a(f"s_mov_b32 {s(sROT)}, {s(sT2)}")
    elif Cfg.rot == 3:
        a(f"s_and_b32 {s(sROT)}, {s(sROT)}, 1")
        a(f"s_lshl_b32 {s(sROT)}, {s(sROT)}, 1")
        a(f"s_add_u32 {s(sROT)}, {s(sROT)}, {s(sT2)}")
    else: a(f"s_add_u32 {s(sROT)}, {s(sROT)}, {s(sT2)}")
    a(f"s_lshl_b32 {s(sTT)}, {s(sRB)}, 2")
    a(f"s_add_u32 {s(sTT)}, {s(sTT)}, {s(S_WV)}")
    a(f"s_mul_i32 {s(sT3)}, {s(sROT)}, 13")
    a(f"s_lshr_b32 {s(sT3)}, {s(sT3)}, 6")
    a(f"s_mul_i32 {s(sT3)}, {s(sT3)}, 5")
    a(f"s_sub_u32 {s(sROT)}, {s(sROT)}, {s(sT3)}")
    if not Cfg.rot: a(f"s_mov_b32 {s(sROT)}, 0")
    vXA = ACC
    a(f"v_lshrrev_b32 {v(t0)}, 4, {v(vL)}")
    a(f"v_mul_u32_u24 {v(vXA)}, 1280, {v(t0)}")
    a(f"v_and_b32 {v(t1)}, 15, {v(vL)}")
    a(f"v_xor_b32 {v(vXA+1)}, {v(t0)}, {v(t1)}")
    a(f"v_lshl_add_u32 {v(vXA)}, {v(vXA+1)}, 4, {v(vXA)}")
    for i in range(1, 4): a(f"v_xor_b32 {v(vXA+i)}, {64*i}, {v(vXA)}")
    a(f"s_lshl_b32 {s(sM)}, {s(S_WV)}, 12")
    a(f"s_mul_i32 {s(sXB)}, {s(sTT)}, 40960")
    a(f"s_lshl_b32 {s(sXC)}, {s(sROT)}, 8")
    def xdma(b):
        out = []
        for i in range(4):
            g = []
            if i == 0:
                g += [f"s_add_u32 m0, {s(sM)}, {(b%5)*16384}", f"s_add_u32 {s(sU)}, {s(sXB)}, {s(sXC)}"]
            g.append(f"buffer_load_dwordx4 {v(vXA+i)}, {s(S_A,4)}, {s(sU)} offen offset:{i*1024} lds")
            if i < 3: g.append(f"s_add_u32 {s(sU)}, {s(sU)}, 4096")
            else:
                g += [f"s_add_u32 {s(sXC)}, {s(sXC)}, 256", f"s_cmp_ge_u32 {s(sXC)}, 1280", f"s_cselect_b32 {s(sXC)}, 0, {s(sXC)}"]
                if b == 4: g.append(f"s_add_u32 {s(sXB)}, {s(sXB)}, 20480")
            out.append(g)
        return out
    su = Asm()
    su(f"s_and_b32 {s(sCG)}, {s(sT0)}, 1")
    su(f"s_add_u32 {s(sCG)}, {s(sCG)}, {s(sT2)}" if Cfg.bal else f"s_lshl_b32 {s(sCG)}, {s(sCG)}, 3")
    su(f"s_add_u32 {s(sCG)}, {s(sCG)}, {s(sT2)}")
    srd(su, S_WS, P_WS, WS_BYTES)
    su(f"s_cmp_lt_u32 {s(sCG)}, 15\ns_cselect_b32 {s(sNQ)}, 2, 0\ns_cselect_b32 {s(sSW)}, 1, -1@")
    su(f"s_cmp_lt_u32 {s(sCG)}, 10\ns_cselect_b32 {s(sNT)}, 6, 4\ns_cselect_b32 {s(sP0)}, 17, 1@")
    su(f"s_mov_b32 {s(SW+3)}, 0x00020000")
    su(f"s_mov_b32 {s(sN)}, -1")
    vR0, vR4 = ACC + 4, ACC + 8
    vSm, vGr, vNM, vON = ACC + 12, (ACC + 16, ACC + 20), ACC + 24, ACC + 28
    vSE, vBP, vMu = G + 6, G + 5, (G + 12, G + 13)
    CTS = ((WF, WF + 8, G + 16), (ACC, G + 16, ACC + 8))
    sMA, sMB = 60, 38
    su(f"v_xor_b32 {v(vR0)}, {v(t0)}, {v(t1)}")
    su(f"v_lshlrev_b32 {v(vR0)}, 4, {v(vR0)}")
    su(f"v_lshl_add_u32 {v(vR0)}, {v(t1)}, 8, {v(vR0)}")
    su(f"v_add_u32 {v(vR0)}, {s(sM)}, {v(vR0)}")
    for q in range(1, 4): su(f"v_xor_b32 {v(vR0+q)}, {64*q}, {v(vR0)}")
    for q in range(4): su(f"v_add_u32 {v(vR4+q)}, 0x10000, {v(vR0+q)}")
    for i in range(4): su(f"v_mov_b32 {v(vON+i)}, 0x3f803f80")
    for i in (0, 1, 4, 5): su(f"v_mov_b32 {v(vSE+i)}, 0")
    su(f"s_mov_b32 {s(sMA)}, 0xaaaaaaaa"); su(f"s_mov_b32 {s(sMA+1)}, 0xaaaaaaaa")
    su(f"s_mov_b32 {s(sMB)}, 0xcccccccc"); su(f"s_mov_b32 {s(sMB+1)}, 0xcccccccc")
    su(f"v_and_b32 {v(vBP)}, 1, {v(vL)}")
    su(f"v_lshlrev_b32 {v(vBP)}, 4, {v(vBP)}")
    su(f"v_mov_b32 {v(vSE+2)}, 0x3f80")
    su(f"v_lshlrev_b32 {v(vSE+2)}, {v(vBP)}, {v(vSE+2)}")
    su(f"v_bfe_u32 {v(vBP)}, {v(vL)}, 2, 2")
    su(f"v_cmp_eq_u32 vcc, {v(vBP)}, {v(t0)}")
    su(f"v_lshl_add_u32 {v(vBP)}, {v(vBP)}, 4, {v(t1)}")
    su(f"v_lshlrev_b32 {v(vBP)}, 2, {v(vBP)}")
    su(f"v_cndmask_b32 {v(vSE+2)}, 0, {v(vSE+2)}, vcc")
    su(f"v_cndmask_b32 {v(vSE+3)}, 0, {v(vSE+2)}, {s(sMB,2)}")
    su(f"v_cndmask_b32 {v(vSE+2)}, {v(vSE+2)}, 0, {s(sMB,2)}")
    t3, t4 = G + 3, G + 4
    su(f"v_bfe_u32 {v(t3)}, {v(vL)}, 4, 1")
    su(f"v_bfe_u32 {v(t4)}, {v(vL)}, 2, 2")
    su(f"v_lshl_add_u32 {v(vDR)}, {v(t3)}, 3, {v(t4)}")
    su(f"v_lshl_add_u32 {v(vDR)}, {v(t2)}, 5, {v(vDR)}")
    su(f"v_lshlrev_b32 {v(vDCo)}, 1, {v(t3)}")
    su(f"v_and_b32 {v(vD)}, 3, {v(vL)}")
    su(f"v_xor_b32 {v(vDCo)}, {v(vDCo)}, {v(vD)}")
    su(f"v_lshlrev_b32 {v(vDCo)}, 4, {v(vDCo)}")
    su(f"v_lshrrev_b32 {v(t2)}, 5, {v(vL)}")
    su(f"v_lshl_add_u32 {v(vDCo)}, {v(t2)}, 6, {v(vDCo)}")
    su(f"v_lshlrev_b32 {v(vTA)}, 11, {v(t2)}")
    su(f"v_mad_u32_u24 {v(vTA)}, {v(t3)}, {s(sT3)}, {v(vTA)}")
    su(f"v_lshl_add_u32 {v(vTA)}, {v(t4)}, 6, {v(vTA)}")
    su(f"v_lshl_add_u32 {v(vTA)}, {v(vD)}, 3, {v(vTA)}")
    su(f"v_xor_b32 {v(vTB)}, 32, {v(vTA)}")
    su(f"v_add_u32 {v(vTA2)}, 0x10000, {v(vTA)}")
    su(f"v_add_u32 {v(vTB2)}, 0x10000, {v(vTB)}")
    su(f"v_lshl_add_u32 {v(vST)}, {v(t3)}, 1, {v(t2)}")
    su(f"v_lshlrev_b32 {v(vST)}, 15, {v(vST)}")
    su(f"v_lshl_add_u32 {v(vST)}, {v(t1)}, 4, {v(vST)}")
    su(f"s_lshl_b32 {s(sT1)}, {s(sCG)}, 7")
    su(f"s_sub_u32 {s(sT1)}, {s(sT1)}, 1280")
    su(f"s_and_b32 {s(sT1)}, {s(sT1)}, 1023")
    su(f"s_mov_b32 {s(sT2)}, {81920-320}")
    su(f"v_mul_u32_u24 {v(t0)}, 320, {v(t0)}")
    su(f"v_add_u32 {v(t1)}, {s(sT1)}, {v(t1)}")
    for i in range(8):
        su(f"v_mul_u32_u24 {v(t2)}, 3277, {v(t1)}")
        su(f"v_lshrrev_b32 {v(t2)}, 16, {v(t2)}")
        su(f"v_lshl_add_u32 {v(VA+i)}, {v(t1)}, 4, {v(t0)}")
        su(f"v_mad_u32_u24 {v(VA+i)}, {v(t2)}, {s(sT2)}, {v(VA+i)}")
        if i < 7: su(f"v_add_u32 {v(t1)}, 16, {v(t1)}")
    def params_a():
        return [f"s_add_u32 {s(sT0)}, {s(sN)}, 1",
                f"s_sub_u32 {s(sT1)}, {s(sT0)}, {s(sNQ)}",
                f"s_lshr_b32 {s(sT1)}, {s(sT1)}, 1",
                f"s_mul_i32 {s(sT1)}, {s(sT1)}, {s(sP0)}",
                f"s_add_u32 {s(sT1)}, {s(sT1)}, {s(sCG)}",
                f"s_lshl_b32 {s(sT2)}, {s(sCG)}, 1",
                f"s_add_u32 {s(sT2)}, {s(sT2)}, {s(sT0)}",
                f"s_movk_i32 {s(sS)}, 3456",
                f"s_cmp_lt_u32 {s(sT0)}, {s(sNQ)}\ns_cselect_b32 {s(sT1)}, {s(sT2)}, {s(sT1)}\ns_cselect_b32 {s(sS)}, 3840, {s(sS)}",
                f"s_mul_i32 {s(sT2)}, {s(sROT)}, {s(sS)}",
                f"s_add_u32 {s(sT1)}, {s(sT1)}, {s(sT2)}"]
    def params_b():
        return [f"s_bitcmp1_b32 {s(sT0)}, 0\ns_cselect_b32 {s(SW)}, {s(P_WU)}, {s(P_WG)}\ns_cselect_b32 {s(SW+1)}, {s(P_WU+1)}, {s(P_WG+1)}",
                f"s_cmp_lt_u32 {s(sT0)}, {s(sNQ)}\ns_cselect_b32 {s(SW)}, {s(P_WQKV)}, {s(SW)}\ns_cselect_b32 {s(SW+1)}, {s(P_WQKV+1)}, {s(SW+1)}",
                f"s_mul_i32 {s(SW+2)}, {s(sS)}, 640",
                f"s_cmp_lt_u32 {s(sT0)}, {s(sNT)}\ns_cselect_b32 {s(SW+2)}, {s(SW+2)}, 0",
                f"s_lshl_b32 {s(sO)}, {s(sT1)}, 7",
                f"s_lshl_b32 {s(sDA)}, {s(sS)}, 2",
                f"s_mul_i32 {s(sDB)}, {s(sS)}, 12",
                f"s_mul_i32 {s(sDC)}, {s(sS)}, 108",
                f"s_sub_u32 {s(sDA)}, {s(sDA)}, 1024",
                f"s_sub_u32 {s(sDB)}, {s(sDB)}, 1024",
                f"s_add_u32 {s(sDC)}, {s(sDC)}, 3072"]
    def params_v(): return f"v_mad_u32_u24 {v(vD)}, {v(vDR)}, {s(sS)}, {v(vDCo)}"
    def wdma(slot):
        out = []
        for i in range(4):
            g = []
            if i == 0: g += [f"s_add_u32 m0, {s(sM)}, {slot*16384}", "s_nop 0"]
            g.append(f"buffer_load_dwordx4 {v(vD)}, {s(SW,4)}, {s(sO)} offen offset:{i*1024} lds")
            g.append(f"s_add_u32 {s(sO)}, {s(sO)}, {s((sDA, sDB, sDA, sDC)[i])}")
            if i == 3:
                g += [f"s_cmp_ge_u32 {s(sO)}, {s(SW+2)}", f"s_cselect_b32 {s(sU)}, {s(SW+2)}, 0", f"s_sub_u32 {s(sO)}, {s(sO)}, {s(sU)}"]
            out.append(g)
        return out
    items = []; keep = []
    for l in su.lines:
        l = l.strip()
        if l.startswith("s_cmp"): keep = [l]; continue
        if keep:
            keep.append(l.rstrip("@"))
            if l.endswith("@"): items.append("\n".join(keep)); keep = []
            continue
        items.append(l)
    items += params_a() + params_b() + [params_v()]
    a(f"s_movk_i32 {s(sT3)}, 288")
    a("s_waitcnt lgkmcnt(0)")
    srd(a, S_A, P_X, 2048 * 1280)
    per = -(-len(items) // 16)
    if Cfg.tch & 1:
        a(f"s_mul_i32 {s(sU)}, {s(sT2)}, 2560")
        a(f"s_add_u32 {s(sU)}, {s(sU)}, {s(sXB)}")
        a(f"s_add_u32 {s(sU)}, {s(sU)}, 20480")
        a(f"v_lshlrev_b32 {v(WF)}, 7, {v(vL)}")
        a("s_mov_b64 exec, 0xfffff")
        a(f"buffer_load_dword {v(WF+1)}, {v(WF)}, {s(S_A,4)}, {s(sU)} offen")
        a("s_mov_b64 exec, -1")
    for b in range(5):
        for g in xdma(b):
            a.ext(g)
            if b > 0:
                for _ in range(per):
                    if items: a(items.pop(0))
    assert not items
    if Cfg.tch & 2:
        a(f"s_and_b32 {s(sT0)}, {s(sTT)}, 15")
        a(f"s_mul_i32 {s(sT0)}, {s(sT0)}, 40")
        a(f"s_mul_i32 {s(sT0)}, {s(sT0)}, {s(sS)}")
        a(f"s_mul_i32 {s(sT2)}, {s(sROT)}, {s(sS)}")
        a(f"s_lshl_b32 {s(sT2)}, {s(sT2)}, 7")
        a(f"s_sub_u32 {s(sT2)}, {s(sO)}, {s(sT2)}")
        a(f"s_add_u32 {s(sT0)}, {s(sT0)}, {s(sT2)}")
        a(f"v_mul_u32_u24 {v(WF+2)}, {s(sS)}, {v(vL)}")
        a("s_mov_b32 exec_hi, 0xff")
        a(f"buffer_load_dword {v(WF+3)}, {v(WF+2)}, {s(SW,4)}, {s(sT0)} offen")
        if Cfg.tch & 4: a(f"buffer_load_dword {v(WF+4)}, {v(WF+2)}, {s(SW,4)}, {s(sT0)} offen offset:128")
        a("s_mov_b32 exec_hi, -1")
    a(f"s_mov_b32 {s(sN)}, 0")

    def stats(b):
        o = []
        for q in range(4):
            f = X + 16 * b + 4 * q
            first = (b % 5 == 0 and q == 0)
            o.append(mf16(vSm, vON, f, "0" if first else None))
            o.append(mf16(vGr[b // 5], f, f, "0" if first else None))
        return o
    def mean(rt):
        return [f"v_mul_f32 {v(vMu[rt])}, {f2u(-1/640)}, {v(vSm)}",
                f"v_cvt_pk_bf16_f32 {v(vNM)}, {v(vMu[rt])}, {v(vMu[rt])}",
                f"v_lshlrev_b32 {v(vNM)}, 16, {v(vNM)}",
                f"v_mov_b32 {v(vNM+1)}, {v(vNM)}", f"v_mov_b32 {v(vNM+2)}, {v(vNM)}", f"v_mov_b32 {v(vNM+3)}, {v(vNM)}", "s_nop 1"]
    def diag(rt):
        g = vGr[rt]
        return [f"v_cndmask_b32 {v(g)}, {v(g)}, {v(g+1)}, {s(sMA,2)}",
                f"v_cndmask_b32 {v(g+2)}, {v(g+2)}, {v(g+3)}, {s(sMA,2)}",
                f"v_cndmask_b32 {v(g)}, {v(g)}, {v(g+2)}, {s(sMB,2)}",
                f"ds_bpermute_b32 {v(vK[rt])}, {v(vBP)}, {v(g)}"]
    def finalize2(rt):
        k = vK[rt]
        return [f"v_mul_f32 {v(k)}, {f2u(1/640)}, {v(k)}",
                f"v_fma_f32 {v(k)}, -{v(vMu[rt])}, {v(vMu[rt])}, {v(k)}",
                f"v_max_f32 {v(k)}, 0, {v(k)}",
                f"v_cvt_pk_bf16_f32 {v(k)}, {v(k)}, {v(k)}",
                f"v_lshlrev_b32 {v(k)}, 16, {v(k)}",
                f"v_add_f32 {v(k)}, {f2u(1e-5)}, {v(k)}",
                f"v_cvt_pk_bf16_f32 {v(k)}, {v(k)}, {v(k)}",
                f"v_lshlrev_b32 {v(k)}, 16, {v(k)}",
                f"v_sqrt_f32 {v(k)}, {v(k)}", "s_nop 0",
                f"v_cvt_pk_bf16_f32 {v(k)}, {v(k)}, {v(k)}",
                f"v_lshlrev_b32 {v(k)}, 16, {v(k)}",
                f"v_rcp_f32 {v(vA[rt])}, {v(k)}", "s_nop 0",
                f"v_mul_f32 {v(vA[rt])}, {s(sT3)}, {v(vA[rt])}"]
    def center(rt):
        steps = []; CT = CTS[rt]
        for j in range(22):
            m = [[], []]; c = [[], []]
            if j < 20:
                f = X + 80 * rt + 4 * j; d = CT[j % 3]
                m = [[mf16(d, vSE + 2, f, v(vNM, 4))], [mf16(d + 4, vSE, f, v(vNM, 4))]]
            if j >= 2:
                f = X + 80 * rt + 4 * (j - 2); d = CT[(j - 2) % 3]
                cv = [f"v_cvt_pk_bf16_f32 {v(f+i)}, {v(d+2*i)}, {v(d+2*i+1)}" for i in range(4)]
                c = [cv[:2], cv[2:]]
            st = m[0] + c[0] + m[1] + c[1]
            if j in (0, 1): st.append("s_nop 2")
            if j == 20: st.append("s_nop 3")
            steps.append(st)
        return steps
    def weave(steps, groups):
        n = len(groups); done = 0
        for i, st in enumerate(steps):
            a.ext(st[:1])
            while done < n and done * len(steps) <= i * n:
                a.ext(groups[done]); done += 1
            a.ext(st[1:])
        for g in groups[done:]: a.ext(g)
    a(f"s_cmp_lt_u32 {s(sCG)}, 5")
    a(f"s_cselect_b32 {s(sT3)}, {f2u(QSCALE)}, 1.0")
    def xread(b):
        slot = b % 5
        return [f"ds_read_b128 {v(X+16*b+4*q,4)}, {v((vR4 if slot == 4 else vR0)+q)} offset:{0 if slot == 4 else slot*16384}" for q in range(4)]
    pairs = lambda l: [l[2*i:2*i+2] for i in range(len(l) // 2)]
    NC = Cfg.carry
    wg = [wdma(st) for st in range(4)]
    wg[3] = wg[3][:4 - NC]; wg[3][-1] = wg[3][-1][:-1]
    vm = 20; issued = [0]
    def wx(b):
        a(f"s_waitcnt vmcnt({20 + issued[0] - 4 * (b + 1)})")
    dq = []
    def step(st, pop):
        a.ext(st[:1])
        if pop and dq:
            a.ext(dq.pop(0)); issued[0] += 1
        a.ext(st[1:])
    wx(0)
    stamp(a, "x0")
    a.ext(xread(0))
    for b in range(5):
        if b < 4:
            wx(b + 1); a.ext(xread(b + 1)); a("s_waitcnt lgkmcnt(4)")
        else:
            a("s_waitcnt lgkmcnt(0)")
        dq += xdma(b + 5)
        for i, st in enumerate(pairs(stats(b))): step(st, i % 2 == 0)
    a.ext(dq.pop(0)); issued[0] += 1
    a("s_nop 4")
    a.ext(mean(0))
    c0 = center(0)
    for i, st in enumerate(c0):
        step(st, i % 2 == 1)
        if i == 3: a.ext(diag(0))
        if i == 17:
            assert not dq
            stamp(a, "p1")
            wx(5); a.ext(xread(5))
    f0 = finalize2(0)
    for b in range(5, 10):
        if b < 9:
            wx(b + 1); a.ext(xread(b + 1)); a("s_waitcnt lgkmcnt(4)")
            dq += wg[b - 5]
        else:
            a("s_waitcnt lgkmcnt(0)")
        for i, st in enumerate(pairs(stats(b))):
            step(st, i % 2 == 0)
            if i % 2 == 1: a.ext(f0[:2]); f0 = f0[2:]
    assert not f0
    if Cfg.fused:
        a(f"s_or_b32 {s(sT0)}, s2, {s(S_WV)}")
        a(f"s_cmp_lg_u32 {s(sT0)}, 0")
        a(f"s_cbranch_scc1 {pfx}_nn")
        a(f"s_memrealtime {s(sT0,2)}")
        a("s_waitcnt lgkmcnt(0)")
        a(f"s_or_b32 {s(sT0)}, {s(sT0)}, 1")
        a(f"v_mov_b32 {v(t0)}, 0")
        a(f"v_mov_b32 {v(t1)}, {s(sT0)}")
        a("s_mov_b64 exec, 1")
        a(f"global_store_dword {v(t0)}, {v(t1)}, {s(P_DBG,2)} sc1")
        a("s_mov_b64 exec, -1")
        a(f"{pfx}_nn:")
    stamp(a, "p2")
    a("s_nop 3")
    a.ext(mean(1))
    c1 = center(1)
    for i, st in enumerate(c1[:16]): step(st, i % 2 == 0)
    assert not dq
    a.ext(diag(1))
    stamp(a, "xstats")
    def trd(k, ct):
        kk = k % 20
        slot, ks = kk // 4, kk % 4
        base = ((vTA, vTB), (vTA2, vTB2))[slot == 4][ct & 1]
        off = 0 if slot == 4 else slot * 16384
        return [f"ds_read_b64_tr_b16 {v(WF+4*ct+2*t,2)}, {v(base)} offset:{off+ks*4096+t*1024+(ct>>1)*512}" for t in range(2)]
    a(f"s_waitcnt vmcnt({12 - NC})")
    a("s_barrier")
    stamp(a, "w0")
    for ct in range(4): a.ext(trd(0, ct))
    for st in c1[16:]: a.ext(st)
    a("s_waitcnt lgkmcnt(8)")
    a.ext(finalize2(1))
    a(f"s_cmp_eq_u32 {s(sNQ)}, 0")
    a(f"s_cselect_b32 {s(sPUB)}, -1, 2")
    a(f"s_lshl_b32 {s(sF)}, {s(sCG)}, 4")
    a(f"s_add_u32 {s(sF)}, {s(sF)}, {s(sRB)}")
    a(f"s_lshl_b32 {s(sF)}, {s(sF)}, 6")
    a(f"s_add_u32 {s(sF)}, {s(sF)}, {F1_OFF}")
    a(f"s_cmp_eq_u32 {s(S_WV)}, 0")
    a(f"s_cselect_b32 {s(sCHK)}, 5, -1")
    stamp(a, "centered")
    def ffn_consts():
        for rt in range(2):
            a(f"v_rcp_f32 {v(vB[rt])}, {v(vK[rt])}")
            a(f"v_mul_f32 {v(vK[rt])}, {v(vK[rt])}, {v(vK[rt])}")
            a(f"v_mul_f32 {v(vA[rt])}, {f2u(GC0)}, {v(vB[rt])}")
            a(f"v_mul_f32 {v(vB[rt])}, {v(vB[rt])}, {v(vB[rt])}")
            a(f"v_mul_f32 {v(vB[rt])}, {v(vB[rt])}, {v(vA[rt])}")
            a(f"v_mul_f32 {v(vB[rt])}, {f2u(0.044715)}, {v(vB[rt])}")
        a(f"v_lshlrev_b32 {v(vST)}, 4, {v(vL)}")
        a(f"s_lshr_b32 {s(sT0)}, s2, 7")
        a(f"s_lshl_b32 {s(sT0)}, {s(sT0)}, 12")
        a(f"s_add_u32 {s(sT0)}, {s(sT0)}, {F4_OFF}")
        a(f"s_and_b32 {s(sT1)}, s2, 7")
        a(f"s_lshl_b32 {s(sT1)}, {s(sT1)}, 1")
        a(f"s_bfe_u32 {s(sT2)}, s2, {4 | (1<<16)}")
        a(f"s_add_u32 {s(sT1)}, {s(sT1)}, {s(sT2)}")
        a(f"s_lshl_b32 {s(sT1)}, {s(sT1)}, 10")
        a(f"s_add_u32 {s(sT1)}, {s(sT1)}, {F2_OFF - 48*64}")
        a(f"v_mov_b32 {v(vDR)}, {s(sT0)}")
        a("s_mov_b32 exec_lo, 0")
        a("s_mov_b32 exec_hi, 0xffff0000")
        a(f"v_mov_b32 {v(vDR)}, {s(sT1)}")
        a("s_mov_b64 exec, -1")
        a(f"v_lshl_add_u32 {v(vDR)}, {v(vL)}, 6, {v(vDR)}")
        a(f"v_mov_b32 {v(vDCo)}, 0")
    def wdma_items(slot):
        ld = lambda i: f"buffer_load_dwordx4 {v(vD)}, {s(SW,4)}, {s(sO)} offen offset:{i*1024} lds"
        ad = lambda d: f"s_add_u32 {s(sO)}, {s(sO)}, {s(d)}"
        return [[ld(0)], [ad(sDA), ld(1)], [ad(sDB), ld(2)], [ad(sDA), ld(3)],
                [ad(sDC), f"s_cmp_ge_u32 {s(sO)}, {s(SW+2)}", f"s_cselect_b32 {s(sU)}, {s(SW+2)}, 0"],
                [f"s_sub_u32 {s(sO)}, {s(sO)}, {s(sU)}"]]
    def pack(items, n=3):
        out = []; cur = []
        for it in items:
            l = it.split("\n")
            if len(cur) + len(l) > n: out.append(cur); cur = []
            cur += l
        if cur: out.append(cur)
        return out
    def body(tag, swap):
        a("s_waitcnt lgkmcnt(6)")
        if not swap:
            a(f"s_cmp_lt_u32 {s(sN)}, {Cfg.hiN}")
            a(f"s_cbranch_scc1 {pfx}_hi")
            setprio(a, Cfg.prioGm)
            a(f"{pfx}_hi:")
        def spread(dma, other, gap):
            out = []; other = list(other)
            for it in dma:
                out.append(it)
                if any(" lds" in x for x in it):
                    for _ in range(gap - 1): out.append(other.pop(0) if other else [])
            return out + other
        q = spread(wdma_items(3)[4 - Cfg.carry:], pack(params_a()), Cfg.gap0)
        for k in range(20):
            for ct in range(4):
                w = WF + 4 * ct
                mm = lambda rt: mf16(ACC + 16 * rt + 4 * ct, X + 80 * rt + 4 * k if swap else w, w if swap else X + 80 * rt + 4 * k, "0" if k == 0 else None)
                a(mm(0))
                if ct == 0 and k % 4 == 3:
                    assert not q, (k, q)
                    if k == Cfg.pubk and not swap:
                        a(f"s_cbranch_scc1 {pfx}_pub")
                    if not Cfg.x_body & 4: a("s_waitcnt vmcnt(8)")
                    if not Cfg.x_body & 1: a("s_barrier")
                    if k == Cfg.pubk and not swap: a(f"{pfx}_pubret:")
                    dm = wdma_items((k // 4 - 1) % 5); q = []
                    if k == 3:
                        dm = spread(dm[:3], [], 2) + dm[3:4] + pack(params_b()) + [[f"s_cmp_eq_u32 {s(sN)}, {s(sSW)}", f"s_cbranch_scc1 {pfx}_sw{tag}", f"{pfx}_swr{tag}:"]]
                    if k == 7 and not swap:
                        T0 = sum(x << (3 * i) for i, x in enumerate((1, 4, 2, 3, 0)))
                        T1 = sum(x << (3 * i) for i, x in enumerate((3, 0, 1, 4, 2)))
                        it = [f"s_lshl_b32 {s(sT0)}, {s(sCG)}, 1", f"s_add_u32 {s(sT0)}, {s(sT0)}, {s(sN)}", f"s_mul_i32 {s(sT1)}, {s(sT0)}, 52",
                              f"s_lshr_b32 {s(sT1)}, {s(sT1)}, 8", f"s_mul_i32 {s(sT1)}, {s(sT1)}, 5", f"s_sub_u32 {s(sT0)}, {s(sT0)}, {s(sT1)}",
                              f"s_mul_i32 {s(sT0)}, {s(sT0)}, 3"]
                        for tb, m in ((T0, sMA), (T1, sMB)):
                            it += [f"s_lshr_b32 {s(sT1)}, {tb << 4}, {s(sT0)}", f"s_and_b32 {s(sT2)}, {s(sT1)}, 0x30",
                                   f"s_bitcmp1_b32 {s(sT1)}, 6\ns_cselect_b32 {s(m)}, 0, 0xffff\ns_mov_b32 {s(m+1)}, 0",
                                   f"s_lshl_b64 {s(m,2)}, {s(m,2)}, {s(sT2)}"]
                        q += pack(it)
                    if k == 15 and not swap:
                        q += [[f"s_cmp_eq_u32 {s(sN)}, {s(sCHK)}", f"s_cbranch_scc1 {pfx}_chk", f"{pfx}_chkr:"]]
                    if k == 11:
                        if swap:
                            q += pack([f"s_mul_i32 {s(sSO)}, {s(sTT)}, 1280", f"s_add_u32 {s(sSO)}, {s(sSO)}, {V_OFF}"])
                        else:
                            q += pack([f"s_sub_u32 {s(sT0)}, {s(sN)}, {s(sNQ)}", f"s_lshr_b32 {s(sT0)}, {s(sT0)}, 1", f"s_mul_i32 {s(sT0)}, {s(sT0)}, {s(sP0)}", f"s_add_u32 {s(sT0)}, {s(sT0)}, {s(sCG)}",
                                f"s_lshl_b32 {s(sT0)}, {s(sT0)}, 11", f"s_mul_i32 {s(sSO)}, {s(sTT)}, {2*55296}", f"s_add_u32 {s(sSO)}, {s(sSO)}, {s(sT0)}",
                                f"s_add_u32 {s(sSO)}, {s(sSO)}, {H_OFF}",
                                f"s_lshl_b32 {s(sT0)}, {s(sCG)}, 1", f"s_add_u32 {s(sT0)}, {s(sT0)}, {s(sN)}", f"s_lshl_b32 {s(sT0)}, {s(sT0)}, 18",
                                f"s_lshl_b32 {s(sT1)}, {s(sTT)}, 9", f"s_add_u32 {s(sT0)}, {s(sT0)}, {s(sT1)}",
                                f"s_mov_b32 {s(sT1)}, 55296",
                                f"s_cmp_lt_u32 {s(sN)}, {s(sNQ)}\ns_cselect_b32 {s(sSO)}, {s(sT0)}, {s(sSO)}\ns_cselect_b32 {s(sT1)}, {4*32768}, {s(sT1)}",
                                f"s_add_u32 {s(sT3)}, {s(sSO)}, {s(sT1)}"])
                    if k == 3: q = dm
                    elif k == 19: q = spread(dm[:4 - Cfg.carry], [], {1: 1, 2: 2, 3: 3}[Cfg.carry])[:3]
                    else:
                        q = spread(dm[:3], q, Cfg.gap)
                        q = q[:3 * Cfg.gap] + dm[3:] + q[3 * Cfg.gap:]
                elif ct == 3 and k % 4 == 2:
                    while q and not q[-1]: q.pop()
                    assert not q, (k, q)
                    a(f"s_add_u32 m0, {s(sM)}, {(((k + 1) // 4 - 1) % 5) * 16384}")
                    if k + 1 == Cfg.pubk and not swap: a(f"s_cmp_eq_u32 {s(sN)}, {s(sPUB)}")
                elif q: a.ext([x for x in q.pop(0) if not (Cfg.x_body & 2 and " lds" in x)])
                a(mm(1))
                a("s_waitcnt lgkmcnt(4)")
                a.ext(trd(k + 1, ct))
        assert not q
        setprio(a, Cfg.prioGv)
        if STAMPS:
            for n in range(6):
                a(f"s_cmp_lg_u32 {s(sN)}, {n}"); a(f"s_cbranch_scc1 {pfx}_stm{tag}{n}"); stamp(a, f"mm{n}"); a(f"{pfx}_stm{tag}{n}:")
    def ep_stamp(tag):
        if STAMPS:
            for n in range(6):
                a(f"s_cmp_lg_u32 {s(sN)}, {n}"); a(f"s_cbranch_scc1 {pfx}_ste{tag}{n}"); stamp(a, f"ep{n}"); a(f"{pfx}_ste{tag}{n}:")
    a(f"s_cmp_eq_u32 {s(sNQ)}, 0")
    a(f"s_cbranch_scc1 {pfx}_toffn")
    a(f"s_cmp_lt_u32 {s(sCG)}, 10")
    a(f"s_cbranch_scc1 {pfx}_loop")
    a(f"v_lshrrev_b32 {v(t0)}, 4, {v(vL)}")
    a(f"v_lshlrev_b32 {v(t0)}, 4, {v(t0)}")
    for rt in range(2):
        for i in range(4): a(f"ds_bpermute_b32 {v(VR+4*rt+i)}, {v(t0)}, {v(vA[rt])} offset:{4*i}")
    a("s_waitcnt lgkmcnt(0)")
    a(f"{pfx}_vloop:")
    body("v", True)
    for ct in range(4):
        for rt in range(2):
            for i in range(4): a(f"v_mul_f32 {v(ACC+16*rt+4*ct+i)}, {v(ACC+16*rt+4*ct+i)}, {v(VR+4*rt+i)}")
        for rt in range(2):
            for j in range(2): a(f"v_cvt_pk_bf16_f32 {v(G+4*ct+2*rt+j)}, {v(ACC+16*rt+4*ct+2*j)}, {v(ACC+16*rt+4*ct+2*j+1)}")
        a(f"buffer_store_dwordx4 {v(G+4*ct,4)}, {v(VA+ct)}, {s(S_WS,4)}, {s(sSO)} offen{SC1}")
    ep_stamp("v")
    a(f"s_cmp_eq_u32 {s(sN)}, 1")
    a(f"s_cbranch_scc1 {pfx}_qdone")
    for ct in range(4): a(f"v_mov_b32 {v(VA+ct)}, {v(VA+4+ct)}")
    a(f"v_mov_b32 {v(V_NONCE)}, 0")
    a(f"s_mov_b32 {s(sN)}, 1")
    nonce_load(a, V_NONCE)
    a(f"s_branch {pfx}_vloop")
    for tag in "vn":
        a(f"{pfx}_sw{tag}:"); a(params_v()); a(f"s_branch {pfx}_swr{tag}")
    a(f"{pfx}_chk:")
    a(f"buffer_load_dword {v(vDCo)}, {v(vDR)}, {s(S_WS,4)}, 0 offen sc1")
    a(f"s_branch {pfx}_chkr")
    a(f"{pfx}_pub:")
    a(f"s_waitcnt vmcnt({4 + Cfg.carry if Cfg.pubk == 7 else 8})")
    a("s_barrier")
    a(f"s_mov_b32 {s(sPUB)}, 4")
    a(f"s_cmp_lg_u32 {s(S_WV)}, 0")
    a(f"s_cbranch_scc1 {pfx}_pubret")
    publish(a, sF)
    a(f"s_lshl_b32 {s(sF)}, {s(sRB)}, 4")
    a(f"s_add_u32 {s(sF)}, {s(sF)}, {s(sCG)}")
    a(f"s_lshl_b32 {s(sF)}, {s(sF)}, 6")
    a(f"s_add_u32 {s(sF)}, {s(sF)}, {F2_OFF}")
    if STAMPS:
        a(f"s_cmp_lg_u32 {s(sN)}, 2"); a(f"s_cbranch_scc1 {pfx}_pubret")
    stamp(a, "pub1")
    a(f"s_branch {pfx}_pubret")
    a(f"{pfx}_eq:")
    for j in range(2):
        for rt in range(2):
            b = ACC + 16 * rt + 8 * j; d = G + 8 * j + 4 * rt
            for r in range(8): a(f"v_mul_f32 {v(b+r)}, {v(b+r)}, {v(vA[rt])}")
            for r in range(4): a(f"v_cvt_pk_bf16_f32 {v(d+r)}, {v(b+2*r)}, {v(b+2*r+1)}")
            if rt == 1:
                for r2 in range(2):
                    d2 = G + 8 * j + 4 * r2
                    a(f"v_permlane16_swap_b32 {v(d2)}, {v(d2+2)}")
                    a(f"v_permlane16_swap_b32 {v(d2+1)}, {v(d2+3)}")
                a(f"s_mov_b64 exec, {s((sMA, sMB)[j],2)}")
                a(f"v_swap_b32 {v(G+8*j+2)}, {v(G+8*j+4)}")
                a(f"v_swap_b32 {v(G+8*j+3)}, {v(G+8*j+5)}")
                a("s_mov_b64 exec, -1")
                for r2 in range(2):
                    d2 = G + 8 * j + 4 * r2
                    a(f"buffer_store_dwordx4 {v(d2,4)}, {v(vST)}, {s(S_WS,4)}, {s(sT3 if j else sSO)} offen offset:{r2*256}{SC1}")
    ep_stamp("q")
    a(f"s_cmp_eq_u32 {s(sN)}, 1")
    a(f"s_cbranch_scc1 {pfx}_qdone")
    a(f"v_mov_b32 {v(V_NONCE)}, 0")
    a(f"s_mov_b32 {s(sN)}, 1")
    nonce_load(a, V_NONCE)
    a(f"s_branch {pfx}_loop")
    a(f"{pfx}_qdone:")
    nonce_check(a, f"{pfx}_nc", V_NONCE, sT0, sT1)
    a(f"s_mov_b32 {s(sN)}, 2")
    a(f"{pfx}_toffn:")
    ffn_consts()
    a(f"{pfx}_loop:")
    body("n", False)
    a(f"s_cmp_lt_u32 {s(sN)}, {s(sNQ)}")
    a(f"s_cbranch_scc1 {pfx}_eq")
    a(f"s_bitcmp1_b32 {s(sN)}, 0")
    a(f"s_cbranch_scc1 {pfx}_eu")
    for r0 in range(0, 32, 4):
        R = range(r0, r0 + 4); rt = r0 // 16
        for r in R: a(f"v_mul_f32 {v(G+r)}, {v(ACC+r)}, {v(ACC+r)}")
        for r in R: a(f"v_fma_f32 {v(G+r)}, {v(G+r)}, {v(vB[rt])}, {v(vA[rt])}")
        for r in R: a(f"v_mul_f32 {v(G+r)}, {v(G+r)}, {v(ACC+r)}")
        for r in R: a(f"v_exp_f32 {v(G+r)}, {v(G+r)}")
        for r in R: a(f"v_fma_f32 {v(G+r)}, {v(G+r)}, {v(vK[rt])}, {v(vK[rt])}")
        for r in R: a(f"v_rcp_f32 {v(G+r)}, {v(G+r)}")
        for r in R: a(f"v_mul_f32 {v(G+r)}, {v(G+r)}, {v(ACC+r)}")
    ep_stamp("g")
    a(f"s_add_u32 {s(sN)}, {s(sN)}, 1")
    a(f"s_branch {pfx}_loop")
    a(f"{pfx}_eu:")
    a(f"s_cmp_eq_u32 {s(sN)}, 5")
    a(f"s_cbranch_scc1 {pfx}_heavy")
    upv = []; ups = []
    for p in range(4):
        pv = [f"v_mul_f32 {v(ACC+r)}, {v(ACC+r)}, {v(G+r)}" for r in range(8 * p, 8 * p + 8)]
        pv += [f"v_cvt_pk_bf16_f32 {v(G+8*p+j)}, {v(ACC+8*p+2*j)}, {v(ACC+8*p+2*j+1)}" for j in range(4)]
        ps = f"buffer_store_dwordx4 {v(G+8*p,4)}, {v(vST)}, {s(S_WS,4)}, {s(sT3 if p >> 1 else sSO)} offen offset:{(p&1)*1024}{SC1}"
        a.ext(pv); a(ps); upv += pv; ups.append(ps)
    ep_stamp("u")
    a(f"s_add_u32 {s(sN)}, {s(sN)}, 1")
    a(f"s_cmp_lt_u32 {s(sN)}, {s(sNT)}")
    a(f"s_cbranch_scc1 {pfx}_loop")
    a(f"s_cmp_lg_u32 {s(sNQ)}, 0")
    a(f"s_cbranch_scc1 {pfx}_nc2_ok")
    a(f"v_mov_b32 {v(V_NONCE)}, 0")
    a("s_nop 0")
    nonce_check(a, f"{pfx}_nc2", V_NONCE, sT0, sT1)
    a(f"s_lshl_b32 {s(sF)}, {s(sRB)}, 4")
    a(f"s_add_u32 {s(sF)}, {s(sF)}, {s(sCG)}")
    a(f"s_lshl_b32 {s(sF)}, {s(sF)}, 6")
    a(f"s_add_u32 {s(sF)}, {s(sF)}, {F2_OFF}")
    a(f"s_sub_u32 {s(sT0)}, {s(sCG)}, 10")
    a(f"s_lshl_b32 {s(sPUB)}, {s(sT0)}, 6")
    a(f"s_add_u32 {s(sPUB)}, {s(sPUB)}, {s(sTT)}")
    a(f"s_lshl_b32 {s(sT0)}, {s(sT0)}, 3")
    a(f"s_lshr_b32 {s(sT1)}, {s(sRB)}, 1")
    a(f"s_add_u32 {s(sT0)}, {s(sT0)}, {s(sT1)}")
    a(f"s_and_b32 {s(sT1)}, {s(sRB)}, 1")
    a(f"s_lshl_b32 {s(sT1)}, {s(sT1)}, 6")
    a(f"s_add_u32 {s(sT0)}, {s(sT0)}, {s(sT1)}")
    a(f"s_lshl_b32 {s(sT0)}, {s(sT0)}, 6")
    a(f"s_add_u32 {s(sT3)}, {s(sT0)}, {F4_OFF}")
    a("s_waitcnt vmcnt(4) lgkmcnt(0)")
    a("s_barrier")
    gen_relayout(a, pfx, sPUB, vL, (58, 59, 60, 61, 96, 97, 98, 101, 47, 48, 49), sF, sT3)
    g2_start(a, "g2l", [], [])
    a(f"s_branch {pfx}_g1end")
    a(f"{pfx}_heavy:")
    a(f"s_add_u32 {s(sF)}, {s(sF)}, {F2B_OFF - F2_OFF}")
    g2_start(a, "g2h", upv, ups)
    a(f"{pfx}_g1end:")

def gen_att(a, pfx, idreg):
    vL, vK1, vK2, vV0, vV1, vQ1, vQ2 = 1, 2, 3, 4, 5, 20, 21
    P, S, O, Q, KV = 24, 32, 64, 128, 152
    sHD, sQB, sKH, sQH, sK1, sK2, sV, sG, sIT = 41, 42, 43, 44, 45, 46, 47, 48, 49
    sK1b, sK2b, sVb = 50, 51, 52
    sT0, sT1, sT2, sT3 = 54, 55, 56, 57
    sVM = 58
    sQ = 96
    sLB, sDK, sDV, sG4 = 53, 60, 61, 100
    vLin, vLK1, vLK2, vLV, vMB, vMI, vM = 208, 209, 210, 211, 212, 213, 214
    vXW, vXR, vOM, vOL = 215, 216, 217, 218
    sOM, sOL, sF3 = 28, 30, 31
    a(f"v_and_b32 {v(vL)}, 63, v0")
    a(f"v_lshrrev_b32 v6, 6, v0")
    a(f"s_and_b32 {s(sT0)}, {s(idreg)}, 7")
    a(f"v_readfirstlane_b32 {s(S_WV)}, v6")
    a(f"s_lshl_b32 {s(sHD)}, {s(sT0)}, 2")
    a(f"s_bfe_u32 {s(sT1)}, {s(idreg)}, {3 | (2<<16)}")
    a(f"s_add_u32 {s(sHD)}, {s(sHD)}, {s(sT1)}")
    if Cfg.cpf == 1:
        a(f"s_getpc_b64 {s(sT0,2)}")
        a(f"{pfx}_pc:")
        a(f"s_sub_u32 {s(sT0)}, {s(sT0)}, {pfx}_pc-{NAME}_kernel")
        a(f"s_subb_u32 {s(sT1)}, {s(sT1)}, 0")
        a(f"s_bfe_u32 {s(sT2)}, {s(idreg)}, {3 | (5<<16)}")
        a(f"s_lshl_b32 {s(sT2)}, {s(sT2)}, 2")
        a(f"s_add_u32 {s(sT2)}, {s(sT2)}, {s(S_WV)}")
        a(f"s_lshl_b32 {s(sT2)}, {s(sT2)}, 8")
        a(f"s_cmp_ge_u32 {s(sT2)}, {NAME}_kernel_end-{NAME}_kernel-256")
        a(f"s_cbranch_scc1 {pfx}_nopf")
        a(f"v_lshl_add_u32 v12, {v(vL)}, 2, {s(sT2)}")
        a(f"global_load_dword v13, v12, {s(sT0,2)}")
        a(f"{pfx}_nopf:")

    a(f"s_bfe_u32 {s(sQB)}, {s(idreg)}, {5 | (3<<16)}")
    a(f"s_and_b32 {s(sQH)}, {s(S_WV)}, 1")
    a(f"s_lshr_b32 {s(sKH)}, {s(S_WV)}, 1")
    a(f"s_lshr_b32 {s(sT0)}, {s(sHD)}, 1")
    a(f"s_mul_i32 {s(sT0)}, {s(sT0)}, 5")
    a(f"s_and_b32 {s(sT1)}, {s(sHD)}, 1")
    a(f"s_mul_i32 {s(sT2)}, {s(sT1)}, 3")
    a(f"s_add_u32 {s(sT2)}, {s(sT2)}, {s(sT0)}")
    a(f"s_lshl_b32 {s(sK1b)}, {s(sT2)}, 15")
    a(f"s_add_u32 {s(sT0)}, {s(sT0)}, 2")
    a(f"s_lshl_b32 {s(sK2b)}, {s(sT0)}, 15")
    a(f"s_lshl_b32 {s(sT1)}, {s(sT1)}, 8")
    a(f"s_add_u32 {s(sK2b)}, {s(sK2b)}, {s(sT1)}")
    a(f"v_and_b32 v6, 31, {v(vL)}")
    a(f"v_lshrrev_b32 v7, 5, {v(vL)}")
    a(f"v_lshlrev_b32 {v(vQ2)}, 4, v6")
    a(f"v_lshl_add_u32 {v(vQ1)}, v7, 15, {v(vQ2)}")
    a(f"v_and_b32 {v(vK2)}, 7, v6")
    a(f"v_bfe_u32 v8, v6, 3, 1")
    a(f"v_lshl_add_u32 {v(vK2)}, v8, 4, {v(vK2)}")
    a(f"v_lshrrev_b32 v8, 4, v6")
    a(f"v_lshl_add_u32 {v(vK2)}, v8, 3, {v(vK2)}")
    a(f"v_lshlrev_b32 {v(vK2)}, 4, {v(vK2)}")
    a(f"v_lshl_add_u32 {v(vK1)}, v7, 15, {v(vK2)}")
    a(f"v_mul_u32_u24 {v(vV0)}, 320, v7")
    a(f"v_add_u32 {v(vV0)}, {v(vV0)}, {v(vQ2)}")
    for r in (vQ2, vK2):
        a(f"v_lshrrev_b32 v8, 8, {v(r)}")
        a(f"v_and_b32 {v(r)}, 0xff, {v(r)}")
        a(f"v_lshl_add_u32 {v(r)}, v8, 3, {v(r)}")
    a(f"v_add_u32 {v(vV1)}, 640, {v(vV0)}")
    a(f"s_mov_b32 {s(sVM)}, 0xfffff")
    a(f"s_mov_b32 {s(sVM+1)}, 0xfffff")
    a(f"v_cmp_eq_u32 vcc, 20, v6")
    a(f"v_mov_b32 v8, 0x3f803f80")
    a("s_nop 0")
    a(f"v_cndmask_b32 v10, 0, v8, vcc")
    for u in range(4):
        for r in range(4, 12): a(f"v_mov_b32 {v(KV+14*u+r)}, v10")
    for q in range(4):
        a(f"v_mov_b32 {v(Q+6*q+4)}, 0"); a(f"v_mov_b32 {v(Q+6*q+5)}, 0")
    for r in range(64): a(f"v_mov_b32 {v(O+r)}, 0")
    for r in range(8): a(f"v_mov_b32 {v(P+r)}, 0")
    a("s_waitcnt lgkmcnt(0)")
    srd(a, S_WS, P_WS, WS_BYTES)
    if Cfg.fused:
        a(f"v_mov_b32 {v(V_NONCE)}, 0")
        a("s_nop 0")
        nonce_check(a, f"{pfx}_nc", 12, sT0, sT1)
        if Cfg.wpf:
            a(f"s_and_b32 {s(sT0)}, {s(idreg)}, 255")
            a(f"s_lshl_b32 {s(sT0)}, {s(sT0)}, 2")
            a(f"s_add_u32 {s(sT0)}, {s(sT0)}, {s(S_WV)}")
            srd(a, S_B, P_WD, 1728 * 1280)
            srd(a, S_C, P_WO, 640 * 1280)
            a(f"s_mul_i32 {s(sT1)}, {s(sT0)}, {17*128}")
            a(f"s_mul_i32 {s(sT2)}, {s(sT0)}, {7*128}")
            a(f"v_lshlrev_b32 v12, 7, {v(vL)}")
            a("s_mov_b64 exec, 0x1ffff")
            a(f"buffer_load_dword v13, v12, {s(S_B,4)}, {s(sT1)} offen")
            a("s_mov_b64 exec, 0x7f")
            a(f"buffer_load_dword v14, v12, {s(S_C,4)}, {s(sT2)} offen")
            a("s_mov_b64 exec, -1")
            a("s_waitcnt vmcnt(0)")
        pass
    a(f"s_lshl_b32 {s(sT0)}, {s(sQB)}, 12")
    a(f"s_lshl_b32 {s(sT1)}, {s(sQH)}, 11")
    a(f"s_add_u32 {s(sT0)}, {s(sT0)}, {s(sT1)}")
    a(f"s_lshl_b32 {s(sT1)}, {s(sKH)}, 10")
    a(f"s_add_u32 {s(sT3)}, {s(sT0)}, {s(sT1)}")
    a(f"s_xor_b32 {s(sT2)}, {s(sT3)}, 1024")
    a(f"s_add_u32 {s(sQ)}, {s(sT2)}, {s(sK1b)}")
    a(f"s_add_u32 {s(sQ+1)}, {s(sT3)}, {s(sK1b)}")
    a(f"s_add_u32 {s(sQ+2)}, {s(sT2)}, {s(sK2b)}")
    a(f"s_add_u32 {s(sQ+3)}, {s(sT3)}, {s(sK2b)}")
    a(f"s_lshl_b32 {s(sT0)}, {s(sKH)}, 14")
    a(f"s_add_u32 {s(sT0)}, {s(sT0)}, {80*32768}")
    a(f"s_add_u32 {s(sK1b)}, {s(sK1b)}, {s(sT0)}")
    a(f"s_add_u32 {s(sK2b)}, {s(sK2b)}, {s(sT0)}")
    a(f"s_mul_i32 {s(sVb)}, {s(sHD)}, 81920")
    a(f"s_mul_i32 {s(sT0)}, {s(sKH)}, 40960")
    a(f"s_add_u32 {s(sVb)}, {s(sVb)}, {s(sT0)}")
    a(f"s_add_u32 {s(sVb)}, {s(sVb)}, {V_OFF}")
    a(f"s_mov_b32 {s(sG)}, {s(sQB)}")
    def setgrp():
        return [f"s_lshl_b32 {s(sT0)}, {s(sG)}, 11", f"s_add_u32 {s(sK1)}, {s(sK1b)}, {s(sT0)}", f"s_add_u32 {s(sK2)}, {s(sK2b)}, {s(sT0)}",
                f"s_mul_i32 {s(sT0)}, {s(sG)}, 5120", f"s_add_u32 {s(sV)}, {s(sVb)}, {s(sT0)}"]
    a.ext(setgrp())
    a(f"s_mov_b32 {s(sIT)}, 4")
    a(f"s_mul_i32 {s(sT0)}, {s(sKH)}, 10240")
    a(f"s_mul_i32 {s(sLB)}, {s(sQH)}, 5120")
    a(f"s_add_u32 {s(sLB)}, {s(sLB)}, {s(sT0)}")
    a(f"v_lshlrev_b32 {v(vLin)}, 4, {v(vL)}")
    a(f"v_add_u32 {v(vLK1)}, {s(sT0)}, {v(vLin)}")
    a(f"s_add_u32 {s(sT1)}, {s(sT0)}, 2048")
    a(f"v_add_u32 {v(vLV)}, {s(sT1)}, {v(vV0)}")
    a(f"s_add_u32 {s(sT1)}, {s(sT0)}, 4608")
    a(f"v_add_u32 {v(vLK2)}, {s(sT1)}, {v(vK2)}")
    a(f"s_lshl_b32 {s(sT0)}, {s(sQH)}, 10")
    a(f"s_add_u32 {s(sDK)}, {s(sK1b)}, {s(sT0)}")
    a(f"s_add_u32 {s(sT0)}, {s(sK2b)}, {s(sT0)}")
    a(f"s_mul_i32 {s(sT1)}, {s(sQH)}, 2560")
    a(f"s_add_u32 {s(sDV)}, {s(sVb)}, {s(sT1)}")
    a(f"s_add_u32 {s(sT1)}, {s(sDV)}, 2048")
    a(f"v_add_u32 {v(vMB)}, {s(sT1)}, {v(vLin)}")
    a(f"v_mov_b32 {v(vMI)}, 5120")
    a(f"v_bfe_u32 v8, {v(vL)}, 4, 1")
    a(f"v_and_b32 v9, 15, {v(vL)}")
    a(f"v_lshlrev_b32 v9, 4, v9")
    a(f"v_lshl_add_u32 v8, v8, 9, v9")
    a("s_mov_b32 exec_lo, 0")
    a(f"v_add_u32 {v(vMB)}, {s(sT0)}, v8")
    a(f"v_mov_b32 {v(vMI)}, 2048")
    a("s_mov_b32 exec_lo, -1")
    a(f"s_mul_i32 {s(sT0)}, {s(S_WV)}, 6144")
    a(f"s_xor_b32 {s(sT1)}, {s(S_WV)}, 2")
    a(f"s_mul_i32 {s(sT1)}, {s(sT1)}, 6144")
    a(f"v_add_u32 {v(vXW)}, {s(sT0)}, {v(vLin)}")
    a(f"v_add_u32 {v(vXR)}, {s(sT1)}, {v(vLin)}")
    a(f"v_bfe_u32 v8, {v(vL)}, 4, 1")
    a(f"v_lshl_add_u32 {v(vOM)}, v8, 14, v9")
    a(f"v_lshl_add_u32 {v(vOM)}, v7, 8, {v(vOM)}")
    a(f"s_lshl_b32 {s(sT0)}, {s(sQB)}, 2")
    a(f"s_lshl_b32 {s(sT1)}, {s(sQH)}, 1")
    a(f"s_add_u32 {s(sT0)}, {s(sT0)}, {s(sT1)}")
    a(f"s_add_u32 {s(sT0)}, {s(sT0)}, {s(sKH)}")
    a(f"s_lshl_b32 {s(sF3)}, {s(sT0)}, 5")
    a(f"s_add_u32 {s(sF3)}, {s(sF3)}, {s(sHD)}")
    a(f"s_lshl_b32 {s(sF3)}, {s(sF3)}, 6")
    a(f"s_add_u32 {s(sF3)}, {s(sF3)}, {F3_OFF}")
    a(f"s_lshl_b32 {s(sT1)}, {s(sHD)}, 9")
    a(f"s_lshl_b32 {s(sT2)}, {s(sT0)}, 16")
    a(f"s_add_u32 {s(sOM)}, {s(sT1)}, {s(sT2)}")
    a(f"s_add_u32 {s(sOM)}, {s(sOM)}, {O_OFF}")
    a(f"s_add_u32 {s(sOM+1)}, {s(sOM)}, 32768")
    a(f"s_lshl_b32 {s(sT2)}, {s(sT0)}, 14")
    a(f"s_add_u32 {s(sOL)}, {s(sT1)}, {s(sT2)}")
    a(f"s_add_u32 {s(sOL)}, {s(sOL)}, {OL_OFF}")
    if Cfg.fused:
        a(f"s_mul_i32 {s(sT0)}, {s(sHD)}, 20")
        a(f"s_add_u32 {s(sT1)}, {s(sT0)}, 19")
        a(f"s_lshr_b32 {s(sT0)}, {s(sT0)}, 7")
        a(f"s_lshr_b32 {s(sT1)}, {s(sT1)}, 7")
        a(f"s_sub_u32 {s(sT1)}, {s(sT1)}, {s(sT0)}")
        a(f"v_bfe_u32 v12, {v(vL)}, 3, 1")
        a(f"v_mul_u32_u24 v12, {s(sT1)}, v12")
        a(f"v_add_u32 v12, {s(sT0)}, v12")
        a(f"v_bfe_u32 v13, {v(vL)}, 4, 1")
        a(f"v_mad_u32_u24 v13, v13, 5, 5")
        a(f"s_lshl_b32 {s(sT2)}, {s(sKH)}, 3")
        a(f"v_and_b32 v14, 7, {v(vL)}")
        a(f"v_add_u32 v14, {s(sT2)}, v14")
        a(f"s_lshl_b32 {s(sT2)}, {s(sQB)}, 1")
        a(f"s_add_u32 {s(sT2)}, {s(sT2)}, {s(sQH)}")
        a("s_mov_b32 exec_lo, 0")
        a(f"v_mov_b32 v13, 0")
        a(f"v_mov_b32 v14, {s(sT2)}")
        a("s_mov_b32 exec_lo, -1")
        a(f"v_add_u32 v12, v12, v13")
        a(f"v_lshl_add_u32 v12, v12, 4, v14")
        a(f"v_lshlrev_b32 v12, 6, v12")
        a(f"s_nop 0")
        a(f"v_readlane_b32 {s(sT2)}, v12, 31")
        a(f"s_mov_b32 {s(sT3)}, {F1_OFF}")
        a(f"s_nop 1")
        a(f"s_add_u32 {s(sT2)}, {s(sT2)}, {s(sT3)}")
        stamp(a, "a_ready")
        setprio(a, 3)
        if Cfg.p0s >= 0: poll(a, f"{pfx}_p0", None, sT2, 13, sT0, Cfg.p0s)
        poll(a, f"{pfx}_p1", 12, sT3, 13, sT0, Cfg.p1s)
        stamp(a, "a_go")
    for q in range(4):
        a(f"buffer_load_dwordx4 {v(Q+6*q,4)}, {v(vQ1)}, {s(S_WS,4)}, {s(sQ+(q>>1))} offen offset:{(q&1)*512}{SC1}")
    a("s_mov_b32 exec_hi, 0")
    for q in range(4):
        a(f"buffer_load_dwordx2 {v(Q+6*q+4,2)}, {v(vQ2)}, {s(S_WS,4)}, {s(sQ+2+(q>>1))} offen offset:{(q&1)*512}{SC1}")
    a("s_mov_b32 exec_hi, -1")
    def kvload(u):
        b = KV + 14 * u
        return [f"buffer_load_dwordx4 {v(b,4)}, {v(vK1)}, {s(S_WS,4)}, {s(sK1)} offen offset:{u*512}{SC1}",
                f"buffer_load_dwordx2 {v(b+12,2)}, {v(vK2)}, {s(S_WS,4)}, {s(sK2)} offen offset:{u*512}{SC1}",
                f"s_mov_b64 exec, {s(sVM,2)}",
                f"buffer_load_dwordx4 {v(b+4,4)}, {v(vV0)}, {s(S_WS,4)}, {s(sV)} offen offset:{u*1280}{SC1}",
                f"buffer_load_dwordx4 {v(b+8,4)}, {v(vV1)}, {s(S_WS,4)}, {s(sV)} offen offset:{u*1280}{SC1}",
                "s_mov_b64 exec, -1"]
    for u in range(3): a.ext(kvload(u))
    setprio(a, Cfg.prioA)
    stamp(a, "issued")
    a("s_waitcnt vmcnt(8)")
    stamp(a, "q_kv0")
    a(mf32(S, KV, Q, "0"))
    a(mf8(S, KV + 12, Q + 4))
    a("s_nop 11")
    def kvread(u, nxt):
        b = KV + 14 * u; o = nxt * 20480 + (u >> 1) * 5120; sub = u & 1
        return [[f"ds_read_b128 {v(b,4)}, {v(vLK1)} offset:{o+sub*1024}",
                 f"ds_read_b64 {v(b+12,2)}, {v(vLK2)} offset:{o+sub*256}"],
                [f"s_mov_b64 exec, {s(sVM,2)}",
                 f"ds_read_b128 {v(b+4,4)}, {v(vLV)} offset:{o+sub*1280}",
                 f"ds_read_b128 {v(b+8,4)}, {v(vLV)} offset:{o+sub*1280+640}",
                 "s_mov_b64 exec, -1"]]
    def loop(tag, lds):
        a(".p2align 3")
        a(f"{pfx}_loop{tag}:")
        ndma = [0, 0, 0, 0]
        for u in range(4):
            b = KV + 14 * u; bn = KV + 14 * ((u + 1) & 3); bp = KV + 14 * ((u - 1) & 3)
            items = []
            if not lds:
                if u == 0: items = [f"s_xor_b32 {s(sG4)}, {s(sG)}, 4", f"s_add_u32 {s(sG)}, {s(sG)}, 1", f"s_and_b32 {s(sG)}, {s(sG)}, 7"] + setgrp()
                dm = lambda va, so, off: f"buffer_load_dwordx4 {v(va)}, {s(S_WS,4)}, {so} offen offset:{off} sc1 lds"
                if u == 1: items = [f"s_lshl_b32 {s(sT0)}, {s(sG4)}, 11", f"s_mov_b32 m0, {s(sLB)}", [f"s_add_u32 {s(sT0)}, {s(sT0)}, {s(sDK)}", dm(vK1, s(sT0), 0)],
                                    f"s_add_u32 m0, {s(sLB)}, 512", [f"s_mul_i32 {s(sT1)}, {s(sG4)}, 5120", dm(vK1, s(sT0), 512)],
                                    f"s_add_u32 m0, {s(sLB)}, 2048"]
                if u == 2: items = [[f"s_add_u32 {s(sT1)}, {s(sT1)}, {s(sDV)}", dm(vLin, s(sT1), 0)],
                                    [f"v_mad_u32_u24 {v(vM)}, {v(vMI)}, {s(sG4)}, {v(vMB)}"], [dm(vLin, s(sT1), 1024)],
                                    f"s_add_u32 m0, {s(sLB)}, 4096", [f"s_add_u32 {s(sLB)}, {s(sLB)}, 20480", dm(vM, "0", 0)]]
            if lds and u == 1:
                items = [f"s_cmp_eq_u32 {s(sIT)}, 1", [f"s_cbranch_scc1 {pfx}_mb", f"{pfx}_mbr:"]]
            if u == 3:
                items = [f"s_sub_u32 {s(sIT)}, {s(sIT)}, 1", f"s_cmp_lg_u32 {s(sIT)}, 0"]
                if lds: items += [f"v_add_u32 {v(r)}, 0x5000, {v(r)}" for r in (vLK1, vLK2, vLV)]
            ld = kvread((u + 3) & 3, u > 0) if lds else [kvload((u + 3) & 3)[:2], kvload((u + 3) & 3)[2:]]
            if Cfg.x_nokv: ld = [[], []]
            vmw = {0: 8, 1: 10, 2: 13, 3: 11}[u]
            for q in range(4):
                Sc = S + 16 * (q & 1); Sn = S + 16 * ((q + 1) & 1)
                qn, qp = (q + 1) & 3, (q - 1) & 3
                kn = b if q < 3 else bn
                kp = b if q > 0 else bp
                ex = [f"v_exp_f32 {v(Sc+i)}, {v(Sc+i)}" for i in range(16)]
                cv = [f"v_cvt_pk_bf16_f32 {v(P+i)}, {v(Sc+2*i)}, {v(Sc+2*i+1)}" for i in range(8)]
                def free():
                    if items:
                        it = items.pop(0)
                        a.ext(it if isinstance(it, list) else [it])
                a(mf32(Sn, kn, Q + 6 * qn, "0"))
                if q == 0: a.ext(ld[0])
                else: free()
                a.ext(ex[0:4])
                a(mf32(O + 16 * qp, kp + 8, P + 4))
                if q == 0: a.ext(ld[1])
                else: free()
                a.ext(ex[4:8] + cv[0:2])
                a(mf8(Sn, kn + 12, Q + 6 * qn + 4))
                a.ext(ex[8:9] + cv[2:4] + ex[9:12])
                a(mf32(O + 16 * q, b + 4, P))
                if q == 2:
                    assert not any("lds" in str(it) for it in items)
                    a("s_waitcnt vmcnt(0) lgkmcnt(8)" if lds else f"s_waitcnt vmcnt({vmw})")
                else: free()
                a.ext(ex[12:16] + cv[4:8])
            assert not items
        a(f"s_cbranch_scc1 {pfx}_loop{tag}")
    loop("a", False)
    a(f"s_mov_b32 {s(sIT)}, 4")
    a("s_waitcnt vmcnt(4)")
    a("s_barrier")
    stamp(a, "half")
    a(f"s_branch {pfx}_loopb")
    a(f"{pfx}_mb:")
    a("s_barrier")
    a(f"s_branch {pfx}_mbr")
    loop("b", True)
    for j in range(2): a(f"ds_write_b128 {v(vXW)}, {v(O+4*j,4)} offset:{j*1024}")
    a(mf32(O + 48, KV + 14 * 3 + 8, P + 4))
    stamp(a, "loopdone")
    a(f"ds_write_b128 {v(vXW)}, {v(O+8,4)} offset:2048")
    for j in range(3): a(f"ds_write_b128 {v(vXW)}, {v(O+16+4*j,4)} offset:{3072+j*1024}")
    a("s_waitcnt lgkmcnt(0)")
    a("s_barrier")
    R = S
    for t in range(2):
        for j in (2, 0, 1): a(f"ds_read_b128 {v(R+16*t+4*j,4)}, {v(vXR)} offset:{t*3072+j*1024}")
    for t in range(2):
        o = O + 32 + 16 * t; r = R + 16 * t; d = (14, P)[t]
        pa = lambda i: f"v_pk_add_f32 {v(o+i,2)}, {v(o+i,2)}, {v(r+i,2)}"
        a(f"s_waitcnt lgkmcnt({5-3*t})")
        a(f"v_add_f32 v12, {v(o+8)}, {v(r+8)}")
        a(f"v_add_f32 v13, {v(o+8)}, {v(r+8)}")
        a(pa(8)); a(pa(10))
        a("v_permlane32_swap_b32 v12, v13")
        a(f"s_waitcnt lgkmcnt({3-3*t})")
        a(f"v_rcp_f32 v12, v13")
        for i in range(0, 8, 2): a(pa(i))
        for i in range(0, 12, 2): a(f"v_pk_mul_f32 {v(o+i,2)}, {v(o+i,2)}, v[12:13] op_sel_hi:[1,0]")
        for j in range(6): a(f"v_cvt_pk_bf16_f32 {v(d+j if j < 4 else 18+2*t+j-4)}, {v(o+2*j)}, {v(o+2*j+1)}")
        a(f"buffer_store_dwordx4 {v(d,4)}, {v(vOM)}, {s(S_WS,4)}, {s(sOM+t)} offen{SC1}")
    a("s_mov_b32 exec_hi, 0")
    a(f"buffer_store_dwordx4 v[18:21], {v(vLin)}, {s(S_WS,4)}, {s(sOL)} offen{SC1}")
    stamp(a, "o_stored")
    a("s_waitcnt vmcnt(0)")
    publish(a, sF3)
    stamp(a, "o_pub")

def gen_relayout(a, pfx, idreg, vL, sT, sFH, sFR):
    sK, sC, sPA, sPB, sPC, sPD, sB, sM, sD0, sD1, sF1 = sT
    SW = S_C
    T = 160
    IR, CH = T + 8, T + 13
    a(f"s_mov_b32 {s(SW+3)}, 0x00020000")
    for i in range(5):
        a(f"v_add_u32 {v(T)}, {64*i}, {v(vL)}")
        a(f"v_mul_u32_u24 {v(IR+i)}, 6554, {v(T)}")
        a(f"v_lshrrev_b32 {v(IR+i)}, 16, {v(IR+i)}")
        a(f"v_mul_u32_u24 {v(CH+i)}, 10, {v(IR+i)}")
        a(f"v_sub_u32 {v(CH+i)}, {v(T)}, {v(CH+i)}")
        a(f"v_lshlrev_b32 {v(CH+i)}, 4, {v(CH+i)}")
    a(f"s_mul_i32 {s(sM)}, {s(S_WV)}, 5120")
    a(f"s_mov_b32 {s(sF1)}, 0")
    a(f"{pfx}_rl_loop:")
    a(f"s_and_b32 {s(sC)}, {s(idreg)}, 7")
    a(f"s_lshr_b32 {s(sK)}, {s(idreg)}, 3")
    a(f"s_cmp_lt_u32 {s(sK)}, 54")
    a(f"s_cselect_b32 {s(SW)}, {s(P_WD)}, {s(P_WO)}")
    a(f"s_cselect_b32 {s(SW+1)}, {s(P_WD+1)}, {s(P_WO+1)}")
    a(f"s_mov_b32 {s(sB)}, {640*1280}")
    a(f"s_cselect_b32 {s(SW+2)}, {1728*1280}, {s(sB)}")
    a(f"s_cselect_b32 {s(sPA)}, 8, 20")
    a(f"s_cselect_b32 {s(sPC)}, 16, 8")
    a(f"s_cselect_b32 {s(sPD)}, 0, 54")
    a(f"s_cselect_b32 {s(sD1)}, 32, 40")
    a(f"s_cmp_ge_u32 {s(sK)}, 70")
    a(f"s_cselect_b32 {s(sPA)}, 80, {s(sPA)}")
    a(f"s_cselect_b32 {s(sPB)}, 40, 4")
    a(f"s_cselect_b32 {s(sPC)}, 20, {s(sPC)}")
    a(f"s_cselect_b32 {s(sPD)}, 70, {s(sPD)}")
    a(f"s_cselect_b32 {s(sD1)}, 160, {s(sD1)}")
    a(f"s_cselect_b32 {s(sB)}, 16, 0")
    a(f"s_sub_u32 {s(sPD)}, {s(sK)}, {s(sPD)}")
    a(f"s_mul_i32 {s(sPD)}, {s(sPD)}, {s(sD1)}")
    a(f"s_add_u32 {s(sB)}, {s(sB)}, {s(sPD)}")
    a(f"s_mul_i32 {s(sB)}, {s(sB)}, 1280")
    a(f"s_mul_i32 {s(sPD)}, {s(sC)}, 160")
    a(f"s_add_u32 {s(sB)}, {s(sB)}, {s(sPD)}")
    a(f"s_movk_i32 {s(sPD)}, 1280")
    for i in range(5):
        r, t = T, T + 1
        a(f"v_and_b32 {v(r)}, 3, {v(IR+i)}")
        a(f"v_lshrrev_b32 {v(t)}, 4, {v(IR+i)}")
        a(f"v_mad_u32_u24 {v(r)}, {v(t)}, {s(sPA)}, {v(r)}")
        a(f"v_bfe_u32 {v(t)}, {v(IR+i)}, 3, 1")
        a(f"v_mad_u32_u24 {v(r)}, {v(t)}, {s(sPB)}, {v(r)}")
        a(f"v_bfe_u32 {v(t)}, {v(IR+i)}, 2, 1")
        a(f"v_mad_u32_u24 {v(r)}, {v(t)}, {s(sPC)}, {v(r)}")
        a(f"s_add_u32 m0, {s(sM)}, {i*1024}")
        a(f"v_mad_u32_u24 {v(r)}, {v(r)}, {s(sPD)}, {v(CH+i)}")
        if not Cfg.x_norl & 1: a(f"buffer_load_dwordx4 {v(r)}, {s(SW,4)}, {s(sB)} offen lds")
    a(f"s_mul_i32 {s(sD1)}, {s(sC)}, 74")
    a(f"s_add_u32 {s(sD1)}, {s(sD1)}, {s(sK)}")
    a(f"s_mul_i32 {s(sD1)}, {s(sD1)}, 5120")
    a(f"s_add_u32 {s(sD1)}, {s(sD1)}, {WR_OFF}")
    a(f"s_cmp_ge_u32 {s(idreg)}, 384")
    a(f"s_cbranch_scc1 {pfx}_rl_two")
    a(f"s_mov_b32 {s(sD0)}, {s(sD1)}")
    a(f"s_add_u32 {s(idreg)}, {s(idreg)}, 384")
    a(f"s_add_u32 {s(sM)}, {s(sM)}, 20480")
    a(f"s_cmp_lt_u32 {s(idreg)}, 592")
    a(f"s_cbranch_scc1 {pfx}_rl_loop")
    a(f"s_branch {pfx}_rl_one")
    a(f"{pfx}_rl_two:")
    a(f"s_mov_b32 {s(sF1)}, 1")
    a(f"{pfx}_rl_one:")
    a(f"s_mul_i32 {s(sM)}, {s(S_WV)}, 5120")
    a(f"v_lshrrev_b32 {v(T)}, 4, {v(vL)}")
    a(f"v_bfe_u32 {v(T+1)}, {v(vL)}, 2, 2")
    a(f"v_lshl_add_u32 {v(T)}, {v(T)}, 3, {v(T+1)}")
    a(f"v_mul_u32_u24 {v(T)}, 160, {v(T)}")
    a(f"v_and_b32 {v(T+1)}, 3, {v(vL)}")
    a(f"v_mad_u32_u24 {v(T)}, {v(T+1)}, 40, {v(T)}")
    a(f"v_add_u32 {v(T)}, {s(sM)}, {v(T)}")
    a(f"v_lshlrev_b32 {v(T+1)}, 4, {v(vL)}")
    a(f"v_add_u32 {v(T+2)}, 4096, {v(T+1)}")
    a("s_waitcnt vmcnt(0)")
    a("s_barrier")
    a(f"s_cmp_lg_u32 {s(S_WV)}, 0")
    a(f"s_cbranch_scc1 {pfx}_rl_np")
    publish(a, sFH)
    a(f"{pfx}_rl_np:")
    pass
    for z in range(2):
        D = T + 20 + 20 * z
        if z:
            a(f"s_cmp_eq_u32 {s(sF1)}, 0")
            a(f"s_cbranch_scc1 {pfx}_rl_fin")
        for mt in range(5):
            for u in range(2):
                a(f"ds_read_b64_tr_b16 {v(D+4*mt+2*u,2)}, {v(T)} offset:{z*20480+u*640+8*mt}")
        a("s_waitcnt lgkmcnt(0)")
        for mt in range(5 if not Cfg.x_norl & 2 else 0):
            a(f"buffer_store_dwordx4 {v(D+4*mt,4)}, {v(T+1 if mt < 4 else T+2)}, {s(S_WS,4)}, {s(sD1 if z else sD0)} offen offset:{(mt&3)*1024} sc1")
    a(f"{pfx}_rl_fin:")
    a("s_waitcnt vmcnt(0)")
    a("s_barrier")
    a(f"s_cmp_lg_u32 {s(S_WV)}, 0")
    a(f"s_cbranch_scc1 {pfx}_rl_done")
    publish(a, sFR)
    stamp(a, "rl_pub")
    a(f"{pfx}_rl_done:")

class G2:
    vL, vF, vF2, vW4, vXO = 1, 2, 3, 4, 5
    vBA, vBR = 6, 10
    vFA, vFR = 7, 8
    XR, AS, AD, HF = 12, 22, 96, 116
    WFS = (180, 200)
    WRS = (200, 220, 48, 68)
    sRT, sC8, sM, sW, sH, sIT, sC0, sC1, sPB, sFB = 41, 42, 43, 44, 45, 46, 47, 48, 49, 50
    sT0, sT1, sT2, sT3 = 54, 55, 56, 57
    @staticmethod
    def OF(k): return 116 + 4 * k if k < 16 else 240 + 4 * (k - 16)
    @staticmethod
    def wdma(slot):
        g = G2
        o = [[f"s_add_u32 m0, {s(g.sM)}, {slot*20480}", "s_nop 0"]]
        for i in range(4): o.append([f"buffer_load_dwordx4 {v(g.vF)}, {s(S_WS,4)}, {s(g.sW)} offen offset:{i*1024} sc1 lds"])
        o[0] += o.pop(1)
        o.append([f"s_add_u32 m0, {s(g.sM)}, {slot*20480+4096}", "s_nop 0",
                  f"buffer_load_dwordx4 {v(g.vW4)}, {s(S_WS,4)}, {s(g.sW)} offen sc1 lds", f"s_add_u32 {s(g.sW)}, {s(g.sW)}, 20480"])
        return o
    @staticmethod
    def hload(st):
        g = G2
        o = [[f"buffer_load_dwordx4 {v(g.HF+16*st+4*j,4)}, {v(g.vF)}, {s(S_WS,4)}, {s(g.sH)} offen offset:{j*1024} sc1"] for j in range(4)]
        o[-1].append(f"s_add_u32 {s(g.sH)}, {s(g.sH)}, 4096")
        return o

def g2_start(a, pfx, valu, stores):
    g = G2
    heavy = bool(valu)
    vL, sT0, sT1, sT2 = g.vL, g.sT0, g.sT1, g.sT2
    a(f"s_lshr_b32 {s(g.sC8)}, s2, 5")
    a(f"s_and_b32 {s(sT1)}, s2, 7")
    a(f"s_lshl_b32 {s(g.sRT)}, {s(sT1)}, 2")
    a(f"s_bfe_u32 {s(sT1)}, s2, {3 | (2<<16)}")
    a(f"s_add_u32 {s(g.sRT)}, {s(g.sRT)}, {s(sT1)}")
    a(f"s_lshl_b32 {s(g.sRT)}, {s(g.sRT)}, 2")
    a(f"s_add_u32 {s(g.sRT)}, {s(g.sRT)}, {s(S_WV)}")
    a(f"s_mul_i32 {s(g.sW)}, {s(g.sC8)}, {74*5120}")
    a(f"s_mul_i32 {s(g.sM)}, {s(S_WV)}, 5120")
    a(f"s_add_u32 {s(g.sW)}, {s(g.sW)}, {s(g.sM)}")
    a(f"s_add_u32 {s(g.sW)}, {s(g.sW)}, {WR_OFF}")
    a(f"s_mul_i32 {s(g.sH)}, {s(g.sRT)}, 55296")
    a(f"s_add_u32 {s(g.sH)}, {s(g.sH)}, {H_OFF}")
    a(f"v_lshlrev_b32 {v(g.vF)}, 4, {v(vL)}")
    a(f"v_add_u32 {v(g.vW4)}, 4096, {v(g.vF)}")
    a(f"s_mov_b32 {s(sT0)}, 0")
    a(f"s_cmp_eq_u32 {s(S_WV)}, 0")
    a(f"s_cselect_b32 {s(g.sC0)}, 0, -1")
    a(f"s_cselect_b32 {s(g.sC1)}, 1, -1")
    a(f"s_cselect_b32 {s(g.sPB)}, {0 if heavy else -1}, -1")
    a("s_waitcnt vmcnt(0) lgkmcnt(0)")
    a(f"s_cbranch_scc0 {pfx}_p4_ok")
    a(f"v_cmp_ne_u32 vcc, {v(g.vFR)}, {v(V_NONCE)}")
    a("s_nop 1")
    a(f"s_cbranch_vccz {pfx}_p4_ok")
    poll(a, f"{pfx}_p4", g.vFA, sT0, g.vFR, sT2, Cfg.p4s)
    a("s_barrier")
    stamp(a, "h_go")
    work = list(valu) + [
        f"v_add_u32 {v(g.vF2)}, {3*20480}, {v(g.vF)}",
        f"v_and_b32 {v(g.AD)}, 15, {v(vL)}",
        f"v_mul_u32_u24 {v(g.vXO)}, 1280, {v(g.AD)}",
        f"v_lshrrev_b32 {v(g.AD)}, 4, {v(vL)}",
        f"v_mad_u32_u24 {v(g.vXO)}, {v(g.AD)}, 40, {v(g.vXO)}",
        f"v_min_u32 {v(g.vBA)}, 9, {v(vL)}",
        f"v_lshlrev_b32 {v(g.vBA)}, 6, {v(g.vBA)}"] + [f"v_mov_b32 {v(g.AD+r)}, 0" for r in range(20)]
    groups = g.wdma(0) + g.hload(0) + g.wdma(1) + g.hload(1)
    per = -(-len(work) // len(groups))
    for gr in groups:
        a.ext(gr); a.ext(work[:per]); work = work[per:]
    a.ext(stores)
    a(f"s_lshr_b32 {s(g.sFB)}, {s(g.sRT)}, 3")
    a(f"s_lshl_b32 {s(g.sFB)}, {s(g.sFB)}, 10")
    a(f"s_add_u32 {s(g.sFB)}, {s(g.sFB)}, {F2B_OFF}")

def gen_g2(a, pfx):
    g = G2
    vL, vF, vF2, vW4, vXO, XR, AS, AD, HF, WFS, WRS, OF = g.vL, g.vF, g.vF2, g.vW4, g.vXO, g.XR, g.AS, g.AD, g.HF, g.WFS, g.WRS, g.OF
    sRT, sC8, sM, sW, sH, sIT, sC0, sC1, sPB, sFB = g.sRT, g.sC8, g.sM, g.sW, g.sH, g.sIT, g.sC0, g.sC1, g.sPB, g.sFB
    sT0, sT1, sT2, sT3 = g.sT0, g.sT1, g.sT2, g.sT3
    wdma, hload = g.wdma, g.hload
    WF = WFS[0]; T = 88; U = 48
    SX = S_A
    def emit(gs):
        for x in gs: a.ext(x)
    def wrd(d, slot, ks, mt):
        base, off = (vF2, 0) if slot == 3 else (vF, slot * 20480)
        return f"ds_read_b128 {v(d+4*mt,4)}, {v(base)} offset:{off+ks*5120+mt*1024}"
    a(f"s_mov_b32 {s(sIT)}, 0")
    setprio(a, Cfg.prioD)
    a("s_waitcnt vmcnt(9)")
    a("s_barrier")
    for ks in range(2):
        for mt in range(5): a(wrd(WFS[ks], 0, ks, mt))
    emit(wdma(2)); emit(hload(2)); emit(wdma(3))
    stamp(a, "d_issued")
    a("s_waitcnt lgkmcnt(9)")
    def stage(sl, pend0, vm, after, nks_=4, pre_bar=None, post_bar=None):
        pend = list(pend0)
        for ks in range(nks_):
            nsl, nks = (sl, ks + 2) if ks < 2 else ((sl + 1) & 3, ks - 2)
            d = WFS[ks & 1]
            for mt in range(5):
                a(mf16(AD + 4 * mt, d + 4 * mt, HF + 16 * sl + 4 * ks))
                if ks == 2 and mt == 0:
                    assert not pend
                    a(f"s_waitcnt vmcnt({vm}) lgkmcnt(0)")
                    if pre_bar: a.ext(pre_bar)
                    a("s_barrier")
                    if post_bar: a.ext(post_bar)
                    pend = list(after)
                else:
                    a("s_waitcnt lgkmcnt(8)")
                a(wrd(d, nsl, nks, mt))
                if pend and (5 * ks + mt) % 2 == 0: a.ext(pend.pop(0))
        assert not pend
    a(f"{pfx}_dloop:")
    for sl in range(4):
        p0 = hload((sl - 1) & 3)
        pre = post = None
        if sl == Cfg.chks: p0 = [[f"s_cmp_eq_u32 {s(sIT)}, {s(sC0)}", f"s_cbranch_scc1 {pfx}_c0", f"{pfx}_c0r:"]] + p0
        if sl == 0:
            pre = [f"s_cmp_eq_u32 {s(sIT)}, {s(sC1)}", f"s_cbranch_scc1 {pfx}_c1", f"{pfx}_c1_ok:"]
            post = [f"s_cmp_eq_u32 {s(sIT)}, {s(sPB)}", f"s_cbranch_scc1 {pfx}_pb", f"{pfx}_pbr:"]
        stage(sl, p0, 18, wdma(sl), pre_bar=pre, post_bar=post)
        if sl == 1:
            a(f"s_cmp_eq_u32 {s(sIT)}, 2")
            a(f"s_cbranch_scc1 {pfx}_dtail")
    a(f"s_add_u32 {s(sIT)}, {s(sIT)}, 1")
    a(f"s_branch {pfx}_dloop")
    a(f"{pfx}_pb:")
    publish(a, 100)
    stamp(a, "pub2")
    a(f"s_branch {pfx}_pbr")
    a(f"{pfx}_c0:")
    a(f"buffer_load_dword {v(g.vBR)}, {v(g.vBA)}, {s(S_WS,4)}, {s(sFB)} offen sc1")
    a(f"s_branch {pfx}_c0r")
    a(f"{pfx}_c1:")
    setprio(a, Cfg.prioGv)
    a(f"s_waitcnt vmcnt({4 + 9 * (4 - Cfg.chks)})")
    a(f"v_cmp_ne_u32 vcc, {v(g.vBR)}, {v(V_NONCE)}")
    a("s_nop 1")
    a(f"s_cbranch_vccz {pfx}_p2_ok")
    poll(a, f"{pfx}_p2", g.vBA, sFB, g.vBR, sT2, Cfg.p2s)
    setprio(a, Cfg.prioD)
    stamp(a, "h2_go")
    a(f"s_branch {pfx}_c1_ok")
    a(f"{pfx}_dtail:")
    stage(2, hload(1)[:2], 16, wdma(2))
    stage(3, [], 12, wdma(3))
    stage(0, [], 10, wdma(0))
    stage(1, [], 0, [], nks_=2)
    setprio(a, Cfg.prioGv)
    stamp(a, "d_done")
    srd(a, SX, P_X, 2048 * 1280)
    a(f"s_mul_i32 {s(sT3)}, {s(sRT)}, {16*1280}")
    a(f"s_mul_i32 {s(sT1)}, {s(sC8)}, 160")
    a(f"s_add_u32 {s(sT3)}, {s(sT3)}, {s(sT1)}")
    a("s_waitcnt vmcnt(10)")
    a("s_barrier")
    for ks in range(3):
        for mt in range(5): a(wrd(WRS[1 + ks], 2, ks, mt))
    a(f"buffer_load_dwordx4 {v(XR,4)}, {v(vXO)}, {s(SX,4)}, {s(sT3)} offen")
    a(f"buffer_load_dwordx4 {v(XR+4,4)}, {v(vXO)}, {s(SX,4)}, {s(sT3)} offen offset:16")
    a(f"buffer_load_dwordx2 {v(XR+8,2)}, {v(vXO)}, {s(SX,4)}, {s(sT3)} offen offset:32")
    a("s_waitcnt lgkmcnt(0)")
    a("s_barrier")
    emit(wdma(1))
    a(f"s_cmp_ge_u32 {s(S_WV)}, 2")
    a(f"s_cbranch_scc1 {pfx}_now5")
    emit(wdma(2))
    a(f"{pfx}_now5:")
    setprio(a, Cfg.prioS)
    for r0 in range(0, 20, 4):
        R = range(r0, r0 + 4)
        for r in R: a(f"v_mul_f32 {v(AS+r)}, {f2u(-LOG2E)}, {v(AD+r)}")
        for r in R: a(f"v_exp_f32 {v(AS+r)}, {v(AS+r)}")
        for r in R: a(f"v_add_f32 {v(AS+r)}, 1.0, {v(AS+r)}")
        for r in R: a(f"v_rcp_f32 {v(AS+r)}, {v(AS+r)}")
        for r in R: a(f"v_mul_f32 {v(AD+r)}, {v(AD+r)}, {v(AS+r)}")
    srd(a, SX, P_OUT, 2048 * 1280)
    a(f"s_lshl_b32 {s(sH)}, {s(sRT)}, 14")
    a(f"s_add_u32 {s(sH)}, {s(sH)}, {O_OFF}")
    a(f"s_lshr_b32 {s(sT1)}, {s(sRT)}, 2")
    a(f"s_lshl_b32 {s(sW)}, {s(sT1)}, 14")
    a(f"s_and_b32 {s(sT0)}, {s(S_WV)}, 1")
    a(f"s_lshl_b32 {s(sT0)}, {s(sT0)}, 8")
    a(f"s_add_u32 {s(sW)}, {s(sW)}, {s(sT0)}")
    a(f"s_lshr_b32 {s(sT0)}, {s(S_WV)}, 1")
    a(f"s_lshl_b32 {s(sT0)}, {s(sT0)}, 3")
    a(f"s_add_u32 {s(sW)}, {s(sW)}, {s(sT0)}")
    a(f"s_add_u32 {s(sW)}, {s(sW)}, {OL_OFF}")
    a(f"v_lshrrev_b32 {v(T+2)}, 4, {v(vL)}")
    a(f"v_and_b32 {v(T+3)}, 0xff, {v(vF)}")
    a(f"v_lshl_add_u32 {v(T+2)}, {v(T+2)}, 10, {v(T+3)}")
    a(f"s_lshl_b32 {s(sT1)}, {s(sT1)}, 11")
    a(f"s_add_u32 {s(sT1)}, {s(sT1)}, {F3_OFF}")
    a(f"v_and_b32 {v(T)}, 31, {v(vL)}")
    a(f"v_lshlrev_b32 {v(T)}, 6, {v(T)}")
    setprio(a, Cfg.prioGv)
    stamp(a, "wo_ready")
    a("s_waitcnt vmcnt(0)")
    a(f"s_cmp_lg_u32 {s(S_WV)}, 0")
    a(f"s_cbranch_scc1 {pfx}_p3_ok")
    poll(a, f"{pfx}_p3", T, sT1, T + 1, sT2, Cfg.p3s)
    a("s_barrier")
    stamp(a, "o_go")
    NL = Cfg.onl
    ol = []
    for k in range(16):
        o = [f"buffer_load_dwordx4 {v(OF(k),4)}, {v(vF)}, {s(S_WS,4)}, {s(sH)} offen offset:{(k&3)*1024}{SC1}"]
        if k & 3 == 3 and k < 15: o.append(f"s_add_u32 {s(sH)}, {s(sH)}, 4096")
        ol.append(o)
    for k in range(16, 20):
        for sec in range(2):
            o = [f"buffer_load_dwordx2 {v(OF(k)+2*sec,2)}, {v(T+2)}, {s(S_WS,4)}, {s(sW)} offen offset:{sec*512}{SC1}"]
            if sec and k < 19: o.append(f"s_add_u32 {s(sW)}, {s(sW)}, 4096")
            ol.append(o)
    need = lambda k: k + 1 if k < 16 else 16 + 2 * (k - 15)
    for k in range(NL): a.ext(ol[k])
    def wloc(k):
        st = 54 + k
        if st >= 72: return (2, st - 72)
        return ((st >> 2) & 3, st & 3)
    a(f"s_waitcnt vmcnt({NL-1})")
    nl = NL
    for k in range(20):
        for mt in range(5):
            src = WF if (k == 0 or k >= 5) else WRS[k - 1]
            a(mf16(AS + 4 * mt, src + 4 * mt, OF(k), "0" if k == 0 else None))
            w = []
            if mt == 4 and k < 19: w.append(f"vmcnt({nl-need(k+1)})")
            if k == 4 and mt == 4: w.append("lgkmcnt(0)")
            if k >= 5 and not (k == 19 and mt == 4): w.append(f"lgkmcnt({3 if k < 19 else 3-mt})")
            if w: a("s_waitcnt " + " ".join(w))
            if k == 0: a(wrd(WF, *wloc(5), mt))
            if 5 <= k < 19: a(wrd(WF, *wloc(k + 1), mt))
            if nl < 24 and (mt == 0 or (mt == 2 and k % 4 == 1)):
                a.ext(ol[nl]); nl += 1
            if 8 <= k < 18 and mt in (1, 3):
                j = k - 8
                a(f"v_lshlrev_b32 {v(U+2*j)}, 16, {v(XR+j)}" if mt == 1 else f"v_and_b32 {v(U+2*j+1)}, 0xffff0000, {v(XR+j)}")
    stamp(a, "wo_done")
    for lo, hi in ((0, 8), (8, 16), (16, 20)):
        for r in range(lo, hi): a(f"v_fma_f32 {v(U+r)}, {v(AS+r)}, {v(AD+r)}, {v(U+r)}")
        for j in range(lo // 2, hi // 2): a(f"v_cvt_pk_bf16_f32 {v(XR+j)}, {v(U+2*j)}, {v(U+2*j+1)}")
        n = (hi - lo) // 2
        if Cfg.diag and lo == 0:
            a(f"s_or_b32 {s(sT0)}, s2, {s(S_WV)}")
            a(f"s_cmp_lg_u32 {s(sT0)}, 0")
            a(f"s_cbranch_scc1 {pfx}_nodiag")
            a(f"s_add_u32 s52, {s(P_WS)}, 0x8000000")
            a(f"s_addc_u32 s53, {s(P_WS+1)}, 0")
            a("s_load_dwordx2 s[60:61], s[52:53], 0")
            a("s_waitcnt lgkmcnt(0)")
            a("s_cmp_eq_u32 s60, s61" if Cfg.diag == 1 else "s_cmp_lg_u32 s60, s61")
            a(f"s_cbranch_scc1 {pfx}_nodiag")
            nm = St.names[St.cur]
            sel = ["x0", "centered", "ep1", "mm3", "h_go", "d_done", "o_go", "wo_done"]
            prev = "start"
            if Cfg.dsel: sel = [["wo_done", "x0", "centered", "ep1", "mm3", "h_go"][Cfg.dsel - 1]] * 2
            a("s_mov_b64 exec, 1")
            for i, x in enumerate(sel):
                a(f"s_sub_u32 s60, {s(64+nm.index(x))}, {s(64+nm.index(prev))}")
                a(f"v_cvt_f32_u32 {v(T+(i&1))}, s60")
                a(f"v_mul_f32 {v(T+(i&1))}, {f2u(0.01)}, {v(T+(i&1))}")
                if i & 1: a(f"v_cvt_pk_bf16_f32 {v(XR+i//2)}, {v(T)}, {v(T+1)}")
                prev = x
            a("s_mov_b64 exec, -1")
            a(f"{pfx}_nodiag:")
        a(f"buffer_store_dwordx{n} {v(XR+lo//2,n)}, {v(vXO)}, {s(SX,4)}, {s(sT3)} offen offset:{2*lo}")

def kd(name, nv=256):
    return f""".amdhsa_kernel {name}
  .amdhsa_next_free_vgpr {nv}
  .amdhsa_next_free_sgpr 102
  .amdhsa_accum_offset {nv}
  .amdhsa_group_segment_fixed_size 0
  .amdhsa_kernarg_size 80
  .amdhsa_user_sgpr_count 2
  .amdhsa_user_sgpr_kernarg_segment_ptr 1
  .amdhsa_system_sgpr_workgroup_id_x 1
  .amdhsa_float_denorm_mode_32 3
.end_amdhsa_kernel
"""
def head(a, name, n):
    a(f".globl {name}"); a(".p2align 8"); a(f".type {name},@function"); a(f"{name}:")
    a(f"s_cmp_ge_u32 s2, {n}")
    a(f"s_cbranch_scc1 {name}_end")
    load_args(a)
def tail(a, name):
    a(f"{name}_end:"); a("s_endpgm")

def build1():
    Cfg.fused = True
    a = Asm()
    name = NAME + "_kernel"
    a("; @launch grid=(512,1,1) block=(256,1,1) lds=81920")
    a('.amdgcn_target "amdgcn-amd-amdhsa--gfx950"')
    a(".text")
    head(a, name, 512)
    if Cfg.cpf == 2:
        a("s_getpc_b64 s[54:55]")
        a("L_pc:")
        a("s_and_b32 s56, s2, 0x1f8")
        a("v_lshrrev_b32 v2, 5, v0")
        a("v_and_b32 v3, 1, v0")
        a("v_add3_u32 v2, v2, v3, s56")
        a("v_lshlrev_b32 v2, 7, v2")
        a(f"v_min_u32 v2, {name}_end-L_pc, v2")
        a("s_mov_b64 exec, 3")
        a("global_load_dword v255, v2, s[54:55]")
        a("s_mov_b64 exec, -1")
    a("s_cmp_ge_u32 s2, 256")
    a("s_cbranch_scc1 L_att")
    stamp_begin(a, 0); stamp(a, "start"); gen_g1(a, "g1"); gen_g2(a, "g2"); stamp_end(a, 0, 2)
    a("s_endpgm")
    a("L_att:")
    stamp_begin(a, 1); stamp(a, "start"); gen_att(a, "att", 2); stamp_end(a, 1, 2)
    tail(a, name)
    a('.section .rodata,"a"')
    a(".p2align 6"); a.lines.append(kd(name))
    return a.text()

if __name__ == "__main__":
    if "--stamps" in sys.argv:
        sys.argv.remove("--stamps"); STAMPS = True
    if "--cyc" in sys.argv:
        sys.argv.remove("--cyc"); STAMPS = "cyc"
    three = "--three" in sys.argv
    if three: sys.argv.remove("--three")
    for x in list(sys.argv):
        if "=" in x:
            k_, v_ = x.split("="); setattr(Cfg, k_, int(v_)); sys.argv.remove(x)
    t = build1()
    if STAMPS:
        import json; json.dump(St.names, open(sys.argv[1].replace(".s", ".json"), "w"))
    out = sys.argv[1] if len(sys.argv) > 1 else f"cdna_kernels/{NAME}.s"
    body = t[:t.index('.section .rodata')]
    pr = check_hazards(body)
    for p in pr: print("HAZARD", p)
    open(out, "w").write(t)
    print("written", out, len(t), "bytes;", len(pr), "hazards")
```

```python
import sys, math, struct
from asmlib import *

NAME = "recurrent_scan__softmax_full_mha__geglu_ffn__prompt"
QK_OFF = 0
V_OFF = 160 * 32768
H_OFF = V_OFF + 32 * 81920
O_OFF = H_OFF + 128 * 55296
OL_OFF = O_OFF + 128 * 16384
FLAG_OFF = O_OFF + 128 * 20480
def f2u(x): return "0x%08x" % struct.unpack("<I", struct.pack("<f", x))[0]
LOG2E = math.log2(math.e)
QSCALE = 20 ** -0.5 * LOG2E
GC0 = -2.0 * LOG2E * math.sqrt(2.0 / math.pi)
GC1 = GC0 * 0.044715
SC1 = " sc1"

P_X, P_WQKV, P_WO, P_WG, P_WU, P_WD, P_OUT, P_DBG, P_WS = 4, 6, 8, 12, 14, 16, 18, 20, 22
S_WS = 24
S_A = 28
S_B = 32
S_C = 36
S_WV = 40

def srd(a, d, p, nbytes):
    a(f"s_mov_b32 {s(d)}, {s(p)}")
    a(f"s_mov_b32 {s(d+1)}, {s(p+1)}")
    a(f"s_mov_b32 {s(d+2)}, {nbytes}")
    a(f"s_mov_b32 {s(d+3)}, 0x00020000")

WR_OFF = FLAG_OFF
FLAG_OFF = WR_OFF + 8 * 74 * 5120
F4_OFF = FLAG_OFF + 32768 + 65536
F2B_OFF = F4_OFF + 8192
F1_OFF = FLAG_OFF
F2_OFF = FLAG_OFF + 16384
F3_OFF = FLAG_OFF + 32768
WS_BYTES = F2B_OFF + 16384
V_NONCE = 11
class Cfg:
    fused = True
    prioA = 1; prioGm = 0; prioGv = 2; prioD = 0
    rot = True
    ns = 3; drot = 0; cpf = 2; nw0 = 2; pubk = 7; aord = 1; x_norl = 0; hiN = 0; p3s = 2; p4s = 8; p2s = 2; chks = 3; x_hot = 0; x_nokv = 0; wpf = 0; x_nolo = 0; p0s = 4; p1s = 1; prioS = 2; onl = 6; carry = 3; gap = 3; gap0 = 3; x_body = 0; tch = 0; bal = 0; diag = 0; dsel = 0; ost = 0; tlb = 0; lo = 24; hi = 48
def setprio(a, p):
    if Cfg.fused: a(f"s_setprio {p}")
def publish(a, soff):
    a("s_mov_b64 exec, 1")
    a(f"buffer_store_dword {v(V_NONCE)}, off, {s(S_WS,4)}, {s(soff)} sc1")
    a("s_mov_b64 exec, -1")
def poll(a, lbl, vaddr, soff, vt, scnt, sleep):
    a(f"s_mov_b32 {s(scnt)}, 0x20000")
    a(f"{lbl}:")
    if vaddr is None: a(f"buffer_load_dword {v(vt)}, off, {s(S_WS,4)}, {s(soff)} sc1")
    else: a(f"buffer_load_dword {v(vt)}, {v(vaddr)}, {s(S_WS,4)}, {s(soff)} offen sc1")
    a("s_waitcnt vmcnt(0)")
    a(f"v_cmp_ne_u32 vcc, {v(vt)}, {v(V_NONCE)}")
    a(f"s_sub_u32 {s(scnt)}, {s(scnt)}, 1")
    a(f"s_cbranch_scc1 {lbl}_ok")
    a(f"s_cbranch_vccz {lbl}_ok")
    if sleep: a(f"s_sleep {sleep}")
    a(f"s_branch {lbl}")
    a(f"{lbl}_ok:")
def nonce_load(a, vz):
    a(f"global_load_dword {v(V_NONCE)}, {v(vz)}, {s(P_DBG,2)} sc1")
def nonce_check(a, lbl, vz, st, scnt):
    a(f"s_mov_b32 {s(scnt)}, 0x20000")
    a(f"{lbl}:")
    a(f"v_readfirstlane_b32 {s(st)}, {v(V_NONCE)}")
    a(f"s_sub_u32 {s(scnt)}, {s(scnt)}, 1")
    a(f"s_cbranch_scc1 {lbl}_ok")
    a(f"s_cmp_lg_u32 {s(st)}, 0")
    a(f"s_cbranch_scc1 {lbl}_ok")
    a("s_sleep 2")
    a(f"v_mov_b32 {v(vz)}, 0")
    nonce_load(a, vz)
    a("s_waitcnt vmcnt(0)")
    a(f"s_branch {lbl}")
    a(f"{lbl}_ok:")

STAMPS = False
class St:
    n = 0; names = {}; cur = None
def stamp(a, name):
    if not STAMPS: return
    l = St.names.setdefault(St.cur, [])
    if name not in l: l.append(name)
    i = l.index(name)
    a("s_waitcnt lgkmcnt(0)")
    a("s_memtime s[62:63]" if STAMPS == "cyc" else "s_memrealtime s[62:63]")
    a("s_waitcnt lgkmcnt(0)")
    a(f"s_mov_b32 {s(64+i)}, s62")
def stamp_begin(a, role):
    St.cur = role
    if not STAMPS: return
    for i in range(32): a(f"s_mov_b32 {s(64+i)}, 0")
def stamp_end(a, slot, idreg):
    if not STAMPS: return
    a("s_waitcnt vmcnt(0) lgkmcnt(0)")
    stamp(a, "end")
    a("s_mov_b64 exec, -1")
    a("v_mov_b32 v20, 0")
    for i in range(32): a(f"v_writelane_b32 v20, {s(64+i)}, {i}")
    a(f"s_and_b32 s62, {s(idreg)}, 255")
    a("s_lshl_b32 s62, s62, 2")
    a(f"s_add_u32 s62, s62, {s(S_WV)}")
    a(f"s_add_u32 s62, s62, {slot*1024}")
    a("s_lshl_b32 s62, s62, 7")
    a(f"s_add_u32 s62, s62, {WS_BYTES}")
    a(f"s_mov_b32 {s(S_WS+2)}, {WS_BYTES + (1<<20)}")
    a("v_lshlrev_b32 v21, 2, v1")
    a("s_mov_b32 exec_hi, 0")
    a(f"buffer_store_dword v20, v21, {s(S_WS,4)}, s62 offen")

def load_args(a):
    a("s_load_dwordx16 s[4:19], s[0:1], 0")
    a("s_load_dwordx4 s[20:23], s[0:1], 64")

def gen_g1(a, pfx):
    X, ACC, G, WF = 96, 32, 64, 16
    vL = 1
    vTA, vTB, vTA2, vTB2, vD, vDR, vDCo, vST = 2, 3, 4, 5, 6, 7, 8, 9
    CN = (10, 12, 13, 14, 15, 0)
    vA0, vB0, vK0, vA1, vB1, vK1 = CN
    vA, vB, vK = (vA0, vA1), (vB0, vB1), (vK0, vK1)
    VR, VA = G + 16, G + 24
    sRB, sCG, sTT, sM, sN, sNT, sNQ, sP0 = 41, 42, 43, 44, 45, 46, 47, 48
    sO, sDA, sDB, sDC, sS = 49, 50, 51, 52, 53
    sT0, sT1, sT2, sT3, sSO = 54, 55, 56, 57, 58
    sSW, sCHK = 59, 97
    sROT, sXB, sXC, sPUB, sF, sU = 96, 97, 98, 99, 100, 101
    SW = S_B
    t0, t1, t2 = G, G + 1, G + 2
    a(f"v_and_b32 {v(vL)}, 63, v0")
    a(f"v_lshrrev_b32 {v(t2)}, 6, v0")
    a(f"s_and_b32 {s(sT0)}, s2, 7")
    a(f"v_readfirstlane_b32 {s(S_WV)}, {v(t2)}")
    a(f"s_lshr_b32 {s(sT1)}, s2, 3")
    a(f"s_lshr_b32 {s(sRB)}, {s(sT0)}, 1")
    a(f"s_lshl_b32 {s(sRB)}, {s(sRB)}, 2")
    a(f"s_and_b32 {s(sROT)}, {s(sT1)}, 3")
    a(f"s_add_u32 {s(sRB)}, {s(sRB)}, {s(sROT)}")
    a(f"s_lshr_b32 {s(sT2)}, {s(sT1)}, 2")
    if Cfg.rot == 2: a(f"s_mov_b32 {s(sROT)}, {s(sT2)}")
    elif Cfg.rot == 3:
        a(f"s_and_b32 {s(sROT)}, {s(sROT)}, 1")
        a(f"s_lshl_b32 {s(sROT)}, {s(sROT)}, 1")
        a(f"s_add_u32 {s(sROT)}, {s(sROT)}, {s(sT2)}")
    else: a(f"s_add_u32 {s(sROT)}, {s(sROT)}, {s(sT2)}")
    a(f"s_lshl_b32 {s(sTT)}, {s(sRB)}, 2")
    a(f"s_add_u32 {s(sTT)}, {s(sTT)}, {s(S_WV)}")
    a(f"s_mul_i32 {s(sT3)}, {s(sROT)}, 13")
    a(f"s_lshr_b32 {s(sT3)}, {s(sT3)}, 6")
    a(f"s_mul_i32 {s(sT3)}, {s(sT3)}, 5")
    a(f"s_sub_u32 {s(sROT)}, {s(sROT)}, {s(sT3)}")
    if not Cfg.rot: a(f"s_mov_b32 {s(sROT)}, 0")
    vXA = ACC
    a(f"v_lshrrev_b32 {v(t0)}, 4, {v(vL)}")
    a(f"v_mul_u32_u24 {v(vXA)}, 1280, {v(t0)}")
    a(f"v_and_b32 {v(t1)}, 15, {v(vL)}")
    a(f"v_xor_b32 {v(vXA+1)}, {v(t0)}, {v(t1)}")
    a(f"v_lshl_add_u32 {v(vXA)}, {v(vXA+1)}, 4, {v(vXA)}")
    for i in range(1, 4): a(f"v_xor_b32 {v(vXA+i)}, {64*i}, {v(vXA)}")
    a(f"s_lshl_b32 {s(sM)}, {s(S_WV)}, 12")
    a(f"s_mul_i32 {s(sXB)}, {s(sTT)}, 40960")
    a(f"s_lshl_b32 {s(sXC)}, {s(sROT)}, 8")
    def xdma(b):
        out = []
        for i in range(4):
            g = []
            if i == 0:
                g += [f"s_add_u32 m0, {s(sM)}, {(b%5)*16384}", f"s_add_u32 {s(sU)}, {s(sXB)}, {s(sXC)}"]
            g.append(f"buffer_load_dwordx4 {v(vXA+i)}, {s(S_A,4)}, {s(sU)} offen offset:{i*1024} lds")
            if i < 3: g.append(f"s_add_u32 {s(sU)}, {s(sU)}, 4096")
            else:
                g += [f"s_add_u32 {s(sXC)}, {s(sXC)}, 256", f"s_cmp_ge_u32 {s(sXC)}, 1280", f"s_cselect_b32 {s(sXC)}, 0, {s(sXC)}"]
                if b == 4: g.append(f"s_add_u32 {s(sXB)}, {s(sXB)}, 20480")
            out.append(g)
        return out
    su = Asm()
    su(f"s_and_b32 {s(sCG)}, {s(sT0)}, 1")
    su(f"s_add_u32 {s(sCG)}, {s(sCG)}, {s(sT2)}" if Cfg.bal else f"s_lshl_b32 {s(sCG)}, {s(sCG)}, 3")
    su(f"s_add_u32 {s(sCG)}, {s(sCG)}, {s(sT2)}")
    srd(su, S_WS, P_WS, WS_BYTES)
    su(f"s_cmp_lt_u32 {s(sCG)}, 15\ns_cselect_b32 {s(sNQ)}, 2, 0\ns_cselect_b32 {s(sSW)}, 1, -1@")
    su(f"s_cmp_lt_u32 {s(sCG)}, 10\ns_cselect_b32 {s(sNT)}, 6, 4\ns_cselect_b32 {s(sP0)}, 17, 1@")
    su(f"s_mov_b32 {s(SW+3)}, 0x00020000")
    su(f"s_mov_b32 {s(sN)}, -1")
    vR0, vR4 = ACC + 4, ACC + 8
    vSm, vGr, vNM, vON = ACC + 12, (ACC + 16, ACC + 20), ACC + 24, ACC + 28
    vSE, vBP, vMu = G + 6, G + 5, (G + 12, G + 13)
    CTS = ((WF, WF + 8, G + 16), (ACC, G + 16, ACC + 8))
    sMA, sMB = 60, 38
    su(f"v_xor_b32 {v(vR0)}, {v(t0)}, {v(t1)}")
    su(f"v_lshlrev_b32 {v(vR0)}, 4, {v(vR0)}")
    su(f"v_lshl_add_u32 {v(vR0)}, {v(t1)}, 8, {v(vR0)}")
    su(f"v_add_u32 {v(vR0)}, {s(sM)}, {v(vR0)}")
    for q in range(1, 4): su(f"v_xor_b32 {v(vR0+q)}, {64*q}, {v(vR0)}")
    for q in range(4): su(f"v_add_u32 {v(vR4+q)}, 0x10000, {v(vR0+q)}")
    for i in range(4): su(f"v_mov_b32 {v(vON+i)}, 0x3f803f80")
    for i in (0, 1, 4, 5): su(f"v_mov_b32 {v(vSE+i)}, 0")
    su(f"s_mov_b32 {s(sMA)}, 0xaaaaaaaa"); su(f"s_mov_b32 {s(sMA+1)}, 0xaaaaaaaa")
    su(f"s_mov_b32 {s(sMB)}, 0xcccccccc"); su(f"s_mov_b32 {s(sMB+1)}, 0xcccccccc")
    su(f"v_and_b32 {v(vBP)}, 1, {v(vL)}")
    su(f"v_lshlrev_b32 {v(vBP)}, 4, {v(vBP)}")
    su(f"v_mov_b32 {v(vSE+2)}, 0x3f80")
    su(f"v_lshlrev_b32 {v(vSE+2)}, {v(vBP)}, {v(vSE+2)}")
    su(f"v_bfe_u32 {v(vBP)}, {v(vL)}, 2, 2")
    su(f"v_cmp_eq_u32 vcc, {v(vBP)}, {v(t0)}")
    su(f"v_lshl_add_u32 {v(vBP)}, {v(vBP)}, 4, {v(t1)}")
    su(f"v_lshlrev_b32 {v(vBP)}, 2, {v(vBP)}")
    su(f"v_cndmask_b32 {v(vSE+2)}, 0, {v(vSE+2)}, vcc")
    su(f"v_cndmask_b32 {v(vSE+3)}, 0, {v(vSE+2)}, {s(sMB,2)}")
    su(f"v_cndmask_b32 {v(vSE+2)}, {v(vSE+2)}, 0, {s(sMB,2)}")
    t3, t4 = G + 3, G + 4
    su(f"v_bfe_u32 {v(t3)}, {v(vL)}, 4, 1")
    su(f"v_bfe_u32 {v(t4)}, {v(vL)}, 2, 2")
    su(f"v_lshl_add_u32 {v(vDR)}, {v(t3)}, 3, {v(t4)}")
    su(f"v_lshl_add_u32 {v(vDR)}, {v(t2)}, 5, {v(vDR)}")
    su(f"v_lshlrev_b32 {v(vDCo)}, 1, {v(t3)}")
    su(f"v_and_b32 {v(vD)}, 3, {v(vL)}")
    su(f"v_xor_b32 {v(vDCo)}, {v(vDCo)}, {v(vD)}")
    su(f"v_lshlrev_b32 {v(vDCo)}, 4, {v(vDCo)}")
    su(f"v_lshrrev_b32 {v(t2)}, 5, {v(vL)}")
    su(f"v_lshl_add_u32 {v(vDCo)}, {v(t2)}, 6, {v(vDCo)}")
    su(f"v_lshlrev_b32 {v(vTA)}, 11, {v(t2)}")
    su(f"v_mad_u32_u24 {v(vTA)}, {v(t3)}, {s(sT3)}, {v(vTA)}")
    su(f"v_lshl_add_u32 {v(vTA)}, {v(t4)}, 6, {v(vTA)}")
    su(f"v_lshl_add_u32 {v(vTA)}, {v(vD)}, 3, {v(vTA)}")
    su(f"v_xor_b32 {v(vTB)}, 32, {v(vTA)}")
    su(f"v_add_u32 {v(vTA2)}, 0x10000, {v(vTA)}")
    su(f"v_add_u32 {v(vTB2)}, 0x10000, {v(vTB)}")
    su(f"v_lshl_add_u32 {v(vST)}, {v(t3)}, 1, {v(t2)}")
    su(f"v_lshlrev_b32 {v(vST)}, 15, {v(vST)}")
    su(f"v_lshl_add_u32 {v(vST)}, {v(t1)}, 4, {v(vST)}")
    su(f"s_lshl_b32 {s(sT1)}, {s(sCG)}, 7")
    su(f"s_sub_u32 {s(sT1)}, {s(sT1)}, 1280")
    su(f"s_and_b32 {s(sT1)}, {s(sT1)}, 1023")
    su(f"s_mov_b32 {s(sT2)}, {81920-320}")
    su(f"v_mul_u32_u24 {v(t0)}, 320, {v(t0)}")
    su(f"v_add_u32 {v(t1)}, {s(sT1)}, {v(t1)}")
    for i in range(8):
        su(f"v_mul_u32_u24 {v(t2)}, 3277, {v(t1)}")
        su(f"v_lshrrev_b32 {v(t2)}, 16, {v(t2)}")
        su(f"v_lshl_add_u32 {v(VA+i)}, {v(t1)}, 4, {v(t0)}")
        su(f"v_mad_u32_u24 {v(VA+i)}, {v(t2)}, {s(sT2)}, {v(VA+i)}")
        if i < 7: su(f"v_add_u32 {v(t1)}, 16, {v(t1)}")
    def params_a():
        return [f"s_add_u32 {s(sT0)}, {s(sN)}, 1",
                f"s_sub_u32 {s(sT1)}, {s(sT0)}, {s(sNQ)}",
                f"s_lshr_b32 {s(sT1)}, {s(sT1)}, 1",
                f"s_mul_i32 {s(sT1)}, {s(sT1)}, {s(sP0)}",
                f"s_add_u32 {s(sT1)}, {s(sT1)}, {s(sCG)}",
                f"s_lshl_b32 {s(sT2)}, {s(sCG)}, 1",
                f"s_add_u32 {s(sT2)}, {s(sT2)}, {s(sT0)}",
                f"s_movk_i32 {s(sS)}, 3456",
                f"s_cmp_lt_u32 {s(sT0)}, {s(sNQ)}\ns_cselect_b32 {s(sT1)}, {s(sT2)}, {s(sT1)}\ns_cselect_b32 {s(sS)}, 3840, {s(sS)}",
                f"s_mul_i32 {s(sT2)}, {s(sROT)}, {s(sS)}",
                f"s_add_u32 {s(sT1)}, {s(sT1)}, {s(sT2)}"]
    def params_b():
        return [f"s_bitcmp1_b32 {s(sT0)}, 0\ns_cselect_b32 {s(SW)}, {s(P_WU)}, {s(P_WG)}\ns_cselect_b32 {s(SW+1)}, {s(P_WU+1)}, {s(P_WG+1)}",
                f"s_cmp_lt_u32 {s(sT0)}, {s(sNQ)}\ns_cselect_b32 {s(SW)}, {s(P_WQKV)}, {s(SW)}\ns_cselect_b32 {s(SW+1)}, {s(P_WQKV+1)}, {s(SW+1)}",
                f"s_mul_i32 {s(SW+2)}, {s(sS)}, 640",
                f"s_cmp_lt_u32 {s(sT0)}, {s(sNT)}\ns_cselect_b32 {s(SW+2)}, {s(SW+2)}, 0",
                f"s_lshl_b32 {s(sO)}, {s(sT1)}, 7",
                f"s_lshl_b32 {s(sDA)}, {s(sS)}, 2",
                f"s_mul_i32 {s(sDB)}, {s(sS)}, 12",
                f"s_mul_i32 {s(sDC)}, {s(sS)}, 108",
                f"s_sub_u32 {s(sDA)}, {s(sDA)}, 1024",
                f"s_sub_u32 {s(sDB)}, {s(sDB)}, 1024",
                f"s_add_u32 {s(sDC)}, {s(sDC)}, 3072"]
    def params_v(): return f"v_mad_u32_u24 {v(vD)}, {v(vDR)}, {s(sS)}, {v(vDCo)}"
    def wdma(slot):
        out = []
        for i in range(4):
            g = []
            if i == 0: g += [f"s_add_u32 m0, {s(sM)}, {slot*16384}", "s_nop 0"]
            g.append(f"buffer_load_dwordx4 {v(vD)}, {s(SW,4)}, {s(sO)} offen offset:{i*1024} lds")
            g.append(f"s_add_u32 {s(sO)}, {s(sO)}, {s((sDA, sDB, sDA, sDC)[i])}")
            if i == 3:
                g += [f"s_cmp_ge_u32 {s(sO)}, {s(SW+2)}", f"s_cselect_b32 {s(sU)}, {s(SW+2)}, 0", f"s_sub_u32 {s(sO)}, {s(sO)}, {s(sU)}"]
            out.append(g)
        return out
    items = []; keep = []
    for l in su.lines:
        l = l.strip()
        if l.startswith("s_cmp"): keep = [l]; continue
        if keep:
            keep.append(l.rstrip("@"))
            if l.endswith("@"): items.append("\n".join(keep)); keep = []
            continue
        items.append(l)
    items += params_a() + params_b() + [params_v()]
    a(f"s_movk_i32 {s(sT3)}, 288")
    a("s_waitcnt lgkmcnt(0)")
    srd(a, S_A, P_X, 2048 * 1280)
    per = -(-len(items) // 16)
    if Cfg.tch & 1:
        a(f"s_mul_i32 {s(sU)}, {s(sT2)}, 2560")
        a(f"s_add_u32 {s(sU)}, {s(sU)}, {s(sXB)}")
        a(f"s_add_u32 {s(sU)}, {s(sU)}, 20480")
        a(f"v_lshlrev_b32 {v(WF)}, 7, {v(vL)}")
        a("s_mov_b64 exec, 0xfffff")
        a(f"buffer_load_dword {v(WF+1)}, {v(WF)}, {s(S_A,4)}, {s(sU)} offen")
        a("s_mov_b64 exec, -1")
    for b in range(5):
        for g in xdma(b):
            a.ext(g)
            if b > 0:
                for _ in range(per):
                    if items: a(items.pop(0))
    assert not items
    if Cfg.tch & 2:
        a(f"s_and_b32 {s(sT0)}, {s(sTT)}, 15")
        a(f"s_mul_i32 {s(sT0)}, {s(sT0)}, 40")
        a(f"s_mul_i32 {s(sT0)}, {s(sT0)}, {s(sS)}")
        a(f"s_mul_i32 {s(sT2)}, {s(sROT)}, {s(sS)}")
        a(f"s_lshl_b32 {s(sT2)}, {s(sT2)}, 7")
        a(f"s_sub_u32 {s(sT2)}, {s(sO)}, {s(sT2)}")
        a(f"s_add_u32 {s(sT0)}, {s(sT0)}, {s(sT2)}")
        a(f"v_mul_u32_u24 {v(WF+2)}, {s(sS)}, {v(vL)}")
        a("s_mov_b32 exec_hi, 0xff")
        a(f"buffer_load_dword {v(WF+3)}, {v(WF+2)}, {s(SW,4)}, {s(sT0)} offen")
        if Cfg.tch & 4: a(f"buffer_load_dword {v(WF+4)}, {v(WF+2)}, {s(SW,4)}, {s(sT0)} offen offset:128")
        a("s_mov_b32 exec_hi, -1")
    a(f"s_mov_b32 {s(sN)}, 0")

    def stats(b):
        o = []
        for q in range(4):
            f = X + 16 * b + 4 * q
            first = (b % 5 == 0 and q == 0)
            o.append(mf16(vSm, vON, f, "0" if first else None))
            o.append(mf16(vGr[b // 5], f, f, "0" if first else None))
        return o
    def mean(rt):
        return [f"v_mul_f32 {v(vMu[rt])}, {f2u(-1/640)}, {v(vSm)}",
                f"v_cvt_pk_bf16_f32 {v(vNM)}, {v(vMu[rt])}, {v(vMu[rt])}",
                f"v_lshlrev_b32 {v(vNM)}, 16, {v(vNM)}",
                f"v_mov_b32 {v(vNM+1)}, {v(vNM)}", f"v_mov_b32 {v(vNM+2)}, {v(vNM)}", f"v_mov_b32 {v(vNM+3)}, {v(vNM)}", "s_nop 1"]
    def diag(rt):
        g = vGr[rt]
        return [f"v_cndmask_b32 {v(g)}, {v(g)}, {v(g+1)}, {s(sMA,2)}",
                f"v_cndmask_b32 {v(g+2)}, {v(g+2)}, {v(g+3)}, {s(sMA,2)}",
                f"v_cndmask_b32 {v(g)}, {v(g)}, {v(g+2)}, {s(sMB,2)}",
                f"ds_bpermute_b32 {v(vK[rt])}, {v(vBP)}, {v(g)}"]
    def finalize2(rt):
        k = vK[rt]
        return [f"v_mul_f32 {v(k)}, {f2u(1/640)}, {v(k)}",
                f"v_fma_f32 {v(k)}, -{v(vMu[rt])}, {v(vMu[rt])}, {v(k)}",
                f"v_max_f32 {v(k)}, 0, {v(k)}",
                f"v_cvt_pk_bf16_f32 {v(k)}, {v(k)}, {v(k)}",
                f"v_lshlrev_b32 {v(k)}, 16, {v(k)}",
                f"v_add_f32 {v(k)}, {f2u(1e-5)}, {v(k)}",
                f"v_cvt_pk_bf16_f32 {v(k)}, {v(k)}, {v(k)}",
                f"v_lshlrev_b32 {v(k)}, 16, {v(k)}",
                f"v_sqrt_f32 {v(k)}, {v(k)}", "s_nop 0",
                f"v_cvt_pk_bf16_f32 {v(k)}, {v(k)}, {v(k)}",
                f"v_lshlrev_b32 {v(k)}, 16, {v(k)}",
                f"v_rcp_f32 {v(vA[rt])}, {v(k)}", "s_nop 0",
                f"v_mul_f32 {v(vA[rt])}, {s(sT3)}, {v(vA[rt])}"]
    def center(rt):
        steps = []; CT = CTS[rt]
        for j in range(22):
            m = [[], []]; c = [[], []]
            if j < 20:
                f = X + 80 * rt + 4 * j; d = CT[j % 3]
                m = [[mf16(d, vSE + 2, f, v(vNM, 4))], [mf16(d + 4, vSE, f, v(vNM, 4))]]
            if j >= 2:
                f = X + 80 * rt + 4 * (j - 2); d = CT[(j - 2) % 3]
                cv = [f"v_cvt_pk_bf16_f32 {v(f+i)}, {v(d+2*i)}, {v(d+2*i+1)}" for i in range(4)]
                c = [cv[:2], cv[2:]]
            st = m[0] + c[0] + m[1] + c[1]
            if j in (0, 1): st.append("s_nop 2")
            if j == 20: st.append("s_nop 3")
            steps.append(st)
        return steps
    def weave(steps, groups):
        n = len(groups); done = 0
        for i, st in enumerate(steps):
            a.ext(st[:1])
            while done < n and done * len(steps) <= i * n:
                a.ext(groups[done]); done += 1
            a.ext(st[1:])
        for g in groups[done:]: a.ext(g)
    a(f"s_cmp_lt_u32 {s(sCG)}, 5")
    a(f"s_cselect_b32 {s(sT3)}, {f2u(QSCALE)}, 1.0")
    def xread(b):
        slot = b % 5
        return [f"ds_read_b128 {v(X+16*b+4*q,4)}, {v((vR4 if slot == 4 else vR0)+q)} offset:{0 if slot == 4 else slot*16384}" for q in range(4)]
    pairs = lambda l: [l[2*i:2*i+2] for i in range(len(l) // 2)]
    NC = Cfg.carry
    wg = [wdma(st) for st in range(4)]
    wg[3] = wg[3][:4 - NC]; wg[3][-1] = wg[3][-1][:-1]
    vm = 20; issued = [0]
    def wx(b):
        a(f"s_waitcnt vmcnt({20 + issued[0] - 4 * (b + 1)})")
    dq = []
    def step(st, pop):
        a.ext(st[:1])
        if pop and dq:
            a.ext(dq.pop(0)); issued[0] += 1
        a.ext(st[1:])
    wx(0)
    stamp(a, "x0")
    a.ext(xread(0))
    for b in range(5):
        if b < 4:
            wx(b + 1); a.ext(xread(b + 1)); a("s_waitcnt lgkmcnt(4)")
        else:
            a("s_waitcnt lgkmcnt(0)")
        dq += xdma(b + 5)
        for i, st in enumerate(pairs(stats(b))): step(st, i % 2 == 0)
    a.ext(dq.pop(0)); issued[0] += 1
    a("s_nop 4")
    a.ext(mean(0))
    c0 = center(0)
    for i, st in enumerate(c0):
        step(st, i % 2 == 1)
        if i == 3: a.ext(diag(0))
        if i == 17:
            assert not dq
            stamp(a, "p1")
            wx(5); a.ext(xread(5))
    f0 = finalize2(0)
    for b in range(5, 10):
        if b < 9:
            wx(b + 1); a.ext(xread(b + 1)); a("s_waitcnt lgkmcnt(4)")
            dq += wg[b - 5]
        else:
            a("s_waitcnt lgkmcnt(0)")
        for i, st in enumerate(pairs(stats(b))):
            step(st, i % 2 == 0)
            if i % 2 == 1: a.ext(f0[:2]); f0 = f0[2:]
    assert not f0
    if Cfg.fused:
        a(f"s_or_b32 {s(sT0)}, s2, {s(S_WV)}")
        a(f"s_cmp_lg_u32 {s(sT0)}, 0")
        a(f"s_cbranch_scc1 {pfx}_nn")
        a(f"s_memrealtime {s(sT0,2)}")
        a("s_waitcnt lgkmcnt(0)")
        a(f"s_or_b32 {s(sT0)}, {s(sT0)}, 1")
        a(f"v_mov_b32 {v(t0)}, 0")
        a(f"v_mov_b32 {v(t1)}, {s(sT0)}")
        a("s_mov_b64 exec, 1")
        a(f"global_store_dword {v(t0)}, {v(t1)}, {s(P_DBG,2)} sc1")
        a("s_mov_b64 exec, -1")
        a(f"{pfx}_nn:")
    stamp(a, "p2")
    a("s_nop 3")
    a.ext(mean(1))
    c1 = center(1)
    for i, st in enumerate(c1[:16]): step(st, i % 2 == 0)
    assert not dq
    a.ext(diag(1))
    stamp(a, "xstats")
    def trd(k, ct):
        kk = k % 20
        slot, ks = kk // 4, kk % 4
        base = ((vTA, vTB), (vTA2, vTB2))[slot == 4][ct & 1]
        off = 0 if slot == 4 else slot * 16384
        return [f"ds_read_b64_tr_b16 {v(WF+4*ct+2*t,2)}, {v(base)} offset:{off+ks*4096+t*1024+(ct>>1)*512}" for t in range(2)]
    a(f"s_waitcnt vmcnt({12 - NC})")
    a("s_barrier")
    stamp(a, "w0")
    for ct in range(4): a.ext(trd(0, ct))
    for st in c1[16:]: a.ext(st)
    a("s_waitcnt lgkmcnt(8)")
    a.ext(finalize2(1))
    a(f"s_cmp_eq_u32 {s(sNQ)}, 0")
    a(f"s_cselect_b32 {s(sPUB)}, -1, 2")
    a(f"s_lshl_b32 {s(sF)}, {s(sCG)}, 4")
    a(f"s_add_u32 {s(sF)}, {s(sF)}, {s(sRB)}")
    a(f"s_lshl_b32 {s(sF)}, {s(sF)}, 6")
    a(f"s_add_u32 {s(sF)}, {s(sF)}, {F1_OFF}")
    a(f"s_cmp_eq_u32 {s(S_WV)}, 0")
    a(f"s_cselect_b32 {s(sCHK)}, 5, -1")
    stamp(a, "centered")
    def ffn_consts():
        for rt in range(2):
            a(f"v_rcp_f32 {v(vB[rt])}, {v(vK[rt])}")
            a(f"v_mul_f32 {v(vK[rt])}, {v(vK[rt])}, {v(vK[rt])}")
            a(f"v_mul_f32 {v(vA[rt])}, {f2u(GC0)}, {v(vB[rt])}")
            a(f"v_mul_f32 {v(vB[rt])}, {v(vB[rt])}, {v(vB[rt])}")
            a(f"v_mul_f32 {v(vB[rt])}, {v(vB[rt])}, {v(vA[rt])}")
            a(f"v_mul_f32 {v(vB[rt])}, {f2u(0.044715)}, {v(vB[rt])}")
        a(f"v_lshlrev_b32 {v(vST)}, 4, {v(vL)}")
        a(f"s_lshr_b32 {s(sT0)}, s2, 7")
        a(f"s_lshl_b32 {s(sT0)}, {s(sT0)}, 12")
        a(f"s_add_u32 {s(sT0)}, {s(sT0)}, {F4_OFF}")
        a(f"s_and_b32 {s(sT1)}, s2, 7")
        a(f"s_lshl_b32 {s(sT1)}, {s(sT1)}, 1")
        a(f"s_bfe_u32 {s(sT2)}, s2, {4 | (1<<16)}")
        a(f"s_add_u32 {s(sT1)}, {s(sT1)}, {s(sT2)}")
        a(f"s_lshl_b32 {s(sT1)}, {s(sT1)}, 10")
        a(f"s_add_u32 {s(sT1)}, {s(sT1)}, {F2_OFF - 48*64}")
        a(f"v_mov_b32 {v(vDR)}, {s(sT0)}")
        a("s_mov_b32 exec_lo, 0")
        a("s_mov_b32 exec_hi, 0xffff0000")
        a(f"v_mov_b32 {v(vDR)}, {s(sT1)}")
        a("s_mov_b64 exec, -1")
        a(f"v_lshl_add_u32 {v(vDR)}, {v(vL)}, 6, {v(vDR)}")
        a(f"v_mov_b32 {v(vDCo)}, 0")
    def wdma_items(slot):
        ld = lambda i: f"buffer_load_dwordx4 {v(vD)}, {s(SW,4)}, {s(sO)} offen offset:{i*1024} lds"
        ad = lambda d: f"s_add_u32 {s(sO)}, {s(sO)}, {s(d)}"
        return [[ld(0)], [ad(sDA), ld(1)], [ad(sDB), ld(2)], [ad(sDA), ld(3)],
                [ad(sDC), f"s_cmp_ge_u32 {s(sO)}, {s(SW+2)}", f"s_cselect_b32 {s(sU)}, {s(SW+2)}, 0"],
                [f"s_sub_u32 {s(sO)}, {s(sO)}, {s(sU)}"]]
    def pack(items, n=3):
        out = []; cur = []
        for it in items:
            l = it.split("\n")
            if len(cur) + len(l) > n: out.append(cur); cur = []
            cur += l
        if cur: out.append(cur)
        return out
    def body(tag, swap):
        a("s_waitcnt lgkmcnt(6)")
        if not swap:
            a(f"s_cmp_lt_u32 {s(sN)}, {Cfg.hiN}")
            a(f"s_cbranch_scc1 {pfx}_hi")
            setprio(a, Cfg.prioGm)
            a(f"{pfx}_hi:")
        def spread(dma, other, gap):
            out = []; other = list(other)
            for it in dma:
                out.append(it)
                if any(" lds" in x for x in it):
                    for _ in range(gap - 1): out.append(other.pop(0) if other else [])
            return out + other
        q = spread(wdma_items(3)[4 - Cfg.carry:], pack(params_a()), Cfg.gap0)
        for k in range(20):
            for ct in range(4):
                w = WF + 4 * ct
                mm = lambda rt: mf16(ACC + 16 * rt + 4 * ct, X + 80 * rt + 4 * k if swap else w, w if swap else X + 80 * rt + 4 * k, "0" if k == 0 else None)
                a(mm(0))
                if ct == 0 and k % 4 == 3:
                    assert not q, (k, q)
                    if k == Cfg.pubk and not swap:
                        a(f"s_cbranch_scc1 {pfx}_pub")
                    if not Cfg.x_body & 4: a("s_waitcnt vmcnt(8)")
                    if not Cfg.x_body & 1: a("s_barrier")
                    if k == Cfg.pubk and not swap: a(f"{pfx}_pubret:")
                    dm = wdma_items((k // 4 - 1) % 5); q = []
                    if k == 3:
                        dm = spread(dm[:3], [], 2) + dm[3:4] + pack(params_b()) + [[f"s_cmp_eq_u32 {s(sN)}, {s(sSW)}", f"s_cbranch_scc1 {pfx}_sw{tag}", f"{pfx}_swr{tag}:"]]
                    if k == 7 and not swap:
                        T0 = sum(x << (3 * i) for i, x in enumerate((1, 4, 2, 3, 0)))
                        T1 = sum(x << (3 * i) for i, x in enumerate((3, 0, 1, 4, 2)))
                        it = [f"s_lshl_b32 {s(sT0)}, {s(sCG)}, 1", f"s_add_u32 {s(sT0)}, {s(sT0)}, {s(sN)}", f"s_mul_i32 {s(sT1)}, {s(sT0)}, 52",
                              f"s_lshr_b32 {s(sT1)}, {s(sT1)}, 8", f"s_mul_i32 {s(sT1)}, {s(sT1)}, 5", f"s_sub_u32 {s(sT0)}, {s(sT0)}, {s(sT1)}",
                              f"s_mul_i32 {s(sT0)}, {s(sT0)}, 3"]
                        for tb, m in ((T0, sMA), (T1, sMB)):
                            it += [f"s_lshr_b32 {s(sT1)}, {tb << 4}, {s(sT0)}", f"s_and_b32 {s(sT2)}, {s(sT1)}, 0x30",
                                   f"s_bitcmp1_b32 {s(sT1)}, 6\ns_cselect_b32 {s(m)}, 0, 0xffff\ns_mov_b32 {s(m+1)}, 0",
                                   f"s_lshl_b64 {s(m,2)}, {s(m,2)}, {s(sT2)}"]
                        q += pack(it)
                    if k == 15 and not swap:
                        q += [[f"s_cmp_eq_u32 {s(sN)}, {s(sCHK)}", f"s_cbranch_scc1 {pfx}_chk", f"{pfx}_chkr:"]]
                    if k == 11:
                        if swap:
                            q += pack([f"s_mul_i32 {s(sSO)}, {s(sTT)}, 1280", f"s_add_u32 {s(sSO)}, {s(sSO)}, {V_OFF}"])
                        else:
                            q += pack([f"s_sub_u32 {s(sT0)}, {s(sN)}, {s(sNQ)}", f"s_lshr_b32 {s(sT0)}, {s(sT0)}, 1", f"s_mul_i32 {s(sT0)}, {s(sT0)}, {s(sP0)}", f"s_add_u32 {s(sT0)}, {s(sT0)}, {s(sCG)}",
                                f"s_lshl_b32 {s(sT0)}, {s(sT0)}, 11", f"s_mul_i32 {s(sSO)}, {s(sTT)}, {2*55296}", f"s_add_u32 {s(sSO)}, {s(sSO)}, {s(sT0)}",
                                f"s_add_u32 {s(sSO)}, {s(sSO)}, {H_OFF}",
                                f"s_lshl_b32 {s(sT0)}, {s(sCG)}, 1", f"s_add_u32 {s(sT0)}, {s(sT0)}, {s(sN)}", f"s_lshl_b32 {s(sT0)}, {s(sT0)}, 18",
                                f"s_lshl_b32 {s(sT1)}, {s(sTT)}, 9", f"s_add_u32 {s(sT0)}, {s(sT0)}, {s(sT1)}",
                                f"s_mov_b32 {s(sT1)}, 55296",
                                f"s_cmp_lt_u32 {s(sN)}, {s(sNQ)}\ns_cselect_b32 {s(sSO)}, {s(sT0)}, {s(sSO)}\ns_cselect_b32 {s(sT1)}, {4*32768}, {s(sT1)}",
                                f"s_add_u32 {s(sT3)}, {s(sSO)}, {s(sT1)}"])
                    if k == 3: q = dm
                    elif k == 19: q = spread(dm[:4 - Cfg.carry], [], {1: 1, 2: 2, 3: 3}[Cfg.carry])[:3]
                    else:
                        q = spread(dm[:3], q, Cfg.gap)
                        q = q[:3 * Cfg.gap] + dm[3:] + q[3 * Cfg.gap:]
                elif ct == 3 and k % 4 == 2:
                    while q and not q[-1]: q.pop()
                    assert not q, (k, q)
                    a(f"s_add_u32 m0, {s(sM)}, {(((k + 1) // 4 - 1) % 5) * 16384}")
                    if k + 1 == Cfg.pubk and not swap: a(f"s_cmp_eq_u32 {s(sN)}, {s(sPUB)}")
                elif q: a.ext([x for x in q.pop(0) if not (Cfg.x_body & 2 and " lds" in x)])
                a(mm(1))
                a("s_waitcnt lgkmcnt(4)")
                a.ext(trd(k + 1, ct))
        assert not q
        setprio(a, Cfg.prioGv)
        if STAMPS:
            for n in range(6):
                a(f"s_cmp_lg_u32 {s(sN)}, {n}"); a(f"s_cbranch_scc1 {pfx}_stm{tag}{n}"); stamp(a, f"mm{n}"); a(f"{pfx}_stm{tag}{n}:")
    def ep_stamp(tag):
        if STAMPS:
            for n in range(6):
                a(f"s_cmp_lg_u32 {s(sN)}, {n}"); a(f"s_cbranch_scc1 {pfx}_ste{tag}{n}"); stamp(a, f"ep{n}"); a(f"{pfx}_ste{tag}{n}:")
    a(f"s_cmp_eq_u32 {s(sNQ)}, 0")
    a(f"s_cbranch_scc1 {pfx}_toffn")
    a(f"s_cmp_lt_u32 {s(sCG)}, 10")
    a(f"s_cbranch_scc1 {pfx}_loop")
    a(f"v_lshrrev_b32 {v(t0)}, 4, {v(vL)}")
    a(f"v_lshlrev_b32 {v(t0)}, 4, {v(t0)}")
    for rt in range(2):
        for i in range(4): a(f"ds_bpermute_b32 {v(VR+4*rt+i)}, {v(t0)}, {v(vA[rt])} offset:{4*i}")
    a("s_waitcnt lgkmcnt(0)")
    a(f"{pfx}_vloop:")
    body("v", True)
    for ct in range(4):
        for rt in range(2):
            for i in range(4): a(f"v_mul_f32 {v(ACC+16*rt+4*ct+i)}, {v(ACC+16*rt+4*ct+i)}, {v(VR+4*rt+i)}")
        for rt in range(2):
            for j in range(2): a(f"v_cvt_pk_bf16_f32 {v(G+4*ct+2*rt+j)}, {v(ACC+16*rt+4*ct+2*j)}, {v(ACC+16*rt+4*ct+2*j+1)}")
        a(f"buffer_store_dwordx4 {v(G+4*ct,4)}, {v(VA+ct)}, {s(S_WS,4)}, {s(sSO)} offen{SC1}")
    ep_stamp("v")
    a(f"s_cmp_eq_u32 {s(sN)}, 1")
    a(f"s_cbranch_scc1 {pfx}_qdone")
    for ct in range(4): a(f"v_mov_b32 {v(VA+ct)}, {v(VA+4+ct)}")
    a(f"v_mov_b32 {v(V_NONCE)}, 0")
    a(f"s_mov_b32 {s(sN)}, 1")
    nonce_load(a, V_NONCE)
    a(f"s_branch {pfx}_vloop")
    for tag in "vn":
        a(f"{pfx}_sw{tag}:"); a(params_v()); a(f"s_branch {pfx}_swr{tag}")
    a(f"{pfx}_chk:")
    a(f"buffer_load_dword {v(vDCo)}, {v(vDR)}, {s(S_WS,4)}, 0 offen sc1")
    a(f"s_branch {pfx}_chkr")
    a(f"{pfx}_pub:")
    a(f"s_waitcnt vmcnt({4 + Cfg.carry if Cfg.pubk == 7 else 8})")
    a("s_barrier")
    a(f"s_mov_b32 {s(sPUB)}, 4")
    a(f"s_cmp_lg_u32 {s(S_WV)}, 0")
    a(f"s_cbranch_scc1 {pfx}_pubret")
    publish(a, sF)
    a(f"s_lshl_b32 {s(sF)}, {s(sRB)}, 4")
    a(f"s_add_u32 {s(sF)}, {s(sF)}, {s(sCG)}")
    a(f"s_lshl_b32 {s(sF)}, {s(sF)}, 6")
    a(f"s_add_u32 {s(sF)}, {s(sF)}, {F2_OFF}")
    if STAMPS:
        a(f"s_cmp_lg_u32 {s(sN)}, 2"); a(f"s_cbranch_scc1 {pfx}_pubret")
    stamp(a, "pub1")
    a(f"s_branch {pfx}_pubret")
    a(f"{pfx}_eq:")
    for j in range(2):
        for rt in range(2):
            b = ACC + 16 * rt + 8 * j; d = G + 8 * j + 4 * rt
            for r in range(8): a(f"v_mul_f32 {v(b+r)}, {v(b+r)}, {v(vA[rt])}")
            for r in range(4): a(f"v_cvt_pk_bf16_f32 {v(d+r)}, {v(b+2*r)}, {v(b+2*r+1)}")
            if rt == 1:
                for r2 in range(2):
                    d2 = G + 8 * j + 4 * r2
                    a(f"v_permlane16_swap_b32 {v(d2)}, {v(d2+2)}")
                    a(f"v_permlane16_swap_b32 {v(d2+1)}, {v(d2+3)}")
                a(f"s_mov_b64 exec, {s((sMA, sMB)[j],2)}")
                a(f"v_swap_b32 {v(G+8*j+2)}, {v(G+8*j+4)}")
                a(f"v_swap_b32 {v(G+8*j+3)}, {v(G+8*j+5)}")
                a("s_mov_b64 exec, -1")
                for r2 in range(2):
                    d2 = G + 8 * j + 4 * r2
                    a(f"buffer_store_dwordx4 {v(d2,4)}, {v(vST)}, {s(S_WS,4)}, {s(sT3 if j else sSO)} offen offset:{r2*256}{SC1}")
    ep_stamp("q")
    a(f"s_cmp_eq_u32 {s(sN)}, 1")
    a(f"s_cbranch_scc1 {pfx}_qdone")
    a(f"v_mov_b32 {v(V_NONCE)}, 0")
    a(f"s_mov_b32 {s(sN)}, 1")
    nonce_load(a, V_NONCE)
    a(f"s_branch {pfx}_loop")
    a(f"{pfx}_qdone:")
    nonce_check(a, f"{pfx}_nc", V_NONCE, sT0, sT1)
    a(f"s_mov_b32 {s(sN)}, 2")
    a(f"{pfx}_toffn:")
    ffn_consts()
    a(f"{pfx}_loop:")
    body("n", False)
    a(f"s_cmp_lt_u32 {s(sN)}, {s(sNQ)}")
    a(f"s_cbranch_scc1 {pfx}_eq")
    a(f"s_bitcmp1_b32 {s(sN)}, 0")
    a(f"s_cbranch_scc1 {pfx}_eu")
    for r0 in range(0, 32, 4):
        R = range(r0, r0 + 4); rt = r0 // 16
        for r in R: a(f"v_mul_f32 {v(G+r)}, {v(ACC+r)}, {v(ACC+r)}")
        for r in R: a(f"v_fma_f32 {v(G+r)}, {v(G+r)}, {v(vB[rt])}, {v(vA[rt])}")
        for r in R: a(f"v_mul_f32 {v(G+r)}, {v(G+r)}, {v(ACC+r)}")
        for r in R: a(f"v_exp_f32 {v(G+r)}, {v(G+r)}")
        for r in R: a(f"v_fma_f32 {v(G+r)}, {v(G+r)}, {v(vK[rt])}, {v(vK[rt])}")
        for r in R: a(f"v_rcp_f32 {v(G+r)}, {v(G+r)}")
        for r in R: a(f"v_mul_f32 {v(G+r)}, {v(G+r)}, {v(ACC+r)}")
    ep_stamp("g")
    a(f"s_add_u32 {s(sN)}, {s(sN)}, 1")
    a(f"s_branch {pfx}_loop")
    a(f"{pfx}_eu:")
    a(f"s_cmp_eq_u32 {s(sN)}, 5")
    a(f"s_cbranch_scc1 {pfx}_heavy")
    upv = []; ups = []
    for p in range(4):
        pv = [f"v_mul_f32 {v(ACC+r)}, {v(ACC+r)}, {v(G+r)}" for r in range(8 * p, 8 * p + 8)]
        pv += [f"v_cvt_pk_bf16_f32 {v(G+8*p+j)}, {v(ACC+8*p+2*j)}, {v(ACC+8*p+2*j+1)}" for j in range(4)]
        ps = f"buffer_store_dwordx4 {v(G+8*p,4)}, {v(vST)}, {s(S_WS,4)}, {s(sT3 if p >> 1 else sSO)} offen offset:{(p&1)*1024}{SC1}"
        a.ext(pv); a(ps); upv += pv; ups.append(ps)
    ep_stamp("u")
    a(f"s_add_u32 {s(sN)}, {s(sN)}, 1")
    a(f"s_cmp_lt_u32 {s(sN)}, {s(sNT)}")
    a(f"s_cbranch_scc1 {pfx}_loop")
    a(f"s_cmp_lg_u32 {s(sNQ)}, 0")
    a(f"s_cbranch_scc1 {pfx}_nc2_ok")
    a(f"v_mov_b32 {v(V_NONCE)}, 0")
    a("s_nop 0")
    nonce_check(a, f"{pfx}_nc2", V_NONCE, sT0, sT1)
    a(f"s_lshl_b32 {s(sF)}, {s(sRB)}, 4")
    a(f"s_add_u32 {s(sF)}, {s(sF)}, {s(sCG)}")
    a(f"s_lshl_b32 {s(sF)}, {s(sF)}, 6")
    a(f"s_add_u32 {s(sF)}, {s(sF)}, {F2_OFF}")
    a(f"s_sub_u32 {s(sT0)}, {s(sCG)}, 10")
    a(f"s_lshl_b32 {s(sPUB)}, {s(sT0)}, 6")
    a(f"s_add_u32 {s(sPUB)}, {s(sPUB)}, {s(sTT)}")
    a(f"s_lshl_b32 {s(sT0)}, {s(sT0)}, 3")
    a(f"s_lshr_b32 {s(sT1)}, {s(sRB)}, 1")
    a(f"s_add_u32 {s(sT0)}, {s(sT0)}, {s(sT1)}")
    a(f"s_and_b32 {s(sT1)}, {s(sRB)}, 1")
    a(f"s_lshl_b32 {s(sT1)}, {s(sT1)}, 6")
    a(f"s_add_u32 {s(sT0)}, {s(sT0)}, {s(sT1)}")
    a(f"s_lshl_b32 {s(sT0)}, {s(sT0)}, 6")
    a(f"s_add_u32 {s(sT3)}, {s(sT0)}, {F4_OFF}")
    a("s_waitcnt vmcnt(4) lgkmcnt(0)")
    a("s_barrier")
    gen_relayout(a, pfx, sPUB, vL, (58, 59, 60, 61, 96, 97, 98, 101, 47, 48, 49), sF, sT3)
    g2_start(a, "g2l", [], [])
    a(f"s_branch {pfx}_g1end")
    a(f"{pfx}_heavy:")
    a(f"s_add_u32 {s(sF)}, {s(sF)}, {F2B_OFF - F2_OFF}")
    g2_start(a, "g2h", upv, ups)
    a(f"{pfx}_g1end:")

def gen_att(a, pfx, idreg):
    vL, vK1, vK2, vV0, vV1, vQ1, vQ2 = 1, 2, 3, 4, 5, 20, 21
    P, S, O, Q, KV = 24, 32, 64, 128, 152
    sHD, sQB, sKH, sQH, sK1, sK2, sV, sG, sIT = 41, 42, 43, 44, 45, 46, 47, 48, 49
    sK1b, sK2b, sVb = 50, 51, 52
    sT0, sT1, sT2, sT3 = 54, 55, 56, 57
    sVM = 58
    sQ = 96
    sLB, sDK, sDV, sG4 = 53, 60, 61, 100
    vLin, vLK1, vLK2, vLV, vMB, vMI, vM = 208, 209, 210, 211, 212, 213, 214
    vXW, vXR, vOM, vOL = 215, 216, 217, 218
    sOM, sOL, sF3 = 28, 30, 31
    a(f"v_and_b32 {v(vL)}, 63, v0")
    a(f"v_lshrrev_b32 v6, 6, v0")
    a(f"s_and_b32 {s(sT0)}, {s(idreg)}, 7")
    a(f"v_readfirstlane_b32 {s(S_WV)}, v6")
    a(f"s_lshl_b32 {s(sHD)}, {s(sT0)}, 2")
    a(f"s_bfe_u32 {s(sT1)}, {s(idreg)}, {3 | (2<<16)}")
    a(f"s_add_u32 {s(sHD)}, {s(sHD)}, {s(sT1)}")
    if Cfg.cpf == 1:
        a(f"s_getpc_b64 {s(sT0,2)}")
        a(f"{pfx}_pc:")
        a(f"s_sub_u32 {s(sT0)}, {s(sT0)}, {pfx}_pc-{NAME}_kernel")
        a(f"s_subb_u32 {s(sT1)}, {s(sT1)}, 0")
        a(f"s_bfe_u32 {s(sT2)}, {s(idreg)}, {3 | (5<<16)}")
        a(f"s_lshl_b32 {s(sT2)}, {s(sT2)}, 2")
        a(f"s_add_u32 {s(sT2)}, {s(sT2)}, {s(S_WV)}")
        a(f"s_lshl_b32 {s(sT2)}, {s(sT2)}, 8")
        a(f"s_cmp_ge_u32 {s(sT2)}, {NAME}_kernel_end-{NAME}_kernel-256")
        a(f"s_cbranch_scc1 {pfx}_nopf")
        a(f"v_lshl_add_u32 v12, {v(vL)}, 2, {s(sT2)}")
        a(f"global_load_dword v13, v12, {s(sT0,2)}")
        a(f"{pfx}_nopf:")

    a(f"s_bfe_u32 {s(sQB)}, {s(idreg)}, {5 | (3<<16)}")
    a(f"s_and_b32 {s(sQH)}, {s(S_WV)}, 1")
    a(f"s_lshr_b32 {s(sKH)}, {s(S_WV)}, 1")
    a(f"s_lshr_b32 {s(sT0)}, {s(sHD)}, 1")
    a(f"s_mul_i32 {s(sT0)}, {s(sT0)}, 5")
    a(f"s_and_b32 {s(sT1)}, {s(sHD)}, 1")
    a(f"s_mul_i32 {s(sT2)}, {s(sT1)}, 3")
    a(f"s_add_u32 {s(sT2)}, {s(sT2)}, {s(sT0)}")
    a(f"s_lshl_b32 {s(sK1b)}, {s(sT2)}, 15")
    a(f"s_add_u32 {s(sT0)}, {s(sT0)}, 2")
    a(f"s_lshl_b32 {s(sK2b)}, {s(sT0)}, 15")
    a(f"s_lshl_b32 {s(sT1)}, {s(sT1)}, 8")
    a(f"s_add_u32 {s(sK2b)}, {s(sK2b)}, {s(sT1)}")
    a(f"v_and_b32 v6, 31, {v(vL)}")
    a(f"v_lshrrev_b32 v7, 5, {v(vL)}")
    a(f"v_lshlrev_b32 {v(vQ2)}, 4, v6")
    a(f"v_lshl_add_u32 {v(vQ1)}, v7, 15, {v(vQ2)}")
    a(f"v_and_b32 {v(vK2)}, 7, v6")
    a(f"v_bfe_u32 v8, v6, 3, 1")
    a(f"v_lshl_add_u32 {v(vK2)}, v8, 4, {v(vK2)}")
    a(f"v_lshrrev_b32 v8, 4, v6")
    a(f"v_lshl_add_u32 {v(vK2)}, v8, 3, {v(vK2)}")
    a(f"v_lshlrev_b32 {v(vK2)}, 4, {v(vK2)}")
    a(f"v_lshl_add_u32 {v(vK1)}, v7, 15, {v(vK2)}")
    a(f"v_mul_u32_u24 {v(vV0)}, 320, v7")
    a(f"v_add_u32 {v(vV0)}, {v(vV0)}, {v(vQ2)}")
    for r in (vQ2, vK2):
        a(f"v_lshrrev_b32 v8, 8, {v(r)}")
        a(f"v_and_b32 {v(r)}, 0xff, {v(r)}")
        a(f"v_lshl_add_u32 {v(r)}, v8, 3, {v(r)}")
    a(f"v_add_u32 {v(vV1)}, 640, {v(vV0)}")
    a(f"s_mov_b32 {s(sVM)}, 0xfffff")
    a(f"s_mov_b32 {s(sVM+1)}, 0xfffff")
    a(f"v_cmp_eq_u32 vcc, 20, v6")
    a(f"v_mov_b32 v8, 0x3f803f80")
    a("s_nop 0")
    a(f"v_cndmask_b32 v10, 0, v8, vcc")
    for u in range(4):
        for r in range(4, 12): a(f"v_mov_b32 {v(KV+14*u+r)}, v10")
    for q in range(4):
        a(f"v_mov_b32 {v(Q+6*q+4)}, 0"); a(f"v_mov_b32 {v(Q+6*q+5)}, 0")
    for r in range(64): a(f"v_mov_b32 {v(O+r)}, 0")
    for r in range(8): a(f"v_mov_b32 {v(P+r)}, 0")
    a("s_waitcnt lgkmcnt(0)")
    srd(a, S_WS, P_WS, WS_BYTES)
    if Cfg.tlb:
        a(f"s_cmp_lg_u32 {s(S_WV)}, 0")
        a(f"s_cbranch_scc1 {pfx}_notlb")
        a(f"v_lshlrev_b32 v12, 21, {v(vL)}")
        a("s_mov_b64 exec, 3")
        for i, (p, nb) in enumerate(((P_WQKV, 640*3840), (P_WG, 640*3456), (P_WU, 640*3456), (P_WD, 1728*1280), (P_OUT, 2048*1280))):
            a(f"global_load_dword {v(240+i)}, v12, {s(p,2)}")
        a("s_mov_b64 exec, 1")
        a(f"global_load_dword v246, v12, {s(P_WO,2)}")
        a(f"s_mov_b64 exec, {(1 << ((WS_BYTES >> 21) + 1)) - 1}")
        a(f"global_load_dword v247, v12, {s(P_WS,2)}")
        a("s_mov_b64 exec, -1")
        a(f"{pfx}_notlb:")
    if Cfg.fused:
        a(f"v_mov_b32 {v(V_NONCE)}, 0")
        a("s_nop 0")
        nonce_check(a, f"{pfx}_nc", 12, sT0, sT1)
        if Cfg.wpf:
            a(f"s_and_b32 {s(sT0)}, {s(idreg)}, 255")
            a(f"s_lshl_b32 {s(sT0)}, {s(sT0)}, 2")
            a(f"s_add_u32 {s(sT0)}, {s(sT0)}, {s(S_WV)}")
            srd(a, S_B, P_WD, 1728 * 1280)
            srd(a, S_C, P_WO, 640 * 1280)
            a(f"s_mul_i32 {s(sT1)}, {s(sT0)}, {17*128}")
            a(f"s_mul_i32 {s(sT2)}, {s(sT0)}, {7*128}")
            a(f"v_lshlrev_b32 v12, 7, {v(vL)}")
            a("s_mov_b64 exec, 0x1ffff")
            a(f"buffer_load_dword v13, v12, {s(S_B,4)}, {s(sT1)} offen")
            a("s_mov_b64 exec, 0x7f")
            a(f"buffer_load_dword v14, v12, {s(S_C,4)}, {s(sT2)} offen")
            a("s_mov_b64 exec, -1")
            a("s_waitcnt vmcnt(0)")
        pass
    a(f"s_lshl_b32 {s(sT0)}, {s(sQB)}, 12")
    a(f"s_lshl_b32 {s(sT1)}, {s(sQH)}, 11")
    a(f"s_add_u32 {s(sT0)}, {s(sT0)}, {s(sT1)}")
    a(f"s_lshl_b32 {s(sT1)}, {s(sKH)}, 10")
    a(f"s_add_u32 {s(sT3)}, {s(sT0)}, {s(sT1)}")
    a(f"s_xor_b32 {s(sT2)}, {s(sT3)}, 1024")
    a(f"s_add_u32 {s(sQ)}, {s(sT2)}, {s(sK1b)}")
    a(f"s_add_u32 {s(sQ+1)}, {s(sT3)}, {s(sK1b)}")
    a(f"s_add_u32 {s(sQ+2)}, {s(sT2)}, {s(sK2b)}")
    a(f"s_add_u32 {s(sQ+3)}, {s(sT3)}, {s(sK2b)}")
    a(f"s_lshl_b32 {s(sT0)}, {s(sKH)}, 14")
    a(f"s_add_u32 {s(sT0)}, {s(sT0)}, {80*32768}")
    a(f"s_add_u32 {s(sK1b)}, {s(sK1b)}, {s(sT0)}")
    a(f"s_add_u32 {s(sK2b)}, {s(sK2b)}, {s(sT0)}")
    a(f"s_mul_i32 {s(sVb)}, {s(sHD)}, 81920")
    a(f"s_mul_i32 {s(sT0)}, {s(sKH)}, 40960")
    a(f"s_add_u32 {s(sVb)}, {s(sVb)}, {s(sT0)}")
    a(f"s_add_u32 {s(sVb)}, {s(sVb)}, {V_OFF}")
    a(f"s_mov_b32 {s(sG)}, {s(sQB)}")
    def setgrp():
        return [f"s_lshl_b32 {s(sT0)}, {s(sG)}, 11", f"s_add_u32 {s(sK1)}, {s(sK1b)}, {s(sT0)}", f"s_add_u32 {s(sK2)}, {s(sK2b)}, {s(sT0)}",
                f"s_mul_i32 {s(sT0)}, {s(sG)}, 5120", f"s_add_u32 {s(sV)}, {s(sVb)}, {s(sT0)}"]
    a.ext(setgrp())
    a(f"s_mov_b32 {s(sIT)}, 4")
    a(f"s_mul_i32 {s(sT0)}, {s(sKH)}, 10240")
    a(f"s_mul_i32 {s(sLB)}, {s(sQH)}, 5120")
    a(f"s_add_u32 {s(sLB)}, {s(sLB)}, {s(sT0)}")
    a(f"v_lshlrev_b32 {v(vLin)}, 4, {v(vL)}")
    a(f"v_add_u32 {v(vLK1)}, {s(sT0)}, {v(vLin)}")
    a(f"s_add_u32 {s(sT1)}, {s(sT0)}, 2048")
    a(f"v_add_u32 {v(vLV)}, {s(sT1)}, {v(vV0)}")
    a(f"s_add_u32 {s(sT1)}, {s(sT0)}, 4608")
    a(f"v_add_u32 {v(vLK2)}, {s(sT1)}, {v(vK2)}")
    a(f"s_lshl_b32 {s(sT0)}, {s(sQH)}, 10")
    a(f"s_add_u32 {s(sDK)}, {s(sK1b)}, {s(sT0)}")
    a(f"s_add_u32 {s(sT0)}, {s(sK2b)}, {s(sT0)}")
    a(f"s_mul_i32 {s(sT1)}, {s(sQH)}, 2560")
    a(f"s_add_u32 {s(sDV)}, {s(sVb)}, {s(sT1)}")
    a(f"s_add_u32 {s(sT1)}, {s(sDV)}, 2048")
    a(f"v_add_u32 {v(vMB)}, {s(sT1)}, {v(vLin)}")
    a(f"v_mov_b32 {v(vMI)}, 5120")
    a(f"v_bfe_u32 v8, {v(vL)}, 4, 1")
    a(f"v_and_b32 v9, 15, {v(vL)}")
    a(f"v_lshlrev_b32 v9, 4, v9")
    a(f"v_lshl_add_u32 v8, v8, 9, v9")
    a("s_mov_b32 exec_lo, 0")
    a(f"v_add_u32 {v(vMB)}, {s(sT0)}, v8")
    a(f"v_mov_b32 {v(vMI)}, 2048")
    a("s_mov_b32 exec_lo, -1")
    a(f"s_mul_i32 {s(sT0)}, {s(S_WV)}, 6144")
    a(f"s_xor_b32 {s(sT1)}, {s(S_WV)}, 2")
    a(f"s_mul_i32 {s(sT1)}, {s(sT1)}, 6144")
    a(f"v_add_u32 {v(vXW)}, {s(sT0)}, {v(vLin)}")
    a(f"v_add_u32 {v(vXR)}, {s(sT1)}, {v(vLin)}")
    a(f"v_bfe_u32 v8, {v(vL)}, 4, 1")
    a(f"v_lshl_add_u32 {v(vOM)}, v8, 14, v9")
    a(f"v_lshl_add_u32 {v(vOM)}, v7, 8, {v(vOM)}")
    a(f"s_lshl_b32 {s(sT0)}, {s(sQB)}, 2")
    a(f"s_lshl_b32 {s(sT1)}, {s(sQH)}, 1")
    a(f"s_add_u32 {s(sT0)}, {s(sT0)}, {s(sT1)}")
    a(f"s_add_u32 {s(sT0)}, {s(sT0)}, {s(sKH)}")
    a(f"s_lshl_b32 {s(sF3)}, {s(sT0)}, 5")
    a(f"s_add_u32 {s(sF3)}, {s(sF3)}, {s(sHD)}")
    a(f"s_lshl_b32 {s(sF3)}, {s(sF3)}, 6")
    a(f"s_add_u32 {s(sF3)}, {s(sF3)}, {F3_OFF}")
    a(f"s_lshl_b32 {s(sT1)}, {s(sHD)}, 9")
    a(f"s_lshl_b32 {s(sT2)}, {s(sT0)}, 16")
    a(f"s_add_u32 {s(sOM)}, {s(sT1)}, {s(sT2)}")
    a(f"s_add_u32 {s(sOM)}, {s(sOM)}, {O_OFF}")
    a(f"s_add_u32 {s(sOM+1)}, {s(sOM)}, 32768")
    a(f"s_lshl_b32 {s(sT2)}, {s(sT0)}, 14")
    a(f"s_add_u32 {s(sOL)}, {s(sT1)}, {s(sT2)}")
    a(f"s_add_u32 {s(sOL)}, {s(sOL)}, {OL_OFF}")
    if Cfg.fused:
        a(f"s_mul_i32 {s(sT0)}, {s(sHD)}, 20")
        a(f"s_add_u32 {s(sT1)}, {s(sT0)}, 19")
        a(f"s_lshr_b32 {s(sT0)}, {s(sT0)}, 7")
        a(f"s_lshr_b32 {s(sT1)}, {s(sT1)}, 7")
        a(f"s_sub_u32 {s(sT1)}, {s(sT1)}, {s(sT0)}")
        a(f"v_bfe_u32 v12, {v(vL)}, 3, 1")
        a(f"v_mul_u32_u24 v12, {s(sT1)}, v12")
        a(f"v_add_u32 v12, {s(sT0)}, v12")
        a(f"v_bfe_u32 v13, {v(vL)}, 4, 1")
        a(f"v_mad_u32_u24 v13, v13, 5, 5")
        a(f"s_lshl_b32 {s(sT2)}, {s(sKH)}, 3")
        a(f"v_and_b32 v14, 7, {v(vL)}")
        a(f"v_add_u32 v14, {s(sT2)}, v14")
        a(f"s_lshl_b32 {s(sT2)}, {s(sQB)}, 1")
        a(f"s_add_u32 {s(sT2)}, {s(sT2)}, {s(sQH)}")
        a("s_mov_b32 exec_lo, 0")
        a(f"v_mov_b32 v13, 0")
        a(f"v_mov_b32 v14, {s(sT2)}")
        a("s_mov_b32 exec_lo, -1")
        a(f"v_add_u32 v12, v12, v13")
        a(f"v_lshl_add_u32 v12, v12, 4, v14")
        a(f"v_lshlrev_b32 v12, 6, v12")
        a(f"s_nop 0")
        a(f"v_readlane_b32 {s(sT2)}, v12, 31")
        a(f"s_mov_b32 {s(sT3)}, {F1_OFF}")
        a(f"s_nop 1")
        a(f"s_add_u32 {s(sT2)}, {s(sT2)}, {s(sT3)}")
        stamp(a, "a_ready")
        setprio(a, 3)
        if Cfg.p0s >= 0: poll(a, f"{pfx}_p0", None, sT2, 13, sT0, Cfg.p0s)
        poll(a, f"{pfx}_p1", 12, sT3, 13, sT0, Cfg.p1s)
        stamp(a, "a_go")
    for q in range(4):
        a(f"buffer_load_dwordx4 {v(Q+6*q,4)}, {v(vQ1)}, {s(S_WS,4)}, {s(sQ+(q>>1))} offen offset:{(q&1)*512}{SC1}")
    a("s_mov_b32 exec_hi, 0")
    for q in range(4):
        a(f"buffer_load_dwordx2 {v(Q+6*q+4,2)}, {v(vQ2)}, {s(S_WS,4)}, {s(sQ+2+(q>>1))} offen offset:{(q&1)*512}{SC1}")
    a("s_mov_b32 exec_hi, -1")
    def kvload(u):
        b = KV + 14 * u
        return [f"buffer_load_dwordx4 {v(b,4)}, {v(vK1)}, {s(S_WS,4)}, {s(sK1)} offen offset:{u*512}{SC1}",
                f"buffer_load_dwordx2 {v(b+12,2)}, {v(vK2)}, {s(S_WS,4)}, {s(sK2)} offen offset:{u*512}{SC1}",
                f"s_mov_b64 exec, {s(sVM,2)}",
                f"buffer_load_dwordx4 {v(b+4,4)}, {v(vV0)}, {s(S_WS,4)}, {s(sV)} offen offset:{u*1280}{SC1}",
                f"buffer_load_dwordx4 {v(b+8,4)}, {v(vV1)}, {s(S_WS,4)}, {s(sV)} offen offset:{u*1280}{SC1}",
                "s_mov_b64 exec, -1"]
    for u in range(3): a.ext(kvload(u))
    setprio(a, Cfg.prioA)
    stamp(a, "issued")
    a("s_waitcnt vmcnt(8)")
    stamp(a, "q_kv0")
    a(mf32(S, KV, Q, "0"))
    a(mf8(S, KV + 12, Q + 4))
    a("s_nop 11")
    def kvread(u, nxt):
        b = KV + 14 * u; o = nxt * 20480 + (u >> 1) * 5120; sub = u & 1
        return [[f"ds_read_b128 {v(b,4)}, {v(vLK1)} offset:{o+sub*1024}",
                 f"ds_read_b64 {v(b+12,2)}, {v(vLK2)} offset:{o+sub*256}"],
                [f"s_mov_b64 exec, {s(sVM,2)}",
                 f"ds_read_b128 {v(b+4,4)}, {v(vLV)} offset:{o+sub*1280}",
                 f"ds_read_b128 {v(b+8,4)}, {v(vLV)} offset:{o+sub*1280+640}",
                 "s_mov_b64 exec, -1"]]
    def loop(tag, lds):
        a(".p2align 3")
        a(f"{pfx}_loop{tag}:")
        ndma = [0, 0, 0, 0]
        for u in range(4):
            b = KV + 14 * u; bn = KV + 14 * ((u + 1) & 3); bp = KV + 14 * ((u - 1) & 3)
            items = []
            if not lds:
                if u == 0: items = [f"s_xor_b32 {s(sG4)}, {s(sG)}, 4", f"s_add_u32 {s(sG)}, {s(sG)}, 1", f"s_and_b32 {s(sG)}, {s(sG)}, 7"] + setgrp()
                dm = lambda va, so, off: f"buffer_load_dwordx4 {v(va)}, {s(S_WS,4)}, {so} offen offset:{off} sc1 lds"
                if u == 1: items = [f"s_lshl_b32 {s(sT0)}, {s(sG4)}, 11", f"s_mov_b32 m0, {s(sLB)}", [f"s_add_u32 {s(sT0)}, {s(sT0)}, {s(sDK)}", dm(vK1, s(sT0), 0)],
                                    f"s_add_u32 m0, {s(sLB)}, 512", [f"s_mul_i32 {s(sT1)}, {s(sG4)}, 5120", dm(vK1, s(sT0), 512)],
                                    f"s_add_u32 m0, {s(sLB)}, 2048"]
                if u == 2: items = [[f"s_add_u32 {s(sT1)}, {s(sT1)}, {s(sDV)}", dm(vLin, s(sT1), 0)],
                                    [f"v_mad_u32_u24 {v(vM)}, {v(vMI)}, {s(sG4)}, {v(vMB)}"], [dm(vLin, s(sT1), 1024)],
                                    f"s_add_u32 m0, {s(sLB)}, 4096", [f"s_add_u32 {s(sLB)}, {s(sLB)}, 20480", dm(vM, "0", 0)]]
            if lds and u == 1:
                items = [f"s_cmp_eq_u32 {s(sIT)}, 1", [f"s_cbranch_scc1 {pfx}_mb", f"{pfx}_mbr:"]]
            if u == 3:
                items = [f"s_sub_u32 {s(sIT)}, {s(sIT)}, 1", f"s_cmp_lg_u32 {s(sIT)}, 0"]
                if lds: items += [f"v_add_u32 {v(r)}, 0x5000, {v(r)}" for r in (vLK1, vLK2, vLV)]
            ld = kvread((u + 3) & 3, u > 0) if lds else [kvload((u + 3) & 3)[:2], kvload((u + 3) & 3)[2:]]
            if Cfg.x_nokv: ld = [[], []]
            vmw = {0: 8, 1: 10, 2: 13, 3: 11}[u]
            for q in range(4):
                Sc = S + 16 * (q & 1); Sn = S + 16 * ((q + 1) & 1)
                qn, qp = (q + 1) & 3, (q - 1) & 3
                kn = b if q < 3 else bn
                kp = b if q > 0 else bp
                ex = [f"v_exp_f32 {v(Sc+i)}, {v(Sc+i)}" for i in range(16)]
                cv = [f"v_cvt_pk_bf16_f32 {v(P+i)}, {v(Sc+2*i)}, {v(Sc+2*i+1)}" for i in range(8)]
                def free():
                    if items:
                        it = items.pop(0)
                        a.ext(it if isinstance(it, list) else [it])
                a(mf32(Sn, kn, Q + 6 * qn, "0"))
                if q == 0: a.ext(ld[0])
                else: free()
                a.ext(ex[0:4])
                a(mf32(O + 16 * qp, kp + 8, P + 4))
                if q == 0: a.ext(ld[1])
                else: free()
                a.ext(ex[4:8] + cv[0:2])
                a(mf8(Sn, kn + 12, Q + 6 * qn + 4))
                a.ext(ex[8:9] + cv[2:4] + ex[9:12])
                a(mf32(O + 16 * q, b + 4, P))
                if q == 2:
                    assert not any("lds" in str(it) for it in items)
                    a("s_waitcnt vmcnt(0) lgkmcnt(8)" if lds else f"s_waitcnt vmcnt({vmw})")
                else: free()
                a.ext(ex[12:16] + cv[4:8])
            assert not items
        a(f"s_cbranch_scc1 {pfx}_loop{tag}")
    loop("a", False)
    a(f"s_mov_b32 {s(sIT)}, 4")
    a("s_waitcnt vmcnt(4)")
    a("s_barrier")
    stamp(a, "half")
    a(f"s_branch {pfx}_loopb")
    a(f"{pfx}_mb:")
    a("s_barrier")
    a(f"s_branch {pfx}_mbr")
    loop("b", True)
    for j in range(2): a(f"ds_write_b128 {v(vXW)}, {v(O+4*j,4)} offset:{j*1024}")
    a(mf32(O + 48, KV + 14 * 3 + 8, P + 4))
    stamp(a, "loopdone")
    a(f"ds_write_b128 {v(vXW)}, {v(O+8,4)} offset:2048")
    for j in range(3): a(f"ds_write_b128 {v(vXW)}, {v(O+16+4*j,4)} offset:{3072+j*1024}")
    a("s_waitcnt lgkmcnt(0)")
    a("s_barrier")
    R = S
    for t in range(2):
        for j in (2, 0, 1): a(f"ds_read_b128 {v(R+16*t+4*j,4)}, {v(vXR)} offset:{t*3072+j*1024}")
    a(f"{pfx}_fin:")
    for t in range(2):
        o = O + 32 + 16 * t; r = R + 16 * t; d = (14, P)[t]
        pa = lambda i: f"v_pk_add_f32 {v(o+i,2)}, {v(o+i,2)}, {v(r+i,2)}"
        a(f"s_waitcnt lgkmcnt({5-3*t})")
        a(f"v_add_f32 v12, {v(o+8)}, {v(r+8)}")
        a(f"v_add_f32 {v(22+t)}, {v(o+8)}, {v(r+8)}")
        a(pa(8)); a(pa(10))
        a(f"v_permlane32_swap_b32 v12, {v(22+t)}")
        a(f"s_waitcnt lgkmcnt({3-3*t})")
        a(f"v_rcp_f32 v12, {v(22+t)}")
        for i in range(0, 8, 2): a(pa(i))
        for i in range(0, 12, 2): a(f"v_pk_mul_f32 {v(o+i,2)}, {v(o+i,2)}, v[12:13] op_sel_hi:[1,0]")
        for j in range(6): a(f"v_cvt_pk_bf16_f32 {v(d+j if j < 4 else 18+2*t+j-4)}, {v(o+2*j)}, {v(o+2*j+1)}")
        a(f"buffer_store_dwordx4 {v(d,4)}, {v(vOM)}, {s(S_WS,4)}, {s(sOM+t)} offen{SC1}")
    a("s_mov_b32 exec_hi, 0")
    a(f"buffer_store_dwordx4 v[18:21], {v(vLin)}, {s(S_WS,4)}, {s(sOL)} offen{SC1}")
    stamp(a, "o_stored")
    a("s_mov_b32 exec_hi, -1")
    a(f"s_cmp_lg_u32 {s(sIT)}, 0")
    a(f"s_cbranch_scc1 {pfx}_ok")
    LO, HI = (127 - Cfg.lo) << 23, (127 + Cfg.hi) << 23
    a(f"v_subrev_u32 v22, {LO}, v22")
    a(f"v_subrev_u32 v23, {LO}, v23")
    a("v_max_u32 v22, v22, v23")
    a(f"v_cmp_lt_u32 vcc, {HI - LO}, v22")
    a(f"v_add_f32 v12, {v(O+32)}, {v(O+48)}")
    for i in range(1, 12):
        a(f"v_fma_f32 v12, {v(O+32+i)}, 0, v12")
        a(f"v_fma_f32 v12, {v(O+48+i)}, 0, v12")
    a(f"s_movk_i32 {s(sT0)}, 0x207")
    a(f"v_cmp_class_f32 {s(sT2,2)}, v12, {s(sT0)}")
    a("s_nop 0")
    a(f"s_or_b64 vcc, vcc, {s(sT2,2)}")
    a(f"s_cbranch_scc1 {pfx}_fb")
    a(f"{pfx}_ok:")
    a("s_waitcnt vmcnt(0)")
    publish(a, sF3)
    stamp(a, "o_pub")
    a(f"s_branch {pfx}_done")
    a(f"{pfx}_fb:")
    def rewind():
        a(f"s_lshl_b32 {s(sT0)}, {s(sKH)}, 14")
        a(f"s_sub_u32 {s(sK1)}, {s(sK1b)}, {s(sT0)}")
        a(f"s_sub_u32 {s(sK2)}, {s(sK2b)}, {s(sT0)}")
        a(f"s_mul_i32 {s(sT0)}, {s(sKH)}, 40960")
        a(f"s_sub_u32 {s(sV)}, {s(sVb)}, {s(sT0)}")
        a(f"s_mov_b32 {s(sIT)}, 0")
    def advance(lbl):
        a(f"s_add_u32 {s(sK1)}, {s(sK1)}, 512")
        a(f"s_add_u32 {s(sK2)}, {s(sK2)}, 512")
        a(f"s_add_u32 {s(sV)}, {s(sV)}, 1280")
        a(f"s_add_u32 {s(sIT)}, {s(sIT)}, 1")
        a(f"s_cmp_lt_u32 {s(sIT)}, 64")
        a(f"s_cbranch_scc1 {lbl}")
    rewind()
    a("v_mov_b32 v22, 0xff800000")
    a("v_mov_b32 v23, 0xff800000")
    a(f"{pfx}_fb1:")
    a.ext(kvload(0)[:2])
    a("s_waitcnt vmcnt(0)")
    for t in range(2): a(mf32(S + 16 * t, KV, Q + 12 + 6 * t, "0"))
    for t in range(2): a(mf8(S + 16 * t, KV + 12, Q + 16 + 6 * t))
    a("s_nop 11")
    for t in range(2):
        for i in range(0, 16, 2): a(f"v_max3_f32 {v(22+t)}, {v(S+16*t+i)}, {v(S+16*t+i+1)}, {v(22+t)}")
    advance(f"{pfx}_fb1")
    rewind()
    for t in range(2):
        a(f"v_mov_b32 v12, {v(22+t)}")
        a("s_nop 1")
        a(f"v_permlane32_swap_b32 v12, {v(22+t)}")
        a(f"v_max_f32 v12, v12, {v(22+t)}")
        for i in range(16):
            a(f"v_xor_b32 {v(O+16*t+i)}, 0x80000000, v12")
            a(f"v_mov_b32 {v(O+32+16*t+i)}, 0")
    a(f"{pfx}_fb2:")
    a.ext(kvload(0))
    a("s_waitcnt vmcnt(0)")
    for t in range(2): a(mf32(S + 16 * t, KV, Q + 12 + 6 * t, v(O + 16 * t, 16)))
    for t in range(2): a(mf8(S + 16 * t, KV + 12, Q + 16 + 6 * t))
    a("s_nop 11")
    for t in range(2):
        for i in range(16): a(f"v_exp_f32 {v(S+16*t+i)}, {v(S+16*t+i)}")
        for i in range(8): a(f"v_cvt_pk_bf16_f32 {v(P+i)}, {v(S+16*t+2*i)}, {v(S+16*t+2*i+1)}")
        a("s_nop 1")
        a(mf32(O + 32 + 16 * t, KV + 4, P))
        a(mf32(O + 32 + 16 * t, KV + 8, P + 4))
    advance(f"{pfx}_fb2")
    for i in range(32): a(f"v_mov_b32 {v(S+i)}, 0")
    a(f"s_branch {pfx}_fin")
    a(f"{pfx}_done:")

def gen_relayout(a, pfx, idreg, vL, sT, sFH, sFR):
    sK, sC, sPA, sPB, sPC, sPD, sB, sM, sD0, sD1, sF1 = sT
    SW = S_C
    T = 160
    IR, CH = T + 8, T + 13
    a(f"s_mov_b32 {s(SW+3)}, 0x00020000")
    for i in range(5):
        a(f"v_add_u32 {v(T)}, {64*i}, {v(vL)}")
        a(f"v_mul_u32_u24 {v(IR+i)}, 6554, {v(T)}")
        a(f"v_lshrrev_b32 {v(IR+i)}, 16, {v(IR+i)}")
        a(f"v_mul_u32_u24 {v(CH+i)}, 10, {v(IR+i)}")
        a(f"v_sub_u32 {v(CH+i)}, {v(T)}, {v(CH+i)}")
        a(f"v_lshlrev_b32 {v(CH+i)}, 4, {v(CH+i)}")
    a(f"s_mul_i32 {s(sM)}, {s(S_WV)}, 5120")
    a(f"s_mov_b32 {s(sF1)}, 0")
    a(f"{pfx}_rl_loop:")
    a(f"s_and_b32 {s(sC)}, {s(idreg)}, 7")
    a(f"s_lshr_b32 {s(sK)}, {s(idreg)}, 3")
    a(f"s_cmp_lt_u32 {s(sK)}, 54")
    a(f"s_cselect_b32 {s(SW)}, {s(P_WD)}, {s(P_WO)}")
    a(f"s_cselect_b32 {s(SW+1)}, {s(P_WD+1)}, {s(P_WO+1)}")
    a(f"s_mov_b32 {s(sB)}, {640*1280}")
    a(f"s_cselect_b32 {s(SW+2)}, {1728*1280}, {s(sB)}")
    a(f"s_cselect_b32 {s(sPA)}, 8, 20")
    a(f"s_cselect_b32 {s(sPC)}, 16, 8")
    a(f"s_cselect_b32 {s(sPD)}, 0, 54")
    a(f"s_cselect_b32 {s(sD1)}, 32, 40")
    a(f"s_cmp_ge_u32 {s(sK)}, 70")
    a(f"s_cselect_b32 {s(sPA)}, 80, {s(sPA)}")
    a(f"s_cselect_b32 {s(sPB)}, 40, 4")
    a(f"s_cselect_b32 {s(sPC)}, 20, {s(sPC)}")
    a(f"s_cselect_b32 {s(sPD)}, 70, {s(sPD)}")
    a(f"s_cselect_b32 {s(sD1)}, 160, {s(sD1)}")
    a(f"s_cselect_b32 {s(sB)}, 16, 0")
    a(f"s_sub_u32 {s(sPD)}, {s(sK)}, {s(sPD)}")
    a(f"s_mul_i32 {s(sPD)}, {s(sPD)}, {s(sD1)}")
    a(f"s_add_u32 {s(sB)}, {s(sB)}, {s(sPD)}")
    a(f"s_mul_i32 {s(sB)}, {s(sB)}, 1280")
    a(f"s_mul_i32 {s(sPD)}, {s(sC)}, 160")
    a(f"s_add_u32 {s(sB)}, {s(sB)}, {s(sPD)}")
    a(f"s_movk_i32 {s(sPD)}, 1280")
    for i in range(5):
        r, t = T, T + 1
        a(f"v_and_b32 {v(r)}, 3, {v(IR+i)}")
        a(f"v_lshrrev_b32 {v(t)}, 4, {v(IR+i)}")
        a(f"v_mad_u32_u24 {v(r)}, {v(t)}, {s(sPA)}, {v(r)}")
        a(f"v_bfe_u32 {v(t)}, {v(IR+i)}, 3, 1")
        a(f"v_mad_u32_u24 {v(r)}, {v(t)}, {s(sPB)}, {v(r)}")
        a(f"v_bfe_u32 {v(t)}, {v(IR+i)}, 2, 1")
        a(f"v_mad_u32_u24 {v(r)}, {v(t)}, {s(sPC)}, {v(r)}")
        a(f"s_add_u32 m0, {s(sM)}, {i*1024}")
        a(f"v_mad_u32_u24 {v(r)}, {v(r)}, {s(sPD)}, {v(CH+i)}")
        if not Cfg.x_norl & 1: a(f"buffer_load_dwordx4 {v(r)}, {s(SW,4)}, {s(sB)} offen lds")
    a(f"s_mul_i32 {s(sD1)}, {s(sC)}, 74")
    a(f"s_add_u32 {s(sD1)}, {s(sD1)}, {s(sK)}")
    a(f"s_mul_i32 {s(sD1)}, {s(sD1)}, 5120")
    a(f"s_add_u32 {s(sD1)}, {s(sD1)}, {WR_OFF}")
    a(f"s_cmp_ge_u32 {s(idreg)}, 384")
    a(f"s_cbranch_scc1 {pfx}_rl_two")
    a(f"s_mov_b32 {s(sD0)}, {s(sD1)}")
    a(f"s_add_u32 {s(idreg)}, {s(idreg)}, 384")
    a(f"s_add_u32 {s(sM)}, {s(sM)}, 20480")
    a(f"s_cmp_lt_u32 {s(idreg)}, 592")
    a(f"s_cbranch_scc1 {pfx}_rl_loop")
    a(f"s_branch {pfx}_rl_one")
    a(f"{pfx}_rl_two:")
    a(f"s_mov_b32 {s(sF1)}, 1")
    a(f"{pfx}_rl_one:")
    a(f"s_mul_i32 {s(sM)}, {s(S_WV)}, 5120")
    a(f"v_lshrrev_b32 {v(T)}, 4, {v(vL)}")
    a(f"v_bfe_u32 {v(T+1)}, {v(vL)}, 2, 2")
    a(f"v_lshl_add_u32 {v(T)}, {v(T)}, 3, {v(T+1)}")
    a(f"v_mul_u32_u24 {v(T)}, 160, {v(T)}")
    a(f"v_and_b32 {v(T+1)}, 3, {v(vL)}")
    a(f"v_mad_u32_u24 {v(T)}, {v(T+1)}, 40, {v(T)}")
    a(f"v_add_u32 {v(T)}, {s(sM)}, {v(T)}")
    a(f"v_lshlrev_b32 {v(T+1)}, 4, {v(vL)}")
    a(f"v_add_u32 {v(T+2)}, 4096, {v(T+1)}")
    a("s_waitcnt vmcnt(0)")
    a("s_barrier")
    a(f"s_cmp_lg_u32 {s(S_WV)}, 0")
    a(f"s_cbranch_scc1 {pfx}_rl_np")
    publish(a, sFH)
    a(f"{pfx}_rl_np:")
    pass
    for z in range(2):
        D = T + 20 + 20 * z
        if z:
            a(f"s_cmp_eq_u32 {s(sF1)}, 0")
            a(f"s_cbranch_scc1 {pfx}_rl_fin")
        for mt in range(5):
            for u in range(2):
                a(f"ds_read_b64_tr_b16 {v(D+4*mt+2*u,2)}, {v(T)} offset:{z*20480+u*640+8*mt}")
        a("s_waitcnt lgkmcnt(0)")
        for mt in range(5 if not Cfg.x_norl & 2 else 0):
            a(f"buffer_store_dwordx4 {v(D+4*mt,4)}, {v(T+1 if mt < 4 else T+2)}, {s(S_WS,4)}, {s(sD1 if z else sD0)} offen offset:{(mt&3)*1024} sc1")
    a(f"{pfx}_rl_fin:")
    a("s_waitcnt vmcnt(0)")
    a("s_barrier")
    a(f"s_cmp_lg_u32 {s(S_WV)}, 0")
    a(f"s_cbranch_scc1 {pfx}_rl_done")
    publish(a, sFR)
    stamp(a, "rl_pub")
    a(f"{pfx}_rl_done:")

class G2:
    vL, vF, vF2, vW4, vXO = 1, 2, 3, 4, 5
    vBA, vBR = 6, 10
    vFA, vFR = 7, 8
    XR, AS, AD, HF = 12, 22, 96, 116
    WFS = (180, 200)
    WRS = (200, 220, 48, 68)
    sRT, sC8, sM, sW, sH, sIT, sC0, sC1, sPB, sFB = 41, 42, 43, 44, 45, 46, 47, 48, 49, 50
    sT0, sT1, sT2, sT3 = 54, 55, 56, 57
    @staticmethod
    def OF(k): return 116 + 4 * k if k < 16 else 240 + 4 * (k - 16)
    @staticmethod
    def wdma(slot):
        g = G2
        o = [[f"s_add_u32 m0, {s(g.sM)}, {slot*20480}", "s_nop 0"]]
        for i in range(4): o.append([f"buffer_load_dwordx4 {v(g.vF)}, {s(S_WS,4)}, {s(g.sW)} offen offset:{i*1024} sc1 lds"])
        o[0] += o.pop(1)
        o.append([f"s_add_u32 m0, {s(g.sM)}, {slot*20480+4096}", "s_nop 0",
                  f"buffer_load_dwordx4 {v(g.vW4)}, {s(S_WS,4)}, {s(g.sW)} offen sc1 lds", f"s_add_u32 {s(g.sW)}, {s(g.sW)}, 20480"])
        return o
    @staticmethod
    def hload(st):
        g = G2
        o = [[f"buffer_load_dwordx4 {v(g.HF+16*st+4*j,4)}, {v(g.vF)}, {s(S_WS,4)}, {s(g.sH)} offen offset:{j*1024} sc1"] for j in range(4)]
        o[-1].append(f"s_add_u32 {s(g.sH)}, {s(g.sH)}, 4096")
        return o

def g2_start(a, pfx, valu, stores):
    g = G2
    heavy = bool(valu)
    vL, sT0, sT1, sT2 = g.vL, g.sT0, g.sT1, g.sT2
    a(f"s_lshr_b32 {s(g.sC8)}, s2, 5")
    a(f"s_and_b32 {s(sT1)}, s2, 7")
    a(f"s_lshl_b32 {s(g.sRT)}, {s(sT1)}, 2")
    a(f"s_bfe_u32 {s(sT1)}, s2, {3 | (2<<16)}")
    a(f"s_add_u32 {s(g.sRT)}, {s(g.sRT)}, {s(sT1)}")
    a(f"s_lshl_b32 {s(g.sRT)}, {s(g.sRT)}, 2")
    a(f"s_add_u32 {s(g.sRT)}, {s(g.sRT)}, {s(S_WV)}")
    a(f"s_mul_i32 {s(g.sW)}, {s(g.sC8)}, {74*5120}")
    a(f"s_mul_i32 {s(g.sM)}, {s(S_WV)}, 5120")
    a(f"s_add_u32 {s(g.sW)}, {s(g.sW)}, {s(g.sM)}")
    a(f"s_add_u32 {s(g.sW)}, {s(g.sW)}, {WR_OFF}")
    a(f"s_mul_i32 {s(g.sH)}, {s(g.sRT)}, 55296")
    a(f"s_add_u32 {s(g.sH)}, {s(g.sH)}, {H_OFF}")
    a(f"v_lshlrev_b32 {v(g.vF)}, 4, {v(vL)}")
    a(f"v_add_u32 {v(g.vW4)}, 4096, {v(g.vF)}")
    a(f"s_mov_b32 {s(sT0)}, 0")
    a(f"s_cmp_eq_u32 {s(S_WV)}, 0")
    a(f"s_cselect_b32 {s(g.sC0)}, 0, -1")
    a(f"s_cselect_b32 {s(g.sC1)}, 1, -1")
    a(f"s_cselect_b32 {s(g.sPB)}, {0 if heavy else -1}, -1")
    a("s_waitcnt vmcnt(0) lgkmcnt(0)")
    a(f"s_cbranch_scc0 {pfx}_p4_ok")
    a(f"v_cmp_ne_u32 vcc, {v(g.vFR)}, {v(V_NONCE)}")
    a("s_nop 1")
    a(f"s_cbranch_vccz {pfx}_p4_ok")
    poll(a, f"{pfx}_p4", g.vFA, sT0, g.vFR, sT2, Cfg.p4s)
    a("s_barrier")
    stamp(a, "h_go")
    work = list(valu) + [
        f"v_add_u32 {v(g.vF2)}, {3*20480}, {v(g.vF)}",
        f"v_and_b32 {v(g.AD)}, 15, {v(vL)}",
        f"v_mul_u32_u24 {v(g.vXO)}, 1280, {v(g.AD)}",
        f"v_lshrrev_b32 {v(g.AD)}, 4, {v(vL)}",
        f"v_mad_u32_u24 {v(g.vXO)}, {v(g.AD)}, 40, {v(g.vXO)}",
        f"v_min_u32 {v(g.vBA)}, 9, {v(vL)}",
        f"v_lshlrev_b32 {v(g.vBA)}, 6, {v(g.vBA)}"] + [f"v_mov_b32 {v(g.AD+r)}, 0" for r in range(20)]
    groups = g.wdma(0) + g.hload(0) + g.wdma(1) + g.hload(1)
    per = -(-len(work) // len(groups))
    for gr in groups:
        a.ext(gr); a.ext(work[:per]); work = work[per:]
    a.ext(stores)
    a(f"s_lshr_b32 {s(g.sFB)}, {s(g.sRT)}, 3")
    a(f"s_lshl_b32 {s(g.sFB)}, {s(g.sFB)}, 10")
    a(f"s_add_u32 {s(g.sFB)}, {s(g.sFB)}, {F2B_OFF}")

def gen_g2(a, pfx):
    g = G2
    vL, vF, vF2, vW4, vXO, XR, AS, AD, HF, WFS, WRS, OF = g.vL, g.vF, g.vF2, g.vW4, g.vXO, g.XR, g.AS, g.AD, g.HF, g.WFS, g.WRS, g.OF
    sRT, sC8, sM, sW, sH, sIT, sC0, sC1, sPB, sFB = g.sRT, g.sC8, g.sM, g.sW, g.sH, g.sIT, g.sC0, g.sC1, g.sPB, g.sFB
    sT0, sT1, sT2, sT3 = g.sT0, g.sT1, g.sT2, g.sT3
    wdma, hload = g.wdma, g.hload
    WF = WFS[0]; T = 88; U = 48
    SX = S_A
    def emit(gs):
        for x in gs: a.ext(x)
    def wrd(d, slot, ks, mt):
        base, off = (vF2, 0) if slot == 3 else (vF, slot * 20480)
        return f"ds_read_b128 {v(d+4*mt,4)}, {v(base)} offset:{off+ks*5120+mt*1024}"
    a(f"s_mov_b32 {s(sIT)}, 0")
    setprio(a, Cfg.prioD)
    a("s_waitcnt vmcnt(9)")
    a("s_barrier")
    for ks in range(2):
        for mt in range(5): a(wrd(WFS[ks], 0, ks, mt))
    emit(wdma(2)); emit(hload(2)); emit(wdma(3))
    stamp(a, "d_issued")
    a("s_waitcnt lgkmcnt(9)")
    def stage(sl, pend0, vm, after, nks_=4, pre_bar=None, post_bar=None):
        pend = list(pend0)
        for ks in range(nks_):
            nsl, nks = (sl, ks + 2) if ks < 2 else ((sl + 1) & 3, ks - 2)
            d = WFS[ks & 1]
            for mt in range(5):
                a(mf16(AD + 4 * mt, d + 4 * mt, HF + 16 * sl + 4 * ks))
                if ks == 2 and mt == 0:
                    assert not pend
                    a(f"s_waitcnt vmcnt({vm}) lgkmcnt(0)")
                    if pre_bar: a.ext(pre_bar)
                    a("s_barrier")
                    if post_bar: a.ext(post_bar)
                    pend = list(after)
                else:
                    a("s_waitcnt lgkmcnt(8)")
                a(wrd(d, nsl, nks, mt))
                if pend and (5 * ks + mt) % 2 == 0: a.ext(pend.pop(0))
        assert not pend
    a(f"{pfx}_dloop:")
    for sl in range(4):
        p0 = hload((sl - 1) & 3)
        pre = post = None
        if sl == Cfg.chks: p0 = [[f"s_cmp_eq_u32 {s(sIT)}, {s(sC0)}", f"s_cbranch_scc1 {pfx}_c0", f"{pfx}_c0r:"]] + p0
        if sl == 0:
            pre = [f"s_cmp_eq_u32 {s(sIT)}, {s(sC1)}", f"s_cbranch_scc1 {pfx}_c1", f"{pfx}_c1_ok:"]
            post = [f"s_cmp_eq_u32 {s(sIT)}, {s(sPB)}", f"s_cbranch_scc1 {pfx}_pb", f"{pfx}_pbr:"]
        stage(sl, p0, 18, wdma(sl), pre_bar=pre, post_bar=post)
        if sl == 1:
            a(f"s_cmp_eq_u32 {s(sIT)}, 2")
            a(f"s_cbranch_scc1 {pfx}_dtail")
    a(f"s_add_u32 {s(sIT)}, {s(sIT)}, 1")
    a(f"s_branch {pfx}_dloop")
    a(f"{pfx}_pb:")
    publish(a, 100)
    stamp(a, "pub2")
    a(f"s_branch {pfx}_pbr")
    a(f"{pfx}_c0:")
    a(f"buffer_load_dword {v(g.vBR)}, {v(g.vBA)}, {s(S_WS,4)}, {s(sFB)} offen sc1")
    a(f"s_branch {pfx}_c0r")
    a(f"{pfx}_c1:")
    setprio(a, Cfg.prioGv)
    a(f"s_waitcnt vmcnt({4 + 9 * (4 - Cfg.chks)})")
    a(f"v_cmp_ne_u32 vcc, {v(g.vBR)}, {v(V_NONCE)}")
    a("s_nop 1")
    a(f"s_cbranch_vccz {pfx}_p2_ok")
    poll(a, f"{pfx}_p2", g.vBA, sFB, g.vBR, sT2, Cfg.p2s)
    setprio(a, Cfg.prioD)
    stamp(a, "h2_go")
    a(f"s_branch {pfx}_c1_ok")
    a(f"{pfx}_dtail:")
    stage(2, hload(1)[:2], 16, wdma(2))
    stage(3, [], 12, wdma(3))
    stage(0, [], 10, wdma(0))
    stage(1, [], 0, [], nks_=2)
    setprio(a, Cfg.prioGv)
    stamp(a, "d_done")
    srd(a, SX, P_X, 2048 * 1280)
    a(f"s_mul_i32 {s(sT3)}, {s(sRT)}, {16*1280}")
    a(f"s_mul_i32 {s(sT1)}, {s(sC8)}, 160")
    a(f"s_add_u32 {s(sT3)}, {s(sT3)}, {s(sT1)}")
    a("s_waitcnt vmcnt(10)")
    a("s_barrier")
    for ks in range(3):
        for mt in range(5): a(wrd(WRS[1 + ks], 2, ks, mt))
    a(f"buffer_load_dwordx4 {v(XR,4)}, {v(vXO)}, {s(SX,4)}, {s(sT3)} offen")
    a(f"buffer_load_dwordx4 {v(XR+4,4)}, {v(vXO)}, {s(SX,4)}, {s(sT3)} offen offset:16")
    a(f"buffer_load_dwordx2 {v(XR+8,2)}, {v(vXO)}, {s(SX,4)}, {s(sT3)} offen offset:32")
    a("s_waitcnt lgkmcnt(0)")
    a("s_barrier")
    emit(wdma(1))
    a(f"s_cmp_ge_u32 {s(S_WV)}, 2")
    a(f"s_cbranch_scc1 {pfx}_now5")
    emit(wdma(2))
    a(f"{pfx}_now5:")
    setprio(a, Cfg.prioS)
    for r0 in range(0, 20, 4):
        R = range(r0, r0 + 4)
        for r in R: a(f"v_mul_f32 {v(AS+r)}, {f2u(-LOG2E)}, {v(AD+r)}")
        for r in R: a(f"v_exp_f32 {v(AS+r)}, {v(AS+r)}")
        for r in R: a(f"v_add_f32 {v(AS+r)}, 1.0, {v(AS+r)}")
        for r in R: a(f"v_rcp_f32 {v(AS+r)}, {v(AS+r)}")
        for r in R: a(f"v_mul_f32 {v(AD+r)}, {v(AD+r)}, {v(AS+r)}")
    srd(a, SX, P_OUT, 2048 * 1280)
    a(f"s_lshl_b32 {s(sH)}, {s(sRT)}, 14")
    a(f"s_add_u32 {s(sH)}, {s(sH)}, {O_OFF}")
    a(f"s_lshr_b32 {s(sT1)}, {s(sRT)}, 2")
    a(f"s_lshl_b32 {s(sW)}, {s(sT1)}, 14")
    a(f"s_and_b32 {s(sT0)}, {s(S_WV)}, 1")
    a(f"s_lshl_b32 {s(sT0)}, {s(sT0)}, 8")
    a(f"s_add_u32 {s(sW)}, {s(sW)}, {s(sT0)}")
    a(f"s_lshr_b32 {s(sT0)}, {s(S_WV)}, 1")
    a(f"s_lshl_b32 {s(sT0)}, {s(sT0)}, 3")
    a(f"s_add_u32 {s(sW)}, {s(sW)}, {s(sT0)}")
    a(f"s_add_u32 {s(sW)}, {s(sW)}, {OL_OFF}")
    a(f"v_lshrrev_b32 {v(T+2)}, 4, {v(vL)}")
    a(f"v_and_b32 {v(T+3)}, 0xff, {v(vF)}")
    a(f"v_lshl_add_u32 {v(T+2)}, {v(T+2)}, 10, {v(T+3)}")
    a(f"s_lshl_b32 {s(sT1)}, {s(sT1)}, 11")
    a(f"s_add_u32 {s(sT1)}, {s(sT1)}, {F3_OFF}")
    a(f"v_and_b32 {v(T)}, 31, {v(vL)}")
    a(f"v_lshlrev_b32 {v(T)}, 6, {v(T)}")
    setprio(a, Cfg.prioGv)
    stamp(a, "wo_ready")
    a("s_waitcnt vmcnt(0)")
    a(f"s_cmp_lg_u32 {s(S_WV)}, 0")
    a(f"s_cbranch_scc1 {pfx}_p3_ok")
    poll(a, f"{pfx}_p3", T, sT1, T + 1, sT2, Cfg.p3s)
    a("s_barrier")
    stamp(a, "o_go")
    NL = Cfg.onl
    ol = []
    for k in range(16):
        o = [f"buffer_load_dwordx4 {v(OF(k),4)}, {v(vF)}, {s(S_WS,4)}, {s(sH)} offen offset:{(k&3)*1024}{SC1}"]
        if k & 3 == 3 and k < 15: o.append(f"s_add_u32 {s(sH)}, {s(sH)}, 4096")
        ol.append(o)
    for k in range(16, 20):
        for sec in range(2):
            o = [f"buffer_load_dwordx2 {v(OF(k)+2*sec,2)}, {v(T+2)}, {s(S_WS,4)}, {s(sW)} offen offset:{sec*512}{SC1}"]
            if sec and k < 19: o.append(f"s_add_u32 {s(sW)}, {s(sW)}, 4096")
            ol.append(o)
    need = lambda k: k + 1 if k < 16 else 16 + 2 * (k - 15)
    for k in range(NL): a.ext(ol[k])
    def wloc(k):
        st = 54 + k
        if st >= 72: return (2, st - 72)
        return ((st >> 2) & 3, st & 3)
    a(f"s_waitcnt vmcnt({NL-1})")
    nl = NL
    for k in range(20):
        for mt in range(5):
            src = WF if (k == 0 or k >= 5) else WRS[k - 1]
            a(mf16(AS + 4 * mt, src + 4 * mt, OF(k), "0" if k == 0 else None))
            w = []
            if mt == 4 and k < 19: w.append(f"vmcnt({nl-need(k+1)})")
            if k == 4 and mt == 4: w.append("lgkmcnt(0)")
            if k >= 5 and not (k == 19 and mt == 4): w.append(f"lgkmcnt({3 if k < 19 else 3-mt})")
            if w: a("s_waitcnt " + " ".join(w))
            if k == 0: a(wrd(WF, *wloc(5), mt))
            if 5 <= k < 19: a(wrd(WF, *wloc(k + 1), mt))
            if nl < 24 and (mt == 0 or (mt == 2 and k % 4 == 1)):
                a.ext(ol[nl]); nl += 1
            if 8 <= k < 18 and mt in (1, 3):
                j = k - 8
                a(f"v_lshlrev_b32 {v(U+2*j)}, 16, {v(XR+j)}" if mt == 1 else f"v_and_b32 {v(U+2*j+1)}, 0xffff0000, {v(XR+j)}")
    stamp(a, "wo_done")
    for lo, hi in ((0, 8), (8, 16), (16, 20)):
        for r in range(lo, hi): a(f"v_fma_f32 {v(U+r)}, {v(AS+r)}, {v(AD+r)}, {v(U+r)}")
        for j in range(lo // 2, hi // 2): a(f"v_cvt_pk_bf16_f32 {v(XR+j)}, {v(U+2*j)}, {v(U+2*j+1)}")
        n = (hi - lo) // 2
        if Cfg.diag and lo == 0:
            a(f"s_or_b32 {s(sT0)}, s2, {s(S_WV)}")
            a(f"s_cmp_lg_u32 {s(sT0)}, 0")
            a(f"s_cbranch_scc1 {pfx}_nodiag")
            a(f"s_add_u32 s52, {s(P_WS)}, 0x8000000")
            a(f"s_addc_u32 s53, {s(P_WS+1)}, 0")
            a("s_load_dwordx2 s[60:61], s[52:53], 0")
            a("s_waitcnt lgkmcnt(0)")
            a("s_cmp_eq_u32 s60, s61" if Cfg.diag == 1 else "s_cmp_lg_u32 s60, s61")
            a(f"s_cbranch_scc1 {pfx}_nodiag")
            nm = St.names[St.cur]
            sel = ["x0", "centered", "ep1", "mm3", "h_go", "d_done", "o_go", "wo_done"]
            prev = "start"
            if Cfg.dsel: sel = [["wo_done", "x0", "centered", "ep1", "mm3", "h_go"][Cfg.dsel - 1]] * 2
            a("s_mov_b64 exec, 1")
            for i, x in enumerate(sel):
                a(f"s_sub_u32 s60, {s(64+nm.index(x))}, {s(64+nm.index(prev))}")
                a(f"v_cvt_f32_u32 {v(T+(i&1))}, s60")
                a(f"v_mul_f32 {v(T+(i&1))}, {f2u(0.01)}, {v(T+(i&1))}")
                if i & 1: a(f"v_cvt_pk_bf16_f32 {v(XR+i//2)}, {v(T)}, {v(T+1)}")
                prev = x
            a("s_mov_b64 exec, -1")
            a(f"{pfx}_nodiag:")
        a(f"buffer_store_dwordx{n} {v(XR+lo//2,n)}, {v(vXO)}, {s(SX,4)}, {s(sT3)} offen offset:{2*lo}" + ("", " sc1", " nt", " sc0 sc1")[Cfg.ost])

def kd(name, nv=256):
    return f""".amdhsa_kernel {name}
  .amdhsa_next_free_vgpr {nv}
  .amdhsa_next_free_sgpr 102
  .amdhsa_accum_offset {nv}
  .amdhsa_group_segment_fixed_size 0
  .amdhsa_kernarg_size 80
  .amdhsa_user_sgpr_count 2
  .amdhsa_user_sgpr_kernarg_segment_ptr 1
  .amdhsa_system_sgpr_workgroup_id_x 1
  .amdhsa_float_denorm_mode_32 3
.end_amdhsa_kernel
"""
def head(a, name, n):
    a(f".globl {name}"); a(".p2align 8"); a(f".type {name},@function"); a(f"{name}:")
    a(f"s_cmp_ge_u32 s2, {n}")
    a(f"s_cbranch_scc1 {name}_end")
    load_args(a)
def tail(a, name):
    a(f"{name}_end:"); a("s_endpgm")

def build1():
    Cfg.fused = True
    a = Asm()
    name = NAME + "_kernel"
    a("; @launch grid=(512,1,1) block=(256,1,1) lds=81920")
    a('.amdgcn_target "amdgcn-amd-amdhsa--gfx950"')
    a(".text")
    head(a, name, 512)
    if Cfg.cpf == 2:
        a("s_getpc_b64 s[54:55]")
        a("L_pc:")
        a("s_and_b32 s56, s2, 0x1f8")
        a("v_lshrrev_b32 v2, 5, v0")
        a("v_and_b32 v3, 1, v0")
        a("v_add3_u32 v2, v2, v3, s56")
        a("v_lshlrev_b32 v2, 7, v2")
        a(f"v_min_u32 v2, {name}_end-L_pc, v2")
        a("s_mov_b64 exec, 3")
        a("global_load_dword v255, v2, s[54:55]")
        a("s_mov_b64 exec, -1")
    a("s_cmp_ge_u32 s2, 256")
    a("s_cbranch_scc1 L_att")
    stamp_begin(a, 0); stamp(a, "start"); gen_g1(a, "g1"); gen_g2(a, "g2"); stamp_end(a, 0, 2)
    a("s_endpgm")
    a("L_att:")
    stamp_begin(a, 1); stamp(a, "start"); gen_att(a, "att", 2); stamp_end(a, 1, 2)
    tail(a, name)
    a('.section .rodata,"a"')
    a(".p2align 6"); a.lines.append(kd(name))
    return a.text()

if __name__ == "__main__":
    if "--stamps" in sys.argv:
        sys.argv.remove("--stamps"); STAMPS = True
    if "--cyc" in sys.argv:
        sys.argv.remove("--cyc"); STAMPS = "cyc"
    three = "--three" in sys.argv
    if three: sys.argv.remove("--three")
    for x in list(sys.argv):
        if "=" in x:
            k_, v_ = x.split("="); setattr(Cfg, k_, int(v_)); sys.argv.remove(x)
    t = build1()
    if STAMPS:
        import json; json.dump(St.names, open(sys.argv[1].replace(".s", ".json"), "w"))
    out = sys.argv[1] if len(sys.argv) > 1 else f"cdna_kernels/{NAME}.s"
    body = t[:t.index('.section .rodata')]
    pr = check_hazards(body)
    for p in pr: print("HAZARD", p)
    open(out, "w").write(t)
    print("written", out, len(t), "bytes;", len(pr), "hazards")
```

```python
import sys, math, struct
from asmlib import *

NAME = "recurrent_scan__softmax_full_mha__geglu_ffn__prompt"
QK_OFF = 0
V_OFF = 160 * 32768
H_OFF = V_OFF + 32 * 81920
O_OFF = H_OFF + 128 * 55296
OL_OFF = O_OFF + 128 * 16384
FLAG_OFF = O_OFF + 128 * 20480
def f2u(x): return "0x%08x" % struct.unpack("<I", struct.pack("<f", x))[0]
LOG2E = math.log2(math.e)
QSCALE = 20 ** -0.5 * LOG2E
GC0 = -2.0 * LOG2E * math.sqrt(2.0 / math.pi)
GC1 = GC0 * 0.044715
SC1 = " sc1"

P_X, P_WQKV, P_WO, P_WG, P_WU, P_WD, P_OUT, P_DBG, P_WS = 4, 6, 8, 12, 14, 16, 18, 20, 22
S_WS = 24
S_A = 28
S_B = 32
S_C = 36
S_WV = 40

def srd(a, d, p, nbytes):
    a(f"s_mov_b32 {s(d)}, {s(p)}")
    a(f"s_mov_b32 {s(d+1)}, {s(p+1)}")
    a(f"s_mov_b32 {s(d+2)}, {nbytes}")
    a(f"s_mov_b32 {s(d+3)}, 0x00020000")

WR_OFF = FLAG_OFF
FLAG_OFF = WR_OFF + 8 * 74 * 5120
F4_OFF = FLAG_OFF + 32768 + 65536
F2B_OFF = F4_OFF + 8192
F1_OFF = FLAG_OFF
F2_OFF = FLAG_OFF + 16384
F3_OFF = FLAG_OFF + 32768
FH_OFF = F2B_OFF + 16384
F0_OFF = FH_OFF + 16384
WS_BYTES = F0_OFF + 16384
V_NONCE = 11
class Cfg:
    fused = True
    prioA = 1; prioGm = 0; prioGv = 2; prioD = 0
    rot = True
    ns = 3; drot = 0; cpf = 2; nw0 = 2; pubk = 7; aord = 1; x_norl = 0; hiN = 0; p3s = 1; p4s = 8; p2s = 2; chks = 3; x_hot = 0; x_nokv = 0; wpf = 0; x_nolo = 0; p0s = 4; p1s = 1; prioS = 2; onl = 10; carry = 3; gap = 3; gap0 = 3; x_body = 0; tch = 0; bal = 0; diag = 0; dsel = 0; ost = 0; tlb = 0; lo = 24; hi = 48; pk = 3; otch = 0; lag = 1; mbu = 3; prioE = 3; thl = 3; ths = 3; early = 1; hiL = 5; hiE = 6; rpn = 12; adw = 1; oln = 4; tc = 2; x_gexit = 0; w0e = 1; pzk = 15; tha = -1
def setprio(a, p):
    if Cfg.fused: a(f"s_setprio {p}")
def publish(a, soff):
    a("s_mov_b64 exec, 1")
    a(f"buffer_store_dword {v(V_NONCE)}, off, {s(S_WS,4)}, {s(soff)} sc1")
    a("s_mov_b64 exec, -1")
def poll(a, lbl, vaddr, soff, vt, scnt, sleep):
    a(f"s_mov_b32 {s(scnt)}, 0x20000")
    a(f"{lbl}:")
    if vaddr is None: a(f"buffer_load_dword {v(vt)}, off, {s(S_WS,4)}, {s(soff)} sc1")
    else: a(f"buffer_load_dword {v(vt)}, {v(vaddr)}, {s(S_WS,4)}, {s(soff)} offen sc1")
    a("s_waitcnt vmcnt(0)")
    a(f"v_cmp_ne_u32 vcc, {v(vt)}, {v(V_NONCE)}")
    a(f"s_sub_u32 {s(scnt)}, {s(scnt)}, 1")
    a(f"s_cbranch_scc1 {lbl}_ok")
    a(f"s_cbranch_vccz {lbl}_ok")
    if sleep: a(f"s_sleep {sleep}")
    a(f"s_branch {lbl}")
    a(f"{lbl}_ok:")
def nonce_load(a, vz):
    a(f"global_load_dword {v(V_NONCE)}, {v(vz)}, {s(P_DBG,2)} sc1")
def nonce_check(a, lbl, vz, st, scnt, ok=None):
    ok = ok or f"{lbl}_ok"
    a(f"s_mov_b32 {s(scnt)}, 0x20000")
    a(f"{lbl}:")
    a(f"v_readfirstlane_b32 {s(st)}, {v(V_NONCE)}")
    a(f"s_sub_u32 {s(scnt)}, {s(scnt)}, 1")
    a(f"s_cbranch_scc1 {ok}")
    a(f"s_cmp_lg_u32 {s(st)}, 0")
    a(f"s_cbranch_scc1 {ok}")
    a("s_sleep 2")
    a(f"v_mov_b32 {v(vz)}, 0")
    nonce_load(a, vz)
    a("s_waitcnt vmcnt(0)")
    a(f"s_branch {lbl}")
    a(f"{lbl}_ok:")

STAMPS = False
class St:
    n = 0; names = {}; cur = None
LITE = False
def stamp(a, name):
    if not STAMPS or (LITE and name not in ("start", "end")): return
    l = St.names.setdefault(St.cur, [])
    if name not in l: l.append(name)
    i = l.index(name)
    a("s_waitcnt lgkmcnt(0)")
    a("s_memtime s[62:63]" if STAMPS == "cyc" else "s_memrealtime s[62:63]")
    a("s_waitcnt lgkmcnt(0)")
    a(f"s_mov_b32 {s(64+i)}, s62")
def stamp_begin(a, role):
    St.cur = role
    if not STAMPS: return
    for i in range(32 if not LITE else 0): a(f"s_mov_b32 {s(64+i)}, 0")
def stamp_end(a, slot, idreg):
    if not STAMPS: return
    a("s_waitcnt vmcnt(0) lgkmcnt(0)")
    stamp(a, "end")
    a("s_mov_b64 exec, -1")
    a("v_mov_b32 v20, 0")
    for i in range(32 if not LITE else 2): a(f"v_writelane_b32 v20, {s(64+i)}, {i}")
    a(f"s_and_b32 s62, {s(idreg)}, 255")
    a("s_lshl_b32 s62, s62, 2")
    a(f"s_add_u32 s62, s62, {s(S_WV)}")
    a(f"s_add_u32 s62, s62, {slot*1024}")
    a("s_lshl_b32 s62, s62, 7")
    a(f"s_add_u32 s62, s62, {WS_BYTES}")
    a(f"s_mov_b32 {s(S_WS+2)}, {WS_BYTES + (1<<20)}")
    a("v_lshlrev_b32 v21, 2, v1")
    a("s_mov_b32 exec_hi, 0")
    a(f"buffer_store_dword v20, v21, {s(S_WS,4)}, s62 offen")

_tc = [0]
def touch(l0, l1, sp, vaddr, vdst, vL=1):
    _tc[0] += 1; t = f"L_tc{_tc[0]}"
    return [f"s_getpc_b64 {s(sp,2)}", f"{t}:", f"s_add_u32 {s(sp)}, {s(sp)}, {l0}-{t}", f"s_addc_u32 {s(sp+1)}, {s(sp+1)}, 0",
            f"v_lshlrev_b32 {v(vaddr)}, 7, {v(vL)}", f"v_min_u32 {v(vaddr)}, {l1}-{l0}, {v(vaddr)}",
            f"global_load_dword {v(vdst)}, {v(vaddr)}, {s(sp,2)}"]

def pk(op, d, srcs):
    ops = []; lo = []; hi = []
    for x in srcs:
        if x >= 0: ops.append(v(x, 2)); lo.append(0); hi.append(1)
        else:
            r = -x - 1; ops.append(v(r & ~1, 2)); lo.append(r & 1); hi.append(r & 1)
    f = lambda l: "[" + ",".join(map(str, l)) + "]"
    return f"v_pk_{op}_f32 {v(d,2)}, " + ", ".join(ops) + f" op_sel:{f(lo)} op_sel_hi:{f(hi)}"

class Trk:
    def __init__(self): self.l = []
    def add(self, tag): self.l.append(tag)
    def mark(self, tag): self.l.append(("opt", tag))
    def n(self, tag):
        i = max(j for j, t in enumerate(self.l) if t == tag or t == ("opt", tag))
        return sum(1 for t in self.l[i+1:] if not (isinstance(t, tuple) and t[0] == "opt"))

def load_args(a):
    a("s_load_dwordx16 s[4:19], s[0:1], 0")
    a("s_load_dwordx4 s[20:23], s[0:1], 64")

def gen_g1(a, pfx):
    X, ACC, G, WF = 96, 32, 64, 16
    vL = 1
    vTA, vTB, vTA2, vTB2, vD, vDR, vDCo, vST = 2, 3, 4, 5, 6, 7, 8, 9
    CN = (10, 12, 13, 14, 15, 0)
    vA0, vB0, vK0, vA1, vB1, vK1 = CN
    vA, vB, vK = (vA0, vA1), (vB0, vB1), (vK0, vK1)
    VR, VA = G + 16, G + 24
    sRB, sCG, sTT, sM, sN, sNT, sNQ, sP0 = 41, 42, 43, 44, 45, 46, 47, 48
    sO, sDA, sDB, sDC, sS = 49, 50, 51, 52, 53
    sT0, sT1, sT2, sT3, sSO = 54, 55, 56, 57, 58
    sSW, sCHK, sC2, sPB0, sHI = 59, 97, 36, 37, 98
    sROT, sXB, sXC, sPUB, sF, sU = 96, 97, 98, 99, 100, 101
    SW = S_B
    t0, t1, t2 = G, G + 1, G + 2
    a(f"v_and_b32 {v(vL)}, 63, v0")
    a(f"v_lshrrev_b32 {v(t2)}, 6, v0")
    a(f"s_and_b32 {s(sT0)}, s2, 7")
    a(f"v_readfirstlane_b32 {s(S_WV)}, {v(t2)}")
    a(f"s_lshr_b32 {s(sT1)}, s2, 3")
    a(f"s_lshr_b32 {s(sRB)}, {s(sT0)}, 1")
    a(f"s_lshl_b32 {s(sRB)}, {s(sRB)}, 2")
    a(f"s_and_b32 {s(sROT)}, {s(sT1)}, 3")
    a(f"s_add_u32 {s(sRB)}, {s(sRB)}, {s(sROT)}")
    a(f"s_lshr_b32 {s(sT2)}, {s(sT1)}, 2")
    if Cfg.rot == 2: a(f"s_mov_b32 {s(sROT)}, {s(sT2)}")
    elif Cfg.rot == 3:
        a(f"s_and_b32 {s(sROT)}, {s(sROT)}, 1")
        a(f"s_lshl_b32 {s(sROT)}, {s(sROT)}, 1")
        a(f"s_add_u32 {s(sROT)}, {s(sROT)}, {s(sT2)}")
    else: a(f"s_add_u32 {s(sROT)}, {s(sROT)}, {s(sT2)}")
    a(f"s_lshl_b32 {s(sTT)}, {s(sRB)}, 2")
    a(f"s_add_u32 {s(sTT)}, {s(sTT)}, {s(S_WV)}")
    a(f"s_mul_i32 {s(sT3)}, {s(sROT)}, 13")
    a(f"s_lshr_b32 {s(sT3)}, {s(sT3)}, 6")
    a(f"s_mul_i32 {s(sT3)}, {s(sT3)}, 5")
    a(f"s_sub_u32 {s(sROT)}, {s(sROT)}, {s(sT3)}")
    if not Cfg.rot: a(f"s_mov_b32 {s(sROT)}, 0")
    vXA = ACC
    a(f"v_lshrrev_b32 {v(t0)}, 4, {v(vL)}")
    a(f"v_mul_u32_u24 {v(vXA)}, 1280, {v(t0)}")
    a(f"v_and_b32 {v(t1)}, 15, {v(vL)}")
    a(f"v_xor_b32 {v(vXA+1)}, {v(t0)}, {v(t1)}")
    a(f"v_lshl_add_u32 {v(vXA)}, {v(vXA+1)}, 4, {v(vXA)}")
    for i in range(1, 4): a(f"v_xor_b32 {v(vXA+i)}, {64*i}, {v(vXA)}")
    a(f"s_lshl_b32 {s(sM)}, {s(S_WV)}, 12")
    a(f"s_mul_i32 {s(sXB)}, {s(sTT)}, 40960")
    a(f"s_lshl_b32 {s(sXC)}, {s(sROT)}, 8")
    XS = (4, 1, 2, 3, 0, 4, 1, 2, 3, 4) if Cfg.w0e else (0, 1, 2, 3, 4, 0, 1, 2, 3, 4)
    def xdma(b):
        out = []
        for i in range(4):
            g = []
            if i == 0:
                g += [f"s_add_u32 m0, {s(sM)}, {XS[b]*16384}", f"s_add_u32 {s(sU)}, {s(sXB)}, {s(sXC)}"]
            g.append(f"buffer_load_dwordx4 {v(vXA+i)}, {s(S_A,4)}, {s(sU)} offen offset:{i*1024} lds")
            if i < 3: g.append(f"s_add_u32 {s(sU)}, {s(sU)}, 4096")
            else:
                g += [f"s_add_u32 {s(sXC)}, {s(sXC)}, 256", f"s_cmp_ge_u32 {s(sXC)}, 1280", f"s_cselect_b32 {s(sXC)}, 0, {s(sXC)}"]
                if b == 4: g.append(f"s_add_u32 {s(sXB)}, {s(sXB)}, 20480")
            out.append(g)
        return out
    su = Asm()
    su(f"s_and_b32 {s(sCG)}, {s(sT0)}, 1")
    su(f"s_add_u32 {s(sCG)}, {s(sCG)}, {s(sT2)}" if Cfg.bal else f"s_lshl_b32 {s(sCG)}, {s(sCG)}, 3")
    su(f"s_add_u32 {s(sCG)}, {s(sCG)}, {s(sT2)}")
    su(f"s_lshr_b32 {s(sC2)}, {0b101011010110101 if Cfg.early else 0}, {s(sCG)}")
    su(f"s_and_b32 {s(sC2)}, {s(sC2)}, 1")
    su(f"s_lshl1_add_u32 {s(sC2)}, {s(sCG)}, {s(sC2)}")
    srd(su, S_WS, P_WS, WS_BYTES)
    su(f"s_cmp_lt_u32 {s(sCG)}, 15\ns_cselect_b32 {s(sNQ)}, 2, 0\ns_cselect_b32 {s(sSW)}, 1, -1@")
    su(f"s_cmp_lt_u32 {s(sCG)}, 10\ns_cselect_b32 {s(sNT)}, 6, 4\ns_cselect_b32 {s(sP0)}, 17, 1@")
    su(f"s_mov_b32 {s(SW+3)}, 0x00020000")
    su(f"s_mov_b32 {s(sN)}, -1")
    vR0, vR4 = ACC + 4, ACC + 8
    vSm, vGr, vNM, vON = ACC + 12, (ACC + 16, ACC + 20), ACC + 24, ACC + 28
    vSE, vBP, vMu = G + 6, G + 5, (G + 12, G + 13)
    CTS = ((WF, WF + 8, G + 16), (ACC, G + 16, ACC + 8))
    sMA, sMB = 60, 38
    su(f"v_xor_b32 {v(vR0)}, {v(t0)}, {v(t1)}")
    su(f"v_lshlrev_b32 {v(vR0)}, 4, {v(vR0)}")
    su(f"v_lshl_add_u32 {v(vR0)}, {v(t1)}, 8, {v(vR0)}")
    su(f"v_add_u32 {v(vR0)}, {s(sM)}, {v(vR0)}")
    for q in range(1, 4): su(f"v_xor_b32 {v(vR0+q)}, {64*q}, {v(vR0)}")
    for q in range(4): su(f"v_add_u32 {v(vR4+q)}, 0x10000, {v(vR0+q)}")
    for i in range(4): su(f"v_mov_b32 {v(vON+i)}, 0x3f803f80")
    for i in (0, 1, 4, 5): su(f"v_mov_b32 {v(vSE+i)}, 0")
    su(f"s_mov_b32 {s(sMA)}, 0xaaaaaaaa"); su(f"s_mov_b32 {s(sMA+1)}, 0xaaaaaaaa")
    su(f"s_mov_b32 {s(sMB)}, 0xcccccccc"); su(f"s_mov_b32 {s(sMB+1)}, 0xcccccccc")
    su(f"v_and_b32 {v(vBP)}, 1, {v(vL)}")
    su(f"v_lshlrev_b32 {v(vBP)}, 4, {v(vBP)}")
    su(f"v_mov_b32 {v(vSE+2)}, 0x3f80")
    su(f"v_lshlrev_b32 {v(vSE+2)}, {v(vBP)}, {v(vSE+2)}")
    su(f"v_bfe_u32 {v(vBP)}, {v(vL)}, 2, 2")
    su(f"v_cmp_eq_u32 vcc, {v(vBP)}, {v(t0)}")
    su(f"v_lshl_add_u32 {v(vBP)}, {v(vBP)}, 4, {v(t1)}")
    su(f"v_lshlrev_b32 {v(vBP)}, 2, {v(vBP)}")
    su(f"v_cndmask_b32 {v(vSE+2)}, 0, {v(vSE+2)}, vcc")
    su(f"v_cndmask_b32 {v(vSE+3)}, 0, {v(vSE+2)}, {s(sMB,2)}")
    su(f"v_cndmask_b32 {v(vSE+2)}, {v(vSE+2)}, 0, {s(sMB,2)}")
    t3, t4 = G + 3, G + 4
    su(f"v_bfe_u32 {v(t3)}, {v(vL)}, 4, 1")
    su(f"v_bfe_u32 {v(t4)}, {v(vL)}, 2, 2")
    su(f"v_lshl_add_u32 {v(vDR)}, {v(t3)}, 3, {v(t4)}")
    su(f"v_lshl_add_u32 {v(vDR)}, {v(t2)}, 5, {v(vDR)}")
    su(f"v_lshlrev_b32 {v(vDCo)}, 1, {v(t3)}")
    su(f"v_and_b32 {v(vD)}, 3, {v(vL)}")
    su(f"v_xor_b32 {v(vDCo)}, {v(vDCo)}, {v(vD)}")
    su(f"v_lshlrev_b32 {v(vDCo)}, 4, {v(vDCo)}")
    su(f"v_lshrrev_b32 {v(t2)}, 5, {v(vL)}")
    su(f"v_lshl_add_u32 {v(vDCo)}, {v(t2)}, 6, {v(vDCo)}")
    su(f"v_lshlrev_b32 {v(vTA)}, 11, {v(t2)}")
    su(f"v_mad_u32_u24 {v(vTA)}, {v(t3)}, {s(sT3)}, {v(vTA)}")
    su(f"v_lshl_add_u32 {v(vTA)}, {v(t4)}, 6, {v(vTA)}")
    su(f"v_lshl_add_u32 {v(vTA)}, {v(vD)}, 3, {v(vTA)}")
    su(f"v_xor_b32 {v(vTB)}, 32, {v(vTA)}")
    su(f"v_add_u32 {v(vTA2)}, 0x10000, {v(vTA)}")
    su(f"v_add_u32 {v(vTB2)}, 0x10000, {v(vTB)}")
    su(f"v_lshl_add_u32 {v(vST)}, {v(t3)}, 1, {v(t2)}")
    su(f"v_lshlrev_b32 {v(vST)}, 15, {v(vST)}")
    su(f"v_lshl_add_u32 {v(vST)}, {v(t1)}, 4, {v(vST)}")
    su(f"s_lshl_b32 {s(sT1)}, {s(sC2)}, 6")
    su(f"s_sub_u32 {s(sT1)}, {s(sT1)}, 1280")
    su(f"s_and_b32 {s(sT1)}, {s(sT1)}, 1023")
    su(f"s_mov_b32 {s(sT2)}, {81920-320}")
    su(f"v_mul_u32_u24 {v(t0)}, 320, {v(t0)}")
    su(f"v_add_u32 {v(t1)}, {s(sT1)}, {v(t1)}")
    for i in range(8):
        su(f"v_mul_u32_u24 {v(t2)}, 3277, {v(t1)}")
        su(f"v_lshrrev_b32 {v(t2)}, 16, {v(t2)}")
        su(f"v_lshl_add_u32 {v(VA+i)}, {v(t1)}, 4, {v(t0)}")
        su(f"v_mad_u32_u24 {v(VA+i)}, {v(t2)}, {s(sT2)}, {v(VA+i)}")
        if i == 3: su(f"v_xor_b32 {v(t1)}, 0x70, {v(t1)}")
        elif i < 7: su(f"v_add_u32 {v(t1)}, 16, {v(t1)}")
    def params_a():
        return [f"s_add_u32 {s(sT0)}, {s(sN)}, 1",
                f"s_sub_u32 {s(sT1)}, {s(sT0)}, {s(sNQ)}",
                f"s_lshr_b32 {s(sT1)}, {s(sT1)}, 1",
                f"s_mul_i32 {s(sT1)}, {s(sT1)}, {s(sP0)}",
                f"s_add_u32 {s(sT1)}, {s(sT1)}, {s(sCG)}",
                f"s_xor_b32 {s(sT2)}, {s(sC2)}, {s(sT0)}",
                f"s_movk_i32 {s(sS)}, 3456",
                f"s_cmp_lt_u32 {s(sT0)}, {s(sNQ)}\ns_cselect_b32 {s(sT1)}, {s(sT2)}, {s(sT1)}\ns_cselect_b32 {s(sS)}, 3840, {s(sS)}",
                f"s_mul_i32 {s(sT2)}, {s(sROT)}, {s(sS)}",
                f"s_add_u32 {s(sT1)}, {s(sT1)}, {s(sT2)}"]
    def params_b():
        return [f"s_bitcmp1_b32 {s(sT0)}, 0\ns_cselect_b32 {s(SW)}, {s(P_WU)}, {s(P_WG)}\ns_cselect_b32 {s(SW+1)}, {s(P_WU+1)}, {s(P_WG+1)}",
                f"s_cmp_lt_u32 {s(sT0)}, {s(sNQ)}\ns_cselect_b32 {s(SW)}, {s(P_WQKV)}, {s(SW)}\ns_cselect_b32 {s(SW+1)}, {s(P_WQKV+1)}, {s(SW+1)}",
                f"s_mul_i32 {s(SW+2)}, {s(sS)}, 640",
                f"s_cmp_lt_u32 {s(sT0)}, {s(sNT)}\ns_cselect_b32 {s(SW+2)}, {s(SW+2)}, 0",
                f"s_lshl_b32 {s(sO)}, {s(sT1)}, 7",
                f"s_lshl_b32 {s(sDA)}, {s(sS)}, 2",
                f"s_mul_i32 {s(sDB)}, {s(sS)}, 12",
                f"s_mul_i32 {s(sDC)}, {s(sS)}, 108",
                f"s_sub_u32 {s(sDA)}, {s(sDA)}, 1024",
                f"s_sub_u32 {s(sDB)}, {s(sDB)}, 1024",
                f"s_add_u32 {s(sDC)}, {s(sDC)}, 3072"]
    def params_v(): return f"v_mad_u32_u24 {v(vD)}, {v(vDR)}, {s(sS)}, {v(vDCo)}"
    def wdma(slot):
        out = []
        for i in range(4):
            g = []
            if i == 0: g += [f"s_add_u32 m0, {s(sM)}, {slot*16384}", "s_nop 0"]
            g.append(f"buffer_load_dwordx4 {v(vD)}, {s(SW,4)}, {s(sO)} offen offset:{i*1024} lds")
            g.append(f"s_add_u32 {s(sO)}, {s(sO)}, {s((sDA, sDB, sDA, sDC)[i])}")
            if i == 3:
                g += [f"s_cmp_ge_u32 {s(sO)}, {s(SW+2)}", f"s_cselect_b32 {s(sU)}, {s(SW+2)}, 0", f"s_sub_u32 {s(sO)}, {s(sO)}, {s(sU)}"]
            out.append(g)
        return out
    items = []; keep = []
    for l in su.lines:
        l = l.strip()
        if l.startswith("s_cmp"): keep = [l]; continue
        if keep:
            keep.append(l.rstrip("@"))
            if l.endswith("@"): items.append("\n".join(keep)); keep = []
            continue
        items.append(l)
    items += params_a() + params_b() + [params_v()]
    a(f"s_movk_i32 {s(sT3)}, 288")
    a("s_waitcnt lgkmcnt(0)")
    srd(a, S_A, P_X, 2048 * 1280)
    per = -(-len(items) // 16)
    if Cfg.tch & 1:
        a(f"s_mul_i32 {s(sU)}, {s(sT2)}, 2560")
        a(f"s_add_u32 {s(sU)}, {s(sU)}, {s(sXB)}")
        a(f"s_add_u32 {s(sU)}, {s(sU)}, 20480")
        a(f"v_lshlrev_b32 {v(WF)}, 7, {v(vL)}")
        a("s_mov_b64 exec, 0xfffff")
        a(f"buffer_load_dword {v(WF+1)}, {v(WF)}, {s(S_A,4)}, {s(sU)} offen")
        a("s_mov_b64 exec, -1")
    for b in range(5):
        for g in xdma(b):
            a.ext(g)
            if b > 0:
                for _ in range(per):
                    if items: a(items.pop(0))
    assert not items
    if Cfg.tch & 2:
        a(f"s_and_b32 {s(sT0)}, {s(sTT)}, 15")
        a(f"s_mul_i32 {s(sT0)}, {s(sT0)}, 40")
        a(f"s_mul_i32 {s(sT0)}, {s(sT0)}, {s(sS)}")
        a(f"s_mul_i32 {s(sT2)}, {s(sROT)}, {s(sS)}")
        a(f"s_lshl_b32 {s(sT2)}, {s(sT2)}, 7")
        a(f"s_sub_u32 {s(sT2)}, {s(sO)}, {s(sT2)}")
        a(f"s_add_u32 {s(sT0)}, {s(sT0)}, {s(sT2)}")
        a(f"v_mul_u32_u24 {v(WF+2)}, {s(sS)}, {v(vL)}")
        a("s_mov_b32 exec_hi, 0xff")
        a(f"buffer_load_dword {v(WF+3)}, {v(WF+2)}, {s(SW,4)}, {s(sT0)} offen")
        if Cfg.tch & 4: a(f"buffer_load_dword {v(WF+4)}, {v(WF+2)}, {s(SW,4)}, {s(sT0)} offen offset:128")
        a("s_mov_b32 exec_hi, -1")
    if Cfg.fused:
        a(f"s_or_b32 {s(sT0)}, s2, {s(S_WV)}")
        a(f"s_cmp_lg_u32 {s(sT0)}, 0")
        a(f"s_cbranch_scc1 {pfx}_nn")
        a(f"s_memrealtime {s(sT0,2)}")
        a("s_waitcnt lgkmcnt(0)")
        a(f"s_or_b32 {s(sT0)}, {s(sT0)}, 1")
        a(f"v_mov_b32 {v(t0)}, 0")
        a(f"v_mov_b32 {v(t1)}, {s(sT0)}")
        a("s_mov_b64 exec, 1")
        a(f"global_store_dword {v(t0)}, {v(t1)}, {s(P_DBG,2)} sc1")
        a("s_mov_b64 exec, -1")
        a(f"{pfx}_nn:")
    a(f"s_mov_b32 {s(sN)}, 0")

    def stats(b):
        o = []
        for q in range(4):
            f = X + 16 * b + 4 * q
            first = (b % 5 == 0 and q == 0)
            o.append(mf16(vSm, vON, f, "0" if first else None))
            o.append(mf16(vGr[b // 5], f, f, "0" if first else None))
        return o
    def mean(rt):
        return [f"v_mul_f32 {v(vMu[rt])}, {f2u(-1/640)}, {v(vSm)}",
                f"v_cvt_pk_bf16_f32 {v(vNM)}, {v(vMu[rt])}, {v(vMu[rt])}",
                f"v_lshlrev_b32 {v(vNM)}, 16, {v(vNM)}",
                f"v_mov_b32 {v(vNM+1)}, {v(vNM)}", f"v_mov_b32 {v(vNM+2)}, {v(vNM)}", f"v_mov_b32 {v(vNM+3)}, {v(vNM)}", "s_nop 1"]
    def diag(rt):
        g = vGr[rt]
        return [f"v_cndmask_b32 {v(g)}, {v(g)}, {v(g+1)}, {s(sMA,2)}",
                f"v_cndmask_b32 {v(g+2)}, {v(g+2)}, {v(g+3)}, {s(sMA,2)}",
                f"v_cndmask_b32 {v(g)}, {v(g)}, {v(g+2)}, {s(sMB,2)}",
                f"ds_bpermute_b32 {v(vK[rt])}, {v(vBP)}, {v(g)}"]
    def finalize2(rt):
        k = vK[rt]
        return [f"v_mul_f32 {v(k)}, {f2u(1/640)}, {v(k)}",
                f"v_fma_f32 {v(k)}, -{v(vMu[rt])}, {v(vMu[rt])}, {v(k)}",
                f"v_max_f32 {v(k)}, 0, {v(k)}",
                f"v_cvt_pk_bf16_f32 {v(k)}, {v(k)}, {v(k)}",
                f"v_lshlrev_b32 {v(k)}, 16, {v(k)}",
                f"v_add_f32 {v(k)}, {f2u(1e-5)}, {v(k)}",
                f"v_cvt_pk_bf16_f32 {v(k)}, {v(k)}, {v(k)}",
                f"v_lshlrev_b32 {v(k)}, 16, {v(k)}",
                f"v_sqrt_f32 {v(k)}, {v(k)}", "s_nop 0",
                f"v_cvt_pk_bf16_f32 {v(k)}, {v(k)}, {v(k)}",
                f"v_lshlrev_b32 {v(k)}, 16, {v(k)}",
                f"v_rcp_f32 {v(vA[rt])}, {v(k)}", "s_nop 0",
                f"v_mul_f32 {v(vA[rt])}, {s(sT3)}, {v(vA[rt])}"]
    def center(rt):
        steps = []; CT = CTS[rt]
        for j in range(22):
            m = [[], []]; c = [[], []]
            if j < 20:
                f = X + 80 * rt + 4 * j; d = CT[j % 3]
                m = [[mf16(d, vSE + 2, f, v(vNM, 4))], [mf16(d + 4, vSE, f, v(vNM, 4))]]
            if j >= 2:
                f = X + 80 * rt + 4 * (j - 2); d = CT[(j - 2) % 3]
                cv = [f"v_cvt_pk_bf16_f32 {v(f+i)}, {v(d+2*i)}, {v(d+2*i+1)}" for i in range(4)]
                c = [cv[:2], cv[2:]]
            st = m[0] + c[0] + m[1] + c[1]
            if j in (0, 1): st.append("s_nop 2")
            if j == 20: st.append("s_nop 3")
            steps.append(st)
        return steps
    def weave(steps, groups):
        n = len(groups); done = 0
        for i, st in enumerate(steps):
            a.ext(st[:1])
            while done < n and done * len(steps) <= i * n:
                a.ext(groups[done]); done += 1
            a.ext(st[1:])
        for g in groups[done:]: a.ext(g)
    a(f"s_cmp_lt_u32 {s(sCG)}, 5")
    a(f"s_cselect_b32 {s(sT3)}, {f2u(QSCALE)}, 1.0")
    def xread(b):
        slot = XS[b]
        return [f"ds_read_b128 {v(X+16*b+4*q,4)}, {v((vR4 if slot == 4 else vR0)+q)} offset:{0 if slot == 4 else slot*16384}" for q in range(4)]
    pairs = lambda l: [l[2*i:2*i+2] for i in range(len(l) // 2)]
    NC = Cfg.carry
    wg = [wdma(st) for st in range(4)]
    wg[3] = wg[3][:4 - NC]; wg[3][-1] = wg[3][-1][:-1]
    tk = Trk()
    for b in range(5):
        for _ in range(4): tk.add(("x", b))
    def wx(b): a(f"s_waitcnt vmcnt({tk.n(('x', b))})")
    dq = []
    def popq():
        tag, gr = dq.pop(0); a.ext(gr); tk.add(tag)
    def step(st, pop):
        a.ext(st[:1])
        if pop and dq: popq()
        a.ext(st[1:])
    XD = lambda b: [(("x", b), gr) for gr in xdma(b)]
    WD = lambda st: [(("w", st), gr) for gr in wg[st]]
    E = Cfg.w0e
    wx(0)
    stamp(a, "x0")
    a.ext(xread(0))
    for b in range(5):
        if b < 4:
            wx(b + 1); a.ext(xread(b + 1)); a("s_waitcnt lgkmcnt(4)")
        else:
            a("s_waitcnt lgkmcnt(0)")
        if b < 4 or not E: dq += XD(b + 5)
        for i, st in enumerate(pairs(stats(b))): step(st, i % 2 == 0)
    popq()
    a("s_nop 4")
    a.ext(mean(0))
    c0 = center(0)
    for i, st in enumerate(c0):
        step(st, i % 2 == 1 or (E and i > 9))
        if i == 3: a.ext(diag(0))
        if E and i == 6:
            wx(5); a.ext(xread(5))
        if E and i == 9:
            assert not dq
            a("s_waitcnt lgkmcnt(0)")
            dq += XD(9) + WD(0)
        if i == 17:
            assert not dq
            stamp(a, "p1")
            if not E: wx(5); a.ext(xread(5))
    f0 = finalize2(0)
    for b in range(5, 10):
        if b < 9:
            wx(b + 1); a.ext(xread(b + 1)); a("s_waitcnt lgkmcnt(4)")
            if b > 5 or not E: dq += WD(b - 5)
        else:
            a("s_waitcnt lgkmcnt(0)")
        for i, st in enumerate(pairs(stats(b))):
            step(st, i % 2 == 0)
            if i % 2 == 1: a.ext(f0[:2]); f0 = f0[2:]
    assert not f0
    stamp(a, "p2")
    a("s_nop 6")
    a.ext(mean(1))
    c1 = center(1)
    for i, st in enumerate(c1[:16]): step(st, i % 2 == 0)
    assert not dq
    a.ext(diag(1))
    def trd(k, ct):
        kk = k % 20
        slot, ks = kk // 4, kk % 4
        base = ((vTA, vTB), (vTA2, vTB2))[slot == 4][ct & 1]
        off = 0 if slot == 4 else slot * 16384
        return [f"ds_read_b64_tr_b16 {v(WF+4*ct+2*t,2)}, {v(base)} offset:{off+ks*4096+t*1024+(ct>>1)*512}" for t in range(2)]
    a(f"s_waitcnt vmcnt({12 - NC})")
    a("s_barrier")
    stamp(a, "w0")
    for ct in range(4): a.ext(trd(0, ct))
    a(f"v_mov_b32 {v(V_NONCE)}, 0")
    nonce_load(a, V_NONCE)
    for st in c1[16:]: a.ext(st)
    a("s_waitcnt lgkmcnt(8)")
    a.ext(finalize2(1))
    a(f"s_cmp_eq_u32 {s(sNQ)}, 0")
    a(f"s_cselect_b32 {s(sPUB)}, -1, 2")
    a(f"s_lshl_b32 {s(sF)}, {s(sCG)}, 4")
    a(f"s_add_u32 {s(sF)}, {s(sF)}, {s(sRB)}")
    a(f"s_lshl_b32 {s(sF)}, {s(sF)}, 6")
    a(f"s_add_u32 {s(sF)}, {s(sF)}, {F1_OFF}")
    a(f"s_cmp_eq_u32 {s(S_WV)}, 0")
    a(f"s_cselect_b32 {s(sCHK)}, 5, -1")
    a(f"s_cselect_b32 {s(sPB0)}, {s(sSW)}, -1")
    a(f"s_and_b32 {s(sT0)}, s2, 3")
    a(f"s_cmp_eq_u32 {s(sT0)}, 2")
    a(f"s_cselect_b32 {s(sHI)}, {Cfg.hiE}, {Cfg.hiL}")
    a(f"s_cmp_lt_u32 s2, 64")
    a(f"s_cselect_b32 {s(sHI)}, {Cfg.hiE}, {s(sHI)}")
    setprio(a, Cfg.prioGv)
    stamp(a, "centered")
    def ffn_consts():
        for rt in range(2):
            a(f"v_rcp_f32 {v(vB[rt])}, {v(vK[rt])}")
            a(f"v_mul_f32 {v(vK[rt])}, {v(vK[rt])}, {v(vK[rt])}")
            a(f"v_mul_f32 {v(vA[rt])}, {f2u(GC0)}, {v(vB[rt])}")
            a(f"v_mul_f32 {v(vB[rt])}, {v(vB[rt])}, {v(vB[rt])}")
            a(f"v_mul_f32 {v(vB[rt])}, {v(vB[rt])}, {v(vA[rt])}")
            a(f"v_mul_f32 {v(vB[rt])}, {f2u(0.044715)}, {v(vB[rt])}")
        a(f"v_lshlrev_b32 {v(vST)}, 4, {v(vL)}")
        a(f"s_lshr_b32 {s(sT0)}, s2, 7")
        a(f"s_lshl_b32 {s(sT0)}, {s(sT0)}, 12")
        a(f"s_add_u32 {s(sT0)}, {s(sT0)}, {F4_OFF}")
        a(f"s_and_b32 {s(sT1)}, s2, 7")
        a(f"s_lshl_b32 {s(sT1)}, {s(sT1)}, 1")
        a(f"s_bfe_u32 {s(sT2)}, s2, {4 | (1<<16)}")
        a(f"s_add_u32 {s(sT1)}, {s(sT1)}, {s(sT2)}")
        a(f"s_lshl_b32 {s(sT1)}, {s(sT1)}, 10")
        a(f"s_add_u32 {s(sT1)}, {s(sT1)}, {F2_OFF - 48*64}")
        a(f"v_mov_b32 {v(vDR)}, {s(sT0)}")
        a("s_mov_b32 exec_lo, 0")
        a("s_mov_b32 exec_hi, 0xffff0000")
        a(f"v_mov_b32 {v(vDR)}, {s(sT1)}")
        a("s_mov_b64 exec, -1")
        a(f"v_lshl_add_u32 {v(vDR)}, {v(vL)}, 6, {v(vDR)}")
        a(f"v_mov_b32 {v(vDCo)}, 0")
    def wdma_items(slot):
        ld = lambda i: f"buffer_load_dwordx4 {v(vD)}, {s(SW,4)}, {s(sO)} offen offset:{i*1024} lds"
        ad = lambda d: f"s_add_u32 {s(sO)}, {s(sO)}, {s(d)}"
        return [[ld(0)], [ad(sDA), ld(1)], [ad(sDB), ld(2)], [ad(sDA), ld(3)],
                [ad(sDC), f"s_cmp_ge_u32 {s(sO)}, {s(SW+2)}", f"s_cselect_b32 {s(sU)}, {s(SW+2)}, 0"],
                [f"s_sub_u32 {s(sO)}, {s(sO)}, {s(sU)}"]]
    def pack(items, n=3):
        out = []; cur = []
        for it in items:
            l = it.split("\n")
            if len(cur) + len(l) > n: out.append(cur); cur = []
            cur += l
        if cur: out.append(cur)
        return out
    def body(tag, swap):
        a("s_waitcnt lgkmcnt(6)")
        if not swap:
            a(f"s_lshl_b32 {s(sT0)}, {s(sN)}, 1")
            a(f"s_cmp_lt_u32 {s(sT0)}, {s(sHI)}")
            a(f"s_cbranch_scc1 {pfx}_hi")
            setprio(a, Cfg.prioGm)
            a(f"{pfx}_hi:")
        def spread(dma, other, gap):
            out = []; other = list(other)
            for it in dma:
                out.append(it)
                if any(" lds" in x for x in it):
                    for _ in range(gap - 1): out.append(other.pop(0) if other else [])
            return out + other
        q = spread(wdma_items(3)[4 - Cfg.carry:], pack(params_a()), Cfg.gap0)
        for k in range(20):
            for ct in range(4):
                w = WF + 4 * ct
                mm = lambda rt: mf16(ACC + 16 * rt + 4 * ct, X + 80 * rt + 4 * k if swap else w, w if swap else X + 80 * rt + 4 * k, "0" if k == 0 else None)
                a(mm(0))
                if ct == 0 and k % 4 == 3:
                    assert not q, (k, q)
                    if k == Cfg.pubk and not swap:
                        a(f"s_cbranch_scc1 {pfx}_pub")
                    if not Cfg.x_body & 4: a("s_waitcnt vmcnt(8)")
                    if not Cfg.x_body & 1: a("s_barrier")
                    if k == Cfg.pubk and not swap: a(f"{pfx}_pubret:")
                    if k == Cfg.pzk and Cfg.early:
                        a(f"s_cbranch_scc1 {pfx}_pz{tag}"); a(f"{pfx}_pzr{tag}:")
                    dm = wdma_items((k // 4 - 1) % 5); q = []
                    if k == 3:
                        dm = spread(dm[:3], [], 2) + dm[3:4] + pack(params_b()) + [[f"s_cmp_eq_u32 {s(sN)}, {s(sSW)}", f"s_cbranch_scc1 {pfx}_sw{tag}", f"{pfx}_swr{tag}:"]]
                    if k == 7 and not swap:
                        T0 = sum(x << (3 * i) for i, x in enumerate((1, 4, 2, 3, 0)))
                        T1 = sum(x << (3 * i) for i, x in enumerate((3, 0, 1, 4, 2)))
                        it = [f"s_xor_b32 {s(sT0)}, {s(sC2)}, {s(sN)}", f"s_mul_i32 {s(sT1)}, {s(sT0)}, 52",
                              f"s_lshr_b32 {s(sT1)}, {s(sT1)}, 8", f"s_mul_i32 {s(sT1)}, {s(sT1)}, 5", f"s_sub_u32 {s(sT0)}, {s(sT0)}, {s(sT1)}",
                              f"s_mul_i32 {s(sT0)}, {s(sT0)}, 3"]
                        for tb, m in ((T0, sMA), (T1, sMB)):
                            it += [f"s_lshr_b32 {s(sT1)}, {tb << 4}, {s(sT0)}", f"s_and_b32 {s(sT2)}, {s(sT1)}, 0x30",
                                   f"s_bitcmp1_b32 {s(sT1)}, 6\ns_cselect_b32 {s(m)}, 0, 0xffff\ns_mov_b32 {s(m+1)}, 0",
                                   f"s_lshl_b64 {s(m,2)}, {s(m,2)}, {s(sT2)}"]
                        q += pack(it)
                    if k == 15 and not swap:
                        q += [[f"s_cmp_eq_u32 {s(sN)}, {s(sCHK)}", f"s_cbranch_scc1 {pfx}_chk", f"{pfx}_chkr:"]]
                    if k == 11:
                        if swap:
                            q += pack([f"s_mul_i32 {s(sSO)}, {s(sTT)}, 1280", f"s_add_u32 {s(sSO)}, {s(sSO)}, {V_OFF}"])
                        else:
                            q += pack([f"s_sub_u32 {s(sT0)}, {s(sN)}, {s(sNQ)}", f"s_lshr_b32 {s(sT0)}, {s(sT0)}, 1", f"s_mul_i32 {s(sT0)}, {s(sT0)}, {s(sP0)}", f"s_add_u32 {s(sT0)}, {s(sT0)}, {s(sCG)}",
                                f"s_lshl_b32 {s(sT0)}, {s(sT0)}, 11", f"s_mul_i32 {s(sSO)}, {s(sTT)}, {2*55296}", f"s_add_u32 {s(sSO)}, {s(sSO)}, {s(sT0)}",
                                f"s_add_u32 {s(sSO)}, {s(sSO)}, {H_OFF}",
                                f"s_xor_b32 {s(sT0)}, {s(sC2)}, {s(sN)}", f"s_lshl_b32 {s(sT0)}, {s(sT0)}, 18",
                                f"s_lshl_b32 {s(sT1)}, {s(sTT)}, 9", f"s_add_u32 {s(sT0)}, {s(sT0)}, {s(sT1)}",
                                f"s_mov_b32 {s(sT1)}, 55296",
                                f"s_cmp_lt_u32 {s(sN)}, {s(sNQ)}\ns_cselect_b32 {s(sSO)}, {s(sT0)}, {s(sSO)}\ns_cselect_b32 {s(sT1)}, {4*32768}, {s(sT1)}",
                                f"s_add_u32 {s(sT3)}, {s(sSO)}, {s(sT1)}"])
                    if k == 3: q = dm
                    elif k == 19: q = spread(dm[:4 - Cfg.carry], [], {1: 1, 2: 2, 3: 3}[Cfg.carry])[:3]
                    else:
                        q = spread(dm[:3], q, Cfg.gap)
                        q = q[:3 * Cfg.gap] + dm[3:] + q[3 * Cfg.gap:]
                elif ct == 3 and k % 4 == 2:
                    while q and not q[-1]: q.pop()
                    assert not q, (k, q)
                    a(f"s_add_u32 m0, {s(sM)}, {(((k + 1) // 4 - 1) % 5) * 16384}")
                    if k + 1 == Cfg.pubk and not swap: a(f"s_cmp_eq_u32 {s(sN)}, {s(sPUB)}")
                    if k + 1 == Cfg.pzk and Cfg.early: a(f"s_cmp_eq_u32 {s(sN)}, {s(sPB0)}")
                elif q: a.ext([x for x in q.pop(0) if not (Cfg.x_body & 2 and " lds" in x)])
                a(mm(1))
                a("s_waitcnt lgkmcnt(4)")
                a.ext(trd(k + 1, ct))
        assert not q
        setprio(a, Cfg.prioGv)
        if STAMPS and not LITE:
            for n in range(6):
                a(f"s_cmp_lg_u32 {s(sN)}, {n}"); a(f"s_cbranch_scc1 {pfx}_stm{tag}{n}"); stamp(a, f"mm{n}"); a(f"{pfx}_stm{tag}{n}:")
    def ep_stamp(tag):
        if STAMPS and not LITE:
            for n in range(6):
                a(f"s_cmp_lg_u32 {s(sN)}, {n}"); a(f"s_cbranch_scc1 {pfx}_ste{tag}{n}"); stamp(a, f"ep{n}"); a(f"{pfx}_ste{tag}{n}:")
    a(f"s_cmp_eq_u32 {s(sNQ)}, 0")
    a(f"s_cbranch_scc1 {pfx}_toffn")
    a(f"s_cmp_lt_u32 {s(sCG)}, 10")
    a(f"s_cbranch_scc1 {pfx}_loop")
    a(f"v_lshrrev_b32 {v(t0)}, 4, {v(vL)}")
    a(f"v_lshlrev_b32 {v(t0)}, 4, {v(t0)}")
    for rt in range(2):
        for i in range(4): a(f"ds_bpermute_b32 {v(VR+4*rt+i)}, {v(t0)}, {v(vA[rt])} offset:{4*i}")
    a("s_waitcnt lgkmcnt(0)")
    a(f"{pfx}_vloop:")
    body("v", True)
    for ct in range(4):
        for rt in range(2):
            if Cfg.pk & 2:
                for i in (0, 2): a(pk("mul", ACC+16*rt+4*ct+i, [ACC+16*rt+4*ct+i, VR+4*rt+i]))
            else:
                for i in range(4): a(f"v_mul_f32 {v(ACC+16*rt+4*ct+i)}, {v(ACC+16*rt+4*ct+i)}, {v(VR+4*rt+i)}")
        for rt in range(2):
            for j in range(2): a(f"v_cvt_pk_bf16_f32 {v(G+4*ct+2*rt+j)}, {v(ACC+16*rt+4*ct+2*j)}, {v(ACC+16*rt+4*ct+2*j+1)}")
        a(f"buffer_store_dwordx4 {v(G+4*ct,4)}, {v(VA+ct)}, {s(S_WS,4)}, {s(sSO)} offen{SC1}")
    ep_stamp("v")
    a(f"s_cmp_eq_u32 {s(sN)}, 1")
    a(f"s_cbranch_scc1 {pfx}_qdone")
    for ct in range(4): a(f"v_mov_b32 {v(VA+ct)}, {v(VA+4+ct)}")
    a(f"s_mov_b32 {s(sN)}, 1")
    nonce_check(a, f"{pfx}_ncv", V_NONCE, sT0, sT1, f"{pfx}_vloop")
    for tag in "vn":
        a(f"{pfx}_sw{tag}:"); a(params_v()); a(f"s_branch {pfx}_swr{tag}")
        if Cfg.early:
            a(f"{pfx}_pz{tag}:")
            a(f"s_add_u32 {s(sU)}, {s(sF)}, {F0_OFF - F1_OFF}")
            publish(a, sU)
            a(f"s_branch {pfx}_pzr{tag}")
    a(f"{pfx}_chk:")
    a(f"buffer_load_dword {v(vDCo)}, {v(vDR)}, {s(S_WS,4)}, 0 offen sc1")
    a(f"s_branch {pfx}_chkr")
    a(f"{pfx}_pub:")
    a(f"s_waitcnt vmcnt({4 + Cfg.carry if Cfg.pubk == 7 else 8})")
    a("s_barrier")
    a(f"s_mov_b32 {s(sPUB)}, 4")
    a(f"s_lshl1_add_u32 {s(sU)}, {s(sN)}, 1")
    a(f"s_cmp_lt_u32 {s(sU)}, {s(sHI)}")
    a(f"s_cbranch_scc1 {pfx}_pubhi")
    setprio(a, Cfg.prioGm)
    a(f"{pfx}_pubhi:")
    a(f"s_cmp_lg_u32 {s(S_WV)}, 0")
    a(f"s_cbranch_scc1 {pfx}_pubret")
    publish(a, sF)
    a(f"s_lshl_b32 {s(sF)}, {s(sRB)}, 4")
    a(f"s_add_u32 {s(sF)}, {s(sF)}, {s(sCG)}")
    a(f"s_lshl_b32 {s(sF)}, {s(sF)}, 6")
    a(f"s_add_u32 {s(sF)}, {s(sF)}, {F2_OFF}")
    if STAMPS and not LITE:
        a(f"s_cmp_lg_u32 {s(sN)}, 2"); a(f"s_cbranch_scc1 {pfx}_pubret")
    stamp(a, "pub1")
    a(f"s_branch {pfx}_pubret")
    a(f"{pfx}_eq:")
    for j in range(2):
        for rt in range(2):
            b = ACC + 16 * rt + 8 * j; d = G + 8 * j + 4 * rt
            if Cfg.pk & 2:
                for r in range(0, 8, 2): a(pk("mul", b + r, [b + r, -vA[rt] - 1]))
            else:
                for r in range(8): a(f"v_mul_f32 {v(b+r)}, {v(b+r)}, {v(vA[rt])}")
            for r in range(4): a(f"v_cvt_pk_bf16_f32 {v(d+r)}, {v(b+2*r)}, {v(b+2*r+1)}")
            if rt == 1:
                for r2 in range(2):
                    d2 = G + 8 * j + 4 * r2
                    a(f"v_permlane16_swap_b32 {v(d2)}, {v(d2+2)}")
                    a(f"v_permlane16_swap_b32 {v(d2+1)}, {v(d2+3)}")
                a(f"s_mov_b64 exec, {s((sMA, sMB)[j],2)}")
                a(f"v_swap_b32 {v(G+8*j+2)}, {v(G+8*j+4)}")
                a(f"v_swap_b32 {v(G+8*j+3)}, {v(G+8*j+5)}")
                a("s_mov_b64 exec, -1")
                for r2 in range(2):
                    d2 = G + 8 * j + 4 * r2
                    a(f"buffer_store_dwordx4 {v(d2,4)}, {v(vST)}, {s(S_WS,4)}, {s(sT3 if j else sSO)} offen offset:{r2*256}{SC1}")
    ep_stamp("q")
    a(f"s_cmp_eq_u32 {s(sN)}, 1")
    a(f"s_cbranch_scc1 {pfx}_qdone")
    a(f"s_mov_b32 {s(sN)}, 1")
    nonce_check(a, f"{pfx}_ncq", V_NONCE, sT0, sT1, f"{pfx}_loop")
    a(f"{pfx}_qdone:")
    a(f"s_mov_b32 {s(sN)}, 2")
    a(f"{pfx}_toffn:")
    ffn_consts()
    a(f"{pfx}_loop:")
    body("n", False)
    a(f"s_cmp_lt_u32 {s(sN)}, {s(sNQ)}")
    a(f"s_cbranch_scc1 {pfx}_eq")
    a(f"s_bitcmp1_b32 {s(sN)}, 0")
    a(f"s_cbranch_scc1 {pfx}_eu")
    if Cfg.x_gexit: a("s_branch g2_end")
    for r0 in range(0, 32 if Cfg.pk & 1 else 0, 8):
        R2 = range(r0, r0 + 8, 2); R = range(r0, r0 + 8); rt = r0 // 16
        for r in R2: a(pk("mul", G + r, [ACC + r, ACC + r]))
        for r in R2: a(pk("fma", G + r, [G + r, -vB[rt] - 1, -vA[rt] - 1]))
        for r in R2: a(pk("mul", G + r, [G + r, ACC + r]))
        for r in R: a(f"v_exp_f32 {v(G+r)}, {v(G+r)}")
        for r in R2: a(pk("fma", G + r, [G + r, -vK[rt] - 1, -vK[rt] - 1]))
        for r in R: a(f"v_rcp_f32 {v(G+r)}, {v(G+r)}")
        for r in R2: a(pk("mul", G + r, [G + r, ACC + r]))
    for r0 in range(0, 32 if not Cfg.pk & 1 else 0, 4):
        R = range(r0, r0 + 4); rt = r0 // 16
        for r in R: a(f"v_mul_f32 {v(G+r)}, {v(ACC+r)}, {v(ACC+r)}")
        for r in R: a(f"v_fma_f32 {v(G+r)}, {v(G+r)}, {v(vB[rt])}, {v(vA[rt])}")
        for r in R: a(f"v_mul_f32 {v(G+r)}, {v(G+r)}, {v(ACC+r)}")
        for r in R: a(f"v_exp_f32 {v(G+r)}, {v(G+r)}")
        for r in R: a(f"v_fma_f32 {v(G+r)}, {v(G+r)}, {v(vK[rt])}, {v(vK[rt])}")
        for r in R: a(f"v_rcp_f32 {v(G+r)}, {v(G+r)}")
        for r in R: a(f"v_mul_f32 {v(G+r)}, {v(G+r)}, {v(ACC+r)}")
    if Cfg.tc & 1:
        a(f"s_cmp_lg_u32 {s(S_WV)}, 1")
        a(f"s_cbranch_scc1 {pfx}_ntc1")
        a.ext(touch("att_loopb", "att_fb", sT0, vDCo, vDCo))
        a(f"{pfx}_ntc1:")
        a(f"s_cmp_lg_u32 {s(S_WV)}, 2")
        a(f"s_cbranch_scc1 {pfx}_ntc2")
        a.ext(touch(f"{pfx}_heavy", "g2_tc1", sT0, vDCo, vDCo))
        a(f"{pfx}_ntc2:")
    ep_stamp("g")
    a(f"s_add_u32 {s(sN)}, {s(sN)}, 1")
    a(f"s_branch {pfx}_loop")
    a(f"{pfx}_eu:")
    a(f"s_cmp_eq_u32 {s(sN)}, 5")
    a(f"s_cbranch_scc1 {pfx}_heavy")
    upv = []; ups = []
    for p in range(4):
        pv = [f"v_mul_f32 {v(ACC+r)}, {v(ACC+r)}, {v(G+r)}" for r in range(8 * p, 8 * p + 8)]
        if Cfg.pk & 1: pv = [pk("mul", ACC + r, [ACC + r, G + r]) for r in range(8 * p, 8 * p + 8, 2)]
        pv += [f"v_cvt_pk_bf16_f32 {v(G+8*p+j)}, {v(ACC+8*p+2*j)}, {v(ACC+8*p+2*j+1)}" for j in range(4)]
        ps = f"buffer_store_dwordx4 {v(G+8*p,4)}, {v(vST)}, {s(S_WS,4)}, {s(sT3 if p >> 1 else sSO)} offen offset:{(p&1)*1024}{SC1}"
        a.ext(pv); a(ps); upv += pv; ups.append(ps)
    ep_stamp("u")
    a(f"s_add_u32 {s(sN)}, {s(sN)}, 1")
    a(f"s_cmp_lt_u32 {s(sN)}, {s(sNT)}")
    a(f"s_cbranch_scc1 {pfx}_loop")
    nonce_check(a, f"{pfx}_nc2", V_NONCE, sT0, sT1)
    a(f"s_lshl_b32 {s(sF)}, {s(sRB)}, 4")
    a(f"s_add_u32 {s(sF)}, {s(sF)}, {s(sCG)}")
    a(f"s_lshl_b32 {s(sF)}, {s(sF)}, 6")
    a(f"s_add_u32 {s(sF)}, {s(sF)}, {F2_OFF}")
    a(f"s_sub_u32 {s(sT0)}, {s(sCG)}, 10")
    a(f"s_lshl_b32 {s(sPUB)}, {s(sT0)}, 6")
    a(f"s_add_u32 {s(sPUB)}, {s(sPUB)}, {s(sTT)}")
    a(f"s_lshl_b32 {s(sT0)}, {s(sT0)}, 3")
    a(f"s_lshr_b32 {s(sT1)}, {s(sRB)}, 1")
    a(f"s_add_u32 {s(sT0)}, {s(sT0)}, {s(sT1)}")
    a(f"s_and_b32 {s(sT1)}, {s(sRB)}, 1")
    a(f"s_lshl_b32 {s(sT1)}, {s(sT1)}, 6")
    a(f"s_add_u32 {s(sT0)}, {s(sT0)}, {s(sT1)}")
    a(f"s_lshl_b32 {s(sT0)}, {s(sT0)}, 6")
    a(f"s_add_u32 {s(sT3)}, {s(sT0)}, {F4_OFF}")
    a("s_waitcnt vmcnt(4) lgkmcnt(0)")
    a("s_barrier")
    gen_relayout(a, pfx, sPUB, vL, (58, 59, 60, 61, 96, 97, 98, 101, 47, 48, 49), sF, sT3)
    g2_start(a, "g2l", [], [])
    a(f"s_branch {pfx}_g1end")
    a(f"{pfx}_heavy:")
    a(f"s_add_u32 {s(sF)}, {s(sF)}, {F2B_OFF - F2_OFF}")
    g2_start(a, "g2h", upv, ups)
    a(f"{pfx}_g1end:")

def gen_att(a, pfx, idreg):
    vL, vK1, vK2, vV0, vV1, vQ1, vQ2 = 1, 2, 3, 4, 5, 20, 21
    P, S, O, Q, KV = 24, 32, 64, 128, 152
    sHD, sQB, sKH, sQH, sK1, sK2, sV, sG, sIT = 41, 42, 43, 44, 45, 46, 47, 48, 49
    sK1b, sK2b, sVb = 50, 51, 52
    sT0, sT1, sT2, sT3 = 54, 55, 56, 57
    sVM = 58
    sQ = 96
    sLB, sDK, sDV, sG4 = 53, 60, 61, 100
    vLin, vLK1, vLK2, vLV, vMB, vMI, vM = 208, 209, 210, 211, 212, 213, 214
    vXW, vXR, vOM, vOL = 215, 216, 217, 218
    sOM, sOL, sF3 = 28, 30, 31
    a(f"v_and_b32 {v(vL)}, 63, v0")
    a(f"v_lshrrev_b32 v6, 6, v0")
    a(f"s_and_b32 {s(sT0)}, {s(idreg)}, 7")
    a(f"v_readfirstlane_b32 {s(S_WV)}, v6")
    EARLY = [4, 5, 6, 7, 8, 16, 17, 18, 19, 20, 21, 29, 30, 31] if Cfg.early else []
    pref = [(1, 0), (3, 0), (5, 0), (7, 0)] + [(x, j) for x in (2, 6) for j in range(4)] + ([(0, 0), (4, 0)] if Cfg.early == 1 else [(3, 1), (7, 1)])
    HT = {}
    for h, k in zip(EARLY, pref): HT[k] = h
    rest = [h for h in range(32) if h not in EARLY]
    for x in range(8):
        for j in range(4):
            if (x, j) not in HT: HT[(x, j)] = rest.pop(0)
    tab = [sum(HT[(x, j)] << (5 * j) for j in range(4)) for x in range(8)]
    for x in range(8):
        if x == 0: a(f"s_mov_b32 {s(sHD)}, {tab[0]}")
        else:
            a(f"s_cmp_eq_u32 {s(sT0)}, {x}")
            a(f"s_cselect_b32 {s(sHD)}, {tab[x]}, {s(sHD)}")
    a(f"s_bfe_u32 {s(sT1)}, {s(idreg)}, {6 | (2<<16)}")
    a(f"s_mul_i32 {s(sT1)}, {s(sT1)}, 5")
    a(f"s_lshr_b32 {s(sHD)}, {s(sHD)}, {s(sT1)}")
    a(f"s_and_b32 {s(sHD)}, {s(sHD)}, 31")
    if Cfg.cpf == 1:
        a(f"s_getpc_b64 {s(sT0,2)}")
        a(f"{pfx}_pc:")
        a(f"s_sub_u32 {s(sT0)}, {s(sT0)}, {pfx}_pc-{NAME}_kernel")
        a(f"s_subb_u32 {s(sT1)}, {s(sT1)}, 0")
        a(f"s_bfe_u32 {s(sT2)}, {s(idreg)}, {3 | (5<<16)}")
        a(f"s_lshl_b32 {s(sT2)}, {s(sT2)}, 2")
        a(f"s_add_u32 {s(sT2)}, {s(sT2)}, {s(S_WV)}")
        a(f"s_lshl_b32 {s(sT2)}, {s(sT2)}, 8")
        a(f"s_cmp_ge_u32 {s(sT2)}, {NAME}_kernel_end-{NAME}_kernel-256")
        a(f"s_cbranch_scc1 {pfx}_nopf")
        a(f"v_lshl_add_u32 v12, {v(vL)}, 2, {s(sT2)}")
        a(f"global_load_dword v13, v12, {s(sT0,2)}")
        a(f"{pfx}_nopf:")

    a(f"s_bfe_u32 {s(sQB)}, {s(idreg)}, {3 | (3<<16)}")
    a(f"s_and_b32 {s(sQH)}, {s(S_WV)}, 1")
    a(f"s_lshr_b32 {s(sKH)}, {s(S_WV)}, 1")
    a(f"s_lshr_b32 {s(sT0)}, {s(sHD)}, 1")
    a(f"s_mul_i32 {s(sT0)}, {s(sT0)}, 5")
    a(f"s_and_b32 {s(sT1)}, {s(sHD)}, 1")
    a(f"s_mul_i32 {s(sT2)}, {s(sT1)}, 3")
    a(f"s_add_u32 {s(sT2)}, {s(sT2)}, {s(sT0)}")
    a(f"s_lshl_b32 {s(sK1b)}, {s(sT2)}, 15")
    a(f"s_add_u32 {s(sT0)}, {s(sT0)}, 2")
    a(f"s_lshl_b32 {s(sK2b)}, {s(sT0)}, 15")
    a(f"s_lshl_b32 {s(sT1)}, {s(sT1)}, 8")
    a(f"s_add_u32 {s(sK2b)}, {s(sK2b)}, {s(sT1)}")
    a(f"v_and_b32 v6, 31, {v(vL)}")
    a(f"v_lshrrev_b32 v7, 5, {v(vL)}")
    a(f"v_lshlrev_b32 {v(vQ2)}, 4, v6")
    a(f"v_lshl_add_u32 {v(vQ1)}, v7, 15, {v(vQ2)}")
    a(f"v_and_b32 {v(vK2)}, 7, v6")
    a(f"v_bfe_u32 v8, v6, 3, 1")
    a(f"v_lshl_add_u32 {v(vK2)}, v8, 4, {v(vK2)}")
    a(f"v_lshrrev_b32 v8, 4, v6")
    a(f"v_lshl_add_u32 {v(vK2)}, v8, 3, {v(vK2)}")
    a(f"v_lshlrev_b32 {v(vK2)}, 4, {v(vK2)}")
    a(f"v_lshl_add_u32 {v(vK1)}, v7, 15, {v(vK2)}")
    a(f"v_mul_u32_u24 {v(vV0)}, 320, v7")
    a(f"v_add_u32 {v(vV0)}, {v(vV0)}, {v(vQ2)}")
    for r in (vQ2, vK2):
        a(f"v_lshrrev_b32 v8, 8, {v(r)}")
        a(f"v_and_b32 {v(r)}, 0xff, {v(r)}")
        a(f"v_lshl_add_u32 {v(r)}, v8, 3, {v(r)}")
    a(f"v_add_u32 {v(vV1)}, 640, {v(vV0)}")
    a(f"s_mov_b32 {s(sVM)}, 0xfffff")
    a(f"s_mov_b32 {s(sVM+1)}, 0xfffff")
    a(f"v_cmp_eq_u32 vcc, 20, v6")
    a(f"v_mov_b32 v8, 0x3f803f80")
    a("s_nop 0")
    a(f"v_cndmask_b32 v10, 0, v8, vcc")
    for u in range(4):
        for r in range(4, 12): a(f"v_mov_b32 {v(KV+14*u+r)}, v10")
    for q in range(4):
        a(f"v_mov_b32 {v(Q+6*q+4)}, 0"); a(f"v_mov_b32 {v(Q+6*q+5)}, 0")
    for r in range(64): a(f"v_mov_b32 {v(O+r)}, 0")
    for r in range(8): a(f"v_mov_b32 {v(P+r)}, 0")
    a("s_waitcnt lgkmcnt(0)")
    srd(a, S_WS, P_WS, WS_BYTES)
    if Cfg.tlb:
        a(f"s_cmp_lg_u32 {s(S_WV)}, 0")
        a(f"s_cbranch_scc1 {pfx}_notlb")
        a(f"v_lshlrev_b32 v12, 21, {v(vL)}")
        a("s_mov_b64 exec, 3")
        for i, (p, nb) in enumerate(((P_WQKV, 640*3840), (P_WG, 640*3456), (P_WU, 640*3456), (P_WD, 1728*1280), (P_OUT, 2048*1280))):
            a(f"global_load_dword {v(240+i)}, v12, {s(p,2)}")
        a("s_mov_b64 exec, 1")
        a(f"global_load_dword v246, v12, {s(P_WO,2)}")
        a(f"s_mov_b64 exec, {(1 << ((WS_BYTES >> 21) + 1)) - 1}")
        a(f"global_load_dword v247, v12, {s(P_WS,2)}")
        a("s_mov_b64 exec, -1")
        a(f"{pfx}_notlb:")
    if Cfg.fused:
        a(f"v_mov_b32 {v(V_NONCE)}, 0")
        a("s_nop 0")
        nonce_check(a, f"{pfx}_nc", 12, sT0, sT1)
        if Cfg.wpf:
            a(f"s_and_b32 {s(sT0)}, {s(idreg)}, 255")
            a(f"s_lshl_b32 {s(sT0)}, {s(sT0)}, 2")
            a(f"s_add_u32 {s(sT0)}, {s(sT0)}, {s(S_WV)}")
            srd(a, S_B, P_WD, 1728 * 1280)
            srd(a, S_C, P_WO, 640 * 1280)
            a(f"s_mul_i32 {s(sT1)}, {s(sT0)}, {17*128}")
            a(f"s_mul_i32 {s(sT2)}, {s(sT0)}, {7*128}")
            a(f"v_lshlrev_b32 v12, 7, {v(vL)}")
            a("s_mov_b64 exec, 0x1ffff")
            a(f"buffer_load_dword v13, v12, {s(S_B,4)}, {s(sT1)} offen")
            a("s_mov_b64 exec, 0x7f")
            a(f"buffer_load_dword v14, v12, {s(S_C,4)}, {s(sT2)} offen")
            a("s_mov_b64 exec, -1")
            a("s_waitcnt vmcnt(0)")
        pass
    a(f"s_lshl_b32 {s(sT0)}, {s(sQB)}, 12")
    a(f"s_lshl_b32 {s(sT1)}, {s(sQH)}, 11")
    a(f"s_add_u32 {s(sT0)}, {s(sT0)}, {s(sT1)}")
    a(f"s_lshl_b32 {s(sT1)}, {s(sKH)}, 10")
    a(f"s_add_u32 {s(sT3)}, {s(sT0)}, {s(sT1)}")
    a(f"s_xor_b32 {s(sT2)}, {s(sT3)}, 1024")
    a(f"s_add_u32 {s(sQ)}, {s(sT2)}, {s(sK1b)}")
    a(f"s_add_u32 {s(sQ+1)}, {s(sT3)}, {s(sK1b)}")
    a(f"s_add_u32 {s(sQ+2)}, {s(sT2)}, {s(sK2b)}")
    a(f"s_add_u32 {s(sQ+3)}, {s(sT3)}, {s(sK2b)}")
    a(f"s_lshl_b32 {s(sT0)}, {s(sKH)}, 14")
    a(f"s_add_u32 {s(sT0)}, {s(sT0)}, {80*32768}")
    a(f"s_add_u32 {s(sK1b)}, {s(sK1b)}, {s(sT0)}")
    a(f"s_add_u32 {s(sK2b)}, {s(sK2b)}, {s(sT0)}")
    a(f"s_mul_i32 {s(sVb)}, {s(sHD)}, 81920")
    a(f"s_mul_i32 {s(sT0)}, {s(sKH)}, 40960")
    a(f"s_add_u32 {s(sVb)}, {s(sVb)}, {s(sT0)}")
    a(f"s_add_u32 {s(sVb)}, {s(sVb)}, {V_OFF}")
    a(f"s_mov_b32 {s(sG)}, {s(sQB)}")
    def setgrp():
        return [f"s_lshl_b32 {s(sT0)}, {s(sG)}, 11", f"s_add_u32 {s(sK1)}, {s(sK1b)}, {s(sT0)}", f"s_add_u32 {s(sK2)}, {s(sK2b)}, {s(sT0)}",
                f"s_mul_i32 {s(sT0)}, {s(sG)}, 5120", f"s_add_u32 {s(sV)}, {s(sVb)}, {s(sT0)}"]
    a.ext(setgrp())
    a(f"s_mov_b32 {s(sIT)}, 4")
    a(f"s_mul_i32 {s(sT0)}, {s(sKH)}, 10240")
    a(f"s_mul_i32 {s(sLB)}, {s(sQH)}, 5120")
    a(f"s_add_u32 {s(sLB)}, {s(sLB)}, {s(sT0)}")
    a(f"v_lshlrev_b32 {v(vLin)}, 4, {v(vL)}")
    a(f"v_add_u32 {v(vLK1)}, {s(sT0)}, {v(vLin)}")
    a(f"s_add_u32 {s(sT1)}, {s(sT0)}, 2048")
    a(f"v_add_u32 {v(vLV)}, {s(sT1)}, {v(vV0)}")
    a(f"s_add_u32 {s(sT1)}, {s(sT0)}, 4608")
    a(f"v_add_u32 {v(vLK2)}, {s(sT1)}, {v(vK2)}")
    a(f"s_lshl_b32 {s(sT0)}, {s(sQH)}, 10")
    a(f"s_add_u32 {s(sDK)}, {s(sK1b)}, {s(sT0)}")
    a(f"s_add_u32 {s(sT0)}, {s(sK2b)}, {s(sT0)}")
    a(f"s_mul_i32 {s(sT1)}, {s(sQH)}, 2560")
    a(f"s_add_u32 {s(sDV)}, {s(sVb)}, {s(sT1)}")
    a(f"s_add_u32 {s(sT1)}, {s(sDV)}, 2048")
    a(f"v_add_u32 {v(vMB)}, {s(sT1)}, {v(vLin)}")
    a(f"v_mov_b32 {v(vMI)}, 5120")
    a(f"v_bfe_u32 v8, {v(vL)}, 4, 1")
    a(f"v_and_b32 v9, 15, {v(vL)}")
    a(f"v_lshlrev_b32 v9, 4, v9")
    a(f"v_lshl_add_u32 v8, v8, 9, v9")
    a("s_mov_b32 exec_lo, 0")
    a(f"v_add_u32 {v(vMB)}, {s(sT0)}, v8")
    a(f"v_mov_b32 {v(vMI)}, 2048")
    a("s_mov_b32 exec_lo, -1")
    a(f"s_mul_i32 {s(sT0)}, {s(S_WV)}, 6144")
    a(f"s_xor_b32 {s(sT1)}, {s(S_WV)}, 2")
    a(f"s_mul_i32 {s(sT1)}, {s(sT1)}, 6144")
    a(f"v_add_u32 {v(vXW)}, {s(sT0)}, {v(vLin)}")
    a(f"v_add_u32 {v(vXR)}, {s(sT1)}, {v(vLin)}")
    a(f"v_bfe_u32 v8, {v(vL)}, 4, 1")
    a(f"v_lshl_add_u32 {v(vOM)}, v8, 14, v9")
    a(f"v_lshl_add_u32 {v(vOM)}, v7, 8, {v(vOM)}")
    a(f"s_lshl_b32 {s(sT0)}, {s(sQB)}, 2")
    a(f"s_lshl_b32 {s(sT1)}, {s(sQH)}, 1")
    a(f"s_add_u32 {s(sT0)}, {s(sT0)}, {s(sT1)}")
    a(f"s_add_u32 {s(sT0)}, {s(sT0)}, {s(sKH)}")
    a(f"s_lshl_b32 {s(sF3)}, {s(sT0)}, 5")
    a(f"s_add_u32 {s(sF3)}, {s(sF3)}, {s(sHD)}")
    a(f"s_lshl_b32 {s(sF3)}, {s(sF3)}, 6")
    a(f"s_add_u32 {s(sF3)}, {s(sF3)}, {F3_OFF}")
    a(f"s_lshl_b32 {s(sT1)}, {s(sHD)}, 9")
    a(f"s_lshl_b32 {s(sT2)}, {s(sT0)}, 16")
    a(f"s_add_u32 {s(sOM)}, {s(sT1)}, {s(sT2)}")
    a(f"s_add_u32 {s(sOM)}, {s(sOM)}, {O_OFF}")
    a(f"s_add_u32 {s(sOM+1)}, {s(sOM)}, 32768")
    a(f"s_lshl_b32 {s(sT2)}, {s(sT0)}, 14")
    a(f"s_add_u32 {s(sOL)}, {s(sT1)}, {s(sT2)}")
    a(f"s_add_u32 {s(sOL)}, {s(sOL)}, {OL_OFF}")
    if Cfg.fused:
        a(f"s_mul_i32 {s(sT0)}, {s(sHD)}, 20")
        a(f"s_add_u32 {s(sT1)}, {s(sT0)}, 19")
        a(f"s_lshr_b32 {s(sT0)}, {s(sT0)}, 7")
        a(f"s_lshr_b32 {s(sT1)}, {s(sT1)}, 7")
        a(f"s_sub_u32 {s(sT1)}, {s(sT1)}, {s(sT0)}")
        a(f"v_bfe_u32 v12, {v(vL)}, 3, 1")
        a(f"v_mul_u32_u24 v12, {s(sT1)}, v12")
        a(f"v_add_u32 v12, {s(sT0)}, v12")
        a(f"v_bfe_u32 v13, {v(vL)}, 4, 1")
        a(f"v_mad_u32_u24 v13, v13, 5, 5")
        a(f"s_lshl_b32 {s(sT2)}, {s(sKH)}, 3")
        a(f"v_and_b32 v14, 7, {v(vL)}")
        a(f"v_add_u32 v14, {s(sT2)}, v14")
        a(f"s_lshl_b32 {s(sT2)}, {s(sQB)}, 1")
        a(f"s_add_u32 {s(sT2)}, {s(sT2)}, {s(sQH)}")
        a("s_mov_b32 exec_lo, 0")
        a(f"v_mov_b32 v13, 0")
        a(f"v_mov_b32 v14, {s(sT2)}")
        a("s_mov_b32 exec_lo, -1")
        a(f"v_add_u32 v12, v12, v13")
        a(f"v_lshl_add_u32 v12, v12, 4, v14")
        a(f"v_lshlrev_b32 v12, 6, v12")
        a(f"s_nop 0")
        a(f"v_readlane_b32 {s(sT2)}, v12, 31")
        a(f"s_mov_b32 {s(sT3)}, {F1_OFF}")
        a(f"s_bitcmp1_b32 {sum(1 << h for h in EARLY) | 0x0}, {s(sHD)}")
        a(f"s_cselect_b32 {s(sT3)}, {F0_OFF}, {s(sT3)}")
        a(f"s_add_u32 {s(sT2)}, {s(sT2)}, {s(sT3)}")
        stamp(a, "a_ready")
        setprio(a, 3)
        if Cfg.p0s >= 0: poll(a, f"{pfx}_p0", None, sT2, 13, sT0, Cfg.p0s)
        poll(a, f"{pfx}_p1", 12, sT3, 13, sT0, Cfg.p1s)
        stamp(a, "a_go")
    for q in range(4):
        a(f"buffer_load_dwordx4 {v(Q+6*q,4)}, {v(vQ1)}, {s(S_WS,4)}, {s(sQ+(q>>1))} offen offset:{(q&1)*512}{SC1}")
    a("s_mov_b32 exec_hi, 0")
    for q in range(4):
        a(f"buffer_load_dwordx2 {v(Q+6*q+4,2)}, {v(vQ2)}, {s(S_WS,4)}, {s(sQ+2+(q>>1))} offen offset:{(q&1)*512}{SC1}")
    a("s_mov_b32 exec_hi, -1")
    def kvload(u):
        b = KV + 14 * u
        return [f"buffer_load_dwordx4 {v(b,4)}, {v(vK1)}, {s(S_WS,4)}, {s(sK1)} offen offset:{u*512}{SC1}",
                f"buffer_load_dwordx2 {v(b+12,2)}, {v(vK2)}, {s(S_WS,4)}, {s(sK2)} offen offset:{u*512}{SC1}",
                f"s_mov_b64 exec, {s(sVM,2)}",
                f"buffer_load_dwordx4 {v(b+4,4)}, {v(vV0)}, {s(S_WS,4)}, {s(sV)} offen offset:{u*1280}{SC1}",
                f"buffer_load_dwordx4 {v(b+8,4)}, {v(vV1)}, {s(S_WS,4)}, {s(sV)} offen offset:{u*1280}{SC1}",
                "s_mov_b64 exec, -1"]
    for u in range(3):
        if Cfg.tha >= 0 and u > 0: a(f"s_waitcnt vmcnt({Cfg.tha})")
        a.ext(kvload(u))
    setprio(a, Cfg.prioA)
    stamp(a, "issued")
    a("s_waitcnt vmcnt(8)")
    stamp(a, "q_kv0")
    a(mf32(S, KV, Q, "0"))
    a(mf8(S, KV + 12, Q + 4))
    a("s_nop 11")
    def kvread(u, nxt):
        b = KV + 14 * u; o = nxt * 20480 + (u >> 1) * 5120; sub = u & 1
        return [[f"ds_read_b128 {v(b,4)}, {v(vLK1)} offset:{o+sub*1024}",
                 f"ds_read_b64 {v(b+12,2)}, {v(vLK2)} offset:{o+sub*256}"],
                [f"s_mov_b64 exec, {s(sVM,2)}",
                 f"ds_read_b128 {v(b+4,4)}, {v(vLV)} offset:{o+sub*1280}",
                 f"ds_read_b128 {v(b+8,4)}, {v(vLV)} offset:{o+sub*1280+640}",
                 "s_mov_b64 exec, -1"]]
    def loop(tag, lds):
        a(".p2align 3")
        a(f"{pfx}_loop{tag}:")
        ndma = [0, 0, 0, 0]
        for u in range(4):
            b = KV + 14 * u; bn = KV + 14 * ((u + 1) & 3); bp = KV + 14 * ((u - 1) & 3)
            items = []
            if not lds:
                if u == 0: items = [f"s_xor_b32 {s(sG4)}, {s(sG)}, 4", f"s_add_u32 {s(sG)}, {s(sG)}, 1", f"s_and_b32 {s(sG)}, {s(sG)}, 7"] + setgrp()
                dm = lambda va, so, off: f"buffer_load_dwordx4 {v(va)}, {s(S_WS,4)}, {so} offen offset:{off} sc1 lds"
                if u == 1: items = [f"s_lshl_b32 {s(sT0)}, {s(sG4)}, 11", f"s_mov_b32 m0, {s(sLB)}", [f"s_add_u32 {s(sT0)}, {s(sT0)}, {s(sDK)}", dm(vK1, s(sT0), 0)],
                                    f"s_add_u32 m0, {s(sLB)}, 512", [f"s_mul_i32 {s(sT1)}, {s(sG4)}, 5120", dm(vK1, s(sT0), 512)],
                                    f"s_add_u32 m0, {s(sLB)}, 2048"]
                if u == 2: items = [[f"s_add_u32 {s(sT1)}, {s(sT1)}, {s(sDV)}", dm(vLin, s(sT1), 0)],
                                    [f"v_mad_u32_u24 {v(vM)}, {v(vMI)}, {s(sG4)}, {v(vMB)}"], [dm(vLin, s(sT1), 1024)],
                                    f"s_add_u32 m0, {s(sLB)}, 4096", [f"s_add_u32 {s(sLB)}, {s(sLB)}, 20480", dm(vM, "0", 0)]]
            if lds and u == Cfg.mbu:
                items = [f"s_cmp_eq_u32 {s(sIT)}, 1", [f"s_cbranch_scc1 {pfx}_mb", f"{pfx}_mbr:"]]
            if u == 3:
                items += [f"s_sub_u32 {s(sIT)}, {s(sIT)}, 1", f"s_cmp_lg_u32 {s(sIT)}, 0"]
                if lds: items += [f"v_add_u32 {v(r)}, 0x5000, {v(r)}" for r in (vLK1, vLK2, vLV)]
            ld = kvread((u + 3) & 3, u > 0) if lds else [kvload((u + 3) & 3)[:2], kvload((u + 3) & 3)[2:]]
            if Cfg.x_nokv: ld = [[], []]
            vmw = {0: 8, 1: 10, 2: 13, 3: 11}[u]
            for q in range(4):
                Sc = S + 16 * (q & 1); Sn = S + 16 * ((q + 1) & 1)
                qn, qp = (q + 1) & 3, (q - 1) & 3
                kn = b if q < 3 else bn
                kp = b if q > 0 else bp
                ex = [f"v_exp_f32 {v(Sc+i)}, {v(Sc+i)}" for i in range(16)]
                cv = [f"v_cvt_pk_bf16_f32 {v(P+i)}, {v(Sc+2*i)}, {v(Sc+2*i+1)}" for i in range(8)]
                def free():
                    if items:
                        it = items.pop(0)
                        a.ext(it if isinstance(it, list) else [it])
                a(mf32(Sn, kn, Q + 6 * qn, "0"))
                if q == 0: a.ext(ld[0])
                else: free()
                a.ext(ex[0:4])
                a(mf32(O + 16 * qp, kp + 8, P + 4))
                if q == 0: a.ext(ld[1])
                else: free()
                a.ext(ex[4:8] + cv[0:2])
                a(mf8(Sn, kn + 12, Q + 6 * qn + 4))
                a.ext(ex[8:9] + cv[2:4] + ex[9:12])
                a(mf32(O + 16 * q, b + 4, P))
                if q == 2:
                    assert not any("lds" in str(it) for it in items)
                    a(("s_waitcnt vmcnt(0) lgkmcnt(8)" if u == 0 else "s_waitcnt lgkmcnt(8)") if lds else f"s_waitcnt vmcnt({vmw})")
                else: free()
                a.ext(ex[12:16] + cv[4:8])
            assert not items
        a(f"s_cbranch_scc1 {pfx}_loop{tag}")
    loop("a", False)
    a(f"s_mov_b32 {s(sIT)}, 4")
    a("s_waitcnt vmcnt(4)")
    a("s_barrier")
    stamp(a, "half")
    a(f"s_branch {pfx}_loopb")
    a(f"{pfx}_mb:")
    a("s_barrier")
    if Cfg.lag:
        a(f"s_cmp_lg_u32 {s(S_WV)}, 0")
        a(f"s_cbranch_scc1 {pfx}_mbr")
        a(f"s_and_b32 {s(sT0)}, {s(idreg)}, 255")
        a(f"s_lshl_b32 {s(sT0)}, {s(sT0)}, 6")
        a(f"s_add_u32 {s(sT0)}, {s(sT0)}, {FH_OFF}")
        publish(a, sT0)
        if Cfg.tc & 4: a.ext(touch(f"{pfx}_epi", f"{pfx}_fb", sT0, vM, vM))
    a(f"s_branch {pfx}_mbr")
    loop("b", True)
    a(f"{pfx}_epi:")
    setprio(a, Cfg.prioE)
    for j in range(2): a(f"ds_write_b128 {v(vXW)}, {v(O+4*j,4)} offset:{j*1024}")
    a(mf32(O + 48, KV + 14 * 3 + 8, P + 4))
    stamp(a, "loopdone")
    a(f"ds_write_b128 {v(vXW)}, {v(O+8,4)} offset:2048")
    for j in range(3): a(f"ds_write_b128 {v(vXW)}, {v(O+16+4*j,4)} offset:{3072+j*1024}")
    a("s_waitcnt lgkmcnt(0)")
    a("s_barrier")
    R = S
    for t in range(2):
        for j in (2, 0, 1): a(f"ds_read_b128 {v(R+16*t+4*j,4)}, {v(vXR)} offset:{t*3072+j*1024}")
    a(f"{pfx}_fin:")
    for t in range(2):
        o = O + 32 + 16 * t; r = R + 16 * t; d = (14, P)[t]
        pa = lambda i: f"v_pk_add_f32 {v(o+i,2)}, {v(o+i,2)}, {v(r+i,2)}"
        a(f"s_waitcnt lgkmcnt({5-3*t})")
        a(f"v_add_f32 v12, {v(o+8)}, {v(r+8)}")
        a(f"v_add_f32 {v(22+t)}, {v(o+8)}, {v(r+8)}")
        a(pa(8)); a(pa(10))
        a(f"v_permlane32_swap_b32 v12, {v(22+t)}")
        a(f"s_waitcnt lgkmcnt({3-3*t})")
        a(f"v_rcp_f32 v12, {v(22+t)}")
        for i in range(0, 8, 2): a(pa(i))
        for i in range(0, 12, 2): a(f"v_pk_mul_f32 {v(o+i,2)}, {v(o+i,2)}, v[12:13] op_sel_hi:[1,0]")
        for j in range(6): a(f"v_cvt_pk_bf16_f32 {v(d+j if j < 4 else 18+2*t+j-4)}, {v(o+2*j)}, {v(o+2*j+1)}")
        a(f"buffer_store_dwordx4 {v(d,4)}, {v(vOM)}, {s(S_WS,4)}, {s(sOM+t)} offen{SC1}")
    a("s_mov_b32 exec_hi, 0")
    a(f"buffer_store_dwordx4 v[18:21], {v(vLin)}, {s(S_WS,4)}, {s(sOL)} offen{SC1}")
    stamp(a, "o_stored")
    a("s_mov_b32 exec_hi, -1")
    a(f"s_cmp_lg_u32 {s(sIT)}, 0")
    a(f"s_cbranch_scc1 {pfx}_ok")
    LO, HI = (127 - Cfg.lo) << 23, (127 + Cfg.hi) << 23
    a(f"v_subrev_u32 v22, {LO}, v22")
    a(f"v_subrev_u32 v23, {LO}, v23")
    a("v_max_u32 v22, v22, v23")
    a(f"v_cmp_lt_u32 vcc, {HI - LO}, v22")
    a(f"v_add_f32 v12, {v(O+32)}, {v(O+48)}")
    for i in range(1, 12):
        a(f"v_fma_f32 v12, {v(O+32+i)}, 0, v12")
        a(f"v_fma_f32 v12, {v(O+48+i)}, 0, v12")
    a(f"s_movk_i32 {s(sT0)}, 0x207")
    a(f"v_cmp_class_f32 {s(sT2,2)}, v12, {s(sT0)}")
    a("s_nop 0")
    a(f"s_or_b64 vcc, vcc, {s(sT2,2)}")
    a(f"s_cbranch_scc1 {pfx}_fb")
    a(f"{pfx}_ok:")
    a("s_waitcnt vmcnt(0)")
    publish(a, sF3)
    stamp(a, "o_pub")
    a(f"s_branch {pfx}_done")
    a(f"{pfx}_fb:")
    def rewind():
        a(f"s_lshl_b32 {s(sT0)}, {s(sKH)}, 14")
        a(f"s_sub_u32 {s(sK1)}, {s(sK1b)}, {s(sT0)}")
        a(f"s_sub_u32 {s(sK2)}, {s(sK2b)}, {s(sT0)}")
        a(f"s_mul_i32 {s(sT0)}, {s(sKH)}, 40960")
        a(f"s_sub_u32 {s(sV)}, {s(sVb)}, {s(sT0)}")
        a(f"s_mov_b32 {s(sIT)}, 0")
    def advance(lbl):
        a(f"s_add_u32 {s(sK1)}, {s(sK1)}, 512")
        a(f"s_add_u32 {s(sK2)}, {s(sK2)}, 512")
        a(f"s_add_u32 {s(sV)}, {s(sV)}, 1280")
        a(f"s_add_u32 {s(sIT)}, {s(sIT)}, 1")
        a(f"s_cmp_lt_u32 {s(sIT)}, 64")
        a(f"s_cbranch_scc1 {lbl}")
    rewind()
    a("v_mov_b32 v22, 0xff800000")
    a("v_mov_b32 v23, 0xff800000")
    a(f"{pfx}_fb1:")
    a.ext(kvload(0)[:2])
    a("s_waitcnt vmcnt(0)")
    for t in range(2): a(mf32(S + 16 * t, KV, Q + 12 + 6 * t, "0"))
    for t in range(2): a(mf8(S + 16 * t, KV + 12, Q + 16 + 6 * t))
    a("s_nop 11")
    for t in range(2):
        for i in range(0, 16, 2): a(f"v_max3_f32 {v(22+t)}, {v(S+16*t+i)}, {v(S+16*t+i+1)}, {v(22+t)}")
    advance(f"{pfx}_fb1")
    rewind()
    for t in range(2):
        a(f"v_mov_b32 v12, {v(22+t)}")
        a("s_nop 1")
        a(f"v_permlane32_swap_b32 v12, {v(22+t)}")
        a(f"v_max_f32 v12, v12, {v(22+t)}")
        for i in range(16):
            a(f"v_xor_b32 {v(O+16*t+i)}, 0x80000000, v12")
            a(f"v_mov_b32 {v(O+32+16*t+i)}, 0")
    a(f"{pfx}_fb2:")
    a.ext(kvload(0))
    a("s_waitcnt vmcnt(0)")
    for t in range(2): a(mf32(S + 16 * t, KV, Q + 12 + 6 * t, v(O + 16 * t, 16)))
    for t in range(2): a(mf8(S + 16 * t, KV + 12, Q + 16 + 6 * t))
    a("s_nop 11")
    for t in range(2):
        for i in range(16): a(f"v_exp_f32 {v(S+16*t+i)}, {v(S+16*t+i)}")
        for i in range(8): a(f"v_cvt_pk_bf16_f32 {v(P+i)}, {v(S+16*t+2*i)}, {v(S+16*t+2*i+1)}")
        a("s_nop 1")
        a(mf32(O + 32 + 16 * t, KV + 4, P))
        a(mf32(O + 32 + 16 * t, KV + 8, P + 4))
    advance(f"{pfx}_fb2")
    for i in range(32): a(f"v_mov_b32 {v(S+i)}, 0")
    a(f"s_branch {pfx}_fin")
    a(f"{pfx}_done:")

def gen_relayout(a, pfx, idreg, vL, sT, sFH, sFR):
    sK, sC, sPA, sPB, sPC, sPD, sB, sM, sD0, sD1, sF1 = sT
    SW = S_C
    T = 160
    IR, CH = T + 8, T + 13
    a(f"s_mov_b32 {s(SW+3)}, 0x00020000")
    for i in range(5):
        a(f"v_add_u32 {v(T)}, {64*i}, {v(vL)}")
        a(f"v_mul_u32_u24 {v(IR+i)}, 6554, {v(T)}")
        a(f"v_lshrrev_b32 {v(IR+i)}, 16, {v(IR+i)}")
        a(f"v_mul_u32_u24 {v(CH+i)}, 10, {v(IR+i)}")
        a(f"v_sub_u32 {v(CH+i)}, {v(T)}, {v(CH+i)}")
        a(f"v_lshlrev_b32 {v(CH+i)}, 4, {v(CH+i)}")
    a(f"s_mul_i32 {s(sM)}, {s(S_WV)}, 5120")
    a(f"s_mov_b32 {s(sF1)}, 0")
    a(f"{pfx}_rl_loop:")
    a(f"s_and_b32 {s(sC)}, {s(idreg)}, 7")
    a(f"s_lshr_b32 {s(sK)}, {s(idreg)}, 3")
    a(f"s_cmp_lt_u32 {s(sK)}, 54")
    a(f"s_cselect_b32 {s(SW)}, {s(P_WD)}, {s(P_WO)}")
    a(f"s_cselect_b32 {s(SW+1)}, {s(P_WD+1)}, {s(P_WO+1)}")
    a(f"s_mov_b32 {s(sB)}, {640*1280}")
    a(f"s_cselect_b32 {s(SW+2)}, {1728*1280}, {s(sB)}")
    a(f"s_cselect_b32 {s(sPA)}, 8, 20")
    a(f"s_cselect_b32 {s(sPC)}, 16, 8")
    a(f"s_cselect_b32 {s(sPD)}, 0, 54")
    a(f"s_cselect_b32 {s(sD1)}, 32, 40")
    a(f"s_cmp_ge_u32 {s(sK)}, 70")
    a(f"s_cselect_b32 {s(sPA)}, 80, {s(sPA)}")
    a(f"s_cselect_b32 {s(sPB)}, 40, 4")
    a(f"s_cselect_b32 {s(sPC)}, 20, {s(sPC)}")
    a(f"s_cselect_b32 {s(sPD)}, 70, {s(sPD)}")
    a(f"s_cselect_b32 {s(sD1)}, 160, {s(sD1)}")
    a(f"s_cselect_b32 {s(sB)}, 16, 0")
    a(f"s_sub_u32 {s(sPD)}, {s(sK)}, {s(sPD)}")
    a(f"s_mul_i32 {s(sPD)}, {s(sPD)}, {s(sD1)}")
    a(f"s_add_u32 {s(sB)}, {s(sB)}, {s(sPD)}")
    a(f"s_mul_i32 {s(sB)}, {s(sB)}, 1280")
    a(f"s_mul_i32 {s(sPD)}, {s(sC)}, 160")
    a(f"s_add_u32 {s(sB)}, {s(sB)}, {s(sPD)}")
    a(f"s_movk_i32 {s(sPD)}, 1280")
    for i in range(5):
        r, t = T, T + 1
        a(f"v_and_b32 {v(r)}, 3, {v(IR+i)}")
        a(f"v_lshrrev_b32 {v(t)}, 4, {v(IR+i)}")
        a(f"v_mad_u32_u24 {v(r)}, {v(t)}, {s(sPA)}, {v(r)}")
        a(f"v_bfe_u32 {v(t)}, {v(IR+i)}, 3, 1")
        a(f"v_mad_u32_u24 {v(r)}, {v(t)}, {s(sPB)}, {v(r)}")
        a(f"v_bfe_u32 {v(t)}, {v(IR+i)}, 2, 1")
        a(f"v_mad_u32_u24 {v(r)}, {v(t)}, {s(sPC)}, {v(r)}")
        a(f"s_add_u32 m0, {s(sM)}, {i*1024}")
        a(f"v_mad_u32_u24 {v(r)}, {v(r)}, {s(sPD)}, {v(CH+i)}")
        if Cfg.thl >= 0: a(f"s_waitcnt vmcnt({Cfg.thl})")
        if not Cfg.x_norl & 1: a(f"buffer_load_dwordx4 {v(r)}, {s(SW,4)}, {s(sB)} offen lds")
    a(f"s_mul_i32 {s(sD1)}, {s(sC)}, 74")
    a(f"s_add_u32 {s(sD1)}, {s(sD1)}, {s(sK)}")
    a(f"s_mul_i32 {s(sD1)}, {s(sD1)}, 5120")
    a(f"s_add_u32 {s(sD1)}, {s(sD1)}, {WR_OFF}")
    a(f"s_cmp_ge_u32 {s(idreg)}, 384")
    a(f"s_cbranch_scc1 {pfx}_rl_two")
    a(f"s_mov_b32 {s(sD0)}, {s(sD1)}")
    a(f"s_add_u32 {s(idreg)}, {s(idreg)}, 384")
    a(f"s_add_u32 {s(sM)}, {s(sM)}, 20480")
    a(f"s_cmp_lt_u32 {s(idreg)}, 592")
    a(f"s_cbranch_scc1 {pfx}_rl_loop")
    a(f"s_branch {pfx}_rl_one")
    a(f"{pfx}_rl_two:")
    a(f"s_mov_b32 {s(sF1)}, 1")
    a(f"{pfx}_rl_one:")
    a(f"s_mul_i32 {s(sM)}, {s(S_WV)}, 5120")
    a(f"v_lshrrev_b32 {v(T)}, 4, {v(vL)}")
    a(f"v_bfe_u32 {v(T+1)}, {v(vL)}, 2, 2")
    a(f"v_lshl_add_u32 {v(T)}, {v(T)}, 3, {v(T+1)}")
    a(f"v_mul_u32_u24 {v(T)}, 160, {v(T)}")
    a(f"v_and_b32 {v(T+1)}, 3, {v(vL)}")
    a(f"v_mad_u32_u24 {v(T)}, {v(T+1)}, 40, {v(T)}")
    a(f"v_add_u32 {v(T)}, {s(sM)}, {v(T)}")
    a(f"v_lshlrev_b32 {v(T+1)}, 4, {v(vL)}")
    a(f"v_add_u32 {v(T+2)}, 4096, {v(T+1)}")
    a("s_waitcnt vmcnt(0)")
    a("s_barrier")
    a(f"s_cmp_lg_u32 {s(S_WV)}, 0")
    a(f"s_cbranch_scc1 {pfx}_rl_np")
    publish(a, sFH)
    a(f"{pfx}_rl_np:")
    pass
    for z in range(2):
        D = T + 20 + 20 * z
        if z:
            a(f"s_cmp_eq_u32 {s(sF1)}, 0")
            a(f"s_cbranch_scc1 {pfx}_rl_fin")
        for mt in range(5):
            for u in range(2):
                a(f"ds_read_b64_tr_b16 {v(D+4*mt+2*u,2)}, {v(T)} offset:{z*20480+u*640+8*mt}")
        a("s_waitcnt lgkmcnt(0)")
        for mt in range(5 if not Cfg.x_norl & 2 else 0):
            if Cfg.ths >= 0: a(f"s_waitcnt vmcnt({Cfg.ths})")
            a(f"buffer_store_dwordx4 {v(D+4*mt,4)}, {v(T+1 if mt < 4 else T+2)}, {s(S_WS,4)}, {s(sD1 if z else sD0)} offen offset:{(mt&3)*1024} sc1")
    a(f"{pfx}_rl_fin:")
    a("s_waitcnt vmcnt(0)")
    a("s_barrier")
    a(f"s_cmp_lg_u32 {s(S_WV)}, 0")
    a(f"s_cbranch_scc1 {pfx}_rl_done")
    publish(a, sFR)
    a(f"{pfx}_rl_done:")

class G2:
    vL, vF, vF2, vW4, vXO = 1, 2, 3, 4, 5
    vBA, vBR = 6, 10
    vFA, vFR = 7, 8
    XR, AS, AD, HF = 12, 22, 96, 116
    WFS = (180, 200)
    WRS = (200, 220, 48, 68)
    sRT, sC8, sM, sW, sH, sIT, sC0, sC1, sPB, sFB = 41, 42, 43, 44, 45, 46, 47, 48, 49, 50
    sT0, sT1, sT2, sT3 = 54, 55, 56, 57
    @staticmethod
    def OF(k): return 116 + 4 * k if k < 16 else 240 + 4 * (k - 16)
    @staticmethod
    def wdma(slot):
        g = G2
        o = [[f"s_add_u32 m0, {s(g.sM)}, {slot*20480}", "s_nop 0"]]
        for i in range(4): o.append([f"buffer_load_dwordx4 {v(g.vF)}, {s(S_WS,4)}, {s(g.sW)} offen offset:{i*1024} sc1 lds"])
        o[0] += o.pop(1)
        o.append([f"s_add_u32 m0, {s(g.sM)}, {slot*20480+4096}", "s_nop 0",
                  f"buffer_load_dwordx4 {v(g.vW4)}, {s(S_WS,4)}, {s(g.sW)} offen sc1 lds", f"s_add_u32 {s(g.sW)}, {s(g.sW)}, 20480"])
        return o
    @staticmethod
    def hload(st):
        g = G2
        o = [[f"buffer_load_dwordx4 {v(g.HF+16*st+4*j,4)}, {v(g.vF)}, {s(S_WS,4)}, {s(g.sH)} offen offset:{j*1024} sc1"] for j in range(4)]
        o[-1].append(f"s_add_u32 {s(g.sH)}, {s(g.sH)}, 4096")
        return o

def g2_start(a, pfx, valu, stores):
    g = G2
    heavy = bool(valu)
    vL, sT0, sT1, sT2 = g.vL, g.sT0, g.sT1, g.sT2
    a(f"s_lshr_b32 {s(g.sC8)}, s2, 5")
    a(f"s_and_b32 {s(sT1)}, s2, 7")
    a(f"s_lshl_b32 {s(g.sRT)}, {s(sT1)}, 2")
    a(f"s_bfe_u32 {s(sT1)}, s2, {3 | (2<<16)}")
    a(f"s_add_u32 {s(g.sRT)}, {s(g.sRT)}, {s(sT1)}")
    a(f"s_lshl_b32 {s(g.sRT)}, {s(g.sRT)}, 2")
    a(f"s_add_u32 {s(g.sRT)}, {s(g.sRT)}, {s(S_WV)}")
    a(f"s_mul_i32 {s(g.sW)}, {s(g.sC8)}, {74*5120}")
    a(f"s_mul_i32 {s(g.sM)}, {s(S_WV)}, 5120")
    a(f"s_add_u32 {s(g.sW)}, {s(g.sW)}, {s(g.sM)}")
    a(f"s_add_u32 {s(g.sW)}, {s(g.sW)}, {WR_OFF}")
    a(f"s_mul_i32 {s(g.sH)}, {s(g.sRT)}, 55296")
    a(f"s_add_u32 {s(g.sH)}, {s(g.sH)}, {H_OFF}")
    a(f"v_lshlrev_b32 {v(g.vF)}, 4, {v(vL)}")
    a(f"v_add_u32 {v(g.vW4)}, 4096, {v(g.vF)}")
    a(f"s_mov_b32 {s(sT0)}, 0")
    a(f"s_cmp_eq_u32 {s(S_WV)}, 0")
    a(f"s_cselect_b32 {s(g.sPB)}, {0 if heavy else -1}, -1")
    a("s_waitcnt vmcnt(0) lgkmcnt(0)")
    a(f"s_cbranch_scc0 {pfx}_p4_ok")
    a(f"v_cmp_ne_u32 vcc, {v(g.vFR)}, {v(V_NONCE)}")
    a("s_nop 1")
    a(f"s_cbranch_vccz {pfx}_p4_ok")
    poll(a, f"{pfx}_p4", g.vFA, sT0, g.vFR, sT2, Cfg.p4s)
    a("s_barrier")
    stamp(a, "h_go")
    work = list(valu) + [
        f"v_add_u32 {v(g.vF2)}, {3*20480}, {v(g.vF)}",
        f"v_and_b32 {v(g.AD)}, 15, {v(vL)}",
        f"v_mul_u32_u24 {v(g.vXO)}, 1280, {v(g.AD)}",
        f"v_lshrrev_b32 {v(g.AD)}, 4, {v(vL)}",
        f"v_mad_u32_u24 {v(g.vXO)}, {v(g.AD)}, 40, {v(g.vXO)}",
        f"v_min_u32 {v(g.vBA)}, 9, {v(vL)}",
        f"v_lshlrev_b32 {v(g.vBA)}, 6, {v(g.vBA)}"]
    groups = g.wdma(0) + g.hload(0) + g.wdma(1) + g.hload(1)
    per = -(-len(work) // len(groups))
    for gr in groups:
        a.ext(gr); a.ext(work[:per]); work = work[per:]
    a.ext(stores)
    a(f"s_lshr_b32 {s(g.sFB)}, {s(g.sRT)}, 3")
    a(f"s_lshl_b32 {s(g.sFB)}, {s(g.sFB)}, 10")
    a(f"s_add_u32 {s(g.sFB)}, {s(g.sFB)}, {F2B_OFF}")

def gen_g2(a, pfx):
    g = G2
    vL, vF, vF2, vW4, vXO, XR, AS, AD, HF, WFS, OF = g.vL, g.vF, g.vF2, g.vW4, g.vXO, g.XR, g.AS, g.AD, g.HF, g.WFS, g.OF
    sRT, sC8, sM, sW, sH, sPB, sFB = g.sRT, g.sC8, g.sM, g.sW, g.sH, g.sPB, g.sFB
    sT0, sT1, sT2, sT3 = g.sT0, g.sT1, g.sT2, g.sT3
    sOL, sF3, sFH = 46, 47, 48
    SETS = (WFS[0], WFS[1], 220, 48, 68)
    T = 88; U = 116
    vFl, vFr, vOL, vTW, vTR, vO = T, T + 1, T + 2, T + 3, T + 4, T + 5
    SX, SO = S_A, S_B
    vm, lg = Trk(), Trk()
    ool = []
    def loc(st):
        return (2, st - 72) if st >= 72 else ((st >> 2) & 3, st & 3)
    def rd(d, st, mt):
        slot, ks = loc(st)
        base, off = (vF2, 0) if slot == 3 else (vF, slot * 20480)
        lg.add((st, mt))
        a(f"ds_read_b128 {v(d+4*mt,4)}, {v(base)} offset:{off+ks*5120+mt*1024}")
    W = lambda st: [(("W", st), x) for x in g.wdma(st & 3)]
    H = lambda st: [(("H", st), x) for x in g.hload(st & 3)]
    def put(it):
        tag, lines = it
        if callable(lines): lines(); return
        a.ext(lines)
        if tag: vm.add(tag)
    def wave0(name, cond, body):
        def f():
            a(f"s_cmp_eq_u32 {s(cond)}, 0"); a(f"s_cbranch_scc1 {pfx}_{name}"); a(f"{pfx}_{name}r:")
            b = Asm(); b(f"{pfx}_{name}:"); body(b); b(f"s_branch {pfx}_{name}r"); ool.append(b)
        return f
    def flag_req(name, vaddr, soff, vres):
        def body(b):
            vm.mark(name)
            b(f"buffer_load_dword {v(vres)}, {'off' if vaddr is None else v(vaddr)}, {s(S_WS,4)}, {s(soff)}{'' if vaddr is None else ' offen'} sc1")
        return wave0("q" + name, S_WV, body)
    def flag_chk(name, vaddr, soff, vres, sleep, prio, st):
        def body(b):
            setprio(b, Cfg.prioGv)
            b(f"s_waitcnt vmcnt({vm.n(name)})")
            b(f"v_cmp_ne_u32 vcc, {v(vres)}, {v(V_NONCE)}")
            b("s_nop 1")
            b(f"s_cbranch_vccz {pfx}_p{name}_ok")
            poll(b, f"{pfx}_p{name}", vaddr, soff, vres, sT2, sleep)
            setprio(b, prio)
            if st: stamp(b, st)
        return wave0("c" + name, S_WV, body)
    for st in range(2):
        for x in W(st) + H(st): vm.add(x[0])
    vm.mark("hst")
    setprio(a, Cfg.prioD)
    a(f"s_waitcnt vmcnt({vm.n(('H', 0))})")
    a("s_barrier")
    for st in range(2):
        for mt in range(5): rd(WFS[st], st, mt)
    stamp(a, "d_issued")
    sal = lambda *l: (None, list(l))
    xl = [(("X", 0), [f"buffer_load_dwordx{n} {v(XR+o,n)}, {v(vXO)}, {s(SX,4)}, {s(sT3)} offen offset:{4*o}"]) for o, n in ((0, 4), (4, 4), (8, 2))]
    first = {st: W(st + 2) for st in range(11)}
    second = {st: H(st + 2) for st in range(11)}
    second[10] = second[10] + W(13)
    first[11] = W(14) + H(13)[:2]; second[11] = W(15)
    first[12] = xl; second[12] = W(16); first[13] = []
    pre = {}; post = {}
    post[1] = wave0("pb", sPB, lambda b: (publish(b, 100), stamp(b, "pub2")))
    second[5] = second[5] + [(None, flag_req("2", g.vBA, sFB, g.vBR))]
    pre[6] = flag_chk("2", g.vBA, sFB, g.vBR, Cfg.p2s, Cfg.prioD, "h2_go")
    second[7] += [sal(f"s_lshl_b32 {s(sFH)}, s2, 6", f"s_add_u32 {s(sFH)}, {s(sFH)}, {FH_OFF}",
                      f"s_mul_i32 {s(sT3)}, {s(sRT)}, {16*1280}", f"s_mul_i32 {s(sT1)}, {s(sC8)}, 160", f"s_add_u32 {s(sT3)}, {s(sT3)}, {s(sT1)}")]
    t_ = Asm(); srd(t_, SX, P_X, 2048 * 1280); srd(t_, SO, P_OUT, 2048 * 1280)
    second[8] += [sal(*[x.strip() for x in t_.lines])]
    second[9] += [sal(f"s_lshr_b32 {s(sT1)}, {s(sRT)}, 2", f"s_lshl_b32 {s(sOL)}, {s(sT1)}, 14", f"s_and_b32 {s(sT0)}, {s(S_WV)}, 1",
                      f"s_lshl_b32 {s(sT0)}, {s(sT0)}, 8", f"s_add_u32 {s(sOL)}, {s(sOL)}, {s(sT0)}", f"s_lshr_b32 {s(sT0)}, {s(S_WV)}, 1",
                      f"s_lshl_b32 {s(sT0)}, {s(sT0)}, 3", f"s_add_u32 {s(sOL)}, {s(sOL)}, {s(sT0)}", f"s_add_u32 {s(sOL)}, {s(sOL)}, {OL_OFF}",
                      f"s_lshl_b32 {s(sF3)}, {s(sT1)}, 11", f"s_add_u32 {s(sF3)}, {s(sF3)}, {F3_OFF}")]
    if Cfg.lag:
        ls = 9 + Cfg.lag
        first[ls] = [(None, flag_req("h", None, sFH, g.vBR))] + first[ls]
        pre[ls] = flag_chk("h", None, sFH, g.vBR, 2, Cfg.prioD, None)
    if Cfg.tc & 2:
        def tb(b):
            setprio(b, Cfg.prioGv); b.ext(touch(f"{pfx}_tc1", f"{pfx}_end", 52, g.vFA, g.vFA)); setprio(b, Cfg.prioD)
            b.lines = [l.replace("s_add_u32 s52, s52, g2_tc1-", "s_sub_u32 s52, s52, @").replace("s_addc_u32 s53", "s_subb_u32 s53") for l in b.lines]
            b.lines = [(l.split("@")[0] + l.split("@")[1] + "-g2_tc1") if "@" in l else l for l in b.lines]
        first[8] = first[8] + [(None, wave0("tc", S_WV, tb))]
    extra = []
    a(f"s_waitcnt lgkmcnt({lg.n((0, 0))})")
    for st in range(14):
        for ks in range(4 if st < 13 else 2):
            k = 4 * st + ks
            if k == 48: a(f"{pfx}_tc1:")
            if ks in (0, 2):
                pend = list((first if ks == 0 else second)[st]); npend = len(pend); done = 0
            for mt in range(5):
                d = WFS[k & 1]
                a(mf16(AD + 4 * mt, d + 4 * mt, HF + 16 * (st & 3) + 4 * ks, "0" if k == 0 else None))
                nxt = (k, mt + 1) if mt < 4 else (k + 1, 0)
                w = [f"lgkmcnt({min(14, lg.n(nxt))})"] if nxt[0] < 54 else []
                if ks == 2 and mt == 0:
                    need = [("W", st + 1)] + (["hst"] if st == 1 else []) + ([("W", 14)] if st == 12 else [])
                    w = [f"vmcnt({min(vm.n(x) for x in need)})"] + (["lgkmcnt(0)"] if st >= 10 else w)
                    a("s_waitcnt " + " ".join(w))
                    if st in pre: pre[st]()
                    a("s_barrier")
                    if st in post: post[st]()
                    if st == 12: extra = [(SETS[j], 54 + j, m) for j in range(2, 5) for m in range(5)]
                else:
                    if ks == 3 and mt == 4: w = [f"vmcnt({vm.n(('H', st + 1))})"] + w
                    if w: a("s_waitcnt " + " ".join(w))
                rd(d, k + 2, mt)
                if extra: rd(*extra.pop(0))
                pos = 5 * (ks & 1) + mt
                while pend and done * 10 <= pos * npend:
                    put(pend.pop(0)); done += 1
            if ks & 1: assert not pend
    assert not extra
    a(f"{pfx}_tc2:")
    setprio(a, Cfg.prioGv)
    stamp(a, "d_done")
    a(f"v_and_b32 {v(vFl)}, 31, {v(vL)}")
    a(f"v_lshlrev_b32 {v(vFl)}, 6, {v(vFl)}")
    flag_req("3", vFl, sF3, vFr)()
    a("s_waitcnt lgkmcnt(0)")
    a("s_barrier")
    work = []
    for r0 in range(0, 20, 4):
        R = range(r0, r0 + 4)
        work += [f"v_mul_f32 {v(AS+r)}, {f2u(-LOG2E)}, {v(AD+r)}" for r in R]
        work += [f"v_exp_f32 {v(AS+r)}, {v(AS+r)}" for r in R]
        work += [f"v_pk_add_f32 {v(AS+r,2)}, {v(AS+r,2)}, 1.0 op_sel_hi:[1,0]" for r in (r0, r0 + 2)]
        work += [f"v_rcp_f32 {v(AS+r)}, {v(AS+r)}" for r in R]
        work += [pk("mul", AD + r, [AD + r, AS + r]) for r in (r0, r0 + 2)]
    for i, it in enumerate(W(17)):
        put(it); a.ext(work[16*i:16*i+16])
    a(f"s_cmp_ge_u32 {s(S_WV)}, 2")
    a(f"s_cbranch_scc1 {pfx}_now5")
    for x in g.wdma(2): a.ext(x)
    a(f"{pfx}_now5:")
    vm.mark("w18")
    a(f"s_lshl_b32 {s(sH)}, {s(sRT)}, 14")
    a(f"s_add_u32 {s(sH)}, {s(sH)}, {O_OFF}")
    a(f"v_lshrrev_b32 {v(vTW)}, 4, {v(vL)}")
    a(f"v_and_b32 {v(vTR)}, 0xff, {v(vF)}")
    a(f"v_lshl_add_u32 {v(vOL)}, {v(vTW)}, 10, {v(vTR)}")
    stamp(a, "wo_ready")
    a(f"s_waitcnt vmcnt({vm.n(('W', 16))})")
    flag_chk("3", vFl, sF3, vFr, Cfg.p3s, Cfg.prioGv, None)()
    a("s_barrier")
    stamp(a, "o_go")
    ol = []
    for k in range(16):
        o = [f"buffer_load_dwordx4 {v(OF(k),4)}, {v(vF)}, {s(S_WS,4)}, {s(sH)} offen offset:{(k&3)*1024}{SC1}"]
        if k & 3 == 3 and k < 15: o.append(f"s_add_u32 {s(sH)}, {s(sH)}, 4096")
        ol.append((("O", k), o))
    for k in range(16, 20):
        for sec in range(2):
            o = [f"buffer_load_dwordx2 {v(OF(k)+2*sec,2)}, {v(vOL)}, {s(S_WS,4)}, {s(sOL)} offen offset:{sec*512}{SC1}"]
            if sec and k < 19: o.append(f"s_add_u32 {s(sOL)}, {s(sOL)}, 4096")
            ol.append((("O", k), o))
    SCR = 2 * 20480 + 2 * 5120
    adr = [f"s_mul_i32 {s(sT0)}, {s(S_WV)}, 2560", f"s_add_u32 {s(sT0)}, {s(sT0)}, {SCR}",
           f"v_mul_u32_u24 {v(vTR)}, 10, {v(vTR)}", f"v_mad_u32_u24 {v(vTW)}, {v(vTW)}, 40, {v(vTR)}", f"v_add_u32 {v(vTW)}, {s(sT0)}, {v(vTW)}",
           f"v_add_u32 {v(vTR)}, {s(sT0)}, {v(vF)}", f"s_movk_i32 {s(sT1)}, 1120"]
    for i in range(3):
        adr += [f"v_add_u32 {v(vO+i)}, {64*i}, {v(vL)}", f"v_mul_u32_u24 {v(vFl)}, 6554, {v(vO+i)}", f"v_lshrrev_b32 {v(vFl)}, 16, {v(vFl)}",
                f"v_lshlrev_b32 {v(vO+i)}, 4, {v(vO+i)}", f"v_mad_u32_u24 {v(vO+i)}, {v(vFl)}, {s(sT1)}, {v(vO+i)}"]
    for i in range(Cfg.onl):
        put(ol.pop(0))
        if Cfg.adw: a.ext(adr[:3]); adr = adr[3:]
    a.ext(adr)
    order = [(k, mt) for k in range(15) for mt in range(5)] + [(k, mt) for mt in range(5) for k in range(15, 20)]
    posn = {x: n for n, x in enumerate(order)}
    reads = sorted(((k, mt) for k in range(5, 20) for mt in range(5)), key=lambda x: posn[x])
    NB = 40
    unp = [f"v_lshlrev_b32 {v(U+2*j)}, 16, {v(XR+j)}" if h == 0 else f"v_and_b32 {v(U+2*j+1)}, 0xffff0000, {v(XR+j)}" for j in range(10) for h in range(2)]
    def fin(mt):
        return [f"v_fma_f32 {v(U+4*mt+i)}, {v(AS+4*mt+i)}, {v(AD+4*mt+i)}, {v(U+4*mt+i)}" for i in range(4)] + \
               [f"v_cvt_pk_bf16_f32 {v(XR+2*mt+j)}, {v(U+4*mt+2*j)}, {v(U+4*mt+2*j+1)}" for j in range(2)]
    fq = []; nread = 0; wrote = 0
    def wr(mt):
        lg.add(("w", mt)); a(f"ds_write_b64 {v(vTW)}, {v(XR+2*mt,2)} offset:{8*mt}")
    a(f"s_waitcnt vmcnt({vm.n(('O', 0))})")
    stamp(a, "o_first")
    seenO = {0}
    for n, (k, mt) in enumerate(order):
        a(mf16(AS + 4 * mt, SETS[k % 5] + 4 * mt, OF(k), "0" if k == 0 else None))
        w = []
        if n < 99:
            k2, m2 = order[n + 1]
            if k2 not in seenO: w.append(f"vmcnt({vm.n(('O', k2))})"); seenO.add(k2)
            if k2 >= 5: w.append(f"lgkmcnt({min(14, lg.n((54 + k2, m2)))})")
        if w: a("s_waitcnt " + " ".join(w))
        if n == NB:
            a("s_barrier"); stamp(a, "o_mid")
        slots = 2
        ok = [x for x in reads if posn[(x[0] - 5, x[1])] <= n and (x[0] < 14 or n >= NB)]
        if ok and (nread * Cfg.rpn <= n * 10 or posn[ok[0]] - n <= 10):
            x = ok[0]; reads.remove(x); rd(SETS[x[0] % 5], 54 + x[0], x[1]); nread += 1; slots -= 1
        if ol and n % Cfg.oln == 0:
            put(ol.pop(0)); slots -= 1
        if n >= 83 and (n - 83) % 5 == 0: fq += fin((n - 83) // 5) + [(n - 83) // 5]
        while slots > 0 and ((unp and n >= 30) or fq):
            x = unp.pop(0) if unp else fq.pop(0)
            if isinstance(x, int): wr(x)
            else: a(x)
            slots -= 1
    assert not reads and not ol and not unp
    stamp(a, "wo_done")
    for x in fq:
        if isinstance(x, int): wr(x)
        else: a(x)
    a("s_nop 2")
    a.ext(fin(4)); wr(4)
    for i in range(3): a(f"ds_read_b128 {v(U+4*i,4)}, {v(vTR)} offset:{i*1024}")
    for i in range(3):
        a(f"s_waitcnt lgkmcnt({2-i})")
        if i == 2: a("s_mov_b32 exec_hi, 0")
        a(f"buffer_store_dwordx4 {v(U+4*i,4)}, {v(vO+i)}, {s(SO,4)}, {s(sT3)} offen" + ("", " sc1", " nt", " sc0 sc1")[Cfg.ost])
    a(f"s_branch {pfx}_end")
    for b in ool: a.lines += b.lines
    a(f"{pfx}_end:")

def kd(name, nv=256):
    return f""".amdhsa_kernel {name}
  .amdhsa_next_free_vgpr {nv}
  .amdhsa_next_free_sgpr 102
  .amdhsa_accum_offset {nv}
  .amdhsa_group_segment_fixed_size 0
  .amdhsa_kernarg_size 80
  .amdhsa_user_sgpr_count 2
  .amdhsa_user_sgpr_kernarg_segment_ptr 1
  .amdhsa_system_sgpr_workgroup_id_x 1
  .amdhsa_float_denorm_mode_32 3
.end_amdhsa_kernel
"""
def head(a, name, n):
    a(f".globl {name}"); a(".p2align 8"); a(f".type {name},@function"); a(f"{name}:")
    a(f"s_cmp_ge_u32 s2, {n}")
    a(f"s_cbranch_scc1 {name}_end")
    load_args(a)
def tail(a, name):
    a(f"{name}_end:"); a("s_endpgm")

def build1():
    Cfg.fused = True
    a = Asm()
    name = NAME + "_kernel"
    a("; @launch grid=(512,1,1) block=(256,1,1) lds=81920")
    a('.amdgcn_target "amdgcn-amd-amdhsa--gfx950"')
    a(".text")
    head(a, name, 512)
    if Cfg.cpf == 2:
        a("s_getpc_b64 s[54:55]")
        a("L_pc:")
        a("s_and_b32 s56, s2, 0x1f8")
        a("v_lshrrev_b32 v2, 5, v0")
        a("v_and_b32 v3, 1, v0")
        a("v_add3_u32 v2, v2, v3, s56")
        a("v_lshlrev_b32 v2, 7, v2")
        a(f"v_min_u32 v2, {name}_end-L_pc, v2")
        a("s_mov_b64 exec, 3")
        a("global_load_dword v255, v2, s[54:55]")
        a("s_mov_b64 exec, -1")
    a("s_cmp_ge_u32 s2, 256")
    a("s_cbranch_scc1 L_att")
    stamp_begin(a, 0); stamp(a, "start"); gen_g1(a, "g1"); gen_g2(a, "g2"); stamp_end(a, 0, 2)
    a("s_endpgm")
    a("L_att:")
    stamp_begin(a, 1); stamp(a, "start"); gen_att(a, "att", 2); stamp_end(a, 1, 2)
    tail(a, name)
    a('.section .rodata,"a"')
    a(".p2align 6"); a.lines.append(kd(name))
    return a.text()

if __name__ == "__main__":
    if "--stamps" in sys.argv:
        sys.argv.remove("--stamps"); STAMPS = True
    if "--lite" in sys.argv:
        sys.argv.remove("--lite"); STAMPS = True; LITE = True
    if "--cyc" in sys.argv:
        sys.argv.remove("--cyc"); STAMPS = "cyc"
    three = "--three" in sys.argv
    if three: sys.argv.remove("--three")
    for x in list(sys.argv):
        if "=" in x:
            k_, v_ = x.split("="); setattr(Cfg, k_, int(v_)); sys.argv.remove(x)
    t = build1()
    if STAMPS:
        import json; json.dump(St.names, open(sys.argv[1].replace(".s", ".json"), "w"))
    out = sys.argv[1] if len(sys.argv) > 1 else f"cdna_kernels/{NAME}.s"
    body = t[:t.index('.section .rodata')]
    pr = check_hazards(body)
    for p in pr: print("HAZARD", p)
    open(out, "w").write(t)
    print("written", out, len(t), "bytes;", len(pr), "hazards")
```

```python
import sys, math, struct, re
from asmlib import *

NAME = "recurrent_scan__softmax_full_mha__geglu_ffn__prompt"
QK_OFF = 0
V_OFF = 160 * 32768
H_OFF = V_OFF + 32 * 81920
O_OFF = H_OFF + 128 * 55296
OL_OFF = O_OFF + 128 * 16384
FLAG_OFF = O_OFF + 128 * 20480
def f2u(x): return "0x%08x" % struct.unpack("<I", struct.pack("<f", x))[0]
LOG2E = math.log2(math.e)
QSCALE = 20 ** -0.5 * LOG2E
GC0 = -2.0 * LOG2E * math.sqrt(2.0 / math.pi)
GC1 = GC0 * 0.044715
SC1 = " sc1"

P_X, P_WQKV, P_WO, P_WG, P_WU, P_WD, P_OUT, P_DBG, P_WS = 4, 6, 8, 12, 14, 16, 18, 20, 22
S_WS = 24
S_A = 28
S_B = 32
S_C = 36
S_WV = 40

def srd(a, d, p, nbytes):
    a(f"s_mov_b32 {s(d)}, {s(p)}")
    a(f"s_mov_b32 {s(d+1)}, {s(p+1)}")
    a(f"s_mov_b32 {s(d+2)}, {nbytes}")
    a(f"s_mov_b32 {s(d+3)}, 0x00020000")

WR_OFF = FLAG_OFF
FLAG_OFF = WR_OFF + 8 * 74 * 5120
F4_OFF = FLAG_OFF + 32768 + 131072
F2B_OFF = F4_OFF + 8192
F1_OFF = FLAG_OFF
F2_OFF = FLAG_OFF + 16384
F3_OFF = FLAG_OFF + 32768
FH_OFF = F2B_OFF + 16384
F0_OFF = FH_OFF + 16384
F5_OFF = F0_OFF + 16384
FP_OFF = F5_OFF + 8192
FX_OFF = FP_OFF + 32768
WS_BYTES = FX_OFF + 256 * 4352
V_NONCE = 11
class Cfg:
    fused = True
    prioA = 1; prioGm = 0; prioGv = 2; prioD = 0
    rot = True
    ns = 3; drot = 0; cpf = 2; nw0 = 2; pubk = 3; aord = 1; x_norl = 0; hiN = 0; p3s = 1; p4s = 8; p2s = 2; chks = 3; x_hot = 0; x_nokv = 0; wpf = 0; x_nolo = 0; p0s = 16; p1s = 4; prioS = 2; onl = 10; carry = 3; gap = 3; gap0 = 3; x_body = 0; tch = 0; bal = 0; diag = 0; dsel = 0; ost = 0; tlb = 0; lo = 24; hi = 48; pk = 3; otch = 0; lag = 0; mbu = 1; prioE = 3; thl = 3; ths = 3; early = 0; hiL = 5; hiE = 5; rpn = 12; adw = 1; oln = 4; tc = 2; x_gexit = 0; w0e = 0; pzk = 15; tha = -1; fpos = 0; med = 1; hiR = 6; prioB = 1; thq = -1; dyn = 0; gate = 1; hau = 3; nost = 0; prioT = 2; sls = 1; sl0 = 3; nb = 36; lnn = 1; nsl = 2; two = 0; sk = 1; skn = 3; sko = 0; prioR = 2; skl = 1; sks = 1; skp2 = 1; wsc = 0; xsc = 0; pex = 1; pp3 = 0; pp0 = 0; hint = 0; phs = 4; lpro = 1; fst = 64; spoll = 0; lead = 1; x_aexit = 0; x_d = 0; wpre = 0; skp = 1; hpre = 0; xl = 0; dry = 0; arl = 0
def setprio(a, p):
    if Cfg.fused: a(f"s_setprio {p}")
def publish(a, soff):
    a("s_mov_b64 exec, 1")
    a(f"buffer_store_dword {v(V_NONCE)}, off, {s(S_WS,4)}, {s(soff)} sc1")
    a("s_mov_b64 exec, -1")
def poll(a, lbl, vaddr, soff, vt, scnt, sleep, vt2=None):
    ld = lambda d: f"buffer_load_dword {v(d)}, {'off' if vaddr is None else v(vaddr)}, {s(S_WS,4)}, {s(soff)}{'' if vaddr is None else ' offen'} sc1"
    a(f"s_mov_b32 {s(scnt)}, 0x20000")
    if vt2 is not None: a(ld(vt2))
    a(f"{lbl}:")
    for i, (new, old) in enumerate(((vt, vt),) if vt2 is None else ((vt, vt2), (vt2, vt))):
        if vt2 is not None and sleep: a(f"s_sleep {sleep}")
        a(ld(new))
        a(f"s_waitcnt vmcnt({0 if vt2 is None else 1})")
        a(f"v_cmp_ne_u32 vcc, {v(old)}, {v(V_NONCE)}")
        a(f"s_sub_u32 {s(scnt)}, {s(scnt)}, 1")
        a(f"s_cbranch_scc1 {lbl}_ok")
        a(f"s_cbranch_vccz {lbl}_ok")
        if Cfg.pex: a("s_mov_b64 exec, vcc")
    if vt2 is None and sleep: a(f"s_sleep {sleep}")
    a(f"s_branch {lbl}")
    a(f"{lbl}_ok:")
    if Cfg.pex: a("s_mov_b64 exec, -1")
def nonce_load(a, vz):
    a(f"global_load_dword {v(V_NONCE)}, {v(vz)}, {s(P_DBG,2)} sc1")
def nonce_check(a, lbl, vz, st, scnt, ok=None):
    ok = ok or f"{lbl}_ok"
    a(f"s_mov_b32 {s(scnt)}, 0x20000")
    a(f"{lbl}:")
    a(f"v_readfirstlane_b32 {s(st)}, {v(V_NONCE)}")
    a(f"s_sub_u32 {s(scnt)}, {s(scnt)}, 1")
    a(f"s_cbranch_scc1 {ok}")
    a(f"s_cmp_lg_u32 {s(st)}, 0")
    a(f"s_cbranch_scc1 {ok}")
    a(f"s_sleep {Cfg.nsl}")
    a(f"v_mov_b32 {v(vz)}, 0")
    nonce_load(a, vz)
    a("s_waitcnt vmcnt(0)")
    a(f"s_branch {lbl}")
    a(f"{lbl}_ok:")

STAMPS = False
class St:
    n = 0; names = {}; cur = None
LITE = False
def stamp(a, name):
    if not STAMPS or (LITE and name not in ("start", "end")): return
    l = St.names.setdefault(St.cur, [])
    if name not in l: l.append(name)
    i = l.index(name)
    a("s_waitcnt lgkmcnt(0)")
    a("s_memtime s[62:63]" if STAMPS == "cyc" else "s_memrealtime s[62:63]")
    a("s_waitcnt lgkmcnt(0)")
    a(f"s_mov_b32 {s(64+i)}, s62")
def stamp_begin(a, role):
    St.cur = role
    if not STAMPS: return
    for i in range(32 if not LITE else 0): a(f"s_mov_b32 {s(64+i)}, 0")
def stamp_end(a, slot, idreg):
    if not STAMPS: return
    a("s_waitcnt vmcnt(0) lgkmcnt(0)")
    stamp(a, "end")
    a("s_mov_b64 exec, -1")
    a("v_mov_b32 v20, 0")
    for i in range(32 if not LITE else 2): a(f"v_writelane_b32 v20, {s(64+i)}, {i}")
    a(f"s_and_b32 s62, {s(idreg)}, 255")
    a("s_lshl_b32 s62, s62, 2")
    a(f"s_add_u32 s62, s62, {s(S_WV)}")
    a(f"s_add_u32 s62, s62, {slot*1024}")
    a("s_lshl_b32 s62, s62, 7")
    a(f"s_add_u32 s62, s62, {WS_BYTES}")
    a(f"s_mov_b32 {s(S_WS+2)}, {WS_BYTES + (1<<20)}")
    a("v_lshlrev_b32 v21, 2, v1")
    a("s_mov_b32 exec_hi, 0")
    a(f"buffer_store_dword v20, v21, {s(S_WS,4)}, s62 offen")

_tc = [0]
def touch(l0, l1, sp, vaddr, vdst, vL=1):
    _tc[0] += 1; t = f"L_tc{_tc[0]}"
    return [f"s_getpc_b64 {s(sp,2)}", f"{t}:", f"s_add_u32 {s(sp)}, {s(sp)}, {l0}-{t}", f"s_addc_u32 {s(sp+1)}, {s(sp+1)}, 0",
            f"v_lshlrev_b32 {v(vaddr)}, 7, {v(vL)}", f"v_min_u32 {v(vaddr)}, {l1}-{l0}, {v(vaddr)}",
            f"global_load_dword {v(vdst)}, {v(vaddr)}, {s(sp,2)}"]

def pk(op, d, srcs):
    ops = []; lo = []; hi = []
    for x in srcs:
        if x >= 0: ops.append(v(x, 2)); lo.append(0); hi.append(1)
        else:
            r = -x - 1; ops.append(v(r & ~1, 2)); lo.append(r & 1); hi.append(r & 1)
    f = lambda l: "[" + ",".join(map(str, l)) + "]"
    return f"v_pk_{op}_f32 {v(d,2)}, " + ", ".join(ops) + f" op_sel:{f(lo)} op_sel_hi:{f(hi)}"

class Trk:
    def __init__(self): self.l = []
    def add(self, tag): self.l.append(tag)
    def mark(self, tag): self.l.append(("opt", tag))
    def n(self, tag):
        i = max(j for j, t in enumerate(self.l) if t == tag or t == ("opt", tag))
        return sum(1 for t in self.l[i+1:] if not (isinstance(t, tuple) and t[0] == "opt"))

MODS = ("", " sc1", " nt", " sc0")
def WM(): return " sc1" if Cfg.wpre else MODS[Cfg.wsc]
def load_args(a):
    a("s_load_dwordx16 s[4:19], s[0:1], 0")
    a("s_load_dwordx4 s[20:23], s[0:1], 64")

def gen_g1(a, pfx):
    X, ACC, G, WF = 96, 32, 64, 16
    vL = 1
    vTA, vTB, vTA2, vTB2, vD, vDR, vDCo, vST = 2, 3, 4, 5, 6, 7, 8, 9
    CN = (10, 12, 13, 14, 15, 0)
    vA0, vB0, vK0, vA1, vB1, vK1 = CN
    vA, vB, vK = (vA0, vA1), (vB0, vB1), (vK0, vK1)
    VR, VA = G + 16, G + 24
    sRB, sCG, sTT, sM, sN, sNT, sNQ, sP0 = 41, 42, 43, 44, 45, 46, 47, 48
    sO, sDA, sDB, sDC, sS = 49, 50, 51, 52, 53
    sT0, sT1, sT2, sT3, sSO = 54, 55, 56, 57, 58
    sSW, sCHK, sC2, sPB0, sHI, sURG = 59, 97, 36, 37, 98, 3
    NU = 1 if Cfg.two else 2
    sROT, sXB, sXC, sPUB, sF, sU = 96, 97, 98, 99, 100, 101
    SW = S_B
    t0, t1, t2 = G, G + 1, G + 2
    NL = 12 if Cfg.med else 10
    a(f"v_and_b32 {v(vL)}, 63, v0")
    a(f"v_lshrrev_b32 {v(t2)}, 6, v0")
    a(f"s_and_b32 {s(sT0)}, s2, 7")
    a(f"v_readfirstlane_b32 {s(S_WV)}, {v(t2)}")
    a(f"s_lshr_b32 {s(sT1)}, s2, 3")
    a(f"s_lshr_b32 {s(sRB)}, {s(sT0)}, 1")
    a(f"s_lshl_b32 {s(sRB)}, {s(sRB)}, 2")
    a(f"s_and_b32 {s(sROT)}, {s(sT1)}, 3")
    a(f"s_add_u32 {s(sRB)}, {s(sRB)}, {s(sROT)}")
    a(f"s_lshr_b32 {s(sT2)}, {s(sT1)}, 2")
    if Cfg.rot == 2: a(f"s_mov_b32 {s(sROT)}, {s(sT2)}")
    elif Cfg.rot == 3:
        a(f"s_and_b32 {s(sROT)}, {s(sROT)}, 1")
        a(f"s_lshl_b32 {s(sROT)}, {s(sROT)}, 1")
        a(f"s_add_u32 {s(sROT)}, {s(sROT)}, {s(sT2)}")
    else: a(f"s_add_u32 {s(sROT)}, {s(sROT)}, {s(sT2)}")
    a(f"s_lshl_b32 {s(sTT)}, {s(sRB)}, 2")
    a(f"s_add_u32 {s(sTT)}, {s(sTT)}, {s(S_WV)}")
    a(f"s_mul_i32 {s(sT3)}, {s(sROT)}, 13")
    a(f"s_lshr_b32 {s(sT3)}, {s(sT3)}, 6")
    a(f"s_mul_i32 {s(sT3)}, {s(sT3)}, 5")
    a(f"s_sub_u32 {s(sROT)}, {s(sROT)}, {s(sT3)}")
    if not Cfg.rot: a(f"s_mov_b32 {s(sROT)}, 0")
    vXA = ACC
    a(f"v_lshrrev_b32 {v(t0)}, 4, {v(vL)}")
    a(f"v_mul_u32_u24 {v(vXA)}, 1280, {v(t0)}")
    a(f"v_and_b32 {v(t1)}, 15, {v(vL)}")
    a(f"v_xor_b32 {v(vXA+1)}, {v(t0)}, {v(t1)}")
    a(f"v_lshl_add_u32 {v(vXA)}, {v(vXA+1)}, 4, {v(vXA)}")
    for i in range(1, 4): a(f"v_xor_b32 {v(vXA+i)}, {64*i}, {v(vXA)}")
    a(f"s_lshl_b32 {s(sM)}, {s(S_WV)}, 12")
    a(f"s_mul_i32 {s(sXB)}, {s(sTT)}, 40960")
    a(f"s_lshl_b32 {s(sXC)}, {s(sROT)}, 8")
    XS = (4, 1, 2, 3, 0, 4, 1, 2, 3, 4) if Cfg.w0e else (0, 1, 2, 3, 4, 0, 1, 2, 3, 4)
    def xdma(b):
        out = []
        for i in range(4):
            g = []
            if i == 0:
                g += [f"s_add_u32 m0, {s(sM)}, {XS[b]*16384}", f"s_add_u32 {s(sU)}, {s(sXB)}, {s(sXC)}"]
            g.append(f"buffer_load_dwordx4 {v(vXA+i)}, {s(S_A,4)}, {s(sU)} offen offset:{i*1024}{MODS[Cfg.xsc]} lds")
            if i < 3: g.append(f"s_add_u32 {s(sU)}, {s(sU)}, 4096")
            else:
                g += [f"s_add_u32 {s(sXC)}, {s(sXC)}, 256", f"s_cmp_ge_u32 {s(sXC)}, 1280", f"s_cselect_b32 {s(sXC)}, 0, {s(sXC)}"]
                if b == 4: g.append(f"s_add_u32 {s(sXB)}, {s(sXB)}, 20480")
            out.append(g)
        return out
    su = Asm()
    su(f"s_and_b32 {s(sCG)}, {s(sT0)}, 1")
    su(f"s_add_u32 {s(sCG)}, {s(sCG)}, {s(sT2)}" if Cfg.bal else f"s_lshl_b32 {s(sCG)}, {s(sCG)}, 3")
    su(f"s_add_u32 {s(sCG)}, {s(sCG)}, {s(sT2)}")
    su(f"s_mul_i32 {s(sC2)}, {s(sCG)}, 52")
    su(f"s_lshr_b32 {s(sC2)}, {s(sC2)}, 8")
    su(f"s_mul_i32 {s(sC2)}, {s(sC2)}, 5")
    su(f"s_add_u32 {s(sC2)}, {s(sCG)}, {s(sC2)}")
    srd(su, S_WS, P_WS, WS_BYTES)
    su(f"s_cmp_lt_u32 {s(sCG)}, 15\ns_cselect_b32 {s(sNQ)}, 2, 0\ns_cselect_b32 {s(sSW)}, 1, -1@")
    su(f"s_cmp_lt_u32 {s(sCG)}, {NL}\ns_cselect_b32 {s(sNT)}, 6, 4\ns_cselect_b32 {s(sP0)}, 17, 1@")
    if Cfg.med:
        su(f"s_sub_u32 {s(sT0)}, {s(sCG)}, 7")
        su(f"s_lshr_b32 {s(sT1)}, {s(sT0)}, 1")
        su(f"s_sub_u32 {s(sT0)}, {s(sCG)}, 8")
        su(f"s_cmp_lt_u32 {s(sT0)}, 4\ns_cselect_b32 {s(sT1)}, {s(sT1)}, 0\ns_sub_u32 {s(sP0)}, {s(sP0)}, {s(sT1)}@")
    su(f"s_mov_b32 {s(SW+3)}, 0x00020000")
    su(f"s_mov_b32 {s(sN)}, -1")
    vR0, vR4 = ACC + 4, ACC + 8
    vSm, vGr, vNM, vON = ACC + 12, (ACC + 16, ACC + 20), ACC + 24, ACC + 28
    vSE, vBP, vMu = G + 6, G + 5, (G + 12, G + 13)
    CTS = ((WF, WF + 8, G + 16), (ACC, G + 16, ACC + 8))
    sMA, sMB = 60, 38
    su(f"v_xor_b32 {v(vR0)}, {v(t0)}, {v(t1)}")
    su(f"v_lshlrev_b32 {v(vR0)}, 4, {v(vR0)}")
    su(f"v_lshl_add_u32 {v(vR0)}, {v(t1)}, 8, {v(vR0)}")
    su(f"v_add_u32 {v(vR0)}, {s(sM)}, {v(vR0)}")
    for q in range(1, 4): su(f"v_xor_b32 {v(vR0+q)}, {64*q}, {v(vR0)}")
    for q in range(4): su(f"v_add_u32 {v(vR4+q)}, 0x10000, {v(vR0+q)}")
    for i in range(4): su(f"v_mov_b32 {v(vON+i)}, 0x3f803f80")
    for i in (0, 1, 4, 5): su(f"v_mov_b32 {v(vSE+i)}, 0")
    su(f"s_mov_b32 {s(sMA)}, 0xaaaaaaaa"); su(f"s_mov_b32 {s(sMA+1)}, 0xaaaaaaaa")
    su(f"s_mov_b32 {s(sMB)}, 0xcccccccc"); su(f"s_mov_b32 {s(sMB+1)}, 0xcccccccc")
    su(f"v_and_b32 {v(vBP)}, 1, {v(vL)}")
    su(f"v_lshlrev_b32 {v(vBP)}, 4, {v(vBP)}")
    su(f"v_mov_b32 {v(vSE+2)}, 0x3f80")
    su(f"v_lshlrev_b32 {v(vSE+2)}, {v(vBP)}, {v(vSE+2)}")
    su(f"v_bfe_u32 {v(vBP)}, {v(vL)}, 2, 2")
    su(f"v_cmp_eq_u32 vcc, {v(vBP)}, {v(t0)}")
    su(f"v_lshl_add_u32 {v(vBP)}, {v(vBP)}, 4, {v(t1)}")
    su(f"v_lshlrev_b32 {v(vBP)}, 2, {v(vBP)}")
    su(f"v_cndmask_b32 {v(vSE+2)}, 0, {v(vSE+2)}, vcc")
    su(f"v_cndmask_b32 {v(vSE+3)}, 0, {v(vSE+2)}, {s(sMB,2)}")
    su(f"v_cndmask_b32 {v(vSE+2)}, {v(vSE+2)}, 0, {s(sMB,2)}")
    t3, t4 = G + 3, G + 4
    su(f"v_bfe_u32 {v(t3)}, {v(vL)}, 4, 1")
    su(f"v_bfe_u32 {v(t4)}, {v(vL)}, 2, 2")
    su(f"v_lshl_add_u32 {v(vDR)}, {v(t3)}, 3, {v(t4)}")
    su(f"v_lshl_add_u32 {v(vDR)}, {v(t2)}, 5, {v(vDR)}")
    su(f"v_lshlrev_b32 {v(vDCo)}, 1, {v(t3)}")
    su(f"v_and_b32 {v(vD)}, 3, {v(vL)}")
    su(f"v_xor_b32 {v(vDCo)}, {v(vDCo)}, {v(vD)}")
    su(f"v_lshlrev_b32 {v(vDCo)}, 4, {v(vDCo)}")
    su(f"v_lshrrev_b32 {v(t2)}, 5, {v(vL)}")
    su(f"v_lshl_add_u32 {v(vDCo)}, {v(t2)}, 6, {v(vDCo)}")
    su(f"v_lshlrev_b32 {v(vTA)}, 11, {v(t2)}")
    su(f"v_mad_u32_u24 {v(vTA)}, {v(t3)}, {s(sT3)}, {v(vTA)}")
    su(f"v_lshl_add_u32 {v(vTA)}, {v(t4)}, 6, {v(vTA)}")
    su(f"v_lshl_add_u32 {v(vTA)}, {v(vD)}, 3, {v(vTA)}")
    su(f"v_xor_b32 {v(vTB)}, 32, {v(vTA)}")
    su(f"v_add_u32 {v(vTA2)}, 0x10000, {v(vTA)}")
    su(f"v_add_u32 {v(vTB2)}, 0x10000, {v(vTB)}")
    su(f"v_lshl_add_u32 {v(vST)}, {v(t3)}, 1, {v(t2)}")
    su(f"v_lshlrev_b32 {v(vST)}, 15, {v(vST)}")
    su(f"v_lshl_add_u32 {v(vST)}, {v(t1)}, 4, {v(vST)}")
    su(f"s_lshl_b32 {s(sT1)}, {s(sC2)}, 6")
    su(f"s_sub_u32 {s(sT1)}, {s(sT1)}, 1280")
    su(f"s_and_b32 {s(sT1)}, {s(sT1)}, 1023")
    su(f"s_mov_b32 {s(sT2)}, {81920-320}")
    su(f"v_mul_u32_u24 {v(t0)}, 320, {v(t0)}")
    su(f"v_add_u32 {v(t1)}, {s(sT1)}, {v(t1)}")
    for i in range(8):
        su(f"v_mul_u32_u24 {v(t2)}, 3277, {v(t1)}")
        su(f"v_lshrrev_b32 {v(t2)}, 16, {v(t2)}")
        su(f"v_lshl_add_u32 {v(VA+i)}, {v(t1)}, 4, {v(t0)}")
        su(f"v_mad_u32_u24 {v(VA+i)}, {v(t2)}, {s(sT2)}, {v(VA+i)}")
        if i == 3: su(f"v_add_u32 {v(t1)}, 272, {v(t1)}")
        elif i < 7: su(f"v_add_u32 {v(t1)}, 16, {v(t1)}")
    def params_a():
        return [f"s_add_u32 {s(sT0)}, {s(sN)}, 1",
                f"s_sub_u32 {s(sT1)}, {s(sT0)}, {s(sNQ)}",
                f"s_lshr_b32 {s(sT1)}, {s(sT1)}, 1",
                f"s_mul_i32 {s(sT1)}, {s(sT1)}, {s(sP0)}",
                f"s_add_u32 {s(sT1)}, {s(sT1)}, {s(sCG)}",
                f"s_mul_i32 {s(sT2)}, {s(sT0)}, 5",
                f"s_add_u32 {s(sT2)}, {s(sT2)}, {s(sC2)}",
                f"s_movk_i32 {s(sS)}, 3456",
                f"s_cmp_lt_u32 {s(sT0)}, {s(sNQ)}\ns_cselect_b32 {s(sT1)}, {s(sT2)}, {s(sT1)}\ns_cselect_b32 {s(sS)}, 3840, {s(sS)}",
                f"s_mul_i32 {s(sT2)}, {s(sROT)}, {s(sS)}",
                f"s_add_u32 {s(sT1)}, {s(sT1)}, {s(sT2)}"]
    def params_b():
        return [f"s_bitcmp1_b32 {s(sT0)}, 0\ns_cselect_b32 {s(SW)}, {s(P_WU)}, {s(P_WG)}\ns_cselect_b32 {s(SW+1)}, {s(P_WU+1)}, {s(P_WG+1)}",
                f"s_cmp_lt_u32 {s(sT0)}, {s(sNQ)}\ns_cselect_b32 {s(SW)}, {s(P_WQKV)}, {s(SW)}\ns_cselect_b32 {s(SW+1)}, {s(P_WQKV+1)}, {s(SW+1)}",
                f"s_mul_i32 {s(SW+2)}, {s(sS)}, 640",
                f"s_cmp_lt_u32 {s(sT0)}, {s(sNT)}\ns_cselect_b32 {s(SW+2)}, {s(SW+2)}, 0",
                f"s_lshl_b32 {s(sO)}, {s(sT1)}, 7",
                f"s_lshl_b32 {s(sDA)}, {s(sS)}, 2",
                f"s_mul_i32 {s(sDB)}, {s(sS)}, 12",
                f"s_mul_i32 {s(sDC)}, {s(sS)}, 108",
                f"s_sub_u32 {s(sDA)}, {s(sDA)}, 1024",
                f"s_sub_u32 {s(sDB)}, {s(sDB)}, 1024",
                f"s_add_u32 {s(sDC)}, {s(sDC)}, 3072"]
    def params_v(): return f"v_mad_u32_u24 {v(vD)}, {v(vDR)}, {s(sS)}, {v(vDCo)}"
    def wdma(slot):
        out = []
        for i in range(4):
            g = []
            if i == 0: g += [f"s_add_u32 m0, {s(sM)}, {slot*16384}", "s_nop 0"]
            g.append(f"buffer_load_dwordx4 {v(vD)}, {s(SW,4)}, {s(sO)} offen offset:{i*1024}{WM()} lds")
            g.append(f"s_add_u32 {s(sO)}, {s(sO)}, {s((sDA, sDB, sDA, sDC)[i])}")
            if i == 3:
                g += [f"s_cmp_ge_u32 {s(sO)}, {s(SW+2)}", f"s_cselect_b32 {s(sU)}, {s(SW+2)}, 0", f"s_sub_u32 {s(sO)}, {s(sO)}, {s(sU)}"]
            out.append(g)
        return out
    items = []; keep = []
    for l in su.lines:
        l = l.strip()
        if l.startswith("s_cmp"): keep = [l]; continue
        if keep:
            keep.append(l.rstrip("@"))
            if l.endswith("@"): items.append("\n".join(keep)); keep = []
            continue
        items.append(l)
    items += params_a() + params_b() + [params_v()]
    a(f"s_movk_i32 {s(sT3)}, 288")
    a("s_waitcnt lgkmcnt(0)")
    srd(a, S_A, P_X, 2048 * 1280)
    per = -(-len(items) // 16)
    if Cfg.tch & 1:
        a(f"s_mul_i32 {s(sU)}, {s(sT2)}, 2560")
        a(f"s_add_u32 {s(sU)}, {s(sU)}, {s(sXB)}")
        a(f"s_add_u32 {s(sU)}, {s(sU)}, 20480")
        a(f"v_lshlrev_b32 {v(WF)}, 7, {v(vL)}")
        a("s_mov_b64 exec, 0xfffff")
        a(f"buffer_load_dword {v(WF+1)}, {v(WF)}, {s(S_A,4)}, {s(sU)} offen")
        a("s_mov_b64 exec, -1")
    for b in range(5):
        for g in xdma(b):
            a.ext(g)
            if b > 0:
                for _ in range(per):
                    if items: a(items.pop(0))
    assert not items
    if Cfg.tch & 2:
        a(f"s_and_b32 {s(sT0)}, {s(sTT)}, 15")
        a(f"s_mul_i32 {s(sT0)}, {s(sT0)}, 40")
        a(f"s_mul_i32 {s(sT0)}, {s(sT0)}, {s(sS)}")
        a(f"s_mul_i32 {s(sT2)}, {s(sROT)}, {s(sS)}")
        a(f"s_lshl_b32 {s(sT2)}, {s(sT2)}, 7")
        a(f"s_sub_u32 {s(sT2)}, {s(sO)}, {s(sT2)}")
        a(f"s_add_u32 {s(sT0)}, {s(sT0)}, {s(sT2)}")
        a(f"v_mul_u32_u24 {v(WF+2)}, {s(sS)}, {v(vL)}")
        a("s_mov_b32 exec_hi, 0xff")
        a(f"buffer_load_dword {v(WF+3)}, {v(WF+2)}, {s(SW,4)}, {s(sT0)} offen")
        if Cfg.tch & 4: a(f"buffer_load_dword {v(WF+4)}, {v(WF+2)}, {s(SW,4)}, {s(sT0)} offen offset:128")
        a("s_mov_b32 exec_hi, -1")
    def nonce_pub():
        a(f"s_or_b32 {s(sT0)}, s2, {s(S_WV)}")
        a(f"s_cmp_lg_u32 {s(sT0)}, 0")
        a(f"s_cbranch_scc1 {pfx}_nn")
        a(f"s_memrealtime {s(sT0,2)}")
        a("s_waitcnt lgkmcnt(0)")
        a(f"s_or_b32 {s(sT0)}, {s(sT0)}, 1")
        a(f"v_mov_b32 {v(t0)}, 0")
        a(f"v_mov_b32 {v(t1)}, {s(sT0)}")
        a("s_mov_b64 exec, 1")
        a(f"global_store_dword {v(t0)}, {v(t1)}, {s(P_DBG,2)} sc1")
        a("s_mov_b64 exec, -1")
        a(f"{pfx}_nn:")
    if not Cfg.lnn: nonce_pub()
    a(f"s_mov_b32 {s(sN)}, 0")

    def stats(b):
        o = []
        for q in range(4):
            f = X + 16 * b + 4 * q
            first = (b % 5 == 0 and q == 0)
            o.append(mf16(vSm, vON, f, "0" if first else None))
            o.append(mf16(vGr[b // 5], f, f, "0" if first else None))
        return o
    def mean(rt):
        return [f"v_mul_f32 {v(vMu[rt])}, {f2u(-1/640)}, {v(vSm)}",
                f"v_cvt_pk_bf16_f32 {v(vNM)}, {v(vMu[rt])}, {v(vMu[rt])}",
                f"v_lshlrev_b32 {v(vNM)}, 16, {v(vNM)}",
                f"v_mov_b32 {v(vNM+1)}, {v(vNM)}", f"v_mov_b32 {v(vNM+2)}, {v(vNM)}", f"v_mov_b32 {v(vNM+3)}, {v(vNM)}", "s_nop 1"]
    def diag(rt):
        g = vGr[rt]
        return [f"v_cndmask_b32 {v(g)}, {v(g)}, {v(g+1)}, {s(sMA,2)}",
                f"v_cndmask_b32 {v(g+2)}, {v(g+2)}, {v(g+3)}, {s(sMA,2)}",
                f"v_cndmask_b32 {v(g)}, {v(g)}, {v(g+2)}, {s(sMB,2)}",
                f"ds_bpermute_b32 {v(vK[rt])}, {v(vBP)}, {v(g)}"]
    def finalize2(rt):
        k = vK[rt]
        return [f"v_mul_f32 {v(k)}, {f2u(1/640)}, {v(k)}",
                f"v_fma_f32 {v(k)}, -{v(vMu[rt])}, {v(vMu[rt])}, {v(k)}",
                f"v_max_f32 {v(k)}, 0, {v(k)}",
                f"v_cvt_pk_bf16_f32 {v(k)}, {v(k)}, {v(k)}",
                f"v_lshlrev_b32 {v(k)}, 16, {v(k)}",
                f"v_add_f32 {v(k)}, {f2u(1e-5)}, {v(k)}",
                f"v_cvt_pk_bf16_f32 {v(k)}, {v(k)}, {v(k)}",
                f"v_lshlrev_b32 {v(k)}, 16, {v(k)}",
                f"v_sqrt_f32 {v(k)}, {v(k)}", "s_nop 0",
                f"v_cvt_pk_bf16_f32 {v(k)}, {v(k)}, {v(k)}",
                f"v_lshlrev_b32 {v(k)}, 16, {v(k)}",
                f"v_rcp_f32 {v(vA[rt])}, {v(k)}", "s_nop 0",
                f"v_mul_f32 {v(vA[rt])}, {s(sT3)}, {v(vA[rt])}"]
    def center(rt):
        steps = []; CT = CTS[rt]
        for j in range(22):
            m = [[], []]; c = [[], []]
            if j < 20:
                f = X + 80 * rt + 4 * j; d = CT[j % 3]
                m = [[mf16(d, vSE + 2, f, v(vNM, 4))], [mf16(d + 4, vSE, f, v(vNM, 4))]]
            if j >= 2:
                f = X + 80 * rt + 4 * (j - 2); d = CT[(j - 2) % 3]
                cv = [f"v_cvt_pk_bf16_f32 {v(f+i)}, {v(d+2*i)}, {v(d+2*i+1)}" for i in range(4)]
                c = [cv[:2], cv[2:]]
            st = m[0] + c[0] + m[1] + c[1]
            if j in (0, 1): st.append("s_nop 2")
            if j == 20: st.append("s_nop 3")
            steps.append(st)
        return steps
    def weave(steps, groups):
        n = len(groups); done = 0
        for i, st in enumerate(steps):
            a.ext(st[:1])
            while done < n and done * len(steps) <= i * n:
                a.ext(groups[done]); done += 1
            a.ext(st[1:])
        for g in groups[done:]: a.ext(g)
    a(f"s_cmp_lt_u32 {s(sCG)}, 5")
    a(f"s_cselect_b32 {s(sT3)}, {f2u(QSCALE)}, 1.0")
    def xread(b):
        slot = XS[b]
        return [f"ds_read_b128 {v(X+16*b+4*q,4)}, {v((vR4 if slot == 4 else vR0)+q)} offset:{0 if slot == 4 else slot*16384}" for q in range(4)]
    pairs = lambda l: [l[2*i:2*i+2] for i in range(len(l) // 2)]
    NC = Cfg.carry
    wg = [wdma(st) for st in range(4)]
    wg[3] = wg[3][:4 - NC]; wg[3][-1] = wg[3][-1][:-1]
    tk = Trk()
    for b in range(5):
        for _ in range(4): tk.add(("x", b))
    def wx(b): a(f"s_waitcnt vmcnt({tk.n(('x', b))})")
    dq = []
    def popq():
        tag, gr = dq.pop(0); a.ext(gr); tk.add(tag)
    def step(st, pop):
        a.ext(st[:1])
        if pop and dq: popq()
        a.ext(st[1:])
    XD = lambda b: [(("x", b), gr) for gr in xdma(b)]
    WD = lambda st: [(("w", st), gr) for gr in wg[st]]
    E = Cfg.w0e
    wx(0)
    stamp(a, "x0")
    a.ext(xread(0))
    for b in range(5):
        if b < 4:
            wx(b + 1); a.ext(xread(b + 1)); a("s_waitcnt lgkmcnt(4)")
        else:
            a("s_waitcnt lgkmcnt(0)")
        if b < 4 or not E: dq += XD(b + 5)
        for i, st in enumerate(pairs(stats(b))): step(st, i % 2 == 0)
    popq()
    a("s_nop 4")
    a.ext(mean(0))
    c0 = center(0)
    for i, st in enumerate(c0):
        step(st, i % 2 == 1 or (E and i > 9))
        if i == 3: a.ext(diag(0))
        if E and i == 6:
            wx(5); a.ext(xread(5))
        if E and i == 9:
            assert not dq
            a("s_waitcnt lgkmcnt(0)")
            dq += XD(9) + WD(0)
        if i == 17:
            assert not dq
            stamp(a, "p1")
            if not E: wx(5); a.ext(xread(5))
    f0 = finalize2(0)
    for b in range(5, 10):
        if b < 9:
            wx(b + 1); a.ext(xread(b + 1)); a("s_waitcnt lgkmcnt(4)")
            if b > 5 or not E: dq += WD(b - 5)
        else:
            a("s_waitcnt lgkmcnt(0)")
        sts = stats(b)
        if b == 9: sts = sts[0::2] + sts[1::2]
        for i, st in enumerate(pairs(sts)):
            step(st, i % 2 == 0 if b < 9 else i >= 2)
            if i % 2 == 1: a.ext(f0[:2]); f0 = f0[2:]
        if b == 7 and Cfg.lnn: nonce_pub()
    assert not f0
    stamp(a, "p2")
    a(f"v_mov_b32 {v(V_NONCE)}, 0")
    a.ext(mean(1))
    def trd(k, ct):
        kk = k % 20
        slot, ks = kk // 4, kk % 4
        base = ((vTA, vTB), (vTA2, vTB2))[slot == 4][ct & 1]
        off = 0 if slot == 4 else slot * 16384
        return [f"ds_read_b64_tr_b16 {v(WF+4*ct+2*t,2)}, {v(base)} offset:{off+ks*4096+t*1024+(ct>>1)*512}" for t in range(2)]
    sq = [f"s_cmp_eq_u32 {s(sNQ)}, 0", f"s_cselect_b32 {s(sPUB)}, -1, {3 - NU}", f"s_cselect_b32 {s(sURG)}, {NU if Cfg.hint == 1 else -1}, {NU}",
          f"s_lshl4_add_u32 {s(sF)}, {s(sCG)}, {s(sRB)}", f"s_lshl_b32 {s(sF)}, {s(sF)}, 6", f"s_add_u32 {s(sF)}, {s(sF)}, {F1_OFF if Cfg.two else F0_OFF}",
          f"s_cmp_eq_u32 {s(S_WV)}, 0", f"s_cselect_b32 {s(sCHK)}, 5, -1", f"s_cselect_b32 {s(sPUB)}, {s(sPUB)}, -1", f"s_mov_b32 {s(sPB0)}, {s(sSW)}",
          f"s_cmp_lt_u32 {s(sCG)}, 8" if (Cfg.two or Cfg.early != 1) else "s_cmp_lt_u32 s2, 128", f"s_cselect_b32 {s(sHI)}, {Cfg.hiE}, {Cfg.hiL}",
          f"s_cmp_lt_u32 {s(sCG)}, {NL}", f"s_cselect_b32 {s(sHI)}, {s(sHI)}, {Cfg.hiR}", f"s_setprio {Cfg.prioGv}"]
    f1 = [x for x in finalize2(1) if not x.startswith("s_nop")]
    c1 = center(1)
    for i, st in enumerate(c1):
        if dq: step(st, i % 2 == 0)
        else:
            for x in st:
                a(x)
                if "mfma" in x and sq: a(sq.pop(0))
        if i == 1: a.ext(diag(1))
        if i == 5: a("s_waitcnt lgkmcnt(0)")
        if i >= 5 and f1: a(f1.pop(0))
        if i == 15:
            assert not dq
            a(f"s_waitcnt vmcnt({12 - NC})")
            a("s_barrier")
            stamp(a, "w0")
            for ct in range(4): a.ext(trd(0, ct))
            if not Cfg.lnn: nonce_load(a, V_NONCE)
    assert not sq and not f1
    stamp(a, "centered")
    if Cfg.diag:
        a("s_lshl_b32 s62, s2, 6"); a(f"s_add_u32 s62, s62, {FH_OFF + 4}")
        a(f"v_mov_b32 {v(t0)}, s64"); a("s_mov_b64 exec, 1")
        a(f"buffer_store_dword {v(t0)}, off, {s(S_WS,4)}, s62 sc1"); a("s_mov_b64 exec, -1")
    def ffn_consts():
        for rt in range(2):
            a(f"v_rcp_f32 {v(vB[rt])}, {v(vK[rt])}")
            a(f"v_mul_f32 {v(vK[rt])}, {v(vK[rt])}, {v(vK[rt])}")
            a(f"v_mul_f32 {v(vA[rt])}, {f2u(GC0)}, {v(vB[rt])}")
            a(f"v_mul_f32 {v(vB[rt])}, {v(vB[rt])}, {v(vB[rt])}")
            a(f"v_mul_f32 {v(vB[rt])}, {v(vB[rt])}, {v(vA[rt])}")
            a(f"v_mul_f32 {v(vB[rt])}, {f2u(0.044715)}, {v(vB[rt])}")
        a(f"v_lshlrev_b32 {v(vST)}, 4, {v(vL)}")
        a(f"s_lshr_b32 {s(sT0)}, s2, 7")
        a(f"s_lshl_b32 {s(sT0)}, {s(sT0)}, 12")
        a(f"s_add_u32 {s(sT0)}, {s(sT0)}, {F4_OFF}")
        a(f"s_and_b32 {s(sT1)}, s2, 7")
        a(f"s_lshl_b32 {s(sT1)}, {s(sT1)}, 1")
        a(f"s_bfe_u32 {s(sT2)}, s2, {4 | (1<<16)}")
        a(f"s_add_u32 {s(sT1)}, {s(sT1)}, {s(sT2)}")
        a(f"s_lshl_b32 {s(sT1)}, {s(sT1)}, 10")
        a(f"s_add_u32 {s(sT1)}, {s(sT1)}, {F2_OFF - 48*64}")
        a(f"v_mov_b32 {v(vDR)}, {s(sT0)}")
        a("s_mov_b32 exec_lo, 0")
        a("s_mov_b32 exec_hi, 0xffff0000")
        a(f"v_mov_b32 {v(vDR)}, {s(sT1)}")
        a("s_mov_b64 exec, -1")
        a(f"v_lshl_add_u32 {v(vDR)}, {v(vL)}, 6, {v(vDR)}")
        if Cfg.med:
            a("s_mov_b32 exec_lo, 0")
            a("s_mov_b32 exec_hi, 0xffff")
            if Cfg.gate == 1:
                a(f"s_lshl_b32 {s(sT0)}, s2, 6")
                a(f"s_add_u32 {s(sT0)}, {s(sT0)}, {FH_OFF + 32}")
            if Cfg.gate == 2:
                a(f"s_lshl_b32 {s(sT1)}, s2, 6")
                a(f"s_add_u32 {s(sT1)}, {s(sT1)}, {FH_OFF + 32}")
                a(f"s_cmp_lt_u32 {s(sCG)}, 8")
                a(f"s_cselect_b32 {s(sT0)}, {s(sT0)}, {s(sT1)}")
            if Cfg.arl:
                a(f"s_lshr_b32 {s(sT0)}, s2, 5")
                a(f"s_lshl_b32 {s(sT0)}, {s(sT0)}, 10")
                a(f"s_add_u32 {s(sT0)}, {s(sT0)}, {F5_OFF - 32*64}")
                a(f"v_min_u32 {v(vDR)}, 41, {v(vL)}")
                a(f"v_lshl_add_u32 {v(vDR)}, {v(vDR)}, 6, {s(sT0)}")
            else:
                a(f"v_mov_b32 {v(vDR)}, {s(sT0)}")
            a("s_mov_b64 exec, -1")
        a(f"v_mov_b32 {v(vDCo)}, 0")
    def wdma_items(slot):
        ld = lambda i: f"buffer_load_dwordx4 {v(vD)}, {s(SW,4)}, {s(sO)} offen offset:{i*1024}{WM()} lds"
        ad = lambda d: f"s_add_u32 {s(sO)}, {s(sO)}, {s(d)}"
        return [[ld(0)], [ad(sDA), ld(1)], [ad(sDB), ld(2)], [ad(sDA), ld(3)],
                [ad(sDC), f"s_cmp_ge_u32 {s(sO)}, {s(SW+2)}", f"s_cselect_b32 {s(sU)}, {s(SW+2)}, 0"],
                [f"s_sub_u32 {s(sO)}, {s(sO)}, {s(sU)}"]]
    def pack(items, n=3):
        out = []; cur = []
        for it in items:
            l = it.split("\n")
            if len(cur) + len(l) > n: out.append(cur); cur = []
            cur += l
        if cur: out.append(cur)
        return out
    def body(tag, swap):
        if not swap:
            a(f"s_lshl_b32 {s(sT0)}, {s(sN)}, 1")
            a(f"s_cmp_lt_u32 {s(sT0)}, {s(sHI)}")
            a(f"s_cbranch_scc1 {pfx}_hi")
            setprio(a, Cfg.prioGm)
            a(f"{pfx}_hi:")
        a("s_waitcnt lgkmcnt(6)")
        def spread(dma, other, gap):
            out = []; other = list(other)
            for it in dma:
                out.append(it)
                if any(" lds" in x for x in it):
                    for _ in range(gap - 1): out.append(other.pop(0) if other else [])
            return out + other
        q = spread(wdma_items(3)[4 - Cfg.carry:], pack(params_a()), Cfg.gap0)
        for k in range(20):
            for ct in range(4):
                w = WF + 4 * ct
                mm = lambda rt: mf16(ACC + 16 * rt + 4 * ct, X + 80 * rt + 4 * k if swap else w, w if swap else X + 80 * rt + 4 * k, "0" if k == 0 else None)
                a(mm(0))
                if ct == 0 and k % 4 == 3:
                    assert not q, (k, q)
                    if k == Cfg.pubk:
                        a(f"s_cbranch_scc1 {pfx}_pub{tag}")
                    if k == 15 and not swap and Cfg.arl and Cfg.wpre:
                        a(f"s_cbranch_scc1 {pfx}_chk3"); a(f"{pfx}_chk3r:")
                    if not Cfg.x_body & 4: a("s_waitcnt vmcnt(8)")
                    if not Cfg.x_body & 1: a("s_barrier")
                    if k == Cfg.pubk: a(f"{pfx}_pubret{tag}:")
                    if k == 11:
                        a(f"s_cbranch_scc1 {pfx}_pz{tag}"); a(f"{pfx}_pzr{tag}:")
                    dm = wdma_items((k // 4 - 1) % 5); q = []
                    if k == 3:
                        dm = spread(dm[:3], [], 2) + dm[3:4] + pack(params_b()) + [[f"s_cmp_eq_u32 {s(sN)}, {s(sPB0)}", f"s_cbranch_scc1 {pfx}_sw{tag}", f"{pfx}_swr{tag}:"]]
                    if k == 7 and not swap:
                        T0 = sum(x << (3 * i) for i, x in enumerate((1, 4, 2, 3, 0)))
                        T1 = sum(x << (3 * i) for i, x in enumerate((3, 0, 1, 4, 2)))
                        it = [f"s_mov_b32 {s(sT0)}, {s(sCG)}", f"s_mul_i32 {s(sT1)}, {s(sT0)}, 52",
                              f"s_lshr_b32 {s(sT1)}, {s(sT1)}, 8", f"s_mul_i32 {s(sT1)}, {s(sT1)}, 5", f"s_sub_u32 {s(sT0)}, {s(sT0)}, {s(sT1)}",
                              f"s_mul_i32 {s(sT0)}, {s(sT0)}, 3"]
                        for tb, m in ((T0, sMA), (T1, sMB)):
                            it += [f"s_lshr_b32 {s(sT1)}, {tb << 4}, {s(sT0)}", f"s_and_b32 {s(sT2)}, {s(sT1)}, 0x30",
                                   f"s_bitcmp1_b32 {s(sT1)}, 6\ns_cselect_b32 {s(m)}, 0, 0xffff\ns_mov_b32 {s(m+1)}, 0",
                                   f"s_lshl_b64 {s(m,2)}, {s(m,2)}, {s(sT2)}"]
                        q += pack(it)
                    if k == 7 and not swap:
                        q += [[f"s_lshl1_add_u32 {s(sT0)}, {s(sN)}, 1", f"s_cmp_eq_u32 {s(sT0)}, {s(sHI)}", f"s_cbranch_scc1 {pfx}_lo", f"{pfx}_lor:"]]
                    if k == 15 and not swap:
                        q += [[f"s_add_u32 {s(sT0)}, {s(sN)}, {Cfg.wpre}"], [f"s_cmp_eq_u32 {s(sT0)}, {s(sCHK)}", f"s_cbranch_scc1 {pfx}_chk", f"{pfx}_chkr:"]]
                    if k == 15 and not swap and Cfg.hpre:
                        for j in range(Cfg.hpre * 2):
                            q += [[f"s_cmp_eq_u32 {s(sN)}, 5", f"s_cbranch_scc1 {pfx}_hp{j}", f"{pfx}_hpr{j}:"]]
                    if k == 11 and not swap and Cfg.arl and Cfg.wpre:
                        q += [[f"s_cmp_eq_u32 {s(sN)}, {s(sCHK)}", f"s_cbranch_scc1 {pfx}_chk2", f"{pfx}_chk2r:"]]
                    if k == 15 and Cfg.lnn:
                        q = [[f"s_cmp_eq_u32 {s(sN)}, 0", f"s_cbranch_scc1 {pfx}_nl{tag}", f"{pfx}_nlr{tag}:"]] + q
                    if k == 11:
                        if swap:
                            q += pack([f"s_mul_i32 {s(sSO)}, {s(sTT)}, 1280", f"s_add_u32 {s(sSO)}, {s(sSO)}, {V_OFF}"])
                        else:
                            q += pack([f"s_sub_u32 {s(sT0)}, {s(sN)}, {s(sNQ)}", f"s_lshr_b32 {s(sT0)}, {s(sT0)}, 1", f"s_mul_i32 {s(sT0)}, {s(sT0)}, {s(sP0)}", f"s_add_u32 {s(sT0)}, {s(sT0)}, {s(sCG)}",
                                f"s_lshl_b32 {s(sT0)}, {s(sT0)}, 11", f"s_mul_i32 {s(sSO)}, {s(sTT)}, {2*55296}", f"s_add_u32 {s(sSO)}, {s(sSO)}, {s(sT0)}",
                                f"s_add_u32 {s(sSO)}, {s(sSO)}, {H_OFF}",
                                f"s_mul_i32 {s(sT0)}, {s(sN)}, 5", f"s_add_u32 {s(sT0)}, {s(sT0)}, {s(sC2)}", f"s_lshl_b32 {s(sT0)}, {s(sT0)}, 18",
                                f"s_lshl_b32 {s(sT1)}, {s(sTT)}, 9", f"s_add_u32 {s(sT0)}, {s(sT0)}, {s(sT1)}",
                                f"s_mov_b32 {s(sT1)}, 55296",
                                f"s_cmp_lt_u32 {s(sN)}, {s(sNQ)}\ns_cselect_b32 {s(sSO)}, {s(sT0)}, {s(sSO)}\ns_cselect_b32 {s(sT1)}, {4*32768}, {s(sT1)}",
                                f"s_add_u32 {s(sT3)}, {s(sSO)}, {s(sT1)}"])
                    if k == 3: q = dm
                    elif k == 19: q = spread(dm[:4 - Cfg.carry], [], {1: 1, 2: 2, 3: 3}[Cfg.carry])[:3]
                    else:
                        q = spread(dm[:3], q, Cfg.gap)
                        q = q[:3 * Cfg.gap] + dm[3:] + q[3 * Cfg.gap:]
                elif ct == 3 and k % 4 == 2:
                    while q and not q[-1]: q.pop()
                    assert not q, (k, q)
                    a(f"s_add_u32 m0, {s(sM)}, {(((k + 1) // 4 - 1) % 5) * 16384}")
                    if k + 1 == Cfg.pubk: a(f"s_cmp_eq_u32 {s(sN)}, {s(sURG)}")
                    if k + 1 == 11: a(f"s_cmp_eq_u32 {s(sN)}, {s(sPUB)}")
                    if k + 1 == 15 and not swap and Cfg.arl and Cfg.wpre: a(f"s_cmp_eq_u32 {s(sN)}, {s(sCHK)}")
                elif q: a.ext([x for x in q.pop(0) if not (Cfg.x_body & 2 and " lds" in x)])
                a(mm(1))
                a("s_waitcnt lgkmcnt(4)")
                a.ext(trd(k + 1, ct))
        assert not q
        setprio(a, Cfg.prioGv)
        if STAMPS and not LITE:
            for n in range(6):
                a(f"s_cmp_lg_u32 {s(sN)}, {n}"); a(f"s_cbranch_scc1 {pfx}_stm{tag}{n}"); stamp(a, f"mm{n}"); a(f"{pfx}_stm{tag}{n}:")
    def ep_stamp(tag):
        if STAMPS and not LITE:
            for n in range(6):
                a(f"s_cmp_lg_u32 {s(sN)}, {n}"); a(f"s_cbranch_scc1 {pfx}_ste{tag}{n}"); stamp(a, f"ep{n}"); a(f"{pfx}_ste{tag}{n}:")
    a(f"s_cmp_lt_u32 {s(sCG)}, 10")
    a(f"s_cbranch_scc1 {pfx}_hi")
    a(f"s_cmp_eq_u32 {s(sNQ)}, 0")
    a(f"s_cbranch_scc1 {pfx}_toffn")
    a(f"v_and_b32 {v(t0)}, 48, {v(vL)}")
    for rt in range(2):
        for i in range(4): a(f"ds_bpermute_b32 {v(VR+4*rt+i)}, {v(t0)}, {v(vA[rt])} offset:{4*i}")
    a(f"{pfx}_vloop:")
    body("v", True)
    for ct in range(4):
        for rt in range(2):
            if Cfg.pk & 2:
                for i in (0, 2): a(pk("mul", ACC+16*rt+4*ct+i, [ACC+16*rt+4*ct+i, VR+4*rt+i]))
            else:
                for i in range(4): a(f"v_mul_f32 {v(ACC+16*rt+4*ct+i)}, {v(ACC+16*rt+4*ct+i)}, {v(VR+4*rt+i)}")
        for rt in range(2):
            for j in range(2): a(f"v_cvt_pk_bf16_f32 {v(G+4*ct+2*rt+j)}, {v(ACC+16*rt+4*ct+2*j)}, {v(ACC+16*rt+4*ct+2*j+1)}")
        a(f"buffer_store_dwordx4 {v(G+4*ct,4)}, {v(VA+ct)}, {s(S_WS,4)}, {s(sSO)} offen{SC1}")
    ep_stamp("v")
    a(f"s_cmp_eq_u32 {s(sN)}, 1")
    a(f"s_cbranch_scc1 {pfx}_qdone")
    for ct in range(4): a(f"v_mov_b32 {v(VA+ct)}, {v(VA+4+ct)}")
    a(f"s_mov_b32 {s(sN)}, 1")
    if Cfg.lnn: a(f"s_waitcnt vmcnt({3 + 4 + 4 - Cfg.carry})")
    nonce_check(a, f"{pfx}_ncv", V_NONCE, sT0, sT1, f"{pfx}_vloop")
    for tag in "vn":
        if Cfg.lnn:
            a(f"{pfx}_nl{tag}:"); nonce_load(a, V_NONCE); a(f"s_branch {pfx}_nlr{tag}")
        a(f"{pfx}_sw{tag}:")
        if tag == "n" and Cfg.wpre:
            a(f"s_cmp_eq_u32 {s(sN)}, 5")
            a(f"s_cbranch_scc1 {pfx}_sww")
            a(f"s_mov_b32 {s(sPB0)}, 5")
        a(params_v()); a(f"s_branch {pfx}_swr{tag}")
        if tag == "n" and Cfg.wpre:
            a(f"{pfx}_sww:")
            a(f"s_mov_b32 {s(SW)}, {s(P_WS)}"); a(f"s_mov_b32 {s(SW+1)}, {s(P_WS+1)}"); a(f"s_mov_b32 {s(SW+2)}, {WS_BYTES}")
            a(f"s_lshr_b32 {s(sO)}, s2, 5")
            a(f"s_mul_i32 {s(sO)}, {s(sO)}, {74*5120}")
            a(f"s_add_u32 {s(sO)}, {s(sO)}, {WR_OFF}")
            a(f"s_add_u32 {s(sO)}, {s(sO)}, {s(sM)}")
            a(f"s_mov_b32 {s(sDA)}, 0"); a(f"s_mov_b32 {s(sDB)}, 0"); a(f"s_movk_i32 {s(sDC)}, 16384")
            setprio(a, Cfg.prioGv)
            a(f"v_mov_b32 {v(vD)}, {v(vST)}")
            setprio(a, Cfg.prioGm)
            a(f"s_branch {pfx}_swr{tag}")
        a(f"{pfx}_pub{tag}:")
        a(f"s_waitcnt vmcnt({ {3: Cfg.carry, 7: 4 + Cfg.carry}[Cfg.pubk] })")
        a("s_barrier")
        a(f"s_cmp_lt_u32 {2 * NU + 1}, {s(sHI)}")
        a(f"s_cbranch_scc1 {pfx}_pubhi{tag}")
        setprio(a, Cfg.prioGm)
        a(f"{pfx}_pubhi{tag}:")
        a(f"s_cmp_lg_u32 {s(S_WV)}, 0")
        a(f"s_cbranch_scc1 {pfx}_pubret{tag}")
        a(f"s_lshl4_add_u32 {s(sU)}, {s(sCG)}, {s(sRB)}")
        a(f"s_mul_i32 {s(sU)}, {s(sU)}, {Cfg.fst}")
        a(f"s_add_u32 {s(sU)}, {s(sU)}, {F0_OFF if Cfg.two else FX_OFF}")
        publish(a, sU)
        if Cfg.hint == 1:
            a(f"s_lshl_b32 {s(sU)}, s2, 7")
            a(f"s_add_u32 {s(sU)}, {s(sU)}, {FP_OFF}")
            publish(a, sU)
        stamp(a, "pub0")
        a(f"s_branch {pfx}_pubret{tag}")
    for j in range(Cfg.hpre * 2):
        a(f"{pfx}_hp{j}:")
        if j == 0:
            a(f"s_and_b32 {s(sT1)}, s2, 7")
            a(f"s_bfe_u32 {s(sT2)}, s2, {3 | (2<<16)}")
            a(f"s_lshl2_add_u32 {s(sT1)}, {s(sT1)}, {s(sT2)}")
            a(f"s_lshl2_add_u32 {s(sT1)}, {s(sT1)}, {s(S_WV)}")
            a(f"s_mul_i32 {s(sT1)}, {s(sT1)}, 55296")
            a(f"s_add_u32 {s(sT1)}, {s(sT1)}, {H_OFF}")
        for i in range(4): a(f"buffer_load_dwordx4 {v(G2.HFS[j]+4*i,4)}, {v(vST)}, {s(S_WS,4)}, {s(sT1)} offen offset:{i*1024} sc1")
        a(f"s_add_u32 {s(sT1)}, {s(sT1)}, 4096")
        a(f"s_branch {pfx}_hpr{j}")
    if Cfg.arl and Cfg.wpre:
        a(f"{pfx}_chk2:")
        a(f"buffer_load_dword {v(vDCo)}, {v(vDR)}, {s(S_WS,4)}, 0 offen sc1")
        a(f"s_branch {pfx}_chk2r")
        a(f"{pfx}_chk3:")
        setprio(a, Cfg.prioGv)
        a("s_waitcnt vmcnt(3)")
        a(f"v_cmp_ne_u32 vcc, {v(vDCo)}, {v(V_NONCE)}")
        a(f"s_mov_b32 {s(sT0)}, 0")
        a("s_nop 0")
        a(f"s_cbranch_vccz {pfx}_px_ok")
        poll(a, f"{pfx}_px", vDR, sT0, vDCo, sT1, Cfg.p4s)
        setprio(a, Cfg.prioGm)
        a(f"s_branch {pfx}_chk3r")
    a(f"{pfx}_lo:"); setprio(a, Cfg.prioGm); a(f"s_branch {pfx}_lor")
    a(f"{pfx}_chk:")
    a(f"buffer_load_dword {v(vDCo)}, {v(vDR)}, {s(S_WS,4)}, 0 offen sc1")
    a(f"s_branch {pfx}_chkr")
    for tag in "vn":
        a(f"{pfx}_pz{tag}:")
        publish(a, sF)
        a(f"s_mov_b32 {s(sPUB)}, 4")
        a(f"s_lshl4_add_u32 {s(sF)}, {s(sRB)}, {s(sCG)}")
        a(f"s_lshl_b32 {s(sF)}, {s(sF)}, 6")
        a(f"s_add_u32 {s(sF)}, {s(sF)}, {F2_OFF}")
        a(f"s_branch {pfx}_pzr{tag}")
    a(f"{pfx}_eq:")
    for j in range(2):
        for rt in range(2):
            b = ACC + 16 * rt + 8 * j; d = G + 8 * j + 4 * rt
            if Cfg.pk & 2:
                for r in range(0, 8, 2): a(pk("mul", b + r, [b + r, -vA[rt] - 1]))
            else:
                for r in range(8): a(f"v_mul_f32 {v(b+r)}, {v(b+r)}, {v(vA[rt])}")
            for r in range(4): a(f"v_cvt_pk_bf16_f32 {v(d+r)}, {v(b+2*r)}, {v(b+2*r+1)}")
            if rt == 1:
                for r2 in range(2):
                    d2 = G + 8 * j + 4 * r2
                    a(f"v_permlane16_swap_b32 {v(d2)}, {v(d2+2)}")
                    a(f"v_permlane16_swap_b32 {v(d2+1)}, {v(d2+3)}")
                a(f"s_mov_b64 exec, {s((sMA, sMB)[j],2)}")
                a(f"v_swap_b32 {v(G+8*j+2)}, {v(G+8*j+4)}")
                a(f"v_swap_b32 {v(G+8*j+3)}, {v(G+8*j+5)}")
                a("s_mov_b64 exec, -1")
                for r2 in range(2):
                    d2 = G + 8 * j + 4 * r2
                    a(f"buffer_store_dwordx4 {v(d2,4)}, {v(vST)}, {s(S_WS,4)}, {s(sT3 if j else sSO)} offen offset:{r2*256}{SC1}")
    ep_stamp("q")
    a(f"s_cmp_eq_u32 {s(sN)}, 1")
    a(f"s_cbranch_scc1 {pfx}_qdone")
    a(f"s_mov_b32 {s(sN)}, 1")
    if Cfg.lnn: a(f"s_waitcnt vmcnt({3 + 4 + 4 - Cfg.carry})")
    nonce_check(a, f"{pfx}_ncq", V_NONCE, sT0, sT1, f"{pfx}_hi")
    a(f"{pfx}_qdone:")
    if Cfg.hint == 2:
        a(f"s_cmp_lg_u32 {s(S_WV)}, 3")
        a(f"s_cbranch_scc1 {pfx}_nh")
        a(f"s_lshl_b32 {s(sT0)}, s2, 7")
        a(f"s_add_u32 {s(sT0)}, {s(sT0)}, {FP_OFF}")
        publish(a, sT0)
        a(f"{pfx}_nh:")
    a(f"s_mov_b32 {s(sN)}, 2")
    a(f"{pfx}_toffn:")
    ffn_consts()
    a(f"{pfx}_loop:")
    body("n", False)
    a(f"s_cmp_lt_u32 {s(sN)}, {s(sNQ)}")
    a(f"s_cbranch_scc1 {pfx}_eq")
    a(f"s_bitcmp1_b32 {s(sN)}, 0")
    a(f"s_cbranch_scc1 {pfx}_eu")
    if Cfg.x_gexit: a("s_branch g2_end")
    for r0 in range(0, 32 if Cfg.pk & 1 else 0, 8):
        R2 = range(r0, r0 + 8, 2); R = range(r0, r0 + 8); rt = r0 // 16
        for r in R2: a(pk("mul", G + r, [ACC + r, ACC + r]))
        for r in R2: a(pk("fma", G + r, [G + r, -vB[rt] - 1, -vA[rt] - 1]))
        for r in R2: a(pk("mul", G + r, [G + r, ACC + r]))
        for r in R: a(f"v_exp_f32 {v(G+r)}, {v(G+r)}")
        for r in R2: a(pk("fma", G + r, [G + r, -vK[rt] - 1, -vK[rt] - 1]))
        for r in R: a(f"v_rcp_f32 {v(G+r)}, {v(G+r)}")
        for r in R2: a(pk("mul", G + r, [G + r, ACC + r]))
    for r0 in range(0, 32 if not Cfg.pk & 1 else 0, 4):
        R = range(r0, r0 + 4); rt = r0 // 16
        for r in R: a(f"v_mul_f32 {v(G+r)}, {v(ACC+r)}, {v(ACC+r)}")
        for r in R: a(f"v_fma_f32 {v(G+r)}, {v(G+r)}, {v(vB[rt])}, {v(vA[rt])}")
        for r in R: a(f"v_mul_f32 {v(G+r)}, {v(G+r)}, {v(ACC+r)}")
        for r in R: a(f"v_exp_f32 {v(G+r)}, {v(G+r)}")
        for r in R: a(f"v_fma_f32 {v(G+r)}, {v(G+r)}, {v(vK[rt])}, {v(vK[rt])}")
        for r in R: a(f"v_rcp_f32 {v(G+r)}, {v(G+r)}")
        for r in R: a(f"v_mul_f32 {v(G+r)}, {v(G+r)}, {v(ACC+r)}")
    if Cfg.tc & 1:
        a(f"s_cmp_lg_u32 {s(S_WV)}, 1")
        a(f"s_cbranch_scc1 {pfx}_ntc1")
        a.ext(touch("att_loopb", "att_fb", sT0, vDCo, vDCo))
        a(f"{pfx}_ntc1:")
        a(f"s_cmp_lg_u32 {s(S_WV)}, 2")
        a(f"s_cbranch_scc1 {pfx}_ntc2")
        a.ext(touch(f"{pfx}_heavy", "g2_tc1", sT0, vDCo, vDCo))
        a(f"{pfx}_ntc2:")
    ep_stamp("g")
    if Cfg.hint == 1:
        a(f"s_cmp_lg_u32 {s(sN)}, 0")
        a(f"s_cbranch_scc1 {pfx}_ncg_ok")
        a(f"s_waitcnt vmcnt({3 + 4 - Cfg.carry})")
        nonce_check(a, f"{pfx}_ncg", V_NONCE, sT0, sT1)
    a(f"s_add_u32 {s(sN)}, {s(sN)}, 1")
    if Cfg.wpre:
        a(f"s_cmp_lg_u32 {s(sN)}, {s(sCHK)}")
        a(f"s_cbranch_scc1 {pfx}_loop")
        a(f"s_waitcnt vmcnt({4 - Cfg.carry})")
        if Cfg.arl:
            a("s_mov_b32 exec_lo, 0"); a("s_mov_b32 exec_hi, 0xffff")
        a(f"v_cmp_ne_u32 vcc, {v(vDCo)}, {v(V_NONCE)}")
        a(f"s_mov_b32 {s(sT0)}, 0")
        a("s_nop 0")
        a(f"s_cbranch_vccz {pfx}_pw_ok")
        poll(a, f"{pfx}_pw", vDR, sT0, vDCo, sT1, Cfg.p4s)
        a("s_mov_b64 exec, -1")
    a(f"s_branch {pfx}_loop")
    a(f"{pfx}_eu:")
    a(f"s_cmp_eq_u32 {s(sN)}, 5")
    a(f"s_cbranch_scc1 {pfx}_heavy")
    upv = []; ups = []
    for p in range(4):
        pv = [f"v_mul_f32 {v(ACC+r)}, {v(ACC+r)}, {v(G+r)}" for r in range(8 * p, 8 * p + 8)]
        if Cfg.pk & 1: pv = [pk("mul", ACC + r, [ACC + r, G + r]) for r in range(8 * p, 8 * p + 8, 2)]
        pv += [f"v_cvt_pk_bf16_f32 {v(G+8*p+j)}, {v(ACC+8*p+2*j)}, {v(ACC+8*p+2*j+1)}" for j in range(4)]
        ps = f"buffer_store_dwordx4 {v(G+8*p,4)}, {v(vST)}, {s(S_WS,4)}, {s(sT3 if p >> 1 else sSO)} offen offset:{(p&1)*1024}{SC1}"
        a.ext(pv); a(ps); upv += pv; ups.append(ps)
    ep_stamp("u")
    a(f"s_add_u32 {s(sN)}, {s(sN)}, 1")
    if Cfg.med:
        a(f"s_sub_u32 {s(sT0)}, {s(sCG)}, 8")
        a(f"s_cmp_lt_u32 {s(sT0)}, 4")
        a(f"s_cbranch_scc1 {pfx}_medium")
    a(f"s_cmp_lt_u32 {s(sN)}, {s(sNT)}")
    a(f"s_cbranch_scc1 {pfx}_loop")
    nonce_check(a, f"{pfx}_nc2", V_NONCE, sT0, sT1)
    a(f"s_lshl_b32 {s(sF)}, {s(sRB)}, 4")
    a(f"s_add_u32 {s(sF)}, {s(sF)}, {s(sCG)}")
    a(f"s_lshl_b32 {s(sF)}, {s(sF)}, 6")
    a(f"s_add_u32 {s(sF)}, {s(sF)}, {F2_OFF}")
    a(f"s_sub_u32 {s(sT0)}, {s(sCG)}, {NL}")
    a(f"s_lshl_b32 {s(sPUB)}, {s(sT0)}, 6")
    a(f"s_add_u32 {s(sPUB)}, {s(sPUB)}, {s(sTT)}")
    if Cfg.arl: a(f"s_add_u32 {s(sPUB)}, {s(sPUB)}, 80")
    a(f"s_lshl_b32 {s(sT0)}, {s(sT0)}, 3")
    a(f"s_lshr_b32 {s(sT1)}, {s(sRB)}, 1")
    a(f"s_add_u32 {s(sT0)}, {s(sT0)}, {s(sT1)}")
    a(f"s_and_b32 {s(sT1)}, {s(sRB)}, 1")
    a(f"s_lshl_b32 {s(sT1)}, {s(sT1)}, 6")
    a(f"s_add_u32 {s(sT0)}, {s(sT0)}, {s(sT1)}")
    a(f"s_lshl_b32 {s(sT0)}, {s(sT0)}, 6")
    a(f"s_add_u32 {s(sT3)}, {s(sT0)}, {F4_OFF}")
    a("s_waitcnt vmcnt(4) lgkmcnt(0)")
    a("s_barrier")
    gen_relayout(a, pfx, sPUB, vL, (58, 59, 60, 61, 96, 97, 98, 101, 47, 48, 49), sF, sT3)
    g2_start(a, "g2l", [], [])
    a(f"s_branch {pfx}_g1end")
    if Cfg.med:
        def trh(k, ct):
            d = WF + 8 * (k & 1) + 4 * ct
            return [l.replace(v(WF + 4 * ct + 2 * t, 2), v(d + 2 * t, 2)) for t, l in enumerate(trd(k, ct))]
        a(f"{pfx}_medium:")
        a(f"s_and_b32 {s(sT0)}, {s(sCG)}, 1")
        a(f"s_lshl_b32 {s(sT1)}, {s(sT0)}, 9")
        for r in (vTA, vTB, vTA2, vTB2): a(f"v_add_u32 {v(r)}, {s(sT1)}, {v(r)}")
        for k in range(2):
            for ct in range(2): a.ext(trh(k, ct))
        a(f"s_add_u32 {s(sT1)}, {s(sCG)}, {s(sP0)}")
        a(f"s_lshl1_add_u32 {s(sT0)}, {s(sT1)}, {s(sT0)}")
        a(f"s_lshl_b32 {s(sT0)}, {s(sT0)}, 10")
        a(f"s_mul_i32 {s(sSO)}, {s(sTT)}, {2*55296}")
        a(f"s_add_u32 {s(sSO)}, {s(sSO)}, {s(sT0)}")
        a(f"s_add_u32 {s(sSO)}, {s(sSO)}, {H_OFF}")
        a(f"s_add_u32 {s(sT3)}, {s(sSO)}, 55296")
        a(f"s_sub_u32 {s(sPUB)}, {s(sCHK)}, 1")
        a(f"{pfx}_hloop:")
        a("s_waitcnt lgkmcnt(6)")
        setprio(a, Cfg.prioGm)
        flat = lambda its: [x for it in its for x in it]
        di = wdma_items(3)[4 - Cfg.carry:]
        q = di[:Cfg.carry] + [flat(di[Cfg.carry:]) + flat(pack(params_a()))]
        for k in range(20):
            for ct in range(2):
                w = WF + 8 * (k & 1) + 4 * ct
                a(mf16(ACC + 4 * ct, w, X + 4 * k, "0" if k == 0 else None))
                if ct == 0 and k % 4 == 2:
                    assert not q, (k, q)
                    a(f"s_add_u32 m0, {s(sM)}, {((k // 4 - 1) % 5) * 16384}")
                    a("s_waitcnt vmcnt(8)")
                    a("s_barrier")
                    q = wdma_items((k // 4 - 1) % 5)
                    if k == 2: q = q[:4] + [flat(pack(params_b()))]
                    if k == 10: q = [[f"s_cmp_eq_u32 {s(sN)}, {s(sPUB)}", f"s_cbranch_scc1 {pfx}_hpub", f"{pfx}_hpubr:"]] + q
                    if k == 14: q = [[f"s_cmp_eq_u32 {s(sN)}, {s(sCHK)}", f"s_cbranch_scc1 {pfx}_hchk", f"{pfx}_hchkr:"]] + q
                    if k == 18: q = q[:4 - Cfg.carry]
                elif q: a.ext(q.pop(0))
                a(mf16(ACC + 16 + 4 * ct, w, X + 80 + 4 * k, "0" if k == 0 else None))
                a("s_waitcnt lgkmcnt(4)")
                a.ext(trh(k + 2, ct))
        assert not q
        setprio(a, Cfg.prioGv)
        a(f"s_cmp_eq_u32 {s(sN)}, 5")
        a(f"s_cbranch_scc1 {pfx}_hend")
        a("s_nop 1")
        for r0 in (0, 16):
            R2 = range(r0, r0 + 8, 2); R = range(r0, r0 + 8); rt = r0 // 16
            for r in R2: a(pk("mul", G + r, [ACC + r, ACC + r]))
            for r in R2: a(pk("fma", G + r, [G + r, -vB[rt] - 1, -vA[rt] - 1]))
            for r in R2: a(pk("mul", G + r, [G + r, ACC + r]))
            for r in R: a(f"v_exp_f32 {v(G+r)}, {v(G+r)}")
            for r in R2: a(pk("fma", G + r, [G + r, -vK[rt] - 1, -vK[rt] - 1]))
            for r in R: a(f"v_rcp_f32 {v(G+r)}, {v(G+r)}")
            for r in R2: a(pk("mul", G + r, [G + r, ACC + r]))
        a(f"s_mov_b32 {s(sN)}, 5")
        a(f"s_branch {pfx}_hloop")
        a(f"{pfx}_hpub:")
        publish(a, sF)
        a(f"s_branch {pfx}_hpubr")
        a(f"{pfx}_hchk:")
        a(f"buffer_load_dword {v(vDCo)}, {v(vDR)}, {s(S_WS,4)}, 0 offen sc1")
        a(f"s_branch {pfx}_hchkr")
        a(f"{pfx}_hend:")
        a(f"s_add_u32 {s(sF)}, {s(sF)}, {F2B_OFF - F2_OFF}")
        n_ = len(upv) // 4
        g2_start(a, "g2m", upv[:n_] + upv[2*n_:3*n_], [ups[0], ups[2]])
        a(f"s_branch {pfx}_g1end")
    a(f"{pfx}_heavy:")
    a(f"s_add_u32 {s(sF)}, {s(sF)}, {F2B_OFF - F2_OFF}")
    g2_start(a, "g2h", upv, ups, bool(Cfg.wpre))
    a(f"{pfx}_g1end:")

def att_relayout(a, pfx, idreg, vL, vLin, T, sT0, sT1, sT2, sT3):
    if Cfg.arl:
        a(f"s_and_b32 {s(sT0)}, {s(idreg)}, 255")
        a(f"s_lshl_b32 {s(sT1)}, {s(S_WV)}, 8")
        a(f"s_add_u32 {s(sT0)}, {s(sT0)}, {s(sT1)}")
        a(f"s_sub_u32 {s(sT0)}, {s(sT0)}, 176")
        a(f"s_cmp_ge_u32 {s(sT0)}, 80")
        a(f"s_cbranch_scc1 {pfx}_norl")
        srd(a, S_A, P_WD, 1728 * 1280)
        a(f"s_and_b32 {s(sT1)}, {s(sT0)}, 7")
        a(f"s_lshr_b32 {s(sT0)}, {s(sT0)}, 3")
        a(f"s_mul_i32 {s(sT2)}, {s(sT0)}, {32*1280}")
        a(f"s_mul_i32 {s(sT3)}, {s(sT1)}, 160")
        a(f"s_add_u32 {s(sT2)}, {s(sT2)}, {s(sT3)}")
        a(f"s_movk_i32 {s(sT3)}, 1120")
        for i in range(5):
            a(f"v_add_u32 v12, {64*i}, {v(vL)}")
            a(f"v_mul_u32_u24 v13, 6554, v12")
            a(f"v_lshrrev_b32 v13, 16, v13")
            a(f"v_lshlrev_b32 v12, 4, v12")
            a(f"s_movk_i32 m0, {i*1024}")
            a(f"v_mad_u32_u24 v12, v13, {s(sT3)}, v12")
            a(f"buffer_load_dwordx4 v12, {s(S_A,4)}, {s(sT2)} offen lds")
        a(f"v_lshrrev_b32 v12, 2, {v(vL)}")
        a(f"v_mul_u32_u24 v12, 160, v12")
        a(f"v_and_b32 v13, 3, {v(vL)}")
        a(f"v_mad_u32_u24 v12, v13, 40, v12")
        a(f"v_add_u32 v13, 4096, {v(vLin)}")
        a(f"s_mul_i32 {s(sT2)}, {s(sT1)}, 74")
        a(f"s_add_u32 {s(sT2)}, {s(sT2)}, {s(sT0)}")
        a(f"s_mul_i32 {s(sT2)}, {s(sT2)}, 5120")
        a(f"s_add_u32 {s(sT2)}, {s(sT2)}, {WR_OFF}")
        a(f"s_lshl4_add_u32 {s(sT0)}, {s(sT1)}, {s(sT0)}")
        a(f"s_lshl_b32 {s(sT0)}, {s(sT0)}, 6")
        a(f"s_add_u32 {s(sT0)}, {s(sT0)}, {F5_OFF}")
        a("s_waitcnt vmcnt(0)")
        for mt in range(5):
            for u in range(2): a(f"ds_read_b64_tr_b16 {v(T+4*mt+2*u,2)}, v12 offset:{u*2560+8*mt}")
        a("s_waitcnt lgkmcnt(0)")
        for mt in range(5):
            a(f"buffer_store_dwordx4 {v(T+4*mt,4)}, {v(vLin) if mt < 4 else 'v13'}, {s(S_WS,4)}, {s(sT2)} offen offset:{(mt&3)*1024} sc1")
        a("s_waitcnt vmcnt(0)")
        publish(a, sT0)
        a(f"{pfx}_norl:")

def gen_att1(a, pfx, idreg):
    vL, vK1, vK2, vV0, vV1, vQ1, vQ2 = 1, 2, 3, 4, 5, 20, 21
    P, S, O, Q, KV = 24, 32, 64, 128, 152
    sHD, sQB, sKH, sQH, sK1, sK2, sV, sG, sIT = 41, 42, 43, 44, 45, 46, 47, 48, 49
    sK1b, sK2b, sVb = 50, 51, 52
    sT0, sT1, sT2, sT3 = 54, 55, 56, 57
    sVM = 58
    sQ = 96
    sLB, sDK, sDV, sG4 = 53, 60, 61, 100
    vLin, vLK1, vLK2, vLV, vMB, vMI, vM = 208, 209, 210, 211, 212, 213, 214
    vXW, vXR, vOM, vOL = 215, 216, 217, 218
    vQS, vQA, vQB = 219, 240, 242
    sPQ, sPK, sPV, sPM = 33, 34, 35, 36
    sOM, sOL, sF3, sVH, sHW = 28, 30, 31, 101, 32
    a(f"v_and_b32 {v(vL)}, 63, v0")
    a(f"v_lshrrev_b32 v6, 6, v0")
    a(f"s_and_b32 {s(sT0)}, {s(idreg)}, 7")
    a(f"v_readfirstlane_b32 {s(S_WV)}, v6")
    EARLY = list(range(16)) if Cfg.early else []
    a(f"s_bfe_u32 {s(sT1)}, {s(idreg)}, {6 | (2<<16)}")
    a(f"s_and_b32 {s(sHD)}, {s(sT1)}, 1")
    a(f"s_lshl1_add_u32 {s(sHD)}, {s(sT0)}, {s(sHD)}")
    a(f"s_lshr_b32 {s(sT2)}, {s(sT1)}, 1")
    a(f"s_lshl4_add_u32 {s(sHD)}, {s(sT2)}, {s(sHD)}")
    if Cfg.cpf == 1:
        a(f"s_getpc_b64 {s(sT0,2)}")
        a(f"{pfx}_pc:")
        a(f"s_sub_u32 {s(sT0)}, {s(sT0)}, {pfx}_pc-{NAME}_kernel")
        a(f"s_subb_u32 {s(sT1)}, {s(sT1)}, 0")
        a(f"s_bfe_u32 {s(sT2)}, {s(idreg)}, {3 | (5<<16)}")
        a(f"s_lshl_b32 {s(sT2)}, {s(sT2)}, 2")
        a(f"s_add_u32 {s(sT2)}, {s(sT2)}, {s(S_WV)}")
        a(f"s_lshl_b32 {s(sT2)}, {s(sT2)}, 8")
        a(f"s_cmp_ge_u32 {s(sT2)}, {NAME}_kernel_end-{NAME}_kernel-256")
        a(f"s_cbranch_scc1 {pfx}_nopf")
        a(f"v_lshl_add_u32 v12, {v(vL)}, 2, {s(sT2)}")
        a(f"global_load_dword v13, v12, {s(sT0,2)}")
        a(f"{pfx}_nopf:")

    a(f"s_bfe_u32 {s(sQB)}, {s(idreg)}, {3 | (3<<16)}")
    a(f"s_and_b32 {s(sQH)}, {s(S_WV)}, 1")
    a(f"s_lshr_b32 {s(sKH)}, {s(S_WV)}, 1")
    a(f"s_lshr_b32 {s(sT0)}, {s(sHD)}, 1")
    a(f"s_mul_i32 {s(sT0)}, {s(sT0)}, 5")
    a(f"s_and_b32 {s(sT1)}, {s(sHD)}, 1")
    a(f"s_mul_i32 {s(sT2)}, {s(sT1)}, 3")
    a(f"s_add_u32 {s(sT2)}, {s(sT2)}, {s(sT0)}")
    a(f"s_lshl_b32 {s(sK1b)}, {s(sT2)}, 15")
    a(f"s_add_u32 {s(sT0)}, {s(sT0)}, 2")
    a(f"s_lshl_b32 {s(sK2b)}, {s(sT0)}, 15")
    a(f"s_lshl_b32 {s(sT1)}, {s(sT1)}, 8")
    a(f"s_add_u32 {s(sK2b)}, {s(sK2b)}, {s(sT1)}")
    a(f"v_and_b32 v6, 31, {v(vL)}")
    a(f"v_lshrrev_b32 v7, 5, {v(vL)}")
    a(f"v_lshlrev_b32 {v(vQ2)}, 4, v6")
    a(f"v_lshl_add_u32 {v(vQ1)}, v7, 15, {v(vQ2)}")
    a(f"v_and_b32 {v(vK2)}, 7, v6")
    a(f"v_bfe_u32 v8, v6, 3, 1")
    a(f"v_lshl_add_u32 {v(vK2)}, v8, 4, {v(vK2)}")
    a(f"v_lshrrev_b32 v8, 4, v6")
    a(f"v_lshl_add_u32 {v(vK2)}, v8, 3, {v(vK2)}")
    a(f"v_lshlrev_b32 {v(vK2)}, 4, {v(vK2)}")
    a(f"v_lshl_add_u32 {v(vK1)}, v7, 15, {v(vK2)}")
    a(f"v_mul_u32_u24 {v(vV0)}, 320, v7")
    a(f"v_add_u32 {v(vV0)}, {v(vV0)}, {v(vQ2)}")
    for r in (vQ2, vK2):
        a(f"v_lshrrev_b32 v8, 8, {v(r)}")
        a(f"v_and_b32 {v(r)}, 0xff, {v(r)}")
        a(f"v_lshl_add_u32 {v(r)}, v8, 3, {v(r)}")
    a(f"v_add_u32 {v(vV1)}, 640, {v(vV0)}")
    a(f"s_mov_b32 {s(sVM)}, 0xfffff")
    a(f"s_mov_b32 {s(sVM+1)}, 0xfffff")
    a(f"v_cmp_eq_u32 vcc, 20, v6")
    a(f"v_mov_b32 v8, 0x3f803f80")
    a("s_nop 0")
    a(f"v_cndmask_b32 v10, 0, v8, vcc")
    for u in range(4):
        for r in range(4, 12): a(f"v_mov_b32 {v(KV+14*u+r)}, v10")
    for q in range(4):
        a(f"v_mov_b32 {v(Q+6*q+4)}, 0"); a(f"v_mov_b32 {v(Q+6*q+5)}, 0")
    for r in range(64): a(f"v_mov_b32 {v(O+r)}, 0")
    for r in range(8): a(f"v_mov_b32 {v(P+r)}, 0")
    a("s_waitcnt lgkmcnt(0)")
    srd(a, S_WS, P_WS, WS_BYTES)
    if Cfg.tlb:
        a(f"s_cmp_lg_u32 {s(S_WV)}, 0")
        a(f"s_cbranch_scc1 {pfx}_notlb")
        a(f"v_lshlrev_b32 v12, 21, {v(vL)}")
        a("s_mov_b64 exec, 3")
        for i, (p, nb) in enumerate(((P_WQKV, 640*3840), (P_WG, 640*3456), (P_WU, 640*3456), (P_WD, 1728*1280), (P_OUT, 2048*1280))):
            a(f"global_load_dword {v(240+i)}, v12, {s(p,2)}")
        a("s_mov_b64 exec, 1")
        a(f"global_load_dword v246, v12, {s(P_WO,2)}")
        a(f"s_mov_b64 exec, {(1 << ((WS_BYTES >> 21) + 1)) - 1}")
        a(f"global_load_dword v247, v12, {s(P_WS,2)}")
        a("s_mov_b64 exec, -1")
        a(f"{pfx}_notlb:")
    if Cfg.fused:
        a(f"v_mov_b32 {v(V_NONCE)}, 0")
        a("s_nop 0")
        nonce_check(a, f"{pfx}_nc", 12, sT0, sT1)
        a(f"v_lshlrev_b32 {v(vLin)}, 4, {v(vL)}")
        att_relayout(a, pfx, idreg, vL, vLin, 220, sT0, sT1, sT2, sT3)
        if Cfg.wpf:
            a(f"s_and_b32 {s(sT0)}, {s(idreg)}, 255")
            a(f"s_lshl_b32 {s(sT0)}, {s(sT0)}, 2")
            a(f"s_add_u32 {s(sT0)}, {s(sT0)}, {s(S_WV)}")
            srd(a, S_B, P_WD, 1728 * 1280)
            srd(a, S_C, P_WO, 640 * 1280)
            a(f"s_mul_i32 {s(sT1)}, {s(sT0)}, {17*128}")
            a(f"s_mul_i32 {s(sT2)}, {s(sT0)}, {7*128}")
            a(f"v_lshlrev_b32 v12, 7, {v(vL)}")
            a("s_mov_b64 exec, 0x1ffff")
            a(f"buffer_load_dword v13, v12, {s(S_B,4)}, {s(sT1)} offen")
            a("s_mov_b64 exec, 0x7f")
            a(f"buffer_load_dword v14, v12, {s(S_C,4)}, {s(sT2)} offen")
            a("s_mov_b64 exec, -1")
            a("s_waitcnt vmcnt(0)")
        pass
    a(f"s_lshl_b32 {s(sT0)}, {s(sQB)}, 12")
    a(f"s_lshl_b32 {s(sT1)}, {s(sQH)}, 11")
    a(f"s_add_u32 {s(sT0)}, {s(sT0)}, {s(sT1)}")
    a(f"s_lshl_b32 {s(sT1)}, {s(sKH)}, 10")
    a(f"s_add_u32 {s(sT3)}, {s(sT0)}, {s(sT1)}")
    a(f"s_xor_b32 {s(sT2)}, {s(sT3)}, 1024")
    a(f"s_add_u32 {s(sQ)}, {s(sT2)}, {s(sK1b)}")
    a(f"s_add_u32 {s(sQ+1)}, {s(sT3)}, {s(sK1b)}")
    a(f"s_add_u32 {s(sQ+2)}, {s(sT2)}, {s(sK2b)}")
    a(f"s_add_u32 {s(sQ+3)}, {s(sT3)}, {s(sK2b)}")
    a(f"s_lshl_b32 {s(sT0)}, {s(sKH)}, 14")
    a(f"s_add_u32 {s(sT0)}, {s(sT0)}, {80*32768}")
    a(f"s_add_u32 {s(sK1b)}, {s(sK1b)}, {s(sT0)}")
    a(f"s_add_u32 {s(sK2b)}, {s(sK2b)}, {s(sT0)}")
    a(f"s_mul_i32 {s(sVb)}, {s(sHD)}, 81920")
    a(f"s_mul_i32 {s(sT0)}, {s(sKH)}, 40960")
    a(f"s_add_u32 {s(sVb)}, {s(sVb)}, {s(sT0)}")
    a(f"s_add_u32 {s(sVb)}, {s(sVb)}, {V_OFF}")
    a(f"s_mov_b32 {s(sG)}, {s(sQB)}")
    def setgrp():
        return [f"s_lshl_b32 {s(sT0)}, {s(sG)}, 11", f"s_add_u32 {s(sK1)}, {s(sK1b)}, {s(sT0)}", f"s_add_u32 {s(sK2)}, {s(sK2b)}, {s(sT0)}",
                f"s_mul_i32 {s(sT0)}, {s(sG)}, 5120", f"s_add_u32 {s(sV)}, {s(sVb)}, {s(sT0)}"]
    a.ext(setgrp())
    a(f"s_mov_b32 {s(sIT)}, {8 if Cfg.nost else 4}")
    a(f"s_mul_i32 {s(sT0)}, {s(sKH)}, 10240")
    a(f"s_mul_i32 {s(sLB)}, {s(sQH)}, 5120")
    a(f"s_add_u32 {s(sLB)}, {s(sLB)}, {s(sT0)}")
    a(f"v_lshlrev_b32 {v(vLin)}, 4, {v(vL)}")
    a(f"v_add_u32 {v(vLK1)}, {s(sT0)}, {v(vLin)}")
    a(f"s_add_u32 {s(sT1)}, {s(sT0)}, 2048")
    a(f"v_add_u32 {v(vLV)}, {s(sT1)}, {v(vV0)}")
    a(f"s_add_u32 {s(sT1)}, {s(sT0)}, 4608")
    a(f"v_add_u32 {v(vLK2)}, {s(sT1)}, {v(vK2)}")
    a(f"s_lshl_b32 {s(sT0)}, {s(sQH)}, 10")
    a(f"s_add_u32 {s(sDK)}, {s(sK1b)}, {s(sT0)}")
    a(f"s_add_u32 {s(sT0)}, {s(sK2b)}, {s(sT0)}")
    a(f"s_mul_i32 {s(sT1)}, {s(sQH)}, 2560")
    a(f"s_add_u32 {s(sDV)}, {s(sVb)}, {s(sT1)}")
    a(f"s_add_u32 {s(sT1)}, {s(sDV)}, 2048")
    a(f"v_add_u32 {v(vMB)}, {s(sT1)}, {v(vLin)}")
    a(f"v_mov_b32 {v(vMI)}, 5120")
    a(f"v_bfe_u32 v8, {v(vL)}, 4, 1")
    a(f"v_and_b32 v9, 15, {v(vL)}")
    a(f"v_lshlrev_b32 v9, 4, v9")
    a(f"v_lshl_add_u32 v8, v8, 9, v9")
    a("s_mov_b32 exec_lo, 0")
    a(f"v_add_u32 {v(vMB)}, {s(sT0)}, v8")
    a(f"v_mov_b32 {v(vMI)}, 2048")
    a("s_mov_b32 exec_lo, -1")
    if Cfg.lpro:
        a(f"v_mov_b32 {v(vQS)}, v8")
        a(f"v_mad_u32_u24 {v(vM)}, {v(vMI)}, {s(sG)}, {v(vMB)}")
        a(f"s_mul_i32 {s(sPQ)}, {s(S_WV)}, 2560")
        a(f"s_add_u32 {s(sPQ)}, {s(sPQ)}, 61440")
        a(f"s_xor_b32 {s(sT0)}, {s(S_WV)}, 2")
        a(f"s_mul_i32 {s(sT0)}, {s(sT0)}, 2560")
        a(f"s_add_u32 {s(sT0)}, {s(sT0)}, 61440")
        for i, r in enumerate((sT0, sPQ)):
            a(f"v_add_u32 {v(vQA+i)}, {s(r)}, {v(vLin)}")
            a(f"v_add_u32 {v(vQB+i)}, {s(r)}, {v(vQ2)}")
        a(f"s_lshl_b32 {s(sPK)}, {s(sG)}, 11")
        a(f"s_add_u32 {s(sPK)}, {s(sPK)}, {s(sDK)}")
        a(f"s_mul_i32 {s(sPV)}, {s(sG)}, 5120")
        a(f"s_add_u32 {s(sPV)}, {s(sPV)}, {s(sDV)}")
        a(f"s_lshl_b32 {s(sT0)}, {s(sQH)}, 4")
        a(f"s_lshl_b32 {s(sPM)}, 0xffff, {s(sT0)}")
        a(f"s_mov_b32 {s(sPM+1)}, 0")
    a(f"s_cmp_eq_u32 {s(S_WV)}, 0")
    a(f"s_cselect_b32 {s(sHW)}, 1, -1")
    a(f"s_mul_i32 {s(sT0)}, {s(S_WV)}, 6144")
    a(f"s_xor_b32 {s(sT1)}, {s(S_WV)}, 2")
    a(f"s_mul_i32 {s(sT1)}, {s(sT1)}, 6144")
    a(f"v_add_u32 {v(vXW)}, {s(sT0)}, {v(vLin)}")
    a(f"v_add_u32 {v(vXR)}, {s(sT1)}, {v(vLin)}")
    a(f"v_bfe_u32 v8, {v(vL)}, 4, 1")
    a(f"v_lshl_add_u32 {v(vOM)}, v8, 14, v9")
    a(f"v_lshl_add_u32 {v(vOM)}, v7, 8, {v(vOM)}")
    a(f"s_lshl_b32 {s(sT0)}, {s(sQB)}, 2")
    a(f"s_lshl_b32 {s(sT1)}, {s(sQH)}, 1")
    a(f"s_add_u32 {s(sT0)}, {s(sT0)}, {s(sT1)}")
    a(f"s_add_u32 {s(sT0)}, {s(sT0)}, {s(sKH)}")
    a(f"s_lshl_b32 {s(sF3)}, {s(sT0)}, 5")
    a(f"s_add_u32 {s(sF3)}, {s(sF3)}, {s(sHD)}")
    a(f"s_lshl_b32 {s(sF3)}, {s(sF3)}, 6")
    a(f"s_add_u32 {s(sF3)}, {s(sF3)}, {F3_OFF}")
    a(f"s_lshl_b32 {s(sT1)}, {s(sHD)}, 9")
    a(f"s_lshl_b32 {s(sT2)}, {s(sT0)}, 16")
    a(f"s_add_u32 {s(sOM)}, {s(sT1)}, {s(sT2)}")
    a(f"s_add_u32 {s(sOM)}, {s(sOM)}, {O_OFF}")
    a(f"s_add_u32 {s(sOM+1)}, {s(sOM)}, 32768")
    a(f"s_lshl_b32 {s(sT2)}, {s(sT0)}, 14")
    a(f"s_add_u32 {s(sOL)}, {s(sT1)}, {s(sT2)}")
    a(f"s_add_u32 {s(sOL)}, {s(sOL)}, {OL_OFF}")
    if Cfg.fused:
        a(f"s_and_b32 {s(sT0)}, {s(sHD)}, 15")
        a(f"s_mul_i32 {s(sT0)}, {s(sT0)}, 20")
        a(f"s_add_u32 {s(sT1)}, {s(sT0)}, 19")
        a(f"s_lshr_b32 {s(sT0)}, {s(sT0)}, 6")
        a(f"s_lshr_b32 {s(sT1)}, {s(sT1)}, 6")
        a(f"s_sub_u32 {s(sT1)}, {s(sT1)}, {s(sT0)}")
        a(f"v_bfe_u32 v12, {v(vL)}, 3, 1")
        a(f"v_mul_u32_u24 v12, {s(sT1)}, v12")
        a(f"v_add_u32 v12, {s(sT0)}, v12")
        a(f"v_bfe_u32 v13, {v(vL)}, 4, 1")
        a(f"v_mad_u32_u24 v13, v13, 5, 5")
        a(f"s_lshl_b32 {s(sT2)}, {s(sKH)}, 3")
        a(f"v_and_b32 v14, 7, {v(vL)}")
        a(f"v_add_u32 v14, {s(sT2)}, v14")
        a(f"s_add_u32 {s(sT2)}, {s(sT2)}, {s(sG)}")
        a(f"v_mov_b32 v15, {s(sT2)}")
        a(f"s_lshl_b32 {s(sT2)}, {s(sQB)}, 1")
        a(f"s_add_u32 {s(sT2)}, {s(sT2)}, {s(sQH)}")
        a("s_mov_b32 exec_lo, 0")
        a(f"v_mov_b32 v13, 0")
        a(f"v_mov_b32 v14, {s(sT2)}")
        a(f"v_mov_b32 v15, {s(sT2)}")
        a("s_mov_b32 exec_lo, -1")
        a(f"v_add_u32 v12, v12, v13")
        a(f"v_lshl_add_u32 v15, v12, 4, v15")
        a(f"v_lshl_add_u32 v12, v12, 4, v14")
        assert Cfg.fst == 64 or not Cfg.early
        a(f"v_mul_u32_u24 v12, {Cfg.fst}, v12")
        a(f"v_mul_u32_u24 v15, {Cfg.fst}, v15")
        a(f"s_mov_b32 {s(sT3)}, {FX_OFF}")
        if Cfg.early == 2:
            a(f"s_and_b32 {s(sT0)}, {s(idreg)}, 0x81")
            a(f"s_cmp_eq_u32 {s(sT0)}, 1")
        else: a(f"s_cmp_lt_u32 {s(sHD)}, {len(EARLY)}")
        a(f"s_cselect_b32 {s(sT3)}, {F0_OFF}, {s(sT3)}")
        stamp(a, "a_ready")
        setprio(a, 3)
        if Cfg.hint:
            a(f"s_and_b32 {s(sT1)}, {s(idreg)}, 255")
            if Cfg.hint == 2:
                a(f"s_and_b32 {s(sT0)}, {s(sT1)}, 0xe1")
                a(f"s_cmp_eq_u32 {s(sT0)}, 0xe1")
                a(f"s_cselect_b32 {s(sT0)}, 32, 0")
                a(f"s_sub_u32 {s(sT1)}, {s(sT1)}, {s(sT0)}")
            if Cfg.early:
                a(f"s_cmp_eq_u32 {s(sT3)}, {F0_OFF}")
                a(f"s_cbranch_scc1 {pfx}_ph_ok")
            a(f"s_lshl_b32 {s(sT1)}, {s(sT1)}, 7")
            a(f"s_add_u32 {s(sT1)}, {s(sT1)}, {FP_OFF}")
            a("s_mov_b64 exec, 1")
            poll(a, f"{pfx}_ph", None, sT1, 16, sT0, Cfg.phs)
            a("s_mov_b64 exec, -1")
        if Cfg.spoll:
            SA, SD = 4, 10
            for i in range(6): a(f"v_readlane_b32 {s(SA+i)}, v15, {8*i}")
            a(f"v_readfirstlane_b32 s16, {v(V_NONCE)}")
            for i in range(6): a(f"s_add_u32 {s(SA+i)}, {s(SA+i)}, {s(sT3)}")
            a(f"s_mov_b32 {s(sT0)}, 0x20000")
            a(f"{pfx}_sp:")
            for i in range(6): a(f"s_load_dword {s(SD+i)}, {s(P_WS,2)}, {s(SA+i)} glc")
            a("s_waitcnt lgkmcnt(0)")
            for i in range(6): a(f"s_xor_b32 {s(SD+i)}, {s(SD+i)}, s16")
            for i in range(1, 6): a(f"s_or_b32 {s(SD)}, {s(SD)}, {s(SD+i)}")
            a(f"s_cbranch_scc0 {pfx}_sp_ok")
            a(f"s_sub_u32 {s(sT0)}, {s(sT0)}, 1")
            a(f"s_cbranch_scc1 {pfx}_sp_ok")
            a(f"s_sleep {Cfg.p0s}")
            a(f"s_branch {pfx}_sp")
            a(f"{pfx}_sp_ok:")
        else:
            poll(a, f"{pfx}_p0", 15, sT3, 16, sT0, Cfg.p0s, 17 if Cfg.pp0 else None)
        setprio(a, Cfg.prioB)
        stamp(a, "a_go")
    def kvload(u):
        b = KV + 14 * u
        return [f"buffer_load_dwordx4 {v(b,4)}, {v(vK1)}, {s(S_WS,4)}, {s(sK1)} offen offset:{u*512}{SC1}",
                f"buffer_load_dwordx2 {v(b+12,2)}, {v(vK2)}, {s(S_WS,4)}, {s(sK2)} offen offset:{u*512}{SC1}",
                f"s_mov_b64 exec, {s(sVM,2)}",
                f"buffer_load_dwordx4 {v(b+4,4)}, {v(vV0)}, {s(S_WS,4)}, {s(sV)} offen offset:{u*1280}{SC1}",
                f"buffer_load_dwordx4 {v(b+8,4)}, {v(vV1)}, {s(S_WS,4)}, {s(sV)} offen offset:{u*1280}{SC1}",
                "s_mov_b64 exec, -1"]
    def kvread(u, nxt):
        b = KV + 14 * u; o = nxt * 20480 + (u >> 1) * 5120; sub = u & 1
        return [[f"ds_read_b128 {v(b,4)}, {v(vLK1)} offset:{o+sub*1024}",
                 f"ds_read_b64 {v(b+12,2)}, {v(vLK2)} offset:{o+sub*256}"],
                [f"s_mov_b64 exec, {s(sVM,2)}",
                 f"ds_read_b128 {v(b+4,4)}, {v(vLV)} offset:{o+sub*1280}",
                 f"ds_read_b128 {v(b+8,4)}, {v(vLV)} offset:{o+sub*1280+640}",
                 "s_mov_b64 exec, -1"]]
    if Cfg.lpro:
        dm = lambda va, so, off: f"buffer_load_dwordx4 {v(va)}, {s(S_WS,4)}, {so} offen offset:{off} sc1 lds"
        for m, base, ins in ((40960, sLB, [dm(vK1, s(sPK), 0)]), (0, sPQ, [dm(vQ1, s(sQ+1), 0)]),
                             (40960+512, sLB, [dm(vK1, s(sPK), 512)]), (512, sPQ, [dm(vQ1, s(sQ+1), 512)]),
                             (40960+4096, sLB, [dm(vM, "0", 0)]),
                             (2048, sPQ, ["s_mov_b32 exec_hi, 0", dm(vQS, s(sQ+3), 0), "s_mov_b32 exec_hi, -1"]),
                             (40960+2048, sLB, [dm(vLin, s(sPV), 0), dm(vLin, s(sPV), 1024)])):
            a(f"s_add_u32 m0, {s(base)}, {m}"); a("s_nop 0"); a.ext(ins)
        a(f"s_mov_b64 exec, {s(sPM,2)}")
        a(f"buffer_load_dword v13, v12, {s(S_WS,4)}, {s(sT3)} offen sc1")
        a("s_mov_b64 exec, -1")
        stamp(a, "issued")
        a("s_waitcnt vmcnt(1)")
        a("s_barrier")
        for q in range(4): a(f"ds_read_b128 {v(Q+6*q,4)}, {v(vQA+(q>>1))} offset:{(q&1)*1024}")
        a("s_mov_b32 exec_hi, 0")
        for q in range(4): a(f"ds_read_b64 {v(Q+6*q+4,2)}, {v(vQB+(q>>1))} offset:{2048+(q&1)*256}")
        a("s_mov_b32 exec_hi, -1")
        for u in range(3):
            if u == 1: a("s_waitcnt lgkmcnt(6)")
            for x in kvread(u, 2): a.ext(x)
        a(f"s_mov_b64 exec, {s(sPM,2)}")
        a("s_waitcnt vmcnt(0)")
        a(f"v_cmp_ne_u32 vcc, v13, {v(V_NONCE)}")
        a("s_nop 1")
        a(f"s_cbranch_vccz {pfx}_p1_ok")
        poll(a, f"{pfx}_p1", 12, sT3, 13, sT0, Cfg.p1s)
        a("s_mov_b64 exec, -1")
        a("s_waitcnt lgkmcnt(0)")
        a("s_barrier")
    else:
        for q in range(4):
            a(f"buffer_load_dwordx4 {v(Q+6*q,4)}, {v(vQ1)}, {s(S_WS,4)}, {s(sQ+(q>>1))} offen offset:{(q&1)*512}{SC1}")
        if Cfg.thq >= 0: a(f"s_waitcnt vmcnt({Cfg.thq})")
        a("s_mov_b32 exec_hi, 0")
        for q in range(4):
            a(f"buffer_load_dwordx2 {v(Q+6*q+4,2)}, {v(vQ2)}, {s(S_WS,4)}, {s(sQ+2+(q>>1))} offen offset:{(q&1)*512}{SC1}")
        a("s_mov_b32 exec_hi, -1")
        for u in range(3):
            if Cfg.tha >= 0: a(f"s_waitcnt vmcnt({Cfg.tha})")
            a.ext(kvload(u))
            if u == Cfg.fpos: a(f"buffer_load_dword v13, v12, {s(S_WS,4)}, {s(sT3)} offen sc1")
        stamp(a, "issued")
        a(f"s_waitcnt vmcnt({8 - 4 * Cfg.fpos})")
        a(f"v_cmp_ne_u32 vcc, v13, {v(V_NONCE)}")
        a("s_nop 1")
        a(f"s_cbranch_vccz {pfx}_p1_ok")
        poll(a, f"{pfx}_p1", 12, sT3, 13, sT0, Cfg.p1s)
    setprio(a, Cfg.prioA)
    stamp(a, "q_kv0")
    a(mf32(S, KV, Q, "0"))
    a(mf8(S, KV + 12, Q + 4))
    a("s_nop 11")
    def loop(tag, lds):
        a(".p2align 3")
        a(f"{pfx}_loop{tag}:")
        ndma = [0, 0, 0, 0]
        for u in range(4):
            b = KV + 14 * u; bn = KV + 14 * ((u + 1) & 3); bp = KV + 14 * ((u - 1) & 3)
            items = []
            if not lds:
                if u == 0: items = [f"s_xor_b32 {s(sG4)}, {s(sG)}, 4", f"s_add_u32 {s(sG)}, {s(sG)}, 1", f"s_and_b32 {s(sG)}, {s(sG)}, 7"] + setgrp()
                dm = lambda va, so, off: f"buffer_load_dwordx4 {v(va)}, {s(S_WS,4)}, {so} offen offset:{off} sc1 lds"
                if u == 1: items = [f"s_lshl_b32 {s(sT0)}, {s(sG4)}, 11", f"s_mov_b32 m0, {s(sLB)}", [f"s_add_u32 {s(sT0)}, {s(sT0)}, {s(sDK)}", dm(vK1, s(sT0), 0)],
                                    f"s_add_u32 m0, {s(sLB)}, 512", [f"s_mul_i32 {s(sT1)}, {s(sG4)}, 5120", dm(vK1, s(sT0), 512)],
                                    f"s_add_u32 m0, {s(sLB)}, 2048"]
                if u == 2: items = [[f"s_add_u32 {s(sT1)}, {s(sT1)}, {s(sDV)}", dm(vLin, s(sT1), 0)],
                                    [f"v_mad_u32_u24 {v(vM)}, {v(vMI)}, {s(sG4)}, {v(vMB)}"], [dm(vLin, s(sT1), 1024)],
                                    f"s_add_u32 m0, {s(sLB)}, 4096", [f"s_add_u32 {s(sLB)}, {s(sLB)}, 20480", dm(vM, "0", 0)]]
            if Cfg.nost and u in (1, 2): items = []
            if not lds and u == Cfg.hau and Cfg.gate:
                items += [f"s_cmp_eq_u32 {s(sIT)}, {s(sHW)}", [f"s_cbranch_scc1 {pfx}_ha", f"{pfx}_har:"]]
            if lds and u == Cfg.mbu:
                items = [f"s_cmp_eq_u32 {s(sIT)}, 1", [f"s_cbranch_scc1 {pfx}_mb", f"{pfx}_mbr:"]]
            if u == 3:
                items += [f"s_sub_u32 {s(sIT)}, {s(sIT)}, 1", f"s_cmp_lg_u32 {s(sIT)}, 0"]
                if lds: items += [f"v_add_u32 {v(r)}, 0x5000, {v(r)}" for r in (vLK1, vLK2, vLV)]
            ld = kvread((u + 3) & 3, u > 0) if lds else [kvload((u + 3) & 3)[:2], kvload((u + 3) & 3)[2:]]
            if Cfg.x_nokv: ld = [[], []]
            vmw = {0: 8, 1: 10, 2: 13, 3: 11}[u] if not Cfg.nost else 8
            for q in range(4):
                Sc = S + 16 * (q & 1); Sn = S + 16 * ((q + 1) & 1)
                qn, qp = (q + 1) & 3, (q - 1) & 3
                kn = b if q < 3 else bn
                kp = b if q > 0 else bp
                ex = [f"v_exp_f32 {v(Sc+i)}, {v(Sc+i)}" for i in range(16)]
                cv = [f"v_cvt_pk_bf16_f32 {v(P+i)}, {v(Sc+2*i)}, {v(Sc+2*i+1)}" for i in range(8)]
                def free():
                    if items:
                        it = items.pop(0)
                        a.ext(it if isinstance(it, list) else [it])
                a(mf32(Sn, kn, Q + 6 * qn, "0"))
                if q == 0: a.ext(ld[0])
                else: free()
                a.ext(ex[0:4])
                a(mf32(O + 16 * qp, kp + 8, P + 4))
                if q == 0: a.ext(ld[1])
                else: free()
                a.ext(ex[4:8] + cv[0:2])
                a(mf8(Sn, kn + 12, Q + 6 * qn + 4))
                a.ext(ex[8:9] + cv[2:4] + ex[9:12])
                a(mf32(O + 16 * q, b + 4, P))
                if q == 2:
                    assert not any("lds" in str(it) for it in items)
                    a(("s_waitcnt vmcnt(0) lgkmcnt(8)" if u == 0 else "s_waitcnt lgkmcnt(8)") if lds else f"s_waitcnt vmcnt({vmw})")
                else: free()
                a.ext(ex[12:16] + cv[4:8])
            assert not items
        a(f"s_cbranch_scc1 {pfx}_loop{tag}")
    loop("a", False)
    if Cfg.nost: a(f"s_branch {pfx}_epi")
    a(f"s_mov_b32 {s(sIT)}, 4")
    a("s_waitcnt vmcnt(4)")
    a("s_barrier")
    stamp(a, "half")
    a(f"s_branch {pfx}_loopb")
    if Cfg.gate:
        a(f"{pfx}_ha:")
        a(f"s_and_b32 {s(sHW)}, {s(idreg)}, 255")
        a(f"s_lshl_b32 {s(sHW)}, {s(sHW)}, 6")
        a(f"s_add_u32 {s(sHW)}, {s(sHW)}, {FH_OFF + 32}")
        publish(a, sHW)
        a(f"s_branch {pfx}_har")
    a(f"{pfx}_mb:")
    a("s_barrier")
    if 0 < Cfg.lag < 4:
        a(f"s_cmp_lg_u32 {s(S_WV)}, 0")
        a(f"s_cbranch_scc1 {pfx}_mbr")
        a(f"s_and_b32 {s(sT0)}, {s(idreg)}, 255")
        a(f"s_lshl_b32 {s(sT0)}, {s(sT0)}, 6")
        a(f"s_add_u32 {s(sT0)}, {s(sT0)}, {FH_OFF}")
        publish(a, sT0)
        if Cfg.tc & 4: a.ext(touch(f"{pfx}_epi", f"{pfx}_fb", sT0, vM, vM))
    a(f"s_branch {pfx}_mbr")
    loop("b", True)
    a(f"{pfx}_epi:")
    setprio(a, Cfg.prioE)
    for j in range(2): a(f"ds_write_b128 {v(vXW)}, {v(O+4*j,4)} offset:{j*1024}")
    a(mf32(O + 48, KV + 14 * 3 + 8, P + 4))
    stamp(a, "loopdone")
    a(f"ds_write_b128 {v(vXW)}, {v(O+8,4)} offset:2048")
    for j in range(3): a(f"ds_write_b128 {v(vXW)}, {v(O+16+4*j,4)} offset:{3072+j*1024}")
    a("s_waitcnt lgkmcnt(0)")
    a("s_barrier")
    R = S
    for t in range(2):
        for j in (2, 0, 1): a(f"ds_read_b128 {v(R+16*t+4*j,4)}, {v(vXR)} offset:{t*3072+j*1024}")
    a(f"{pfx}_fin:")
    for t in range(2):
        o = O + 32 + 16 * t; r = R + 16 * t; d = (14, P)[t]
        pa = lambda i: f"v_pk_add_f32 {v(o+i,2)}, {v(o+i,2)}, {v(r+i,2)}"
        a(f"s_waitcnt lgkmcnt({5-3*t})")
        a(f"v_add_f32 v12, {v(o+8)}, {v(r+8)}")
        a(f"v_add_f32 {v(22+t)}, {v(o+8)}, {v(r+8)}")
        a(pa(8)); a(pa(10))
        a(f"v_permlane32_swap_b32 v12, {v(22+t)}")
        a(f"s_waitcnt lgkmcnt({3-3*t})")
        a(f"v_rcp_f32 v12, {v(22+t)}")
        for i in range(0, 8, 2): a(pa(i))
        for i in range(0, 12, 2): a(f"v_pk_mul_f32 {v(o+i,2)}, {v(o+i,2)}, v[12:13] op_sel_hi:[1,0]")
        for j in range(6): a(f"v_cvt_pk_bf16_f32 {v(d+j if j < 4 else 18+2*t+j-4)}, {v(o+2*j)}, {v(o+2*j+1)}")
        a(f"buffer_store_dwordx4 {v(d,4)}, {v(vOM)}, {s(S_WS,4)}, {s(sOM+t)} offen{SC1}")
    a("s_mov_b32 exec_hi, 0")
    a(f"buffer_store_dwordx4 v[18:21], {v(vLin)}, {s(S_WS,4)}, {s(sOL)} offen{SC1}")
    stamp(a, "o_stored")
    a("s_mov_b32 exec_hi, -1")
    a(f"s_cmp_lg_u32 {s(sIT)}, 0")
    a(f"s_cbranch_scc1 {pfx}_ok")
    LO, HI = (127 - Cfg.lo) << 23, (127 + Cfg.hi) << 23
    a(f"v_subrev_u32 v22, {LO}, v22")
    a(f"v_subrev_u32 v23, {LO}, v23")
    a("v_max_u32 v22, v22, v23")
    a(f"v_cmp_lt_u32 vcc, {HI - LO}, v22")
    a(f"v_add_f32 v12, {v(O+32)}, {v(O+48)}")
    for i in range(1, 12):
        a(f"v_fma_f32 v12, {v(O+32+i)}, 0, v12")
        a(f"v_fma_f32 v12, {v(O+48+i)}, 0, v12")
    a(f"s_movk_i32 {s(sT0)}, 0x207")
    a(f"v_cmp_class_f32 {s(sT2,2)}, v12, {s(sT0)}")
    a("s_nop 0")
    a(f"s_or_b64 vcc, vcc, {s(sT2,2)}")
    a(f"s_cbranch_scc1 {pfx}_fb")
    a(f"{pfx}_ok:")
    a("s_waitcnt vmcnt(0)")
    publish(a, sF3)
    stamp(a, "o_pub")
    a(f"s_branch {pfx}_done")
    a(f"{pfx}_fb:")
    def rewind():
        a(f"s_lshl_b32 {s(sT0)}, {s(sKH)}, 14")
        a(f"s_sub_u32 {s(sK1)}, {s(sK1b)}, {s(sT0)}")
        a(f"s_sub_u32 {s(sK2)}, {s(sK2b)}, {s(sT0)}")
        a(f"s_mul_i32 {s(sT0)}, {s(sKH)}, 40960")
        a(f"s_sub_u32 {s(sV)}, {s(sVb)}, {s(sT0)}")
        a(f"s_mov_b32 {s(sIT)}, 0")
    def advance(lbl):
        a(f"s_add_u32 {s(sK1)}, {s(sK1)}, 512")
        a(f"s_add_u32 {s(sK2)}, {s(sK2)}, 512")
        a(f"s_add_u32 {s(sV)}, {s(sV)}, 1280")
        a(f"s_add_u32 {s(sIT)}, {s(sIT)}, 1")
        a(f"s_cmp_lt_u32 {s(sIT)}, 64")
        a(f"s_cbranch_scc1 {lbl}")
    rewind()
    a("v_mov_b32 v22, 0xff800000")
    a("v_mov_b32 v23, 0xff800000")
    a(f"{pfx}_fb1:")
    a.ext(kvload(0)[:2])
    a("s_waitcnt vmcnt(0)")
    for t in range(2): a(mf32(S + 16 * t, KV, Q + 12 + 6 * t, "0"))
    for t in range(2): a(mf8(S + 16 * t, KV + 12, Q + 16 + 6 * t))
    a("s_nop 11")
    for t in range(2):
        for i in range(0, 16, 2): a(f"v_max3_f32 {v(22+t)}, {v(S+16*t+i)}, {v(S+16*t+i+1)}, {v(22+t)}")
    advance(f"{pfx}_fb1")
    rewind()
    for t in range(2):
        a(f"v_mov_b32 v12, {v(22+t)}")
        a("s_nop 1")
        a(f"v_permlane32_swap_b32 v12, {v(22+t)}")
        a(f"v_max_f32 v12, v12, {v(22+t)}")
        for i in range(16):
            a(f"v_xor_b32 {v(O+16*t+i)}, 0x80000000, v12")
            a(f"v_mov_b32 {v(O+32+16*t+i)}, 0")
    a(f"{pfx}_fb2:")
    a.ext(kvload(0))
    a("s_waitcnt vmcnt(0)")
    for t in range(2): a(mf32(S + 16 * t, KV, Q + 12 + 6 * t, v(O + 16 * t, 16)))
    for t in range(2): a(mf8(S + 16 * t, KV + 12, Q + 16 + 6 * t))
    a("s_nop 11")
    for t in range(2):
        for i in range(16): a(f"v_exp_f32 {v(S+16*t+i)}, {v(S+16*t+i)}")
        for i in range(8): a(f"v_cvt_pk_bf16_f32 {v(P+i)}, {v(S+16*t+2*i)}, {v(S+16*t+2*i+1)}")
        a("s_nop 1")
        a(mf32(O + 32 + 16 * t, KV + 4, P))
        a(mf32(O + 32 + 16 * t, KV + 8, P + 4))
    advance(f"{pfx}_fb2")
    for i in range(32): a(f"v_mov_b32 {v(S+i)}, 0")
    a(f"s_branch {pfx}_fin")
    a(f"{pfx}_done:")

def gen_att(a, pfx, idreg):
    vL, vK1, vK2, vV0, vV1, vQ1, vQ2, vFA, vFR = 1, 2, 3, 4, 5, 6, 7, 8, 9
    vXW, vOM, vLin = 10, 22, 23
    P, S, O, Q, KV = 24, 32, 64, 128, 152
    RD = (208, 220, 232)
    vXR, vQA, vQB = 244, 247, 251
    QL = 73728
    sHD, sQB, sG0, sN, sK1, sK2, sV, sIT, sPH = 41, 42, 43, 44, 45, 46, 47, 48, 49
    sK1b, sK2b, sVb, sBAD = 50, 51, 52, 53
    sT0, sT1, sT2, sT3 = 54, 55, 56, 57
    sVM = 58
    sQ1, sQ2 = 96, 32
    sOM, sOL, sF3, sFF = 28, 29, 30, 31
    sDRY, sQM = 36, 37
    JK, JV = 40 * 32768, 16 * 81920
    a(f"v_and_b32 {v(vL)}, 63, v0")
    a(f"v_lshrrev_b32 v12, 6, v0")
    a(f"s_and_b32 {s(sT0)}, {s(idreg)}, 7")
    a(f"v_readfirstlane_b32 {s(S_WV)}, v12")
    a(f"s_bfe_u32 {s(sT1)}, {s(idreg)}, {7 | (1<<16)}")
    a(f"s_lshl1_add_u32 {s(sHD)}, {s(sT0)}, {s(sT1)}")
    a(f"s_bfe_u32 {s(sQB)}, {s(idreg)}, {3 | (4<<16)}")
    a(f"s_and_b32 {s(sG0)}, {s(sQB)}, 3")
    a(f"v_and_b32 v12, 31, {v(vL)}")
    a(f"v_lshrrev_b32 v13, 5, {v(vL)}")
    a(f"v_lshlrev_b32 {v(vQ2)}, 4, v12")
    a(f"v_lshl_add_u32 {v(vQ1)}, v13, 15, {v(vQ2)}")
    a(f"v_and_b32 {v(vK2)}, 7, v12")
    a(f"v_bfe_u32 v14, v12, 3, 1")
    a(f"v_lshl_add_u32 {v(vK2)}, v14, 4, {v(vK2)}")
    a(f"v_lshrrev_b32 v14, 4, v12")
    a(f"v_lshl_add_u32 {v(vK2)}, v14, 3, {v(vK2)}")
    a(f"v_lshlrev_b32 {v(vK2)}, 4, {v(vK2)}")
    a(f"v_lshl_add_u32 {v(vK1)}, v13, 15, {v(vK2)}")
    a(f"v_mul_u32_u24 {v(vV0)}, 320, v13")
    a(f"v_add_u32 {v(vV0)}, {v(vV0)}, {v(vQ2)}")
    a(f"v_add_u32 {v(vV1)}, 640, {v(vV0)}")
    for r in (vQ2, vK2):
        a(f"v_lshrrev_b32 v15, 8, {v(r)}")
        a(f"v_and_b32 {v(r)}, 0xff, {v(r)}")
        a(f"v_lshl_add_u32 {v(r)}, v15, 3, {v(r)}")
    a(f"v_lshlrev_b32 {v(vLin)}, 4, {v(vL)}")
    a(f"v_and_b32 {v(vOM)}, 0xff, {v(vLin)}")
    a(f"v_lshl_add_u32 {v(vOM)}, v14, 14, {v(vOM)}")
    a(f"v_lshl_add_u32 {v(vOM)}, v13, 8, {v(vOM)}")
    a(f"s_mov_b32 {s(sVM)}, 0xfffff")
    a(f"s_mov_b32 {s(sVM+1)}, 0xfffff")
    a(f"s_mul_i32 {s(sT0)}, {s(S_WV)}, 9216")
    a(f"v_add_u32 {v(vXW)}, {s(sT0)}, {v(vLin)}")
    for r in range(3):
        a(f"s_sub_u32 {s(sT0)}, {s(S_WV)}, {1 + r}")
        a(f"s_and_b32 {s(sT0)}, {s(sT0)}, 3")
        a(f"s_mul_i32 {s(sT0)}, {s(sT0)}, 9216")
        a(f"s_add_u32 {s(sT0)}, {s(sT0)}, {r*3072}")
        a(f"v_add_u32 {v(vXR+r)}, {s(sT0)}, {v(vLin)}")
    for i in range(4):
        a(f"s_add_u32 {s(sQM)}, {s(S_WV)}, {1 + i}")
        a(f"s_and_b32 {s(sQM)}, {s(sQM)}, 3")
        a(f"s_mul_i32 {s(sQM)}, {s(sQM)}, 1280")
        a(f"s_add_u32 {s(sQM)}, {s(sQM)}, {QL}")
        a(f"v_add_u32 {v(vQA+i)}, {s(sQM)}, {v(vLin)}")
        a(f"v_add_u32 {v(vQB+i)}, {s(sQM)}, {v(vQ2)}")
    a(f"v_mov_b32 {v(V_NONCE)}, 0")
    a(f"v_mov_b32 {v(vFR)}, 0")
    a(f"v_mov_b32 {v(vFA)}, 0")
    a("s_waitcnt lgkmcnt(0)")
    srd(a, S_WS, P_WS, 0)
    if Cfg.dry:
        a(f"s_mov_b32 {s(sDRY)}, 1")
        for r in (sPH, sOM, sOL, sF3, sQ1 + 3, sQ2 + 3): a(f"s_mov_b32 {s(r)}, 0")
        a(f"s_branch {pfx}_glue")
        a(f"{pfx}_dryr:")
        a("s_waitcnt vmcnt(0)")
        setprio(a, 0)
    a(f"s_mov_b32 {s(sDRY)}, 0")
    a(f"s_mov_b32 {s(S_WS+2)}, {WS_BYTES}")
    a(f"v_and_b32 v12, 31, {v(vL)}")
    a(f"v_cmp_eq_u32 vcc, 20, v12")
    a(f"v_mov_b32 v15, 0x3f803f80")
    a("s_nop 0")
    a(f"v_cndmask_b32 v15, 0, v15, vcc")
    for u in range(4):
        for r in range(4, 12): a(f"v_mov_b32 {v(KV+14*u+r)}, v15")
    for q in range(4):
        a(f"v_mov_b64 {v(Q+6*q+4,2)}, 0")
    for r in range(0, 64, 2): a(f"v_mov_b64 {v(O+r,2)}, 0")
    for r in range(0, 8, 2): a(f"v_mov_b64 {v(P+r,2)}, 0")
    nonce_check(a, f"{pfx}_nc", 12, sT0, sT1)
    a(f"s_lshr_b32 {s(sT0)}, {s(sHD)}, 1")
    a(f"s_and_b32 {s(sT1)}, {s(sHD)}, 1")
    a(f"s_mul_i32 {s(sT0)}, {s(sT0)}, 5")
    a(f"s_mul_i32 {s(sT2)}, {s(sT1)}, 3")
    a(f"s_add_u32 {s(sT2)}, {s(sT2)}, {s(sT0)}")
    a(f"s_lshl_b32 {s(sK1b)}, {s(sT2)}, 15")
    a(f"s_add_u32 {s(sT0)}, {s(sT0)}, 2")
    a(f"s_lshl_b32 {s(sK2b)}, {s(sT0)}, 15")
    a(f"s_lshl_b32 {s(sT1)}, {s(sT1)}, 8")
    a(f"s_add_u32 {s(sK2b)}, {s(sK2b)}, {s(sT1)}")
    att_relayout(a, pfx, idreg, vL, vLin, 212, sT0, sT1, sT2, sT3)
    for i in range(4):
        a(f"s_add_u32 {s(sT0)}, {s(S_WV)}, {1 + i}")
        a(f"s_and_b32 {s(sT0)}, {s(sT0)}, 3")
        a(f"s_lshl2_add_u32 {s(sT0)}, {s(sQB)}, {s(sT0)}")
        a(f"s_lshl_b32 {s(sT1)}, {s(sT0)}, 9")
        a(f"s_add_u32 {s(sQ1+i)}, {s(sT1)}, {s(sK1b)}")
        a(f"s_add_u32 {s(sQ2+i)}, {s(sT1)}, {s(sK2b)}")
    a(f"s_lshl_b32 {s(sOM)}, {s(sT0)}, 15")
    a(f"s_lshl_b32 {s(sT1)}, {s(sHD)}, 9")
    a(f"s_add_u32 {s(sOM)}, {s(sOM)}, {s(sT1)}")
    a(f"s_add_u32 {s(sOM)}, {s(sOM)}, {O_OFF}")
    a(f"s_lshl_b32 {s(sOL)}, {s(sT0)}, 13")
    a(f"s_lshl_b32 {s(sT1)}, {s(sHD)}, 8")
    a(f"s_add_u32 {s(sOL)}, {s(sOL)}, {s(sT1)}")
    a(f"s_add_u32 {s(sOL)}, {s(sOL)}, {OL_OFF}")
    a(f"s_lshl4_add_u32 {s(sF3)}, {s(sT0)}, {s(sHD)}")
    a(f"s_lshl_b32 {s(sF3)}, {s(sF3)}, 6")
    a(f"s_add_u32 {s(sF3)}, {s(sF3)}, {F3_OFF}")
    a(f"s_lshl_b32 {s(sT0)}, {s(S_WV)}, 13")
    a(f"s_add_u32 {s(sT0)}, {s(sT0)}, {80*32768}")
    a(f"s_add_u32 {s(sK1b)}, {s(sK1b)}, {s(sT0)}")
    a(f"s_add_u32 {s(sK2b)}, {s(sK2b)}, {s(sT0)}")
    a(f"s_mul_i32 {s(sVb)}, {s(sHD)}, 81920")
    a(f"s_mul_i32 {s(sT0)}, {s(S_WV)}, 20480")
    a(f"s_add_u32 {s(sVb)}, {s(sVb)}, {s(sT0)}")
    a(f"s_add_u32 {s(sVb)}, {s(sVb)}, {V_OFF}")
    a(f"s_mov_b32 {s(sN)}, {s(sG0)}")
    a(f"s_mov_b32 {s(sBAD)}, 0")
    def setgrp():
        return [f"s_lshl_b32 {s(sT0)}, {s(sN)}, 11", f"s_add_u32 {s(sK1)}, {s(sK1b)}, {s(sT0)}", f"s_add_u32 {s(sK2)}, {s(sK2b)}, {s(sT0)}",
                f"s_mul_i32 {s(sT0)}, {s(sN)}, 5120", f"s_add_u32 {s(sV)}, {s(sVb)}, {s(sT0)}"]
    a.ext(setgrp())
    a(f"s_mul_i32 {s(sT0)}, {s(sHD)}, 20")
    a(f"s_add_u32 {s(sT1)}, {s(sT0)}, 19")
    a(f"s_lshr_b32 {s(sT0)}, {s(sT0)}, 6")
    a(f"s_lshr_b32 {s(sT1)}, {s(sT1)}, 6")
    a(f"s_sub_u32 {s(sT1)}, {s(sT1)}, {s(sT0)}")
    a(f"v_bfe_u32 v12, {v(vL)}, 3, 1")
    a(f"v_mul_u32_u24 v12, {s(sT1)}, v12")
    a(f"v_add_u32 v12, {s(sT0)}, v12")
    a(f"v_bfe_u32 v13, {v(vL)}, 4, 1")
    a(f"v_mad_u32_u24 v13, v13, 5, 5")
    a(f"s_lshl_b32 {s(sT2)}, {s(S_WV)}, 2")
    a(f"v_and_b32 v14, 3, {v(vL)}")
    a(f"v_add_u32 v14, {s(sT2)}, v14")
    a(f"s_add_u32 {s(sT2)}, {s(sT2)}, {s(sG0)}")
    a(f"v_mov_b32 v15, {s(sT2)}")
    a("s_mov_b32 exec_lo, 0")
    a(f"v_mov_b32 v13, 0")
    a(f"v_mov_b32 v14, {s(sQB)}")
    a(f"v_mov_b32 v15, {s(sQB)}")
    a("s_mov_b32 exec_lo, -1")
    a(f"v_add_u32 v12, v12, v13")
    a(f"v_lshl_add_u32 v15, v12, 4, v15")
    a(f"v_lshl_add_u32 {v(vFA)}, v12, 4, v14")
    a(f"v_lshlrev_b32 {v(vFA)}, 6, {v(vFA)}")
    a(f"v_lshlrev_b32 v15, 6, v15")
    a(f"s_mov_b32 {s(sFF)}, {F0_OFF}")
    a(f"s_mov_b32 {s(sIT)}, 2")
    a(f"s_mov_b32 {s(sPH)}, 0")
    stamp(a, "a_ready")
    if Cfg.x_aexit:
        publish(a, sF3); a(f"s_add_u32 {s(sF3)}, {s(sF3)}, 65536"); publish(a, sF3); a(f"s_branch {pfx}_done")
    setprio(a, 3)
    if Cfg.hint:
        a(f"s_and_b32 {s(sT1)}, {s(idreg)}, 255")
        a(f"s_lshl_b32 {s(sT1)}, {s(sT1)}, 7")
        a(f"s_add_u32 {s(sT1)}, {s(sT1)}, {FP_OFF}")
        a("s_mov_b64 exec, 1")
        poll(a, f"{pfx}_ph", None, sT1, 16, sT0, Cfg.phs)
        a("s_mov_b64 exec, -1")
    poll(a, f"{pfx}_p0", 15, sFF, 16, sT0, Cfg.p0s, 17 if Cfg.pp0 else None)
    setprio(a, Cfg.prioB)
    stamp(a, "a_go")
    def qload(d, tiles, off=0):
        o = [f"buffer_load_dwordx4 {v(d+6*q,4)}, {v(vQ1)}, {s(S_WS,4)}, {s(sQ1+q)} offen sc1" for q in tiles] + ["s_mov_b32 exec_hi, 0"]
        return o + [f"buffer_load_dwordx2 {v(d+6*q+4,2)}, {v(vQ2)}, {s(S_WS,4)}, {s(sQ2+q)} offen sc1" for q in tiles] + ["s_mov_b32 exec_hi, -1"]
    def kvload(u):
        b = KV + 14 * u
        return [f"buffer_load_dwordx4 {v(b,4)}, {v(vK1)}, {s(S_WS,4)}, {s(sK1)} offen offset:{u*512} sc1",
                f"buffer_load_dwordx2 {v(b+12,2)}, {v(vK2)}, {s(S_WS,4)}, {s(sK2)} offen offset:{u*512} sc1",
                f"s_mov_b64 exec, {s(sVM,2)}",
                f"buffer_load_dwordx4 {v(b+4,4)}, {v(vV0)}, {s(S_WS,4)}, {s(sV)} offen offset:{u*1280} sc1",
                f"buffer_load_dwordx4 {v(b+8,4)}, {v(vV1)}, {s(S_WS,4)}, {s(sV)} offen offset:{u*1280} sc1",
                "s_mov_b64 exec, -1"]
    freq = f"buffer_load_dword {v(vFR)}, {v(vFA)}, {s(S_WS,4)}, {s(sFF)} offen sc1"
    def fchk(tag):
        a(f"v_cmp_ne_u32 vcc, {v(vFR)}, {v(V_NONCE)}")
        a("s_nop 1")
        a(f"s_cbranch_vccz {pfx}_{tag}_ok")
        poll(a, f"{pfx}_{tag}", vFA, sFF, vFR, sT0, Cfg.p1s)
        a("s_mov_b64 vcc, 0")
    a.ext(qload(Q, range(4)))
    for u in range(3):
        a.ext(kvload(u))
        if u == 0: a(freq)
    stamp(a, "issued")
    a("s_waitcnt vmcnt(8)")
    a(mf32(S, KV, Q, "0"))
    fchk("p1")
    setprio(a, Cfg.prioA)
    stamp(a, "q_kv0")
    a(mf8(S, KV + 12, Q + 4))
    a("s_nop 10")
    a(".p2align 3")
    a(f"{pfx}_loop:")
    for u in range(4):
        b = KV + 14 * u; bn = KV + 14 * ((u + 1) & 3); bp = KV + 14 * ((u - 1) & 3)
        items = []
        if u == 0: items = [f"s_add_u32 {s(sN)}, {s(sN)}, 1", f"s_and_b32 {s(sN)}, {s(sN)}, 3"] + setgrp()
        if u == 3: items = [f"s_sub_u32 {s(sIT)}, {s(sIT)}, 1", f"s_cmp_lg_u32 {s(sIT)}, 0"]
        ld = kvload((u + 3) & 3)
        def guarded(l, t):
            if u > 0 and Cfg.skp: a(f"s_cbranch_vccnz {pfx}_sk{t}{u}")
            a.ext(l)
            if u > 0 and Cfg.skp: a(f"{pfx}_sk{t}{u}:")
        for q in range(4):
            Sc = S + 16 * (q & 1); Sn = S + 16 * ((q + 1) & 1)
            qn, qp = (q + 1) & 3, (q - 1) & 3
            kn = b if q < 3 else bn
            kp = b if q > 0 else bp
            ex = [f"v_exp_f32 {v(Sc+i)}, {v(Sc+i)}" for i in range(16)]
            cv = [f"v_cvt_pk_bf16_f32 {v(P+i)}, {v(Sc+2*i)}, {v(Sc+2*i+1)}" for i in range(8)]
            def free():
                if items: a(items.pop(0))
            a(mf32(Sn, kn, Q + 6 * qn, "0"))
            if q == 0: guarded(ld[:2], "k")
            else: free()
            a.ext(ex[0:4])
            a(mf32(O + 16 * qp, kp + 8, P + 4))
            if q == 0: guarded(ld[2:], "v")
            else: free()
            a.ext(ex[4:8] + cv[0:2])
            a(mf8(Sn, kn + 12, Q + 6 * qn + 4))
            a.ext(ex[8:9] + cv[2:4] + ex[9:12])
            a(mf32(O + 16 * q, b + 4, P))
            if q == 2:
                if u in (1, 2) and Cfg.skp:
                    a(f"s_cbranch_vccnz {pfx}_sw{u}"); a("s_waitcnt vmcnt(8)"); a(f"{pfx}_swr{u}:")
                else: a("s_waitcnt vmcnt(8)")
            else: free()
            a.ext(ex[12:16] + cv[4:8])
        assert not items
    a(f"s_cbranch_scc1 {pfx}_loop")
    def send(job): return [f"ds_write_b128 {v(vXW)}, {v(O+16*t+4*j,4)} offset:{job*36864+t*3072+j*1024}" for t in range(3) for j in range(3)]
    def finish(o, job, tag):
        a("s_waitcnt lgkmcnt(0)")
        a("s_barrier")
        def qrd(tiles):
            for q in tiles: a(f"ds_read_b128 {v(Q+6*q,4)}, {v(vQA+q)}")
            a("s_mov_b32 exec_hi, 0")
            for q in tiles: a(f"ds_read_b64 {v(Q+6*q+4,2)}, {v(vQB+q)} offset:1024")
            a("s_mov_b32 exec_hi, -1")
        if job == 0: qrd([0])
        for j in (2, 0, 1):
            for r in range(3): a(f"ds_read_b128 {v(RD[r]+4*j,4)}, {v(vXR+r)} offset:{job*36864+j*1024}")
        pa = lambda d, x: f"v_pk_add_f32 {v(d,2)}, {v(d,2)}, {v(x,2)}"
        def quad(j):
            return [pa(RD[0]+4*j, RD[1]+4*j), pa(RD[0]+4*j+2, RD[1]+4*j+2), pa(o+4*j, RD[2]+4*j), pa(o+4*j+2, RD[2]+4*j+2),
                    pa(o+4*j, RD[0]+4*j), pa(o+4*j+2, RD[0]+4*j+2)]
        a("s_waitcnt lgkmcnt(6)"); a.ext(quad(2))
        a("s_waitcnt lgkmcnt(3)"); a.ext(quad(0))
        a("s_waitcnt lgkmcnt(0)")
        if job == 0: qrd([1, 2, 3])
        a.ext(quad(1))
        a(f"{pfx}_fin{tag}:")
        a(f"v_mov_b32 v12, {v(o+8)}")
        a(f"v_mov_b32 v13, {v(o+8)}")
        a("s_nop 1")
        a("v_permlane32_swap_b32 v12, v13")
        a("v_rcp_f32 v12, v13")
        LO, HI = (127 - Cfg.lo) << 23, (127 + Cfg.hi) << 23
        a(f"v_subrev_u32 v13, {LO}, v13")
        for i in (8, 10, 0, 2, 4, 6): a(f"v_pk_mul_f32 {v(o+i,2)}, {v(o+i,2)}, v[12:13] op_sel_hi:[1,0]")
        if job == 0: a(mf32(S, KV, Q, "0"))
        for j in (4, 5):
            a(f"v_cvt_pk_bf16_f32 {v(14+j)}, {v(o+2*j)}, {v(o+2*j+1)}")
            a(f"v_cvt_pk_bf16_f32 {v(16+j)}, {v(o+2*j)}, {v(o+2*j+1)}")
        for j in range(4): a(f"v_cvt_pk_bf16_f32 {v(14+j)}, {v(o+2*j)}, {v(o+2*j+1)}")
        a(f"buffer_store_dwordx4 v[14:17], {v(vOM)}, {s(S_WS,4)}, {s(sOM)} offen sc1")
        a("v_permlane16_swap_b32 v18, v20")
        a("v_permlane16_swap_b32 v19, v21")
        if job == 0: a(mf8(S, KV + 12, Q + 4))
        a("s_mov_b64 exec, 0xffff")
        a(f"buffer_store_dwordx4 v[18:21], {v(vLin)}, {s(S_WS,4)}, {s(sOL)} offen sc1")
        a("s_mov_b64 exec, -1")
        a(f"v_cmp_lt_u32 vcc, {HI - LO}, v13")
        for i in range(2, 12, 2): a(f"v_pk_fma_f32 {v(o,2)}, {v(o+i,2)}, 0, {v(o,2)} op_sel_hi:[1,0,1]")
        a(f"v_fma_f32 v12, {v(o+1)}, 0, {v(o)}")
        a(f"s_movk_i32 {s(sT0)}, 0x207")
        a(f"v_cmp_class_f32 {s(sT2,2)}, v12, {s(sT0)}")
        a("s_nop 0")
        a(f"s_or_b64 vcc, vcc, {s(sT2,2)}")
    def nextjob(sign):
        op = "s_add_u32" if sign > 0 else "s_sub_u32"
        return [f"{op} {s(r)}, {s(r)}, {JK}" for r in [sK1b, sK2b, sQ1 + 3, sQ2 + 3]] + [f"{op} {s(sVb)}, {s(sVb)}, {JV}"]
    def nextout(sign):
        op = "s_add_u32" if sign > 0 else "s_sub_u32"
        return [f"{op} {s(sOM)}, {s(sOM)}, 8192", f"{op} {s(sOL)}, {s(sOL)}, 4096", f"{op} {s(sF3)}, {s(sF3)}, 65536"]
    def back():
        a(f"s_cmp_eq_u32 {s(sDRY)}, 0")
        a(f"s_cbranch_scc1 {pfx}_loop")
    a(f"s_add_u32 {s(sPH)}, {s(sPH)}, 1")
    a(f"s_cmp_lt_u32 {s(sPH)}, 5")
    a(f"s_cbranch_scc1 {pfx}_glue")
    a(f"{pfx}_epi:")
    setprio(a, Cfg.prioE)
    a(mf32(O + 48, KV + 14 * 3 + 8, P + 4))
    stamp(a, "loopdone")
    a.ext(send(1))
    finish(O + 48, 1, "b")
    a(f"s_cbranch_scc1 {pfx}_fbq")
    a(f"{pfx}_ok:")
    stamp(a, "o_stored")
    a("s_waitcnt vmcnt(0)")
    publish(a, sF3)
    stamp(a, "o_pub")
    if Cfg.dry:
        a(f"s_cmp_lg_u32 {s(sDRY)}, 0")
        a(f"s_cbranch_scc1 {pfx}_dryr")
    a(f"s_cmp_eq_u32 {s(sBAD)}, 0")
    a(f"s_cbranch_scc1 {pfx}_done")
    a(f"s_mov_b32 {s(sBAD)}, 0")
    a.ext(nextjob(-1) + nextout(-1))
    a(f"s_branch {pfx}_fb")
    a(f"{pfx}_glue:")
    a(f"s_mov_b32 {s(sIT)}, 1")
    for ph in (2, 3, 4):
        a(f"s_cmp_eq_u32 {s(sPH)}, {ph}")
        a(f"s_cbranch_scc1 {pfx}_g{ph}")
    a(f"s_mov_b32 {s(sFF)}, {F1_OFF}")
    a(freq)
    back()
    a(f"{pfx}_g2:")
    a(f"s_mov_b32 m0, {s(sQM)}")
    a.ext(nextjob(1))
    fchk("p2")
    a(f"buffer_load_dwordx4 {v(vQ1)}, {s(S_WS,4)}, {s(sQ1+3)} offen sc1 lds")
    a(f"s_add_u32 m0, {s(sQM)}, 1024")
    a("s_mov_b64 exec, 0xffff")
    a(f"buffer_load_dwordx4 {v(vLin)}, {s(S_WS,4)}, {s(sQ2+3)} offen sc1 lds")
    a("s_mov_b64 exec, -1")
    back()
    a(f"{pfx}_g3:")
    stamp(a, "half")
    a(mf32(O + 48, KV + 14 * 3 + 8, P + 4))
    a(f"s_mov_b32 {s(sIT)}, 3")
    a.ext(send(0))
    for r in (4, 6): a(f"v_mov_b64 {v(P+r,2)}, 0")
    for t in range(3):
        for r in range(0, 12, 2): a(f"v_mov_b64 {v(O+16*t+r,2)}, 0")
    finish(O + 48, 0, "a")
    a(f"s_cselect_b32 {s(sBAD)}, 1, 0")
    a("s_mov_b64 vcc, 0")
    for r in range(0, 12, 2): a(f"v_mov_b64 {v(O+48+r,2)}, 0")
    a("s_waitcnt lgkmcnt(0)")
    back()
    a(f"{pfx}_g4:")
    a(f"s_cmp_lg_u32 {s(sBAD)}, 0")
    a(f"s_cbranch_scc1 {pfx}_g4n")
    publish(a, sF3)
    a(f"{pfx}_g4n:")
    a.ext(nextout(1))
    a("s_mov_b64 vcc, -1")
    back()
    a(f"s_branch {pfx}_epi")
    for u in (1, 2):
        a(f"{pfx}_sw{u}:"); a(f"s_waitcnt vmcnt({8 - 4 * u})"); a(f"s_branch {pfx}_swr{u}")
    a(f"{pfx}_fbq:")
    a(f"s_cmp_lg_u32 {s(sIT)}, 0")
    a(f"s_cbranch_scc1 {pfx}_ok")
    a(f"{pfx}_fb:")
    def rewind():
        a(f"s_lshl_b32 {s(sT0)}, {s(S_WV)}, 13")
        a(f"s_sub_u32 {s(sK1)}, {s(sK1b)}, {s(sT0)}")
        a(f"s_sub_u32 {s(sK2)}, {s(sK2b)}, {s(sT0)}")
        a(f"s_mul_i32 {s(sT0)}, {s(S_WV)}, 20480")
        a(f"s_sub_u32 {s(sV)}, {s(sVb)}, {s(sT0)}")
        a(f"s_mov_b32 {s(sIT)}, 0")
    def advance(lbl):
        a(f"s_add_u32 {s(sK1)}, {s(sK1)}, 512")
        a(f"s_add_u32 {s(sK2)}, {s(sK2)}, 512")
        a(f"s_add_u32 {s(sV)}, {s(sV)}, 1280")
        a(f"s_add_u32 {s(sIT)}, {s(sIT)}, 1")
        a(f"s_cmp_lt_u32 {s(sIT)}, 64")
        a(f"s_cbranch_scc1 {lbl}")
    a("s_waitcnt vmcnt(0)")
    a.ext(qload(Q, [3]))
    rewind()
    a("v_mov_b32 v13, 0xff800000")
    a(f"{pfx}_fb1:")
    a.ext(kvload(0)[:2])
    a("s_waitcnt vmcnt(0)")
    a(mf32(S, KV, Q + 18, "0"))
    a(mf8(S, KV + 12, Q + 22))
    a("s_nop 11")
    for i in range(0, 16, 2): a(f"v_max3_f32 v13, {v(S+i)}, {v(S+i+1)}, v13")
    advance(f"{pfx}_fb1")
    rewind()
    a("v_mov_b32 v12, v13")
    a("s_nop 1")
    a("v_permlane32_swap_b32 v12, v13")
    a("v_max_f32 v12, v12, v13")
    for i in range(16):
        a(f"v_xor_b32 {v(O+i)}, 0x80000000, v12")
        a(f"v_mov_b32 {v(O+48+i)}, 0")
    a(f"{pfx}_fb2:")
    a.ext(kvload(0))
    a("s_waitcnt vmcnt(0)")
    a(mf32(S, KV, Q + 18, v(O, 16)))
    a(mf8(S, KV + 12, Q + 22))
    a("s_nop 11")
    for i in range(16): a(f"v_exp_f32 {v(S+i)}, {v(S+i)}")
    for i in range(8): a(f"v_cvt_pk_bf16_f32 {v(P+i)}, {v(S+2*i)}, {v(S+2*i+1)}")
    a("s_nop 1")
    a(mf32(O + 48, KV + 4, P))
    a(mf32(O + 48, KV + 8, P + 4))
    advance(f"{pfx}_fb2")
    a("s_nop 5")
    a(f"s_branch {pfx}_finb")
    a(f"{pfx}_done:")

def gen_relayout(a, pfx, idreg, vL, sT, sFH, sFR):
    sK, sC, sPA, sPB, sPC, sPD, sB, sM, sD0, sD1, sF1 = sT
    assert Cfg.med
    STEP = 256; NR = 1 if Cfg.arl else 2
    sDS = (50, 51, 52)
    SW = S_C
    T = 160
    IR, CH = T + 8, T + 13
    a(f"s_mov_b32 {s(SW+3)}, 0x00020000")
    for i in range(5):
        a(f"v_add_u32 {v(T)}, {64*i}, {v(vL)}")
        a(f"v_mul_u32_u24 {v(IR+i)}, 6554, {v(T)}")
        a(f"v_lshrrev_b32 {v(IR+i)}, 16, {v(IR+i)}")
        a(f"v_mul_u32_u24 {v(CH+i)}, 10, {v(IR+i)}")
        a(f"v_sub_u32 {v(CH+i)}, {v(T)}, {v(CH+i)}")
        a(f"v_lshlrev_b32 {v(CH+i)}, 4, {v(CH+i)}")
    a(f"{pfx}_rl_pass:")
    a(f"s_mul_i32 {s(sM)}, {s(S_WV)}, 5120")
    a(f"s_mov_b32 {s(sF1)}, 0")
    a(f"{pfx}_rl_loop:")
    a(f"s_and_b32 {s(sC)}, {s(idreg)}, 7")
    a(f"s_lshr_b32 {s(sK)}, {s(idreg)}, 3")
    a(f"s_sub_u32 {s(sPD)}, {s(sK)}, 54")
    a(f"s_mul_i32 {s(sD1)}, {s(sPD)}, 52")
    a(f"s_lshr_b32 {s(sD1)}, {s(sD1)}, 8")
    a(f"s_mul_i32 {s(sB)}, {s(sD1)}, 5")
    a(f"s_sub_u32 {s(sPD)}, {s(sPD)}, {s(sB)}")
    a(f"s_mul_i32 {s(sB)}, {s(sD1)}, 160")
    a(f"s_mul_i32 {s(sD1)}, {s(sPD)}, 40")
    a(f"s_cmp_eq_u32 {s(sPD)}, 4")
    a(f"s_cselect_b32 {s(sD1)}, 16, {s(sD1)}")
    a(f"s_cselect_b32 {s(sPA)}, 80, 20")
    a(f"s_cselect_b32 {s(sPB)}, 40, 4")
    a(f"s_cselect_b32 {s(sPC)}, 20, 8")
    a(f"s_add_u32 {s(sB)}, {s(sB)}, {s(sD1)}")
    a(f"s_lshl_b32 {s(sD1)}, {s(sK)}, 5")
    a(f"s_mov_b32 {s(sPD)}, {640*1280}")
    a(f"s_cmp_lt_u32 {s(sK)}, 54")
    a(f"s_cselect_b32 {s(SW)}, {s(P_WD)}, {s(P_WO)}")
    a(f"s_cselect_b32 {s(SW+1)}, {s(P_WD+1)}, {s(P_WO+1)}")
    a(f"s_cselect_b32 {s(SW+2)}, {1728*1280}, {s(sPD)}")
    a(f"s_cselect_b32 {s(sPA)}, 8, {s(sPA)}")
    a(f"s_cselect_b32 {s(sPB)}, 4, {s(sPB)}")
    a(f"s_cselect_b32 {s(sPC)}, 16, {s(sPC)}")
    a(f"s_cselect_b32 {s(sB)}, {s(sD1)}, {s(sB)}")
    a(f"s_mul_i32 {s(sB)}, {s(sB)}, 1280")
    a(f"s_mul_i32 {s(sPD)}, {s(sC)}, 160")
    a(f"s_add_u32 {s(sB)}, {s(sB)}, {s(sPD)}")
    a(f"s_movk_i32 {s(sPD)}, 1280")
    for i in range(5):
        r, t = T, T + 1
        a(f"v_and_b32 {v(r)}, 3, {v(IR+i)}")
        a(f"v_lshrrev_b32 {v(t)}, 4, {v(IR+i)}")
        a(f"v_mad_u32_u24 {v(r)}, {v(t)}, {s(sPA)}, {v(r)}")
        a(f"v_bfe_u32 {v(t)}, {v(IR+i)}, 3, 1")
        a(f"v_mad_u32_u24 {v(r)}, {v(t)}, {s(sPB)}, {v(r)}")
        a(f"v_bfe_u32 {v(t)}, {v(IR+i)}, 2, 1")
        a(f"v_mad_u32_u24 {v(r)}, {v(t)}, {s(sPC)}, {v(r)}")
        a(f"s_add_u32 m0, {s(sM)}, {i*1024}")
        a(f"v_mad_u32_u24 {v(r)}, {v(r)}, {s(sPD)}, {v(CH+i)}")
        if Cfg.thl >= 0: a(f"s_waitcnt vmcnt({Cfg.thl})")
        if not Cfg.x_norl & 1: a(f"buffer_load_dwordx4 {v(r)}, {s(SW,4)}, {s(sB)} offen lds")
    a(f"s_mul_i32 {s(sD1)}, {s(sC)}, 74")
    a(f"s_add_u32 {s(sD1)}, {s(sD1)}, {s(sK)}")
    a(f"s_mul_i32 {s(sD1)}, {s(sD1)}, 5120")
    a(f"s_add_u32 {s(sD1)}, {s(sD1)}, {WR_OFF}")
    for z in range(NR):
        a(f"s_cmp_eq_u32 {s(sF1)}, {z}")
        a(f"s_cselect_b32 {s(sDS[z])}, {s(sD1)}, {s(sDS[z])}")
    a(f"s_add_u32 {s(sF1)}, {s(sF1)}, 1")
    a(f"s_add_u32 {s(idreg)}, {s(idreg)}, {STEP}")
    a(f"s_add_u32 {s(sM)}, {s(sM)}, 20480")
    if not Cfg.arl:
        a(f"s_sub_u32 {s(sD0)}, {s(idreg)}, 512")
        a(f"s_cmp_lt_u32 {s(sD0)}, 80")
        a(f"s_cbranch_scc1 {pfx}_rl_loop")
    a(f"s_mul_i32 {s(sM)}, {s(S_WV)}, 5120")
    a(f"v_lshrrev_b32 {v(T)}, 4, {v(vL)}")
    a(f"v_bfe_u32 {v(T+1)}, {v(vL)}, 2, 2")
    a(f"v_lshl_add_u32 {v(T)}, {v(T)}, 3, {v(T+1)}")
    a(f"v_mul_u32_u24 {v(T)}, 160, {v(T)}")
    a(f"v_and_b32 {v(T+1)}, 3, {v(vL)}")
    a(f"v_mad_u32_u24 {v(T)}, {v(T+1)}, 40, {v(T)}")
    a(f"v_add_u32 {v(T)}, {s(sM)}, {v(T)}")
    a(f"v_lshlrev_b32 {v(T+1)}, 4, {v(vL)}")
    a(f"v_add_u32 {v(T+2)}, 4096, {v(T+1)}")
    a("s_waitcnt vmcnt(0)")
    a("s_barrier")
    a(f"s_cmp_lg_u32 {s(S_WV)}, 0")
    a(f"s_cbranch_scc1 {pfx}_rl_np")
    publish(a, sFH)
    a(f"{pfx}_rl_np:")
    pass
    for z in range(NR):
        D = T + 20 + 20 * z
        if z:
            a(f"s_cmp_eq_u32 {s(sF1)}, {z}")
            a(f"s_cbranch_scc1 {pfx}_rl_fin")
        for mt in range(5):
            for u in range(2):
                a(f"ds_read_b64_tr_b16 {v(D+4*mt+2*u,2)}, {v(T)} offset:{z*20480+u*640+8*mt}")
        a("s_waitcnt lgkmcnt(0)")
        for mt in range(5 if not Cfg.x_norl & 2 else 0):
            if Cfg.ths >= 0: a(f"s_waitcnt vmcnt({Cfg.ths})")
            a(f"buffer_store_dwordx4 {v(D+4*mt,4)}, {v(T+1 if mt < 4 else T+2)}, {s(S_WS,4)}, {s(sDS[z])} offen offset:{(mt&3)*1024} sc1")
    a(f"{pfx}_rl_fin:")
    a("s_waitcnt vmcnt(0)")
    a("s_barrier")
    a(f"s_cmp_lg_u32 {s(S_WV)}, 0")
    a(f"s_cbranch_scc1 {pfx}_rl_done")
    publish(a, sFR)
    a(f"{pfx}_rl_done:")
    a(f"s_add_u32 {s(sFR)}, {s(sFR)}, 2048")
    a(f"s_cmp_lt_u32 {s(idreg)}, {592 if Cfg.arl else 512}")
    a(f"s_cbranch_scc1 {pfx}_rl_pass")

class G2:
    vL, vF, vF2, vW4, vXO = 1, 2, 3, 4, 5
    vBA, vBR = 6, 10
    vFl, vOL = 0, 8
    vFA, vFR = 7, 8
    XR, AS, AD, HF = 12, 22, 96, 116
    WFS = (180, 200)
    HFS = (116, 132, 148, 164)
    WRS = (200, 220, 48, 68)
    sRT, sC8, sM, sW, sH, sIT, sC0, sC1, sPB, sFB = 41, 42, 43, 44, 45, 46, 47, 48, 49, 50
    sT0, sT1, sT2, sT3 = 54, 55, 56, 57
    @staticmethod
    def OF(k):
        return (148 + 4 * k if k < 8 else 240 + 4 * (k - 8)) if k < 10 else (116 + 4 * (k - 10) if k < 18 else 248 + 4 * (k - 18))
    @staticmethod
    def wdma(slot):
        g = G2
        o = [[f"s_add_u32 m0, {s(g.sM)}, {slot*20480}", "s_nop 0"]]
        for i in range(4): o.append([f"buffer_load_dwordx4 {v(g.vF)}, {s(S_WS,4)}, {s(g.sW)} offen offset:{i*1024} sc1 lds"])
        o[0] += o.pop(1)
        o.append([f"s_add_u32 m0, {s(g.sM)}, {slot*20480+4096}", "s_nop 0",
                  f"buffer_load_dwordx4 {v(g.vW4)}, {s(S_WS,4)}, {s(g.sW)} offen sc1 lds", f"s_add_u32 {s(g.sW)}, {s(g.sW)}, {0 if Cfg.x_hot & 1 else 20480}"])
        return o
    @staticmethod
    def hload(st):
        g = G2
        o = [[f"buffer_load_dwordx4 {v(g.HF+16*st+4*j,4)}, {v(g.vF)}, {s(S_WS,4)}, {s(g.sH)} offen offset:{j*1024} sc1"] for j in range(4)]
        o[-1].append(f"s_add_u32 {s(g.sH)}, {s(g.sH)}, {0 if Cfg.x_hot & 2 else 4096}")
        return o

def g2_start(a, pfx, valu, stores, pre=False):
    if Cfg.sk:
        assert not (Cfg.wpre or Cfg.lag)
        return k2_start(a, pfx, valu, stores)
    g = G2
    heavy = bool(valu)
    vL, sT0, sT1, sT2 = g.vL, g.sT0, g.sT1, g.sT2
    a(f"s_lshr_b32 {s(g.sC8)}, s2, 5")
    a(f"s_and_b32 {s(sT1)}, s2, 7")
    a(f"s_lshl_b32 {s(g.sRT)}, {s(sT1)}, 2")
    a(f"s_bfe_u32 {s(sT1)}, s2, {3 | (2<<16)}")
    a(f"s_add_u32 {s(g.sRT)}, {s(g.sRT)}, {s(sT1)}")
    a(f"s_lshl_b32 {s(g.sRT)}, {s(g.sRT)}, 2")
    a(f"s_add_u32 {s(g.sRT)}, {s(g.sRT)}, {s(S_WV)}")
    a(f"s_mul_i32 {s(g.sW)}, {s(g.sC8)}, {74*5120}")
    a(f"s_mul_i32 {s(g.sM)}, {s(S_WV)}, 5120")
    a(f"s_add_u32 {s(g.sW)}, {s(g.sW)}, {s(g.sM)}")
    a(f"s_add_u32 {s(g.sW)}, {s(g.sW)}, {WR_OFF}")
    a(f"s_mul_i32 {s(g.sH)}, {s(g.sRT)}, 55296")
    a(f"s_add_u32 {s(g.sH)}, {s(g.sH)}, {H_OFF}")
    a(f"v_lshlrev_b32 {v(g.vF)}, 4, {v(vL)}")
    a(f"v_add_u32 {v(g.vW4)}, 4096, {v(g.vF)}")
    a(f"s_mov_b32 {s(sT0)}, 0")
    a(f"s_cmp_eq_u32 {s(S_WV)}, 0")
    a(f"s_cselect_b32 {s(g.sPB)}, {0 if heavy else -1}, -1")
    if not pre:
        a("s_waitcnt vmcnt(0) lgkmcnt(0)")
        a(f"s_cbranch_scc0 {pfx}_p4_ok")
        a(f"v_cmp_ne_u32 vcc, {v(g.vFR)}, {v(V_NONCE)}")
        a("s_nop 1")
        a(f"s_cbranch_vccz {pfx}_p4_ok")
        poll(a, f"{pfx}_p4", g.vFA, sT0, g.vFR, sT2, Cfg.p4s)
        a("s_barrier")
    stamp(a, "h_go")
    work = list(valu) + [
        f"v_add_u32 {v(g.vF2)}, {3*20480}, {v(g.vF)}",
        f"v_and_b32 {v(g.AD)}, 15, {v(vL)}",
        f"v_mul_u32_u24 {v(g.vXO)}, 1280, {v(g.AD)}",
        f"v_lshrrev_b32 {v(g.AD)}, 4, {v(vL)}",
        f"v_mad_u32_u24 {v(g.vXO)}, {v(g.AD)}, 40, {v(g.vXO)}",
        f"v_and_b32 {v(g.vOL)}, 0xff, {v(g.vF)}",
        f"v_lshl_add_u32 {v(g.vOL)}, {v(g.AD)}, {9 if Cfg.two else 10}, {v(g.vOL)}",
        f"v_and_b32 {v(g.vFl)}, 31, {v(vL)}",
        f"v_lshlrev_b32 {v(g.vFl)}, 6, {v(g.vFl)}",
        f"v_min_u32 {v(g.vBA)}, {11 if Cfg.med else 9}, {v(vL)}",
        f"v_lshlrev_b32 {v(g.vBA)}, 6, {v(g.vBA)}",
        f"s_lshr_b32 {s(g.sFB)}, {s(g.sRT)}, 3", f"s_lshl_b32 {s(g.sFB)}, {s(g.sFB)}, 10", f"s_add_u32 {s(g.sFB)}, {s(g.sFB)}, {F2B_OFF}",
        f"v_add_u32 {v(g.vBA)}, {s(g.sFB)}, {v(g.vBA)}",
        f"s_lshr_b32 {s(g.sFB)}, s2, 7", f"s_lshl_b32 {s(g.sFB)}, {s(g.sFB)}, 12", f"s_add_u32 {s(g.sFB)}, {s(g.sFB)}, {F4_OFF}",
        f"s_mov_b32 exec_lo, 0\nv_lshl_add_u32 {v(g.vBA)}, {v(vL)}, 6, {s(g.sFB)}\ns_mov_b32 exec_lo, -1",
        f"s_mov_b32 {s(g.sFB)}, 0"]
    groups = g.wdma(0) + g.hload(0) + g.wdma(1) + g.hload(1)
    if pre:
        groups = g.hload(0) + g.hload(1)
        a(f"s_add_u32 {s(g.sW)}, {s(g.sW)}, 40960")
        if Cfg.hpre:
            groups = [[]]
            a(f"s_add_u32 {s(g.sH)}, {s(g.sH)}, 8192")
    per = -(-len(work) // len(groups))
    for gr in groups:
        a.ext(gr); a.ext(work[:per]); work = work[per:]
    a.ext(stores)
    a(f"s_waitcnt vmcnt({(0 if Cfg.hpre else 4) + len(stores) if pre else 9 + len(stores)}) lgkmcnt(0)")

def gen_g2(a, pfx):
    g = G2
    vL, vF, vF2, vW4, vXO, XR, AS, AD, HF, WFS, OF = g.vL, g.vF, g.vF2, g.vW4, g.vXO, g.XR, g.AS, g.AD, g.HF, g.WFS, g.OF
    sRT, sC8, sM, sW, sH, sPB, sFB = g.sRT, g.sC8, g.sM, g.sW, g.sH, g.sPB, g.sFB
    sT0, sT1, sT2, sT3 = g.sT0, g.sT1, g.sT2, g.sT3
    sOL, sF3, sFH = 46, 47, 48
    SETS = (WFS[0], WFS[1], 220, 48, 68)
    T = 88; U = 148
    vFl, vOL = g.vFl, g.vOL
    vFr, vTW, vTR, vO = T + 1, T + 3, T + 4, T + 5
    SX, SO = S_A, S_B
    vm, lg = Trk(), Trk()
    CB = 12
    ool = []
    def loc(st):
        return (2, st - 72) if st >= 72 else ((st >> 2) & 3, st & 3)
    def rd(d, st, mt):
        slot, ks = loc(st)
        base, off = (vF2, 0) if slot == 3 else (vF, slot * 20480)
        lg.add((st, mt))
        a(f"ds_read_b128 {v(d+4*mt,4)}, {v(base)} offset:{off+ks*5120+mt*1024}")
    W = lambda st: [(("W", st), x) for x in g.wdma(st & 3)]
    H = lambda st: [(("H", st), x) for x in g.hload(st & 3)]
    def put(it):
        tag, lines = it
        if callable(lines): lines(); return
        if tag and ((tag[0] == "W" and Cfg.x_d & 1) or (tag[0] == "H" and Cfg.x_d & 2)): lines = [x for x in lines if "buffer_load" not in x]
        if tag and tag[0] in "WH" and Cfg.x_d & 4: lines = [x.replace(" sc1", "") for x in lines]
        a.ext(lines)
        if tag: vm.add(tag)
    def wave0(name, cond, body):
        def f():
            a(f"s_cmp_eq_u32 {s(cond)}, 0"); a(f"s_cbranch_scc1 {pfx}_{name}"); a(f"{pfx}_{name}r:")
            b = Asm(); b(f"{pfx}_{name}:"); body(b); b(f"s_branch {pfx}_{name}r"); ool.append(b)
        return f
    def flag_req(name, vaddr, soff, vres):
        def body(b):
            vm.mark(name)
            b(f"buffer_load_dword {v(vres)}, {'off' if vaddr is None else v(vaddr)}, {s(S_WS,4)}, {s(soff)}{'' if vaddr is None else ' offen'} sc1")
        return wave0("q" + name, S_WV, body)
    def flag_chk(name, vaddr, soff, vres, sleep, prio, st):
        def body(b):
            setprio(b, Cfg.prioGv)
            b(f"s_waitcnt vmcnt({vm.n(name)})")
            b(f"v_cmp_ne_u32 vcc, {v(vres)}, {v(V_NONCE)}")
            b("s_nop 1")
            b(f"s_cbranch_vccz {pfx}_p{name}_ok")
            poll(b, f"{pfx}_p{name}", vaddr, soff, vres, sT2, sleep)
            setprio(b, prio)
            if st: stamp(b, st)
        return wave0("c" + name, S_WV, body)
    for st in range(2):
        for x in W(st) + H(st): vm.add(x[0])
    vm.mark("hst")
    setprio(a, Cfg.prioD)
    a("s_barrier")
    for st in range(2):
        for mt in range(5): rd(WFS[st], st, mt)
    stamp(a, "d_issued")
    sal = lambda *l: (None, list(l))
    xl = [(("X", 0), [f"buffer_load_dwordx{n} {v(XR+o,n)}, {v(vXO)}, {s(SX,4)}, {s(sT3)} offen offset:{4*o}"]) for o, n in ((0, 4), (4, 4), (8, 2))]
    if Cfg.xl: xl = []
    first = {st: W(st + 2) for st in range(11)}
    second = {st: H(st + 2) for st in range(11)}
    second[10] = second[10] + W(13)
    first[11] = W(14) + H(13)[:2]; second[11] = W(15)
    first[12] = xl; second[12] = W(16); first[13] = []
    LG0 = 10
    if Cfg.lead == 1:
        first = {st: H(st + 2) for st in range(11)}; second = {st: W(st + 3) for st in range(11)}
        first[0] = W(2) + H(2)
        first[11] = W(14) + H(13)[:2]; second[11] = W(15); first[12] = xl; second[12] = W(16); first[13] = []
    if Cfg.lead == 2:
        first = {st: W(st + 3) for st in range(13)}; second = {st: H(st + 3) for st in range(10)}
        first[0] = W(2) + H(2); second[0] = W(3) + H(3)
        first[5] = []; second[5] = W(8) + H(8)
        second[10] = H(13)[:2] + xl; second[11] = W(15); first[12] = []; second[12] = W(16); first[13] = []
        LG0 = 0
    pre = {}; post = {}
    post[1] = wave0("pb", sPB, lambda b: (publish(b, 100), stamp(b, "pub2")))
    second[4] = second[4] + [(None, flag_req("2", g.vBA, sFB, g.vBR))]
    pre[5] = flag_chk("2", g.vBA, sFB, g.vBR, Cfg.p2s, Cfg.prioD, "h2_go")
    second[7] += [sal(f"s_lshl_b32 {s(sFH)}, s2, 6", f"s_add_u32 {s(sFH)}, {s(sFH)}, {FH_OFF}",
                      f"s_mul_i32 {s(sT3)}, {s(sRT)}, {16*1280}", f"s_mul_i32 {s(sT1)}, {s(sC8)}, 160", f"s_add_u32 {s(sT3)}, {s(sT3)}, {s(sT1)}")]
    t_ = Asm(); srd(t_, SX, P_X, 2048 * 1280); srd(t_, SO, P_OUT, 2048 * 1280)
    second[8] += [sal(*[x.strip() for x in t_.lines])]
    sOH, sOG = 58, 96
    LS = 256 if Cfg.two else 512
    olb = [f"s_lshr_b32 {s(sT1)}, {s(sRT)}, 1", f"s_lshl_b32 {s(sOL)}, {s(sT1)}, 13", f"s_and_b32 {s(sT0)}, {s(sRT)}, 1",
           f"s_lshl3_add_u32 {s(sOL)}, {s(sT0)}, {s(sOL)}"] if Cfg.two else \
          [f"s_lshr_b32 {s(sT1)}, {s(sRT)}, 2", f"s_lshl_b32 {s(sOL)}, {s(sT1)}, 14", f"s_and_b32 {s(sT0)}, {s(S_WV)}, 1", f"s_lshl_b32 {s(sT0)}, {s(sT0)}, 8",
           f"s_add_u32 {s(sOL)}, {s(sOL)}, {s(sT0)}", f"s_lshr_b32 {s(sT0)}, {s(S_WV)}, 1", f"s_lshl3_add_u32 {s(sOL)}, {s(sT0)}, {s(sOL)}"]
    second[6] += [sal(*olb, f"s_lshr_b32 {s(sT1)}, {s(sRT)}, 2",
                      f"s_lshl_b32 {s(sF3)}, {s(sT1)}, 11", f"s_add_u32 {s(sF3)}, {s(sF3)}, {F3_OFF}", f"s_lshl_b32 {s(sT0)}, {s(sRT)}, 14",
                      *[f"s_add_u32 {s(sOH+gq)}, {s(sT0)}, {O_OFF + 4096*gq}" for gq in range(4)],
                      *[f"s_add_u32 {s(sOG+gq)}, {s(sOL)}, {OL_OFF + 8*LS*gq}" for gq in range(4)])]
    def L(gq):
        return [(("O", 5*gq+i), [f"buffer_load_dwordx4 {v(OF(5*gq+i),4)}, {v(vF)}, {s(S_WS,4)}, {s(sOH+gq)} offen offset:{i*1024} sc1"]) for i in range(4)] + \
               [(("O", 5*gq+4), [f"buffer_load_dwordx2 {v(OF(5*gq+4)+2*i,2)}, {v(g.vOL)}, {s(S_WS,4)}, {s(sOG+gq)} offen offset:{i*LS} sc1"]) for i in range(2)]
    if Cfg.two:
        first[CB] = [(None, flag_req("a", g.vFl, sF3, g.vBR))] + first[CB]
        pre[CB] = flag_chk("a", g.vFl, sF3, g.vBR, Cfg.p2s, Cfg.prioD, "o0_go")
        b0 = L(0) + L(1)
        second[12] = second[12] + b0[:4]; first[13] = b0[4:]
    else:
        first[13] = [(None, flag_req("3", vFl, sF3, vFr))]
    if 0 < Cfg.lag < 4:
        ls = 9 + Cfg.lag
        first[ls] = [(None, flag_req("h", None, sFH, g.vBR))] + first[ls]
        pre[ls] = flag_chk("h", None, sFH, g.vBR, 2, Cfg.prioD, None)
    if Cfg.tc & 2:
        def tb(b):
            setprio(b, Cfg.prioGv); b.ext(touch(f"{pfx}_tc1", f"{pfx}_end", 52, g.vFA, g.vFA)); setprio(b, Cfg.prioD)
            b.lines = [l.replace("s_add_u32 s52, s52, g2_tc1-", "s_sub_u32 s52, s52, @").replace("s_addc_u32 s53", "s_subb_u32 s53") for l in b.lines]
            b.lines = [(l.split("@")[0] + l.split("@")[1] + "-g2_tc1") if "@" in l else l for l in b.lines]
        first[8] = first[8] + [(None, wave0("tc", S_WV, tb))]
    extra = []
    a(f"s_waitcnt lgkmcnt({lg.n((0, 0))})")
    for st in range(14):
        for ks in range(4 if st < 13 else 2):
            k = 4 * st + ks
            if k == 48: a(f"{pfx}_tc1:")
            if ks in (0, 2):
                pend = list((first if ks == 0 else second)[st]); npend = len(pend); done = 0
            for mt in range(5):
                d = WFS[k & 1]
                a(mf16(AD + 4 * mt, d + 4 * mt, HF + 16 * (st & 3) + 4 * ks, "0" if k == 0 else None))
                nxt = (k, mt + 1) if mt < 4 else (k + 1, 0)
                w = [f"lgkmcnt({min(14, lg.n(nxt))})"] if nxt[0] < 54 else []
                if ks == 2 and mt == 0:
                    need = [("W", st + 1)] + (["hst"] if st == 1 else []) + ([("W", 14)] if st == 12 else [])
                    w = [f"vmcnt({min(vm.n(x) for x in need)})"] + (["lgkmcnt(0)"] if st >= LG0 else w)
                    a("s_waitcnt " + " ".join(w))
                    if st in pre: pre[st]()
                    a("s_barrier")
                    if st in post: post[st]()
                    if st == 12: extra = [(SETS[j], 54 + j, m) for j in range(2, 5) for m in range(5)]
                else:
                    if ks == 3 and mt == 4: w = [f"vmcnt({vm.n(('H', st + 1))})"] + w
                    if w: a("s_waitcnt " + " ".join(w))
                rd(d, k + 2, mt)
                if extra: rd(*extra.pop(0))
                pos = 5 * (ks & 1) + mt
                while pend and done * 10 <= pos * npend:
                    put(pend.pop(0)); done += 1
            if ks & 1: assert not pend
    assert not extra
    a(f"{pfx}_tc2:")
    setprio(a, Cfg.prioGv)
    stamp(a, "d_done")
    a(f"s_waitcnt vmcnt({vm.n(('W', 16))}) lgkmcnt(0)")
    a("s_barrier")
    work = []
    for r0 in range(0, 20, 4):
        Z = 44
        work += [f"v_mul_f32 {v(Z+i)}, {f2u(-LOG2E)}, {v(AD+r0+i)}" for i in range(4)]
        work += [f"v_exp_f32 {v(Z+i)}, {v(Z+i)}" for i in range(4)]
        work += [f"v_pk_add_f32 {v(Z+i,2)}, {v(Z+i,2)}, 1.0 op_sel_hi:[1,0]" for i in (0, 2)]
        work += [f"v_rcp_f32 {v(Z+i)}, {v(Z+i)}" for i in range(4)]
        work += [pk("mul", AD + r0 + i, [AD + r0 + i, Z + i]) for i in (0, 2)]
    def w18():
        a(f"s_cmp_ge_u32 {s(S_WV)}, 2")
        a(f"s_cbranch_scc1 {pfx}_now5")
        for x in g.wdma(2): a.ext(x)
        a(f"{pfx}_now5:")
        vm.mark("w18")
    if not Cfg.sls:
        for i, it in enumerate(W(17)):
            put(it); a.ext(work[16*i:16*i+16])
        w18(); work = []
    setprio(a, Cfg.prioT)
    SCR = 2 * 20480 + 2 * 5120
    vZ = 42
    adr = [f"s_add_u32 {s(sF3)}, {s(sF3)}, {65536 if Cfg.two else 0}",
           f"v_lshrrev_b32 {v(vTW)}, 4, {v(vL)}", f"v_and_b32 {v(vTR)}, 0xff, {v(vF)}",
           f"s_mul_i32 {s(sT0)}, {s(S_WV)}, 2560", f"s_add_u32 {s(sT0)}, {s(sT0)}, {SCR}",
           f"v_mul_u32_u24 {v(vTR)}, 10, {v(vTR)}", f"v_mad_u32_u24 {v(vTW)}, {v(vTW)}, 40, {v(vTR)}", f"v_add_u32 {v(vTW)}, {s(sT0)}, {v(vTW)}",
           f"v_add_u32 {v(vTR)}, {s(sT0)}, {v(vF)}", f"s_movk_i32 {s(sT1)}, 1120"]
    for i in range(3):
        adr += [f"v_add_u32 {v(vO+i)}, {64*i}, {v(vL)}", f"v_mul_u32_u24 {v(vZ)}, 6554, {v(vO+i)}", f"v_lshrrev_b32 {v(vZ)}, 16, {v(vZ)}",
                f"v_lshlrev_b32 {v(vO+i)}, 4, {v(vO+i)}", f"v_mad_u32_u24 {v(vO+i)}, {v(vZ)}, {s(sT1)}, {v(vO+i)}"]
    stamp(a, "wo_ready")
    ol = W(17) + [(None, w18)] if Cfg.sls else []
    order = [(k, mt) for k in range(15) for mt in range(5)] + [(k, mt) for mt in range(5) for k in range(15, 20)]
    posn = {x: n for n, x in enumerate(order)}
    reads = sorted(((k, mt) for k in range(5, 20) for mt in range(5)), key=lambda x: posn[x])
    NB = Cfg.nb
    unp = [f"v_lshlrev_b32 {v(U+2*j)}, 16, {v(XR+j)}" if h == 0 else f"v_and_b32 {v(U+2*j+1)}, 0xffff0000, {v(XR+j)}" for j in range(10) for h in range(2)]
    def fin(mt):
        return [f"v_fma_f32 {v(U+4*mt+i)}, {v(AS+4*mt+i)}, {v(AD+4*mt+i)}, {v(U+4*mt+i)}" for i in range(4)] + \
               [f"v_cvt_pk_bf16_f32 {v(XR+2*mt+j)}, {v(U+4*mt+2*j)}, {v(U+4*mt+2*j+1)}" for j in range(2)]
    fq = []; nread = 0
    def wr(mt):
        lg.add(("w", mt)); a(f"ds_write_b64 {v(vTW)}, {v(XR+2*mt,2)} offset:{8*mt}")
    if not Cfg.two:
        for it in ol:
            put(it); a.ext(adr[:5]); adr = adr[5:]
        a.ext(adr); adr = []
        flag_chk("3", vFl, sF3, vFr, Cfg.p3s, Cfg.prioGv, None)()
        a("s_barrier")
        stamp(a, "o_go")
        ol = L(0) + L(1) + L(2) + L(3)
        per = -(-len(work) // Cfg.onl)
        for i in range(Cfg.onl):
            put(ol.pop(0))
            if i >= Cfg.sl0: a.ext(work[:per]); work = work[per:]
        a.ext(work)
    a(f"s_waitcnt vmcnt({vm.n(('O', 0))})")
    if not Cfg.two: stamp(a, "o_first")
    seenO = {0, 10} if Cfg.two else {0}
    unp = adr + unp
    XN = 50 if Cfg.two else 56
    for n, (k, mt) in enumerate(order):
        if n == XN and Cfg.xl and not Cfg.two:
            a(f"s_waitcnt vmcnt({vm.n('X')})")
            for m in range(5):
                lg.add(("x", m)); a(f"ds_read_b64 {v(XR+2*m,2)}, {v(vTW)} offset:{8*m}")
        if n == 50 and Cfg.two:
            for x in [x for x in reads if x[0] < 15]:
                reads.remove(x); rd(SETS[x[0] % 5], 54 + x[0], x[1]); nread += 1
            if not Cfg.xl: a.ext(unp); unp = []
            setprio(a, Cfg.prioGv)
            stamp(a, "o_mid")
            flag_chk("3", vFl, sF3, vFr, Cfg.p3s, Cfg.prioGv, None)()
            a("s_barrier")
            stamp(a, "o_go")
            ol = L(2) + L(3)
            per = -(-len(work) // Cfg.onl)
            for i in range(Cfg.onl):
                put(ol.pop(0))
                if i >= Cfg.sl0: a.ext(work[:per]); work = work[per:]
            a.ext(work)
            a(f"s_waitcnt vmcnt({vm.n(('O', 10))})")
            stamp(a, "o_first")
            if Cfg.xl:
                for m in range(5):
                    lg.add(("x", m)); a(f"ds_read_b64 {v(XR+2*m,2)}, {v(vTW)} offset:{8*m}")
        a(mf16(AS + 4 * mt, SETS[k % 5] + 4 * mt, OF(k), "0" if k == 0 else None))
        w = []
        if n < 99:
            k2, m2 = order[n + 1]
            if k2 not in seenO: w.append(f"vmcnt({vm.n(('O', k2))})"); seenO.add(k2)
            if n == NB: w.append(f"vmcnt({vm.n('w18')})")
            if k2 >= 5: w.append(f"lgkmcnt({min(14, lg.n((54 + k2, m2)), lg.n(('x', 4)) if (Cfg.xl and n == XN + 7) else 14)})")
        if w: a("s_waitcnt " + " ".join(w))
        if n == NB: a("s_barrier")
        if n == NB + 1 and Cfg.two: flag_req("3", vFl, sF3, vFr)()
        if Cfg.xl and n in (NB + 2, NB + 4, NB + 6):
            i = (n - NB - 2) // 2
            assert len(unp) <= 20
            a(f"s_add_u32 m0, {s(sT0)}, {i*1024}")
            a("s_mov_b32 exec_hi, 0" if i == 2 else "s_nop 0")
            a(f"buffer_load_dwordx4 {v(vO+i)}, {s(SX,4)}, {s(sT3)} offen lds"); vm.add("X")
            if i == 2: a("s_mov_b32 exec_hi, -1")
        slots = 2
        ok = [x for x in reads if posn[(x[0] - 5, x[1])] <= n and (x[0] < 14 or n >= NB)]
        if ok and ((n >= 50 and Cfg.two) or nread * Cfg.rpn <= n * 10 or posn[ok[0]] - n <= 10):
            x = ok[0]; reads.remove(x); rd(SETS[x[0] % 5], 54 + x[0], x[1]); nread += 1; slots -= 1
        if ol and n % (Cfg.oln if (n >= 50 or not Cfg.two) else 3) == 0:
            put(ol.pop(0)); slots -= 1
        if n >= 83 and (n - 83) % 5 == 0: fq += fin((n - 83) // 5) + [(n - 83) // 5]
        while slots > 0 and ((unp and (len(unp) > 20 or n >= (XN + 7 if Cfg.xl else 26))) or fq):
            x = unp.pop(0) if unp else fq.pop(0)
            if isinstance(x, int): wr(x)
            else: a(x)
            slots -= 1
    assert not reads and not ol and not unp
    stamp(a, "wo_done")
    for x in fq:
        if isinstance(x, int): wr(x)
        else: a(x)
    a("s_nop 2")
    a.ext(fin(4)); wr(4)
    for i in range(3): a(f"ds_read_b128 {v(U+4*i,4)}, {v(vTR)} offset:{i*1024}")
    for i in range(3):
        a(f"s_waitcnt lgkmcnt({2-i})")
        if Cfg.diag and i == 0:
            a(f"s_or_b32 {s(sT0)}, s2, {s(S_WV)}")
            a(f"s_cmp_lg_u32 {s(sT0)}, 0")
            a(f"s_cbranch_scc1 {pfx}_nodiag")
            a("s_waitcnt lgkmcnt(0)")
            a(f"s_add_u32 s52, {s(P_WS)}, 0x8000000")
            a(f"s_addc_u32 s53, {s(P_WS+1)}, 0")
            a("s_load_dwordx2 s[60:61], s[52:53], 0")
            a("s_memrealtime s[58:59]")
            a("s_waitcnt lgkmcnt(0)")
            a("s_cmp_eq_u32 s60, s61")
            a(f"s_cbranch_scc1 {pfx}_nodiag")
            a("s_getreg_b32 s60, hwreg(HW_REG_XCC_ID)")
            a("s_and_b32 s60, s60, 15")
            a(f"v_lshlrev_b32 v200, 6, {v(vL)}")
            a(f"s_mov_b32 s61, {FH_OFF + 4}")
            a(f"buffer_load_dword v201, v200, {s(S_WS,4)}, s61 offen sc1")
            a("s_waitcnt vmcnt(0)")
            for x in range(8): a(f"v_readlane_b32 {s(70+x)}, v201, {x}")
            a("s_nop 3")
            a("s_mov_b32 s80, s70"); a("s_mov_b32 s81, s70"); a("s_mov_b32 s82, 0")
            for x in range(1, 8):
                a(f"s_min_u32 s80, s80, {s(70+x)}")
                a(f"s_cmp_gt_u32 {s(70+x)}, s81"); a(f"s_cselect_b32 s82, {x*100}, s82")
                a(f"s_max_u32 s81, s81, {s(70+x)}")
            d = Cfg.diag
            if d == 1: a("s_mul_i32 s60, s60, 100")
            if d == 2: a("s_sub_u32 s60, 7, s60"); a("s_mul_i32 s60, s60, 100")
            if d == 3: a("s_sub_u32 s60, s81, s80")
            if d == 4: a("s_sub_u32 s60, s70, s80")
            if d == 5: a("s_mov_b32 s60, s82")
            if d == 6: a("s_sub_u32 s60, s58, s80")
            a("s_mov_b64 exec, 1")
            a(f"v_cvt_f32_u32 v200, s60")
            a(f"v_mul_f32 v200, {f2u(0.01)}, v200")
            a(f"v_add_f32 v200, 4.0, v200")
            a(f"v_cvt_pk_bf16_f32 {v(U)}, v200, v200")
            a("s_mov_b64 exec, -1")
            a(f"{pfx}_nodiag:")
        if i == 2: a("s_mov_b32 exec_hi, 0")
        a(f"buffer_store_dwordx4 {v(U+4*i,4)}, {v(vO+i)}, {s(SO,4)}, {s(sT3)} offen" + ("", " sc1", " nt", " sc0 sc1")[Cfg.ost])
    a(f"s_branch {pfx}_end")
    for b in ool: a.lines += b.lines
    a(f"{pfx}_end:")


class K2:
    vL, vF, vF2, vW4, vXO = 1, 2, 3, 4, 5
    vBA, vBR, vFA, vFR, vFl = 6, 10, 7, 8, 0
    vH = 12
    AD, BUF, XR = 16, 96, 240
    sRT, sC8, sM, sW, sH, sPB, sWo = 41, 42, 43, 44, 45, 49, 50
    sT0, sT1, sT2, sT3 = 54, 55, 56, 57
    @staticmethod
    def loads(j):
        g = K2; b = g.BUF + 36 * (j % Cfg.skn); o = []
        for i in range(5):
            o.append([f"buffer_load_dwordx4 {v(b+16+4*i,4)}, {v(g.vF if i < 4 else g.vW4)}, {s(S_WS,4)}, {s(g.sW)} offen offset:{(i&3)*1024 if i < 4 else 0} sc1"])
            if i < 4: o.append([f"buffer_load_dwordx4 {v(b+4*i,4)}, {v(g.vH+i)}, {s(S_WS,4)}, {s(g.sH)} offen sc1"])
        o[-1] += [f"s_add_u32 {s(g.sW)}, {s(g.sW)}, 20480", f"s_add_u32 {s(g.sH)}, {s(g.sH)}, 4096"]
        return o

def k2_start(a, pfx, valu, stores):
    g = K2
    vL, sT0, sT1, sT2 = g.vL, g.sT0, g.sT1, g.sT2
    a(f"s_lshr_b32 {s(g.sC8)}, s2, 5")
    a(f"s_and_b32 {s(sT1)}, s2, 7")
    a(f"s_bfe_u32 {s(sT0)}, s2, {3 | (2<<16)}")
    a(f"s_lshl2_add_u32 {s(g.sRT)}, {s(sT1)}, {s(sT0)}")
    a(f"s_mul_i32 {s(g.sW)}, {s(g.sC8)}, {74*5120}")
    a(f"s_mul_i32 {s(g.sM)}, {s(S_WV)}, 5120")
    a(f"s_add_u32 {s(g.sW)}, {s(g.sW)}, {s(g.sM)}")
    a(f"s_add_u32 {s(g.sW)}, {s(g.sW)}, {WR_OFF}")
    a(f"s_add_u32 {s(g.sWo)}, {s(g.sW)}, {54*5120}")
    a(f"s_mul_i32 {s(g.sH)}, {s(g.sRT)}, {4*55296}")
    a(f"s_lshl_b32 {s(sT0)}, {s(S_WV)}, 10")
    a(f"s_add_u32 {s(g.sH)}, {s(g.sH)}, {s(sT0)}")
    a(f"s_add_u32 {s(g.sH)}, {s(g.sH)}, {H_OFF}")
    a(f"v_lshlrev_b32 {v(g.vF)}, 4, {v(vL)}")
    a(f"v_add_u32 {v(g.vW4)}, 4096, {v(g.vF)}")
    for i in range(4):
        a(f"s_add_u32 {s(sT0)}, {s(S_WV)}, {i}")
        a(f"s_and_b32 {s(sT0)}, {s(sT0)}, 3")
        a(f"s_mul_i32 {s(sT0)}, {s(sT0)}, 55296")
        a(f"v_add_u32 {v(g.vH+i)}, {s(sT0)}, {v(g.vF)}")
    a(f"s_mov_b32 {s(sT0)}, 0")
    a(f"s_cmp_eq_u32 {s(S_WV)}, 0")
    a(f"s_cselect_b32 {s(g.sPB)}, {0 if valu else -1}, -1")
    a("s_waitcnt vmcnt(0) lgkmcnt(0)")
    a(f"s_cbranch_scc0 {pfx}_p4_ok")
    a(f"v_cmp_ne_u32 vcc, {v(g.vFR)}, {v(V_NONCE)}")
    a("s_nop 1")
    a(f"s_cbranch_vccz {pfx}_p4_ok")
    poll(a, f"{pfx}_p4", g.vFA, sT0, g.vFR, sT2, Cfg.p4s)
    a("s_barrier")
    stamp(a, "h_go")
    work = list(valu) + [
        f"v_add_u32 {v(g.vF2)}, {3*20480}, {v(g.vF)}",
        f"v_and_b32 {v(g.vFR)}, 15, {v(vL)}",
        f"v_mul_u32_u24 {v(g.vXO)}, 1280, {v(g.vFR)}",
        f"v_lshrrev_b32 {v(g.vFR)}, 4, {v(vL)}",
        f"v_mad_u32_u24 {v(g.vXO)}, {v(g.vFR)}, 40, {v(g.vXO)}",
        f"v_and_b32 {v(g.vFl)}, 31, {v(vL)}",
        f"v_lshlrev_b32 {v(g.vFl)}, 6, {v(g.vFl)}",
        f"v_min_u32 {v(g.vBA)}, 11, {v(vL)}",
        f"s_lshr_b32 {s(sT0)}, {s(g.sRT)}, 1", f"s_lshl_b32 {s(sT0)}, {s(sT0)}, 10", f"s_add_u32 {s(sT0)}, {s(sT0)}, {F2B_OFF}",
        f"v_lshl_add_u32 {v(g.vBA)}, {v(g.vBA)}, 6, {s(sT0)}",
        f"s_lshr_b32 {s(sT0)}, s2, 7", f"s_lshl_b32 {s(sT0)}, {s(sT0)}, 12", f"s_add_u32 {s(sT0)}, {s(sT0)}, {F4_OFF}",
        f"s_mov_b32 exec_lo, 0\nv_lshl_add_u32 {v(g.vBA)}, {v(vL)}, 6, {s(sT0)}\ns_mov_b32 exec_lo, -1"]
    if Cfg.sks == 0:
        parts = [(g.loads(0) + g.loads(1), work, stores)]
    else:
        parts = [(g.loads(0), work[:len(valu)], stores), (g.loads(1), work[len(valu):], [])]
    for groups, wk, st in parts:
        per = -(-len(wk) // len(groups))
        for gr in groups:
            a.ext(gr); a.ext(wk[:per]); wk = wk[per:]
        a.ext(st)
    a(f"s_waitcnt vmcnt({9 + len(stores)})")

def gen_k2(a, pfx):
    g = K2
    vL, vF, vF2, vW4, vXO, XR, AD, vFl = g.vL, g.vF, g.vF2, g.vW4, g.vXO, g.XR, g.AD, g.vFl
    sRT, sC8, sM, sPB, sWo = g.sRT, g.sC8, g.sM, g.sPB, g.sWo
    sT0, sT1, sT2, sT3 = g.sT0, g.sT1, g.sT2, g.sT3
    sOL, sF3, sZ, sOH, sOG = 46, 47, 48, 58, 96
    AS = 36; RT = 176
    SETS = (96, 116, 136, 156, 76)
    OF = lambda k: 216 + 4 * k if k < 6 else 56 + 4 * (k - 6) if k < 10 else 176 + 4 * (k - 10)
    U = 216; Z = 72
    TWO = Cfg.two; LS = 256 if TWO else 512
    vFr, vOL, vTW, vTR, vO = 8, 9, 250, 251, 252
    SX, SO = S_A, S_B
    NS = Cfg.skn
    vm, lg = Trk(), Trk()
    ool = []
    def put(it):
        tag, lines = it
        if callable(lines): lines(); return
        a.ext(lines)
        if tag: vm.add(tag)
    def wave0(name, cond, body):
        def f():
            a(f"s_cmp_eq_u32 {s(cond)}, 0"); a(f"s_cbranch_scc1 {pfx}_{name}"); a(f"{pfx}_{name}r:")
            b = Asm(); b(f"{pfx}_{name}:"); body(b); b(f"s_branch {pfx}_{name}r"); ool.append(b)
        return f
    def flag_req(name, vaddr, soff, vres):
        def body(b):
            vm.mark(name); b(f"buffer_load_dword {v(vres)}, {v(vaddr)}, {s(S_WS,4)}, {s(soff)} offen sc1")
        return wave0("q" + name, S_WV, body)
    def flag_chk(name, vaddr, soff, vres, sleep, prio, st):
        def body(b):
            setprio(b, Cfg.prioGv)
            b(f"s_waitcnt vmcnt({vm.n(name)})")
            b(f"v_cmp_ne_u32 vcc, {v(vres)}, {v(V_NONCE)}")
            b("s_nop 1")
            b(f"s_cbranch_vccz {pfx}_p{name}_ok")
            poll(b, f"{pfx}_p{name}", vaddr, soff, vres, sT2, sleep, g.vBR if (name == "3" and Cfg.pp3) else None)
            setprio(b, prio)
            if st: stamp(b, st)
        return wave0("c" + name, S_WV, body)
    def wo_dma(stage, slot):
        o = [[f"s_add_u32 m0, {s(sM)}, {slot*20480}", "s_nop 0"]]
        for i in range(4): o.append([f"buffer_load_dwordx4 {v(vF)}, {s(S_WS,4)}, {s(sWo)} offen offset:{i*1024} sc1 lds"])
        o[0] += o.pop(1)
        o.append([f"s_add_u32 m0, {s(sM)}, {slot*20480+4096}", "s_nop 0",
                  f"buffer_load_dwordx4 {v(vW4)}, {s(S_WS,4)}, {s(sWo)} offen sc1 lds", f"s_add_u32 {s(sWo)}, {s(sWo)}, 20480"])
        return [(("wo", stage), x) for x in o]
    def rd(d, j, mt):
        off = (j * 5120 if j < 12 else (j - 16) * 5120 if j >= 16 else (j - 12) * 5120) + mt * 1024
        lg.add((j, mt))
        a(f"ds_read_b128 {v(d+4*mt,4)}, {v(vF2 if 12 <= j < 16 else vF)} offset:{off}")
    B = lambda j: [(("B", j), x) for x in g.loads(j)]
    sal = lambda *l: (None, list(l))
    for j in range(2):
        for x in B(j): vm.add(x[0])
        if j == 1 - min(Cfg.sks, 1): vm.mark("hst")
    setprio(a, Cfg.prioD)
    LD = NS - 1
    PJ = Cfg.skp2
    items = {j: (B(j + LD) if j + LD < 13 else []) for j in range(14)}
    if NS == 4: items[0] = B(2) + B(3)
    def last_loads():
        a(f"s_cmp_ge_u32 {s(S_WV)}, 2"); a(f"s_cbranch_scc1 {pfx}_nl13")
        for x in g.loads(13): a.ext(x)
        a(f"{pfx}_nl13:"); vm.mark("B13")
    items[13 - LD] = [(None, last_loads)]
    CJ = 8 - LD
    t_ = Asm(); srd(t_, SX, P_X, 2048 * 1280); srd(t_, SO, P_OUT, 2048 * 1280)
    items[1] += [sal(f"s_mov_b32 {s(sZ)}, 0", *[x.strip() for x in t_.lines])]
    items[2] += [sal(f"s_lshl_b32 {s(sOL)}, {s(sRT)}, 14", f"s_and_b32 {s(sT0)}, {s(S_WV)}, 1", f"s_lshl_b32 {s(sT0)}, {s(sT0)}, {3 if TWO else 8}",
                     f"s_add_u32 {s(sOL)}, {s(sOL)}, {s(sT0)}", f"s_lshr_b32 {s(sT0)}, {s(S_WV)}, 1", f"s_lshl_b32 {s(sT0)}, {s(sT0)}, {13 if TWO else 3}",
                     f"s_add_u32 {s(sOL)}, {s(sOL)}, {s(sT0)}",
                     f"s_lshl_b32 {s(sF3)}, {s(sRT)}, 11", f"s_add_u32 {s(sF3)}, {s(sF3)}, {F3_OFF}",
                     f"s_lshl2_add_u32 {s(sRT)}, {s(sRT)}, {s(S_WV)}", f"s_lshl_b32 {s(sT0)}, {s(sRT)}, 14",
                     *[f"s_add_u32 {s(sOH+q)}, {s(sT0)}, {O_OFF + 4096*q}" for q in range(4)],
                     *[f"s_add_u32 {s(sOG+q)}, {s(sOL)}, {OL_OFF + 8*LS*q}" for q in range(4)],
                     f"s_mul_i32 {s(sT3)}, {s(sRT)}, {16*1280}", f"s_mul_i32 {s(sT1)}, {s(sC8)}, 160", f"s_add_u32 {s(sT3)}, {s(sT3)}, {s(sT1)}")]
    items[CJ - 1] = [(None, flag_req("2", g.vBA, sZ, g.vBR))] + items[CJ - 1]
    xl = [(("X", 0), [f"buffer_load_dwordx{n} {v(XR+o,n)}, {v(vXO)}, {s(SX,4)}, {s(sT3)} offen offset:{4*o}"]) for o, n in ((0, 4), (4, 4), (8, 2))]
    late = wo_dma(0, 0) + wo_dma(1, 1) + wo_dma(2, 2) + xl
    if Cfg.skl == 0:
        items[13 - LD] += late[:5]; items[12] += late[5:] if LD == 2 else late[12:]
        if LD == 3: items[11] += late[5:12]
    else:
        js = list(range(CJ + Cfg.skl - 1, 12))
        for i, it in enumerate(late[:15]): items[js[i * len(js) // 15]].append(it)
        items[12] += late[15:]
    def L(q):
        return [(("O", 5*q+i), [f"buffer_load_dwordx4 {v(OF(5*q+i),4)}, {v(vF)}, {s(S_WS,4)}, {s(sOH+q)} offen offset:{i*1024} sc1"]) for i in range(4)] + \
               [(("O", 5*q+4), [f"buffer_load_dwordx2 {v(OF(5*q+4)+2*i,2)}, {v(vOL)}, {s(S_WS,4)}, {s(sOG+q)} offen offset:{i*LS} sc1"]) for i in range(2)]
    if TWO: items[12] = [(None, flag_req("a", vFl, sF3, vFr))] + items[12]
    if Cfg.tc & 2:
        def tb(b):
            setprio(b, Cfg.prioGv); b.ext(touch(f"{pfx}_tc1", f"{pfx}_end", 52, g.vFA, g.vFA)); setprio(b, Cfg.prioD)
            b.lines = [l.replace("s_add_u32 s52, s52, g2_tc1-", "s_sub_u32 s52, s52, @").replace("s_addc_u32 s53", "s_subb_u32 s53") for l in b.lines]
            b.lines = [(l.split("@")[0] + l.split("@")[1] + "-g2_tc1") if "@" in l else l for l in b.lines]
        items[8] += [(None, wave0("tc", S_WV, tb))]
    for j in range(14):
        b = g.BUF + 36 * (j % NS)
        if j == 13:
            a(f"{pfx}_tc1:")
            a(f"s_cmp_ge_u32 {s(S_WV)}, 2"); a(f"s_cbranch_scc1 {pfx}_ddone")
        if j > 0 or PJ == 0:
            a(f"s_waitcnt vmcnt({min(vm.n(('B', j) if j < 13 else 'B13'), vm.n('hst') if j == PJ else 63)})")
        if j == 0: stamp(a, "d_issued")
        if j == PJ:
            a("s_barrier"); wave0("pb", sPB, lambda b_: (publish(b_, 100), stamp(b_, "pub2")))()
        if j == CJ:
            flag_chk("2", g.vBA, sZ, g.vBR, Cfg.p2s, Cfg.prioD, "h2_go")(); a("s_barrier")
        pend = list(items[j]); npend = len(pend); done = 0
        prs = [(i, mt) for i in range(4) for mt in range(5)] if Cfg.sko == 0 else [(i, mt) for mt in range(5) for i in range(4)]
        if j >= 12: prs = [(i, mt) for i in (1, 2, 3, 0) for mt in range(5)]
        for n, (i, mt) in enumerate(prs):
            a(mf16(AD + 20 * i + 4 * mt, b + 16 + 4 * mt, b + 4 * i, "0" if j == 0 else None))
            while pend and done * 20 <= n * npend:
                put(pend.pop(0)); done += 1
        assert not pend
    a(f"{pfx}_ddone:")
    setprio(a, Cfg.prioR)
    stamp(a, "d_done")
    a(f"v_add_u32 {v(vTW)}, {s(sM)}, {v(vF2)}")
    a(f"v_lshrrev_b32 {v(vTR)}, 4, {v(vL)}")
    a(f"v_and_b32 {v(vOL)}, 0xff, {v(vF)}")
    a(f"v_lshl_add_u32 {v(vOL)}, {v(vTR)}, {9 if TWO else 10}, {v(vOL)}")
    wr_ = [(j, mt) for j in range(5) for mt in range(5)]
    for r in range(1, 4):
        a(f"s_sub_u32 {s(sT0)}, {s(S_WV)}, {r}")
        a(f"s_and_b32 {s(sT0)}, {s(sT0)}, 3")
        a(f"s_mul_i32 {s(sT0)}, {s(sT0)}, 5120")
        a(f"v_add_u32 {v(vTR)}, {s(sT0)}, {v(vF2)}")
        for mt in range(5): a(f"ds_write_b128 {v(vTW)}, {v(AD+20*r+4*mt,4)} offset:{mt*1024}")
        if r > 1:
            for i in range(0, 20, 2): a(f"v_pk_add_f32 {v(AD+i,2)}, {v(AD+i,2)}, {v(RT+20*(r&1)+i,2)}")
        a("s_waitcnt " + (f"vmcnt({vm.n(('wo', 2))}) " if r == 1 else "") + "lgkmcnt(0)")
        if r == 1 and TWO: flag_chk("a", vFl, sF3, vFr, Cfg.p2s, Cfg.prioR, "o0_go")()
        a("s_barrier")
        for mt in range(5): a(f"ds_read_b128 {v(RT+20*((r+1)&1)+4*mt,4)}, {v(vTR)} offset:{mt*1024}")
        for j, mt in wr_[10*(r-1):10*r]: rd(SETS[j], j, mt)
        if TWO:
            for it in (L(0) + L(1))[4*(r-1):4*r]: put(it)
        if r == 3 and not TWO: flag_req("3", vFl, sF3, vFr)()
        a("s_waitcnt lgkmcnt(0)")
        a("s_barrier")
    SCR = 20480
    adr = [f"v_pk_add_f32 {v(AD+i,2)}, {v(AD+i,2)}, {v(RT+i,2)}" for i in range(0, 20, 2)] + [
           f"v_lshrrev_b32 {v(vTW)}, 4, {v(vL)}", f"v_and_b32 {v(vTR)}, 0xff, {v(vF)}", f"s_add_u32 {s(sF3)}, {s(sF3)}, {65536 if TWO else 0}",
           f"s_mul_i32 {s(sT0)}, {s(S_WV)}, 2560", f"s_add_u32 {s(sT0)}, {s(sT0)}, {SCR}",
           f"v_mul_u32_u24 {v(vTR)}, 10, {v(vTR)}", f"v_mad_u32_u24 {v(vTW)}, {v(vTW)}, 40, {v(vTR)}", f"v_add_u32 {v(vTW)}, {s(sT0)}, {v(vTW)}",
           f"v_add_u32 {v(vTR)}, {s(sT0)}, {v(vF)}", f"s_movk_i32 {s(sT1)}, 1120"]
    for i in range(3):
        adr += [f"v_add_u32 {v(vO+i)}, {64*i}, {v(vL)}", f"v_mul_u32_u24 {v(Z)}, 6554, {v(vO+i)}", f"v_lshrrev_b32 {v(Z)}, 16, {v(Z)}",
                f"v_lshlrev_b32 {v(vO+i)}, 4, {v(vO+i)}", f"v_mad_u32_u24 {v(vO+i)}, {v(Z)}, {s(sT1)}, {v(vO+i)}"]
    wl = wo_dma(3, 3) + wo_dma(4, 0)
    if not TWO:
        for it in wl:
            put(it); a.ext(adr[:4]); adr = adr[4:]
        a.ext(adr); adr = []; wl = []
    else:
        a.ext(adr[:10]); adr = adr[10:]
    stamp(a, "wo_ready")
    def go(groups, first):
        setprio(a, Cfg.prioGv)
        if TWO: a(f"s_waitcnt vmcnt({vm.n(('wo', 4))})")
        flag_chk("3", vFl, sF3, vFr, Cfg.p3s, Cfg.prioGv, None)()
        a("s_barrier")
        stamp(a, "o_go")
        work = []
        for r0 in range(0, 20, 4):
            work += [f"v_mul_f32 {v(Z+i)}, {f2u(-LOG2E)}, {v(AD+r0+i)}" for i in range(4)]
            work += [f"v_exp_f32 {v(Z+i)}, {v(Z+i)}" for i in range(4)]
            work += [f"v_pk_add_f32 {v(Z+i,2)}, {v(Z+i,2)}, 1.0 op_sel_hi:[1,0]" for i in (0, 2)]
            work += [f"v_rcp_f32 {v(Z+i)}, {v(Z+i)}" for i in range(4)]
            work += [pk("mul", AD + r0 + i, [AD + r0 + i, Z + i]) for i in (0, 2)]
        for q in groups: ol.extend(L(q))
        per = -(-len(work) // Cfg.onl)
        for i in range(Cfg.onl):
            put(ol.pop(0))
            if TWO and i < 3:
                for mt in range(5): reads.remove((12 + i, mt)); rd(SETS[(12 + i) % 5], 12 + i, mt)
            if i >= Cfg.sl0: a.ext(work[:per]); work = work[per:]
        a.ext(work)
        a(f"s_waitcnt vmcnt({vm.n(('O', first))})")
        stamp(a, "o_first")
    ol = list(wl)
    order = [(k, mt) for k in range(15) for mt in range(5)] + [(k, mt) for mt in range(5) for k in range(15, 20)]
    posn = {x: n for n, x in enumerate(order)}
    reads = sorted(((k, mt) for k in range(5, 20) for mt in range(5)), key=lambda x: posn[x])
    NB = 50 if TWO else 31
    unp = [f"v_lshlrev_b32 {v(U+2*j)}, 16, {v(XR+j)}" if h == 0 else f"v_and_b32 {v(U+2*j+1)}, 0xffff0000, {v(XR+j)}" for j in range(10) for h in range(2)]
    def fin(mt):
        return [f"v_fma_f32 {v(U+4*mt+i)}, {v(AS+4*mt+i)}, {v(AD+4*mt+i)}, {v(U+4*mt+i)}" for i in range(4)] + \
               [f"v_cvt_pk_bf16_f32 {v(XR+2*mt+j)}, {v(U+4*mt+2*j)}, {v(U+4*mt+2*j+1)}" for j in range(2)]
    fq = []; nread = 0
    unp = adr + unp
    def wr(mt):
        lg.add(("w", mt)); a(f"ds_write_b64 {v(vTW)}, {v(XR+2*mt,2)} offset:{8*mt}")
    if TWO: a(f"s_waitcnt vmcnt({vm.n(('O', 0))})")
    else: go(range(4), 0)
    seenO = {0, 10} if TWO else {0}
    for n, (k, mt) in enumerate(order):
        if n == 50 and TWO:
            for x in [x for x in reads if x[0] < 12]:
                reads.remove(x); rd(SETS[x[0] % 5], x[0], x[1]); nread += 1
            a.ext(unp); unp = []
            stamp(a, "o_mid")
            go((2, 3), 10)
        a(mf16(AS + 4 * mt, SETS[k % 5] + 4 * mt, OF(k), "0" if k == 0 else None))
        w = []
        if n < 99:
            k2, m2 = order[n + 1]
            if k2 not in seenO: w.append(f"vmcnt({vm.n(('O', k2))})"); seenO.add(k2)
            if k2 >= 5: w.append(f"lgkmcnt({min(14, lg.n((k2, m2)))})")
        if w: a("s_waitcnt " + " ".join(w))
        if n == NB and not TWO: a("s_barrier")
        if n == 33 and TWO: flag_req("3", vFl, sF3, vFr)()
        slots = 2
        ok = [x for x in reads if posn[(x[0] - 5, x[1])] <= n and (x[0] < 12 or n >= NB)]
        if ok and ((TWO and n >= 50) or nread * Cfg.rpn <= n * 10 or posn[ok[0]] - n <= 10):
            x = ok[0]; reads.remove(x); rd(SETS[x[0] % 5], x[0], x[1]); nread += 1; slots -= 1
        if ol and n % (3 if (TWO and n < 50) else Cfg.oln) == 0:
            put(ol.pop(0)); slots -= 1
        if n >= 83 and (n - 83) % 5 == 0: fq += fin((n - 83) // 5) + [(n - 83) // 5]
        while slots > 0 and ((unp and (len(unp) > 20 or n >= 26)) or fq):
            x = unp.pop(0) if unp else fq.pop(0)
            if isinstance(x, int): wr(x)
            else: a(x)
            slots -= 1
    assert not reads and not ol and not unp
    stamp(a, "wo_done")
    for x in fq:
        if isinstance(x, int): wr(x)
        else: a(x)
    a("s_nop 2")
    a.ext(fin(4)); wr(4)
    for i in range(3): a(f"ds_read_b128 {v(U+4*i,4)}, {v(vTR)} offset:{i*1024}")
    for i in range(3):
        a(f"s_waitcnt lgkmcnt({2-i})")
        if i == 2: a("s_mov_b32 exec_hi, 0")
        a(f"buffer_store_dwordx4 {v(U+4*i,4)}, {v(vO+i)}, {s(SO,4)}, {s(sT3)} offen")
    a(f"s_branch {pfx}_end")
    for b in ool: a.lines += b.lines
    a(f"{pfx}_end:")

def kd(name, nv=256):
    return f""".amdhsa_kernel {name}
  .amdhsa_next_free_vgpr {nv}
  .amdhsa_next_free_sgpr 102
  .amdhsa_accum_offset {nv}
  .amdhsa_group_segment_fixed_size 0
  .amdhsa_kernarg_size 80
  .amdhsa_user_sgpr_count 2
  .amdhsa_user_sgpr_kernarg_segment_ptr 1
  .amdhsa_system_sgpr_workgroup_id_x 1
  .amdhsa_float_denorm_mode_32 3
.end_amdhsa_kernel
"""
def head(a, name, n):
    a(f".globl {name}"); a(".p2align 8"); a(f".type {name},@function"); a(f"{name}:")
    a(f"s_cmp_ge_u32 s2, {n}")
    a(f"s_cbranch_scc1 {name}_end")
    load_args(a)
def tail(a, name):
    a(f"{name}_end:"); a("s_endpgm")

def build1():
    Cfg.fused = True
    a = Asm()
    name = NAME + "_kernel"
    a("; @launch grid=(512,1,1) block=(256,1,1) lds=81920")
    a('.amdgcn_target "amdgcn-amd-amdhsa--gfx950"')
    a(".text")
    head(a, name, 512)
    if Cfg.cpf == 2:
        a("s_getpc_b64 s[54:55]")
        a("L_pc:")
        a("s_and_b32 s56, s2, 0x1f8")
        a("v_lshrrev_b32 v2, 5, v0")
        a("v_and_b32 v3, 1, v0")
        a("v_add3_u32 v2, v2, v3, s56")
        a("v_lshlrev_b32 v2, 7, v2")
        a(f"v_min_u32 v2, {name}_end-L_pc, v2")
        a("s_mov_b64 exec, 3")
        a("global_load_dword v255, v2, s[54:55]")
        a("s_mov_b64 exec, -1")
    a("s_cmp_ge_u32 s2, 256")
    a("s_cbranch_scc1 L_att")
    stamp_begin(a, 0); stamp(a, "start"); gen_g1(a, "g1"); (gen_k2 if Cfg.sk else gen_g2)(a, "g2"); stamp_end(a, 0, 2)
    a("s_endpgm")
    a("L_att:")
    stamp_begin(a, 1); stamp(a, "start"); (gen_att if Cfg.two else gen_att1)(a, "att", 2); stamp_end(a, 1, 2)
    tail(a, name)
    a('.section .rodata,"a"')
    a(".p2align 6"); a.lines.append(kd(name))
    return a.text()

if __name__ == "__main__":
    if "--stamps" in sys.argv:
        sys.argv.remove("--stamps"); STAMPS = True
    if "--lite" in sys.argv:
        sys.argv.remove("--lite"); STAMPS = True; LITE = True
    if "--cyc" in sys.argv:
        sys.argv.remove("--cyc"); STAMPS = "cyc"
    three = "--three" in sys.argv
    if three: sys.argv.remove("--three")
    for x in list(sys.argv):
        if "=" in x:
            k_, v_ = x.split("="); setattr(Cfg, k_, int(v_)); sys.argv.remove(x)
    t = build1()
    if STAMPS:
        import json; json.dump(St.names, open(sys.argv[1].replace(".s", ".json"), "w"))
    out = sys.argv[1] if len(sys.argv) > 1 else f"cdna_kernels/{NAME}.s"
    body = t[:t.index('.section .rodata')]
    pr = check_hazards(body)
    for p in pr: print("HAZARD", p)
    open(out, "w").write(t)
    print("written", out, len(t), "bytes;", len(pr), "hazards")
```

```python
import sys, math, struct, re
from asmlib import *

NAME = "recurrent_scan__softmax_full_mha__geglu_ffn__prompt"
QK_OFF = 0
V_OFF = 160 * 32768
H_OFF = V_OFF + 32 * 81920
O_OFF = H_OFF + 128 * 55296
OL_OFF = O_OFF + 128 * 16384
FLAG_OFF = O_OFF + 128 * 20480
def f2u(x): return "0x%08x" % struct.unpack("<I", struct.pack("<f", x))[0]
LOG2E = math.log2(math.e)
QSCALE = 20 ** -0.5 * LOG2E
GC0 = -2.0 * LOG2E * math.sqrt(2.0 / math.pi)
GC1 = GC0 * 0.044715
SC1 = " sc1"

P_X, P_WQKV, P_WO, P_WG, P_WU, P_WD, P_OUT, P_DBG, P_WS = 4, 6, 8, 12, 14, 16, 18, 20, 22
S_WS = 24
S_A = 28
S_B = 32
S_C = 36
S_WV = 40

def srd(a, d, p, nbytes):
    a(f"s_mov_b32 {s(d)}, {s(p)}")
    a(f"s_mov_b32 {s(d+1)}, {s(p+1)}")
    a(f"s_mov_b32 {s(d+2)}, {nbytes}")
    a(f"s_mov_b32 {s(d+3)}, 0x00020000")

WR_OFF = FLAG_OFF
FLAG_OFF = WR_OFF + 8 * 74 * 5120
F4_OFF = FLAG_OFF + 32768 + 131072
F2B_OFF = F4_OFF + 8192
F1_OFF = FLAG_OFF
F2_OFF = FLAG_OFF + 16384
F3_OFF = FLAG_OFF + 32768
FH_OFF = F2B_OFF + 16384
F0_OFF = FH_OFF + 16384
F5_OFF = F0_OFF + 16384
FP_OFF = F5_OFF + 8192
FX_OFF = FP_OFF + 32768
WS_BYTES = FX_OFF + 256 * 4352
V_NONCE = 11
class Cfg:
    fused = True
    prioA = 1; prioGm = 0; prioGv = 2; prioD = 0
    rot = True
    ns = 3; drot = 0; cpf = 2; nw0 = 2; pubk = 3; aord = 1; x_norl = 0; hiN = 0; p3s = 1; p4s = 8; p2s = 2; chks = 3; x_hot = 0; x_nokv = 0; wpf = 0; x_nolo = 0; p0s = 16; p1s = 4; prioS = 2; onl = 12; carry = 3; gap = 3; gap0 = 3; x_body = 0; tch = 0; bal = 0; diag = 0; dsel = 0; ost = 0; tlb = 0; lo = 24; hi = 48; pk = 3; otch = 0; lag = 0; mbu = 1; prioE = 3; thl = 3; ths = 3; early = 0; hiL = 5; hiE = 5; rpn = 12; adw = 1; oln = 4; tc = 2; x_gexit = 0; w0e = 0; pzk = 15; tha = -1; fpos = 0; med = 1; hiR = 6; prioB = 1; thq = -1; dyn = 0; gate = 1; hau = 7; nost = 0; prioT = 2; sls = 1; sl0 = 2; nb = 36; lnn = 1; nsl = 2; two = 0; sk = 1; skn = 3; sko = 0; prioR = 2; skl = 1; sks = 1; skp2 = 1; wsc = 0; xsc = 0; pex = 1; pp3 = 0; pp0 = 0; hint = 0; phs = 4; lpro = 1; fst = 64; spoll = 0; gj = -1; hb = 10; cj0 = 0; skf = 1; wgp = 1; spf = 0; spn = 8; mj = 2; lead = 1; x_aexit = 0; x_d = 0; wpre = 0; skp = 1; hpre = 0; xl = 0; dry = 0; arl = 0
def setprio(a, p):
    if Cfg.fused: a(f"s_setprio {p}")
def publish(a, soff):
    a("s_mov_b64 exec, 1")
    a(f"buffer_store_dword {v(V_NONCE)}, off, {s(S_WS,4)}, {s(soff)} sc1")
    a("s_mov_b64 exec, -1")
def poll(a, lbl, vaddr, soff, vt, scnt, sleep, vt2=None):
    ld = lambda d: f"buffer_load_dword {v(d)}, {'off' if vaddr is None else v(vaddr)}, {s(S_WS,4)}, {s(soff)}{'' if vaddr is None else ' offen'} sc1"
    a(f"s_mov_b32 {s(scnt)}, 0x20000")
    if vt2 is not None: a(ld(vt2))
    a(f"{lbl}:")
    for i, (new, old) in enumerate(((vt, vt),) if vt2 is None else ((vt, vt2), (vt2, vt))):
        if vt2 is not None and sleep: a(f"s_sleep {sleep}")
        a(ld(new))
        a(f"s_waitcnt vmcnt({0 if vt2 is None else 1})")
        a(f"v_cmp_ne_u32 vcc, {v(old)}, {v(V_NONCE)}")
        a(f"s_sub_u32 {s(scnt)}, {s(scnt)}, 1")
        a(f"s_cbranch_scc1 {lbl}_ok")
        a(f"s_cbranch_vccz {lbl}_ok")
        if Cfg.pex: a("s_mov_b64 exec, vcc")
    if vt2 is None and sleep: a(f"s_sleep {sleep}")
    a(f"s_branch {lbl}")
    a(f"{lbl}_ok:")
    if Cfg.pex: a("s_mov_b64 exec, -1")
def nonce_load(a, vz):
    a(f"global_load_dword {v(V_NONCE)}, {v(vz)}, {s(P_DBG,2)} sc1")
def nonce_check(a, lbl, vz, st, scnt, ok=None):
    ok = ok or f"{lbl}_ok"
    a(f"s_mov_b32 {s(scnt)}, 0x20000")
    a(f"{lbl}:")
    a(f"v_readfirstlane_b32 {s(st)}, {v(V_NONCE)}")
    a(f"s_sub_u32 {s(scnt)}, {s(scnt)}, 1")
    a(f"s_cbranch_scc1 {ok}")
    a(f"s_cmp_lg_u32 {s(st)}, 0")
    a(f"s_cbranch_scc1 {ok}")
    a(f"s_sleep {Cfg.nsl}")
    a(f"v_mov_b32 {v(vz)}, 0")
    nonce_load(a, vz)
    a("s_waitcnt vmcnt(0)")
    a(f"s_branch {lbl}")
    a(f"{lbl}_ok:")

STAMPS = False
class St:
    n = 0; names = {}; cur = None
LITE = False
def stamp(a, name):
    if not STAMPS or (LITE and name not in ("start", "end")): return
    l = St.names.setdefault(St.cur, [])
    if name not in l: l.append(name)
    i = l.index(name)
    a("s_waitcnt lgkmcnt(0)")
    a("s_memtime s[62:63]" if STAMPS == "cyc" else "s_memrealtime s[62:63]")
    a("s_waitcnt lgkmcnt(0)")
    a(f"s_mov_b32 {s(64+i)}, s62")
def stamp_begin(a, role):
    St.cur = role
    if not STAMPS: return
    for i in range(32 if not LITE else 0): a(f"s_mov_b32 {s(64+i)}, 0")
def stamp_end(a, slot, idreg):
    if not STAMPS: return
    a("s_waitcnt vmcnt(0) lgkmcnt(0)")
    stamp(a, "end")
    a("s_mov_b64 exec, -1")
    a("v_mov_b32 v20, 0")
    for i in range(32 if not LITE else 2): a(f"v_writelane_b32 v20, {s(64+i)}, {i}")
    a(f"s_and_b32 s62, {s(idreg)}, 255")
    a("s_lshl_b32 s62, s62, 2")
    a(f"s_add_u32 s62, s62, {s(S_WV)}")
    a(f"s_add_u32 s62, s62, {slot*1024}")
    a("s_lshl_b32 s62, s62, 7")
    a(f"s_add_u32 s62, s62, {WS_BYTES}")
    a(f"s_mov_b32 {s(S_WS+2)}, {WS_BYTES + (1<<20)}")
    a("v_lshlrev_b32 v21, 2, v1")
    a("s_mov_b32 exec_hi, 0")
    a(f"buffer_store_dword v20, v21, {s(S_WS,4)}, s62 offen")

_tc = [0]
def touch(l0, l1, sp, vaddr, vdst, vL=1):
    _tc[0] += 1; t = f"L_tc{_tc[0]}"
    return [f"s_getpc_b64 {s(sp,2)}", f"{t}:", f"s_add_u32 {s(sp)}, {s(sp)}, {l0}-{t}", f"s_addc_u32 {s(sp+1)}, {s(sp+1)}, 0",
            f"v_lshlrev_b32 {v(vaddr)}, 7, {v(vL)}", f"v_min_u32 {v(vaddr)}, {l1}-{l0}, {v(vaddr)}",
            f"global_load_dword {v(vdst)}, {v(vaddr)}, {s(sp,2)}"]

def pk(op, d, srcs):
    ops = []; lo = []; hi = []
    for x in srcs:
        if x >= 0: ops.append(v(x, 2)); lo.append(0); hi.append(1)
        else:
            r = -x - 1; ops.append(v(r & ~1, 2)); lo.append(r & 1); hi.append(r & 1)
    f = lambda l: "[" + ",".join(map(str, l)) + "]"
    return f"v_pk_{op}_f32 {v(d,2)}, " + ", ".join(ops) + f" op_sel:{f(lo)} op_sel_hi:{f(hi)}"

class Trk:
    def __init__(self): self.l = []
    def add(self, tag): self.l.append(tag)
    def mark(self, tag): self.l.append(("opt", tag))
    def n(self, tag):
        i = max(j for j, t in enumerate(self.l) if t == tag or t == ("opt", tag))
        return min(62, sum(1 for t in self.l[i+1:] if not (isinstance(t, tuple) and t[0] == "opt")))

MODS = ("", " sc1", " nt", " sc0")
def WM(): return " sc1" if Cfg.wpre else MODS[Cfg.wsc]
def load_args(a):
    a("s_load_dwordx16 s[4:19], s[0:1], 0")
    a("s_load_dwordx4 s[20:23], s[0:1], 64")

def gen_g1(a, pfx):
    X, ACC, G, WF = 96, 32, 64, 16
    vL = 1
    vTA, vTB, vTA2, vTB2, vD, vDR, vDCo, vST = 2, 3, 4, 5, 6, 7, 8, 9
    CN = (10, 12, 13, 14, 15, 0)
    vA0, vB0, vK0, vA1, vB1, vK1 = CN
    vA, vB, vK = (vA0, vA1), (vB0, vB1), (vK0, vK1)
    VR, VA = G + 16, G + 24
    sRB, sCG, sTT, sM, sN, sNT, sNQ, sP0 = 41, 42, 43, 44, 45, 46, 47, 48
    sO, sDA, sDB, sDC, sS = 49, 50, 51, 52, 53
    sT0, sT1, sT2, sT3, sSO = 54, 55, 56, 57, 58
    sSW, sCHK, sC2, sPB0, sHI, sURG = 59, 97, 36, 37, 98, 3
    NU = 1 if Cfg.two else 2
    sROT, sXB, sXC, sPUB, sF, sU = 96, 97, 98, 99, 100, 101
    SW = S_B
    t0, t1, t2 = G, G + 1, G + 2
    NL = 12 if Cfg.med else 10
    a(f"v_and_b32 {v(vL)}, 63, v0")
    a(f"v_lshrrev_b32 {v(t2)}, 6, v0")
    a(f"s_and_b32 {s(sT0)}, s2, 7")
    a(f"v_readfirstlane_b32 {s(S_WV)}, {v(t2)}")
    a(f"s_lshr_b32 {s(sT1)}, s2, 3")
    a(f"s_lshr_b32 {s(sRB)}, {s(sT0)}, 1")
    a(f"s_lshl_b32 {s(sRB)}, {s(sRB)}, 2")
    a(f"s_and_b32 {s(sROT)}, {s(sT1)}, 3")
    a(f"s_add_u32 {s(sRB)}, {s(sRB)}, {s(sROT)}")
    a(f"s_lshr_b32 {s(sT2)}, {s(sT1)}, 2")
    if Cfg.rot == 2: a(f"s_mov_b32 {s(sROT)}, {s(sT2)}")
    elif Cfg.rot == 3:
        a(f"s_and_b32 {s(sROT)}, {s(sROT)}, 1")
        a(f"s_lshl_b32 {s(sROT)}, {s(sROT)}, 1")
        a(f"s_add_u32 {s(sROT)}, {s(sROT)}, {s(sT2)}")
    else: a(f"s_add_u32 {s(sROT)}, {s(sROT)}, {s(sT2)}")
    a(f"s_lshl_b32 {s(sTT)}, {s(sRB)}, 2")
    a(f"s_add_u32 {s(sTT)}, {s(sTT)}, {s(S_WV)}")
    a(f"s_mul_i32 {s(sT3)}, {s(sROT)}, 13")
    a(f"s_lshr_b32 {s(sT3)}, {s(sT3)}, 6")
    a(f"s_mul_i32 {s(sT3)}, {s(sT3)}, 5")
    a(f"s_sub_u32 {s(sROT)}, {s(sROT)}, {s(sT3)}")
    if not Cfg.rot: a(f"s_mov_b32 {s(sROT)}, 0")
    vXA = ACC
    a(f"v_lshrrev_b32 {v(t0)}, 4, {v(vL)}")
    a(f"v_mul_u32_u24 {v(vXA)}, 1280, {v(t0)}")
    a(f"v_and_b32 {v(t1)}, 15, {v(vL)}")
    a(f"v_xor_b32 {v(vXA+1)}, {v(t0)}, {v(t1)}")
    a(f"v_lshl_add_u32 {v(vXA)}, {v(vXA+1)}, 4, {v(vXA)}")
    for i in range(1, 4): a(f"v_xor_b32 {v(vXA+i)}, {64*i}, {v(vXA)}")
    a(f"s_lshl_b32 {s(sM)}, {s(S_WV)}, 12")
    a(f"s_mul_i32 {s(sXB)}, {s(sTT)}, 40960")
    a(f"s_lshl_b32 {s(sXC)}, {s(sROT)}, 8")
    XS = (4, 1, 2, 3, 0, 4, 1, 2, 3, 4) if Cfg.w0e else (0, 1, 2, 3, 4, 0, 1, 2, 3, 4)
    def xdma(b):
        out = []
        for i in range(4):
            g = []
            if i == 0:
                g += [f"s_add_u32 m0, {s(sM)}, {XS[b]*16384}", f"s_add_u32 {s(sU)}, {s(sXB)}, {s(sXC)}"]
            g.append(f"buffer_load_dwordx4 {v(vXA+i)}, {s(S_A,4)}, {s(sU)} offen offset:{i*1024}{MODS[Cfg.xsc]} lds")
            if i < 3: g.append(f"s_add_u32 {s(sU)}, {s(sU)}, 4096")
            else:
                g += [f"s_add_u32 {s(sXC)}, {s(sXC)}, 256", f"s_cmp_ge_u32 {s(sXC)}, 1280", f"s_cselect_b32 {s(sXC)}, 0, {s(sXC)}"]
                if b == 4: g.append(f"s_add_u32 {s(sXB)}, {s(sXB)}, 20480")
            out.append(g)
        return out
    su = Asm()
    su(f"s_and_b32 {s(sCG)}, {s(sT0)}, 1")
    su(f"s_add_u32 {s(sCG)}, {s(sCG)}, {s(sT2)}" if Cfg.bal else f"s_lshl_b32 {s(sCG)}, {s(sCG)}, 3")
    su(f"s_add_u32 {s(sCG)}, {s(sCG)}, {s(sT2)}")
    su(f"s_mul_i32 {s(sC2)}, {s(sCG)}, 52")
    su(f"s_lshr_b32 {s(sC2)}, {s(sC2)}, 8")
    su(f"s_mul_i32 {s(sC2)}, {s(sC2)}, 5")
    su(f"s_add_u32 {s(sC2)}, {s(sCG)}, {s(sC2)}")
    srd(su, S_WS, P_WS, WS_BYTES)
    su(f"s_cmp_lt_u32 {s(sCG)}, 15\ns_cselect_b32 {s(sNQ)}, 2, 0\ns_cselect_b32 {s(sSW)}, 1, -1@")
    su(f"s_cmp_lt_u32 {s(sCG)}, {NL}\ns_cselect_b32 {s(sNT)}, 6, 4\ns_cselect_b32 {s(sP0)}, 17, 1@")
    if Cfg.med:
        su(f"s_sub_u32 {s(sT0)}, {s(sCG)}, 7")
        su(f"s_lshr_b32 {s(sT1)}, {s(sT0)}, 1")
        su(f"s_sub_u32 {s(sT0)}, {s(sCG)}, 8")
        su(f"s_cmp_lt_u32 {s(sT0)}, 4\ns_cselect_b32 {s(sT1)}, {s(sT1)}, 0\ns_sub_u32 {s(sP0)}, {s(sP0)}, {s(sT1)}@")
    su(f"s_mov_b32 {s(SW+3)}, 0x00020000")
    su(f"s_mov_b32 {s(sN)}, -1")
    vR0, vR4 = ACC + 4, ACC + 8
    vSm, vGr, vNM, vON = ACC + 12, (ACC + 16, ACC + 20), ACC + 24, ACC + 28
    vSE, vBP, vMu = G + 6, G + 5, (G + 12, G + 13)
    CTS = ((WF, WF + 8, G + 16), (ACC, G + 16, ACC + 8))
    sMA, sMB = 60, 38
    su(f"v_xor_b32 {v(vR0)}, {v(t0)}, {v(t1)}")
    su(f"v_lshlrev_b32 {v(vR0)}, 4, {v(vR0)}")
    su(f"v_lshl_add_u32 {v(vR0)}, {v(t1)}, 8, {v(vR0)}")
    su(f"v_add_u32 {v(vR0)}, {s(sM)}, {v(vR0)}")
    for q in range(1, 4): su(f"v_xor_b32 {v(vR0+q)}, {64*q}, {v(vR0)}")
    for q in range(4): su(f"v_add_u32 {v(vR4+q)}, 0x10000, {v(vR0+q)}")
    for i in range(4): su(f"v_mov_b32 {v(vON+i)}, 0x3f803f80")
    for i in (0, 1, 4, 5): su(f"v_mov_b32 {v(vSE+i)}, 0")
    su(f"s_mov_b32 {s(sMA)}, 0xaaaaaaaa"); su(f"s_mov_b32 {s(sMA+1)}, 0xaaaaaaaa")
    su(f"s_mov_b32 {s(sMB)}, 0xcccccccc"); su(f"s_mov_b32 {s(sMB+1)}, 0xcccccccc")
    su(f"v_and_b32 {v(vBP)}, 1, {v(vL)}")
    su(f"v_lshlrev_b32 {v(vBP)}, 4, {v(vBP)}")
    su(f"v_mov_b32 {v(vSE+2)}, 0x3f80")
    su(f"v_lshlrev_b32 {v(vSE+2)}, {v(vBP)}, {v(vSE+2)}")
    su(f"v_bfe_u32 {v(vBP)}, {v(vL)}, 2, 2")
    su(f"v_cmp_eq_u32 vcc, {v(vBP)}, {v(t0)}")
    su(f"v_lshl_add_u32 {v(vBP)}, {v(vBP)}, 4, {v(t1)}")
    su(f"v_lshlrev_b32 {v(vBP)}, 2, {v(vBP)}")
    su(f"v_cndmask_b32 {v(vSE+2)}, 0, {v(vSE+2)}, vcc")
    su(f"v_cndmask_b32 {v(vSE+3)}, 0, {v(vSE+2)}, {s(sMB,2)}")
    su(f"v_cndmask_b32 {v(vSE+2)}, {v(vSE+2)}, 0, {s(sMB,2)}")
    t3, t4 = G + 3, G + 4
    su(f"v_bfe_u32 {v(t3)}, {v(vL)}, 4, 1")
    su(f"v_bfe_u32 {v(t4)}, {v(vL)}, 2, 2")
    su(f"v_lshl_add_u32 {v(vDR)}, {v(t3)}, 3, {v(t4)}")
    su(f"v_lshl_add_u32 {v(vDR)}, {v(t2)}, 5, {v(vDR)}")
    su(f"v_lshlrev_b32 {v(vDCo)}, 1, {v(t3)}")
    su(f"v_and_b32 {v(vD)}, 3, {v(vL)}")
    su(f"v_xor_b32 {v(vDCo)}, {v(vDCo)}, {v(vD)}")
    su(f"v_lshlrev_b32 {v(vDCo)}, 4, {v(vDCo)}")
    su(f"v_lshrrev_b32 {v(t2)}, 5, {v(vL)}")
    su(f"v_lshl_add_u32 {v(vDCo)}, {v(t2)}, 6, {v(vDCo)}")
    su(f"v_lshlrev_b32 {v(vTA)}, 11, {v(t2)}")
    su(f"v_mad_u32_u24 {v(vTA)}, {v(t3)}, {s(sT3)}, {v(vTA)}")
    su(f"v_lshl_add_u32 {v(vTA)}, {v(t4)}, 6, {v(vTA)}")
    su(f"v_lshl_add_u32 {v(vTA)}, {v(vD)}, 3, {v(vTA)}")
    su(f"v_xor_b32 {v(vTB)}, 32, {v(vTA)}")
    su(f"v_add_u32 {v(vTA2)}, 0x10000, {v(vTA)}")
    su(f"v_add_u32 {v(vTB2)}, 0x10000, {v(vTB)}")
    su(f"v_lshl_add_u32 {v(vST)}, {v(t3)}, 1, {v(t2)}")
    su(f"v_lshlrev_b32 {v(vST)}, 15, {v(vST)}")
    su(f"v_lshl_add_u32 {v(vST)}, {v(t1)}, 4, {v(vST)}")
    su(f"s_lshl_b32 {s(sT1)}, {s(sC2)}, 6")
    su(f"s_sub_u32 {s(sT1)}, {s(sT1)}, 1280")
    su(f"s_and_b32 {s(sT1)}, {s(sT1)}, 1023")
    su(f"s_mov_b32 {s(sT2)}, {81920-320}")
    su(f"v_mul_u32_u24 {v(t0)}, 320, {v(t0)}")
    su(f"v_add_u32 {v(t1)}, {s(sT1)}, {v(t1)}")
    for i in range(8):
        su(f"v_mul_u32_u24 {v(t2)}, 3277, {v(t1)}")
        su(f"v_lshrrev_b32 {v(t2)}, 16, {v(t2)}")
        su(f"v_lshl_add_u32 {v(VA+i)}, {v(t1)}, 4, {v(t0)}")
        su(f"v_mad_u32_u24 {v(VA+i)}, {v(t2)}, {s(sT2)}, {v(VA+i)}")
        if i == 3: su(f"v_add_u32 {v(t1)}, 272, {v(t1)}")
        elif i < 7: su(f"v_add_u32 {v(t1)}, 16, {v(t1)}")
    def params_a():
        return [f"s_add_u32 {s(sT0)}, {s(sN)}, 1",
                f"s_sub_u32 {s(sT1)}, {s(sT0)}, {s(sNQ)}",
                f"s_lshr_b32 {s(sT1)}, {s(sT1)}, 1",
                f"s_mul_i32 {s(sT1)}, {s(sT1)}, {s(sP0)}",
                f"s_add_u32 {s(sT1)}, {s(sT1)}, {s(sCG)}",
                f"s_mul_i32 {s(sT2)}, {s(sT0)}, 5",
                f"s_add_u32 {s(sT2)}, {s(sT2)}, {s(sC2)}",
                f"s_movk_i32 {s(sS)}, 3456",
                f"s_cmp_lt_u32 {s(sT0)}, {s(sNQ)}\ns_cselect_b32 {s(sT1)}, {s(sT2)}, {s(sT1)}\ns_cselect_b32 {s(sS)}, 3840, {s(sS)}",
                f"s_mul_i32 {s(sT2)}, {s(sROT)}, {s(sS)}",
                f"s_add_u32 {s(sT1)}, {s(sT1)}, {s(sT2)}"]
    def params_b():
        return [f"s_bitcmp1_b32 {s(sT0)}, 0\ns_cselect_b32 {s(SW)}, {s(P_WU)}, {s(P_WG)}\ns_cselect_b32 {s(SW+1)}, {s(P_WU+1)}, {s(P_WG+1)}",
                f"s_cmp_lt_u32 {s(sT0)}, {s(sNQ)}\ns_cselect_b32 {s(SW)}, {s(P_WQKV)}, {s(SW)}\ns_cselect_b32 {s(SW+1)}, {s(P_WQKV+1)}, {s(SW+1)}",
                f"s_mul_i32 {s(SW+2)}, {s(sS)}, 640",
                f"s_cmp_lt_u32 {s(sT0)}, {s(sNT)}\ns_cselect_b32 {s(SW+2)}, {s(SW+2)}, 0",
                f"s_lshl_b32 {s(sO)}, {s(sT1)}, 7",
                f"s_lshl_b32 {s(sDA)}, {s(sS)}, 2",
                f"s_mul_i32 {s(sDB)}, {s(sS)}, 12",
                f"s_mul_i32 {s(sDC)}, {s(sS)}, 108",
                f"s_sub_u32 {s(sDA)}, {s(sDA)}, 1024",
                f"s_sub_u32 {s(sDB)}, {s(sDB)}, 1024",
                f"s_add_u32 {s(sDC)}, {s(sDC)}, 3072"]
    def params_v(): return f"v_mad_u32_u24 {v(vD)}, {v(vDR)}, {s(sS)}, {v(vDCo)}"
    def wdma(slot):
        out = []
        for i in range(4):
            g = []
            if i == 0: g += [f"s_add_u32 m0, {s(sM)}, {slot*16384}", "s_nop 0"]
            g.append(f"buffer_load_dwordx4 {v(vD)}, {s(SW,4)}, {s(sO)} offen offset:{i*1024}{WM()} lds")
            g.append(f"s_add_u32 {s(sO)}, {s(sO)}, {s((sDA, sDB, sDA, sDC)[i])}")
            if i == 3:
                g += [f"s_cmp_ge_u32 {s(sO)}, {s(SW+2)}", f"s_cselect_b32 {s(sU)}, {s(SW+2)}, 0", f"s_sub_u32 {s(sO)}, {s(sO)}, {s(sU)}"]
            out.append(g)
        return out
    items = []; keep = []
    for l in su.lines:
        l = l.strip()
        if l.startswith("s_cmp"): keep = [l]; continue
        if keep:
            keep.append(l.rstrip("@"))
            if l.endswith("@"): items.append("\n".join(keep)); keep = []
            continue
        items.append(l)
    items += params_a() + params_b() + [params_v()]
    a(f"s_movk_i32 {s(sT3)}, 288")
    a("s_waitcnt lgkmcnt(0)")
    srd(a, S_A, P_X, 2048 * 1280)
    per = -(-len(items) // 16)
    if Cfg.tch & 1:
        a(f"s_mul_i32 {s(sU)}, {s(sT2)}, 2560")
        a(f"s_add_u32 {s(sU)}, {s(sU)}, {s(sXB)}")
        a(f"s_add_u32 {s(sU)}, {s(sU)}, 20480")
        a(f"v_lshlrev_b32 {v(WF)}, 7, {v(vL)}")
        a("s_mov_b64 exec, 0xfffff")
        a(f"buffer_load_dword {v(WF+1)}, {v(WF)}, {s(S_A,4)}, {s(sU)} offen")
        a("s_mov_b64 exec, -1")
    for b in range(5):
        for g in xdma(b):
            a.ext(g)
            if b > 0:
                for _ in range(per):
                    if items: a(items.pop(0))
    assert not items
    if Cfg.tch & 2:
        a(f"s_and_b32 {s(sT0)}, {s(sTT)}, 15")
        a(f"s_mul_i32 {s(sT0)}, {s(sT0)}, 40")
        a(f"s_mul_i32 {s(sT0)}, {s(sT0)}, {s(sS)}")
        a(f"s_mul_i32 {s(sT2)}, {s(sROT)}, {s(sS)}")
        a(f"s_lshl_b32 {s(sT2)}, {s(sT2)}, 7")
        a(f"s_sub_u32 {s(sT2)}, {s(sO)}, {s(sT2)}")
        a(f"s_add_u32 {s(sT0)}, {s(sT0)}, {s(sT2)}")
        a(f"v_mul_u32_u24 {v(WF+2)}, {s(sS)}, {v(vL)}")
        a("s_mov_b32 exec_hi, 0xff")
        a(f"buffer_load_dword {v(WF+3)}, {v(WF+2)}, {s(SW,4)}, {s(sT0)} offen")
        if Cfg.tch & 4: a(f"buffer_load_dword {v(WF+4)}, {v(WF+2)}, {s(SW,4)}, {s(sT0)} offen offset:128")
        a("s_mov_b32 exec_hi, -1")
    def nonce_pub():
        a(f"s_or_b32 {s(sT0)}, s2, {s(S_WV)}")
        a(f"s_cmp_lg_u32 {s(sT0)}, 0")
        a(f"s_cbranch_scc1 {pfx}_nn")
        a(f"s_memrealtime {s(sT0,2)}")
        a("s_waitcnt lgkmcnt(0)")
        a(f"s_or_b32 {s(sT0)}, {s(sT0)}, 1")
        a(f"v_mov_b32 {v(t0)}, 0")
        a(f"v_mov_b32 {v(t1)}, {s(sT0)}")
        a("s_mov_b64 exec, 1")
        a(f"global_store_dword {v(t0)}, {v(t1)}, {s(P_DBG,2)} sc1")
        a("s_mov_b64 exec, -1")
        a(f"{pfx}_nn:")
    if not Cfg.lnn: nonce_pub()
    a(f"s_mov_b32 {s(sN)}, 0")

    def stats(b):
        o = []
        for q in range(4):
            f = X + 16 * b + 4 * q
            first = (b % 5 == 0 and q == 0)
            o.append(mf16(vSm, vON, f, "0" if first else None))
            o.append(mf16(vGr[b // 5], f, f, "0" if first else None))
        return o
    def mean(rt):
        return [f"v_mul_f32 {v(vMu[rt])}, {f2u(-1/640)}, {v(vSm)}",
                f"v_cvt_pk_bf16_f32 {v(vNM)}, {v(vMu[rt])}, {v(vMu[rt])}",
                f"v_lshlrev_b32 {v(vNM)}, 16, {v(vNM)}",
                f"v_mov_b32 {v(vNM+1)}, {v(vNM)}", f"v_mov_b32 {v(vNM+2)}, {v(vNM)}", f"v_mov_b32 {v(vNM+3)}, {v(vNM)}", "s_nop 1"]
    def diag(rt):
        g = vGr[rt]
        return [f"v_cndmask_b32 {v(g)}, {v(g)}, {v(g+1)}, {s(sMA,2)}",
                f"v_cndmask_b32 {v(g+2)}, {v(g+2)}, {v(g+3)}, {s(sMA,2)}",
                f"v_cndmask_b32 {v(g)}, {v(g)}, {v(g+2)}, {s(sMB,2)}",
                f"ds_bpermute_b32 {v(vK[rt])}, {v(vBP)}, {v(g)}"]
    def finalize2(rt):
        k = vK[rt]
        return [f"v_mul_f32 {v(k)}, {f2u(1/640)}, {v(k)}",
                f"v_fma_f32 {v(k)}, -{v(vMu[rt])}, {v(vMu[rt])}, {v(k)}",
                f"v_max_f32 {v(k)}, 0, {v(k)}",
                f"v_cvt_pk_bf16_f32 {v(k)}, {v(k)}, {v(k)}",
                f"v_lshlrev_b32 {v(k)}, 16, {v(k)}",
                f"v_add_f32 {v(k)}, {f2u(1e-5)}, {v(k)}",
                f"v_cvt_pk_bf16_f32 {v(k)}, {v(k)}, {v(k)}",
                f"v_lshlrev_b32 {v(k)}, 16, {v(k)}",
                f"v_sqrt_f32 {v(k)}, {v(k)}", "s_nop 0",
                f"v_cvt_pk_bf16_f32 {v(k)}, {v(k)}, {v(k)}",
                f"v_lshlrev_b32 {v(k)}, 16, {v(k)}",
                f"v_rcp_f32 {v(vA[rt])}, {v(k)}", "s_nop 0",
                f"v_mul_f32 {v(vA[rt])}, {s(sT3)}, {v(vA[rt])}"]
    def center(rt):
        steps = []; CT = CTS[rt]
        for j in range(22):
            m = [[], []]; c = [[], []]
            if j < 20:
                f = X + 80 * rt + 4 * j; d = CT[j % 3]
                m = [[mf16(d, vSE + 2, f, v(vNM, 4))], [mf16(d + 4, vSE, f, v(vNM, 4))]]
            if j >= 2:
                f = X + 80 * rt + 4 * (j - 2); d = CT[(j - 2) % 3]
                cv = [f"v_cvt_pk_bf16_f32 {v(f+i)}, {v(d+2*i)}, {v(d+2*i+1)}" for i in range(4)]
                c = [cv[:2], cv[2:]]
            st = m[0] + c[0] + m[1] + c[1]
            if j in (0, 1): st.append("s_nop 2")
            if j == 20: st.append("s_nop 3")
            steps.append(st)
        return steps
    def weave(steps, groups):
        n = len(groups); done = 0
        for i, st in enumerate(steps):
            a.ext(st[:1])
            while done < n and done * len(steps) <= i * n:
                a.ext(groups[done]); done += 1
            a.ext(st[1:])
        for g in groups[done:]: a.ext(g)
    a(f"s_cmp_lt_u32 {s(sCG)}, 5")
    a(f"s_cselect_b32 {s(sT3)}, {f2u(QSCALE)}, 1.0")
    def xread(b):
        slot = XS[b]
        return [f"ds_read_b128 {v(X+16*b+4*q,4)}, {v((vR4 if slot == 4 else vR0)+q)} offset:{0 if slot == 4 else slot*16384}" for q in range(4)]
    pairs = lambda l: [l[2*i:2*i+2] for i in range(len(l) // 2)]
    NC = Cfg.carry
    wg = [wdma(st) for st in range(4)]
    wg[3] = wg[3][:4 - NC]; wg[3][-1] = wg[3][-1][:-1]
    tk = Trk()
    for b in range(5):
        for _ in range(4): tk.add(("x", b))
    def wx(b): a(f"s_waitcnt vmcnt({tk.n(('x', b))})")
    dq = []
    def popq():
        tag, gr = dq.pop(0); a.ext(gr); tk.add(tag)
    def step(st, pop):
        a.ext(st[:1])
        if pop and dq: popq()
        a.ext(st[1:])
    XD = lambda b: [(("x", b), gr) for gr in xdma(b)]
    WD = lambda st: [(("w", st), gr) for gr in wg[st]]
    E = Cfg.w0e
    wx(0)
    stamp(a, "x0")
    a.ext(xread(0))
    for b in range(5):
        if b < 4:
            wx(b + 1); a.ext(xread(b + 1)); a("s_waitcnt lgkmcnt(4)")
        else:
            a("s_waitcnt lgkmcnt(0)")
        if b < 4 or not E: dq += XD(b + 5)
        for i, st in enumerate(pairs(stats(b))): step(st, i % 2 == 0)
    popq()
    a("s_nop 4")
    a.ext(mean(0))
    c0 = center(0)
    for i, st in enumerate(c0):
        step(st, i % 2 == 1 or (E and i > 9))
        if i == 3: a.ext(diag(0))
        if E and i == 6:
            wx(5); a.ext(xread(5))
        if E and i == 9:
            assert not dq
            a("s_waitcnt lgkmcnt(0)")
            dq += XD(9) + WD(0)
        if i == 17:
            assert not dq
            stamp(a, "p1")
            if not E: wx(5); a.ext(xread(5))
    f0 = finalize2(0)
    for b in range(5, 10):
        if b < 9:
            wx(b + 1); a.ext(xread(b + 1)); a("s_waitcnt lgkmcnt(4)")
            if b > 5 or not E: dq += WD(b - 5)
        else:
            a("s_waitcnt lgkmcnt(0)")
        sts = stats(b)
        if b == 9: sts = sts[0::2] + sts[1::2]
        for i, st in enumerate(pairs(sts)):
            step(st, i % 2 == 0 if b < 9 else i >= 2)
            if i % 2 == 1: a.ext(f0[:2]); f0 = f0[2:]
        if b == 7 and Cfg.lnn: nonce_pub()
    assert not f0
    stamp(a, "p2")
    a(f"v_mov_b32 {v(V_NONCE)}, 0")
    a.ext(mean(1))
    def trd(k, ct):
        kk = k % 20
        slot, ks = kk // 4, kk % 4
        base = ((vTA, vTB), (vTA2, vTB2))[slot == 4][ct & 1]
        off = 0 if slot == 4 else slot * 16384
        return [f"ds_read_b64_tr_b16 {v(WF+4*ct+2*t,2)}, {v(base)} offset:{off+ks*4096+t*1024+(ct>>1)*512}" for t in range(2)]
    sq = [f"s_cmp_eq_u32 {s(sNQ)}, 0", f"s_cselect_b32 {s(sPUB)}, -1, {3 - NU}", f"s_cselect_b32 {s(sURG)}, {NU if Cfg.hint == 1 else -1}, {NU}",
          f"s_lshl4_add_u32 {s(sF)}, {s(sCG)}, {s(sRB)}", f"s_lshl_b32 {s(sF)}, {s(sF)}, 6", f"s_add_u32 {s(sF)}, {s(sF)}, {F1_OFF if Cfg.two else F0_OFF}",
          f"s_cmp_eq_u32 {s(S_WV)}, 0", f"s_cselect_b32 {s(sCHK)}, 5, -1", f"s_cselect_b32 {s(sPUB)}, {s(sPUB)}, -1", f"s_mov_b32 {s(sPB0)}, {s(sSW)}",
          f"s_cmp_lt_u32 {s(sCG)}, 8" if (Cfg.two or Cfg.early != 1) else "s_cmp_lt_u32 s2, 128", f"s_cselect_b32 {s(sHI)}, {Cfg.hiE}, {Cfg.hiL}",
          f"s_cmp_lt_u32 {s(sCG)}, {NL}", f"s_cselect_b32 {s(sHI)}, {s(sHI)}, {Cfg.hiR}", f"s_setprio {Cfg.prioGv}"]
    f1 = [x for x in finalize2(1) if not x.startswith("s_nop")]
    c1 = center(1)
    for i, st in enumerate(c1):
        if dq: step(st, i % 2 == 0)
        else:
            for x in st:
                a(x)
                if "mfma" in x and sq: a(sq.pop(0))
        if i == 1: a.ext(diag(1))
        if i == 5: a("s_waitcnt lgkmcnt(0)")
        if i >= 5 and f1: a(f1.pop(0))
        if i == 15:
            assert not dq
            a(f"s_waitcnt vmcnt({12 - NC})")
            a("s_barrier")
            stamp(a, "w0")
            for ct in range(4): a.ext(trd(0, ct))
            if not Cfg.lnn: nonce_load(a, V_NONCE)
    assert not sq and not f1
    stamp(a, "centered")
    if Cfg.diag:
        a("s_lshl_b32 s62, s2, 6"); a(f"s_add_u32 s62, s62, {FH_OFF + 4}")
        a(f"v_mov_b32 {v(t0)}, s64"); a("s_mov_b64 exec, 1")
        a(f"buffer_store_dword {v(t0)}, off, {s(S_WS,4)}, s62 sc1"); a("s_mov_b64 exec, -1")
    def ffn_consts():
        for rt in range(2):
            a(f"v_rcp_f32 {v(vB[rt])}, {v(vK[rt])}")
            a(f"v_mul_f32 {v(vK[rt])}, {v(vK[rt])}, {v(vK[rt])}")
            a(f"v_mul_f32 {v(vA[rt])}, {f2u(GC0)}, {v(vB[rt])}")
            a(f"v_mul_f32 {v(vB[rt])}, {v(vB[rt])}, {v(vB[rt])}")
            a(f"v_mul_f32 {v(vB[rt])}, {v(vB[rt])}, {v(vA[rt])}")
            a(f"v_mul_f32 {v(vB[rt])}, {f2u(0.044715)}, {v(vB[rt])}")
        a(f"v_lshlrev_b32 {v(vST)}, 4, {v(vL)}")
        a(f"s_lshr_b32 {s(sT0)}, s2, 7")
        a(f"s_lshl_b32 {s(sT0)}, {s(sT0)}, 12")
        a(f"s_add_u32 {s(sT0)}, {s(sT0)}, {F4_OFF}")
        a(f"s_and_b32 {s(sT1)}, s2, 7")
        a(f"s_lshl_b32 {s(sT1)}, {s(sT1)}, 1")
        a(f"s_bfe_u32 {s(sT2)}, s2, {4 | (1<<16)}")
        a(f"s_add_u32 {s(sT1)}, {s(sT1)}, {s(sT2)}")
        a(f"s_lshl_b32 {s(sT1)}, {s(sT1)}, 10")
        a(f"s_add_u32 {s(sT1)}, {s(sT1)}, {F2_OFF - 48*64}")
        a(f"v_mov_b32 {v(vDR)}, {s(sT0)}")
        a("s_mov_b32 exec_lo, 0")
        a("s_mov_b32 exec_hi, 0xffff0000")
        a(f"v_mov_b32 {v(vDR)}, {s(sT1)}")
        a("s_mov_b64 exec, -1")
        a(f"v_lshl_add_u32 {v(vDR)}, {v(vL)}, 6, {v(vDR)}")
        if Cfg.med:
            a("s_mov_b32 exec_lo, 0")
            a("s_mov_b32 exec_hi, 0xffff")
            if Cfg.gate == 1:
                a(f"s_lshl_b32 {s(sT0)}, s2, 6")
                a(f"s_add_u32 {s(sT0)}, {s(sT0)}, {FH_OFF + 32}")
            if Cfg.gate == 2:
                a(f"s_lshl_b32 {s(sT1)}, s2, 6")
                a(f"s_add_u32 {s(sT1)}, {s(sT1)}, {FH_OFF + 32}")
                a(f"s_cmp_lt_u32 {s(sCG)}, 8")
                a(f"s_cselect_b32 {s(sT0)}, {s(sT0)}, {s(sT1)}")
            if Cfg.arl:
                a(f"s_lshr_b32 {s(sT0)}, s2, 5")
                a(f"s_lshl_b32 {s(sT0)}, {s(sT0)}, 10")
                a(f"s_add_u32 {s(sT0)}, {s(sT0)}, {F5_OFF - 32*64}")
                a(f"v_min_u32 {v(vDR)}, 41, {v(vL)}")
                a(f"v_lshl_add_u32 {v(vDR)}, {v(vDR)}, 6, {s(sT0)}")
            else:
                a(f"v_mov_b32 {v(vDR)}, {s(sT0)}")
            a("s_mov_b64 exec, -1")
        a(f"v_mov_b32 {v(vDCo)}, 0")
    def wdma_items(slot):
        ld = lambda i: f"buffer_load_dwordx4 {v(vD)}, {s(SW,4)}, {s(sO)} offen offset:{i*1024}{WM()} lds"
        ad = lambda d: f"s_add_u32 {s(sO)}, {s(sO)}, {s(d)}"
        return [[ld(0)], [ad(sDA), ld(1)], [ad(sDB), ld(2)], [ad(sDA), ld(3)],
                [ad(sDC), f"s_cmp_ge_u32 {s(sO)}, {s(SW+2)}", f"s_cselect_b32 {s(sU)}, {s(SW+2)}, 0"],
                [f"s_sub_u32 {s(sO)}, {s(sO)}, {s(sU)}"]]
    def pack(items, n=3):
        out = []; cur = []
        for it in items:
            l = it.split("\n")
            if len(cur) + len(l) > n: out.append(cur); cur = []
            cur += l
        if cur: out.append(cur)
        return out
    def body(tag, swap):
        if not swap:
            a(f"s_lshl_b32 {s(sT0)}, {s(sN)}, 1")
            a(f"s_cmp_lt_u32 {s(sT0)}, {s(sHI)}")
            a(f"s_cbranch_scc1 {pfx}_hi")
            setprio(a, Cfg.prioGm)
            a(f"{pfx}_hi:")
        a("s_waitcnt lgkmcnt(6)")
        def spread(dma, other, gap):
            out = []; other = list(other)
            for it in dma:
                out.append(it)
                if any(" lds" in x for x in it):
                    for _ in range(gap - 1): out.append(other.pop(0) if other else [])
            return out + other
        q = spread(wdma_items(3)[4 - Cfg.carry:], pack(params_a()), Cfg.gap0)
        for k in range(20):
            for ct in range(4):
                w = WF + 4 * ct
                mm = lambda rt: mf16(ACC + 16 * rt + 4 * ct, X + 80 * rt + 4 * k if swap else w, w if swap else X + 80 * rt + 4 * k, "0" if k == 0 else None)
                a(mm(0))
                if ct == 0 and k % 4 == 3:
                    assert not q, (k, q)
                    if k == Cfg.pubk:
                        a(f"s_cbranch_scc1 {pfx}_pub{tag}")
                    if k == 15 and not swap and Cfg.arl and Cfg.wpre:
                        a(f"s_cbranch_scc1 {pfx}_chk3"); a(f"{pfx}_chk3r:")
                    if not Cfg.x_body & 4: a("s_waitcnt vmcnt(8)")
                    if not Cfg.x_body & 1: a("s_barrier")
                    if k == Cfg.pubk: a(f"{pfx}_pubret{tag}:")
                    if k == 11:
                        a(f"s_cbranch_scc1 {pfx}_pz{tag}"); a(f"{pfx}_pzr{tag}:")
                    dm = wdma_items((k // 4 - 1) % 5); q = []
                    if k == 3:
                        dm = spread(dm[:3], [], 2) + dm[3:4] + pack(params_b()) + [[f"s_cmp_eq_u32 {s(sN)}, {s(sPB0)}", f"s_cbranch_scc1 {pfx}_sw{tag}", f"{pfx}_swr{tag}:"]]
                    if k == 7 and not swap:
                        T0 = sum(x << (3 * i) for i, x in enumerate((1, 4, 2, 3, 0)))
                        T1 = sum(x << (3 * i) for i, x in enumerate((3, 0, 1, 4, 2)))
                        it = [f"s_mov_b32 {s(sT0)}, {s(sCG)}", f"s_mul_i32 {s(sT1)}, {s(sT0)}, 52",
                              f"s_lshr_b32 {s(sT1)}, {s(sT1)}, 8", f"s_mul_i32 {s(sT1)}, {s(sT1)}, 5", f"s_sub_u32 {s(sT0)}, {s(sT0)}, {s(sT1)}",
                              f"s_mul_i32 {s(sT0)}, {s(sT0)}, 3"]
                        for tb, m in ((T0, sMA), (T1, sMB)):
                            it += [f"s_lshr_b32 {s(sT1)}, {tb << 4}, {s(sT0)}", f"s_and_b32 {s(sT2)}, {s(sT1)}, 0x30",
                                   f"s_bitcmp1_b32 {s(sT1)}, 6\ns_cselect_b32 {s(m)}, 0, 0xffff\ns_mov_b32 {s(m+1)}, 0",
                                   f"s_lshl_b64 {s(m,2)}, {s(m,2)}, {s(sT2)}"]
                        q += pack(it)
                    if k == 7 and not swap:
                        q += [[f"s_lshl1_add_u32 {s(sT0)}, {s(sN)}, 1", f"s_cmp_eq_u32 {s(sT0)}, {s(sHI)}", f"s_cbranch_scc1 {pfx}_lo", f"{pfx}_lor:"]]
                    if k == 15 and not swap:
                        q += [[f"s_add_u32 {s(sT0)}, {s(sN)}, {Cfg.wpre}"], [f"s_cmp_eq_u32 {s(sT0)}, {s(sCHK)}", f"s_cbranch_scc1 {pfx}_chk", f"{pfx}_chkr:"]]
                    if k == 15 and not swap and Cfg.hpre:
                        for j in range(Cfg.hpre * 2):
                            q += [[f"s_cmp_eq_u32 {s(sN)}, 5", f"s_cbranch_scc1 {pfx}_hp{j}", f"{pfx}_hpr{j}:"]]
                    if k == 11 and not swap and Cfg.arl and Cfg.wpre:
                        q += [[f"s_cmp_eq_u32 {s(sN)}, {s(sCHK)}", f"s_cbranch_scc1 {pfx}_chk2", f"{pfx}_chk2r:"]]
                    if k == 15 and Cfg.lnn:
                        q = [[f"s_cmp_eq_u32 {s(sN)}, 0", f"s_cbranch_scc1 {pfx}_nl{tag}", f"{pfx}_nlr{tag}:"]] + q
                    if k == 11:
                        if swap:
                            q += pack([f"s_mul_i32 {s(sSO)}, {s(sTT)}, 1280", f"s_add_u32 {s(sSO)}, {s(sSO)}, {V_OFF}"])
                        else:
                            q += pack([f"s_sub_u32 {s(sT0)}, {s(sN)}, {s(sNQ)}", f"s_lshr_b32 {s(sT0)}, {s(sT0)}, 1", f"s_mul_i32 {s(sT0)}, {s(sT0)}, {s(sP0)}", f"s_add_u32 {s(sT0)}, {s(sT0)}, {s(sCG)}",
                                f"s_lshl_b32 {s(sT0)}, {s(sT0)}, 11", f"s_mul_i32 {s(sSO)}, {s(sTT)}, {2*55296}", f"s_add_u32 {s(sSO)}, {s(sSO)}, {s(sT0)}",
                                f"s_add_u32 {s(sSO)}, {s(sSO)}, {H_OFF}",
                                f"s_mul_i32 {s(sT0)}, {s(sN)}, 5", f"s_add_u32 {s(sT0)}, {s(sT0)}, {s(sC2)}", f"s_lshl_b32 {s(sT0)}, {s(sT0)}, 18",
                                f"s_lshl_b32 {s(sT1)}, {s(sTT)}, 9", f"s_add_u32 {s(sT0)}, {s(sT0)}, {s(sT1)}",
                                f"s_mov_b32 {s(sT1)}, 55296",
                                f"s_cmp_lt_u32 {s(sN)}, {s(sNQ)}\ns_cselect_b32 {s(sSO)}, {s(sT0)}, {s(sSO)}\ns_cselect_b32 {s(sT1)}, {4*32768}, {s(sT1)}",
                                f"s_add_u32 {s(sT3)}, {s(sSO)}, {s(sT1)}"])
                    if k == 3: q = dm
                    elif k == 19: q = spread(dm[:4 - Cfg.carry], [], {1: 1, 2: 2, 3: 3}[Cfg.carry])[:3]
                    else:
                        q = spread(dm[:3], q, Cfg.gap)
                        q = q[:3 * Cfg.gap] + dm[3:] + q[3 * Cfg.gap:]
                elif ct == 3 and k % 4 == 2:
                    while q and not q[-1]: q.pop()
                    assert not q, (k, q)
                    a(f"s_add_u32 m0, {s(sM)}, {(((k + 1) // 4 - 1) % 5) * 16384}")
                    if k + 1 == Cfg.pubk: a(f"s_cmp_eq_u32 {s(sN)}, {s(sURG)}")
                    if k + 1 == 11: a(f"s_cmp_eq_u32 {s(sN)}, {s(sPUB)}")
                    if k + 1 == 15 and not swap and Cfg.arl and Cfg.wpre: a(f"s_cmp_eq_u32 {s(sN)}, {s(sCHK)}")
                elif q: a.ext([x for x in q.pop(0) if not (Cfg.x_body & 2 and " lds" in x)])
                a(mm(1))
                a("s_waitcnt lgkmcnt(4)")
                a.ext(trd(k + 1, ct))
        assert not q
        setprio(a, Cfg.prioGv)
        if STAMPS and not LITE:
            for n in range(6):
                a(f"s_cmp_lg_u32 {s(sN)}, {n}"); a(f"s_cbranch_scc1 {pfx}_stm{tag}{n}"); stamp(a, f"mm{n}"); a(f"{pfx}_stm{tag}{n}:")
    def ep_stamp(tag):
        if STAMPS and not LITE:
            for n in range(6):
                a(f"s_cmp_lg_u32 {s(sN)}, {n}"); a(f"s_cbranch_scc1 {pfx}_ste{tag}{n}"); stamp(a, f"ep{n}"); a(f"{pfx}_ste{tag}{n}:")
    a(f"s_cmp_lt_u32 {s(sCG)}, 10")
    a(f"s_cbranch_scc1 {pfx}_hi")
    a(f"s_cmp_eq_u32 {s(sNQ)}, 0")
    a(f"s_cbranch_scc1 {pfx}_toffn")
    a(f"v_and_b32 {v(t0)}, 48, {v(vL)}")
    for rt in range(2):
        for i in range(4): a(f"ds_bpermute_b32 {v(VR+4*rt+i)}, {v(t0)}, {v(vA[rt])} offset:{4*i}")
    a(f"{pfx}_vloop:")
    body("v", True)
    for ct in range(4):
        for rt in range(2):
            if Cfg.pk & 2:
                for i in (0, 2): a(pk("mul", ACC+16*rt+4*ct+i, [ACC+16*rt+4*ct+i, VR+4*rt+i]))
            else:
                for i in range(4): a(f"v_mul_f32 {v(ACC+16*rt+4*ct+i)}, {v(ACC+16*rt+4*ct+i)}, {v(VR+4*rt+i)}")
        for rt in range(2):
            for j in range(2): a(f"v_cvt_pk_bf16_f32 {v(G+4*ct+2*rt+j)}, {v(ACC+16*rt+4*ct+2*j)}, {v(ACC+16*rt+4*ct+2*j+1)}")
        a(f"buffer_store_dwordx4 {v(G+4*ct,4)}, {v(VA+ct)}, {s(S_WS,4)}, {s(sSO)} offen{SC1}")
    ep_stamp("v")
    a(f"s_cmp_eq_u32 {s(sN)}, 1")
    a(f"s_cbranch_scc1 {pfx}_qdone")
    for ct in range(4): a(f"v_mov_b32 {v(VA+ct)}, {v(VA+4+ct)}")
    a(f"s_mov_b32 {s(sN)}, 1")
    if Cfg.lnn: a(f"s_waitcnt vmcnt({3 + 4 + 4 - Cfg.carry})")
    nonce_check(a, f"{pfx}_ncv", V_NONCE, sT0, sT1, f"{pfx}_vloop")
    for tag in "vn":
        if Cfg.lnn:
            a(f"{pfx}_nl{tag}:"); nonce_load(a, V_NONCE); a(f"s_branch {pfx}_nlr{tag}")
        a(f"{pfx}_sw{tag}:")
        if tag == "n" and Cfg.wpre:
            a(f"s_cmp_eq_u32 {s(sN)}, 5")
            a(f"s_cbranch_scc1 {pfx}_sww")
            a(f"s_mov_b32 {s(sPB0)}, 5")
        a(params_v()); a(f"s_branch {pfx}_swr{tag}")
        if tag == "n" and Cfg.wpre:
            a(f"{pfx}_sww:")
            a(f"s_mov_b32 {s(SW)}, {s(P_WS)}"); a(f"s_mov_b32 {s(SW+1)}, {s(P_WS+1)}"); a(f"s_mov_b32 {s(SW+2)}, {WS_BYTES}")
            a(f"s_lshr_b32 {s(sO)}, s2, 5")
            a(f"s_mul_i32 {s(sO)}, {s(sO)}, {74*5120}")
            a(f"s_add_u32 {s(sO)}, {s(sO)}, {WR_OFF}")
            a(f"s_add_u32 {s(sO)}, {s(sO)}, {s(sM)}")
            a(f"s_mov_b32 {s(sDA)}, 0"); a(f"s_mov_b32 {s(sDB)}, 0"); a(f"s_movk_i32 {s(sDC)}, 16384")
            setprio(a, Cfg.prioGv)
            a(f"v_mov_b32 {v(vD)}, {v(vST)}")
            setprio(a, Cfg.prioGm)
            a(f"s_branch {pfx}_swr{tag}")
        a(f"{pfx}_pub{tag}:")
        a(f"s_waitcnt vmcnt({ {3: Cfg.carry, 7: 4 + Cfg.carry}[Cfg.pubk] })")
        a("s_barrier")
        a(f"s_cmp_lt_u32 {2 * NU + 1}, {s(sHI)}")
        a(f"s_cbranch_scc1 {pfx}_pubhi{tag}")
        setprio(a, Cfg.prioGm)
        a(f"{pfx}_pubhi{tag}:")
        a(f"s_cmp_lg_u32 {s(S_WV)}, 0")
        a(f"s_cbranch_scc1 {pfx}_pubret{tag}")
        a(f"s_lshl4_add_u32 {s(sU)}, {s(sCG)}, {s(sRB)}")
        a(f"s_mul_i32 {s(sU)}, {s(sU)}, {Cfg.fst}")
        a(f"s_add_u32 {s(sU)}, {s(sU)}, {F0_OFF if Cfg.two else FX_OFF}")
        publish(a, sU)
        if Cfg.hint == 1:
            a(f"s_lshl_b32 {s(sU)}, s2, 7")
            a(f"s_add_u32 {s(sU)}, {s(sU)}, {FP_OFF}")
            publish(a, sU)
        stamp(a, "pub0")
        a(f"s_branch {pfx}_pubret{tag}")
    for j in range(Cfg.hpre * 2):
        a(f"{pfx}_hp{j}:")
        if j == 0:
            a(f"s_and_b32 {s(sT1)}, s2, 7")
            a(f"s_bfe_u32 {s(sT2)}, s2, {3 | (2<<16)}")
            a(f"s_lshl2_add_u32 {s(sT1)}, {s(sT1)}, {s(sT2)}")
            a(f"s_lshl2_add_u32 {s(sT1)}, {s(sT1)}, {s(S_WV)}")
            a(f"s_mul_i32 {s(sT1)}, {s(sT1)}, 55296")
            a(f"s_add_u32 {s(sT1)}, {s(sT1)}, {H_OFF}")
        for i in range(4): a(f"buffer_load_dwordx4 {v(G2.HFS[j]+4*i,4)}, {v(vST)}, {s(S_WS,4)}, {s(sT1)} offen offset:{i*1024} sc1")
        a(f"s_add_u32 {s(sT1)}, {s(sT1)}, 4096")
        a(f"s_branch {pfx}_hpr{j}")
    if Cfg.arl and Cfg.wpre:
        a(f"{pfx}_chk2:")
        a(f"buffer_load_dword {v(vDCo)}, {v(vDR)}, {s(S_WS,4)}, 0 offen sc1")
        a(f"s_branch {pfx}_chk2r")
        a(f"{pfx}_chk3:")
        setprio(a, Cfg.prioGv)
        a("s_waitcnt vmcnt(3)")
        a(f"v_cmp_ne_u32 vcc, {v(vDCo)}, {v(V_NONCE)}")
        a(f"s_mov_b32 {s(sT0)}, 0")
        a("s_nop 0")
        a(f"s_cbranch_vccz {pfx}_px_ok")
        poll(a, f"{pfx}_px", vDR, sT0, vDCo, sT1, Cfg.p4s)
        setprio(a, Cfg.prioGm)
        a(f"s_branch {pfx}_chk3r")
    a(f"{pfx}_lo:"); setprio(a, Cfg.prioGm); a(f"s_branch {pfx}_lor")
    a(f"{pfx}_chk:")
    a(f"buffer_load_dword {v(vDCo)}, {v(vDR)}, {s(S_WS,4)}, 0 offen sc1")
    a(f"s_branch {pfx}_chkr")
    for tag in "vn":
        a(f"{pfx}_pz{tag}:")
        publish(a, sF)
        a(f"s_mov_b32 {s(sPUB)}, 4")
        a(f"s_lshl4_add_u32 {s(sF)}, {s(sRB)}, {s(sCG)}")
        a(f"s_lshl_b32 {s(sF)}, {s(sF)}, 6")
        a(f"s_add_u32 {s(sF)}, {s(sF)}, {F2_OFF}")
        a(f"s_branch {pfx}_pzr{tag}")
    a(f"{pfx}_eq:")
    for j in range(2):
        for rt in range(2):
            b = ACC + 16 * rt + 8 * j; d = G + 8 * j + 4 * rt
            if Cfg.pk & 2:
                for r in range(0, 8, 2): a(pk("mul", b + r, [b + r, -vA[rt] - 1]))
            else:
                for r in range(8): a(f"v_mul_f32 {v(b+r)}, {v(b+r)}, {v(vA[rt])}")
            for r in range(4): a(f"v_cvt_pk_bf16_f32 {v(d+r)}, {v(b+2*r)}, {v(b+2*r+1)}")
            if rt == 1:
                for r2 in range(2):
                    d2 = G + 8 * j + 4 * r2
                    a(f"v_permlane16_swap_b32 {v(d2)}, {v(d2+2)}")
                    a(f"v_permlane16_swap_b32 {v(d2+1)}, {v(d2+3)}")
                a(f"s_mov_b64 exec, {s((sMA, sMB)[j],2)}")
                a(f"v_swap_b32 {v(G+8*j+2)}, {v(G+8*j+4)}")
                a(f"v_swap_b32 {v(G+8*j+3)}, {v(G+8*j+5)}")
                a("s_mov_b64 exec, -1")
                for r2 in range(2):
                    d2 = G + 8 * j + 4 * r2
                    a(f"buffer_store_dwordx4 {v(d2,4)}, {v(vST)}, {s(S_WS,4)}, {s(sT3 if j else sSO)} offen offset:{r2*256}{SC1}")
    ep_stamp("q")
    a(f"s_cmp_eq_u32 {s(sN)}, 1")
    a(f"s_cbranch_scc1 {pfx}_qdone")
    a(f"s_mov_b32 {s(sN)}, 1")
    if Cfg.lnn: a(f"s_waitcnt vmcnt({3 + 4 + 4 - Cfg.carry})")
    nonce_check(a, f"{pfx}_ncq", V_NONCE, sT0, sT1, f"{pfx}_hi")
    a(f"{pfx}_qdone:")
    if Cfg.hint == 2:
        a(f"s_cmp_lg_u32 {s(S_WV)}, 3")
        a(f"s_cbranch_scc1 {pfx}_nh")
        a(f"s_lshl_b32 {s(sT0)}, s2, 7")
        a(f"s_add_u32 {s(sT0)}, {s(sT0)}, {FP_OFF}")
        publish(a, sT0)
        a(f"{pfx}_nh:")
    a(f"s_mov_b32 {s(sN)}, 2")
    a(f"{pfx}_toffn:")
    ffn_consts()
    a(f"{pfx}_loop:")
    body("n", False)
    a(f"s_cmp_lt_u32 {s(sN)}, {s(sNQ)}")
    a(f"s_cbranch_scc1 {pfx}_eq")
    a(f"s_bitcmp1_b32 {s(sN)}, 0")
    a(f"s_cbranch_scc1 {pfx}_eu")
    if Cfg.x_gexit: a("s_branch g2_end")
    for r0 in range(0, 32 if Cfg.pk & 1 else 0, 8):
        R2 = range(r0, r0 + 8, 2); R = range(r0, r0 + 8); rt = r0 // 16
        for r in R2: a(pk("mul", G + r, [ACC + r, ACC + r]))
        for r in R2: a(pk("fma", G + r, [G + r, -vB[rt] - 1, -vA[rt] - 1]))
        for r in R2: a(pk("mul", G + r, [G + r, ACC + r]))
        for r in R: a(f"v_exp_f32 {v(G+r)}, {v(G+r)}")
        for r in R2: a(pk("fma", G + r, [G + r, -vK[rt] - 1, -vK[rt] - 1]))
        for r in R: a(f"v_rcp_f32 {v(G+r)}, {v(G+r)}")
        for r in R2: a(pk("mul", G + r, [G + r, ACC + r]))
    for r0 in range(0, 32 if not Cfg.pk & 1 else 0, 4):
        R = range(r0, r0 + 4); rt = r0 // 16
        for r in R: a(f"v_mul_f32 {v(G+r)}, {v(ACC+r)}, {v(ACC+r)}")
        for r in R: a(f"v_fma_f32 {v(G+r)}, {v(G+r)}, {v(vB[rt])}, {v(vA[rt])}")
        for r in R: a(f"v_mul_f32 {v(G+r)}, {v(G+r)}, {v(ACC+r)}")
        for r in R: a(f"v_exp_f32 {v(G+r)}, {v(G+r)}")
        for r in R: a(f"v_fma_f32 {v(G+r)}, {v(G+r)}, {v(vK[rt])}, {v(vK[rt])}")
        for r in R: a(f"v_rcp_f32 {v(G+r)}, {v(G+r)}")
        for r in R: a(f"v_mul_f32 {v(G+r)}, {v(G+r)}, {v(ACC+r)}")
    if Cfg.tc & 1:
        a(f"s_cmp_lg_u32 {s(S_WV)}, 1")
        a(f"s_cbranch_scc1 {pfx}_ntc1")
        a.ext(touch("att_loopb", "att_fb", sT0, vDCo, vDCo))
        a(f"{pfx}_ntc1:")
        a(f"s_cmp_lg_u32 {s(S_WV)}, 2")
        a(f"s_cbranch_scc1 {pfx}_ntc2")
        a.ext(touch(f"{pfx}_heavy", "g2_tc1", sT0, vDCo, vDCo))
        a(f"{pfx}_ntc2:")
    ep_stamp("g")
    if Cfg.hint == 1:
        a(f"s_cmp_lg_u32 {s(sN)}, 0")
        a(f"s_cbranch_scc1 {pfx}_ncg_ok")
        a(f"s_waitcnt vmcnt({3 + 4 - Cfg.carry})")
        nonce_check(a, f"{pfx}_ncg", V_NONCE, sT0, sT1)
    a(f"s_add_u32 {s(sN)}, {s(sN)}, 1")
    if Cfg.wpre:
        a(f"s_cmp_lg_u32 {s(sN)}, {s(sCHK)}")
        a(f"s_cbranch_scc1 {pfx}_loop")
        a(f"s_waitcnt vmcnt({4 - Cfg.carry})")
        if Cfg.arl:
            a("s_mov_b32 exec_lo, 0"); a("s_mov_b32 exec_hi, 0xffff")
        a(f"v_cmp_ne_u32 vcc, {v(vDCo)}, {v(V_NONCE)}")
        a(f"s_mov_b32 {s(sT0)}, 0")
        a("s_nop 0")
        a(f"s_cbranch_vccz {pfx}_pw_ok")
        poll(a, f"{pfx}_pw", vDR, sT0, vDCo, sT1, Cfg.p4s)
        a("s_mov_b64 exec, -1")
    a(f"s_branch {pfx}_loop")
    a(f"{pfx}_eu:")
    a(f"s_cmp_eq_u32 {s(sN)}, 5")
    a(f"s_cbranch_scc1 {pfx}_heavy")
    upv = []; ups = []
    for p in range(4):
        pv = [f"v_mul_f32 {v(ACC+r)}, {v(ACC+r)}, {v(G+r)}" for r in range(8 * p, 8 * p + 8)]
        if Cfg.pk & 1: pv = [pk("mul", ACC + r, [ACC + r, G + r]) for r in range(8 * p, 8 * p + 8, 2)]
        pv += [f"v_cvt_pk_bf16_f32 {v(G+8*p+j)}, {v(ACC+8*p+2*j)}, {v(ACC+8*p+2*j+1)}" for j in range(4)]
        ps = f"buffer_store_dwordx4 {v(G+8*p,4)}, {v(vST)}, {s(S_WS,4)}, {s(sT3 if p >> 1 else sSO)} offen offset:{(p&1)*1024}{SC1}"
        a.ext(pv); a(ps); upv += pv; ups.append(ps)
    ep_stamp("u")
    a(f"s_add_u32 {s(sN)}, {s(sN)}, 1")
    if Cfg.med:
        a(f"s_sub_u32 {s(sT0)}, {s(sCG)}, 8")
        a(f"s_cmp_lt_u32 {s(sT0)}, 4")
        a(f"s_cbranch_scc1 {pfx}_medium")
    a(f"s_cmp_lt_u32 {s(sN)}, {s(sNT)}")
    a(f"s_cbranch_scc1 {pfx}_loop")
    nonce_check(a, f"{pfx}_nc2", V_NONCE, sT0, sT1)
    a(f"s_lshl_b32 {s(sF)}, {s(sRB)}, 4")
    a(f"s_add_u32 {s(sF)}, {s(sF)}, {s(sCG)}")
    a(f"s_lshl_b32 {s(sF)}, {s(sF)}, 6")
    a(f"s_add_u32 {s(sF)}, {s(sF)}, {F2_OFF}")
    a(f"s_sub_u32 {s(sT0)}, {s(sCG)}, {NL}")
    a(f"s_lshl_b32 {s(sPUB)}, {s(sT0)}, 6")
    a(f"s_add_u32 {s(sPUB)}, {s(sPUB)}, {s(sTT)}")
    if Cfg.arl: a(f"s_add_u32 {s(sPUB)}, {s(sPUB)}, 80")
    a(f"s_lshl_b32 {s(sT0)}, {s(sT0)}, 3")
    a(f"s_lshr_b32 {s(sT1)}, {s(sRB)}, 1")
    a(f"s_add_u32 {s(sT0)}, {s(sT0)}, {s(sT1)}")
    a(f"s_and_b32 {s(sT1)}, {s(sRB)}, 1")
    a(f"s_lshl_b32 {s(sT1)}, {s(sT1)}, 6")
    a(f"s_add_u32 {s(sT0)}, {s(sT0)}, {s(sT1)}")
    a(f"s_lshl_b32 {s(sT0)}, {s(sT0)}, 6")
    a(f"s_add_u32 {s(sT3)}, {s(sT0)}, {F4_OFF}")
    a("s_waitcnt vmcnt(4) lgkmcnt(0)")
    a("s_barrier")
    gen_relayout(a, pfx, sPUB, vL, (58, 59, 60, 61, 96, 97, 98, 101, 47, 48, 49), sF, sT3)
    g2_start(a, "g2l", [], [])
    a(f"s_branch {pfx}_g1end")
    if Cfg.med:
        def trh(k, ct):
            d = WF + 8 * (k & 1) + 4 * ct
            return [l.replace(v(WF + 4 * ct + 2 * t, 2), v(d + 2 * t, 2)) for t, l in enumerate(trd(k, ct))]
        a(f"{pfx}_medium:")
        a(f"s_and_b32 {s(sT0)}, {s(sCG)}, 1")
        a(f"s_lshl_b32 {s(sT1)}, {s(sT0)}, 9")
        for r in (vTA, vTB, vTA2, vTB2): a(f"v_add_u32 {v(r)}, {s(sT1)}, {v(r)}")
        for k in range(2):
            for ct in range(2): a.ext(trh(k, ct))
        a(f"s_add_u32 {s(sT1)}, {s(sCG)}, {s(sP0)}")
        a(f"s_lshl1_add_u32 {s(sT0)}, {s(sT1)}, {s(sT0)}")
        a(f"s_lshl_b32 {s(sT0)}, {s(sT0)}, 10")
        a(f"s_mul_i32 {s(sSO)}, {s(sTT)}, {2*55296}")
        a(f"s_add_u32 {s(sSO)}, {s(sSO)}, {s(sT0)}")
        a(f"s_add_u32 {s(sSO)}, {s(sSO)}, {H_OFF}")
        a(f"s_add_u32 {s(sT3)}, {s(sSO)}, 55296")
        a(f"s_sub_u32 {s(sPUB)}, {s(sCHK)}, 1")
        a(f"{pfx}_hloop:")
        a("s_waitcnt lgkmcnt(6)")
        setprio(a, Cfg.prioGm)
        flat = lambda its: [x for it in its for x in it]
        di = wdma_items(3)[4 - Cfg.carry:]
        q = di[:Cfg.carry] + [flat(di[Cfg.carry:]) + flat(pack(params_a()))]
        for k in range(20):
            for ct in range(2):
                w = WF + 8 * (k & 1) + 4 * ct
                a(mf16(ACC + 4 * ct, w, X + 4 * k, "0" if k == 0 else None))
                if ct == 0 and k % 4 == 2:
                    assert not q, (k, q)
                    a(f"s_add_u32 m0, {s(sM)}, {((k // 4 - 1) % 5) * 16384}")
                    a("s_waitcnt vmcnt(8)")
                    a("s_barrier")
                    q = wdma_items((k // 4 - 1) % 5)
                    if k == 2: q = q[:4] + [flat(pack(params_b()))]
                    if k == 10: q = [[f"s_cmp_eq_u32 {s(sN)}, {s(sPUB)}", f"s_cbranch_scc1 {pfx}_hpub", f"{pfx}_hpubr:"]] + q
                    if k == 14: q = [[f"s_cmp_eq_u32 {s(sN)}, {s(sCHK)}", f"s_cbranch_scc1 {pfx}_hchk", f"{pfx}_hchkr:"]] + q
                    if k == 18: q = q[:4 - Cfg.carry]
                elif q: a.ext(q.pop(0))
                a(mf16(ACC + 16 + 4 * ct, w, X + 80 + 4 * k, "0" if k == 0 else None))
                a("s_waitcnt lgkmcnt(4)")
                a.ext(trh(k + 2, ct))
        assert not q
        setprio(a, Cfg.prioGv)
        a(f"s_cmp_eq_u32 {s(sN)}, 5")
        a(f"s_cbranch_scc1 {pfx}_hend")
        a("s_nop 1")
        for r0 in (0, 16):
            R2 = range(r0, r0 + 8, 2); R = range(r0, r0 + 8); rt = r0 // 16
            for r in R2: a(pk("mul", G + r, [ACC + r, ACC + r]))
            for r in R2: a(pk("fma", G + r, [G + r, -vB[rt] - 1, -vA[rt] - 1]))
            for r in R2: a(pk("mul", G + r, [G + r, ACC + r]))
            for r in R: a(f"v_exp_f32 {v(G+r)}, {v(G+r)}")
            for r in R2: a(pk("fma", G + r, [G + r, -vK[rt] - 1, -vK[rt] - 1]))
            for r in R: a(f"v_rcp_f32 {v(G+r)}, {v(G+r)}")
            for r in R2: a(pk("mul", G + r, [G + r, ACC + r]))
        a(f"s_mov_b32 {s(sN)}, 5")
        a(f"s_branch {pfx}_hloop")
        a(f"{pfx}_hpub:")
        publish(a, sF)
        a(f"s_branch {pfx}_hpubr")
        a(f"{pfx}_hchk:")
        a(f"buffer_load_dword {v(vDCo)}, {v(vDR)}, {s(S_WS,4)}, 0 offen sc1")
        a(f"s_branch {pfx}_hchkr")
        a(f"{pfx}_hend:")
        a(f"s_add_u32 {s(sF)}, {s(sF)}, {F2B_OFF - F2_OFF}")
        n_ = len(upv) // 4
        g2_start(a, "g2m", upv[:n_] + upv[2*n_:3*n_], [ups[0], ups[2]])
        a(f"s_branch {pfx}_g1end")
    a(f"{pfx}_heavy:")
    a(f"s_add_u32 {s(sF)}, {s(sF)}, {F2B_OFF - F2_OFF}")
    g2_start(a, "g2h", upv, ups, bool(Cfg.wpre))
    a(f"{pfx}_g1end:")

def att_relayout(a, pfx, idreg, vL, vLin, T, sT0, sT1, sT2, sT3):
    if Cfg.arl:
        a(f"s_and_b32 {s(sT0)}, {s(idreg)}, 255")
        a(f"s_lshl_b32 {s(sT1)}, {s(S_WV)}, 8")
        a(f"s_add_u32 {s(sT0)}, {s(sT0)}, {s(sT1)}")
        a(f"s_sub_u32 {s(sT0)}, {s(sT0)}, 176")
        a(f"s_cmp_ge_u32 {s(sT0)}, 80")
        a(f"s_cbranch_scc1 {pfx}_norl")
        srd(a, S_A, P_WD, 1728 * 1280)
        a(f"s_and_b32 {s(sT1)}, {s(sT0)}, 7")
        a(f"s_lshr_b32 {s(sT0)}, {s(sT0)}, 3")
        a(f"s_mul_i32 {s(sT2)}, {s(sT0)}, {32*1280}")
        a(f"s_mul_i32 {s(sT3)}, {s(sT1)}, 160")
        a(f"s_add_u32 {s(sT2)}, {s(sT2)}, {s(sT3)}")
        a(f"s_movk_i32 {s(sT3)}, 1120")
        for i in range(5):
            a(f"v_add_u32 v12, {64*i}, {v(vL)}")
            a(f"v_mul_u32_u24 v13, 6554, v12")
            a(f"v_lshrrev_b32 v13, 16, v13")
            a(f"v_lshlrev_b32 v12, 4, v12")
            a(f"s_movk_i32 m0, {i*1024}")
            a(f"v_mad_u32_u24 v12, v13, {s(sT3)}, v12")
            a(f"buffer_load_dwordx4 v12, {s(S_A,4)}, {s(sT2)} offen lds")
        a(f"v_lshrrev_b32 v12, 2, {v(vL)}")
        a(f"v_mul_u32_u24 v12, 160, v12")
        a(f"v_and_b32 v13, 3, {v(vL)}")
        a(f"v_mad_u32_u24 v12, v13, 40, v12")
        a(f"v_add_u32 v13, 4096, {v(vLin)}")
        a(f"s_mul_i32 {s(sT2)}, {s(sT1)}, 74")
        a(f"s_add_u32 {s(sT2)}, {s(sT2)}, {s(sT0)}")
        a(f"s_mul_i32 {s(sT2)}, {s(sT2)}, 5120")
        a(f"s_add_u32 {s(sT2)}, {s(sT2)}, {WR_OFF}")
        a(f"s_lshl4_add_u32 {s(sT0)}, {s(sT1)}, {s(sT0)}")
        a(f"s_lshl_b32 {s(sT0)}, {s(sT0)}, 6")
        a(f"s_add_u32 {s(sT0)}, {s(sT0)}, {F5_OFF}")
        a("s_waitcnt vmcnt(0)")
        for mt in range(5):
            for u in range(2): a(f"ds_read_b64_tr_b16 {v(T+4*mt+2*u,2)}, v12 offset:{u*2560+8*mt}")
        a("s_waitcnt lgkmcnt(0)")
        for mt in range(5):
            a(f"buffer_store_dwordx4 {v(T+4*mt,4)}, {v(vLin) if mt < 4 else 'v13'}, {s(S_WS,4)}, {s(sT2)} offen offset:{(mt&3)*1024} sc1")
        a("s_waitcnt vmcnt(0)")
        publish(a, sT0)
        a(f"{pfx}_norl:")

def gen_att1(a, pfx, idreg):
    vL, vK1, vK2, vV0, vV1, vQ1, vQ2 = 1, 2, 3, 4, 5, 20, 21
    P, S, O, Q, KV = 24, 32, 64, 128, 152
    sHD, sQB, sKH, sQH, sK1, sK2, sV, sG, sIT = 41, 42, 43, 44, 45, 46, 47, 48, 49
    sK1b, sK2b, sVb = 50, 51, 52
    sT0, sT1, sT2, sT3 = 54, 55, 56, 57
    sVM = 58
    sQ = 96
    sLB, sDK, sDV, sG4 = 53, 60, 61, 100
    vLin, vLK1, vLK2, vLV, vMB, vMI, vM = 208, 209, 210, 211, 212, 213, 214
    vXW, vXR, vOM, vOL = 215, 216, 217, 218
    vQS, vQA, vQB = 219, 240, 242
    sPQ, sPK, sPV, sPM = 33, 34, 35, 36
    sOM, sOL, sF3, sHX, sHW = 28, 30, 31, 101, 32
    a(f"v_and_b32 {v(vL)}, 63, v0")
    a(f"v_lshrrev_b32 v6, 6, v0")
    a(f"s_and_b32 {s(sT0)}, {s(idreg)}, 7")
    a(f"v_readfirstlane_b32 {s(S_WV)}, v6")
    EARLY = list(range(16)) if Cfg.early else []
    a(f"s_bfe_u32 {s(sT1)}, {s(idreg)}, {6 | (2<<16)}")
    a(f"s_and_b32 {s(sHD)}, {s(sT1)}, 1")
    a(f"s_lshl1_add_u32 {s(sHD)}, {s(sT0)}, {s(sHD)}")
    a(f"s_lshr_b32 {s(sT2)}, {s(sT1)}, 1")
    a(f"s_lshl4_add_u32 {s(sHD)}, {s(sT2)}, {s(sHD)}")
    if Cfg.cpf == 1:
        a(f"s_getpc_b64 {s(sT0,2)}")
        a(f"{pfx}_pc:")
        a(f"s_sub_u32 {s(sT0)}, {s(sT0)}, {pfx}_pc-{NAME}_kernel")
        a(f"s_subb_u32 {s(sT1)}, {s(sT1)}, 0")
        a(f"s_bfe_u32 {s(sT2)}, {s(idreg)}, {3 | (5<<16)}")
        a(f"s_lshl_b32 {s(sT2)}, {s(sT2)}, 2")
        a(f"s_add_u32 {s(sT2)}, {s(sT2)}, {s(S_WV)}")
        a(f"s_lshl_b32 {s(sT2)}, {s(sT2)}, 8")
        a(f"s_cmp_ge_u32 {s(sT2)}, {NAME}_kernel_end-{NAME}_kernel-256")
        a(f"s_cbranch_scc1 {pfx}_nopf")
        a(f"v_lshl_add_u32 v12, {v(vL)}, 2, {s(sT2)}")
        a(f"global_load_dword v13, v12, {s(sT0,2)}")
        a(f"{pfx}_nopf:")

    a(f"s_bfe_u32 {s(sQB)}, {s(idreg)}, {3 | (3<<16)}")
    a(f"s_and_b32 {s(sQH)}, {s(S_WV)}, 1")
    a(f"s_lshr_b32 {s(sKH)}, {s(S_WV)}, 1")
    a(f"s_lshr_b32 {s(sT0)}, {s(sHD)}, 1")
    a(f"s_mul_i32 {s(sT0)}, {s(sT0)}, 5")
    a(f"s_and_b32 {s(sT1)}, {s(sHD)}, 1")
    a(f"s_mul_i32 {s(sT2)}, {s(sT1)}, 3")
    a(f"s_add_u32 {s(sT2)}, {s(sT2)}, {s(sT0)}")
    a(f"s_lshl_b32 {s(sK1b)}, {s(sT2)}, 15")
    a(f"s_add_u32 {s(sT0)}, {s(sT0)}, 2")
    a(f"s_lshl_b32 {s(sK2b)}, {s(sT0)}, 15")
    a(f"s_lshl_b32 {s(sT1)}, {s(sT1)}, 8")
    a(f"s_add_u32 {s(sK2b)}, {s(sK2b)}, {s(sT1)}")
    a(f"v_and_b32 v6, 31, {v(vL)}")
    a(f"v_lshrrev_b32 v7, 5, {v(vL)}")
    a(f"v_lshlrev_b32 {v(vQ2)}, 4, v6")
    a(f"v_lshl_add_u32 {v(vQ1)}, v7, 15, {v(vQ2)}")
    a(f"v_and_b32 {v(vK2)}, 7, v6")
    a(f"v_bfe_u32 v8, v6, 3, 1")
    a(f"v_lshl_add_u32 {v(vK2)}, v8, 4, {v(vK2)}")
    a(f"v_lshrrev_b32 v8, 4, v6")
    a(f"v_lshl_add_u32 {v(vK2)}, v8, 3, {v(vK2)}")
    a(f"v_lshlrev_b32 {v(vK2)}, 4, {v(vK2)}")
    a(f"v_lshl_add_u32 {v(vK1)}, v7, 15, {v(vK2)}")
    a(f"v_mul_u32_u24 {v(vV0)}, 320, v7")
    a(f"v_add_u32 {v(vV0)}, {v(vV0)}, {v(vQ2)}")
    for r in (vQ2, vK2):
        a(f"v_lshrrev_b32 v8, 8, {v(r)}")
        a(f"v_and_b32 {v(r)}, 0xff, {v(r)}")
        a(f"v_lshl_add_u32 {v(r)}, v8, 3, {v(r)}")
    a(f"v_add_u32 {v(vV1)}, 640, {v(vV0)}")
    a(f"s_mov_b32 {s(sVM)}, 0xfffff")
    a(f"s_mov_b32 {s(sVM+1)}, 0xfffff")
    a(f"v_cmp_eq_u32 vcc, 20, v6")
    a(f"v_mov_b32 v8, 0x3f803f80")
    a("s_nop 0")
    a(f"v_cndmask_b32 v10, 0, v8, vcc")
    for u in range(4):
        for r in range(4, 12): a(f"v_mov_b32 {v(KV+14*u+r)}, v10")
    for q in range(4):
        a(f"v_mov_b32 {v(Q+6*q+4)}, 0"); a(f"v_mov_b32 {v(Q+6*q+5)}, 0")
    for r in range(64): a(f"v_mov_b32 {v(O+r)}, 0")
    for r in range(8): a(f"v_mov_b32 {v(P+r)}, 0")
    a("s_waitcnt lgkmcnt(0)")
    srd(a, S_WS, P_WS, WS_BYTES)
    if Cfg.tlb:
        a(f"s_cmp_lg_u32 {s(S_WV)}, 0")
        a(f"s_cbranch_scc1 {pfx}_notlb")
        a(f"v_lshlrev_b32 v12, 21, {v(vL)}")
        a("s_mov_b64 exec, 3")
        for i, (p, nb) in enumerate(((P_WQKV, 640*3840), (P_WG, 640*3456), (P_WU, 640*3456), (P_WD, 1728*1280), (P_OUT, 2048*1280))):
            a(f"global_load_dword {v(240+i)}, v12, {s(p,2)}")
        a("s_mov_b64 exec, 1")
        a(f"global_load_dword v246, v12, {s(P_WO,2)}")
        a(f"s_mov_b64 exec, {(1 << ((WS_BYTES >> 21) + 1)) - 1}")
        a(f"global_load_dword v247, v12, {s(P_WS,2)}")
        a("s_mov_b64 exec, -1")
        a(f"{pfx}_notlb:")
    if Cfg.fused:
        a(f"v_mov_b32 {v(V_NONCE)}, 0")
        a("s_nop 0")
        nonce_check(a, f"{pfx}_nc", 12, sT0, sT1)
        a(f"v_lshlrev_b32 {v(vLin)}, 4, {v(vL)}")
        att_relayout(a, pfx, idreg, vL, vLin, 220, sT0, sT1, sT2, sT3)
        if Cfg.wpf:
            a(f"s_and_b32 {s(sT0)}, {s(idreg)}, 255")
            a(f"s_lshl_b32 {s(sT0)}, {s(sT0)}, 2")
            a(f"s_add_u32 {s(sT0)}, {s(sT0)}, {s(S_WV)}")
            srd(a, S_B, P_WD, 1728 * 1280)
            srd(a, S_C, P_WO, 640 * 1280)
            a(f"s_mul_i32 {s(sT1)}, {s(sT0)}, {17*128}")
            a(f"s_mul_i32 {s(sT2)}, {s(sT0)}, {7*128}")
            a(f"v_lshlrev_b32 v12, 7, {v(vL)}")
            a("s_mov_b64 exec, 0x1ffff")
            a(f"buffer_load_dword v13, v12, {s(S_B,4)}, {s(sT1)} offen")
            a("s_mov_b64 exec, 0x7f")
            a(f"buffer_load_dword v14, v12, {s(S_C,4)}, {s(sT2)} offen")
            a("s_mov_b64 exec, -1")
            a("s_waitcnt vmcnt(0)")
        pass
    a(f"s_lshl_b32 {s(sT0)}, {s(sQB)}, 12")
    a(f"s_lshl_b32 {s(sT1)}, {s(sQH)}, 11")
    a(f"s_add_u32 {s(sT0)}, {s(sT0)}, {s(sT1)}")
    a(f"s_lshl_b32 {s(sT1)}, {s(sKH)}, 10")
    a(f"s_add_u32 {s(sT3)}, {s(sT0)}, {s(sT1)}")
    a(f"s_xor_b32 {s(sT2)}, {s(sT3)}, 1024")
    a(f"s_add_u32 {s(sQ)}, {s(sT2)}, {s(sK1b)}")
    a(f"s_add_u32 {s(sQ+1)}, {s(sT3)}, {s(sK1b)}")
    a(f"s_add_u32 {s(sQ+2)}, {s(sT2)}, {s(sK2b)}")
    a(f"s_add_u32 {s(sQ+3)}, {s(sT3)}, {s(sK2b)}")
    a(f"s_lshl_b32 {s(sT0)}, {s(sKH)}, 14")
    a(f"s_add_u32 {s(sT0)}, {s(sT0)}, {80*32768}")
    a(f"s_add_u32 {s(sK1b)}, {s(sK1b)}, {s(sT0)}")
    a(f"s_add_u32 {s(sK2b)}, {s(sK2b)}, {s(sT0)}")
    a(f"s_mul_i32 {s(sVb)}, {s(sHD)}, 81920")
    a(f"s_mul_i32 {s(sT0)}, {s(sKH)}, 40960")
    a(f"s_add_u32 {s(sVb)}, {s(sVb)}, {s(sT0)}")
    a(f"s_add_u32 {s(sVb)}, {s(sVb)}, {V_OFF}")
    a(f"s_mov_b32 {s(sG)}, {s(sQB)}")
    def setgrp():
        return [f"s_lshl_b32 {s(sT0)}, {s(sG)}, 11", f"s_add_u32 {s(sK1)}, {s(sK1b)}, {s(sT0)}", f"s_add_u32 {s(sK2)}, {s(sK2b)}, {s(sT0)}",
                f"s_mul_i32 {s(sT0)}, {s(sG)}, 5120", f"s_add_u32 {s(sV)}, {s(sVb)}, {s(sT0)}"]
    a.ext(setgrp())
    a(f"s_mov_b32 {s(sIT)}, {8 if Cfg.nost else 4}")
    a(f"s_mul_i32 {s(sT0)}, {s(sKH)}, 10240")
    a(f"s_mul_i32 {s(sLB)}, {s(sQH)}, 5120")
    a(f"s_add_u32 {s(sLB)}, {s(sLB)}, {s(sT0)}")
    a(f"v_lshlrev_b32 {v(vLin)}, 4, {v(vL)}")
    a(f"v_add_u32 {v(vLK1)}, {s(sT0)}, {v(vLin)}")
    a(f"s_add_u32 {s(sT1)}, {s(sT0)}, 2048")
    a(f"v_add_u32 {v(vLV)}, {s(sT1)}, {v(vV0)}")
    a(f"s_add_u32 {s(sT1)}, {s(sT0)}, 4608")
    a(f"v_add_u32 {v(vLK2)}, {s(sT1)}, {v(vK2)}")
    a(f"s_lshl_b32 {s(sT0)}, {s(sQH)}, 10")
    a(f"s_add_u32 {s(sDK)}, {s(sK1b)}, {s(sT0)}")
    a(f"s_add_u32 {s(sT0)}, {s(sK2b)}, {s(sT0)}")
    a(f"s_mul_i32 {s(sT1)}, {s(sQH)}, 2560")
    a(f"s_add_u32 {s(sDV)}, {s(sVb)}, {s(sT1)}")
    a(f"s_add_u32 {s(sT1)}, {s(sDV)}, 2048")
    a(f"v_add_u32 {v(vMB)}, {s(sT1)}, {v(vLin)}")
    a(f"v_mov_b32 {v(vMI)}, 5120")
    a(f"v_bfe_u32 v8, {v(vL)}, 4, 1")
    a(f"v_and_b32 v9, 15, {v(vL)}")
    a(f"v_lshlrev_b32 v9, 4, v9")
    a(f"v_lshl_add_u32 v8, v8, 9, v9")
    a("s_mov_b32 exec_lo, 0")
    a(f"v_add_u32 {v(vMB)}, {s(sT0)}, v8")
    a(f"v_mov_b32 {v(vMI)}, 2048")
    a("s_mov_b32 exec_lo, -1")
    if Cfg.lpro:
        a(f"v_mov_b32 {v(vQS)}, v8")
        a(f"v_mad_u32_u24 {v(vM)}, {v(vMI)}, {s(sG)}, {v(vMB)}")
        a(f"s_mul_i32 {s(sPQ)}, {s(S_WV)}, 2560")
        a(f"s_add_u32 {s(sPQ)}, {s(sPQ)}, 61440")
        a(f"s_xor_b32 {s(sT0)}, {s(S_WV)}, 2")
        a(f"s_mul_i32 {s(sT0)}, {s(sT0)}, 2560")
        a(f"s_add_u32 {s(sT0)}, {s(sT0)}, 61440")
        for i, r in enumerate((sT0, sPQ)):
            a(f"v_add_u32 {v(vQA+i)}, {s(r)}, {v(vLin)}")
            a(f"v_add_u32 {v(vQB+i)}, {s(r)}, {v(vQ2)}")
        a(f"s_lshl_b32 {s(sPK)}, {s(sG)}, 11")
        a(f"s_add_u32 {s(sPK)}, {s(sPK)}, {s(sDK)}")
        a(f"s_mul_i32 {s(sPV)}, {s(sG)}, 5120")
        a(f"s_add_u32 {s(sPV)}, {s(sPV)}, {s(sDV)}")
        a(f"s_lshl_b32 {s(sT0)}, {s(sQH)}, 4")
        a(f"s_lshl_b32 {s(sPM)}, 0xffff, {s(sT0)}")
        a(f"s_mov_b32 {s(sPM+1)}, 0")
    a(f"s_cmp_eq_u32 {s(S_WV)}, 0")
    a(f"s_cselect_b32 {s(sHW)}, {1 if Cfg.hau < 4 else 5 - Cfg.hau // 4}, -1")
    a(f"s_cselect_b32 {s(sHX)}, {5 - Cfg.hb // 4}, -1")
    a(f"s_mul_i32 {s(sT0)}, {s(S_WV)}, 6144")
    a(f"s_xor_b32 {s(sT1)}, {s(S_WV)}, 2")
    a(f"s_mul_i32 {s(sT1)}, {s(sT1)}, 6144")
    a(f"v_add_u32 {v(vXW)}, {s(sT0)}, {v(vLin)}")
    a(f"v_add_u32 {v(vXR)}, {s(sT1)}, {v(vLin)}")
    a(f"v_bfe_u32 v8, {v(vL)}, 4, 1")
    a(f"v_lshl_add_u32 {v(vOM)}, v8, 14, v9")
    a(f"v_lshl_add_u32 {v(vOM)}, v7, 8, {v(vOM)}")
    a(f"s_lshl_b32 {s(sT0)}, {s(sQB)}, 2")
    a(f"s_lshl_b32 {s(sT1)}, {s(sQH)}, 1")
    a(f"s_add_u32 {s(sT0)}, {s(sT0)}, {s(sT1)}")
    a(f"s_add_u32 {s(sT0)}, {s(sT0)}, {s(sKH)}")
    a(f"s_lshl_b32 {s(sF3)}, {s(sT0)}, 5")
    a(f"s_add_u32 {s(sF3)}, {s(sF3)}, {s(sHD)}")
    a(f"s_lshl_b32 {s(sF3)}, {s(sF3)}, 6")
    a(f"s_add_u32 {s(sF3)}, {s(sF3)}, {F3_OFF}")
    a(f"s_lshl_b32 {s(sT1)}, {s(sHD)}, 9")
    a(f"s_lshl_b32 {s(sT2)}, {s(sT0)}, 16")
    a(f"s_add_u32 {s(sOM)}, {s(sT1)}, {s(sT2)}")
    a(f"s_add_u32 {s(sOM)}, {s(sOM)}, {O_OFF}")
    a(f"s_add_u32 {s(sOM+1)}, {s(sOM)}, 32768")
    a(f"s_lshl_b32 {s(sT2)}, {s(sT0)}, 14")
    a(f"s_add_u32 {s(sOL)}, {s(sT1)}, {s(sT2)}")
    a(f"s_add_u32 {s(sOL)}, {s(sOL)}, {OL_OFF}")
    if Cfg.fused:
        a(f"s_and_b32 {s(sT0)}, {s(sHD)}, 15")
        a(f"s_mul_i32 {s(sT0)}, {s(sT0)}, 20")
        a(f"s_add_u32 {s(sT1)}, {s(sT0)}, 19")
        a(f"s_lshr_b32 {s(sT0)}, {s(sT0)}, 6")
        a(f"s_lshr_b32 {s(sT1)}, {s(sT1)}, 6")
        a(f"s_sub_u32 {s(sT1)}, {s(sT1)}, {s(sT0)}")
        a(f"v_bfe_u32 v12, {v(vL)}, 3, 1")
        a(f"v_mul_u32_u24 v12, {s(sT1)}, v12")
        a(f"v_add_u32 v12, {s(sT0)}, v12")
        a(f"v_bfe_u32 v13, {v(vL)}, 4, 1")
        a(f"v_mad_u32_u24 v13, v13, 5, 5")
        a(f"s_lshl_b32 {s(sT2)}, {s(sKH)}, 3")
        a(f"v_and_b32 v14, 7, {v(vL)}")
        a(f"v_add_u32 v14, {s(sT2)}, v14")
        a(f"s_add_u32 {s(sT2)}, {s(sT2)}, {s(sG)}")
        a(f"v_mov_b32 v15, {s(sT2)}")
        if Cfg.wgp:
            a(f"v_and_b32 v16, 1, {v(vL)}")
            a(f"v_lshl_add_u32 v15, v16, 3, v15")
        a(f"s_lshl_b32 {s(sT2)}, {s(sQB)}, 1")
        a(f"s_add_u32 {s(sT2)}, {s(sT2)}, {s(sQH)}")
        a("s_mov_b32 exec_lo, 0")
        a(f"v_mov_b32 v13, 0")
        a(f"v_mov_b32 v14, {s(sT2)}")
        a(f"v_add_u32 v15, {s(sT2)}, v16" if Cfg.wgp else f"v_mov_b32 v15, {s(sT2)}")
        a("s_mov_b32 exec_lo, -1")
        a(f"v_add_u32 v12, v12, v13")
        a(f"v_lshl_add_u32 v15, v12, 4, v15")
        a(f"v_lshl_add_u32 v12, v12, 4, v14")
        assert Cfg.fst == 64 or not Cfg.early
        a(f"v_mul_u32_u24 v12, {Cfg.fst}, v12")
        a(f"v_mul_u32_u24 v15, {Cfg.fst}, v15")
        a(f"s_mov_b32 {s(sT3)}, {FX_OFF}")
        if Cfg.early == 2:
            a(f"s_and_b32 {s(sT0)}, {s(idreg)}, 0x81")
            a(f"s_cmp_eq_u32 {s(sT0)}, 1")
        else: a(f"s_cmp_lt_u32 {s(sHD)}, {len(EARLY)}")
        a(f"s_cselect_b32 {s(sT3)}, {F0_OFF}, {s(sT3)}")
        if Cfg.spf:
            a(f"s_and_b32 s4, {s(idreg)}, 1"); a(f"s_bfe_u32 s5, {s(idreg)}, {5 | (3<<16)}"); a("s_lshl3_add_u32 s4, s4, s5")
            a("s_lshl_b32 s4, s4, 7")
            a(f"s_bfe_u32 s5, {s(idreg)}, {3 | (2<<16)}"); a(f"s_lshl2_add_u32 s5, s5, {s(S_WV)}")
            a(f"s_mul_i32 s5, s5, {40*3456}"); a("s_add_u32 s4, s4, s5")
            for P_ in ([P_WG] if Cfg.spf & 2 else []) + ([P_WU] if Cfg.spf & 1 else []):
                a("s_mov_b32 s5, s4")
                for i in range(40):
                    a(f"s_load_dword s6, {s(P_,2)}, s5")
                    a("s_add_u32 s5, s5, 3456")
                    if i % Cfg.spn == Cfg.spn - 1: a("s_waitcnt lgkmcnt(0)")
            a("s_waitcnt lgkmcnt(0)")
        stamp(a, "a_ready")
        setprio(a, 3)
        if Cfg.hint:
            a(f"s_and_b32 {s(sT1)}, {s(idreg)}, 255")
            if Cfg.hint == 2:
                a(f"s_and_b32 {s(sT0)}, {s(sT1)}, 0xe1")
                a(f"s_cmp_eq_u32 {s(sT0)}, 0xe1")
                a(f"s_cselect_b32 {s(sT0)}, 32, 0")
                a(f"s_sub_u32 {s(sT1)}, {s(sT1)}, {s(sT0)}")
            if Cfg.early:
                a(f"s_cmp_eq_u32 {s(sT3)}, {F0_OFF}")
                a(f"s_cbranch_scc1 {pfx}_ph_ok")
            a(f"s_lshl_b32 {s(sT1)}, {s(sT1)}, 7")
            a(f"s_add_u32 {s(sT1)}, {s(sT1)}, {FP_OFF}")
            a("s_mov_b64 exec, 1")
            poll(a, f"{pfx}_ph", None, sT1, 16, sT0, Cfg.phs)
            a("s_mov_b64 exec, -1")
        if Cfg.spoll:
            SA, SD = 4, 10
            for i in range(6): a(f"v_readlane_b32 {s(SA+i)}, v15, {8*i}")
            a(f"v_readfirstlane_b32 s16, {v(V_NONCE)}")
            for i in range(6): a(f"s_add_u32 {s(SA+i)}, {s(SA+i)}, {s(sT3)}")
            a(f"s_mov_b32 {s(sT0)}, 0x20000")
            a(f"{pfx}_sp:")
            for i in range(6): a(f"s_load_dword {s(SD+i)}, {s(P_WS,2)}, {s(SA+i)} glc")
            a("s_waitcnt lgkmcnt(0)")
            for i in range(6): a(f"s_xor_b32 {s(SD+i)}, {s(SD+i)}, s16")
            for i in range(1, 6): a(f"s_or_b32 {s(SD)}, {s(SD)}, {s(SD+i)}")
            a(f"s_cbranch_scc0 {pfx}_sp_ok")
            a(f"s_sub_u32 {s(sT0)}, {s(sT0)}, 1")
            a(f"s_cbranch_scc1 {pfx}_sp_ok")
            a(f"s_sleep {Cfg.p0s}")
            a(f"s_branch {pfx}_sp")
            a(f"{pfx}_sp_ok:")
        else:
            if Cfg.wgp:
                a(f"s_cmp_lg_u32 {s(S_WV)}, 0"); a(f"s_cbranch_scc1 {pfx}_p0_ok")
            poll(a, f"{pfx}_p0", 15, sT3, 16, sT0, Cfg.p0s, 17 if Cfg.pp0 else None)
            if Cfg.wgp: a("s_barrier")
        setprio(a, Cfg.prioB)
        stamp(a, "a_go")
    def kvload(u):
        b = KV + 14 * u
        return [f"buffer_load_dwordx4 {v(b,4)}, {v(vK1)}, {s(S_WS,4)}, {s(sK1)} offen offset:{u*512}{SC1}",
                f"buffer_load_dwordx2 {v(b+12,2)}, {v(vK2)}, {s(S_WS,4)}, {s(sK2)} offen offset:{u*512}{SC1}",
                f"s_mov_b64 exec, {s(sVM,2)}",
                f"buffer_load_dwordx4 {v(b+4,4)}, {v(vV0)}, {s(S_WS,4)}, {s(sV)} offen offset:{u*1280}{SC1}",
                f"buffer_load_dwordx4 {v(b+8,4)}, {v(vV1)}, {s(S_WS,4)}, {s(sV)} offen offset:{u*1280}{SC1}",
                "s_mov_b64 exec, -1"]
    def kvread(u, nxt):
        b = KV + 14 * u; o = nxt * 20480 + (u >> 1) * 5120; sub = u & 1
        return [[f"ds_read_b128 {v(b,4)}, {v(vLK1)} offset:{o+sub*1024}",
                 f"ds_read_b64 {v(b+12,2)}, {v(vLK2)} offset:{o+sub*256}"],
                [f"s_mov_b64 exec, {s(sVM,2)}",
                 f"ds_read_b128 {v(b+4,4)}, {v(vLV)} offset:{o+sub*1280}",
                 f"ds_read_b128 {v(b+8,4)}, {v(vLV)} offset:{o+sub*1280+640}",
                 "s_mov_b64 exec, -1"]]
    if Cfg.lpro:
        dm = lambda va, so, off: f"buffer_load_dwordx4 {v(va)}, {s(S_WS,4)}, {so} offen offset:{off} sc1 lds"
        for m, base, ins in ((40960, sLB, [dm(vK1, s(sPK), 0)]), (0, sPQ, [dm(vQ1, s(sQ+1), 0)]),
                             (40960+512, sLB, [dm(vK1, s(sPK), 512)]), (512, sPQ, [dm(vQ1, s(sQ+1), 512)]),
                             (40960+4096, sLB, [dm(vM, "0", 0)]),
                             (2048, sPQ, ["s_mov_b32 exec_hi, 0", dm(vQS, s(sQ+3), 0), "s_mov_b32 exec_hi, -1"]),
                             (40960+2048, sLB, [dm(vLin, s(sPV), 0), dm(vLin, s(sPV), 1024)])):
            a(f"s_add_u32 m0, {s(base)}, {m}"); a("s_nop 0"); a.ext(ins)
        a(f"s_mov_b64 exec, {s(sPM,2)}")
        a(f"buffer_load_dword v13, v12, {s(S_WS,4)}, {s(sT3)} offen sc1")
        a("s_mov_b64 exec, -1")
        stamp(a, "issued")
        a("s_waitcnt vmcnt(1)")
        a("s_barrier")
        for q in range(4): a(f"ds_read_b128 {v(Q+6*q,4)}, {v(vQA+(q>>1))} offset:{(q&1)*1024}")
        a("s_mov_b32 exec_hi, 0")
        for q in range(4): a(f"ds_read_b64 {v(Q+6*q+4,2)}, {v(vQB+(q>>1))} offset:{2048+(q&1)*256}")
        a("s_mov_b32 exec_hi, -1")
        for u in range(3):
            if u == 1: a("s_waitcnt lgkmcnt(6)")
            for x in kvread(u, 2): a.ext(x)
        a(f"s_mov_b64 exec, {s(sPM,2)}")
        a("s_waitcnt vmcnt(0)")
        a(f"v_cmp_ne_u32 vcc, v13, {v(V_NONCE)}")
        a("s_nop 1")
        a(f"s_cbranch_vccz {pfx}_p1_ok")
        poll(a, f"{pfx}_p1", 12, sT3, 13, sT0, Cfg.p1s)
        a("s_mov_b64 exec, -1")
        a("s_waitcnt lgkmcnt(0)")
        a("s_barrier")
    else:
        for q in range(4):
            a(f"buffer_load_dwordx4 {v(Q+6*q,4)}, {v(vQ1)}, {s(S_WS,4)}, {s(sQ+(q>>1))} offen offset:{(q&1)*512}{SC1}")
        if Cfg.thq >= 0: a(f"s_waitcnt vmcnt({Cfg.thq})")
        a("s_mov_b32 exec_hi, 0")
        for q in range(4):
            a(f"buffer_load_dwordx2 {v(Q+6*q+4,2)}, {v(vQ2)}, {s(S_WS,4)}, {s(sQ+2+(q>>1))} offen offset:{(q&1)*512}{SC1}")
        a("s_mov_b32 exec_hi, -1")
        for u in range(3):
            if Cfg.tha >= 0: a(f"s_waitcnt vmcnt({Cfg.tha})")
            a.ext(kvload(u))
            if u == Cfg.fpos: a(f"buffer_load_dword v13, v12, {s(S_WS,4)}, {s(sT3)} offen sc1")
        stamp(a, "issued")
        a(f"s_waitcnt vmcnt({8 - 4 * Cfg.fpos})")
        a(f"v_cmp_ne_u32 vcc, v13, {v(V_NONCE)}")
        a("s_nop 1")
        a(f"s_cbranch_vccz {pfx}_p1_ok")
        poll(a, f"{pfx}_p1", 12, sT3, 13, sT0, Cfg.p1s)
    setprio(a, Cfg.prioA)
    stamp(a, "q_kv0")
    a(mf32(S, KV, Q, "0"))
    a(mf8(S, KV + 12, Q + 4))
    a("s_nop 11")
    def loop(tag, lds):
        a(".p2align 3")
        a(f"{pfx}_loop{tag}:")
        ndma = [0, 0, 0, 0]
        for u in range(4):
            b = KV + 14 * u; bn = KV + 14 * ((u + 1) & 3); bp = KV + 14 * ((u - 1) & 3)
            items = []
            if not lds:
                if u == 0: items = [f"s_xor_b32 {s(sG4)}, {s(sG)}, 4", f"s_add_u32 {s(sG)}, {s(sG)}, 1", f"s_and_b32 {s(sG)}, {s(sG)}, 7"] + setgrp()
                dm = lambda va, so, off: f"buffer_load_dwordx4 {v(va)}, {s(S_WS,4)}, {so} offen offset:{off} sc1 lds"
                if u == 1: items = [f"s_lshl_b32 {s(sT0)}, {s(sG4)}, 11", f"s_mov_b32 m0, {s(sLB)}", [f"s_add_u32 {s(sT0)}, {s(sT0)}, {s(sDK)}", dm(vK1, s(sT0), 0)],
                                    f"s_add_u32 m0, {s(sLB)}, 512", [f"s_mul_i32 {s(sT1)}, {s(sG4)}, 5120", dm(vK1, s(sT0), 512)],
                                    f"s_add_u32 m0, {s(sLB)}, 2048"]
                if u == 2: items = [[f"s_add_u32 {s(sT1)}, {s(sT1)}, {s(sDV)}", dm(vLin, s(sT1), 0)],
                                    [f"v_mad_u32_u24 {v(vM)}, {v(vMI)}, {s(sG4)}, {v(vMB)}"], [dm(vLin, s(sT1), 1024)],
                                    f"s_add_u32 m0, {s(sLB)}, 4096", [f"s_add_u32 {s(sLB)}, {s(sLB)}, 20480", dm(vM, "0", 0)]]
            if Cfg.nost and u in (1, 2): items = []
            if Cfg.gate and lds == (Cfg.hau >= 4) and u == Cfg.hau % 4:
                items += [f"s_cmp_eq_u32 {s(sIT)}, {s(sHW)}", [f"s_cbranch_scc1 {pfx}_ha", f"{pfx}_har:"]]
            if Cfg.gj >= 0 and lds and u == Cfg.hb % 4:
                items += [f"s_cmp_eq_u32 {s(sIT)}, {s(sHX)}", [f"s_cbranch_scc1 {pfx}_hx", f"{pfx}_hxr:"]]
            if lds and u == Cfg.mbu:
                items += [f"s_cmp_eq_u32 {s(sIT)}, 1", [f"s_cbranch_scc1 {pfx}_mb", f"{pfx}_mbr:"]]
            if u == 3:
                items += [f"s_sub_u32 {s(sIT)}, {s(sIT)}, 1", f"s_cmp_lg_u32 {s(sIT)}, 0"]
                if lds: items += [f"v_add_u32 {v(r)}, 0x5000, {v(r)}" for r in (vLK1, vLK2, vLV)]
            ld = kvread((u + 3) & 3, u > 0) if lds else [kvload((u + 3) & 3)[:2], kvload((u + 3) & 3)[2:]]
            if Cfg.x_nokv: ld = [[], []]
            vmw = {0: 8, 1: 10, 2: 13, 3: 11}[u] if not Cfg.nost else 8
            for q in range(4):
                Sc = S + 16 * (q & 1); Sn = S + 16 * ((q + 1) & 1)
                qn, qp = (q + 1) & 3, (q - 1) & 3
                kn = b if q < 3 else bn
                kp = b if q > 0 else bp
                ex = [f"v_exp_f32 {v(Sc+i)}, {v(Sc+i)}" for i in range(16)]
                cv = [f"v_cvt_pk_bf16_f32 {v(P+i)}, {v(Sc+2*i)}, {v(Sc+2*i+1)}" for i in range(8)]
                def free():
                    if items:
                        it = items.pop(0)
                        a.ext(it if isinstance(it, list) else [it])
                a(mf32(Sn, kn, Q + 6 * qn, "0"))
                if q == 0: a.ext(ld[0])
                else: free()
                a.ext(ex[0:4])
                a(mf32(O + 16 * qp, kp + 8, P + 4))
                if q == 0: a.ext(ld[1])
                else: free()
                a.ext(ex[4:8] + cv[0:2])
                a(mf8(Sn, kn + 12, Q + 6 * qn + 4))
                a.ext(ex[8:9] + cv[2:4] + ex[9:12])
                a(mf32(O + 16 * q, b + 4, P))
                if q == 2:
                    assert not any("lds" in str(it) for it in items)
                    a(("s_waitcnt vmcnt(0) lgkmcnt(8)" if u == 0 else "s_waitcnt lgkmcnt(8)") if lds else f"s_waitcnt vmcnt({vmw})")
                else: free()
                a.ext(ex[12:16] + cv[4:8])
            assert not items
        a(f"s_cbranch_scc1 {pfx}_loop{tag}")
    loop("a", False)
    if Cfg.nost: a(f"s_branch {pfx}_epi")
    a(f"s_mov_b32 {s(sIT)}, 4")
    a("s_waitcnt vmcnt(4)")
    a("s_barrier")
    stamp(a, "half")
    a(f"s_branch {pfx}_loopb")
    if Cfg.gj >= 0:
        a(f"{pfx}_hx:")
        a(f"s_and_b32 {s(sHX)}, {s(idreg)}, 255")
        a(f"s_lshl_b32 {s(sHX)}, {s(sHX)}, 7")
        a(f"s_add_u32 {s(sHX)}, {s(sHX)}, {FP_OFF}")
        publish(a, sHX)
        a(f"s_branch {pfx}_hxr")
    if Cfg.gate:
        a(f"{pfx}_ha:")
        a(f"s_and_b32 {s(sHW)}, {s(idreg)}, 255")
        a(f"s_lshl_b32 {s(sHW)}, {s(sHW)}, 6")
        a(f"s_add_u32 {s(sHW)}, {s(sHW)}, {FH_OFF + 32}")
        publish(a, sHW)
        a(f"s_branch {pfx}_har")
    a(f"{pfx}_mb:")
    a("s_barrier")
    if 0 < Cfg.lag < 4:
        a(f"s_cmp_lg_u32 {s(S_WV)}, 0")
        a(f"s_cbranch_scc1 {pfx}_mbr")
        a(f"s_and_b32 {s(sT0)}, {s(idreg)}, 255")
        a(f"s_lshl_b32 {s(sT0)}, {s(sT0)}, 6")
        a(f"s_add_u32 {s(sT0)}, {s(sT0)}, {FH_OFF}")
        publish(a, sT0)
        if Cfg.tc & 4: a.ext(touch(f"{pfx}_epi", f"{pfx}_fb", sT0, vM, vM))
    a(f"s_branch {pfx}_mbr")
    loop("b", True)
    a(f"{pfx}_epi:")
    setprio(a, Cfg.prioE)
    for j in range(2): a(f"ds_write_b128 {v(vXW)}, {v(O+4*j,4)} offset:{j*1024}")
    a(mf32(O + 48, KV + 14 * 3 + 8, P + 4))
    stamp(a, "loopdone")
    a(f"ds_write_b128 {v(vXW)}, {v(O+8,4)} offset:2048")
    for j in range(3): a(f"ds_write_b128 {v(vXW)}, {v(O+16+4*j,4)} offset:{3072+j*1024}")
    a("s_waitcnt lgkmcnt(0)")
    a("s_barrier")
    R = S
    for t in range(2):
        for j in (2, 0, 1): a(f"ds_read_b128 {v(R+16*t+4*j,4)}, {v(vXR)} offset:{t*3072+j*1024}")
    a(f"{pfx}_fin:")
    for t in range(2):
        o = O + 32 + 16 * t; r = R + 16 * t; d = (14, P)[t]
        pa = lambda i: f"v_pk_add_f32 {v(o+i,2)}, {v(o+i,2)}, {v(r+i,2)}"
        a(f"s_waitcnt lgkmcnt({5-3*t})")
        a(f"v_add_f32 v12, {v(o+8)}, {v(r+8)}")
        a(f"v_add_f32 {v(22+t)}, {v(o+8)}, {v(r+8)}")
        a(pa(8)); a(pa(10))
        a(f"v_permlane32_swap_b32 v12, {v(22+t)}")
        a(f"s_waitcnt lgkmcnt({3-3*t})")
        a(f"v_rcp_f32 v12, {v(22+t)}")
        for i in range(0, 8, 2): a(pa(i))
        for i in range(0, 12, 2): a(f"v_pk_mul_f32 {v(o+i,2)}, {v(o+i,2)}, v[12:13] op_sel_hi:[1,0]")
        for j in range(6): a(f"v_cvt_pk_bf16_f32 {v(d+j if j < 4 else 18+2*t+j-4)}, {v(o+2*j)}, {v(o+2*j+1)}")
        a(f"buffer_store_dwordx4 {v(d,4)}, {v(vOM)}, {s(S_WS,4)}, {s(sOM+t)} offen{SC1}")
    a("s_mov_b32 exec_hi, 0")
    a(f"buffer_store_dwordx4 v[18:21], {v(vLin)}, {s(S_WS,4)}, {s(sOL)} offen{SC1}")
    stamp(a, "o_stored")
    a("s_mov_b32 exec_hi, -1")
    a(f"s_cmp_lg_u32 {s(sIT)}, 0")
    a(f"s_cbranch_scc1 {pfx}_ok")
    LO, HI = (127 - Cfg.lo) << 23, (127 + Cfg.hi) << 23
    a(f"v_subrev_u32 v22, {LO}, v22")
    a(f"v_subrev_u32 v23, {LO}, v23")
    a("v_max_u32 v22, v22, v23")
    a(f"v_cmp_lt_u32 vcc, {HI - LO}, v22")
    a(f"v_add_f32 v12, {v(O+32)}, {v(O+48)}")
    for i in range(1, 12):
        a(f"v_fma_f32 v12, {v(O+32+i)}, 0, v12")
        a(f"v_fma_f32 v12, {v(O+48+i)}, 0, v12")
    a(f"s_movk_i32 {s(sT0)}, 0x207")
    a(f"v_cmp_class_f32 {s(sT2,2)}, v12, {s(sT0)}")
    a("s_nop 0")
    a(f"s_or_b64 vcc, vcc, {s(sT2,2)}")
    a(f"s_cbranch_scc1 {pfx}_fb")
    a(f"{pfx}_ok:")
    a("s_waitcnt vmcnt(0)")
    publish(a, sF3)
    stamp(a, "o_pub")
    a(f"s_branch {pfx}_done")
    a(f"{pfx}_fb:")
    def rewind():
        a(f"s_lshl_b32 {s(sT0)}, {s(sKH)}, 14")
        a(f"s_sub_u32 {s(sK1)}, {s(sK1b)}, {s(sT0)}")
        a(f"s_sub_u32 {s(sK2)}, {s(sK2b)}, {s(sT0)}")
        a(f"s_mul_i32 {s(sT0)}, {s(sKH)}, 40960")
        a(f"s_sub_u32 {s(sV)}, {s(sVb)}, {s(sT0)}")
        a(f"s_mov_b32 {s(sIT)}, 0")
    def advance(lbl):
        a(f"s_add_u32 {s(sK1)}, {s(sK1)}, 512")
        a(f"s_add_u32 {s(sK2)}, {s(sK2)}, 512")
        a(f"s_add_u32 {s(sV)}, {s(sV)}, 1280")
        a(f"s_add_u32 {s(sIT)}, {s(sIT)}, 1")
        a(f"s_cmp_lt_u32 {s(sIT)}, 64")
        a(f"s_cbranch_scc1 {lbl}")
    rewind()
    a("v_mov_b32 v22, 0xff800000")
    a("v_mov_b32 v23, 0xff800000")
    a(f"{pfx}_fb1:")
    a.ext(kvload(0)[:2])
    a("s_waitcnt vmcnt(0)")
    for t in range(2): a(mf32(S + 16 * t, KV, Q + 12 + 6 * t, "0"))
    for t in range(2): a(mf8(S + 16 * t, KV + 12, Q + 16 + 6 * t))
    a("s_nop 11")
    for t in range(2):
        for i in range(0, 16, 2): a(f"v_max3_f32 {v(22+t)}, {v(S+16*t+i)}, {v(S+16*t+i+1)}, {v(22+t)}")
    advance(f"{pfx}_fb1")
    rewind()
    for t in range(2):
        a(f"v_mov_b32 v12, {v(22+t)}")
        a("s_nop 1")
        a(f"v_permlane32_swap_b32 v12, {v(22+t)}")
        a(f"v_max_f32 v12, v12, {v(22+t)}")
        for i in range(16):
            a(f"v_xor_b32 {v(O+16*t+i)}, 0x80000000, v12")
            a(f"v_mov_b32 {v(O+32+16*t+i)}, 0")
    a(f"{pfx}_fb2:")
    a.ext(kvload(0))
    a("s_waitcnt vmcnt(0)")
    for t in range(2): a(mf32(S + 16 * t, KV, Q + 12 + 6 * t, v(O + 16 * t, 16)))
    for t in range(2): a(mf8(S + 16 * t, KV + 12, Q + 16 + 6 * t))
    a("s_nop 11")
    for t in range(2):
        for i in range(16): a(f"v_exp_f32 {v(S+16*t+i)}, {v(S+16*t+i)}")
        for i in range(8): a(f"v_cvt_pk_bf16_f32 {v(P+i)}, {v(S+16*t+2*i)}, {v(S+16*t+2*i+1)}")
        a("s_nop 1")
        a(mf32(O + 32 + 16 * t, KV + 4, P))
        a(mf32(O + 32 + 16 * t, KV + 8, P + 4))
    advance(f"{pfx}_fb2")
    for i in range(32): a(f"v_mov_b32 {v(S+i)}, 0")
    a(f"s_branch {pfx}_fin")
    a(f"{pfx}_done:")

def gen_att(a, pfx, idreg):
    vL, vK1, vK2, vV0, vV1, vQ1, vQ2, vFA, vFR = 1, 2, 3, 4, 5, 6, 7, 8, 9
    vXW, vOM, vLin = 10, 22, 23
    P, S, O, Q, KV = 24, 32, 64, 128, 152
    RD = (208, 220, 232)
    vXR, vQA, vQB = 244, 247, 251
    QL = 73728
    sHD, sQB, sG0, sN, sK1, sK2, sV, sIT, sPH = 41, 42, 43, 44, 45, 46, 47, 48, 49
    sK1b, sK2b, sVb, sBAD = 50, 51, 52, 53
    sT0, sT1, sT2, sT3 = 54, 55, 56, 57
    sVM = 58
    sQ1, sQ2 = 96, 32
    sOM, sOL, sF3, sFF = 28, 29, 30, 31
    sDRY, sQM = 36, 37
    JK, JV = 40 * 32768, 16 * 81920
    a(f"v_and_b32 {v(vL)}, 63, v0")
    a(f"v_lshrrev_b32 v12, 6, v0")
    a(f"s_and_b32 {s(sT0)}, {s(idreg)}, 7")
    a(f"v_readfirstlane_b32 {s(S_WV)}, v12")
    a(f"s_bfe_u32 {s(sT1)}, {s(idreg)}, {7 | (1<<16)}")
    a(f"s_lshl1_add_u32 {s(sHD)}, {s(sT0)}, {s(sT1)}")
    a(f"s_bfe_u32 {s(sQB)}, {s(idreg)}, {3 | (4<<16)}")
    a(f"s_and_b32 {s(sG0)}, {s(sQB)}, 3")
    a(f"v_and_b32 v12, 31, {v(vL)}")
    a(f"v_lshrrev_b32 v13, 5, {v(vL)}")
    a(f"v_lshlrev_b32 {v(vQ2)}, 4, v12")
    a(f"v_lshl_add_u32 {v(vQ1)}, v13, 15, {v(vQ2)}")
    a(f"v_and_b32 {v(vK2)}, 7, v12")
    a(f"v_bfe_u32 v14, v12, 3, 1")
    a(f"v_lshl_add_u32 {v(vK2)}, v14, 4, {v(vK2)}")
    a(f"v_lshrrev_b32 v14, 4, v12")
    a(f"v_lshl_add_u32 {v(vK2)}, v14, 3, {v(vK2)}")
    a(f"v_lshlrev_b32 {v(vK2)}, 4, {v(vK2)}")
    a(f"v_lshl_add_u32 {v(vK1)}, v13, 15, {v(vK2)}")
    a(f"v_mul_u32_u24 {v(vV0)}, 320, v13")
    a(f"v_add_u32 {v(vV0)}, {v(vV0)}, {v(vQ2)}")
    a(f"v_add_u32 {v(vV1)}, 640, {v(vV0)}")
    for r in (vQ2, vK2):
        a(f"v_lshrrev_b32 v15, 8, {v(r)}")
        a(f"v_and_b32 {v(r)}, 0xff, {v(r)}")
        a(f"v_lshl_add_u32 {v(r)}, v15, 3, {v(r)}")
    a(f"v_lshlrev_b32 {v(vLin)}, 4, {v(vL)}")
    a(f"v_and_b32 {v(vOM)}, 0xff, {v(vLin)}")
    a(f"v_lshl_add_u32 {v(vOM)}, v14, 14, {v(vOM)}")
    a(f"v_lshl_add_u32 {v(vOM)}, v13, 8, {v(vOM)}")
    a(f"s_mov_b32 {s(sVM)}, 0xfffff")
    a(f"s_mov_b32 {s(sVM+1)}, 0xfffff")
    a(f"s_mul_i32 {s(sT0)}, {s(S_WV)}, 9216")
    a(f"v_add_u32 {v(vXW)}, {s(sT0)}, {v(vLin)}")
    for r in range(3):
        a(f"s_sub_u32 {s(sT0)}, {s(S_WV)}, {1 + r}")
        a(f"s_and_b32 {s(sT0)}, {s(sT0)}, 3")
        a(f"s_mul_i32 {s(sT0)}, {s(sT0)}, 9216")
        a(f"s_add_u32 {s(sT0)}, {s(sT0)}, {r*3072}")
        a(f"v_add_u32 {v(vXR+r)}, {s(sT0)}, {v(vLin)}")
    for i in range(4):
        a(f"s_add_u32 {s(sQM)}, {s(S_WV)}, {1 + i}")
        a(f"s_and_b32 {s(sQM)}, {s(sQM)}, 3")
        a(f"s_mul_i32 {s(sQM)}, {s(sQM)}, 1280")
        a(f"s_add_u32 {s(sQM)}, {s(sQM)}, {QL}")
        a(f"v_add_u32 {v(vQA+i)}, {s(sQM)}, {v(vLin)}")
        a(f"v_add_u32 {v(vQB+i)}, {s(sQM)}, {v(vQ2)}")
    a(f"v_mov_b32 {v(V_NONCE)}, 0")
    a(f"v_mov_b32 {v(vFR)}, 0")
    a(f"v_mov_b32 {v(vFA)}, 0")
    a("s_waitcnt lgkmcnt(0)")
    srd(a, S_WS, P_WS, 0)
    if Cfg.dry:
        a(f"s_mov_b32 {s(sDRY)}, 1")
        for r in (sPH, sOM, sOL, sF3, sQ1 + 3, sQ2 + 3): a(f"s_mov_b32 {s(r)}, 0")
        a(f"s_branch {pfx}_glue")
        a(f"{pfx}_dryr:")
        a("s_waitcnt vmcnt(0)")
        setprio(a, 0)
    a(f"s_mov_b32 {s(sDRY)}, 0")
    a(f"s_mov_b32 {s(S_WS+2)}, {WS_BYTES}")
    a(f"v_and_b32 v12, 31, {v(vL)}")
    a(f"v_cmp_eq_u32 vcc, 20, v12")
    a(f"v_mov_b32 v15, 0x3f803f80")
    a("s_nop 0")
    a(f"v_cndmask_b32 v15, 0, v15, vcc")
    for u in range(4):
        for r in range(4, 12): a(f"v_mov_b32 {v(KV+14*u+r)}, v15")
    for q in range(4):
        a(f"v_mov_b64 {v(Q+6*q+4,2)}, 0")
    for r in range(0, 64, 2): a(f"v_mov_b64 {v(O+r,2)}, 0")
    for r in range(0, 8, 2): a(f"v_mov_b64 {v(P+r,2)}, 0")
    nonce_check(a, f"{pfx}_nc", 12, sT0, sT1)
    a(f"s_lshr_b32 {s(sT0)}, {s(sHD)}, 1")
    a(f"s_and_b32 {s(sT1)}, {s(sHD)}, 1")
    a(f"s_mul_i32 {s(sT0)}, {s(sT0)}, 5")
    a(f"s_mul_i32 {s(sT2)}, {s(sT1)}, 3")
    a(f"s_add_u32 {s(sT2)}, {s(sT2)}, {s(sT0)}")
    a(f"s_lshl_b32 {s(sK1b)}, {s(sT2)}, 15")
    a(f"s_add_u32 {s(sT0)}, {s(sT0)}, 2")
    a(f"s_lshl_b32 {s(sK2b)}, {s(sT0)}, 15")
    a(f"s_lshl_b32 {s(sT1)}, {s(sT1)}, 8")
    a(f"s_add_u32 {s(sK2b)}, {s(sK2b)}, {s(sT1)}")
    att_relayout(a, pfx, idreg, vL, vLin, 212, sT0, sT1, sT2, sT3)
    for i in range(4):
        a(f"s_add_u32 {s(sT0)}, {s(S_WV)}, {1 + i}")
        a(f"s_and_b32 {s(sT0)}, {s(sT0)}, 3")
        a(f"s_lshl2_add_u32 {s(sT0)}, {s(sQB)}, {s(sT0)}")
        a(f"s_lshl_b32 {s(sT1)}, {s(sT0)}, 9")
        a(f"s_add_u32 {s(sQ1+i)}, {s(sT1)}, {s(sK1b)}")
        a(f"s_add_u32 {s(sQ2+i)}, {s(sT1)}, {s(sK2b)}")
    a(f"s_lshl_b32 {s(sOM)}, {s(sT0)}, 15")
    a(f"s_lshl_b32 {s(sT1)}, {s(sHD)}, 9")
    a(f"s_add_u32 {s(sOM)}, {s(sOM)}, {s(sT1)}")
    a(f"s_add_u32 {s(sOM)}, {s(sOM)}, {O_OFF}")
    a(f"s_lshl_b32 {s(sOL)}, {s(sT0)}, 13")
    a(f"s_lshl_b32 {s(sT1)}, {s(sHD)}, 8")
    a(f"s_add_u32 {s(sOL)}, {s(sOL)}, {s(sT1)}")
    a(f"s_add_u32 {s(sOL)}, {s(sOL)}, {OL_OFF}")
    a(f"s_lshl4_add_u32 {s(sF3)}, {s(sT0)}, {s(sHD)}")
    a(f"s_lshl_b32 {s(sF3)}, {s(sF3)}, 6")
    a(f"s_add_u32 {s(sF3)}, {s(sF3)}, {F3_OFF}")
    a(f"s_lshl_b32 {s(sT0)}, {s(S_WV)}, 13")
    a(f"s_add_u32 {s(sT0)}, {s(sT0)}, {80*32768}")
    a(f"s_add_u32 {s(sK1b)}, {s(sK1b)}, {s(sT0)}")
    a(f"s_add_u32 {s(sK2b)}, {s(sK2b)}, {s(sT0)}")
    a(f"s_mul_i32 {s(sVb)}, {s(sHD)}, 81920")
    a(f"s_mul_i32 {s(sT0)}, {s(S_WV)}, 20480")
    a(f"s_add_u32 {s(sVb)}, {s(sVb)}, {s(sT0)}")
    a(f"s_add_u32 {s(sVb)}, {s(sVb)}, {V_OFF}")
    a(f"s_mov_b32 {s(sN)}, {s(sG0)}")
    a(f"s_mov_b32 {s(sBAD)}, 0")
    def setgrp():
        return [f"s_lshl_b32 {s(sT0)}, {s(sN)}, 11", f"s_add_u32 {s(sK1)}, {s(sK1b)}, {s(sT0)}", f"s_add_u32 {s(sK2)}, {s(sK2b)}, {s(sT0)}",
                f"s_mul_i32 {s(sT0)}, {s(sN)}, 5120", f"s_add_u32 {s(sV)}, {s(sVb)}, {s(sT0)}"]
    a.ext(setgrp())
    a(f"s_mul_i32 {s(sT0)}, {s(sHD)}, 20")
    a(f"s_add_u32 {s(sT1)}, {s(sT0)}, 19")
    a(f"s_lshr_b32 {s(sT0)}, {s(sT0)}, 6")
    a(f"s_lshr_b32 {s(sT1)}, {s(sT1)}, 6")
    a(f"s_sub_u32 {s(sT1)}, {s(sT1)}, {s(sT0)}")
    a(f"v_bfe_u32 v12, {v(vL)}, 3, 1")
    a(f"v_mul_u32_u24 v12, {s(sT1)}, v12")
    a(f"v_add_u32 v12, {s(sT0)}, v12")
    a(f"v_bfe_u32 v13, {v(vL)}, 4, 1")
    a(f"v_mad_u32_u24 v13, v13, 5, 5")
    a(f"s_lshl_b32 {s(sT2)}, {s(S_WV)}, 2")
    a(f"v_and_b32 v14, 3, {v(vL)}")
    a(f"v_add_u32 v14, {s(sT2)}, v14")
    a(f"s_add_u32 {s(sT2)}, {s(sT2)}, {s(sG0)}")
    a(f"v_mov_b32 v15, {s(sT2)}")
    a("s_mov_b32 exec_lo, 0")
    a(f"v_mov_b32 v13, 0")
    a(f"v_mov_b32 v14, {s(sQB)}")
    a(f"v_mov_b32 v15, {s(sQB)}")
    a("s_mov_b32 exec_lo, -1")
    a(f"v_add_u32 v12, v12, v13")
    a(f"v_lshl_add_u32 v15, v12, 4, v15")
    a(f"v_lshl_add_u32 {v(vFA)}, v12, 4, v14")
    a(f"v_lshlrev_b32 {v(vFA)}, 6, {v(vFA)}")
    a(f"v_lshlrev_b32 v15, 6, v15")
    a(f"s_mov_b32 {s(sFF)}, {F0_OFF}")
    a(f"s_mov_b32 {s(sIT)}, 2")
    a(f"s_mov_b32 {s(sPH)}, 0")
    stamp(a, "a_ready")
    if Cfg.x_aexit:
        publish(a, sF3); a(f"s_add_u32 {s(sF3)}, {s(sF3)}, 65536"); publish(a, sF3); a(f"s_branch {pfx}_done")
    setprio(a, 3)
    if Cfg.hint:
        a(f"s_and_b32 {s(sT1)}, {s(idreg)}, 255")
        a(f"s_lshl_b32 {s(sT1)}, {s(sT1)}, 7")
        a(f"s_add_u32 {s(sT1)}, {s(sT1)}, {FP_OFF}")
        a("s_mov_b64 exec, 1")
        poll(a, f"{pfx}_ph", None, sT1, 16, sT0, Cfg.phs)
        a("s_mov_b64 exec, -1")
    poll(a, f"{pfx}_p0", 15, sFF, 16, sT0, Cfg.p0s, 17 if Cfg.pp0 else None)
    setprio(a, Cfg.prioB)
    stamp(a, "a_go")
    def qload(d, tiles, off=0):
        o = [f"buffer_load_dwordx4 {v(d+6*q,4)}, {v(vQ1)}, {s(S_WS,4)}, {s(sQ1+q)} offen sc1" for q in tiles] + ["s_mov_b32 exec_hi, 0"]
        return o + [f"buffer_load_dwordx2 {v(d+6*q+4,2)}, {v(vQ2)}, {s(S_WS,4)}, {s(sQ2+q)} offen sc1" for q in tiles] + ["s_mov_b32 exec_hi, -1"]
    def kvload(u):
        b = KV + 14 * u
        return [f"buffer_load_dwordx4 {v(b,4)}, {v(vK1)}, {s(S_WS,4)}, {s(sK1)} offen offset:{u*512} sc1",
                f"buffer_load_dwordx2 {v(b+12,2)}, {v(vK2)}, {s(S_WS,4)}, {s(sK2)} offen offset:{u*512} sc1",
                f"s_mov_b64 exec, {s(sVM,2)}",
                f"buffer_load_dwordx4 {v(b+4,4)}, {v(vV0)}, {s(S_WS,4)}, {s(sV)} offen offset:{u*1280} sc1",
                f"buffer_load_dwordx4 {v(b+8,4)}, {v(vV1)}, {s(S_WS,4)}, {s(sV)} offen offset:{u*1280} sc1",
                "s_mov_b64 exec, -1"]
    freq = f"buffer_load_dword {v(vFR)}, {v(vFA)}, {s(S_WS,4)}, {s(sFF)} offen sc1"
    def fchk(tag):
        a(f"v_cmp_ne_u32 vcc, {v(vFR)}, {v(V_NONCE)}")
        a("s_nop 1")
        a(f"s_cbranch_vccz {pfx}_{tag}_ok")
        poll(a, f"{pfx}_{tag}", vFA, sFF, vFR, sT0, Cfg.p1s)
        a("s_mov_b64 vcc, 0")
    a.ext(qload(Q, range(4)))
    for u in range(3):
        a.ext(kvload(u))
        if u == 0: a(freq)
    stamp(a, "issued")
    a("s_waitcnt vmcnt(8)")
    a(mf32(S, KV, Q, "0"))
    fchk("p1")
    setprio(a, Cfg.prioA)
    stamp(a, "q_kv0")
    a(mf8(S, KV + 12, Q + 4))
    a("s_nop 10")
    a(".p2align 3")
    a(f"{pfx}_loop:")
    for u in range(4):
        b = KV + 14 * u; bn = KV + 14 * ((u + 1) & 3); bp = KV + 14 * ((u - 1) & 3)
        items = []
        if u == 0: items = [f"s_add_u32 {s(sN)}, {s(sN)}, 1", f"s_and_b32 {s(sN)}, {s(sN)}, 3"] + setgrp()
        if u == 3: items = [f"s_sub_u32 {s(sIT)}, {s(sIT)}, 1", f"s_cmp_lg_u32 {s(sIT)}, 0"]
        ld = kvload((u + 3) & 3)
        def guarded(l, t):
            if u > 0 and Cfg.skp: a(f"s_cbranch_vccnz {pfx}_sk{t}{u}")
            a.ext(l)
            if u > 0 and Cfg.skp: a(f"{pfx}_sk{t}{u}:")
        for q in range(4):
            Sc = S + 16 * (q & 1); Sn = S + 16 * ((q + 1) & 1)
            qn, qp = (q + 1) & 3, (q - 1) & 3
            kn = b if q < 3 else bn
            kp = b if q > 0 else bp
            ex = [f"v_exp_f32 {v(Sc+i)}, {v(Sc+i)}" for i in range(16)]
            cv = [f"v_cvt_pk_bf16_f32 {v(P+i)}, {v(Sc+2*i)}, {v(Sc+2*i+1)}" for i in range(8)]
            def free():
                if items: a(items.pop(0))
            a(mf32(Sn, kn, Q + 6 * qn, "0"))
            if q == 0: guarded(ld[:2], "k")
            else: free()
            a.ext(ex[0:4])
            a(mf32(O + 16 * qp, kp + 8, P + 4))
            if q == 0: guarded(ld[2:], "v")
            else: free()
            a.ext(ex[4:8] + cv[0:2])
            a(mf8(Sn, kn + 12, Q + 6 * qn + 4))
            a.ext(ex[8:9] + cv[2:4] + ex[9:12])
            a(mf32(O + 16 * q, b + 4, P))
            if q == 2:
                if u in (1, 2) and Cfg.skp:
                    a(f"s_cbranch_vccnz {pfx}_sw{u}"); a("s_waitcnt vmcnt(8)"); a(f"{pfx}_swr{u}:")
                else: a("s_waitcnt vmcnt(8)")
            else: free()
            a.ext(ex[12:16] + cv[4:8])
        assert not items
    a(f"s_cbranch_scc1 {pfx}_loop")
    def send(job): return [f"ds_write_b128 {v(vXW)}, {v(O+16*t+4*j,4)} offset:{job*36864+t*3072+j*1024}" for t in range(3) for j in range(3)]
    def finish(o, job, tag):
        a("s_waitcnt lgkmcnt(0)")
        a("s_barrier")
        def qrd(tiles):
            for q in tiles: a(f"ds_read_b128 {v(Q+6*q,4)}, {v(vQA+q)}")
            a("s_mov_b32 exec_hi, 0")
            for q in tiles: a(f"ds_read_b64 {v(Q+6*q+4,2)}, {v(vQB+q)} offset:1024")
            a("s_mov_b32 exec_hi, -1")
        if job == 0: qrd([0])
        for j in (2, 0, 1):
            for r in range(3): a(f"ds_read_b128 {v(RD[r]+4*j,4)}, {v(vXR+r)} offset:{job*36864+j*1024}")
        pa = lambda d, x: f"v_pk_add_f32 {v(d,2)}, {v(d,2)}, {v(x,2)}"
        def quad(j):
            return [pa(RD[0]+4*j, RD[1]+4*j), pa(RD[0]+4*j+2, RD[1]+4*j+2), pa(o+4*j, RD[2]+4*j), pa(o+4*j+2, RD[2]+4*j+2),
                    pa(o+4*j, RD[0]+4*j), pa(o+4*j+2, RD[0]+4*j+2)]
        a("s_waitcnt lgkmcnt(6)"); a.ext(quad(2))
        a("s_waitcnt lgkmcnt(3)"); a.ext(quad(0))
        a("s_waitcnt lgkmcnt(0)")
        if job == 0: qrd([1, 2, 3])
        a.ext(quad(1))
        a(f"{pfx}_fin{tag}:")
        a(f"v_mov_b32 v12, {v(o+8)}")
        a(f"v_mov_b32 v13, {v(o+8)}")
        a("s_nop 1")
        a("v_permlane32_swap_b32 v12, v13")
        a("v_rcp_f32 v12, v13")
        LO, HI = (127 - Cfg.lo) << 23, (127 + Cfg.hi) << 23
        a(f"v_subrev_u32 v13, {LO}, v13")
        for i in (8, 10, 0, 2, 4, 6): a(f"v_pk_mul_f32 {v(o+i,2)}, {v(o+i,2)}, v[12:13] op_sel_hi:[1,0]")
        if job == 0: a(mf32(S, KV, Q, "0"))
        for j in (4, 5):
            a(f"v_cvt_pk_bf16_f32 {v(14+j)}, {v(o+2*j)}, {v(o+2*j+1)}")
            a(f"v_cvt_pk_bf16_f32 {v(16+j)}, {v(o+2*j)}, {v(o+2*j+1)}")
        for j in range(4): a(f"v_cvt_pk_bf16_f32 {v(14+j)}, {v(o+2*j)}, {v(o+2*j+1)}")
        a(f"buffer_store_dwordx4 v[14:17], {v(vOM)}, {s(S_WS,4)}, {s(sOM)} offen sc1")
        a("v_permlane16_swap_b32 v18, v20")
        a("v_permlane16_swap_b32 v19, v21")
        if job == 0: a(mf8(S, KV + 12, Q + 4))
        a("s_mov_b64 exec, 0xffff")
        a(f"buffer_store_dwordx4 v[18:21], {v(vLin)}, {s(S_WS,4)}, {s(sOL)} offen sc1")
        a("s_mov_b64 exec, -1")
        a(f"v_cmp_lt_u32 vcc, {HI - LO}, v13")
        for i in range(2, 12, 2): a(f"v_pk_fma_f32 {v(o,2)}, {v(o+i,2)}, 0, {v(o,2)} op_sel_hi:[1,0,1]")
        a(f"v_fma_f32 v12, {v(o+1)}, 0, {v(o)}")
        a(f"s_movk_i32 {s(sT0)}, 0x207")
        a(f"v_cmp_class_f32 {s(sT2,2)}, v12, {s(sT0)}")
        a("s_nop 0")
        a(f"s_or_b64 vcc, vcc, {s(sT2,2)}")
    def nextjob(sign):
        op = "s_add_u32" if sign > 0 else "s_sub_u32"
        return [f"{op} {s(r)}, {s(r)}, {JK}" for r in [sK1b, sK2b, sQ1 + 3, sQ2 + 3]] + [f"{op} {s(sVb)}, {s(sVb)}, {JV}"]
    def nextout(sign):
        op = "s_add_u32" if sign > 0 else "s_sub_u32"
        return [f"{op} {s(sOM)}, {s(sOM)}, 8192", f"{op} {s(sOL)}, {s(sOL)}, 4096", f"{op} {s(sF3)}, {s(sF3)}, 65536"]
    def back():
        a(f"s_cmp_eq_u32 {s(sDRY)}, 0")
        a(f"s_cbranch_scc1 {pfx}_loop")
    a(f"s_add_u32 {s(sPH)}, {s(sPH)}, 1")
    a(f"s_cmp_lt_u32 {s(sPH)}, 5")
    a(f"s_cbranch_scc1 {pfx}_glue")
    a(f"{pfx}_epi:")
    setprio(a, Cfg.prioE)
    a(mf32(O + 48, KV + 14 * 3 + 8, P + 4))
    stamp(a, "loopdone")
    a.ext(send(1))
    finish(O + 48, 1, "b")
    a(f"s_cbranch_scc1 {pfx}_fbq")
    a(f"{pfx}_ok:")
    stamp(a, "o_stored")
    a("s_waitcnt vmcnt(0)")
    publish(a, sF3)
    stamp(a, "o_pub")
    if Cfg.dry:
        a(f"s_cmp_lg_u32 {s(sDRY)}, 0")
        a(f"s_cbranch_scc1 {pfx}_dryr")
    a(f"s_cmp_eq_u32 {s(sBAD)}, 0")
    a(f"s_cbranch_scc1 {pfx}_done")
    a(f"s_mov_b32 {s(sBAD)}, 0")
    a.ext(nextjob(-1) + nextout(-1))
    a(f"s_branch {pfx}_fb")
    a(f"{pfx}_glue:")
    a(f"s_mov_b32 {s(sIT)}, 1")
    for ph in (2, 3, 4):
        a(f"s_cmp_eq_u32 {s(sPH)}, {ph}")
        a(f"s_cbranch_scc1 {pfx}_g{ph}")
    a(f"s_mov_b32 {s(sFF)}, {F1_OFF}")
    a(freq)
    back()
    a(f"{pfx}_g2:")
    a(f"s_mov_b32 m0, {s(sQM)}")
    a.ext(nextjob(1))
    fchk("p2")
    a(f"buffer_load_dwordx4 {v(vQ1)}, {s(S_WS,4)}, {s(sQ1+3)} offen sc1 lds")
    a(f"s_add_u32 m0, {s(sQM)}, 1024")
    a("s_mov_b64 exec, 0xffff")
    a(f"buffer_load_dwordx4 {v(vLin)}, {s(S_WS,4)}, {s(sQ2+3)} offen sc1 lds")
    a("s_mov_b64 exec, -1")
    back()
    a(f"{pfx}_g3:")
    stamp(a, "half")
    a(mf32(O + 48, KV + 14 * 3 + 8, P + 4))
    a(f"s_mov_b32 {s(sIT)}, 3")
    a.ext(send(0))
    for r in (4, 6): a(f"v_mov_b64 {v(P+r,2)}, 0")
    for t in range(3):
        for r in range(0, 12, 2): a(f"v_mov_b64 {v(O+16*t+r,2)}, 0")
    finish(O + 48, 0, "a")
    a(f"s_cselect_b32 {s(sBAD)}, 1, 0")
    a("s_mov_b64 vcc, 0")
    for r in range(0, 12, 2): a(f"v_mov_b64 {v(O+48+r,2)}, 0")
    a("s_waitcnt lgkmcnt(0)")
    back()
    a(f"{pfx}_g4:")
    a(f"s_cmp_lg_u32 {s(sBAD)}, 0")
    a(f"s_cbranch_scc1 {pfx}_g4n")
    publish(a, sF3)
    a(f"{pfx}_g4n:")
    a.ext(nextout(1))
    a("s_mov_b64 vcc, -1")
    back()
    a(f"s_branch {pfx}_epi")
    for u in (1, 2):
        a(f"{pfx}_sw{u}:"); a(f"s_waitcnt vmcnt({8 - 4 * u})"); a(f"s_branch {pfx}_swr{u}")
    a(f"{pfx}_fbq:")
    a(f"s_cmp_lg_u32 {s(sIT)}, 0")
    a(f"s_cbranch_scc1 {pfx}_ok")
    a(f"{pfx}_fb:")
    def rewind():
        a(f"s_lshl_b32 {s(sT0)}, {s(S_WV)}, 13")
        a(f"s_sub_u32 {s(sK1)}, {s(sK1b)}, {s(sT0)}")
        a(f"s_sub_u32 {s(sK2)}, {s(sK2b)}, {s(sT0)}")
        a(f"s_mul_i32 {s(sT0)}, {s(S_WV)}, 20480")
        a(f"s_sub_u32 {s(sV)}, {s(sVb)}, {s(sT0)}")
        a(f"s_mov_b32 {s(sIT)}, 0")
    def advance(lbl):
        a(f"s_add_u32 {s(sK1)}, {s(sK1)}, 512")
        a(f"s_add_u32 {s(sK2)}, {s(sK2)}, 512")
        a(f"s_add_u32 {s(sV)}, {s(sV)}, 1280")
        a(f"s_add_u32 {s(sIT)}, {s(sIT)}, 1")
        a(f"s_cmp_lt_u32 {s(sIT)}, 64")
        a(f"s_cbranch_scc1 {lbl}")
    a("s_waitcnt vmcnt(0)")
    a.ext(qload(Q, [3]))
    rewind()
    a("v_mov_b32 v13, 0xff800000")
    a(f"{pfx}_fb1:")
    a.ext(kvload(0)[:2])
    a("s_waitcnt vmcnt(0)")
    a(mf32(S, KV, Q + 18, "0"))
    a(mf8(S, KV + 12, Q + 22))
    a("s_nop 11")
    for i in range(0, 16, 2): a(f"v_max3_f32 v13, {v(S+i)}, {v(S+i+1)}, v13")
    advance(f"{pfx}_fb1")
    rewind()
    a("v_mov_b32 v12, v13")
    a("s_nop 1")
    a("v_permlane32_swap_b32 v12, v13")
    a("v_max_f32 v12, v12, v13")
    for i in range(16):
        a(f"v_xor_b32 {v(O+i)}, 0x80000000, v12")
        a(f"v_mov_b32 {v(O+48+i)}, 0")
    a(f"{pfx}_fb2:")
    a.ext(kvload(0))
    a("s_waitcnt vmcnt(0)")
    a(mf32(S, KV, Q + 18, v(O, 16)))
    a(mf8(S, KV + 12, Q + 22))
    a("s_nop 11")
    for i in range(16): a(f"v_exp_f32 {v(S+i)}, {v(S+i)}")
    for i in range(8): a(f"v_cvt_pk_bf16_f32 {v(P+i)}, {v(S+2*i)}, {v(S+2*i+1)}")
    a("s_nop 1")
    a(mf32(O + 48, KV + 4, P))
    a(mf32(O + 48, KV + 8, P + 4))
    advance(f"{pfx}_fb2")
    a("s_nop 5")
    a(f"s_branch {pfx}_finb")
    a(f"{pfx}_done:")

def gen_relayout(a, pfx, idreg, vL, sT, sFH, sFR):
    sK, sC, sPA, sPB, sPC, sPD, sB, sM, sD0, sD1, sF1 = sT
    assert Cfg.med
    STEP = 256; NR = 1 if Cfg.arl else 2
    sDS = (50, 51, 52)
    SW = S_C
    T = 160
    IR, CH = T + 8, T + 13
    a(f"s_mov_b32 {s(SW+3)}, 0x00020000")
    for i in range(5):
        a(f"v_add_u32 {v(T)}, {64*i}, {v(vL)}")
        a(f"v_mul_u32_u24 {v(IR+i)}, 6554, {v(T)}")
        a(f"v_lshrrev_b32 {v(IR+i)}, 16, {v(IR+i)}")
        a(f"v_mul_u32_u24 {v(CH+i)}, 10, {v(IR+i)}")
        a(f"v_sub_u32 {v(CH+i)}, {v(T)}, {v(CH+i)}")
        a(f"v_lshlrev_b32 {v(CH+i)}, 4, {v(CH+i)}")
    a(f"{pfx}_rl_pass:")
    a(f"s_mul_i32 {s(sM)}, {s(S_WV)}, 5120")
    a(f"s_mov_b32 {s(sF1)}, 0")
    a(f"{pfx}_rl_loop:")
    a(f"s_and_b32 {s(sC)}, {s(idreg)}, 7")
    a(f"s_lshr_b32 {s(sK)}, {s(idreg)}, 3")
    a(f"s_sub_u32 {s(sPD)}, {s(sK)}, 54")
    a(f"s_mul_i32 {s(sD1)}, {s(sPD)}, 52")
    a(f"s_lshr_b32 {s(sD1)}, {s(sD1)}, 8")
    a(f"s_mul_i32 {s(sB)}, {s(sD1)}, 5")
    a(f"s_sub_u32 {s(sPD)}, {s(sPD)}, {s(sB)}")
    a(f"s_mul_i32 {s(sB)}, {s(sD1)}, 160")
    a(f"s_mul_i32 {s(sD1)}, {s(sPD)}, 40")
    a(f"s_cmp_eq_u32 {s(sPD)}, 4")
    a(f"s_cselect_b32 {s(sD1)}, 16, {s(sD1)}")
    a(f"s_cselect_b32 {s(sPA)}, 80, 20")
    a(f"s_cselect_b32 {s(sPB)}, 40, 4")
    a(f"s_cselect_b32 {s(sPC)}, 20, 8")
    a(f"s_add_u32 {s(sB)}, {s(sB)}, {s(sD1)}")
    a(f"s_lshl_b32 {s(sD1)}, {s(sK)}, 5")
    a(f"s_mov_b32 {s(sPD)}, {640*1280}")
    a(f"s_cmp_lt_u32 {s(sK)}, 54")
    a(f"s_cselect_b32 {s(SW)}, {s(P_WD)}, {s(P_WO)}")
    a(f"s_cselect_b32 {s(SW+1)}, {s(P_WD+1)}, {s(P_WO+1)}")
    a(f"s_cselect_b32 {s(SW+2)}, {1728*1280}, {s(sPD)}")
    a(f"s_cselect_b32 {s(sPA)}, 8, {s(sPA)}")
    a(f"s_cselect_b32 {s(sPB)}, 4, {s(sPB)}")
    a(f"s_cselect_b32 {s(sPC)}, 16, {s(sPC)}")
    a(f"s_cselect_b32 {s(sB)}, {s(sD1)}, {s(sB)}")
    a(f"s_mul_i32 {s(sB)}, {s(sB)}, 1280")
    a(f"s_mul_i32 {s(sPD)}, {s(sC)}, 160")
    a(f"s_add_u32 {s(sB)}, {s(sB)}, {s(sPD)}")
    a(f"s_movk_i32 {s(sPD)}, 1280")
    for i in range(5):
        r, t = T, T + 1
        a(f"v_and_b32 {v(r)}, 3, {v(IR+i)}")
        a(f"v_lshrrev_b32 {v(t)}, 4, {v(IR+i)}")
        a(f"v_mad_u32_u24 {v(r)}, {v(t)}, {s(sPA)}, {v(r)}")
        a(f"v_bfe_u32 {v(t)}, {v(IR+i)}, 3, 1")
        a(f"v_mad_u32_u24 {v(r)}, {v(t)}, {s(sPB)}, {v(r)}")
        a(f"v_bfe_u32 {v(t)}, {v(IR+i)}, 2, 1")
        a(f"v_mad_u32_u24 {v(r)}, {v(t)}, {s(sPC)}, {v(r)}")
        a(f"s_add_u32 m0, {s(sM)}, {i*1024}")
        a(f"v_mad_u32_u24 {v(r)}, {v(r)}, {s(sPD)}, {v(CH+i)}")
        if Cfg.thl >= 0: a(f"s_waitcnt vmcnt({Cfg.thl})")
        if not Cfg.x_norl & 1: a(f"buffer_load_dwordx4 {v(r)}, {s(SW,4)}, {s(sB)} offen lds")
    a(f"s_mul_i32 {s(sD1)}, {s(sC)}, 74")
    a(f"s_add_u32 {s(sD1)}, {s(sD1)}, {s(sK)}")
    a(f"s_mul_i32 {s(sD1)}, {s(sD1)}, 5120")
    a(f"s_add_u32 {s(sD1)}, {s(sD1)}, {WR_OFF}")
    for z in range(NR):
        a(f"s_cmp_eq_u32 {s(sF1)}, {z}")
        a(f"s_cselect_b32 {s(sDS[z])}, {s(sD1)}, {s(sDS[z])}")
    a(f"s_add_u32 {s(sF1)}, {s(sF1)}, 1")
    a(f"s_add_u32 {s(idreg)}, {s(idreg)}, {STEP}")
    a(f"s_add_u32 {s(sM)}, {s(sM)}, 20480")
    if not Cfg.arl:
        a(f"s_sub_u32 {s(sD0)}, {s(idreg)}, 512")
        a(f"s_cmp_lt_u32 {s(sD0)}, 80")
        a(f"s_cbranch_scc1 {pfx}_rl_loop")
    a(f"s_mul_i32 {s(sM)}, {s(S_WV)}, 5120")
    a(f"v_lshrrev_b32 {v(T)}, 4, {v(vL)}")
    a(f"v_bfe_u32 {v(T+1)}, {v(vL)}, 2, 2")
    a(f"v_lshl_add_u32 {v(T)}, {v(T)}, 3, {v(T+1)}")
    a(f"v_mul_u32_u24 {v(T)}, 160, {v(T)}")
    a(f"v_and_b32 {v(T+1)}, 3, {v(vL)}")
    a(f"v_mad_u32_u24 {v(T)}, {v(T+1)}, 40, {v(T)}")
    a(f"v_add_u32 {v(T)}, {s(sM)}, {v(T)}")
    a(f"v_lshlrev_b32 {v(T+1)}, 4, {v(vL)}")
    a(f"v_add_u32 {v(T+2)}, 4096, {v(T+1)}")
    a("s_waitcnt vmcnt(0)")
    a("s_barrier")
    a(f"s_cmp_lg_u32 {s(S_WV)}, 0")
    a(f"s_cbranch_scc1 {pfx}_rl_np")
    publish(a, sFH)
    a(f"{pfx}_rl_np:")
    pass
    for z in range(NR):
        D = T + 20 + 20 * z
        if z:
            a(f"s_cmp_eq_u32 {s(sF1)}, {z}")
            a(f"s_cbranch_scc1 {pfx}_rl_fin")
        for mt in range(5):
            for u in range(2):
                a(f"ds_read_b64_tr_b16 {v(D+4*mt+2*u,2)}, {v(T)} offset:{z*20480+u*640+8*mt}")
        a("s_waitcnt lgkmcnt(0)")
        for mt in range(5 if not Cfg.x_norl & 2 else 0):
            if Cfg.ths >= 0: a(f"s_waitcnt vmcnt({Cfg.ths})")
            a(f"buffer_store_dwordx4 {v(D+4*mt,4)}, {v(T+1 if mt < 4 else T+2)}, {s(S_WS,4)}, {s(sDS[z])} offen offset:{(mt&3)*1024} sc1")
    a(f"{pfx}_rl_fin:")
    a("s_waitcnt vmcnt(0)")
    a("s_barrier")
    a(f"s_cmp_lg_u32 {s(S_WV)}, 0")
    a(f"s_cbranch_scc1 {pfx}_rl_done")
    publish(a, sFR)
    a(f"{pfx}_rl_done:")
    a(f"s_add_u32 {s(sFR)}, {s(sFR)}, 2048")
    a(f"s_cmp_lt_u32 {s(idreg)}, {592 if Cfg.arl else 512}")
    a(f"s_cbranch_scc1 {pfx}_rl_pass")

class G2:
    vL, vF, vF2, vW4, vXO = 1, 2, 3, 4, 5
    vBA, vBR = 6, 10
    vFl, vOL = 0, 8
    vFA, vFR = 7, 8
    XR, AS, AD, HF = 12, 22, 96, 116
    WFS = (180, 200)
    HFS = (116, 132, 148, 164)
    WRS = (200, 220, 48, 68)
    sRT, sC8, sM, sW, sH, sIT, sC0, sC1, sPB, sFB = 41, 42, 43, 44, 45, 46, 47, 48, 49, 50
    sT0, sT1, sT2, sT3 = 54, 55, 56, 57
    @staticmethod
    def OF(k):
        return (148 + 4 * k if k < 8 else 240 + 4 * (k - 8)) if k < 10 else (116 + 4 * (k - 10) if k < 18 else 248 + 4 * (k - 18))
    @staticmethod
    def wdma(slot):
        g = G2
        o = [[f"s_add_u32 m0, {s(g.sM)}, {slot*20480}", "s_nop 0"]]
        for i in range(4): o.append([f"buffer_load_dwordx4 {v(g.vF)}, {s(S_WS,4)}, {s(g.sW)} offen offset:{i*1024} sc1 lds"])
        o[0] += o.pop(1)
        o.append([f"s_add_u32 m0, {s(g.sM)}, {slot*20480+4096}", "s_nop 0",
                  f"buffer_load_dwordx4 {v(g.vW4)}, {s(S_WS,4)}, {s(g.sW)} offen sc1 lds", f"s_add_u32 {s(g.sW)}, {s(g.sW)}, {0 if Cfg.x_hot & 1 else 20480}"])
        return o
    @staticmethod
    def hload(st):
        g = G2
        o = [[f"buffer_load_dwordx4 {v(g.HF+16*st+4*j,4)}, {v(g.vF)}, {s(S_WS,4)}, {s(g.sH)} offen offset:{j*1024} sc1"] for j in range(4)]
        o[-1].append(f"s_add_u32 {s(g.sH)}, {s(g.sH)}, {0 if Cfg.x_hot & 2 else 4096}")
        return o

def g2_start(a, pfx, valu, stores, pre=False):
    if Cfg.sk:
        assert not (Cfg.wpre or Cfg.lag)
        return k2_start(a, pfx, valu, stores)
    g = G2
    heavy = bool(valu)
    vL, sT0, sT1, sT2 = g.vL, g.sT0, g.sT1, g.sT2
    a(f"s_lshr_b32 {s(g.sC8)}, s2, 5")
    a(f"s_and_b32 {s(sT1)}, s2, 7")
    a(f"s_lshl_b32 {s(g.sRT)}, {s(sT1)}, 2")
    a(f"s_bfe_u32 {s(sT1)}, s2, {3 | (2<<16)}")
    a(f"s_add_u32 {s(g.sRT)}, {s(g.sRT)}, {s(sT1)}")
    a(f"s_lshl_b32 {s(g.sRT)}, {s(g.sRT)}, 2")
    a(f"s_add_u32 {s(g.sRT)}, {s(g.sRT)}, {s(S_WV)}")
    a(f"s_mul_i32 {s(g.sW)}, {s(g.sC8)}, {74*5120}")
    a(f"s_mul_i32 {s(g.sM)}, {s(S_WV)}, 5120")
    a(f"s_add_u32 {s(g.sW)}, {s(g.sW)}, {s(g.sM)}")
    a(f"s_add_u32 {s(g.sW)}, {s(g.sW)}, {WR_OFF}")
    a(f"s_mul_i32 {s(g.sH)}, {s(g.sRT)}, 55296")
    a(f"s_add_u32 {s(g.sH)}, {s(g.sH)}, {H_OFF}")
    a(f"v_lshlrev_b32 {v(g.vF)}, 4, {v(vL)}")
    a(f"v_add_u32 {v(g.vW4)}, 4096, {v(g.vF)}")
    a(f"s_mov_b32 {s(sT0)}, 0")
    a(f"s_cmp_eq_u32 {s(S_WV)}, 0")
    a(f"s_cselect_b32 {s(g.sPB)}, {0 if heavy else -1}, -1")
    if not pre:
        a("s_waitcnt vmcnt(0) lgkmcnt(0)")
        a(f"s_cbranch_scc0 {pfx}_p4_ok")
        a(f"v_cmp_ne_u32 vcc, {v(g.vFR)}, {v(V_NONCE)}")
        a("s_nop 1")
        a(f"s_cbranch_vccz {pfx}_p4_ok")
        poll(a, f"{pfx}_p4", g.vFA, sT0, g.vFR, sT2, Cfg.p4s)
        a("s_barrier")
    stamp(a, "h_go")
    work = list(valu) + [
        f"v_add_u32 {v(g.vF2)}, {3*20480}, {v(g.vF)}",
        f"v_and_b32 {v(g.AD)}, 15, {v(vL)}",
        f"v_mul_u32_u24 {v(g.vXO)}, 1280, {v(g.AD)}",
        f"v_lshrrev_b32 {v(g.AD)}, 4, {v(vL)}",
        f"v_mad_u32_u24 {v(g.vXO)}, {v(g.AD)}, 40, {v(g.vXO)}",
        f"v_and_b32 {v(g.vOL)}, 0xff, {v(g.vF)}",
        f"v_lshl_add_u32 {v(g.vOL)}, {v(g.AD)}, {9 if Cfg.two else 10}, {v(g.vOL)}",
        f"v_and_b32 {v(g.vFl)}, 31, {v(vL)}",
        f"v_lshlrev_b32 {v(g.vFl)}, 6, {v(g.vFl)}",
        f"v_min_u32 {v(g.vBA)}, {11 if Cfg.med else 9}, {v(vL)}",
        f"v_lshlrev_b32 {v(g.vBA)}, 6, {v(g.vBA)}",
        f"s_lshr_b32 {s(g.sFB)}, {s(g.sRT)}, 3", f"s_lshl_b32 {s(g.sFB)}, {s(g.sFB)}, 10", f"s_add_u32 {s(g.sFB)}, {s(g.sFB)}, {F2B_OFF}",
        f"v_add_u32 {v(g.vBA)}, {s(g.sFB)}, {v(g.vBA)}",
        f"s_lshr_b32 {s(g.sFB)}, s2, 7", f"s_lshl_b32 {s(g.sFB)}, {s(g.sFB)}, 12", f"s_add_u32 {s(g.sFB)}, {s(g.sFB)}, {F4_OFF}",
        f"s_mov_b32 exec_lo, 0\nv_lshl_add_u32 {v(g.vBA)}, {v(vL)}, 6, {s(g.sFB)}\ns_mov_b32 exec_lo, -1",
        f"s_mov_b32 {s(g.sFB)}, 0"]
    groups = g.wdma(0) + g.hload(0) + g.wdma(1) + g.hload(1)
    if pre:
        groups = g.hload(0) + g.hload(1)
        a(f"s_add_u32 {s(g.sW)}, {s(g.sW)}, 40960")
        if Cfg.hpre:
            groups = [[]]
            a(f"s_add_u32 {s(g.sH)}, {s(g.sH)}, 8192")
    per = -(-len(work) // len(groups))
    for gr in groups:
        a.ext(gr); a.ext(work[:per]); work = work[per:]
    a.ext(stores)
    a(f"s_waitcnt vmcnt({(0 if Cfg.hpre else 4) + len(stores) if pre else 9 + len(stores)}) lgkmcnt(0)")

def gen_g2(a, pfx):
    g = G2
    vL, vF, vF2, vW4, vXO, XR, AS, AD, HF, WFS, OF = g.vL, g.vF, g.vF2, g.vW4, g.vXO, g.XR, g.AS, g.AD, g.HF, g.WFS, g.OF
    sRT, sC8, sM, sW, sH, sPB, sFB = g.sRT, g.sC8, g.sM, g.sW, g.sH, g.sPB, g.sFB
    sT0, sT1, sT2, sT3 = g.sT0, g.sT1, g.sT2, g.sT3
    sOL, sF3, sFH = 46, 47, 48
    SETS = (WFS[0], WFS[1], 220, 48, 68)
    T = 88; U = 148
    vFl, vOL = g.vFl, g.vOL
    vFr, vTW, vTR, vO = T + 1, T + 3, T + 4, T + 5
    SX, SO = S_A, S_B
    vm, lg = Trk(), Trk()
    CB = 12
    ool = []
    def loc(st):
        return (2, st - 72) if st >= 72 else ((st >> 2) & 3, st & 3)
    def rd(d, st, mt):
        slot, ks = loc(st)
        base, off = (vF2, 0) if slot == 3 else (vF, slot * 20480)
        lg.add((st, mt))
        a(f"ds_read_b128 {v(d+4*mt,4)}, {v(base)} offset:{off+ks*5120+mt*1024}")
    W = lambda st: [(("W", st), x) for x in g.wdma(st & 3)]
    H = lambda st: [(("H", st), x) for x in g.hload(st & 3)]
    def put(it):
        tag, lines = it
        if callable(lines): lines(); return
        if tag and ((tag[0] == "W" and Cfg.x_d & 1) or (tag[0] == "H" and Cfg.x_d & 2)): lines = [x for x in lines if "buffer_load" not in x]
        if tag and tag[0] in "WH" and Cfg.x_d & 4: lines = [x.replace(" sc1", "") for x in lines]
        a.ext(lines)
        if tag: vm.add(tag)
    def wave0(name, cond, body):
        def f():
            a(f"s_cmp_eq_u32 {s(cond)}, 0"); a(f"s_cbranch_scc1 {pfx}_{name}"); a(f"{pfx}_{name}r:")
            b = Asm(); b(f"{pfx}_{name}:"); body(b); b(f"s_branch {pfx}_{name}r"); ool.append(b)
        return f
    def flag_req(name, vaddr, soff, vres):
        def body(b):
            vm.mark(name)
            b(f"buffer_load_dword {v(vres)}, {'off' if vaddr is None else v(vaddr)}, {s(S_WS,4)}, {s(soff)}{'' if vaddr is None else ' offen'} sc1")
        return wave0("q" + name, S_WV, body)
    def flag_chk(name, vaddr, soff, vres, sleep, prio, st):
        def body(b):
            setprio(b, Cfg.prioGv)
            b(f"s_waitcnt vmcnt({vm.n(name)})")
            b(f"v_cmp_ne_u32 vcc, {v(vres)}, {v(V_NONCE)}")
            b("s_nop 1")
            b(f"s_cbranch_vccz {pfx}_p{name}_ok")
            poll(b, f"{pfx}_p{name}", vaddr, soff, vres, sT2, sleep)
            setprio(b, prio)
            if st: stamp(b, st)
        return wave0("c" + name, S_WV, body)
    for st in range(2):
        for x in W(st) + H(st): vm.add(x[0])
    vm.mark("hst")
    setprio(a, Cfg.prioD)
    a("s_barrier")
    for st in range(2):
        for mt in range(5): rd(WFS[st], st, mt)
    stamp(a, "d_issued")
    sal = lambda *l: (None, list(l))
    xl = [(("X", 0), [f"buffer_load_dwordx{n} {v(XR+o,n)}, {v(vXO)}, {s(SX,4)}, {s(sT3)} offen offset:{4*o}"]) for o, n in ((0, 4), (4, 4), (8, 2))]
    if Cfg.xl: xl = []
    first = {st: W(st + 2) for st in range(11)}
    second = {st: H(st + 2) for st in range(11)}
    second[10] = second[10] + W(13)
    first[11] = W(14) + H(13)[:2]; second[11] = W(15)
    first[12] = xl; second[12] = W(16); first[13] = []
    LG0 = 10
    if Cfg.lead == 1:
        first = {st: H(st + 2) for st in range(11)}; second = {st: W(st + 3) for st in range(11)}
        first[0] = W(2) + H(2)
        first[11] = W(14) + H(13)[:2]; second[11] = W(15); first[12] = xl; second[12] = W(16); first[13] = []
    if Cfg.lead == 2:
        first = {st: W(st + 3) for st in range(13)}; second = {st: H(st + 3) for st in range(10)}
        first[0] = W(2) + H(2); second[0] = W(3) + H(3)
        first[5] = []; second[5] = W(8) + H(8)
        second[10] = H(13)[:2] + xl; second[11] = W(15); first[12] = []; second[12] = W(16); first[13] = []
        LG0 = 0
    pre = {}; post = {}
    post[1] = wave0("pb", sPB, lambda b: (publish(b, 100), stamp(b, "pub2")))
    second[4] = second[4] + [(None, flag_req("2", g.vBA, sFB, g.vBR))]
    pre[5] = flag_chk("2", g.vBA, sFB, g.vBR, Cfg.p2s, Cfg.prioD, "h2_go")
    second[7] += [sal(f"s_lshl_b32 {s(sFH)}, s2, 6", f"s_add_u32 {s(sFH)}, {s(sFH)}, {FH_OFF}",
                      f"s_mul_i32 {s(sT3)}, {s(sRT)}, {16*1280}", f"s_mul_i32 {s(sT1)}, {s(sC8)}, 160", f"s_add_u32 {s(sT3)}, {s(sT3)}, {s(sT1)}")]
    t_ = Asm(); srd(t_, SX, P_X, 2048 * 1280); srd(t_, SO, P_OUT, 2048 * 1280)
    second[8] += [sal(*[x.strip() for x in t_.lines])]
    sOH, sOG = 58, 96
    LS = 256 if Cfg.two else 512
    olb = [f"s_lshr_b32 {s(sT1)}, {s(sRT)}, 1", f"s_lshl_b32 {s(sOL)}, {s(sT1)}, 13", f"s_and_b32 {s(sT0)}, {s(sRT)}, 1",
           f"s_lshl3_add_u32 {s(sOL)}, {s(sT0)}, {s(sOL)}"] if Cfg.two else \
          [f"s_lshr_b32 {s(sT1)}, {s(sRT)}, 2", f"s_lshl_b32 {s(sOL)}, {s(sT1)}, 14", f"s_and_b32 {s(sT0)}, {s(S_WV)}, 1", f"s_lshl_b32 {s(sT0)}, {s(sT0)}, 8",
           f"s_add_u32 {s(sOL)}, {s(sOL)}, {s(sT0)}", f"s_lshr_b32 {s(sT0)}, {s(S_WV)}, 1", f"s_lshl3_add_u32 {s(sOL)}, {s(sT0)}, {s(sOL)}"]
    second[6] += [sal(*olb, f"s_lshr_b32 {s(sT1)}, {s(sRT)}, 2",
                      f"s_lshl_b32 {s(sF3)}, {s(sT1)}, 11", f"s_add_u32 {s(sF3)}, {s(sF3)}, {F3_OFF}", f"s_lshl_b32 {s(sT0)}, {s(sRT)}, 14",
                      *[f"s_add_u32 {s(sOH+gq)}, {s(sT0)}, {O_OFF + 4096*gq}" for gq in range(4)],
                      *[f"s_add_u32 {s(sOG+gq)}, {s(sOL)}, {OL_OFF + 8*LS*gq}" for gq in range(4)])]
    def L(gq):
        return [(("O", 5*gq+i), [f"buffer_load_dwordx4 {v(OF(5*gq+i),4)}, {v(vF)}, {s(S_WS,4)}, {s(sOH+gq)} offen offset:{i*1024} sc1"]) for i in range(4)] + \
               [(("O", 5*gq+4), [f"buffer_load_dwordx2 {v(OF(5*gq+4)+2*i,2)}, {v(g.vOL)}, {s(S_WS,4)}, {s(sOG+gq)} offen offset:{i*LS} sc1"]) for i in range(2)]
    if Cfg.two:
        first[CB] = [(None, flag_req("a", g.vFl, sF3, g.vBR))] + first[CB]
        pre[CB] = flag_chk("a", g.vFl, sF3, g.vBR, Cfg.p2s, Cfg.prioD, "o0_go")
        b0 = L(0) + L(1)
        second[12] = second[12] + b0[:4]; first[13] = b0[4:]
    else:
        first[13] = [(None, flag_req("3", vFl, sF3, vFr))]
    if 0 < Cfg.lag < 4:
        ls = 9 + Cfg.lag
        first[ls] = [(None, flag_req("h", None, sFH, g.vBR))] + first[ls]
        pre[ls] = flag_chk("h", None, sFH, g.vBR, 2, Cfg.prioD, None)
    if Cfg.tc & 2:
        def tb(b):
            setprio(b, Cfg.prioGv); b.ext(touch(f"{pfx}_tc1", f"{pfx}_end", 52, g.vFA, g.vFA)); setprio(b, Cfg.prioD)
            b.lines = [l.replace("s_add_u32 s52, s52, g2_tc1-", "s_sub_u32 s52, s52, @").replace("s_addc_u32 s53", "s_subb_u32 s53") for l in b.lines]
            b.lines = [(l.split("@")[0] + l.split("@")[1] + "-g2_tc1") if "@" in l else l for l in b.lines]
        first[8] = first[8] + [(None, wave0("tc", S_WV, tb))]
    extra = []
    a(f"s_waitcnt lgkmcnt({lg.n((0, 0))})")
    for st in range(14):
        for ks in range(4 if st < 13 else 2):
            k = 4 * st + ks
            if k == 48: a(f"{pfx}_tc1:")
            if ks in (0, 2):
                pend = list((first if ks == 0 else second)[st]); npend = len(pend); done = 0
            for mt in range(5):
                d = WFS[k & 1]
                a(mf16(AD + 4 * mt, d + 4 * mt, HF + 16 * (st & 3) + 4 * ks, "0" if k == 0 else None))
                nxt = (k, mt + 1) if mt < 4 else (k + 1, 0)
                w = [f"lgkmcnt({min(14, lg.n(nxt))})"] if nxt[0] < 54 else []
                if ks == 2 and mt == 0:
                    need = [("W", st + 1)] + (["hst"] if st == 1 else []) + ([("W", 14)] if st == 12 else [])
                    w = [f"vmcnt({min(vm.n(x) for x in need)})"] + (["lgkmcnt(0)"] if st >= LG0 else w)
                    a("s_waitcnt " + " ".join(w))
                    if st in pre: pre[st]()
                    a("s_barrier")
                    if st in post: post[st]()
                    if st == 12: extra = [(SETS[j], 54 + j, m) for j in range(2, 5) for m in range(5)]
                else:
                    if ks == 3 and mt == 4: w = [f"vmcnt({vm.n(('H', st + 1))})"] + w
                    if w: a("s_waitcnt " + " ".join(w))
                rd(d, k + 2, mt)
                if extra: rd(*extra.pop(0))
                pos = 5 * (ks & 1) + mt
                while pend and done * 10 <= pos * npend:
                    put(pend.pop(0)); done += 1
            if ks & 1: assert not pend
    assert not extra
    a(f"{pfx}_tc2:")
    setprio(a, Cfg.prioGv)
    stamp(a, "d_done")
    a(f"s_waitcnt vmcnt({vm.n(('W', 16))}) lgkmcnt(0)")
    a("s_barrier")
    work = []
    for r0 in range(0, 20, 4):
        Z = 44
        work += [f"v_mul_f32 {v(Z+i)}, {f2u(-LOG2E)}, {v(AD+r0+i)}" for i in range(4)]
        work += [f"v_exp_f32 {v(Z+i)}, {v(Z+i)}" for i in range(4)]
        work += [f"v_pk_add_f32 {v(Z+i,2)}, {v(Z+i,2)}, 1.0 op_sel_hi:[1,0]" for i in (0, 2)]
        work += [f"v_rcp_f32 {v(Z+i)}, {v(Z+i)}" for i in range(4)]
        work += [pk("mul", AD + r0 + i, [AD + r0 + i, Z + i]) for i in (0, 2)]
    def w18():
        a(f"s_cmp_ge_u32 {s(S_WV)}, 2")
        a(f"s_cbranch_scc1 {pfx}_now5")
        for x in g.wdma(2): a.ext(x)
        a(f"{pfx}_now5:")
        vm.mark("w18")
    if not Cfg.sls:
        for i, it in enumerate(W(17)):
            put(it); a.ext(work[16*i:16*i+16])
        w18(); work = []
    setprio(a, Cfg.prioT)
    SCR = 2 * 20480 + 2 * 5120
    vZ = 42
    adr = [f"s_add_u32 {s(sF3)}, {s(sF3)}, {65536 if Cfg.two else 0}",
           f"v_lshrrev_b32 {v(vTW)}, 4, {v(vL)}", f"v_and_b32 {v(vTR)}, 0xff, {v(vF)}",
           f"s_mul_i32 {s(sT0)}, {s(S_WV)}, 2560", f"s_add_u32 {s(sT0)}, {s(sT0)}, {SCR}",
           f"v_mul_u32_u24 {v(vTR)}, 10, {v(vTR)}", f"v_mad_u32_u24 {v(vTW)}, {v(vTW)}, 40, {v(vTR)}", f"v_add_u32 {v(vTW)}, {s(sT0)}, {v(vTW)}",
           f"v_add_u32 {v(vTR)}, {s(sT0)}, {v(vF)}", f"s_movk_i32 {s(sT1)}, 1120"]
    for i in range(3):
        adr += [f"v_add_u32 {v(vO+i)}, {64*i}, {v(vL)}", f"v_mul_u32_u24 {v(vZ)}, 6554, {v(vO+i)}", f"v_lshrrev_b32 {v(vZ)}, 16, {v(vZ)}",
                f"v_lshlrev_b32 {v(vO+i)}, 4, {v(vO+i)}", f"v_mad_u32_u24 {v(vO+i)}, {v(vZ)}, {s(sT1)}, {v(vO+i)}"]
    stamp(a, "wo_ready")
    ol = W(17) + [(None, w18)] if Cfg.sls else []
    order = [(k, mt) for k in range(15) for mt in range(5)] + [(k, mt) for mt in range(5) for k in range(15, 20)]
    posn = {x: n for n, x in enumerate(order)}
    reads = sorted(((k, mt) for k in range(5, 20) for mt in range(5)), key=lambda x: posn[x])
    NB = Cfg.nb
    unp = [f"v_lshlrev_b32 {v(U+2*j)}, 16, {v(XR+j)}" if h == 0 else f"v_and_b32 {v(U+2*j+1)}, 0xffff0000, {v(XR+j)}" for j in range(10) for h in range(2)]
    def fin(mt):
        return [f"v_fma_f32 {v(U+4*mt+i)}, {v(AS+4*mt+i)}, {v(AD+4*mt+i)}, {v(U+4*mt+i)}" for i in range(4)] + \
               [f"v_cvt_pk_bf16_f32 {v(XR+2*mt+j)}, {v(U+4*mt+2*j)}, {v(U+4*mt+2*j+1)}" for j in range(2)]
    fq = []; nread = 0
    def wr(mt):
        lg.add(("w", mt)); a(f"ds_write_b64 {v(vTW)}, {v(XR+2*mt,2)} offset:{8*mt}")
    if not Cfg.two:
        for it in ol:
            put(it); a.ext(adr[:5]); adr = adr[5:]
        a.ext(adr); adr = []
        flag_chk("3", vFl, sF3, vFr, Cfg.p3s, Cfg.prioGv, None)()
        a("s_barrier")
        stamp(a, "o_go")
        ol = L(0) + L(1) + L(2) + L(3)
        per = -(-len(work) // Cfg.onl)
        for i in range(Cfg.onl):
            put(ol.pop(0))
            if i >= Cfg.sl0: a.ext(work[:per]); work = work[per:]
        a.ext(work)
    a(f"s_waitcnt vmcnt({vm.n(('O', 0))})")
    if not Cfg.two: stamp(a, "o_first")
    seenO = {0, 10} if Cfg.two else {0}
    unp = adr + unp
    XN = 50 if Cfg.two else 56
    for n, (k, mt) in enumerate(order):
        if n == XN and Cfg.xl and not Cfg.two:
            a(f"s_waitcnt vmcnt({vm.n('X')})")
            for m in range(5):
                lg.add(("x", m)); a(f"ds_read_b64 {v(XR+2*m,2)}, {v(vTW)} offset:{8*m}")
        if n == 50 and Cfg.two:
            for x in [x for x in reads if x[0] < 15]:
                reads.remove(x); rd(SETS[x[0] % 5], 54 + x[0], x[1]); nread += 1
            if not Cfg.xl: a.ext(unp); unp = []
            setprio(a, Cfg.prioGv)
            stamp(a, "o_mid")
            flag_chk("3", vFl, sF3, vFr, Cfg.p3s, Cfg.prioGv, None)()
            a("s_barrier")
            stamp(a, "o_go")
            ol = L(2) + L(3)
            per = -(-len(work) // Cfg.onl)
            for i in range(Cfg.onl):
                put(ol.pop(0))
                if i >= Cfg.sl0: a.ext(work[:per]); work = work[per:]
            a.ext(work)
            a(f"s_waitcnt vmcnt({vm.n(('O', 10))})")
            stamp(a, "o_first")
            if Cfg.xl:
                for m in range(5):
                    lg.add(("x", m)); a(f"ds_read_b64 {v(XR+2*m,2)}, {v(vTW)} offset:{8*m}")
        a(mf16(AS + 4 * mt, SETS[k % 5] + 4 * mt, OF(k), "0" if k == 0 else None))
        w = []
        if n < 99:
            k2, m2 = order[n + 1]
            if k2 not in seenO: w.append(f"vmcnt({vm.n(('O', k2))})"); seenO.add(k2)
            if n == NB: w.append(f"vmcnt({vm.n('w18')})")
            if k2 >= 5: w.append(f"lgkmcnt({min(14, lg.n((54 + k2, m2)), lg.n(('x', 4)) if (Cfg.xl and n == XN + 7) else 14)})")
        if w: a("s_waitcnt " + " ".join(w))
        if n == NB: a("s_barrier")
        if n == NB + 1 and Cfg.two: flag_req("3", vFl, sF3, vFr)()
        if Cfg.xl and n in (NB + 2, NB + 4, NB + 6):
            i = (n - NB - 2) // 2
            assert len(unp) <= 20
            a(f"s_add_u32 m0, {s(sT0)}, {i*1024}")
            a("s_mov_b32 exec_hi, 0" if i == 2 else "s_nop 0")
            a(f"buffer_load_dwordx4 {v(vO+i)}, {s(SX,4)}, {s(sT3)} offen lds"); vm.add("X")
            if i == 2: a("s_mov_b32 exec_hi, -1")
        slots = 2
        ok = [x for x in reads if posn[(x[0] - 5, x[1])] <= n and (x[0] < 14 or n >= NB)]
        if ok and ((n >= 50 and Cfg.two) or nread * Cfg.rpn <= n * 10 or posn[ok[0]] - n <= 10):
            x = ok[0]; reads.remove(x); rd(SETS[x[0] % 5], 54 + x[0], x[1]); nread += 1; slots -= 1
        if ol and n % (Cfg.oln if (n >= 50 or not Cfg.two) else 3) == 0:
            put(ol.pop(0)); slots -= 1
        if n >= 83 and (n - 83) % 5 == 0: fq += fin((n - 83) // 5) + [(n - 83) // 5]
        while slots > 0 and ((unp and (len(unp) > 20 or n >= (XN + 7 if Cfg.xl else 26))) or fq):
            x = unp.pop(0) if unp else fq.pop(0)
            if isinstance(x, int): wr(x)
            else: a(x)
            slots -= 1
    assert not reads and not ol and not unp
    stamp(a, "wo_done")
    for x in fq:
        if isinstance(x, int): wr(x)
        else: a(x)
    a("s_nop 2")
    a.ext(fin(4)); wr(4)
    for i in range(3): a(f"ds_read_b128 {v(U+4*i,4)}, {v(vTR)} offset:{i*1024}")
    for i in range(3):
        a(f"s_waitcnt lgkmcnt({2-i})")
        if Cfg.diag and i == 0:
            a(f"s_or_b32 {s(sT0)}, s2, {s(S_WV)}")
            a(f"s_cmp_lg_u32 {s(sT0)}, 0")
            a(f"s_cbranch_scc1 {pfx}_nodiag")
            a("s_waitcnt lgkmcnt(0)")
            a(f"s_add_u32 s52, {s(P_WS)}, 0x8000000")
            a(f"s_addc_u32 s53, {s(P_WS+1)}, 0")
            a("s_load_dwordx2 s[60:61], s[52:53], 0")
            a("s_memrealtime s[58:59]")
            a("s_waitcnt lgkmcnt(0)")
            a("s_cmp_eq_u32 s60, s61")
            a(f"s_cbranch_scc1 {pfx}_nodiag")
            a("s_getreg_b32 s60, hwreg(HW_REG_XCC_ID)")
            a("s_and_b32 s60, s60, 15")
            a(f"v_lshlrev_b32 v200, 6, {v(vL)}")
            a(f"s_mov_b32 s61, {FH_OFF + 4}")
            a(f"buffer_load_dword v201, v200, {s(S_WS,4)}, s61 offen sc1")
            a("s_waitcnt vmcnt(0)")
            for x in range(8): a(f"v_readlane_b32 {s(70+x)}, v201, {x}")
            a("s_nop 3")
            a("s_mov_b32 s80, s70"); a("s_mov_b32 s81, s70"); a("s_mov_b32 s82, 0")
            for x in range(1, 8):
                a(f"s_min_u32 s80, s80, {s(70+x)}")
                a(f"s_cmp_gt_u32 {s(70+x)}, s81"); a(f"s_cselect_b32 s82, {x*100}, s82")
                a(f"s_max_u32 s81, s81, {s(70+x)}")
            d = Cfg.diag
            if d == 1: a("s_mul_i32 s60, s60, 100")
            if d == 2: a("s_sub_u32 s60, 7, s60"); a("s_mul_i32 s60, s60, 100")
            if d == 3: a("s_sub_u32 s60, s81, s80")
            if d == 4: a("s_sub_u32 s60, s70, s80")
            if d == 5: a("s_mov_b32 s60, s82")
            if d == 6: a("s_sub_u32 s60, s58, s80")
            a("s_mov_b64 exec, 1")
            a(f"v_cvt_f32_u32 v200, s60")
            a(f"v_mul_f32 v200, {f2u(0.01)}, v200")
            a(f"v_add_f32 v200, 4.0, v200")
            a(f"v_cvt_pk_bf16_f32 {v(U)}, v200, v200")
            a("s_mov_b64 exec, -1")
            a(f"{pfx}_nodiag:")
        if i == 2: a("s_mov_b32 exec_hi, 0")
        a(f"buffer_store_dwordx4 {v(U+4*i,4)}, {v(vO+i)}, {s(SO,4)}, {s(sT3)} offen" + ("", " sc1", " nt", " sc0 sc1")[Cfg.ost])
    a(f"s_branch {pfx}_end")
    for b in ool: a.lines += b.lines
    a(f"{pfx}_end:")


class K2:
    vL, vF, vF2, vW4, vXO = 1, 2, 3, 4, 5
    vBA, vBR, vFA, vFR, vFl = 6, 10, 7, 8, 0
    vH = 12
    AD, BUF, XR = 16, 96, 240
    sRT, sC8, sM, sW, sH, sPB, sWo = 41, 42, 43, 44, 45, 49, 50
    sT0, sT1, sT2, sT3 = 54, 55, 56, 57
    @staticmethod
    def loads(j):
        g = K2; b = g.BUF + 36 * (j % Cfg.skn); o = []
        for i in range(5):
            o.append([f"buffer_load_dwordx4 {v(b+16+4*i,4)}, {v(g.vF if i < 4 else g.vW4)}, {s(S_WS,4)}, {s(g.sW)} offen offset:{(i&3)*1024 if i < 4 else 0} sc1"])
            if i < 4: o.append([f"buffer_load_dwordx4 {v(b+4*i,4)}, {v(g.vH+i)}, {s(S_WS,4)}, {s(g.sH)} offen sc1"])
        o[-1] += [f"s_add_u32 {s(g.sW)}, {s(g.sW)}, 20480", f"s_add_u32 {s(g.sH)}, {s(g.sH)}, 4096"]
        return o

def k2_start(a, pfx, valu, stores):
    g = K2
    vL, sT0, sT1, sT2 = g.vL, g.sT0, g.sT1, g.sT2
    a(f"s_lshr_b32 {s(g.sC8)}, s2, 5")
    a(f"s_and_b32 {s(sT1)}, s2, 7")
    a(f"s_bfe_u32 {s(sT0)}, s2, {3 | (2<<16)}")
    a(f"s_lshl2_add_u32 {s(g.sRT)}, {s(sT1)}, {s(sT0)}")
    a(f"s_mul_i32 {s(g.sW)}, {s(g.sC8)}, {74*5120}")
    a(f"s_mul_i32 {s(g.sM)}, {s(S_WV)}, 5120")
    a(f"s_add_u32 {s(g.sW)}, {s(g.sW)}, {s(g.sM)}")
    a(f"s_add_u32 {s(g.sW)}, {s(g.sW)}, {WR_OFF}")
    a(f"s_add_u32 {s(g.sWo)}, {s(g.sW)}, {54*5120}")
    a(f"s_mul_i32 {s(g.sH)}, {s(g.sRT)}, {4*55296}")
    a(f"s_lshl_b32 {s(sT0)}, {s(S_WV)}, 10")
    a(f"s_add_u32 {s(g.sH)}, {s(g.sH)}, {s(sT0)}")
    a(f"s_add_u32 {s(g.sH)}, {s(g.sH)}, {H_OFF}")
    a(f"v_lshlrev_b32 {v(g.vF)}, 4, {v(vL)}")
    a(f"v_add_u32 {v(g.vW4)}, 4096, {v(g.vF)}")
    for i in range(4):
        a(f"s_add_u32 {s(sT0)}, {s(S_WV)}, {i}")
        a(f"s_and_b32 {s(sT0)}, {s(sT0)}, 3")
        a(f"s_mul_i32 {s(sT0)}, {s(sT0)}, 55296")
        a(f"v_add_u32 {v(g.vH+i)}, {s(sT0)}, {v(g.vF)}")
    a(f"s_mov_b32 {s(sT0)}, 0")
    a(f"s_cmp_eq_u32 {s(S_WV)}, 0")
    a(f"s_cselect_b32 {s(g.sPB)}, {0 if valu else -1}, -1")
    a("s_waitcnt vmcnt(0) lgkmcnt(0)")
    a(f"s_cbranch_scc0 {pfx}_p4_ok")
    a(f"v_cmp_ne_u32 vcc, {v(g.vFR)}, {v(V_NONCE)}")
    a("s_nop 1")
    a(f"s_cbranch_vccz {pfx}_p4_ok")
    poll(a, f"{pfx}_p4", g.vFA, sT0, g.vFR, sT2, Cfg.p4s)
    a("s_barrier")
    stamp(a, "h_go")
    work = list(valu) + [
        f"v_add_u32 {v(g.vF2)}, {3*20480}, {v(g.vF)}",
        f"v_and_b32 {v(g.vFR)}, 15, {v(vL)}",
        f"v_mul_u32_u24 {v(g.vXO)}, 1280, {v(g.vFR)}",
        f"v_lshrrev_b32 {v(g.vFR)}, 4, {v(vL)}",
        f"v_mad_u32_u24 {v(g.vXO)}, {v(g.vFR)}, 40, {v(g.vXO)}",
        f"v_and_b32 {v(g.vFl)}, 31, {v(vL)}",
        f"v_lshlrev_b32 {v(g.vFl)}, 6, {v(g.vFl)}",
        f"v_min_u32 {v(g.vBA)}, 11, {v(vL)}",
        f"s_lshr_b32 {s(sT0)}, {s(g.sRT)}, 1", f"s_lshl_b32 {s(sT0)}, {s(sT0)}, 10", f"s_add_u32 {s(sT0)}, {s(sT0)}, {F2B_OFF}",
        f"v_lshl_add_u32 {v(g.vBA)}, {v(g.vBA)}, 6, {s(sT0)}",
        f"s_lshr_b32 {s(sT0)}, s2, 7", f"s_lshl_b32 {s(sT0)}, {s(sT0)}, 12", f"s_add_u32 {s(sT0)}, {s(sT0)}, {F4_OFF}",
        f"s_mov_b32 exec_lo, 0\nv_lshl_add_u32 {v(g.vBA)}, {v(vL)}, 6, {s(sT0)}\ns_mov_b32 exec_lo, -1"]
    if Cfg.sks == 0:
        parts = [(g.loads(0) + g.loads(1), work, stores)]
    else:
        parts = [(g.loads(0), work[:len(valu)], stores), (g.loads(1), work[len(valu):], [])]
    for groups, wk, st in parts:
        per = -(-len(wk) // len(groups))
        for gr in groups:
            a.ext(gr); a.ext(wk[:per]); wk = wk[per:]
        a.ext(st)
    a(f"s_waitcnt vmcnt({9 + len(stores)})")

def gen_k2(a, pfx):
    g = K2
    vL, vF, vF2, vW4, vXO, XR, AD, vFl = g.vL, g.vF, g.vF2, g.vW4, g.vXO, g.XR, g.AD, g.vFl
    sRT, sC8, sM, sPB, sWo = g.sRT, g.sC8, g.sM, g.sPB, g.sWo
    sT0, sT1, sT2, sT3 = g.sT0, g.sT1, g.sT2, g.sT3
    sOL, sF3, sZ, sOH, sOG = 46, 47, 48, 58, 96
    AS = 36; RT = 176
    SETS = (96, 116, 136, 156, 76)
    OF = lambda k: 216 + 4 * k if k < 6 else 56 + 4 * (k - 6) if k < 10 else 176 + 4 * (k - 10)
    U = 216; Z = 72
    TWO = Cfg.two; LS = 256 if TWO else 512
    F = Cfg.skf
    if F:
        assert not TWO and Cfg.skn == 3
        SETS = (76, 56, 96, 116, 136); OF = lambda k: 156 + 4 * k; U = 156; Z = 236
    vFr, vOL, vTW, vTR, vO = 8, 9, 250, 251, 252
    SX, SO = S_A, S_B
    NS = Cfg.skn
    vm, lg = Trk(), Trk()
    ool = []
    def put(it):
        tag, lines = it
        if callable(lines): lines(); return
        a.ext(lines)
        if tag: vm.add(tag)
    def wave0(name, cond, body):
        def f():
            a(f"s_cmp_eq_u32 {s(cond)}, 0"); a(f"s_cbranch_scc1 {pfx}_{name}"); a(f"{pfx}_{name}r:")
            b = Asm(); b(f"{pfx}_{name}:"); body(b); b(f"s_branch {pfx}_{name}r"); ool.append(b)
        return f
    def flag_req(name, vaddr, soff, vres):
        def body(b):
            vm.mark(name); b(f"buffer_load_dword {v(vres)}, {v(vaddr)}, {s(S_WS,4)}, {s(soff)} offen sc1")
        return wave0("q" + name, S_WV, body)
    def flag_chk(name, vaddr, soff, vres, sleep, prio, st):
        def body(b):
            setprio(b, Cfg.prioGv)
            b(f"s_waitcnt vmcnt({vm.n(name)})")
            b(f"v_cmp_ne_u32 vcc, {v(vres)}, {v(V_NONCE)}")
            b("s_nop 1")
            b(f"s_cbranch_vccz {pfx}_p{name}_ok")
            poll(b, f"{pfx}_p{name}", vaddr, soff, vres, sT2, sleep, g.vBR if (name == "3" and Cfg.pp3) else None)
            setprio(b, prio)
            if st: stamp(b, st)
        return wave0("c" + name, S_WV, body)
    def wo_dma(stage, slot):
        o = [[f"s_add_u32 m0, {s(sM)}, {slot*20480}", "s_nop 0"]]
        for i in range(4): o.append([f"buffer_load_dwordx4 {v(vF)}, {s(S_WS,4)}, {s(sWo)} offen offset:{i*1024} sc1 lds"])
        o[0] += o.pop(1)
        o.append([f"s_add_u32 m0, {s(sM)}, {slot*20480+4096}", "s_nop 0",
                  f"buffer_load_dwordx4 {v(vW4)}, {s(S_WS,4)}, {s(sWo)} offen sc1 lds", f"s_add_u32 {s(sWo)}, {s(sWo)}, 20480"])
        return [(("wo", stage), x) for x in o]
    def rd(d, j, mt):
        off = (j * 5120 if j < 12 else (j - 16) * 5120 if j >= 16 else (j - 12) * 5120) + mt * 1024
        lg.add((j, mt))
        a(f"ds_read_b128 {v(d+4*mt,4)}, {v(vF2 if ((j >= 16) if F else (12 <= j < 16)) else vF)} offset:{off}")
    B = lambda j: [(("B", j), x) for x in g.loads(j)]
    sal = lambda *l: (None, list(l))
    for j in range(2):
        for x in B(j): vm.add(x[0])
        if j == 1 - min(Cfg.sks, 1): vm.mark("hst")
    setprio(a, Cfg.prioD)
    LD = NS - 1
    PJ = Cfg.skp2
    items = {j: (B(j + LD) if j + LD < 13 else []) for j in range(14)}
    if NS == 4: items[0] = B(2) + B(3)
    def last_loads():
        a(f"s_cmp_ge_u32 {s(S_WV)}, 2"); a(f"s_cbranch_scc1 {pfx}_nl13")
        for x in g.loads(13): a.ext(x)
        a(f"{pfx}_nl13:"); vm.mark("B13")
    items[13 - LD] = [(None, last_loads)]
    if F:
        ll = [sal(f"s_and_b32 {s(sT0)}, {s(S_WV)}, 2", f"s_mul_i32 {s(sT1)}, {s(sT0)}, 5120", f"s_sub_u32 {s(g.sW)}, {s(g.sW)}, {s(sT1)}",
                  f"s_lshl_b32 {s(sT0)}, {s(sT0)}, 10", f"s_sub_u32 {s(g.sH)}, {s(g.sH)}, {s(sT0)}")]
        for n_, x in enumerate(g.loads(13)):
            if n_ in (5, 7): continue
            if n_ in (1, 3): x = [x[0].replace(v(132 + 2 * (n_ - 1), 4), v(140 + 2 * (n_ - 1), 4))]
            ll.append(("B13", x))
        items[11] = ll
    CJ = 8 - LD
    GJ = Cfg.gj
    if Cfg.cj0: CJ = GJ
    t_ = Asm(); srd(t_, SX, P_X, 2048 * 1280); srd(t_, SO, P_OUT, 2048 * 1280)
    setup = [sal(f"s_mov_b32 {s(sZ)}, 0", *[x.strip() for x in t_.lines])]
    setup += [sal(f"s_lshl_b32 {s(sOL)}, {s(sRT)}, 14", f"s_and_b32 {s(sT0)}, {s(S_WV)}, 1", f"s_lshl_b32 {s(sT0)}, {s(sT0)}, {3 if TWO else 8}",
                     f"s_add_u32 {s(sOL)}, {s(sOL)}, {s(sT0)}", f"s_lshr_b32 {s(sT0)}, {s(S_WV)}, 1", f"s_lshl_b32 {s(sT0)}, {s(sT0)}, {13 if TWO else 3}",
                     f"s_add_u32 {s(sOL)}, {s(sOL)}, {s(sT0)}",
                     f"s_lshl_b32 {s(sF3)}, {s(sRT)}, 11", f"s_add_u32 {s(sF3)}, {s(sF3)}, {F3_OFF}",
                     f"s_lshl2_add_u32 {s(sRT)}, {s(sRT)}, {s(S_WV)}", f"s_lshl_b32 {s(sT0)}, {s(sRT)}, 14",
                     *[f"s_add_u32 {s(sOH+q)}, {s(sT0)}, {O_OFF + 4096*q}" for q in range(4)],
                     *[f"s_add_u32 {s(sOG+q)}, {s(sOL)}, {OL_OFF + 8*LS*q}" for q in range(4)],
                     f"s_mul_i32 {s(sT3)}, {s(sRT)}, {16*1280}", f"s_mul_i32 {s(sT1)}, {s(sC8)}, 160", f"s_add_u32 {s(sT3)}, {s(sT3)}, {s(sT1)}")]
    if CJ >= 3:
        items[1].append(setup[0]); items[2].append(setup[1]); setup = []
        items[CJ - 1] = [(None, flag_req("2", g.vBA, sZ, g.vBR))] + items[CJ - 1]
    for it in setup: put(it)
    xl = [(("X", 0), [f"buffer_load_dwordx{n} {v(XR+o,n)}, {v(vXO)}, {s(SX,4)}, {s(sT3)} offen offset:{4*o}"]) for o, n in ((0, 4), (4, 4), (8, 2))]
    late = wo_dma(0, 0) + wo_dma(1, 1) + wo_dma(2, 2) + xl
    if GJ >= CJ: pass
    elif Cfg.skl == 0:
        items[13 - LD] += late[:5]; items[12] += late[5:] if LD == 2 else late[12:]
        if LD == 3: items[11] += late[5:12]
    else:
        js = list(range(CJ + Cfg.skl - 1, 12))
        for i, it in enumerate(late[:15]): items[js[i * len(js) // 15]].append(it)
        items[11 if F else 12] += late[15:]
    def L(q):
        return [(("O", 5*q+i), [f"buffer_load_dwordx4 {v(OF(5*q+i),4)}, {v(vF)}, {s(S_WS,4)}, {s(sOH+q)} offen offset:{i*1024} sc1"]) for i in range(4)] + \
               [(("O", 5*q+4), [f"buffer_load_dwordx2 {v(OF(5*q+4)+2*i,2)}, {v(vOL)}, {s(S_WS,4)}, {s(sOG+q)} offen offset:{i*LS} sc1"]) for i in range(2)]
    if TWO: items[12] = [(None, flag_req("a", vFl, sF3, vFr))] + items[12]
    if Cfg.tc & 2:
        def tb(b):
            setprio(b, Cfg.prioGv); b.ext(touch(f"{pfx}_tc1", f"{pfx}_end", 52, g.vFA, g.vFA)); setprio(b, Cfg.prioD)
            b.lines = [l.replace("s_add_u32 s52, s52, g2_tc1-", "s_sub_u32 s52, s52, @").replace("s_addc_u32 s53", "s_subb_u32 s53") for l in b.lines]
            b.lines = [(l.split("@")[0] + l.split("@")[1] + "-g2_tc1") if "@" in l else l for l in b.lines]
        items[8] += [(None, wave0("tc", S_WV, tb))]
    for j in range(12 if F else 14):
        b = g.BUF + 36 * (j % NS)
        if j == 13:
            a(f"{pfx}_tc1:")
            a(f"s_cmp_ge_u32 {s(S_WV)}, 2"); a(f"s_cbranch_scc1 {pfx}_ddone")
        if j > 0 or PJ == 0:
            a(f"s_waitcnt vmcnt({min(vm.n(('B', j) if j < 13 else 'B13'), vm.n('hst') if j == PJ else 63)})")
        if j == 0: stamp(a, "d_issued")
        if j == PJ:
            a("s_barrier"); wave0("pb", sPB, lambda b_: (publish(b_, 100), stamp(b_, "pub2")))()
        if j == GJ and j < CJ:
            for it in items[j]: put(it)
            items[j] = []
        if j == CJ:
            if CJ < 3: flag_req("2", g.vBA, sZ, g.vBR)()
            flag_chk("2", g.vBA, sZ, g.vBR, Cfg.p2s, Cfg.prioD, "h2_go")(); a("s_barrier")
        if j == GJ:
            for it in items[j] + (late if GJ >= CJ else []): put(it)
            items[j] = []
            def gw(b):
                setprio(b, Cfg.prioGv)
                b(f"s_lshl_b32 {s(sT0)}, s2, 7"); b(f"s_add_u32 {s(sT0)}, {s(sT0)}, {FP_OFF}")
                b("s_mov_b64 exec, 1")
                poll(b, f"{pfx}_pg", None, sT0, g.vBR, sT2, Cfg.phs)
                b("s_mov_b64 exec, -1")
                setprio(b, Cfg.prioD); stamp(b, "g_go")
            wave0("gw", S_WV, gw)(); a("s_barrier")
        pend = list(items[j]); npend = len(pend); done = 0
        prs = [(i, mt) for i in range(4) for mt in range(5)] if Cfg.sko == 0 else [(i, mt) for mt in range(5) for i in range(4)]
        if j >= 12: prs = [(i, mt) for i in (1, 2, 3, 0) for mt in range(5)]
        for n, (i, mt) in enumerate(prs):
            a(mf16(AD + 20 * i + 4 * mt, b + 16 + 4 * mt, b + 4 * i, "0" if j == 0 else None))
            while pend and done * 20 <= n * npend:
                put(pend.pop(0)); done += 1
        assert not pend
    if F:
        a(f"{pfx}_tc1:")
        vRA = (vO, vO + 1, vO + 2)
        setprio(a, Cfg.prioGv)
        a(f"v_add_u32 {v(vTW)}, {s(sM)}, {v(vF2)}")
        for r in range(1, 4):
            a(f"s_sub_u32 {s(sT0)}, {s(S_WV)}, {r}")
            a(f"s_and_b32 {s(sT0)}, {s(sT0)}, 3")
            a(f"s_mul_i32 {s(sT0)}, {s(sT0)}, 5120")
            a(f"v_add_u32 {v(vRA[r-1])}, {s(sT0)}, {v(vF2)}")
        setprio(a, Cfg.prioD)
        RR = {3: 176, 2: 196, 1: 216}
        wrt = lambda r: [[f"ds_write_b128 {v(vTW)}, {v(AD+20*r+4*mt,4)} offset:{mt*1024}"] for mt in range(5)]
        rdt = lambda r: [f"ds_read_b128 {v(RR[r]+4*mt,4)}, {v(vRA[r-1])} offset:{mt*1024}" for mt in range(5)]
        bar = ["s_waitcnt lgkmcnt(0)", "s_barrier"]
        def sets(j): return lambda: [rd(SETS[j], j, mt) for mt in range(5)]
        ev = {n_: [] for n_ in range(30)}
        for i_, x in enumerate(wrt(3)): ev[12 + i_ // 2] += x
        ev[15] += [f"s_waitcnt vmcnt({vm.n(('wo', 2))}) lgkmcnt(0)", "s_barrier"] + rdt(3) + [sets(0)]
        ev[18] += bar
        for i_, x in enumerate(wrt(2)): ev[18 + i_ // 2] += x
        ev[19] += [f"s_waitcnt vmcnt({vm.n('B13')})"]
        ev[22] += bar + rdt(2) + [sets(1), sets(2)]
        ev[27] += bar + [sets(3)]
        a(f"s_waitcnt vmcnt({vm.n(('B', 12))})")
        seq = [(96, 96 + 4 * i, i, mt) for i in (3, 2, 1, 0) for mt in range(5)] + [(132, 140 + 4 * i, i, mt) for i in (1, 0) for mt in range(5)]
        for n_, (b, h, i, mt) in enumerate(seq):
            a(mf16(AD + 20 * i + 4 * mt, b + 16 + 4 * mt, h))
            for x in ev[n_]:
                if callable(x): x()
                else: a(x)
        setprio(a, Cfg.prioR)
        stamp(a, "d_done")
        for x in wrt(1): a.ext(x)
        sets(4)()
        flag_req("3", vFl, sF3, vFr)()
        for i in range(0, 20, 2): a(f"v_pk_add_f32 {v(RR[3]+i,2)}, {v(RR[3]+i,2)}, {v(RR[2]+i,2)}")
        a.ext(bar + rdt(1))
        for n_, it in enumerate(wo_dma(3, 0)):
            put(it)
            for i in (4 * n_, 4 * n_ + 2): a(f"v_pk_add_f32 {v(AD+i,2)}, {v(AD+i,2)}, {v(RR[3]+i,2)}")
        a(f"v_lshrrev_b32 {v(vTR)}, 4, {v(vL)}")
        a(f"v_and_b32 {v(vOL)}, 0xff, {v(vF)}")
        a(f"v_lshl_add_u32 {v(vOL)}, {v(vTR)}, 10, {v(vOL)}")
        RT = RR[1]
    else:
        a(f"{pfx}_ddone:")
        setprio(a, Cfg.prioR)
        stamp(a, "d_done")
        a(f"v_add_u32 {v(vTW)}, {s(sM)}, {v(vF2)}")
        a(f"v_lshrrev_b32 {v(vTR)}, 4, {v(vL)}")
        a(f"v_and_b32 {v(vOL)}, 0xff, {v(vF)}")
        a(f"v_lshl_add_u32 {v(vOL)}, {v(vTR)}, {9 if TWO else 10}, {v(vOL)}")
        wr_ = [(j, mt) for j in range(5) for mt in range(5)]
        for r in range(1, 4):
            a(f"s_sub_u32 {s(sT0)}, {s(S_WV)}, {r}")
            a(f"s_and_b32 {s(sT0)}, {s(sT0)}, 3")
            a(f"s_mul_i32 {s(sT0)}, {s(sT0)}, 5120")
            a(f"v_add_u32 {v(vTR)}, {s(sT0)}, {v(vF2)}")
            for mt in range(5): a(f"ds_write_b128 {v(vTW)}, {v(AD+20*r+4*mt,4)} offset:{mt*1024}")
            if r > 1:
                for i in range(0, 20, 2): a(f"v_pk_add_f32 {v(AD+i,2)}, {v(AD+i,2)}, {v(RT+20*(r&1)+i,2)}")
            a("s_waitcnt " + (f"vmcnt({vm.n(('wo', 2))}) " if r == 1 else "") + "lgkmcnt(0)")
            if r == 1 and TWO: flag_chk("a", vFl, sF3, vFr, Cfg.p2s, Cfg.prioR, "o0_go")()
            a("s_barrier")
            for mt in range(5): a(f"ds_read_b128 {v(RT+20*((r+1)&1)+4*mt,4)}, {v(vTR)} offset:{mt*1024}")
            for j, mt in wr_[10*(r-1):10*r]: rd(SETS[j], j, mt)
            if TWO:
                for it in (L(0) + L(1))[4*(r-1):4*r]: put(it)
            if r == 3 and not TWO: flag_req("3", vFl, sF3, vFr)()
            a("s_waitcnt lgkmcnt(0)")
            a("s_barrier")
    SCR = 20480
    adr = [f"v_pk_add_f32 {v(AD+i,2)}, {v(AD+i,2)}, {v(RT+i,2)}" for i in range(0, 20, 2)] + [
           f"v_lshrrev_b32 {v(vTW)}, 4, {v(vL)}", f"v_and_b32 {v(vTR)}, 0xff, {v(vF)}", f"s_add_u32 {s(sF3)}, {s(sF3)}, {65536 if TWO else 0}",
           f"s_mul_i32 {s(sT0)}, {s(S_WV)}, 2560", f"s_add_u32 {s(sT0)}, {s(sT0)}, {SCR}",
           f"v_mul_u32_u24 {v(vTR)}, 10, {v(vTR)}", f"v_mad_u32_u24 {v(vTW)}, {v(vTW)}, 40, {v(vTR)}", f"v_add_u32 {v(vTW)}, {s(sT0)}, {v(vTW)}",
           f"v_add_u32 {v(vTR)}, {s(sT0)}, {v(vF)}", f"s_movk_i32 {s(sT1)}, 1120"]
    for i in range(3):
        adr += [f"v_add_u32 {v(vO+i)}, {64*i}, {v(vL)}", f"v_mul_u32_u24 {v(Z)}, 6554, {v(vO+i)}", f"v_lshrrev_b32 {v(Z)}, 16, {v(Z)}",
                f"v_lshlrev_b32 {v(vO+i)}, 4, {v(vO+i)}", f"v_mad_u32_u24 {v(vO+i)}, {v(Z)}, {s(sT1)}, {v(vO+i)}"]
    wl = wo_dma(3, 3) + wo_dma(4, 0)
    if F:
        a.ext(["s_waitcnt lgkmcnt(0)", "s_barrier"]); wl = wo_dma(4, 3)
    if not TWO:
        for it in wl:
            put(it); a.ext(adr[:40 // len(wl)]); adr = adr[40 // len(wl):]
        a.ext(adr); adr = []; wl = []
    else:
        a.ext(adr[:10]); adr = adr[10:]
    stamp(a, "wo_ready")
    def go(groups, first):
        setprio(a, Cfg.prioGv)
        if TWO: a(f"s_waitcnt vmcnt({vm.n(('wo', 4))})")
        flag_chk("3", vFl, sF3, vFr, Cfg.p3s, Cfg.prioGv, None)()
        a("s_barrier")
        stamp(a, "o_go")
        work = []
        for r0 in range(0, 20, 4):
            work += [f"v_mul_f32 {v(Z+i)}, {f2u(-LOG2E)}, {v(AD+r0+i)}" for i in range(4)]
            work += [f"v_exp_f32 {v(Z+i)}, {v(Z+i)}" for i in range(4)]
            work += [f"v_pk_add_f32 {v(Z+i,2)}, {v(Z+i,2)}, 1.0 op_sel_hi:[1,0]" for i in (0, 2)]
            work += [f"v_rcp_f32 {v(Z+i)}, {v(Z+i)}" for i in range(4)]
            work += [pk("mul", AD + r0 + i, [AD + r0 + i, Z + i]) for i in (0, 2)]
        for q in groups: ol.extend(L(q))
        per = -(-len(work) // (Cfg.onl - Cfg.sl0))
        for i in range(Cfg.onl):
            put(ol.pop(0))
            if TWO and i < 3:
                for mt in range(5): reads.remove((12 + i, mt)); rd(SETS[(12 + i) % 5], 12 + i, mt)
            if i >= Cfg.sl0: a.ext(work[:per]); work = work[per:]
        a.ext(work)
        a(f"s_waitcnt vmcnt({vm.n(('O', first))})")
        stamp(a, "o_first")
    ol = list(wl)
    MJ = Cfg.mj
    order = [(k, mt) for k in range(20 - MJ) for mt in range(5)] + [(k, mt) for mt in range(5) for k in range(20 - MJ, 20)]
    fin_at = {100 - (4 - mt) * MJ + 3: mt for mt in range(4) if 100 - (4 - mt) * MJ + 3 < 100}
    posn = {x: n for n, x in enumerate(order)}
    reads = sorted(((k, mt) for k in range(5, 20) for mt in range(5)), key=lambda x: posn[x])
    NB = 50 if TWO else 31
    unp = [f"v_lshlrev_b32 {v(U+2*j)}, 16, {v(XR+j)}" if h == 0 else f"v_and_b32 {v(U+2*j+1)}, 0xffff0000, {v(XR+j)}" for j in range(10) for h in range(2)]
    def fin(mt):
        return [f"v_fma_f32 {v(U+4*mt+i)}, {v(AS+4*mt+i)}, {v(AD+4*mt+i)}, {v(U+4*mt+i)}" for i in range(4)] + \
               [f"v_cvt_pk_bf16_f32 {v(XR+2*mt+j)}, {v(U+4*mt+2*j)}, {v(U+4*mt+2*j+1)}" for j in range(2)]
    fq = []; nread = 0
    unp = adr + unp
    def wr(mt):
        lg.add(("w", mt)); a(f"ds_write_b64 {v(vTW)}, {v(XR+2*mt,2)} offset:{8*mt}")
    if TWO: a(f"s_waitcnt vmcnt({vm.n(('O', 0))})")
    else: go(range(4), 0)
    seenO = {0, 10} if TWO else {0}
    for n, (k, mt) in enumerate(order):
        if n == 50 and TWO:
            for x in [x for x in reads if x[0] < 12]:
                reads.remove(x); rd(SETS[x[0] % 5], x[0], x[1]); nread += 1
            a.ext(unp); unp = []
            stamp(a, "o_mid")
            go((2, 3), 10)
        a(mf16(AS + 4 * mt, SETS[k % 5] + 4 * mt, OF(k), "0" if k == 0 else None))
        w = []
        if n < 99:
            k2, m2 = order[n + 1]
            if k2 not in seenO: w.append(f"vmcnt({vm.n(('O', k2))})"); seenO.add(k2)
            if k2 >= 5: w.append(f"lgkmcnt({min(14, lg.n((k2, m2)))})")
        if w: a("s_waitcnt " + " ".join(w))
        if n == NB and not TWO: a("s_barrier")
        if n == 33 and TWO: flag_req("3", vFl, sF3, vFr)()
        slots = 2
        ok = [x for x in reads if posn[(x[0] - 5, x[1])] <= n and (x[0] < 12 or n >= NB)]
        if ok and ((TWO and n >= 50) or nread * Cfg.rpn <= n * 10 or posn[ok[0]] - n <= 10):
            x = ok[0]; reads.remove(x); rd(SETS[x[0] % 5], x[0], x[1]); nread += 1; slots -= 1
        if ol and n % (3 if (TWO and n < 50) else Cfg.oln) == 0:
            put(ol.pop(0)); slots -= 1
        if n in fin_at: fq += fin(fin_at[n]) + [fin_at[n]]
        while slots > 0 and ((unp and (len(unp) > 20 or n >= 26)) or fq):
            x = unp.pop(0) if unp else fq.pop(0)
            if isinstance(x, int): wr(x)
            else: a(x)
            slots -= 1
    assert not reads and not ol and not unp
    stamp(a, "wo_done")
    for x in fq:
        if isinstance(x, int): wr(x)
        else: a(x)
    for mt in range(5):
        if mt in fin_at.values(): continue
        if mt == 4 and 3 in fin_at.values(): a("s_nop 2")
        a.ext(fin(mt)); wr(mt)
    for i in range(3): a(f"ds_read_b128 {v(U+4*i,4)}, {v(vTR)} offset:{i*1024}")
    for i in range(3):
        a(f"s_waitcnt lgkmcnt({2-i})")
        if i == 2: a("s_mov_b32 exec_hi, 0")
        a(f"buffer_store_dwordx4 {v(U+4*i,4)}, {v(vO+i)}, {s(SO,4)}, {s(sT3)} offen")
    a(f"s_branch {pfx}_end")
    for b in ool: a.lines += b.lines
    a(f"{pfx}_end:")

def kd(name, nv=256):
    return f""".amdhsa_kernel {name}
  .amdhsa_next_free_vgpr {nv}
  .amdhsa_next_free_sgpr 102
  .amdhsa_accum_offset {nv}
  .amdhsa_group_segment_fixed_size 0
  .amdhsa_kernarg_size 80
  .amdhsa_user_sgpr_count 2
  .amdhsa_user_sgpr_kernarg_segment_ptr 1
  .amdhsa_system_sgpr_workgroup_id_x 1
  .amdhsa_float_denorm_mode_32 3
.end_amdhsa_kernel
"""
def head(a, name, n):
    a(f".globl {name}"); a(".p2align 8"); a(f".type {name},@function"); a(f"{name}:")
    a(f"s_cmp_ge_u32 s2, {n}")
    a(f"s_cbranch_scc1 {name}_end")
    load_args(a)
def tail(a, name):
    a(f"{name}_end:"); a("s_endpgm")

def build1():
    Cfg.fused = True
    a = Asm()
    name = NAME + "_kernel"
    a("; @launch grid=(512,1,1) block=(256,1,1) lds=81920")
    a('.amdgcn_target "amdgcn-amd-amdhsa--gfx950"')
    a(".text")
    head(a, name, 512)
    if Cfg.cpf == 2:
        a("s_getpc_b64 s[54:55]")
        a("L_pc:")
        a("s_and_b32 s56, s2, 0x1f8")
        a("v_lshrrev_b32 v2, 5, v0")
        a("v_and_b32 v3, 1, v0")
        a("v_add3_u32 v2, v2, v3, s56")
        a("v_lshlrev_b32 v2, 7, v2")
        a(f"v_min_u32 v2, {name}_end-L_pc, v2")
        a("s_mov_b64 exec, 3")
        a("global_load_dword v255, v2, s[54:55]")
        a("s_mov_b64 exec, -1")
    a("s_cmp_ge_u32 s2, 256")
    a("s_cbranch_scc1 L_att")
    stamp_begin(a, 0); stamp(a, "start"); gen_g1(a, "g1"); (gen_k2 if Cfg.sk else gen_g2)(a, "g2"); stamp_end(a, 0, 2)
    a("s_endpgm")
    a("L_att:")
    stamp_begin(a, 1); stamp(a, "start"); (gen_att if Cfg.two else gen_att1)(a, "att", 2); stamp_end(a, 1, 2)
    tail(a, name)
    a('.section .rodata,"a"')
    a(".p2align 6"); a.lines.append(kd(name))
    return a.text()

if __name__ == "__main__":
    if "--stamps" in sys.argv:
        sys.argv.remove("--stamps"); STAMPS = True
    if "--lite" in sys.argv:
        sys.argv.remove("--lite"); STAMPS = True; LITE = True
    if "--cyc" in sys.argv:
        sys.argv.remove("--cyc"); STAMPS = "cyc"
    three = "--three" in sys.argv
    if three: sys.argv.remove("--three")
    for x in list(sys.argv):
        if "=" in x:
            k_, v_ = x.split("="); setattr(Cfg, k_, int(v_)); sys.argv.remove(x)
    t = build1()
    if STAMPS:
        import json; json.dump(St.names, open(sys.argv[1].replace(".s", ".json"), "w"))
    out = sys.argv[1] if len(sys.argv) > 1 else f"cdna_kernels/{NAME}.s"
    body = t[:t.index('.section .rodata')]
    pr = check_hazards(body)
    for p in pr: print("HAZARD", p)
    open(out, "w").write(t)
    print("written", out, len(t), "bytes;", len(pr), "hazards")
```

```python
import sys, math, struct, re
from asmlib import *

NAME = "recurrent_scan__softmax_full_mha__geglu_ffn__prompt"
QK_OFF = 0
V_OFF = 160 * 32768
H_OFF = V_OFF + 32 * 81920
O_OFF = H_OFF + 128 * 55296
OL_OFF = O_OFF + 128 * 16384
FLAG_OFF = O_OFF + 128 * 20480
def f2u(x): return "0x%08x" % struct.unpack("<I", struct.pack("<f", x))[0]
LOG2E = math.log2(math.e)
QSCALE = 20 ** -0.5 * LOG2E
GC0 = -2.0 * LOG2E * math.sqrt(2.0 / math.pi)
GC1 = GC0 * 0.044715
SC1 = " sc1"

P_X, P_WQKV, P_WO, P_WG, P_WU, P_WD, P_OUT, P_DBG, P_WS = 4, 6, 8, 12, 14, 16, 18, 20, 22
S_WS = 24
S_A = 28
S_B = 32
S_C = 36
S_WV = 40

def srd(a, d, p, nbytes):
    a(f"s_mov_b32 {s(d)}, {s(p)}")
    a(f"s_mov_b32 {s(d+1)}, {s(p+1)}")
    a(f"s_mov_b32 {s(d+2)}, {nbytes}")
    a(f"s_mov_b32 {s(d+3)}, 0x00020000")

WR_OFF = FLAG_OFF
FLAG_OFF = WR_OFF + 8 * 74 * 5120
F4_OFF = FLAG_OFF + 32768 + 131072
F2B_OFF = F4_OFF + 8192
F1_OFF = FLAG_OFF
F2_OFF = FLAG_OFF + 16384
F3_OFF = FLAG_OFF + 32768
FH_OFF = F2B_OFF + 16384
F0_OFF = FH_OFF + 16384
F5_OFF = F0_OFF + 16384
FP_OFF = F5_OFF + 8192
FX_OFF = FP_OFF + 32768
WS_BYTES = FX_OFF + 256 * 4352
V_NONCE = 11
class Cfg:
    fused = True
    prioA = 1; prioGm = 0; prioGv = 2; prioD = 0
    rot = True
    ns = 3; drot = 0; cpf = 2; nw0 = 2; pubk = 3; aord = 1; x_norl = 0; hiN = 0; p3s = 1; p4s = 16; p2s = 2; chks = 3; x_hot = 0; x_nokv = 0; wpf = 0; x_nolo = 0; p0s = 16; p1s = 4; prioS = 2; onl = 12; carry = 2; gap = 2; gap0 = 2; x_body = 0; tch = 0; bal = 0; diag = 0; dsel = 0; ost = 0; tlb = 0; lo = 24; hi = 48; pk = 3; otch = 0; lag = 0; mbu = 1; prioE = 3; thl = 3; ths = 3; early = 0; hiL = 5; hiE = 5; rpn = 12; adw = 1; oln = 4; tc = 2; x_gexit = 0; w0e = 0; pzk = 15; tha = -1; fpos = 0; med = 1; hiR = 6; prioB = 1; thq = -1; dyn = 0; gate = 1; hau = 7; nost = 0; prioT = 2; sls = 1; sl0 = 2; nb = 36; lnn = 1; nsl = 2; two = 0; sk = 1; skn = 3; sko = 0; prioR = 2; skl = 3; sks = 1; skp2 = 1; wsc = 0; xsc = 0; pex = 1; pp3 = 0; pp0 = 0; hint = 0; phs = 4; lpro = 1; fst = 64; spoll = 0; gj = -1; hb = 10; cj0 = 0; skf = 1; wgp = 1; spf = 0; spn = 8; mj = 2; p0g = 0; snk = 1; lead = 1; x_aexit = 0; x_d = 0; wpre = 0; skp = 1; hpre = 0; xl = 0; dry = 0; arl = 0
def setprio(a, p):
    if Cfg.fused: a(f"s_setprio {p}")
def publish(a, soff):
    a("s_mov_b64 exec, 1")
    a(f"buffer_store_dword {v(V_NONCE)}, off, {s(S_WS,4)}, {s(soff)} sc1")
    a("s_mov_b64 exec, -1")
def poll(a, lbl, vaddr, soff, vt, scnt, sleep, vt2=None):
    ld = lambda d: f"buffer_load_dword {v(d)}, {'off' if vaddr is None else v(vaddr)}, {s(S_WS,4)}, {s(soff)}{'' if vaddr is None else ' offen'} sc1"
    a(f"s_mov_b32 {s(scnt)}, 0x20000")
    if vt2 is not None: a(ld(vt2))
    a(f"{lbl}:")
    for i, (new, old) in enumerate(((vt, vt),) if vt2 is None else ((vt, vt2), (vt2, vt))):
        if vt2 is not None and sleep: a(f"s_sleep {sleep}")
        a(ld(new))
        a(f"s_waitcnt vmcnt({0 if vt2 is None else 1})")
        a(f"v_cmp_ne_u32 vcc, {v(old)}, {v(V_NONCE)}")
        a(f"s_sub_u32 {s(scnt)}, {s(scnt)}, 1")
        a(f"s_cbranch_scc1 {lbl}_ok")
        a(f"s_cbranch_vccz {lbl}_ok")
        if Cfg.pex: a("s_mov_b64 exec, vcc")
    if vt2 is None and sleep: a(f"s_sleep {sleep}")
    a(f"s_branch {lbl}")
    a(f"{lbl}_ok:")
    if Cfg.pex: a("s_mov_b64 exec, -1")
def nonce_load(a, vz):
    a(f"global_load_dword {v(V_NONCE)}, {v(vz)}, {s(P_DBG,2)} sc1")
def nonce_check(a, lbl, vz, st, scnt, ok=None):
    ok = ok or f"{lbl}_ok"
    a(f"s_mov_b32 {s(scnt)}, 0x20000")
    a(f"{lbl}:")
    a(f"v_readfirstlane_b32 {s(st)}, {v(V_NONCE)}")
    a(f"s_sub_u32 {s(scnt)}, {s(scnt)}, 1")
    a(f"s_cbranch_scc1 {ok}")
    a(f"s_cmp_lg_u32 {s(st)}, 0")
    a(f"s_cbranch_scc1 {ok}")
    a(f"s_sleep {Cfg.nsl}")
    a(f"v_mov_b32 {v(vz)}, 0")
    nonce_load(a, vz)
    a("s_waitcnt vmcnt(0)")
    a(f"s_branch {lbl}")
    a(f"{lbl}_ok:")

STAMPS = False
class St:
    n = 0; names = {}; cur = None
LITE = False
def stamp(a, name):
    if not STAMPS or (LITE and name not in ("start", "end")): return
    l = St.names.setdefault(St.cur, [])
    if name not in l: l.append(name)
    i = l.index(name)
    a("s_waitcnt lgkmcnt(0)")
    a("s_memtime s[62:63]" if STAMPS == "cyc" else "s_memrealtime s[62:63]")
    a("s_waitcnt lgkmcnt(0)")
    a(f"s_mov_b32 {s(64+i)}, s62")
def stamp_begin(a, role):
    St.cur = role
    if not STAMPS: return
    for i in range(32 if not LITE else 0): a(f"s_mov_b32 {s(64+i)}, 0")
def stamp_end(a, slot, idreg):
    if not STAMPS: return
    a("s_waitcnt vmcnt(0) lgkmcnt(0)")
    stamp(a, "end")
    a("s_mov_b64 exec, -1")
    a("v_mov_b32 v20, 0")
    for i in range(32 if not LITE else 2): a(f"v_writelane_b32 v20, {s(64+i)}, {i}")
    a(f"s_and_b32 s62, {s(idreg)}, 255")
    a("s_lshl_b32 s62, s62, 2")
    a(f"s_add_u32 s62, s62, {s(S_WV)}")
    a(f"s_add_u32 s62, s62, {slot*1024}")
    a("s_lshl_b32 s62, s62, 7")
    a(f"s_add_u32 s62, s62, {WS_BYTES}")
    a(f"s_mov_b32 {s(S_WS+2)}, {WS_BYTES + (1<<20)}")
    a("v_lshlrev_b32 v21, 2, v1")
    a("s_mov_b32 exec_hi, 0")
    a(f"buffer_store_dword v20, v21, {s(S_WS,4)}, s62 offen")

_tc = [0]
def touch(l0, l1, sp, vaddr, vdst, vL=1):
    _tc[0] += 1; t = f"L_tc{_tc[0]}"
    return [f"s_getpc_b64 {s(sp,2)}", f"{t}:", f"s_add_u32 {s(sp)}, {s(sp)}, {l0}-{t}", f"s_addc_u32 {s(sp+1)}, {s(sp+1)}, 0",
            f"v_lshlrev_b32 {v(vaddr)}, 7, {v(vL)}", f"v_min_u32 {v(vaddr)}, {l1}-{l0}, {v(vaddr)}",
            f"global_load_dword {v(vdst)}, {v(vaddr)}, {s(sp,2)}"]

def pk(op, d, srcs):
    ops = []; lo = []; hi = []
    for x in srcs:
        if x >= 0: ops.append(v(x, 2)); lo.append(0); hi.append(1)
        else:
            r = -x - 1; ops.append(v(r & ~1, 2)); lo.append(r & 1); hi.append(r & 1)
    f = lambda l: "[" + ",".join(map(str, l)) + "]"
    return f"v_pk_{op}_f32 {v(d,2)}, " + ", ".join(ops) + f" op_sel:{f(lo)} op_sel_hi:{f(hi)}"

class Trk:
    def __init__(self): self.l = []
    def add(self, tag): self.l.append(tag)
    def mark(self, tag): self.l.append(("opt", tag))
    def n(self, tag):
        i = max(j for j, t in enumerate(self.l) if t == tag or t == ("opt", tag))
        return min(62, sum(1 for t in self.l[i+1:] if not (isinstance(t, tuple) and t[0] == "opt")))

MODS = ("", " sc1", " nt", " sc0")
def WM(): return " sc1" if Cfg.wpre else MODS[Cfg.wsc]
def load_args(a):
    a("s_load_dwordx16 s[4:19], s[0:1], 0")
    a("s_load_dwordx4 s[20:23], s[0:1], 64")

def gen_g1(a, pfx):
    X, ACC, G, WF = 96, 32, 64, 16
    vL = 1
    vTA, vTB, vTA2, vTB2, vD, vDR, vDCo, vST = 2, 3, 4, 5, 6, 7, 8, 9
    CN = (10, 12, 13, 14, 15, 0)
    vA0, vB0, vK0, vA1, vB1, vK1 = CN
    vA, vB, vK = (vA0, vA1), (vB0, vB1), (vK0, vK1)
    VR, VA = G + 16, G + 24
    sRB, sCG, sTT, sM, sN, sNT, sNQ, sP0 = 41, 42, 43, 44, 45, 46, 47, 48
    sO, sDA, sDB, sDC, sS = 49, 50, 51, 52, 53
    sT0, sT1, sT2, sT3, sSO = 54, 55, 56, 57, 58
    sSW, sCHK, sC2, sPB0, sHI, sURG = 59, 97, 36, 37, 98, 3
    NU = 1 if Cfg.two else 2
    sROT, sXB, sXC, sPUB, sF, sU = 96, 97, 98, 99, 100, 101
    SW = S_B
    t0, t1, t2 = G, G + 1, G + 2
    NL = 12 if Cfg.med else 10
    if Cfg.p0g: setprio(a, Cfg.p0g)
    a(f"v_and_b32 {v(vL)}, 63, v0")
    a(f"v_lshrrev_b32 {v(t2)}, 6, v0")
    a(f"s_and_b32 {s(sT0)}, s2, 7")
    a(f"v_readfirstlane_b32 {s(S_WV)}, {v(t2)}")
    a(f"s_lshr_b32 {s(sT1)}, s2, 3")
    a(f"s_lshr_b32 {s(sRB)}, {s(sT0)}, 1")
    a(f"s_lshl_b32 {s(sRB)}, {s(sRB)}, 2")
    a(f"s_and_b32 {s(sROT)}, {s(sT1)}, 3")
    a(f"s_add_u32 {s(sRB)}, {s(sRB)}, {s(sROT)}")
    a(f"s_lshr_b32 {s(sT2)}, {s(sT1)}, 2")
    if Cfg.rot == 2: a(f"s_mov_b32 {s(sROT)}, {s(sT2)}")
    elif Cfg.rot == 3:
        a(f"s_and_b32 {s(sROT)}, {s(sROT)}, 1")
        a(f"s_lshl_b32 {s(sROT)}, {s(sROT)}, 1")
        a(f"s_add_u32 {s(sROT)}, {s(sROT)}, {s(sT2)}")
    else: a(f"s_add_u32 {s(sROT)}, {s(sROT)}, {s(sT2)}")
    a(f"s_lshl_b32 {s(sTT)}, {s(sRB)}, 2")
    a(f"s_add_u32 {s(sTT)}, {s(sTT)}, {s(S_WV)}")
    a(f"s_mul_i32 {s(sT3)}, {s(sROT)}, 13")
    a(f"s_lshr_b32 {s(sT3)}, {s(sT3)}, 6")
    a(f"s_mul_i32 {s(sT3)}, {s(sT3)}, 5")
    a(f"s_sub_u32 {s(sROT)}, {s(sROT)}, {s(sT3)}")
    if not Cfg.rot: a(f"s_mov_b32 {s(sROT)}, 0")
    vXA = ACC
    a(f"v_lshrrev_b32 {v(t0)}, 4, {v(vL)}")
    a(f"v_mul_u32_u24 {v(vXA)}, 1280, {v(t0)}")
    a(f"v_and_b32 {v(t1)}, 15, {v(vL)}")
    a(f"v_xor_b32 {v(vXA+1)}, {v(t0)}, {v(t1)}")
    a(f"v_lshl_add_u32 {v(vXA)}, {v(vXA+1)}, 4, {v(vXA)}")
    for i in range(1, 4): a(f"v_xor_b32 {v(vXA+i)}, {64*i}, {v(vXA)}")
    a(f"s_lshl_b32 {s(sM)}, {s(S_WV)}, 12")
    a(f"s_mul_i32 {s(sXB)}, {s(sTT)}, 40960")
    a(f"s_lshl_b32 {s(sXC)}, {s(sROT)}, 8")
    XS = (4, 1, 2, 3, 0, 4, 1, 2, 3, 4) if Cfg.w0e else (0, 1, 2, 3, 4, 0, 1, 2, 3, 4)
    def xdma(b):
        out = []
        for i in range(4):
            g = []
            if i == 0:
                g += [f"s_add_u32 m0, {s(sM)}, {XS[b]*16384}", f"s_add_u32 {s(sU)}, {s(sXB)}, {s(sXC)}"]
            g.append(f"buffer_load_dwordx4 {v(vXA+i)}, {s(S_A,4)}, {s(sU)} offen offset:{i*1024}{MODS[Cfg.xsc]} lds")
            if i < 3: g.append(f"s_add_u32 {s(sU)}, {s(sU)}, 4096")
            else:
                g += [f"s_add_u32 {s(sXC)}, {s(sXC)}, 256", f"s_cmp_ge_u32 {s(sXC)}, 1280", f"s_cselect_b32 {s(sXC)}, 0, {s(sXC)}"]
                if b == 4: g.append(f"s_add_u32 {s(sXB)}, {s(sXB)}, 20480")
            out.append(g)
        return out
    su = Asm()
    su(f"s_and_b32 {s(sCG)}, {s(sT0)}, 1")
    su(f"s_add_u32 {s(sCG)}, {s(sCG)}, {s(sT2)}" if Cfg.bal else f"s_lshl_b32 {s(sCG)}, {s(sCG)}, 3")
    su(f"s_add_u32 {s(sCG)}, {s(sCG)}, {s(sT2)}")
    su(f"s_mul_i32 {s(sC2)}, {s(sCG)}, 52")
    su(f"s_lshr_b32 {s(sC2)}, {s(sC2)}, 8")
    su(f"s_mul_i32 {s(sC2)}, {s(sC2)}, 5")
    su(f"s_add_u32 {s(sC2)}, {s(sCG)}, {s(sC2)}")
    srd(su, S_WS, P_WS, WS_BYTES)
    su(f"s_cmp_lt_u32 {s(sCG)}, 15\ns_cselect_b32 {s(sNQ)}, 2, 0\ns_cselect_b32 {s(sSW)}, 1, -1@")
    su(f"s_cmp_lt_u32 {s(sCG)}, {NL}\ns_cselect_b32 {s(sNT)}, 6, 4\ns_cselect_b32 {s(sP0)}, 17, 1@")
    if Cfg.med:
        su(f"s_sub_u32 {s(sT0)}, {s(sCG)}, 7")
        su(f"s_lshr_b32 {s(sT1)}, {s(sT0)}, 1")
        su(f"s_sub_u32 {s(sT0)}, {s(sCG)}, 8")
        su(f"s_cmp_lt_u32 {s(sT0)}, 4\ns_cselect_b32 {s(sT1)}, {s(sT1)}, 0\ns_sub_u32 {s(sP0)}, {s(sP0)}, {s(sT1)}@")
    su(f"s_mov_b32 {s(SW+3)}, 0x00020000")
    su(f"s_mov_b32 {s(sN)}, -1")
    vR0, vR4 = ACC + 4, ACC + 8
    vSm, vGr, vNM, vON = ACC + 12, (ACC + 16, ACC + 20), ACC + 24, ACC + 28
    vSE, vBP, vMu = G + 6, G + 5, (G + 12, G + 13)
    CTS = ((WF, WF + 8, G + 16), (ACC, G + 16, ACC + 8))
    sMA, sMB = 60, 38
    su(f"v_xor_b32 {v(vR0)}, {v(t0)}, {v(t1)}")
    su(f"v_lshlrev_b32 {v(vR0)}, 4, {v(vR0)}")
    su(f"v_lshl_add_u32 {v(vR0)}, {v(t1)}, 8, {v(vR0)}")
    su(f"v_add_u32 {v(vR0)}, {s(sM)}, {v(vR0)}")
    for q in range(1, 4): su(f"v_xor_b32 {v(vR0+q)}, {64*q}, {v(vR0)}")
    for q in range(4): su(f"v_add_u32 {v(vR4+q)}, 0x10000, {v(vR0+q)}")
    for i in range(4): su(f"v_mov_b32 {v(vON+i)}, 0x3f803f80")
    for i in (0, 1, 4, 5): su(f"v_mov_b32 {v(vSE+i)}, 0")
    su(f"s_mov_b32 {s(sMA)}, 0xaaaaaaaa"); su(f"s_mov_b32 {s(sMA+1)}, 0xaaaaaaaa")
    su(f"s_mov_b32 {s(sMB)}, 0xcccccccc"); su(f"s_mov_b32 {s(sMB+1)}, 0xcccccccc")
    su(f"v_and_b32 {v(vBP)}, 1, {v(vL)}")
    su(f"v_lshlrev_b32 {v(vBP)}, 4, {v(vBP)}")
    su(f"v_mov_b32 {v(vSE+2)}, 0x3f80")
    su(f"v_lshlrev_b32 {v(vSE+2)}, {v(vBP)}, {v(vSE+2)}")
    su(f"v_bfe_u32 {v(vBP)}, {v(vL)}, 2, 2")
    su(f"v_cmp_eq_u32 vcc, {v(vBP)}, {v(t0)}")
    su(f"v_lshl_add_u32 {v(vBP)}, {v(vBP)}, 4, {v(t1)}")
    su(f"v_lshlrev_b32 {v(vBP)}, 2, {v(vBP)}")
    su(f"v_cndmask_b32 {v(vSE+2)}, 0, {v(vSE+2)}, vcc")
    su(f"v_cndmask_b32 {v(vSE+3)}, 0, {v(vSE+2)}, {s(sMB,2)}")
    su(f"v_cndmask_b32 {v(vSE+2)}, {v(vSE+2)}, 0, {s(sMB,2)}")
    t3, t4 = G + 3, G + 4
    su(f"v_bfe_u32 {v(t3)}, {v(vL)}, 4, 1")
    su(f"v_bfe_u32 {v(t4)}, {v(vL)}, 2, 2")
    su(f"v_lshl_add_u32 {v(vDR)}, {v(t3)}, 3, {v(t4)}")
    su(f"v_lshl_add_u32 {v(vDR)}, {v(t2)}, 5, {v(vDR)}")
    su(f"v_lshlrev_b32 {v(vDCo)}, 1, {v(t3)}")
    su(f"v_and_b32 {v(vD)}, 3, {v(vL)}")
    su(f"v_xor_b32 {v(vDCo)}, {v(vDCo)}, {v(vD)}")
    su(f"v_lshlrev_b32 {v(vDCo)}, 4, {v(vDCo)}")
    su(f"v_lshrrev_b32 {v(t2)}, 5, {v(vL)}")
    su(f"v_lshl_add_u32 {v(vDCo)}, {v(t2)}, 6, {v(vDCo)}")
    su(f"v_lshlrev_b32 {v(vTA)}, 11, {v(t2)}")
    su(f"v_mad_u32_u24 {v(vTA)}, {v(t3)}, {s(sT3)}, {v(vTA)}")
    su(f"v_lshl_add_u32 {v(vTA)}, {v(t4)}, 6, {v(vTA)}")
    su(f"v_lshl_add_u32 {v(vTA)}, {v(vD)}, 3, {v(vTA)}")
    su(f"v_xor_b32 {v(vTB)}, 32, {v(vTA)}")
    su(f"v_add_u32 {v(vTA2)}, 0x10000, {v(vTA)}")
    su(f"v_add_u32 {v(vTB2)}, 0x10000, {v(vTB)}")
    su(f"v_lshl_add_u32 {v(vST)}, {v(t3)}, 1, {v(t2)}")
    su(f"v_lshlrev_b32 {v(vST)}, 15, {v(vST)}")
    su(f"v_lshl_add_u32 {v(vST)}, {v(t1)}, 4, {v(vST)}")
    su(f"s_lshl_b32 {s(sT1)}, {s(sC2)}, 6")
    su(f"s_sub_u32 {s(sT1)}, {s(sT1)}, 1280")
    su(f"s_and_b32 {s(sT1)}, {s(sT1)}, 1023")
    su(f"s_mov_b32 {s(sT2)}, {81920-320}")
    su(f"v_mul_u32_u24 {v(t0)}, 320, {v(t0)}")
    su(f"v_add_u32 {v(t1)}, {s(sT1)}, {v(t1)}")
    for i in range(8):
        su(f"v_mul_u32_u24 {v(t2)}, 3277, {v(t1)}")
        su(f"v_lshrrev_b32 {v(t2)}, 16, {v(t2)}")
        su(f"v_lshl_add_u32 {v(VA+i)}, {v(t1)}, 4, {v(t0)}")
        su(f"v_mad_u32_u24 {v(VA+i)}, {v(t2)}, {s(sT2)}, {v(VA+i)}")
        if i == 3: su(f"v_add_u32 {v(t1)}, 272, {v(t1)}")
        elif i < 7: su(f"v_add_u32 {v(t1)}, 16, {v(t1)}")
    def params_a():
        return [f"s_add_u32 {s(sT0)}, {s(sN)}, 1",
                f"s_sub_u32 {s(sT1)}, {s(sT0)}, {s(sNQ)}",
                f"s_lshr_b32 {s(sT1)}, {s(sT1)}, 1",
                f"s_mul_i32 {s(sT1)}, {s(sT1)}, {s(sP0)}",
                f"s_add_u32 {s(sT1)}, {s(sT1)}, {s(sCG)}",
                f"s_mul_i32 {s(sT2)}, {s(sT0)}, 5",
                f"s_add_u32 {s(sT2)}, {s(sT2)}, {s(sC2)}",
                f"s_movk_i32 {s(sS)}, 3456",
                f"s_cmp_lt_u32 {s(sT0)}, {s(sNQ)}\ns_cselect_b32 {s(sT1)}, {s(sT2)}, {s(sT1)}\ns_cselect_b32 {s(sS)}, 3840, {s(sS)}",
                f"s_mul_i32 {s(sT2)}, {s(sROT)}, {s(sS)}",
                f"s_add_u32 {s(sT1)}, {s(sT1)}, {s(sT2)}"]
    def params_b():
        return [f"s_bitcmp1_b32 {s(sT0)}, 0\ns_cselect_b32 {s(SW)}, {s(P_WU)}, {s(P_WG)}\ns_cselect_b32 {s(SW+1)}, {s(P_WU+1)}, {s(P_WG+1)}",
                f"s_cmp_lt_u32 {s(sT0)}, {s(sNQ)}\ns_cselect_b32 {s(SW)}, {s(P_WQKV)}, {s(SW)}\ns_cselect_b32 {s(SW+1)}, {s(P_WQKV+1)}, {s(SW+1)}",
                f"s_mul_i32 {s(SW+2)}, {s(sS)}, 640",
                f"s_cmp_lt_u32 {s(sT0)}, {s(sNT)}\ns_cselect_b32 {s(SW+2)}, {s(SW+2)}, 0",
                f"s_lshl_b32 {s(sO)}, {s(sT1)}, 7",
                f"s_lshl_b32 {s(sDA)}, {s(sS)}, 2",
                f"s_mul_i32 {s(sDB)}, {s(sS)}, 12",
                f"s_mul_i32 {s(sDC)}, {s(sS)}, 108",
                f"s_sub_u32 {s(sDA)}, {s(sDA)}, 1024",
                f"s_sub_u32 {s(sDB)}, {s(sDB)}, 1024",
                f"s_add_u32 {s(sDC)}, {s(sDC)}, 3072"]
    def params_v(): return f"v_mad_u32_u24 {v(vD)}, {v(vDR)}, {s(sS)}, {v(vDCo)}"
    def wdma(slot):
        out = []
        for i in range(4):
            g = []
            if i == 0: g += [f"s_add_u32 m0, {s(sM)}, {slot*16384}", "s_nop 0"]
            g.append(f"buffer_load_dwordx4 {v(vD)}, {s(SW,4)}, {s(sO)} offen offset:{i*1024}{WM()} lds")
            g.append(f"s_add_u32 {s(sO)}, {s(sO)}, {s((sDA, sDB, sDA, sDC)[i])}")
            if i == 3:
                g += [f"s_cmp_ge_u32 {s(sO)}, {s(SW+2)}", f"s_cselect_b32 {s(sU)}, {s(SW+2)}, 0", f"s_sub_u32 {s(sO)}, {s(sO)}, {s(sU)}"]
            out.append(g)
        return out
    items = []; keep = []
    for l in su.lines:
        l = l.strip()
        if l.startswith("s_cmp"): keep = [l]; continue
        if keep:
            keep.append(l.rstrip("@"))
            if l.endswith("@"): items.append("\n".join(keep)); keep = []
            continue
        items.append(l)
    items += params_a() + params_b() + [params_v()]
    a(f"s_movk_i32 {s(sT3)}, 288")
    a("s_waitcnt lgkmcnt(0)")
    srd(a, S_A, P_X, 2048 * 1280)
    per = -(-len(items) // 16)
    if Cfg.tch & 1:
        a(f"s_mul_i32 {s(sU)}, {s(sT2)}, 2560")
        a(f"s_add_u32 {s(sU)}, {s(sU)}, {s(sXB)}")
        a(f"s_add_u32 {s(sU)}, {s(sU)}, 20480")
        a(f"v_lshlrev_b32 {v(WF)}, 7, {v(vL)}")
        a("s_mov_b64 exec, 0xfffff")
        a(f"buffer_load_dword {v(WF+1)}, {v(WF)}, {s(S_A,4)}, {s(sU)} offen")
        a("s_mov_b64 exec, -1")
    for b in range(5):
        for g in xdma(b):
            a.ext(g)
            if b > 0:
                for _ in range(per):
                    if items: a(items.pop(0))
    assert not items
    if Cfg.tch & 2:
        a(f"s_and_b32 {s(sT0)}, {s(sTT)}, 15")
        a(f"s_mul_i32 {s(sT0)}, {s(sT0)}, 40")
        a(f"s_mul_i32 {s(sT0)}, {s(sT0)}, {s(sS)}")
        a(f"s_mul_i32 {s(sT2)}, {s(sROT)}, {s(sS)}")
        a(f"s_lshl_b32 {s(sT2)}, {s(sT2)}, 7")
        a(f"s_sub_u32 {s(sT2)}, {s(sO)}, {s(sT2)}")
        a(f"s_add_u32 {s(sT0)}, {s(sT0)}, {s(sT2)}")
        a(f"v_mul_u32_u24 {v(WF+2)}, {s(sS)}, {v(vL)}")
        a("s_mov_b32 exec_hi, 0xff")
        a(f"buffer_load_dword {v(WF+3)}, {v(WF+2)}, {s(SW,4)}, {s(sT0)} offen")
        if Cfg.tch & 4: a(f"buffer_load_dword {v(WF+4)}, {v(WF+2)}, {s(SW,4)}, {s(sT0)} offen offset:128")
        a("s_mov_b32 exec_hi, -1")
    def nonce_pub():
        a(f"s_or_b32 {s(sT0)}, s2, {s(S_WV)}")
        a(f"s_cmp_lg_u32 {s(sT0)}, 0")
        a(f"s_cbranch_scc1 {pfx}_nn")
        a(f"s_memrealtime {s(sT0,2)}")
        a("s_waitcnt lgkmcnt(0)")
        a(f"s_or_b32 {s(sT0)}, {s(sT0)}, 1")
        a(f"v_mov_b32 {v(t0)}, 0")
        a(f"v_mov_b32 {v(t1)}, {s(sT0)}")
        a("s_mov_b64 exec, 1")
        a(f"global_store_dword {v(t0)}, {v(t1)}, {s(P_DBG,2)} sc1")
        a("s_mov_b64 exec, -1")
        a(f"{pfx}_nn:")
    if not Cfg.lnn: nonce_pub()
    a(f"s_mov_b32 {s(sN)}, 0")

    def stats(b):
        o = []
        for q in range(4):
            f = X + 16 * b + 4 * q
            first = (b % 5 == 0 and q == 0)
            o.append(mf16(vSm, vON, f, "0" if first else None))
            o.append(mf16(vGr[b // 5], f, f, "0" if first else None))
        return o
    def mean(rt):
        return [f"v_mul_f32 {v(vMu[rt])}, {f2u(-1/640)}, {v(vSm)}",
                f"v_cvt_pk_bf16_f32 {v(vNM)}, {v(vMu[rt])}, {v(vMu[rt])}",
                f"v_lshlrev_b32 {v(vNM)}, 16, {v(vNM)}",
                f"v_mov_b32 {v(vNM+1)}, {v(vNM)}", f"v_mov_b32 {v(vNM+2)}, {v(vNM)}", f"v_mov_b32 {v(vNM+3)}, {v(vNM)}", "s_nop 1"]
    def diag(rt):
        g = vGr[rt]
        return [f"v_cndmask_b32 {v(g)}, {v(g)}, {v(g+1)}, {s(sMA,2)}",
                f"v_cndmask_b32 {v(g+2)}, {v(g+2)}, {v(g+3)}, {s(sMA,2)}",
                f"v_cndmask_b32 {v(g)}, {v(g)}, {v(g+2)}, {s(sMB,2)}",
                f"ds_bpermute_b32 {v(vK[rt])}, {v(vBP)}, {v(g)}"]
    def finalize2(rt):
        k = vK[rt]
        return [f"v_mul_f32 {v(k)}, {f2u(1/640)}, {v(k)}",
                f"v_fma_f32 {v(k)}, -{v(vMu[rt])}, {v(vMu[rt])}, {v(k)}",
                f"v_max_f32 {v(k)}, 0, {v(k)}",
                f"v_cvt_pk_bf16_f32 {v(k)}, {v(k)}, {v(k)}",
                f"v_lshlrev_b32 {v(k)}, 16, {v(k)}",
                f"v_add_f32 {v(k)}, {f2u(1e-5)}, {v(k)}",
                f"v_cvt_pk_bf16_f32 {v(k)}, {v(k)}, {v(k)}",
                f"v_lshlrev_b32 {v(k)}, 16, {v(k)}",
                f"v_sqrt_f32 {v(k)}, {v(k)}", "s_nop 0",
                f"v_cvt_pk_bf16_f32 {v(k)}, {v(k)}, {v(k)}",
                f"v_lshlrev_b32 {v(k)}, 16, {v(k)}",
                f"v_rcp_f32 {v(vA[rt])}, {v(k)}", "s_nop 0",
                f"v_mul_f32 {v(vA[rt])}, {s(sT3)}, {v(vA[rt])}"]
    def center(rt):
        steps = []; CT = CTS[rt]
        for j in range(22):
            m = [[], []]; c = [[], []]
            if j < 20:
                f = X + 80 * rt + 4 * j; d = CT[j % 3]
                m = [[mf16(d, vSE + 2, f, v(vNM, 4))], [mf16(d + 4, vSE, f, v(vNM, 4))]]
            if j >= 2:
                f = X + 80 * rt + 4 * (j - 2); d = CT[(j - 2) % 3]
                cv = [f"v_cvt_pk_bf16_f32 {v(f+i)}, {v(d+2*i)}, {v(d+2*i+1)}" for i in range(4)]
                c = [cv[:2], cv[2:]]
            st = m[0] + c[0] + m[1] + c[1]
            if j in (0, 1): st.append("s_nop 2")
            if j == 20: st.append("s_nop 3")
            steps.append(st)
        return steps
    def weave(steps, groups):
        n = len(groups); done = 0
        for i, st in enumerate(steps):
            a.ext(st[:1])
            while done < n and done * len(steps) <= i * n:
                a.ext(groups[done]); done += 1
            a.ext(st[1:])
        for g in groups[done:]: a.ext(g)
    a(f"s_cmp_lt_u32 {s(sCG)}, 5")
    a(f"s_cselect_b32 {s(sT3)}, {f2u(QSCALE)}, 1.0")
    def xread(b):
        slot = XS[b]
        return [f"ds_read_b128 {v(X+16*b+4*q,4)}, {v((vR4 if slot == 4 else vR0)+q)} offset:{0 if slot == 4 else slot*16384}" for q in range(4)]
    pairs = lambda l: [l[2*i:2*i+2] for i in range(len(l) // 2)]
    NC = Cfg.carry
    wg = [wdma(st) for st in range(4)]
    wg[3] = wg[3][:4 - NC]; wg[3][-1] = wg[3][-1][:-1]
    tk = Trk()
    for b in range(5):
        for _ in range(4): tk.add(("x", b))
    def wx(b): a(f"s_waitcnt vmcnt({tk.n(('x', b))})")
    dq = []
    def popq():
        tag, gr = dq.pop(0); a.ext(gr); tk.add(tag)
    def step(st, pop):
        a.ext(st[:1])
        if pop and dq: popq()
        a.ext(st[1:])
    XD = lambda b: [(("x", b), gr) for gr in xdma(b)]
    WD = lambda st: [(("w", st), gr) for gr in wg[st]]
    E = Cfg.w0e
    wx(0)
    stamp(a, "x0")
    a.ext(xread(0))
    for b in range(5):
        if b < 4:
            wx(b + 1); a.ext(xread(b + 1)); a("s_waitcnt lgkmcnt(4)")
        else:
            a("s_waitcnt lgkmcnt(0)")
        if b < 4 or not E: dq += XD(b + 5)
        for i, st in enumerate(pairs(stats(b))): step(st, i % 2 == 0)
    popq()
    a("s_nop 4")
    a.ext(mean(0))
    c0 = center(0)
    for i, st in enumerate(c0):
        step(st, i % 2 == 1 or (E and i > 9))
        if i == 3: a.ext(diag(0))
        if E and i == 6:
            wx(5); a.ext(xread(5))
        if E and i == 9:
            assert not dq
            a("s_waitcnt lgkmcnt(0)")
            dq += XD(9) + WD(0)
        if i == 17:
            assert not dq
            stamp(a, "p1")
            if not E: wx(5); a.ext(xread(5))
    f0 = finalize2(0)
    for b in range(5, 10):
        if b < 9:
            wx(b + 1); a.ext(xread(b + 1)); a("s_waitcnt lgkmcnt(4)")
            if b > 5 or not E: dq += WD(b - 5)
        else:
            a("s_waitcnt lgkmcnt(0)")
        sts = stats(b)
        if b == 9: sts = sts[0::2] + sts[1::2]
        for i, st in enumerate(pairs(sts)):
            step(st, i % 2 == 0 if b < 9 else i >= 2)
            if i % 2 == 1: a.ext(f0[:2]); f0 = f0[2:]
        if b == 7 and Cfg.lnn: nonce_pub()
    assert not f0
    stamp(a, "p2")
    a(f"v_mov_b32 {v(V_NONCE)}, 0")
    a.ext(mean(1))
    def trd(k, ct):
        kk = k % 20
        slot, ks = kk // 4, kk % 4
        base = ((vTA, vTB), (vTA2, vTB2))[slot == 4][ct & 1]
        off = 0 if slot == 4 else slot * 16384
        return [f"ds_read_b64_tr_b16 {v(WF+4*ct+2*t,2)}, {v(base)} offset:{off+ks*4096+t*1024+(ct>>1)*512}" for t in range(2)]
    sq = [f"s_cmp_eq_u32 {s(sNQ)}, 0", f"s_cselect_b32 {s(sPUB)}, -1, {3 - NU}", f"s_cselect_b32 {s(sURG)}, {NU if Cfg.hint == 1 else -1}, {NU}",
          f"s_lshl4_add_u32 {s(sF)}, {s(sCG)}, {s(sRB)}", f"s_lshl_b32 {s(sF)}, {s(sF)}, 6", f"s_add_u32 {s(sF)}, {s(sF)}, {F1_OFF if Cfg.two else F0_OFF}",
          f"s_cmp_eq_u32 {s(S_WV)}, 0", f"s_cselect_b32 {s(sCHK)}, 5, -1", f"s_cselect_b32 {s(sPUB)}, {s(sPUB)}, -1", f"s_mov_b32 {s(sPB0)}, {s(sSW)}",
          f"s_cmp_lt_u32 {s(sCG)}, 8" if (Cfg.two or Cfg.early != 1) else "s_cmp_lt_u32 s2, 128", f"s_cselect_b32 {s(sHI)}, {Cfg.hiE}, {Cfg.hiL}",
          f"s_cmp_lt_u32 {s(sCG)}, {NL}", f"s_cselect_b32 {s(sHI)}, {s(sHI)}, {Cfg.hiR}", f"s_setprio {Cfg.prioGv}"]
    f1 = [x for x in finalize2(1) if not x.startswith("s_nop")]
    c1 = center(1)
    for i, st in enumerate(c1):
        if dq: step(st, i % 2 == 0)
        else:
            for x in st:
                a(x)
                if "mfma" in x and sq: a(sq.pop(0))
        if i == 1: a.ext(diag(1))
        if i == 5: a("s_waitcnt lgkmcnt(0)")
        if i >= 5 and f1: a(f1.pop(0))
        if i == 15:
            assert not dq
            a(f"s_waitcnt vmcnt({12 - NC})")
            a("s_barrier")
            stamp(a, "w0")
            for ct in range(4): a.ext(trd(0, ct))
            if not Cfg.lnn: nonce_load(a, V_NONCE)
    assert not sq and not f1
    stamp(a, "centered")
    if Cfg.diag:
        a("s_lshl_b32 s62, s2, 6"); a(f"s_add_u32 s62, s62, {FH_OFF + 4}")
        a(f"v_mov_b32 {v(t0)}, s64"); a("s_mov_b64 exec, 1")
        a(f"buffer_store_dword {v(t0)}, off, {s(S_WS,4)}, s62 sc1"); a("s_mov_b64 exec, -1")
    def ffn_consts():
        for rt in range(2):
            a(f"v_rcp_f32 {v(vB[rt])}, {v(vK[rt])}")
            a(f"v_mul_f32 {v(vK[rt])}, {v(vK[rt])}, {v(vK[rt])}")
            a(f"v_mul_f32 {v(vA[rt])}, {f2u(GC0)}, {v(vB[rt])}")
            a(f"v_mul_f32 {v(vB[rt])}, {v(vB[rt])}, {v(vB[rt])}")
            a(f"v_mul_f32 {v(vB[rt])}, {v(vB[rt])}, {v(vA[rt])}")
            a(f"v_mul_f32 {v(vB[rt])}, {f2u(0.044715)}, {v(vB[rt])}")
        a(f"v_lshlrev_b32 {v(vST)}, 4, {v(vL)}")
        a(f"s_lshr_b32 {s(sT0)}, s2, 7")
        a(f"s_lshl_b32 {s(sT0)}, {s(sT0)}, 12")
        a(f"s_add_u32 {s(sT0)}, {s(sT0)}, {F4_OFF}")
        a(f"s_and_b32 {s(sT1)}, s2, 7")
        a(f"s_lshl_b32 {s(sT1)}, {s(sT1)}, 1")
        a(f"s_bfe_u32 {s(sT2)}, s2, {4 | (1<<16)}")
        a(f"s_add_u32 {s(sT1)}, {s(sT1)}, {s(sT2)}")
        a(f"s_lshl_b32 {s(sT1)}, {s(sT1)}, 10")
        a(f"s_add_u32 {s(sT1)}, {s(sT1)}, {F2_OFF - 48*64}")
        a(f"v_mov_b32 {v(vDR)}, {s(sT0)}")
        a("s_mov_b32 exec_lo, 0")
        a("s_mov_b32 exec_hi, 0xffff0000")
        a(f"v_mov_b32 {v(vDR)}, {s(sT1)}")
        a("s_mov_b64 exec, -1")
        a(f"v_lshl_add_u32 {v(vDR)}, {v(vL)}, 6, {v(vDR)}")
        if Cfg.med:
            a("s_mov_b32 exec_lo, 0")
            a("s_mov_b32 exec_hi, 0xffff")
            if Cfg.gate == 1:
                a(f"s_lshl_b32 {s(sT0)}, s2, 6")
                a(f"s_add_u32 {s(sT0)}, {s(sT0)}, {FH_OFF + 32}")
            if Cfg.gate == 2:
                a(f"s_lshl_b32 {s(sT1)}, s2, 6")
                a(f"s_add_u32 {s(sT1)}, {s(sT1)}, {FH_OFF + 32}")
                a(f"s_cmp_lt_u32 {s(sCG)}, 8")
                a(f"s_cselect_b32 {s(sT0)}, {s(sT0)}, {s(sT1)}")
            if Cfg.arl:
                a(f"s_lshr_b32 {s(sT0)}, s2, 5")
                a(f"s_lshl_b32 {s(sT0)}, {s(sT0)}, 10")
                a(f"s_add_u32 {s(sT0)}, {s(sT0)}, {F5_OFF - 32*64}")
                a(f"v_min_u32 {v(vDR)}, 41, {v(vL)}")
                a(f"v_lshl_add_u32 {v(vDR)}, {v(vDR)}, 6, {s(sT0)}")
            else:
                a(f"v_mov_b32 {v(vDR)}, {s(sT0)}")
            a("s_mov_b64 exec, -1")
        a(f"v_mov_b32 {v(vDCo)}, 0")
    def wdma_items(slot):
        ld = lambda i: f"buffer_load_dwordx4 {v(vD)}, {s(SW,4)}, {s(sO)} offen offset:{i*1024}{WM()} lds"
        ad = lambda d: f"s_add_u32 {s(sO)}, {s(sO)}, {s(d)}"
        return [[ld(0)], [ad(sDA), ld(1)], [ad(sDB), ld(2)], [ad(sDA), ld(3)],
                [ad(sDC), f"s_cmp_ge_u32 {s(sO)}, {s(SW+2)}", f"s_cselect_b32 {s(sU)}, {s(SW+2)}, 0"],
                [f"s_sub_u32 {s(sO)}, {s(sO)}, {s(sU)}"]]
    def pack(items, n=3):
        out = []; cur = []
        for it in items:
            l = it.split("\n")
            if len(cur) + len(l) > n: out.append(cur); cur = []
            cur += l
        if cur: out.append(cur)
        return out
    def body(tag, swap):
        if not swap:
            a(f"s_lshl_b32 {s(sT0)}, {s(sN)}, 1")
            a(f"s_cmp_lt_u32 {s(sT0)}, {s(sHI)}")
            a(f"s_cbranch_scc1 {pfx}_hi")
            setprio(a, Cfg.prioGm)
            a(f"{pfx}_hi:")
        a("s_waitcnt lgkmcnt(6)")
        def spread(dma, other, gap):
            out = []; other = list(other)
            for it in dma:
                out.append(it)
                if any(" lds" in x for x in it):
                    for _ in range(gap - 1): out.append(other.pop(0) if other else [])
            return out + other
        q = spread(wdma_items(3)[4 - Cfg.carry:], pack(params_a()), Cfg.gap0)
        for k in range(20):
            for ct in range(4):
                w = WF + 4 * ct
                mm = lambda rt: mf16(ACC + 16 * rt + 4 * ct, X + 80 * rt + 4 * k if swap else w, w if swap else X + 80 * rt + 4 * k, "0" if k == 0 else None)
                a(mm(ct & Cfg.snk))
                if ct == 0 and k % 4 == 3:
                    assert not q, (k, q)
                    if k == Cfg.pubk:
                        a(f"s_cbranch_scc1 {pfx}_pub{tag}")
                    if k == 15 and not swap and Cfg.arl and Cfg.wpre:
                        a(f"s_cbranch_scc1 {pfx}_chk3"); a(f"{pfx}_chk3r:")
                    if not Cfg.x_body & 4: a("s_waitcnt vmcnt(8)")
                    if not Cfg.x_body & 1: a("s_barrier")
                    if k == Cfg.pubk: a(f"{pfx}_pubret{tag}:")
                    if k == 11:
                        a(f"s_cbranch_scc1 {pfx}_pz{tag}"); a(f"{pfx}_pzr{tag}:")
                    dm = wdma_items((k // 4 - 1) % 5); q = []
                    if k == 3:
                        dm = spread(dm[:3], [], 2) + dm[3:4] + pack(params_b()) + [[f"s_cmp_eq_u32 {s(sN)}, {s(sPB0)}", f"s_cbranch_scc1 {pfx}_sw{tag}", f"{pfx}_swr{tag}:"]]
                    if k == 7 and not swap:
                        T0 = sum(x << (3 * i) for i, x in enumerate((1, 4, 2, 3, 0)))
                        T1 = sum(x << (3 * i) for i, x in enumerate((3, 0, 1, 4, 2)))
                        it = [f"s_mov_b32 {s(sT0)}, {s(sCG)}", f"s_mul_i32 {s(sT1)}, {s(sT0)}, 52",
                              f"s_lshr_b32 {s(sT1)}, {s(sT1)}, 8", f"s_mul_i32 {s(sT1)}, {s(sT1)}, 5", f"s_sub_u32 {s(sT0)}, {s(sT0)}, {s(sT1)}",
                              f"s_mul_i32 {s(sT0)}, {s(sT0)}, 3"]
                        for tb, m in ((T0, sMA), (T1, sMB)):
                            it += [f"s_lshr_b32 {s(sT1)}, {tb << 4}, {s(sT0)}", f"s_and_b32 {s(sT2)}, {s(sT1)}, 0x30",
                                   f"s_bitcmp1_b32 {s(sT1)}, 6\ns_cselect_b32 {s(m)}, 0, 0xffff\ns_mov_b32 {s(m+1)}, 0",
                                   f"s_lshl_b64 {s(m,2)}, {s(m,2)}, {s(sT2)}"]
                        q += pack(it)
                    if k == 7 and not swap:
                        q += [[f"s_lshl1_add_u32 {s(sT0)}, {s(sN)}, 1", f"s_cmp_eq_u32 {s(sT0)}, {s(sHI)}", f"s_cbranch_scc1 {pfx}_lo", f"{pfx}_lor:"]]
                    if k == 15 and not swap:
                        q += [[f"s_add_u32 {s(sT0)}, {s(sN)}, {Cfg.wpre}"], [f"s_cmp_eq_u32 {s(sT0)}, {s(sCHK)}", f"s_cbranch_scc1 {pfx}_chk", f"{pfx}_chkr:"]]
                    if k == 15 and not swap and Cfg.hpre:
                        for j in range(Cfg.hpre * 2):
                            q += [[f"s_cmp_eq_u32 {s(sN)}, 5", f"s_cbranch_scc1 {pfx}_hp{j}", f"{pfx}_hpr{j}:"]]
                    if k == 11 and not swap and Cfg.arl and Cfg.wpre:
                        q += [[f"s_cmp_eq_u32 {s(sN)}, {s(sCHK)}", f"s_cbranch_scc1 {pfx}_chk2", f"{pfx}_chk2r:"]]
                    if k == 15 and Cfg.lnn:
                        q = [[f"s_cmp_eq_u32 {s(sN)}, 0", f"s_cbranch_scc1 {pfx}_nl{tag}", f"{pfx}_nlr{tag}:"]] + q
                    if k == 11:
                        if swap:
                            q += pack([f"s_mul_i32 {s(sSO)}, {s(sTT)}, 1280", f"s_add_u32 {s(sSO)}, {s(sSO)}, {V_OFF}"])
                        else:
                            q += pack([f"s_sub_u32 {s(sT0)}, {s(sN)}, {s(sNQ)}", f"s_lshr_b32 {s(sT0)}, {s(sT0)}, 1", f"s_mul_i32 {s(sT0)}, {s(sT0)}, {s(sP0)}", f"s_add_u32 {s(sT0)}, {s(sT0)}, {s(sCG)}",
                                f"s_lshl_b32 {s(sT0)}, {s(sT0)}, 11", f"s_mul_i32 {s(sSO)}, {s(sTT)}, {2*55296}", f"s_add_u32 {s(sSO)}, {s(sSO)}, {s(sT0)}",
                                f"s_add_u32 {s(sSO)}, {s(sSO)}, {H_OFF}",
                                f"s_mul_i32 {s(sT0)}, {s(sN)}, 5", f"s_add_u32 {s(sT0)}, {s(sT0)}, {s(sC2)}", f"s_lshl_b32 {s(sT0)}, {s(sT0)}, 18",
                                f"s_lshl_b32 {s(sT1)}, {s(sTT)}, 9", f"s_add_u32 {s(sT0)}, {s(sT0)}, {s(sT1)}",
                                f"s_mov_b32 {s(sT1)}, 55296",
                                f"s_cmp_lt_u32 {s(sN)}, {s(sNQ)}\ns_cselect_b32 {s(sSO)}, {s(sT0)}, {s(sSO)}\ns_cselect_b32 {s(sT1)}, {4*32768}, {s(sT1)}",
                                f"s_add_u32 {s(sT3)}, {s(sSO)}, {s(sT1)}"])
                    if k == 3: q = dm
                    elif k == 19: q = spread(dm[:4 - Cfg.carry], [], {1: 1, 2: 2, 3: 3}[Cfg.carry])[:3]
                    else:
                        q = spread(dm[:3], q, Cfg.gap)
                        q = q[:3 * Cfg.gap] + dm[3:] + q[3 * Cfg.gap:]
                elif ct == 3 and k % 4 == 2:
                    while q and not q[-1]: q.pop()
                    assert not q, (k, q)
                    a(f"s_add_u32 m0, {s(sM)}, {(((k + 1) // 4 - 1) % 5) * 16384}")
                    if k + 1 == Cfg.pubk: a(f"s_cmp_eq_u32 {s(sN)}, {s(sURG)}")
                    if k + 1 == 11: a(f"s_cmp_eq_u32 {s(sN)}, {s(sPUB)}")
                    if k + 1 == 15 and not swap and Cfg.arl and Cfg.wpre: a(f"s_cmp_eq_u32 {s(sN)}, {s(sCHK)}")
                elif q: a.ext([x for x in q.pop(0) if not (Cfg.x_body & 2 and " lds" in x)])
                a(mm(1 - (ct & Cfg.snk)))
                a("s_waitcnt lgkmcnt(4)")
                a.ext(trd(k + 1, ct))
        assert not q
        setprio(a, Cfg.prioGv)
        if STAMPS and not LITE:
            for n in range(6):
                a(f"s_cmp_lg_u32 {s(sN)}, {n}"); a(f"s_cbranch_scc1 {pfx}_stm{tag}{n}"); stamp(a, f"mm{n}"); a(f"{pfx}_stm{tag}{n}:")
    def ep_stamp(tag):
        if STAMPS and not LITE:
            for n in range(6):
                a(f"s_cmp_lg_u32 {s(sN)}, {n}"); a(f"s_cbranch_scc1 {pfx}_ste{tag}{n}"); stamp(a, f"ep{n}"); a(f"{pfx}_ste{tag}{n}:")
    a(f"s_cmp_lt_u32 {s(sCG)}, 10")
    a(f"s_cbranch_scc1 {pfx}_hi")
    a(f"s_cmp_eq_u32 {s(sNQ)}, 0")
    a(f"s_cbranch_scc1 {pfx}_toffn")
    a(f"v_and_b32 {v(t0)}, 48, {v(vL)}")
    for rt in range(2):
        for i in range(4): a(f"ds_bpermute_b32 {v(VR+4*rt+i)}, {v(t0)}, {v(vA[rt])} offset:{4*i}")
    a(f"{pfx}_vloop:")
    body("v", True)
    for ct in range(4):
        for rt in range(2):
            if Cfg.pk & 2:
                for i in (0, 2): a(pk("mul", ACC+16*rt+4*ct+i, [ACC+16*rt+4*ct+i, VR+4*rt+i]))
            else:
                for i in range(4): a(f"v_mul_f32 {v(ACC+16*rt+4*ct+i)}, {v(ACC+16*rt+4*ct+i)}, {v(VR+4*rt+i)}")
        for rt in range(2):
            for j in range(2): a(f"v_cvt_pk_bf16_f32 {v(G+4*ct+2*rt+j)}, {v(ACC+16*rt+4*ct+2*j)}, {v(ACC+16*rt+4*ct+2*j+1)}")
        a(f"buffer_store_dwordx4 {v(G+4*ct,4)}, {v(VA+ct)}, {s(S_WS,4)}, {s(sSO)} offen{SC1}")
    ep_stamp("v")
    a(f"s_cmp_eq_u32 {s(sN)}, 1")
    a(f"s_cbranch_scc1 {pfx}_qdone")
    for ct in range(4): a(f"v_mov_b32 {v(VA+ct)}, {v(VA+4+ct)}")
    a(f"s_mov_b32 {s(sN)}, 1")
    if Cfg.lnn: a(f"s_waitcnt vmcnt({3 + 4 + 4 - Cfg.carry})")
    nonce_check(a, f"{pfx}_ncv", V_NONCE, sT0, sT1, f"{pfx}_vloop")
    for tag in "vn":
        if Cfg.lnn:
            a(f"{pfx}_nl{tag}:"); nonce_load(a, V_NONCE); a(f"s_branch {pfx}_nlr{tag}")
        a(f"{pfx}_sw{tag}:")
        if tag == "n" and Cfg.wpre:
            a(f"s_cmp_eq_u32 {s(sN)}, 5")
            a(f"s_cbranch_scc1 {pfx}_sww")
            a(f"s_mov_b32 {s(sPB0)}, 5")
        a(params_v()); a(f"s_branch {pfx}_swr{tag}")
        if tag == "n" and Cfg.wpre:
            a(f"{pfx}_sww:")
            a(f"s_mov_b32 {s(SW)}, {s(P_WS)}"); a(f"s_mov_b32 {s(SW+1)}, {s(P_WS+1)}"); a(f"s_mov_b32 {s(SW+2)}, {WS_BYTES}")
            a(f"s_lshr_b32 {s(sO)}, s2, 5")
            a(f"s_mul_i32 {s(sO)}, {s(sO)}, {74*5120}")
            a(f"s_add_u32 {s(sO)}, {s(sO)}, {WR_OFF}")
            a(f"s_add_u32 {s(sO)}, {s(sO)}, {s(sM)}")
            a(f"s_mov_b32 {s(sDA)}, 0"); a(f"s_mov_b32 {s(sDB)}, 0"); a(f"s_movk_i32 {s(sDC)}, 16384")
            setprio(a, Cfg.prioGv)
            a(f"v_mov_b32 {v(vD)}, {v(vST)}")
            setprio(a, Cfg.prioGm)
            a(f"s_branch {pfx}_swr{tag}")
        a(f"{pfx}_pub{tag}:")
        a(f"s_waitcnt vmcnt({ {3: Cfg.carry, 7: 4 + Cfg.carry}[Cfg.pubk] })")
        a("s_barrier")
        a(f"s_cmp_lt_u32 {2 * NU + 1}, {s(sHI)}")
        a(f"s_cbranch_scc1 {pfx}_pubhi{tag}")
        setprio(a, Cfg.prioGm)
        a(f"{pfx}_pubhi{tag}:")
        a(f"s_cmp_lg_u32 {s(S_WV)}, 0")
        a(f"s_cbranch_scc1 {pfx}_pubret{tag}")
        a(f"s_lshl4_add_u32 {s(sU)}, {s(sCG)}, {s(sRB)}")
        a(f"s_mul_i32 {s(sU)}, {s(sU)}, {Cfg.fst}")
        a(f"s_add_u32 {s(sU)}, {s(sU)}, {F0_OFF if Cfg.two else FX_OFF}")
        publish(a, sU)
        if Cfg.hint == 1:
            a(f"s_lshl_b32 {s(sU)}, s2, 7")
            a(f"s_add_u32 {s(sU)}, {s(sU)}, {FP_OFF}")
            publish(a, sU)
        stamp(a, "pub0")
        a(f"s_branch {pfx}_pubret{tag}")
    for j in range(Cfg.hpre * 2):
        a(f"{pfx}_hp{j}:")
        if j == 0:
            a(f"s_and_b32 {s(sT1)}, s2, 7")
            a(f"s_bfe_u32 {s(sT2)}, s2, {3 | (2<<16)}")
            a(f"s_lshl2_add_u32 {s(sT1)}, {s(sT1)}, {s(sT2)}")
            a(f"s_lshl2_add_u32 {s(sT1)}, {s(sT1)}, {s(S_WV)}")
            a(f"s_mul_i32 {s(sT1)}, {s(sT1)}, 55296")
            a(f"s_add_u32 {s(sT1)}, {s(sT1)}, {H_OFF}")
        for i in range(4): a(f"buffer_load_dwordx4 {v(G2.HFS[j]+4*i,4)}, {v(vST)}, {s(S_WS,4)}, {s(sT1)} offen offset:{i*1024} sc1")
        a(f"s_add_u32 {s(sT1)}, {s(sT1)}, 4096")
        a(f"s_branch {pfx}_hpr{j}")
    if Cfg.arl and Cfg.wpre:
        a(f"{pfx}_chk2:")
        a(f"buffer_load_dword {v(vDCo)}, {v(vDR)}, {s(S_WS,4)}, 0 offen sc1")
        a(f"s_branch {pfx}_chk2r")
        a(f"{pfx}_chk3:")
        setprio(a, Cfg.prioGv)
        a("s_waitcnt vmcnt(3)")
        a(f"v_cmp_ne_u32 vcc, {v(vDCo)}, {v(V_NONCE)}")
        a(f"s_mov_b32 {s(sT0)}, 0")
        a("s_nop 0")
        a(f"s_cbranch_vccz {pfx}_px_ok")
        poll(a, f"{pfx}_px", vDR, sT0, vDCo, sT1, Cfg.p4s)
        setprio(a, Cfg.prioGm)
        a(f"s_branch {pfx}_chk3r")
    a(f"{pfx}_lo:"); setprio(a, Cfg.prioGm); a(f"s_branch {pfx}_lor")
    a(f"{pfx}_chk:")
    a(f"buffer_load_dword {v(vDCo)}, {v(vDR)}, {s(S_WS,4)}, 0 offen sc1")
    a(f"s_branch {pfx}_chkr")
    for tag in "vn":
        a(f"{pfx}_pz{tag}:")
        publish(a, sF)
        a(f"s_mov_b32 {s(sPUB)}, 4")
        a(f"s_lshl4_add_u32 {s(sF)}, {s(sRB)}, {s(sCG)}")
        a(f"s_lshl_b32 {s(sF)}, {s(sF)}, 6")
        a(f"s_add_u32 {s(sF)}, {s(sF)}, {F2_OFF}")
        a(f"s_branch {pfx}_pzr{tag}")
    a(f"{pfx}_eq:")
    for j in range(2):
        for rt in range(2):
            b = ACC + 16 * rt + 8 * j; d = G + 8 * j + 4 * rt
            if Cfg.pk & 2:
                for r in range(0, 8, 2): a(pk("mul", b + r, [b + r, -vA[rt] - 1]))
            else:
                for r in range(8): a(f"v_mul_f32 {v(b+r)}, {v(b+r)}, {v(vA[rt])}")
            for r in range(4): a(f"v_cvt_pk_bf16_f32 {v(d+r)}, {v(b+2*r)}, {v(b+2*r+1)}")
            if rt == 1:
                for r2 in range(2):
                    d2 = G + 8 * j + 4 * r2
                    a(f"v_permlane16_swap_b32 {v(d2)}, {v(d2+2)}")
                    a(f"v_permlane16_swap_b32 {v(d2+1)}, {v(d2+3)}")
                a(f"s_mov_b64 exec, {s((sMA, sMB)[j],2)}")
                a(f"v_swap_b32 {v(G+8*j+2)}, {v(G+8*j+4)}")
                a(f"v_swap_b32 {v(G+8*j+3)}, {v(G+8*j+5)}")
                a("s_mov_b64 exec, -1")
                for r2 in range(2):
                    d2 = G + 8 * j + 4 * r2
                    a(f"buffer_store_dwordx4 {v(d2,4)}, {v(vST)}, {s(S_WS,4)}, {s(sT3 if j else sSO)} offen offset:{r2*256}{SC1}")
    ep_stamp("q")
    a(f"s_cmp_eq_u32 {s(sN)}, 1")
    a(f"s_cbranch_scc1 {pfx}_qdone")
    a(f"s_mov_b32 {s(sN)}, 1")
    if Cfg.lnn: a(f"s_waitcnt vmcnt({3 + 4 + 4 - Cfg.carry})")
    nonce_check(a, f"{pfx}_ncq", V_NONCE, sT0, sT1, f"{pfx}_hi")
    a(f"{pfx}_qdone:")
    if Cfg.hint == 2:
        a(f"s_cmp_lg_u32 {s(S_WV)}, 3")
        a(f"s_cbranch_scc1 {pfx}_nh")
        a(f"s_lshl_b32 {s(sT0)}, s2, 7")
        a(f"s_add_u32 {s(sT0)}, {s(sT0)}, {FP_OFF}")
        publish(a, sT0)
        a(f"{pfx}_nh:")
    a(f"s_mov_b32 {s(sN)}, 2")
    a(f"{pfx}_toffn:")
    ffn_consts()
    a(f"{pfx}_loop:")
    body("n", False)
    a(f"s_cmp_lt_u32 {s(sN)}, {s(sNQ)}")
    a(f"s_cbranch_scc1 {pfx}_eq")
    a(f"s_bitcmp1_b32 {s(sN)}, 0")
    a(f"s_cbranch_scc1 {pfx}_eu")
    if Cfg.x_gexit: a("s_branch g2_end")
    for r0 in range(0, 32 if Cfg.pk & 1 else 0, 8):
        R2 = range(r0, r0 + 8, 2); R = range(r0, r0 + 8); rt = r0 // 16
        for r in R2: a(pk("mul", G + r, [ACC + r, ACC + r]))
        for r in R2: a(pk("fma", G + r, [G + r, -vB[rt] - 1, -vA[rt] - 1]))
        for r in R2: a(pk("mul", G + r, [G + r, ACC + r]))
        for r in R: a(f"v_exp_f32 {v(G+r)}, {v(G+r)}")
        for r in R2: a(pk("fma", G + r, [G + r, -vK[rt] - 1, -vK[rt] - 1]))
        for r in R: a(f"v_rcp_f32 {v(G+r)}, {v(G+r)}")
        for r in R2: a(pk("mul", G + r, [G + r, ACC + r]))
    for r0 in range(0, 32 if not Cfg.pk & 1 else 0, 4):
        R = range(r0, r0 + 4); rt = r0 // 16
        for r in R: a(f"v_mul_f32 {v(G+r)}, {v(ACC+r)}, {v(ACC+r)}")
        for r in R: a(f"v_fma_f32 {v(G+r)}, {v(G+r)}, {v(vB[rt])}, {v(vA[rt])}")
        for r in R: a(f"v_mul_f32 {v(G+r)}, {v(G+r)}, {v(ACC+r)}")
        for r in R: a(f"v_exp_f32 {v(G+r)}, {v(G+r)}")
        for r in R: a(f"v_fma_f32 {v(G+r)}, {v(G+r)}, {v(vK[rt])}, {v(vK[rt])}")
        for r in R: a(f"v_rcp_f32 {v(G+r)}, {v(G+r)}")
        for r in R: a(f"v_mul_f32 {v(G+r)}, {v(G+r)}, {v(ACC+r)}")
    if Cfg.tc & 1:
        a(f"s_cmp_lg_u32 {s(S_WV)}, 1")
        a(f"s_cbranch_scc1 {pfx}_ntc1")
        a.ext(touch("att_loopb", "att_fb", sT0, vDCo, vDCo))
        a(f"{pfx}_ntc1:")
        a(f"s_cmp_lg_u32 {s(S_WV)}, 2")
        a(f"s_cbranch_scc1 {pfx}_ntc2")
        a.ext(touch(f"{pfx}_heavy", "g2_tc1", sT0, vDCo, vDCo))
        a(f"{pfx}_ntc2:")
    ep_stamp("g")
    if Cfg.hint == 1:
        a(f"s_cmp_lg_u32 {s(sN)}, 0")
        a(f"s_cbranch_scc1 {pfx}_ncg_ok")
        a(f"s_waitcnt vmcnt({3 + 4 - Cfg.carry})")
        nonce_check(a, f"{pfx}_ncg", V_NONCE, sT0, sT1)
    a(f"s_add_u32 {s(sN)}, {s(sN)}, 1")
    if Cfg.wpre:
        a(f"s_cmp_lg_u32 {s(sN)}, {s(sCHK)}")
        a(f"s_cbranch_scc1 {pfx}_loop")
        a(f"s_waitcnt vmcnt({4 - Cfg.carry})")
        if Cfg.arl:
            a("s_mov_b32 exec_lo, 0"); a("s_mov_b32 exec_hi, 0xffff")
        a(f"v_cmp_ne_u32 vcc, {v(vDCo)}, {v(V_NONCE)}")
        a(f"s_mov_b32 {s(sT0)}, 0")
        a("s_nop 0")
        a(f"s_cbranch_vccz {pfx}_pw_ok")
        poll(a, f"{pfx}_pw", vDR, sT0, vDCo, sT1, Cfg.p4s)
        a("s_mov_b64 exec, -1")
    a(f"s_branch {pfx}_loop")
    a(f"{pfx}_eu:")
    a(f"s_cmp_eq_u32 {s(sN)}, 5")
    a(f"s_cbranch_scc1 {pfx}_heavy")
    upv = []; ups = []
    for p in range(4):
        pv = [f"v_mul_f32 {v(ACC+r)}, {v(ACC+r)}, {v(G+r)}" for r in range(8 * p, 8 * p + 8)]
        if Cfg.pk & 1: pv = [pk("mul", ACC + r, [ACC + r, G + r]) for r in range(8 * p, 8 * p + 8, 2)]
        pv += [f"v_cvt_pk_bf16_f32 {v(G+8*p+j)}, {v(ACC+8*p+2*j)}, {v(ACC+8*p+2*j+1)}" for j in range(4)]
        ps = f"buffer_store_dwordx4 {v(G+8*p,4)}, {v(vST)}, {s(S_WS,4)}, {s(sT3 if p >> 1 else sSO)} offen offset:{(p&1)*1024}{SC1}"
        a.ext(pv); a(ps); upv += pv; ups.append(ps)
    ep_stamp("u")
    a(f"s_add_u32 {s(sN)}, {s(sN)}, 1")
    if Cfg.med:
        a(f"s_sub_u32 {s(sT0)}, {s(sCG)}, 8")
        a(f"s_cmp_lt_u32 {s(sT0)}, 4")
        a(f"s_cbranch_scc1 {pfx}_medium")
    a(f"s_cmp_lt_u32 {s(sN)}, {s(sNT)}")
    a(f"s_cbranch_scc1 {pfx}_loop")
    nonce_check(a, f"{pfx}_nc2", V_NONCE, sT0, sT1)
    a(f"s_lshl_b32 {s(sF)}, {s(sRB)}, 4")
    a(f"s_add_u32 {s(sF)}, {s(sF)}, {s(sCG)}")
    a(f"s_lshl_b32 {s(sF)}, {s(sF)}, 6")
    a(f"s_add_u32 {s(sF)}, {s(sF)}, {F2_OFF}")
    a(f"s_sub_u32 {s(sT0)}, {s(sCG)}, {NL}")
    a(f"s_lshl_b32 {s(sPUB)}, {s(sT0)}, 6")
    a(f"s_add_u32 {s(sPUB)}, {s(sPUB)}, {s(sTT)}")
    if Cfg.arl: a(f"s_add_u32 {s(sPUB)}, {s(sPUB)}, 80")
    a(f"s_lshl_b32 {s(sT0)}, {s(sT0)}, 3")
    a(f"s_lshr_b32 {s(sT1)}, {s(sRB)}, 1")
    a(f"s_add_u32 {s(sT0)}, {s(sT0)}, {s(sT1)}")
    a(f"s_and_b32 {s(sT1)}, {s(sRB)}, 1")
    a(f"s_lshl_b32 {s(sT1)}, {s(sT1)}, 6")
    a(f"s_add_u32 {s(sT0)}, {s(sT0)}, {s(sT1)}")
    a(f"s_lshl_b32 {s(sT0)}, {s(sT0)}, 6")
    a(f"s_add_u32 {s(sT3)}, {s(sT0)}, {F4_OFF}")
    a("s_waitcnt vmcnt(4) lgkmcnt(0)")
    a("s_barrier")
    gen_relayout(a, pfx, sPUB, vL, (58, 59, 60, 61, 96, 97, 98, 101, 47, 48, 49), sF, sT3)
    g2_start(a, "g2l", [], [])
    a(f"s_branch {pfx}_g1end")
    if Cfg.med:
        def trh(k, ct):
            d = WF + 8 * (k & 1) + 4 * ct
            return [l.replace(v(WF + 4 * ct + 2 * t, 2), v(d + 2 * t, 2)) for t, l in enumerate(trd(k, ct))]
        a(f"{pfx}_medium:")
        a(f"s_and_b32 {s(sT0)}, {s(sCG)}, 1")
        a(f"s_lshl_b32 {s(sT1)}, {s(sT0)}, 9")
        for r in (vTA, vTB, vTA2, vTB2): a(f"v_add_u32 {v(r)}, {s(sT1)}, {v(r)}")
        for k in range(2):
            for ct in range(2): a.ext(trh(k, ct))
        a(f"s_add_u32 {s(sT1)}, {s(sCG)}, {s(sP0)}")
        a(f"s_lshl1_add_u32 {s(sT0)}, {s(sT1)}, {s(sT0)}")
        a(f"s_lshl_b32 {s(sT0)}, {s(sT0)}, 10")
        a(f"s_mul_i32 {s(sSO)}, {s(sTT)}, {2*55296}")
        a(f"s_add_u32 {s(sSO)}, {s(sSO)}, {s(sT0)}")
        a(f"s_add_u32 {s(sSO)}, {s(sSO)}, {H_OFF}")
        a(f"s_add_u32 {s(sT3)}, {s(sSO)}, 55296")
        a(f"s_sub_u32 {s(sPUB)}, {s(sCHK)}, 1")
        a(f"{pfx}_hloop:")
        a("s_waitcnt lgkmcnt(6)")
        setprio(a, Cfg.prioGm)
        flat = lambda its: [x for it in its for x in it]
        di = wdma_items(3)[4 - Cfg.carry:]
        q = di[:Cfg.carry] + [flat(di[Cfg.carry:]) + flat(pack(params_a()))]
        for k in range(20):
            for ct in range(2):
                w = WF + 8 * (k & 1) + 4 * ct
                r0_ = ct & Cfg.snk
                a(mf16(ACC + 16 * r0_ + 4 * ct, w, X + 80 * r0_ + 4 * k, "0" if k == 0 else None))
                if ct == 0 and k % 4 == 2:
                    assert not q, (k, q)
                    a(f"s_add_u32 m0, {s(sM)}, {((k // 4 - 1) % 5) * 16384}")
                    a("s_waitcnt vmcnt(8)")
                    a("s_barrier")
                    q = wdma_items((k // 4 - 1) % 5)
                    if k == 2: q = q[:4] + [flat(pack(params_b()))]
                    if k == 10: q = [[f"s_cmp_eq_u32 {s(sN)}, {s(sPUB)}", f"s_cbranch_scc1 {pfx}_hpub", f"{pfx}_hpubr:"]] + q
                    if k == 14: q = [[f"s_cmp_eq_u32 {s(sN)}, {s(sCHK)}", f"s_cbranch_scc1 {pfx}_hchk", f"{pfx}_hchkr:"]] + q
                    if k == 18: q = q[:4 - Cfg.carry]
                elif q: a.ext(q.pop(0))
                a(mf16(ACC + 16 * (1 - r0_) + 4 * ct, w, X + 80 * (1 - r0_) + 4 * k, "0" if k == 0 else None))
                a("s_waitcnt lgkmcnt(4)")
                a.ext(trh(k + 2, ct))
        assert not q
        setprio(a, Cfg.prioGv)
        a(f"s_cmp_eq_u32 {s(sN)}, 5")
        a(f"s_cbranch_scc1 {pfx}_hend")
        a("s_nop 1")
        for r0 in (0, 16):
            R2 = range(r0, r0 + 8, 2); R = range(r0, r0 + 8); rt = r0 // 16
            for r in R2: a(pk("mul", G + r, [ACC + r, ACC + r]))
            for r in R2: a(pk("fma", G + r, [G + r, -vB[rt] - 1, -vA[rt] - 1]))
            for r in R2: a(pk("mul", G + r, [G + r, ACC + r]))
            for r in R: a(f"v_exp_f32 {v(G+r)}, {v(G+r)}")
            for r in R2: a(pk("fma", G + r, [G + r, -vK[rt] - 1, -vK[rt] - 1]))
            for r in R: a(f"v_rcp_f32 {v(G+r)}, {v(G+r)}")
            for r in R2: a(pk("mul", G + r, [G + r, ACC + r]))
        a(f"s_mov_b32 {s(sN)}, 5")
        a(f"s_branch {pfx}_hloop")
        a(f"{pfx}_hpub:")
        publish(a, sF)
        a(f"s_branch {pfx}_hpubr")
        a(f"{pfx}_hchk:")
        a(f"buffer_load_dword {v(vDCo)}, {v(vDR)}, {s(S_WS,4)}, 0 offen sc1")
        a(f"s_branch {pfx}_hchkr")
        a(f"{pfx}_hend:")
        a(f"s_add_u32 {s(sF)}, {s(sF)}, {F2B_OFF - F2_OFF}")
        n_ = len(upv) // 4
        g2_start(a, "g2m", upv[:n_] + upv[2*n_:3*n_], [ups[0], ups[2]])
        a(f"s_branch {pfx}_g1end")
    a(f"{pfx}_heavy:")
    a(f"s_add_u32 {s(sF)}, {s(sF)}, {F2B_OFF - F2_OFF}")
    g2_start(a, "g2h", upv, ups, bool(Cfg.wpre))
    a(f"{pfx}_g1end:")

def att_relayout(a, pfx, idreg, vL, vLin, T, sT0, sT1, sT2, sT3):
    if Cfg.arl:
        a(f"s_and_b32 {s(sT0)}, {s(idreg)}, 255")
        a(f"s_lshl_b32 {s(sT1)}, {s(S_WV)}, 8")
        a(f"s_add_u32 {s(sT0)}, {s(sT0)}, {s(sT1)}")
        a(f"s_sub_u32 {s(sT0)}, {s(sT0)}, 176")
        a(f"s_cmp_ge_u32 {s(sT0)}, 80")
        a(f"s_cbranch_scc1 {pfx}_norl")
        srd(a, S_A, P_WD, 1728 * 1280)
        a(f"s_and_b32 {s(sT1)}, {s(sT0)}, 7")
        a(f"s_lshr_b32 {s(sT0)}, {s(sT0)}, 3")
        a(f"s_mul_i32 {s(sT2)}, {s(sT0)}, {32*1280}")
        a(f"s_mul_i32 {s(sT3)}, {s(sT1)}, 160")
        a(f"s_add_u32 {s(sT2)}, {s(sT2)}, {s(sT3)}")
        a(f"s_movk_i32 {s(sT3)}, 1120")
        for i in range(5):
            a(f"v_add_u32 v12, {64*i}, {v(vL)}")
            a(f"v_mul_u32_u24 v13, 6554, v12")
            a(f"v_lshrrev_b32 v13, 16, v13")
            a(f"v_lshlrev_b32 v12, 4, v12")
            a(f"s_movk_i32 m0, {i*1024}")
            a(f"v_mad_u32_u24 v12, v13, {s(sT3)}, v12")
            a(f"buffer_load_dwordx4 v12, {s(S_A,4)}, {s(sT2)} offen lds")
        a(f"v_lshrrev_b32 v12, 2, {v(vL)}")
        a(f"v_mul_u32_u24 v12, 160, v12")
        a(f"v_and_b32 v13, 3, {v(vL)}")
        a(f"v_mad_u32_u24 v12, v13, 40, v12")
        a(f"v_add_u32 v13, 4096, {v(vLin)}")
        a(f"s_mul_i32 {s(sT2)}, {s(sT1)}, 74")
        a(f"s_add_u32 {s(sT2)}, {s(sT2)}, {s(sT0)}")
        a(f"s_mul_i32 {s(sT2)}, {s(sT2)}, 5120")
        a(f"s_add_u32 {s(sT2)}, {s(sT2)}, {WR_OFF}")
        a(f"s_lshl4_add_u32 {s(sT0)}, {s(sT1)}, {s(sT0)}")
        a(f"s_lshl_b32 {s(sT0)}, {s(sT0)}, 6")
        a(f"s_add_u32 {s(sT0)}, {s(sT0)}, {F5_OFF}")
        a("s_waitcnt vmcnt(0)")
        for mt in range(5):
            for u in range(2): a(f"ds_read_b64_tr_b16 {v(T+4*mt+2*u,2)}, v12 offset:{u*2560+8*mt}")
        a("s_waitcnt lgkmcnt(0)")
        for mt in range(5):
            a(f"buffer_store_dwordx4 {v(T+4*mt,4)}, {v(vLin) if mt < 4 else 'v13'}, {s(S_WS,4)}, {s(sT2)} offen offset:{(mt&3)*1024} sc1")
        a("s_waitcnt vmcnt(0)")
        publish(a, sT0)
        a(f"{pfx}_norl:")

def gen_att1(a, pfx, idreg):
    vL, vK1, vK2, vV0, vV1, vQ1, vQ2 = 1, 2, 3, 4, 5, 20, 21
    P, S, O, Q, KV = 24, 32, 64, 128, 152
    sHD, sQB, sKH, sQH, sK1, sK2, sV, sG, sIT = 41, 42, 43, 44, 45, 46, 47, 48, 49
    sK1b, sK2b, sVb = 50, 51, 52
    sT0, sT1, sT2, sT3 = 54, 55, 56, 57
    sVM = 58
    sQ = 96
    sLB, sDK, sDV, sG4 = 53, 60, 61, 100
    vLin, vLK1, vLK2, vLV, vMB, vMI, vM = 208, 209, 210, 211, 212, 213, 214
    vXW, vXR, vOM, vOL = 215, 216, 217, 218
    vQS, vQA, vQB = 219, 240, 242
    sPQ, sPK, sPV, sPM = 33, 34, 35, 36
    sOM, sOL, sF3, sHX, sHW = 28, 30, 31, 101, 32
    a(f"v_and_b32 {v(vL)}, 63, v0")
    a(f"v_lshrrev_b32 v6, 6, v0")
    a(f"s_and_b32 {s(sT0)}, {s(idreg)}, 7")
    a(f"v_readfirstlane_b32 {s(S_WV)}, v6")
    EARLY = list(range(16)) if Cfg.early else []
    a(f"s_bfe_u32 {s(sT1)}, {s(idreg)}, {6 | (2<<16)}")
    a(f"s_and_b32 {s(sHD)}, {s(sT1)}, 1")
    a(f"s_lshl1_add_u32 {s(sHD)}, {s(sT0)}, {s(sHD)}")
    a(f"s_lshr_b32 {s(sT2)}, {s(sT1)}, 1")
    a(f"s_lshl4_add_u32 {s(sHD)}, {s(sT2)}, {s(sHD)}")
    if Cfg.cpf == 1:
        a(f"s_getpc_b64 {s(sT0,2)}")
        a(f"{pfx}_pc:")
        a(f"s_sub_u32 {s(sT0)}, {s(sT0)}, {pfx}_pc-{NAME}_kernel")
        a(f"s_subb_u32 {s(sT1)}, {s(sT1)}, 0")
        a(f"s_bfe_u32 {s(sT2)}, {s(idreg)}, {3 | (5<<16)}")
        a(f"s_lshl_b32 {s(sT2)}, {s(sT2)}, 2")
        a(f"s_add_u32 {s(sT2)}, {s(sT2)}, {s(S_WV)}")
        a(f"s_lshl_b32 {s(sT2)}, {s(sT2)}, 8")
        a(f"s_cmp_ge_u32 {s(sT2)}, {NAME}_kernel_end-{NAME}_kernel-256")
        a(f"s_cbranch_scc1 {pfx}_nopf")
        a(f"v_lshl_add_u32 v12, {v(vL)}, 2, {s(sT2)}")
        a(f"global_load_dword v13, v12, {s(sT0,2)}")
        a(f"{pfx}_nopf:")

    a(f"s_bfe_u32 {s(sQB)}, {s(idreg)}, {3 | (3<<16)}")
    a(f"s_and_b32 {s(sQH)}, {s(S_WV)}, 1")
    a(f"s_lshr_b32 {s(sKH)}, {s(S_WV)}, 1")
    a(f"s_lshr_b32 {s(sT0)}, {s(sHD)}, 1")
    a(f"s_mul_i32 {s(sT0)}, {s(sT0)}, 5")
    a(f"s_and_b32 {s(sT1)}, {s(sHD)}, 1")
    a(f"s_mul_i32 {s(sT2)}, {s(sT1)}, 3")
    a(f"s_add_u32 {s(sT2)}, {s(sT2)}, {s(sT0)}")
    a(f"s_lshl_b32 {s(sK1b)}, {s(sT2)}, 15")
    a(f"s_add_u32 {s(sT0)}, {s(sT0)}, 2")
    a(f"s_lshl_b32 {s(sK2b)}, {s(sT0)}, 15")
    a(f"s_lshl_b32 {s(sT1)}, {s(sT1)}, 8")
    a(f"s_add_u32 {s(sK2b)}, {s(sK2b)}, {s(sT1)}")
    a(f"v_and_b32 v6, 31, {v(vL)}")
    a(f"v_lshrrev_b32 v7, 5, {v(vL)}")
    a(f"v_lshlrev_b32 {v(vQ2)}, 4, v6")
    a(f"v_lshl_add_u32 {v(vQ1)}, v7, 15, {v(vQ2)}")
    a(f"v_and_b32 {v(vK2)}, 7, v6")
    a(f"v_bfe_u32 v8, v6, 3, 1")
    a(f"v_lshl_add_u32 {v(vK2)}, v8, 4, {v(vK2)}")
    a(f"v_lshrrev_b32 v8, 4, v6")
    a(f"v_lshl_add_u32 {v(vK2)}, v8, 3, {v(vK2)}")
    a(f"v_lshlrev_b32 {v(vK2)}, 4, {v(vK2)}")
    a(f"v_lshl_add_u32 {v(vK1)}, v7, 15, {v(vK2)}")
    a(f"v_mul_u32_u24 {v(vV0)}, 320, v7")
    a(f"v_add_u32 {v(vV0)}, {v(vV0)}, {v(vQ2)}")
    for r in (vQ2, vK2):
        a(f"v_lshrrev_b32 v8, 8, {v(r)}")
        a(f"v_and_b32 {v(r)}, 0xff, {v(r)}")
        a(f"v_lshl_add_u32 {v(r)}, v8, 3, {v(r)}")
    a(f"v_add_u32 {v(vV1)}, 640, {v(vV0)}")
    a(f"s_mov_b32 {s(sVM)}, 0xfffff")
    a(f"s_mov_b32 {s(sVM+1)}, 0xfffff")
    if Cfg.dry:
        for r in (vLK1, vLK2, vLV): a(f"v_mov_b32 {v(r)}, 0")
        a(f"s_mov_b32 {s(sHW)}, -1"); a(f"s_mov_b32 {s(sHX)}, -1"); a(f"s_mov_b32 {s(sIT)}, {Cfg.dry}"); a("s_mov_b32 s39, 1")
        a("s_waitcnt lgkmcnt(0)")
        srd(a, S_WS, P_WS, 0)
        a(f"s_branch {pfx}_loopb")
        a(f"{pfx}_dryr:")
        a("s_mov_b32 s39, 0")
        a("s_waitcnt lgkmcnt(0)")
        a("s_nop 11")
    a(f"v_cmp_eq_u32 vcc, 20, v6")
    a(f"v_mov_b32 v8, 0x3f803f80")
    a("s_nop 0")
    a(f"v_cndmask_b32 v10, 0, v8, vcc")
    for u in range(4):
        for r in range(4, 12): a(f"v_mov_b32 {v(KV+14*u+r)}, v10")
    for q in range(4):
        a(f"v_mov_b32 {v(Q+6*q+4)}, 0"); a(f"v_mov_b32 {v(Q+6*q+5)}, 0")
    for r in range(64): a(f"v_mov_b32 {v(O+r)}, 0")
    for r in range(8): a(f"v_mov_b32 {v(P+r)}, 0")
    a("s_waitcnt lgkmcnt(0)")
    srd(a, S_WS, P_WS, WS_BYTES)
    if Cfg.tlb:
        a(f"s_cmp_lg_u32 {s(S_WV)}, 0")
        a(f"s_cbranch_scc1 {pfx}_notlb")
        a(f"v_lshlrev_b32 v12, 21, {v(vL)}")
        a("s_mov_b64 exec, 3")
        for i, (p, nb) in enumerate(((P_WQKV, 640*3840), (P_WG, 640*3456), (P_WU, 640*3456), (P_WD, 1728*1280), (P_OUT, 2048*1280))):
            a(f"global_load_dword {v(240+i)}, v12, {s(p,2)}")
        a("s_mov_b64 exec, 1")
        a(f"global_load_dword v246, v12, {s(P_WO,2)}")
        a(f"s_mov_b64 exec, {(1 << ((WS_BYTES >> 21) + 1)) - 1}")
        a(f"global_load_dword v247, v12, {s(P_WS,2)}")
        a("s_mov_b64 exec, -1")
        a(f"{pfx}_notlb:")
    if Cfg.fused:
        a(f"v_mov_b32 {v(V_NONCE)}, 0")
        a("s_nop 0")
        nonce_check(a, f"{pfx}_nc", 12, sT0, sT1)
        a(f"v_lshlrev_b32 {v(vLin)}, 4, {v(vL)}")
        att_relayout(a, pfx, idreg, vL, vLin, 220, sT0, sT1, sT2, sT3)
        if Cfg.wpf:
            a(f"s_and_b32 {s(sT0)}, {s(idreg)}, 255")
            a(f"s_lshl_b32 {s(sT0)}, {s(sT0)}, 2")
            a(f"s_add_u32 {s(sT0)}, {s(sT0)}, {s(S_WV)}")
            srd(a, S_B, P_WD, 1728 * 1280)
            srd(a, S_C, P_WO, 640 * 1280)
            a(f"s_mul_i32 {s(sT1)}, {s(sT0)}, {17*128}")
            a(f"s_mul_i32 {s(sT2)}, {s(sT0)}, {7*128}")
            a(f"v_lshlrev_b32 v12, 7, {v(vL)}")
            a("s_mov_b64 exec, 0x1ffff")
            a(f"buffer_load_dword v13, v12, {s(S_B,4)}, {s(sT1)} offen")
            a("s_mov_b64 exec, 0x7f")
            a(f"buffer_load_dword v14, v12, {s(S_C,4)}, {s(sT2)} offen")
            a("s_mov_b64 exec, -1")
            a("s_waitcnt vmcnt(0)")
        pass
    a(f"s_lshl_b32 {s(sT0)}, {s(sQB)}, 12")
    a(f"s_lshl_b32 {s(sT1)}, {s(sQH)}, 11")
    a(f"s_add_u32 {s(sT0)}, {s(sT0)}, {s(sT1)}")
    a(f"s_lshl_b32 {s(sT1)}, {s(sKH)}, 10")
    a(f"s_add_u32 {s(sT3)}, {s(sT0)}, {s(sT1)}")
    a(f"s_xor_b32 {s(sT2)}, {s(sT3)}, 1024")
    a(f"s_add_u32 {s(sQ)}, {s(sT2)}, {s(sK1b)}")
    a(f"s_add_u32 {s(sQ+1)}, {s(sT3)}, {s(sK1b)}")
    a(f"s_add_u32 {s(sQ+2)}, {s(sT2)}, {s(sK2b)}")
    a(f"s_add_u32 {s(sQ+3)}, {s(sT3)}, {s(sK2b)}")
    a(f"s_lshl_b32 {s(sT0)}, {s(sKH)}, 14")
    a(f"s_add_u32 {s(sT0)}, {s(sT0)}, {80*32768}")
    a(f"s_add_u32 {s(sK1b)}, {s(sK1b)}, {s(sT0)}")
    a(f"s_add_u32 {s(sK2b)}, {s(sK2b)}, {s(sT0)}")
    a(f"s_mul_i32 {s(sVb)}, {s(sHD)}, 81920")
    a(f"s_mul_i32 {s(sT0)}, {s(sKH)}, 40960")
    a(f"s_add_u32 {s(sVb)}, {s(sVb)}, {s(sT0)}")
    a(f"s_add_u32 {s(sVb)}, {s(sVb)}, {V_OFF}")
    a(f"s_mov_b32 {s(sG)}, {s(sQB)}")
    def setgrp():
        return [f"s_lshl_b32 {s(sT0)}, {s(sG)}, 11", f"s_add_u32 {s(sK1)}, {s(sK1b)}, {s(sT0)}", f"s_add_u32 {s(sK2)}, {s(sK2b)}, {s(sT0)}",
                f"s_mul_i32 {s(sT0)}, {s(sG)}, 5120", f"s_add_u32 {s(sV)}, {s(sVb)}, {s(sT0)}"]
    a.ext(setgrp())
    a(f"s_mov_b32 {s(sIT)}, {8 if Cfg.nost else 4}")
    a(f"s_mul_i32 {s(sT0)}, {s(sKH)}, 10240")
    a(f"s_mul_i32 {s(sLB)}, {s(sQH)}, 5120")
    a(f"s_add_u32 {s(sLB)}, {s(sLB)}, {s(sT0)}")
    a(f"v_lshlrev_b32 {v(vLin)}, 4, {v(vL)}")
    a(f"v_add_u32 {v(vLK1)}, {s(sT0)}, {v(vLin)}")
    a(f"s_add_u32 {s(sT1)}, {s(sT0)}, 2048")
    a(f"v_add_u32 {v(vLV)}, {s(sT1)}, {v(vV0)}")
    a(f"s_add_u32 {s(sT1)}, {s(sT0)}, 4608")
    a(f"v_add_u32 {v(vLK2)}, {s(sT1)}, {v(vK2)}")
    a(f"s_lshl_b32 {s(sT0)}, {s(sQH)}, 10")
    a(f"s_add_u32 {s(sDK)}, {s(sK1b)}, {s(sT0)}")
    a(f"s_add_u32 {s(sT0)}, {s(sK2b)}, {s(sT0)}")
    a(f"s_mul_i32 {s(sT1)}, {s(sQH)}, 2560")
    a(f"s_add_u32 {s(sDV)}, {s(sVb)}, {s(sT1)}")
    a(f"s_add_u32 {s(sT1)}, {s(sDV)}, 2048")
    a(f"v_add_u32 {v(vMB)}, {s(sT1)}, {v(vLin)}")
    a(f"v_mov_b32 {v(vMI)}, 5120")
    a(f"v_bfe_u32 v8, {v(vL)}, 4, 1")
    a(f"v_and_b32 v9, 15, {v(vL)}")
    a(f"v_lshlrev_b32 v9, 4, v9")
    a(f"v_lshl_add_u32 v8, v8, 9, v9")
    a("s_mov_b32 exec_lo, 0")
    a(f"v_add_u32 {v(vMB)}, {s(sT0)}, v8")
    a(f"v_mov_b32 {v(vMI)}, 2048")
    a("s_mov_b32 exec_lo, -1")
    if Cfg.lpro:
        a(f"v_mov_b32 {v(vQS)}, v8")
        a(f"v_mad_u32_u24 {v(vM)}, {v(vMI)}, {s(sG)}, {v(vMB)}")
        a(f"s_mul_i32 {s(sPQ)}, {s(S_WV)}, 2560")
        a(f"s_add_u32 {s(sPQ)}, {s(sPQ)}, 61440")
        a(f"s_xor_b32 {s(sT0)}, {s(S_WV)}, 2")
        a(f"s_mul_i32 {s(sT0)}, {s(sT0)}, 2560")
        a(f"s_add_u32 {s(sT0)}, {s(sT0)}, 61440")
        for i, r in enumerate((sT0, sPQ)):
            a(f"v_add_u32 {v(vQA+i)}, {s(r)}, {v(vLin)}")
            a(f"v_add_u32 {v(vQB+i)}, {s(r)}, {v(vQ2)}")
        a(f"s_lshl_b32 {s(sPK)}, {s(sG)}, 11")
        a(f"s_add_u32 {s(sPK)}, {s(sPK)}, {s(sDK)}")
        a(f"s_mul_i32 {s(sPV)}, {s(sG)}, 5120")
        a(f"s_add_u32 {s(sPV)}, {s(sPV)}, {s(sDV)}")
        a(f"s_lshl_b32 {s(sT0)}, {s(sQH)}, 4")
        a(f"s_lshl_b32 {s(sPM)}, 0xffff, {s(sT0)}")
        a(f"s_mov_b32 {s(sPM+1)}, 0")
    a(f"s_cmp_eq_u32 {s(S_WV)}, 0")
    a(f"s_cselect_b32 {s(sHW)}, {1 if Cfg.hau < 4 else 5 - Cfg.hau // 4}, -1")
    a(f"s_cselect_b32 {s(sHX)}, {5 - Cfg.hb // 4}, -1")
    a(f"s_mul_i32 {s(sT0)}, {s(S_WV)}, 6144")
    a(f"s_xor_b32 {s(sT1)}, {s(S_WV)}, 2")
    a(f"s_mul_i32 {s(sT1)}, {s(sT1)}, 6144")
    a(f"v_add_u32 {v(vXW)}, {s(sT0)}, {v(vLin)}")
    a(f"v_add_u32 {v(vXR)}, {s(sT1)}, {v(vLin)}")
    a(f"v_bfe_u32 v8, {v(vL)}, 4, 1")
    a(f"v_lshl_add_u32 {v(vOM)}, v8, 14, v9")
    a(f"v_lshl_add_u32 {v(vOM)}, v7, 8, {v(vOM)}")
    a(f"s_lshl_b32 {s(sT0)}, {s(sQB)}, 2")
    a(f"s_lshl_b32 {s(sT1)}, {s(sQH)}, 1")
    a(f"s_add_u32 {s(sT0)}, {s(sT0)}, {s(sT1)}")
    a(f"s_add_u32 {s(sT0)}, {s(sT0)}, {s(sKH)}")
    a(f"s_lshl_b32 {s(sF3)}, {s(sT0)}, 5")
    a(f"s_add_u32 {s(sF3)}, {s(sF3)}, {s(sHD)}")
    a(f"s_lshl_b32 {s(sF3)}, {s(sF3)}, 6")
    a(f"s_add_u32 {s(sF3)}, {s(sF3)}, {F3_OFF}")
    a(f"s_lshl_b32 {s(sT1)}, {s(sHD)}, 9")
    a(f"s_lshl_b32 {s(sT2)}, {s(sT0)}, 16")
    a(f"s_add_u32 {s(sOM)}, {s(sT1)}, {s(sT2)}")
    a(f"s_add_u32 {s(sOM)}, {s(sOM)}, {O_OFF}")
    a(f"s_add_u32 {s(sOM+1)}, {s(sOM)}, 32768")
    a(f"s_lshl_b32 {s(sT2)}, {s(sT0)}, 14")
    a(f"s_add_u32 {s(sOL)}, {s(sT1)}, {s(sT2)}")
    a(f"s_add_u32 {s(sOL)}, {s(sOL)}, {OL_OFF}")
    if Cfg.fused:
        a(f"s_and_b32 {s(sT0)}, {s(sHD)}, 15")
        a(f"s_mul_i32 {s(sT0)}, {s(sT0)}, 20")
        a(f"s_add_u32 {s(sT1)}, {s(sT0)}, 19")
        a(f"s_lshr_b32 {s(sT0)}, {s(sT0)}, 6")
        a(f"s_lshr_b32 {s(sT1)}, {s(sT1)}, 6")
        a(f"s_sub_u32 {s(sT1)}, {s(sT1)}, {s(sT0)}")
        a(f"v_bfe_u32 v12, {v(vL)}, 3, 1")
        a(f"v_mul_u32_u24 v12, {s(sT1)}, v12")
        a(f"v_add_u32 v12, {s(sT0)}, v12")
        a(f"v_bfe_u32 v13, {v(vL)}, 4, 1")
        a(f"v_mad_u32_u24 v13, v13, 5, 5")
        a(f"s_lshl_b32 {s(sT2)}, {s(sKH)}, 3")
        a(f"v_and_b32 v14, 7, {v(vL)}")
        a(f"v_add_u32 v14, {s(sT2)}, v14")
        a(f"s_add_u32 {s(sT2)}, {s(sT2)}, {s(sG)}")
        a(f"v_mov_b32 v15, {s(sT2)}")
        if Cfg.wgp:
            a(f"v_and_b32 v16, 1, {v(vL)}")
            a(f"v_lshl_add_u32 v15, v16, 3, v15")
        a(f"s_lshl_b32 {s(sT2)}, {s(sQB)}, 1")
        a(f"s_add_u32 {s(sT2)}, {s(sT2)}, {s(sQH)}")
        a("s_mov_b32 exec_lo, 0")
        a(f"v_mov_b32 v13, 0")
        a(f"v_mov_b32 v14, {s(sT2)}")
        a(f"v_add_u32 v15, {s(sT2)}, v16" if Cfg.wgp else f"v_mov_b32 v15, {s(sT2)}")
        a("s_mov_b32 exec_lo, -1")
        a(f"v_add_u32 v12, v12, v13")
        a(f"v_lshl_add_u32 v15, v12, 4, v15")
        a(f"v_lshl_add_u32 v12, v12, 4, v14")
        assert Cfg.fst == 64 or not Cfg.early
        a(f"v_mul_u32_u24 v12, {Cfg.fst}, v12")
        a(f"v_mul_u32_u24 v15, {Cfg.fst}, v15")
        a(f"s_mov_b32 {s(sT3)}, {FX_OFF}")
        if Cfg.early == 2:
            a(f"s_and_b32 {s(sT0)}, {s(idreg)}, 0x81")
            a(f"s_cmp_eq_u32 {s(sT0)}, 1")
        else: a(f"s_cmp_lt_u32 {s(sHD)}, {len(EARLY)}")
        a(f"s_cselect_b32 {s(sT3)}, {F0_OFF}, {s(sT3)}")
        if Cfg.spf:
            a(f"s_and_b32 s4, {s(idreg)}, 1"); a(f"s_bfe_u32 s5, {s(idreg)}, {5 | (3<<16)}"); a("s_lshl3_add_u32 s4, s4, s5")
            a("s_lshl_b32 s4, s4, 7")
            a(f"s_bfe_u32 s5, {s(idreg)}, {3 | (2<<16)}"); a(f"s_lshl2_add_u32 s5, s5, {s(S_WV)}")
            a(f"s_mul_i32 s5, s5, {40*3456}"); a("s_add_u32 s4, s4, s5")
            for P_ in ([P_WG] if Cfg.spf & 2 else []) + ([P_WU] if Cfg.spf & 1 else []):
                a("s_mov_b32 s5, s4")
                for i in range(40):
                    a(f"s_load_dword s6, {s(P_,2)}, s5")
                    a("s_add_u32 s5, s5, 3456")
                    if i % Cfg.spn == Cfg.spn - 1: a("s_waitcnt lgkmcnt(0)")
            a("s_waitcnt lgkmcnt(0)")
        stamp(a, "a_ready")
        setprio(a, 3)
        if Cfg.hint:
            a(f"s_and_b32 {s(sT1)}, {s(idreg)}, 255")
            if Cfg.hint == 2:
                a(f"s_and_b32 {s(sT0)}, {s(sT1)}, 0xe1")
                a(f"s_cmp_eq_u32 {s(sT0)}, 0xe1")
                a(f"s_cselect_b32 {s(sT0)}, 32, 0")
                a(f"s_sub_u32 {s(sT1)}, {s(sT1)}, {s(sT0)}")
            if Cfg.early:
                a(f"s_cmp_eq_u32 {s(sT3)}, {F0_OFF}")
                a(f"s_cbranch_scc1 {pfx}_ph_ok")
            a(f"s_lshl_b32 {s(sT1)}, {s(sT1)}, 7")
            a(f"s_add_u32 {s(sT1)}, {s(sT1)}, {FP_OFF}")
            a("s_mov_b64 exec, 1")
            poll(a, f"{pfx}_ph", None, sT1, 16, sT0, Cfg.phs)
            a("s_mov_b64 exec, -1")
        if Cfg.spoll:
            SA, SD = 4, 10
            for i in range(6): a(f"v_readlane_b32 {s(SA+i)}, v15, {8*i}")
            a(f"v_readfirstlane_b32 s16, {v(V_NONCE)}")
            for i in range(6): a(f"s_add_u32 {s(SA+i)}, {s(SA+i)}, {s(sT3)}")
            a(f"s_mov_b32 {s(sT0)}, 0x20000")
            a(f"{pfx}_sp:")
            for i in range(6): a(f"s_load_dword {s(SD+i)}, {s(P_WS,2)}, {s(SA+i)} glc")
            a("s_waitcnt lgkmcnt(0)")
            for i in range(6): a(f"s_xor_b32 {s(SD+i)}, {s(SD+i)}, s16")
            for i in range(1, 6): a(f"s_or_b32 {s(SD)}, {s(SD)}, {s(SD+i)}")
            a(f"s_cbranch_scc0 {pfx}_sp_ok")
            a(f"s_sub_u32 {s(sT0)}, {s(sT0)}, 1")
            a(f"s_cbranch_scc1 {pfx}_sp_ok")
            a(f"s_sleep {Cfg.p0s}")
            a(f"s_branch {pfx}_sp")
            a(f"{pfx}_sp_ok:")
        else:
            if Cfg.wgp:
                a(f"s_cmp_lg_u32 {s(S_WV)}, 0"); a(f"s_cbranch_scc1 {pfx}_p0_ok")
            poll(a, f"{pfx}_p0", 15, sT3, 16, sT0, Cfg.p0s, 17 if Cfg.pp0 else None)
            if Cfg.wgp: a("s_barrier")
        setprio(a, Cfg.prioB)
        stamp(a, "a_go")
    def kvload(u):
        b = KV + 14 * u
        return [f"buffer_load_dwordx4 {v(b,4)}, {v(vK1)}, {s(S_WS,4)}, {s(sK1)} offen offset:{u*512}{SC1}",
                f"buffer_load_dwordx2 {v(b+12,2)}, {v(vK2)}, {s(S_WS,4)}, {s(sK2)} offen offset:{u*512}{SC1}",
                f"s_mov_b64 exec, {s(sVM,2)}",
                f"buffer_load_dwordx4 {v(b+4,4)}, {v(vV0)}, {s(S_WS,4)}, {s(sV)} offen offset:{u*1280}{SC1}",
                f"buffer_load_dwordx4 {v(b+8,4)}, {v(vV1)}, {s(S_WS,4)}, {s(sV)} offen offset:{u*1280}{SC1}",
                "s_mov_b64 exec, -1"]
    def kvread(u, nxt):
        b = KV + 14 * u; o = nxt * 20480 + (u >> 1) * 5120; sub = u & 1
        return [[f"ds_read_b128 {v(b,4)}, {v(vLK1)} offset:{o+sub*1024}",
                 f"ds_read_b64 {v(b+12,2)}, {v(vLK2)} offset:{o+sub*256}"],
                [f"s_mov_b64 exec, {s(sVM,2)}",
                 f"ds_read_b128 {v(b+4,4)}, {v(vLV)} offset:{o+sub*1280}",
                 f"ds_read_b128 {v(b+8,4)}, {v(vLV)} offset:{o+sub*1280+640}",
                 "s_mov_b64 exec, -1"]]
    if Cfg.lpro:
        dm = lambda va, so, off: f"buffer_load_dwordx4 {v(va)}, {s(S_WS,4)}, {so} offen offset:{off} sc1 lds"
        for m, base, ins in ((40960, sLB, [dm(vK1, s(sPK), 0)]), (0, sPQ, [dm(vQ1, s(sQ+1), 0)]),
                             (40960+512, sLB, [dm(vK1, s(sPK), 512)]), (512, sPQ, [dm(vQ1, s(sQ+1), 512)]),
                             (40960+4096, sLB, [dm(vM, "0", 0)]),
                             (2048, sPQ, ["s_mov_b32 exec_hi, 0", dm(vQS, s(sQ+3), 0), "s_mov_b32 exec_hi, -1"]),
                             (40960+2048, sLB, [dm(vLin, s(sPV), 0), dm(vLin, s(sPV), 1024)])):
            a(f"s_add_u32 m0, {s(base)}, {m}"); a("s_nop 0"); a.ext(ins)
        a(f"s_mov_b64 exec, {s(sPM,2)}")
        a(f"buffer_load_dword v13, v12, {s(S_WS,4)}, {s(sT3)} offen sc1")
        a("s_mov_b64 exec, -1")
        stamp(a, "issued")
        a("s_waitcnt vmcnt(1)")
        a("s_barrier")
        for q in range(4): a(f"ds_read_b128 {v(Q+6*q,4)}, {v(vQA+(q>>1))} offset:{(q&1)*1024}")
        a("s_mov_b32 exec_hi, 0")
        for q in range(4): a(f"ds_read_b64 {v(Q+6*q+4,2)}, {v(vQB+(q>>1))} offset:{2048+(q&1)*256}")
        a("s_mov_b32 exec_hi, -1")
        for u in range(3):
            if u == 1: a("s_waitcnt lgkmcnt(6)")
            for x in kvread(u, 2): a.ext(x)
        a(f"s_mov_b64 exec, {s(sPM,2)}")
        a("s_waitcnt vmcnt(0)")
        a(f"v_cmp_ne_u32 vcc, v13, {v(V_NONCE)}")
        a("s_nop 1")
        a(f"s_cbranch_vccz {pfx}_p1_ok")
        poll(a, f"{pfx}_p1", 12, sT3, 13, sT0, Cfg.p1s)
        a("s_mov_b64 exec, -1")
        a("s_waitcnt lgkmcnt(0)")
        a("s_barrier")
    else:
        for q in range(4):
            a(f"buffer_load_dwordx4 {v(Q+6*q,4)}, {v(vQ1)}, {s(S_WS,4)}, {s(sQ+(q>>1))} offen offset:{(q&1)*512}{SC1}")
        if Cfg.thq >= 0: a(f"s_waitcnt vmcnt({Cfg.thq})")
        a("s_mov_b32 exec_hi, 0")
        for q in range(4):
            a(f"buffer_load_dwordx2 {v(Q+6*q+4,2)}, {v(vQ2)}, {s(S_WS,4)}, {s(sQ+2+(q>>1))} offen offset:{(q&1)*512}{SC1}")
        a("s_mov_b32 exec_hi, -1")
        for u in range(3):
            if Cfg.tha >= 0: a(f"s_waitcnt vmcnt({Cfg.tha})")
            a.ext(kvload(u))
            if u == Cfg.fpos: a(f"buffer_load_dword v13, v12, {s(S_WS,4)}, {s(sT3)} offen sc1")
        stamp(a, "issued")
        a(f"s_waitcnt vmcnt({8 - 4 * Cfg.fpos})")
        a(f"v_cmp_ne_u32 vcc, v13, {v(V_NONCE)}")
        a("s_nop 1")
        a(f"s_cbranch_vccz {pfx}_p1_ok")
        poll(a, f"{pfx}_p1", 12, sT3, 13, sT0, Cfg.p1s)
    setprio(a, Cfg.prioA)
    stamp(a, "q_kv0")
    a(mf32(S, KV, Q, "0"))
    a(mf8(S, KV + 12, Q + 4))
    a("s_nop 11")
    def loop(tag, lds):
        a(".p2align 3")
        a(f"{pfx}_loop{tag}:")
        ndma = [0, 0, 0, 0]
        for u in range(4):
            b = KV + 14 * u; bn = KV + 14 * ((u + 1) & 3); bp = KV + 14 * ((u - 1) & 3)
            items = []
            if not lds:
                if u == 0: items = [f"s_xor_b32 {s(sG4)}, {s(sG)}, 4", f"s_add_u32 {s(sG)}, {s(sG)}, 1", f"s_and_b32 {s(sG)}, {s(sG)}, 7"] + setgrp()
                dm = lambda va, so, off: f"buffer_load_dwordx4 {v(va)}, {s(S_WS,4)}, {so} offen offset:{off} sc1 lds"
                if u == 1: items = [f"s_lshl_b32 {s(sT0)}, {s(sG4)}, 11", f"s_mov_b32 m0, {s(sLB)}", [f"s_add_u32 {s(sT0)}, {s(sT0)}, {s(sDK)}", dm(vK1, s(sT0), 0)],
                                    f"s_add_u32 m0, {s(sLB)}, 512", [f"s_mul_i32 {s(sT1)}, {s(sG4)}, 5120", dm(vK1, s(sT0), 512)],
                                    f"s_add_u32 m0, {s(sLB)}, 2048"]
                if u == 2: items = [[f"s_add_u32 {s(sT1)}, {s(sT1)}, {s(sDV)}", dm(vLin, s(sT1), 0)],
                                    [f"v_mad_u32_u24 {v(vM)}, {v(vMI)}, {s(sG4)}, {v(vMB)}"], [dm(vLin, s(sT1), 1024)],
                                    f"s_add_u32 m0, {s(sLB)}, 4096", [f"s_add_u32 {s(sLB)}, {s(sLB)}, 20480", dm(vM, "0", 0)]]
            if Cfg.nost and u in (1, 2): items = []
            if Cfg.gate and lds == (Cfg.hau >= 4) and u == Cfg.hau % 4:
                items += [f"s_cmp_eq_u32 {s(sIT)}, {s(sHW)}", [f"s_cbranch_scc1 {pfx}_ha", f"{pfx}_har:"]]
            if Cfg.gj >= 0 and lds and u == Cfg.hb % 4:
                items += [f"s_cmp_eq_u32 {s(sIT)}, {s(sHX)}", [f"s_cbranch_scc1 {pfx}_hx", f"{pfx}_hxr:"]]
            if lds and u == Cfg.mbu:
                items += [f"s_cmp_eq_u32 {s(sIT)}, 1", [f"s_cbranch_scc1 {pfx}_mb", f"{pfx}_mbr:"]]
            if u == 3:
                items += [f"s_sub_u32 {s(sIT)}, {s(sIT)}, 1", f"s_cmp_lg_u32 {s(sIT)}, 0"]
                if lds: items += [f"v_add_u32 {v(r)}, 0x5000, {v(r)}" for r in (vLK1, vLK2, vLV)]
            ld = kvread((u + 3) & 3, u > 0) if lds else [kvload((u + 3) & 3)[:2], kvload((u + 3) & 3)[2:]]
            if Cfg.x_nokv: ld = [[], []]
            vmw = {0: 8, 1: 10, 2: 13, 3: 11}[u] if not Cfg.nost else 8
            for q in range(4):
                Sc = S + 16 * (q & 1); Sn = S + 16 * ((q + 1) & 1)
                qn, qp = (q + 1) & 3, (q - 1) & 3
                kn = b if q < 3 else bn
                kp = b if q > 0 else bp
                ex = [f"v_exp_f32 {v(Sc+i)}, {v(Sc+i)}" for i in range(16)]
                cv = [f"v_cvt_pk_bf16_f32 {v(P+i)}, {v(Sc+2*i)}, {v(Sc+2*i+1)}" for i in range(8)]
                def free():
                    if items:
                        it = items.pop(0)
                        a.ext(it if isinstance(it, list) else [it])
                a(mf32(Sn, kn, Q + 6 * qn, "0"))
                if q == 0: a.ext(ld[0])
                else: free()
                a.ext(ex[0:4])
                a(mf32(O + 16 * qp, kp + 8, P + 4))
                if q == 0: a.ext(ld[1])
                else: free()
                a.ext(ex[4:8] + cv[0:2])
                a(mf8(Sn, kn + 12, Q + 6 * qn + 4))
                a.ext(ex[8:9] + cv[2:4] + ex[9:12])
                a(mf32(O + 16 * q, b + 4, P))
                if q == 2:
                    assert not any("lds" in str(it) for it in items)
                    a(("s_waitcnt vmcnt(0) lgkmcnt(8)" if u == 0 else "s_waitcnt lgkmcnt(8)") if lds else f"s_waitcnt vmcnt({vmw})")
                else: free()
                a.ext(ex[12:16] + cv[4:8])
            assert not items
        a(f"s_cbranch_scc1 {pfx}_loop{tag}")
    loop("a", False)
    if Cfg.nost: a(f"s_branch {pfx}_epi")
    a(f"s_mov_b32 {s(sIT)}, 4")
    a("s_waitcnt vmcnt(4)")
    a("s_barrier")
    stamp(a, "half")
    a(f"s_branch {pfx}_loopb")
    if Cfg.gj >= 0:
        a(f"{pfx}_hx:")
        a(f"s_and_b32 {s(sHX)}, {s(idreg)}, 255")
        a(f"s_lshl_b32 {s(sHX)}, {s(sHX)}, 7")
        a(f"s_add_u32 {s(sHX)}, {s(sHX)}, {FP_OFF}")
        publish(a, sHX)
        a(f"s_branch {pfx}_hxr")
    if Cfg.gate:
        a(f"{pfx}_ha:")
        a(f"s_and_b32 {s(sHW)}, {s(idreg)}, 255")
        a(f"s_lshl_b32 {s(sHW)}, {s(sHW)}, 6")
        a(f"s_add_u32 {s(sHW)}, {s(sHW)}, {FH_OFF + 32}")
        publish(a, sHW)
        a(f"s_branch {pfx}_har")
    a(f"{pfx}_mb:")
    a("s_barrier")
    if 0 < Cfg.lag < 4:
        a(f"s_cmp_lg_u32 {s(S_WV)}, 0")
        a(f"s_cbranch_scc1 {pfx}_mbr")
        a(f"s_and_b32 {s(sT0)}, {s(idreg)}, 255")
        a(f"s_lshl_b32 {s(sT0)}, {s(sT0)}, 6")
        a(f"s_add_u32 {s(sT0)}, {s(sT0)}, {FH_OFF}")
        publish(a, sT0)
        if Cfg.tc & 4: a.ext(touch(f"{pfx}_epi", f"{pfx}_fb", sT0, vM, vM))
    a(f"s_branch {pfx}_mbr")
    loop("b", True)
    if Cfg.dry:
        a("s_cmp_lg_u32 s39, 0"); a(f"s_cbranch_scc1 {pfx}_dryr")
    a(f"{pfx}_epi:")
    setprio(a, Cfg.prioE)
    for j in range(2): a(f"ds_write_b128 {v(vXW)}, {v(O+4*j,4)} offset:{j*1024}")
    a(mf32(O + 48, KV + 14 * 3 + 8, P + 4))
    stamp(a, "loopdone")
    a(f"ds_write_b128 {v(vXW)}, {v(O+8,4)} offset:2048")
    for j in range(3): a(f"ds_write_b128 {v(vXW)}, {v(O+16+4*j,4)} offset:{3072+j*1024}")
    a("s_waitcnt lgkmcnt(0)")
    a("s_barrier")
    R = S
    for t in range(2):
        for j in (2, 0, 1): a(f"ds_read_b128 {v(R+16*t+4*j,4)}, {v(vXR)} offset:{t*3072+j*1024}")
    a(f"{pfx}_fin:")
    for t in range(2):
        o = O + 32 + 16 * t; r = R + 16 * t; d = (14, P)[t]
        pa = lambda i: f"v_pk_add_f32 {v(o+i,2)}, {v(o+i,2)}, {v(r+i,2)}"
        a(f"s_waitcnt lgkmcnt({5-3*t})")
        a(f"v_add_f32 v12, {v(o+8)}, {v(r+8)}")
        a(f"v_add_f32 {v(22+t)}, {v(o+8)}, {v(r+8)}")
        a(pa(8)); a(pa(10))
        a(f"v_permlane32_swap_b32 v12, {v(22+t)}")
        a(f"s_waitcnt lgkmcnt({3-3*t})")
        a(f"v_rcp_f32 v12, {v(22+t)}")
        for i in range(0, 8, 2): a(pa(i))
        for i in range(0, 12, 2): a(f"v_pk_mul_f32 {v(o+i,2)}, {v(o+i,2)}, v[12:13] op_sel_hi:[1,0]")
        for j in range(6): a(f"v_cvt_pk_bf16_f32 {v(d+j if j < 4 else 18+2*t+j-4)}, {v(o+2*j)}, {v(o+2*j+1)}")
        a(f"buffer_store_dwordx4 {v(d,4)}, {v(vOM)}, {s(S_WS,4)}, {s(sOM+t)} offen{SC1}")
    a("s_mov_b32 exec_hi, 0")
    a(f"buffer_store_dwordx4 v[18:21], {v(vLin)}, {s(S_WS,4)}, {s(sOL)} offen{SC1}")
    stamp(a, "o_stored")
    a("s_mov_b32 exec_hi, -1")
    a(f"s_cmp_lg_u32 {s(sIT)}, 0")
    a(f"s_cbranch_scc1 {pfx}_ok")
    LO, HI = (127 - Cfg.lo) << 23, (127 + Cfg.hi) << 23
    a(f"v_subrev_u32 v22, {LO}, v22")
    a(f"v_subrev_u32 v23, {LO}, v23")
    a("v_max_u32 v22, v22, v23")
    a(f"v_cmp_lt_u32 vcc, {HI - LO}, v22")
    a(f"v_add_f32 v12, {v(O+32)}, {v(O+48)}")
    for i in range(1, 12):
        a(f"v_fma_f32 v12, {v(O+32+i)}, 0, v12")
        a(f"v_fma_f32 v12, {v(O+48+i)}, 0, v12")
    a(f"s_movk_i32 {s(sT0)}, 0x207")
    a(f"v_cmp_class_f32 {s(sT2,2)}, v12, {s(sT0)}")
    a("s_nop 0")
    a(f"s_or_b64 vcc, vcc, {s(sT2,2)}")
    a(f"s_cbranch_scc1 {pfx}_fb")
    a(f"{pfx}_ok:")
    a("s_waitcnt vmcnt(0)")
    publish(a, sF3)
    stamp(a, "o_pub")
    a(f"s_branch {pfx}_done")
    a(f"{pfx}_fb:")
    def rewind():
        a(f"s_lshl_b32 {s(sT0)}, {s(sKH)}, 14")
        a(f"s_sub_u32 {s(sK1)}, {s(sK1b)}, {s(sT0)}")
        a(f"s_sub_u32 {s(sK2)}, {s(sK2b)}, {s(sT0)}")
        a(f"s_mul_i32 {s(sT0)}, {s(sKH)}, 40960")
        a(f"s_sub_u32 {s(sV)}, {s(sVb)}, {s(sT0)}")
        a(f"s_mov_b32 {s(sIT)}, 0")
    def advance(lbl):
        a(f"s_add_u32 {s(sK1)}, {s(sK1)}, 512")
        a(f"s_add_u32 {s(sK2)}, {s(sK2)}, 512")
        a(f"s_add_u32 {s(sV)}, {s(sV)}, 1280")
        a(f"s_add_u32 {s(sIT)}, {s(sIT)}, 1")
        a(f"s_cmp_lt_u32 {s(sIT)}, 64")
        a(f"s_cbranch_scc1 {lbl}")
    rewind()
    a("v_mov_b32 v22, 0xff800000")
    a("v_mov_b32 v23, 0xff800000")
    a(f"{pfx}_fb1:")
    a.ext(kvload(0)[:2])
    a("s_waitcnt vmcnt(0)")
    for t in range(2): a(mf32(S + 16 * t, KV, Q + 12 + 6 * t, "0"))
    for t in range(2): a(mf8(S + 16 * t, KV + 12, Q + 16 + 6 * t))
    a("s_nop 11")
    for t in range(2):
        for i in range(0, 16, 2): a(f"v_max3_f32 {v(22+t)}, {v(S+16*t+i)}, {v(S+16*t+i+1)}, {v(22+t)}")
    advance(f"{pfx}_fb1")
    rewind()
    for t in range(2):
        a(f"v_mov_b32 v12, {v(22+t)}")
        a("s_nop 1")
        a(f"v_permlane32_swap_b32 v12, {v(22+t)}")
        a(f"v_max_f32 v12, v12, {v(22+t)}")
        for i in range(16):
            a(f"v_xor_b32 {v(O+16*t+i)}, 0x80000000, v12")
            a(f"v_mov_b32 {v(O+32+16*t+i)}, 0")
    a(f"{pfx}_fb2:")
    a.ext(kvload(0))
    a("s_waitcnt vmcnt(0)")
    for t in range(2): a(mf32(S + 16 * t, KV, Q + 12 + 6 * t, v(O + 16 * t, 16)))
    for t in range(2): a(mf8(S + 16 * t, KV + 12, Q + 16 + 6 * t))
    a("s_nop 11")
    for t in range(2):
        for i in range(16): a(f"v_exp_f32 {v(S+16*t+i)}, {v(S+16*t+i)}")
        for i in range(8): a(f"v_cvt_pk_bf16_f32 {v(P+i)}, {v(S+16*t+2*i)}, {v(S+16*t+2*i+1)}")
        a("s_nop 1")
        a(mf32(O + 32 + 16 * t, KV + 4, P))
        a(mf32(O + 32 + 16 * t, KV + 8, P + 4))
    advance(f"{pfx}_fb2")
    for i in range(32): a(f"v_mov_b32 {v(S+i)}, 0")
    a(f"s_branch {pfx}_fin")
    a(f"{pfx}_done:")

def gen_att(a, pfx, idreg):
    vL, vK1, vK2, vV0, vV1, vQ1, vQ2, vFA, vFR = 1, 2, 3, 4, 5, 6, 7, 8, 9
    vXW, vOM, vLin = 10, 22, 23
    P, S, O, Q, KV = 24, 32, 64, 128, 152
    RD = (208, 220, 232)
    vXR, vQA, vQB = 244, 247, 251
    QL = 73728
    sHD, sQB, sG0, sN, sK1, sK2, sV, sIT, sPH = 41, 42, 43, 44, 45, 46, 47, 48, 49
    sK1b, sK2b, sVb, sBAD = 50, 51, 52, 53
    sT0, sT1, sT2, sT3 = 54, 55, 56, 57
    sVM = 58
    sQ1, sQ2 = 96, 32
    sOM, sOL, sF3, sFF = 28, 29, 30, 31
    sDRY, sQM = 36, 37
    JK, JV = 40 * 32768, 16 * 81920
    a(f"v_and_b32 {v(vL)}, 63, v0")
    a(f"v_lshrrev_b32 v12, 6, v0")
    a(f"s_and_b32 {s(sT0)}, {s(idreg)}, 7")
    a(f"v_readfirstlane_b32 {s(S_WV)}, v12")
    a(f"s_bfe_u32 {s(sT1)}, {s(idreg)}, {7 | (1<<16)}")
    a(f"s_lshl1_add_u32 {s(sHD)}, {s(sT0)}, {s(sT1)}")
    a(f"s_bfe_u32 {s(sQB)}, {s(idreg)}, {3 | (4<<16)}")
    a(f"s_and_b32 {s(sG0)}, {s(sQB)}, 3")
    a(f"v_and_b32 v12, 31, {v(vL)}")
    a(f"v_lshrrev_b32 v13, 5, {v(vL)}")
    a(f"v_lshlrev_b32 {v(vQ2)}, 4, v12")
    a(f"v_lshl_add_u32 {v(vQ1)}, v13, 15, {v(vQ2)}")
    a(f"v_and_b32 {v(vK2)}, 7, v12")
    a(f"v_bfe_u32 v14, v12, 3, 1")
    a(f"v_lshl_add_u32 {v(vK2)}, v14, 4, {v(vK2)}")
    a(f"v_lshrrev_b32 v14, 4, v12")
    a(f"v_lshl_add_u32 {v(vK2)}, v14, 3, {v(vK2)}")
    a(f"v_lshlrev_b32 {v(vK2)}, 4, {v(vK2)}")
    a(f"v_lshl_add_u32 {v(vK1)}, v13, 15, {v(vK2)}")
    a(f"v_mul_u32_u24 {v(vV0)}, 320, v13")
    a(f"v_add_u32 {v(vV0)}, {v(vV0)}, {v(vQ2)}")
    a(f"v_add_u32 {v(vV1)}, 640, {v(vV0)}")
    for r in (vQ2, vK2):
        a(f"v_lshrrev_b32 v15, 8, {v(r)}")
        a(f"v_and_b32 {v(r)}, 0xff, {v(r)}")
        a(f"v_lshl_add_u32 {v(r)}, v15, 3, {v(r)}")
    a(f"v_lshlrev_b32 {v(vLin)}, 4, {v(vL)}")
    a(f"v_and_b32 {v(vOM)}, 0xff, {v(vLin)}")
    a(f"v_lshl_add_u32 {v(vOM)}, v14, 14, {v(vOM)}")
    a(f"v_lshl_add_u32 {v(vOM)}, v13, 8, {v(vOM)}")
    a(f"s_mov_b32 {s(sVM)}, 0xfffff")
    a(f"s_mov_b32 {s(sVM+1)}, 0xfffff")
    a(f"s_mul_i32 {s(sT0)}, {s(S_WV)}, 9216")
    a(f"v_add_u32 {v(vXW)}, {s(sT0)}, {v(vLin)}")
    for r in range(3):
        a(f"s_sub_u32 {s(sT0)}, {s(S_WV)}, {1 + r}")
        a(f"s_and_b32 {s(sT0)}, {s(sT0)}, 3")
        a(f"s_mul_i32 {s(sT0)}, {s(sT0)}, 9216")
        a(f"s_add_u32 {s(sT0)}, {s(sT0)}, {r*3072}")
        a(f"v_add_u32 {v(vXR+r)}, {s(sT0)}, {v(vLin)}")
    for i in range(4):
        a(f"s_add_u32 {s(sQM)}, {s(S_WV)}, {1 + i}")
        a(f"s_and_b32 {s(sQM)}, {s(sQM)}, 3")
        a(f"s_mul_i32 {s(sQM)}, {s(sQM)}, 1280")
        a(f"s_add_u32 {s(sQM)}, {s(sQM)}, {QL}")
        a(f"v_add_u32 {v(vQA+i)}, {s(sQM)}, {v(vLin)}")
        a(f"v_add_u32 {v(vQB+i)}, {s(sQM)}, {v(vQ2)}")
    a(f"v_mov_b32 {v(V_NONCE)}, 0")
    a(f"v_mov_b32 {v(vFR)}, 0")
    a(f"v_mov_b32 {v(vFA)}, 0")
    a("s_waitcnt lgkmcnt(0)")
    srd(a, S_WS, P_WS, 0)
    if Cfg.dry:
        a(f"s_mov_b32 {s(sDRY)}, 1")
        for r in (sPH, sOM, sOL, sF3, sQ1 + 3, sQ2 + 3): a(f"s_mov_b32 {s(r)}, 0")
        a(f"s_branch {pfx}_glue")
        a(f"{pfx}_dryr:")
        a("s_waitcnt vmcnt(0)")
        setprio(a, 0)
    a(f"s_mov_b32 {s(sDRY)}, 0")
    a(f"s_mov_b32 {s(S_WS+2)}, {WS_BYTES}")
    a(f"v_and_b32 v12, 31, {v(vL)}")
    a(f"v_cmp_eq_u32 vcc, 20, v12")
    a(f"v_mov_b32 v15, 0x3f803f80")
    a("s_nop 0")
    a(f"v_cndmask_b32 v15, 0, v15, vcc")
    for u in range(4):
        for r in range(4, 12): a(f"v_mov_b32 {v(KV+14*u+r)}, v15")
    for q in range(4):
        a(f"v_mov_b64 {v(Q+6*q+4,2)}, 0")
    for r in range(0, 64, 2): a(f"v_mov_b64 {v(O+r,2)}, 0")
    for r in range(0, 8, 2): a(f"v_mov_b64 {v(P+r,2)}, 0")
    nonce_check(a, f"{pfx}_nc", 12, sT0, sT1)
    a(f"s_lshr_b32 {s(sT0)}, {s(sHD)}, 1")
    a(f"s_and_b32 {s(sT1)}, {s(sHD)}, 1")
    a(f"s_mul_i32 {s(sT0)}, {s(sT0)}, 5")
    a(f"s_mul_i32 {s(sT2)}, {s(sT1)}, 3")
    a(f"s_add_u32 {s(sT2)}, {s(sT2)}, {s(sT0)}")
    a(f"s_lshl_b32 {s(sK1b)}, {s(sT2)}, 15")
    a(f"s_add_u32 {s(sT0)}, {s(sT0)}, 2")
    a(f"s_lshl_b32 {s(sK2b)}, {s(sT0)}, 15")
    a(f"s_lshl_b32 {s(sT1)}, {s(sT1)}, 8")
    a(f"s_add_u32 {s(sK2b)}, {s(sK2b)}, {s(sT1)}")
    att_relayout(a, pfx, idreg, vL, vLin, 212, sT0, sT1, sT2, sT3)
    for i in range(4):
        a(f"s_add_u32 {s(sT0)}, {s(S_WV)}, {1 + i}")
        a(f"s_and_b32 {s(sT0)}, {s(sT0)}, 3")
        a(f"s_lshl2_add_u32 {s(sT0)}, {s(sQB)}, {s(sT0)}")
        a(f"s_lshl_b32 {s(sT1)}, {s(sT0)}, 9")
        a(f"s_add_u32 {s(sQ1+i)}, {s(sT1)}, {s(sK1b)}")
        a(f"s_add_u32 {s(sQ2+i)}, {s(sT1)}, {s(sK2b)}")
    a(f"s_lshl_b32 {s(sOM)}, {s(sT0)}, 15")
    a(f"s_lshl_b32 {s(sT1)}, {s(sHD)}, 9")
    a(f"s_add_u32 {s(sOM)}, {s(sOM)}, {s(sT1)}")
    a(f"s_add_u32 {s(sOM)}, {s(sOM)}, {O_OFF}")
    a(f"s_lshl_b32 {s(sOL)}, {s(sT0)}, 13")
    a(f"s_lshl_b32 {s(sT1)}, {s(sHD)}, 8")
    a(f"s_add_u32 {s(sOL)}, {s(sOL)}, {s(sT1)}")
    a(f"s_add_u32 {s(sOL)}, {s(sOL)}, {OL_OFF}")
    a(f"s_lshl4_add_u32 {s(sF3)}, {s(sT0)}, {s(sHD)}")
    a(f"s_lshl_b32 {s(sF3)}, {s(sF3)}, 6")
    a(f"s_add_u32 {s(sF3)}, {s(sF3)}, {F3_OFF}")
    a(f"s_lshl_b32 {s(sT0)}, {s(S_WV)}, 13")
    a(f"s_add_u32 {s(sT0)}, {s(sT0)}, {80*32768}")
    a(f"s_add_u32 {s(sK1b)}, {s(sK1b)}, {s(sT0)}")
    a(f"s_add_u32 {s(sK2b)}, {s(sK2b)}, {s(sT0)}")
    a(f"s_mul_i32 {s(sVb)}, {s(sHD)}, 81920")
    a(f"s_mul_i32 {s(sT0)}, {s(S_WV)}, 20480")
    a(f"s_add_u32 {s(sVb)}, {s(sVb)}, {s(sT0)}")
    a(f"s_add_u32 {s(sVb)}, {s(sVb)}, {V_OFF}")
    a(f"s_mov_b32 {s(sN)}, {s(sG0)}")
    a(f"s_mov_b32 {s(sBAD)}, 0")
    def setgrp():
        return [f"s_lshl_b32 {s(sT0)}, {s(sN)}, 11", f"s_add_u32 {s(sK1)}, {s(sK1b)}, {s(sT0)}", f"s_add_u32 {s(sK2)}, {s(sK2b)}, {s(sT0)}",
                f"s_mul_i32 {s(sT0)}, {s(sN)}, 5120", f"s_add_u32 {s(sV)}, {s(sVb)}, {s(sT0)}"]
    a.ext(setgrp())
    a(f"s_mul_i32 {s(sT0)}, {s(sHD)}, 20")
    a(f"s_add_u32 {s(sT1)}, {s(sT0)}, 19")
    a(f"s_lshr_b32 {s(sT0)}, {s(sT0)}, 6")
    a(f"s_lshr_b32 {s(sT1)}, {s(sT1)}, 6")
    a(f"s_sub_u32 {s(sT1)}, {s(sT1)}, {s(sT0)}")
    a(f"v_bfe_u32 v12, {v(vL)}, 3, 1")
    a(f"v_mul_u32_u24 v12, {s(sT1)}, v12")
    a(f"v_add_u32 v12, {s(sT0)}, v12")
    a(f"v_bfe_u32 v13, {v(vL)}, 4, 1")
    a(f"v_mad_u32_u24 v13, v13, 5, 5")
    a(f"s_lshl_b32 {s(sT2)}, {s(S_WV)}, 2")
    a(f"v_and_b32 v14, 3, {v(vL)}")
    a(f"v_add_u32 v14, {s(sT2)}, v14")
    a(f"s_add_u32 {s(sT2)}, {s(sT2)}, {s(sG0)}")
    a(f"v_mov_b32 v15, {s(sT2)}")
    a("s_mov_b32 exec_lo, 0")
    a(f"v_mov_b32 v13, 0")
    a(f"v_mov_b32 v14, {s(sQB)}")
    a(f"v_mov_b32 v15, {s(sQB)}")
    a("s_mov_b32 exec_lo, -1")
    a(f"v_add_u32 v12, v12, v13")
    a(f"v_lshl_add_u32 v15, v12, 4, v15")
    a(f"v_lshl_add_u32 {v(vFA)}, v12, 4, v14")
    a(f"v_lshlrev_b32 {v(vFA)}, 6, {v(vFA)}")
    a(f"v_lshlrev_b32 v15, 6, v15")
    a(f"s_mov_b32 {s(sFF)}, {F0_OFF}")
    a(f"s_mov_b32 {s(sIT)}, 2")
    a(f"s_mov_b32 {s(sPH)}, 0")
    stamp(a, "a_ready")
    if Cfg.x_aexit:
        publish(a, sF3); a(f"s_add_u32 {s(sF3)}, {s(sF3)}, 65536"); publish(a, sF3); a(f"s_branch {pfx}_done")
    setprio(a, 3)
    if Cfg.hint:
        a(f"s_and_b32 {s(sT1)}, {s(idreg)}, 255")
        a(f"s_lshl_b32 {s(sT1)}, {s(sT1)}, 7")
        a(f"s_add_u32 {s(sT1)}, {s(sT1)}, {FP_OFF}")
        a("s_mov_b64 exec, 1")
        poll(a, f"{pfx}_ph", None, sT1, 16, sT0, Cfg.phs)
        a("s_mov_b64 exec, -1")
    poll(a, f"{pfx}_p0", 15, sFF, 16, sT0, Cfg.p0s, 17 if Cfg.pp0 else None)
    setprio(a, Cfg.prioB)
    stamp(a, "a_go")
    def qload(d, tiles, off=0):
        o = [f"buffer_load_dwordx4 {v(d+6*q,4)}, {v(vQ1)}, {s(S_WS,4)}, {s(sQ1+q)} offen sc1" for q in tiles] + ["s_mov_b32 exec_hi, 0"]
        return o + [f"buffer_load_dwordx2 {v(d+6*q+4,2)}, {v(vQ2)}, {s(S_WS,4)}, {s(sQ2+q)} offen sc1" for q in tiles] + ["s_mov_b32 exec_hi, -1"]
    def kvload(u):
        b = KV + 14 * u
        return [f"buffer_load_dwordx4 {v(b,4)}, {v(vK1)}, {s(S_WS,4)}, {s(sK1)} offen offset:{u*512} sc1",
                f"buffer_load_dwordx2 {v(b+12,2)}, {v(vK2)}, {s(S_WS,4)}, {s(sK2)} offen offset:{u*512} sc1",
                f"s_mov_b64 exec, {s(sVM,2)}",
                f"buffer_load_dwordx4 {v(b+4,4)}, {v(vV0)}, {s(S_WS,4)}, {s(sV)} offen offset:{u*1280} sc1",
                f"buffer_load_dwordx4 {v(b+8,4)}, {v(vV1)}, {s(S_WS,4)}, {s(sV)} offen offset:{u*1280} sc1",
                "s_mov_b64 exec, -1"]
    freq = f"buffer_load_dword {v(vFR)}, {v(vFA)}, {s(S_WS,4)}, {s(sFF)} offen sc1"
    def fchk(tag):
        a(f"v_cmp_ne_u32 vcc, {v(vFR)}, {v(V_NONCE)}")
        a("s_nop 1")
        a(f"s_cbranch_vccz {pfx}_{tag}_ok")
        poll(a, f"{pfx}_{tag}", vFA, sFF, vFR, sT0, Cfg.p1s)
        a("s_mov_b64 vcc, 0")
    a.ext(qload(Q, range(4)))
    for u in range(3):
        a.ext(kvload(u))
        if u == 0: a(freq)
    stamp(a, "issued")
    a("s_waitcnt vmcnt(8)")
    a(mf32(S, KV, Q, "0"))
    fchk("p1")
    setprio(a, Cfg.prioA)
    stamp(a, "q_kv0")
    a(mf8(S, KV + 12, Q + 4))
    a("s_nop 10")
    a(".p2align 3")
    a(f"{pfx}_loop:")
    for u in range(4):
        b = KV + 14 * u; bn = KV + 14 * ((u + 1) & 3); bp = KV + 14 * ((u - 1) & 3)
        items = []
        if u == 0: items = [f"s_add_u32 {s(sN)}, {s(sN)}, 1", f"s_and_b32 {s(sN)}, {s(sN)}, 3"] + setgrp()
        if u == 3: items = [f"s_sub_u32 {s(sIT)}, {s(sIT)}, 1", f"s_cmp_lg_u32 {s(sIT)}, 0"]
        ld = kvload((u + 3) & 3)
        def guarded(l, t):
            if u > 0 and Cfg.skp: a(f"s_cbranch_vccnz {pfx}_sk{t}{u}")
            a.ext(l)
            if u > 0 and Cfg.skp: a(f"{pfx}_sk{t}{u}:")
        for q in range(4):
            Sc = S + 16 * (q & 1); Sn = S + 16 * ((q + 1) & 1)
            qn, qp = (q + 1) & 3, (q - 1) & 3
            kn = b if q < 3 else bn
            kp = b if q > 0 else bp
            ex = [f"v_exp_f32 {v(Sc+i)}, {v(Sc+i)}" for i in range(16)]
            cv = [f"v_cvt_pk_bf16_f32 {v(P+i)}, {v(Sc+2*i)}, {v(Sc+2*i+1)}" for i in range(8)]
            def free():
                if items: a(items.pop(0))
            a(mf32(Sn, kn, Q + 6 * qn, "0"))
            if q == 0: guarded(ld[:2], "k")
            else: free()
            a.ext(ex[0:4])
            a(mf32(O + 16 * qp, kp + 8, P + 4))
            if q == 0: guarded(ld[2:], "v")
            else: free()
            a.ext(ex[4:8] + cv[0:2])
            a(mf8(Sn, kn + 12, Q + 6 * qn + 4))
            a.ext(ex[8:9] + cv[2:4] + ex[9:12])
            a(mf32(O + 16 * q, b + 4, P))
            if q == 2:
                if u in (1, 2) and Cfg.skp:
                    a(f"s_cbranch_vccnz {pfx}_sw{u}"); a("s_waitcnt vmcnt(8)"); a(f"{pfx}_swr{u}:")
                else: a("s_waitcnt vmcnt(8)")
            else: free()
            a.ext(ex[12:16] + cv[4:8])
        assert not items
    a(f"s_cbranch_scc1 {pfx}_loop")
    def send(job): return [f"ds_write_b128 {v(vXW)}, {v(O+16*t+4*j,4)} offset:{job*36864+t*3072+j*1024}" for t in range(3) for j in range(3)]
    def finish(o, job, tag):
        a("s_waitcnt lgkmcnt(0)")
        a("s_barrier")
        def qrd(tiles):
            for q in tiles: a(f"ds_read_b128 {v(Q+6*q,4)}, {v(vQA+q)}")
            a("s_mov_b32 exec_hi, 0")
            for q in tiles: a(f"ds_read_b64 {v(Q+6*q+4,2)}, {v(vQB+q)} offset:1024")
            a("s_mov_b32 exec_hi, -1")
        if job == 0: qrd([0])
        for j in (2, 0, 1):
            for r in range(3): a(f"ds_read_b128 {v(RD[r]+4*j,4)}, {v(vXR+r)} offset:{job*36864+j*1024}")
        pa = lambda d, x: f"v_pk_add_f32 {v(d,2)}, {v(d,2)}, {v(x,2)}"
        def quad(j):
            return [pa(RD[0]+4*j, RD[1]+4*j), pa(RD[0]+4*j+2, RD[1]+4*j+2), pa(o+4*j, RD[2]+4*j), pa(o+4*j+2, RD[2]+4*j+2),
                    pa(o+4*j, RD[0]+4*j), pa(o+4*j+2, RD[0]+4*j+2)]
        a("s_waitcnt lgkmcnt(6)"); a.ext(quad(2))
        a("s_waitcnt lgkmcnt(3)"); a.ext(quad(0))
        a("s_waitcnt lgkmcnt(0)")
        if job == 0: qrd([1, 2, 3])
        a.ext(quad(1))
        a(f"{pfx}_fin{tag}:")
        a(f"v_mov_b32 v12, {v(o+8)}")
        a(f"v_mov_b32 v13, {v(o+8)}")
        a("s_nop 1")
        a("v_permlane32_swap_b32 v12, v13")
        a("v_rcp_f32 v12, v13")
        LO, HI = (127 - Cfg.lo) << 23, (127 + Cfg.hi) << 23
        a(f"v_subrev_u32 v13, {LO}, v13")
        for i in (8, 10, 0, 2, 4, 6): a(f"v_pk_mul_f32 {v(o+i,2)}, {v(o+i,2)}, v[12:13] op_sel_hi:[1,0]")
        if job == 0: a(mf32(S, KV, Q, "0"))
        for j in (4, 5):
            a(f"v_cvt_pk_bf16_f32 {v(14+j)}, {v(o+2*j)}, {v(o+2*j+1)}")
            a(f"v_cvt_pk_bf16_f32 {v(16+j)}, {v(o+2*j)}, {v(o+2*j+1)}")
        for j in range(4): a(f"v_cvt_pk_bf16_f32 {v(14+j)}, {v(o+2*j)}, {v(o+2*j+1)}")
        a(f"buffer_store_dwordx4 v[14:17], {v(vOM)}, {s(S_WS,4)}, {s(sOM)} offen sc1")
        a("v_permlane16_swap_b32 v18, v20")
        a("v_permlane16_swap_b32 v19, v21")
        if job == 0: a(mf8(S, KV + 12, Q + 4))
        a("s_mov_b64 exec, 0xffff")
        a(f"buffer_store_dwordx4 v[18:21], {v(vLin)}, {s(S_WS,4)}, {s(sOL)} offen sc1")
        a("s_mov_b64 exec, -1")
        a(f"v_cmp_lt_u32 vcc, {HI - LO}, v13")
        for i in range(2, 12, 2): a(f"v_pk_fma_f32 {v(o,2)}, {v(o+i,2)}, 0, {v(o,2)} op_sel_hi:[1,0,1]")
        a(f"v_fma_f32 v12, {v(o+1)}, 0, {v(o)}")
        a(f"s_movk_i32 {s(sT0)}, 0x207")
        a(f"v_cmp_class_f32 {s(sT2,2)}, v12, {s(sT0)}")
        a("s_nop 0")
        a(f"s_or_b64 vcc, vcc, {s(sT2,2)}")
    def nextjob(sign):
        op = "s_add_u32" if sign > 0 else "s_sub_u32"
        return [f"{op} {s(r)}, {s(r)}, {JK}" for r in [sK1b, sK2b, sQ1 + 3, sQ2 + 3]] + [f"{op} {s(sVb)}, {s(sVb)}, {JV}"]
    def nextout(sign):
        op = "s_add_u32" if sign > 0 else "s_sub_u32"
        return [f"{op} {s(sOM)}, {s(sOM)}, 8192", f"{op} {s(sOL)}, {s(sOL)}, 4096", f"{op} {s(sF3)}, {s(sF3)}, 65536"]
    def back():
        a(f"s_cmp_eq_u32 {s(sDRY)}, 0")
        a(f"s_cbranch_scc1 {pfx}_loop")
    a(f"s_add_u32 {s(sPH)}, {s(sPH)}, 1")
    a(f"s_cmp_lt_u32 {s(sPH)}, 5")
    a(f"s_cbranch_scc1 {pfx}_glue")
    a(f"{pfx}_epi:")
    setprio(a, Cfg.prioE)
    a(mf32(O + 48, KV + 14 * 3 + 8, P + 4))
    stamp(a, "loopdone")
    a.ext(send(1))
    finish(O + 48, 1, "b")
    a(f"s_cbranch_scc1 {pfx}_fbq")
    a(f"{pfx}_ok:")
    stamp(a, "o_stored")
    a("s_waitcnt vmcnt(0)")
    publish(a, sF3)
    stamp(a, "o_pub")
    if Cfg.dry:
        a(f"s_cmp_lg_u32 {s(sDRY)}, 0")
        a(f"s_cbranch_scc1 {pfx}_dryr")
    a(f"s_cmp_eq_u32 {s(sBAD)}, 0")
    a(f"s_cbranch_scc1 {pfx}_done")
    a(f"s_mov_b32 {s(sBAD)}, 0")
    a.ext(nextjob(-1) + nextout(-1))
    a(f"s_branch {pfx}_fb")
    a(f"{pfx}_glue:")
    a(f"s_mov_b32 {s(sIT)}, 1")
    for ph in (2, 3, 4):
        a(f"s_cmp_eq_u32 {s(sPH)}, {ph}")
        a(f"s_cbranch_scc1 {pfx}_g{ph}")
    a(f"s_mov_b32 {s(sFF)}, {F1_OFF}")
    a(freq)
    back()
    a(f"{pfx}_g2:")
    a(f"s_mov_b32 m0, {s(sQM)}")
    a.ext(nextjob(1))
    fchk("p2")
    a(f"buffer_load_dwordx4 {v(vQ1)}, {s(S_WS,4)}, {s(sQ1+3)} offen sc1 lds")
    a(f"s_add_u32 m0, {s(sQM)}, 1024")
    a("s_mov_b64 exec, 0xffff")
    a(f"buffer_load_dwordx4 {v(vLin)}, {s(S_WS,4)}, {s(sQ2+3)} offen sc1 lds")
    a("s_mov_b64 exec, -1")
    back()
    a(f"{pfx}_g3:")
    stamp(a, "half")
    a(mf32(O + 48, KV + 14 * 3 + 8, P + 4))
    a(f"s_mov_b32 {s(sIT)}, 3")
    a.ext(send(0))
    for r in (4, 6): a(f"v_mov_b64 {v(P+r,2)}, 0")
    for t in range(3):
        for r in range(0, 12, 2): a(f"v_mov_b64 {v(O+16*t+r,2)}, 0")
    finish(O + 48, 0, "a")
    a(f"s_cselect_b32 {s(sBAD)}, 1, 0")
    a("s_mov_b64 vcc, 0")
    for r in range(0, 12, 2): a(f"v_mov_b64 {v(O+48+r,2)}, 0")
    a("s_waitcnt lgkmcnt(0)")
    back()
    a(f"{pfx}_g4:")
    a(f"s_cmp_lg_u32 {s(sBAD)}, 0")
    a(f"s_cbranch_scc1 {pfx}_g4n")
    publish(a, sF3)
    a(f"{pfx}_g4n:")
    a.ext(nextout(1))
    a("s_mov_b64 vcc, -1")
    back()
    a(f"s_branch {pfx}_epi")
    for u in (1, 2):
        a(f"{pfx}_sw{u}:"); a(f"s_waitcnt vmcnt({8 - 4 * u})"); a(f"s_branch {pfx}_swr{u}")
    a(f"{pfx}_fbq:")
    a(f"s_cmp_lg_u32 {s(sIT)}, 0")
    a(f"s_cbranch_scc1 {pfx}_ok")
    a(f"{pfx}_fb:")
    def rewind():
        a(f"s_lshl_b32 {s(sT0)}, {s(S_WV)}, 13")
        a(f"s_sub_u32 {s(sK1)}, {s(sK1b)}, {s(sT0)}")
        a(f"s_sub_u32 {s(sK2)}, {s(sK2b)}, {s(sT0)}")
        a(f"s_mul_i32 {s(sT0)}, {s(S_WV)}, 20480")
        a(f"s_sub_u32 {s(sV)}, {s(sVb)}, {s(sT0)}")
        a(f"s_mov_b32 {s(sIT)}, 0")
    def advance(lbl):
        a(f"s_add_u32 {s(sK1)}, {s(sK1)}, 512")
        a(f"s_add_u32 {s(sK2)}, {s(sK2)}, 512")
        a(f"s_add_u32 {s(sV)}, {s(sV)}, 1280")
        a(f"s_add_u32 {s(sIT)}, {s(sIT)}, 1")
        a(f"s_cmp_lt_u32 {s(sIT)}, 64")
        a(f"s_cbranch_scc1 {lbl}")
    a("s_waitcnt vmcnt(0)")
    a.ext(qload(Q, [3]))
    rewind()
    a("v_mov_b32 v13, 0xff800000")
    a(f"{pfx}_fb1:")
    a.ext(kvload(0)[:2])
    a("s_waitcnt vmcnt(0)")
    a(mf32(S, KV, Q + 18, "0"))
    a(mf8(S, KV + 12, Q + 22))
    a("s_nop 11")
    for i in range(0, 16, 2): a(f"v_max3_f32 v13, {v(S+i)}, {v(S+i+1)}, v13")
    advance(f"{pfx}_fb1")
    rewind()
    a("v_mov_b32 v12, v13")
    a("s_nop 1")
    a("v_permlane32_swap_b32 v12, v13")
    a("v_max_f32 v12, v12, v13")
    for i in range(16):
        a(f"v_xor_b32 {v(O+i)}, 0x80000000, v12")
        a(f"v_mov_b32 {v(O+48+i)}, 0")
    a(f"{pfx}_fb2:")
    a.ext(kvload(0))
    a("s_waitcnt vmcnt(0)")
    a(mf32(S, KV, Q + 18, v(O, 16)))
    a(mf8(S, KV + 12, Q + 22))
    a("s_nop 11")
    for i in range(16): a(f"v_exp_f32 {v(S+i)}, {v(S+i)}")
    for i in range(8): a(f"v_cvt_pk_bf16_f32 {v(P+i)}, {v(S+2*i)}, {v(S+2*i+1)}")
    a("s_nop 1")
    a(mf32(O + 48, KV + 4, P))
    a(mf32(O + 48, KV + 8, P + 4))
    advance(f"{pfx}_fb2")
    a("s_nop 5")
    a(f"s_branch {pfx}_finb")
    a(f"{pfx}_done:")

def gen_relayout(a, pfx, idreg, vL, sT, sFH, sFR):
    sK, sC, sPA, sPB, sPC, sPD, sB, sM, sD0, sD1, sF1 = sT
    assert Cfg.med
    STEP = 256; NR = 1 if Cfg.arl else 2
    sDS = (50, 51, 52)
    SW = S_C
    T = 160
    IR, CH = T + 8, T + 13
    a(f"s_mov_b32 {s(SW+3)}, 0x00020000")
    for i in range(5):
        a(f"v_add_u32 {v(T)}, {64*i}, {v(vL)}")
        a(f"v_mul_u32_u24 {v(IR+i)}, 6554, {v(T)}")
        a(f"v_lshrrev_b32 {v(IR+i)}, 16, {v(IR+i)}")
        a(f"v_mul_u32_u24 {v(CH+i)}, 10, {v(IR+i)}")
        a(f"v_sub_u32 {v(CH+i)}, {v(T)}, {v(CH+i)}")
        a(f"v_lshlrev_b32 {v(CH+i)}, 4, {v(CH+i)}")
    a(f"{pfx}_rl_pass:")
    a(f"s_mul_i32 {s(sM)}, {s(S_WV)}, 5120")
    a(f"s_mov_b32 {s(sF1)}, 0")
    a(f"{pfx}_rl_loop:")
    a(f"s_and_b32 {s(sC)}, {s(idreg)}, 7")
    a(f"s_lshr_b32 {s(sK)}, {s(idreg)}, 3")
    a(f"s_sub_u32 {s(sPD)}, {s(sK)}, 54")
    a(f"s_mul_i32 {s(sD1)}, {s(sPD)}, 52")
    a(f"s_lshr_b32 {s(sD1)}, {s(sD1)}, 8")
    a(f"s_mul_i32 {s(sB)}, {s(sD1)}, 5")
    a(f"s_sub_u32 {s(sPD)}, {s(sPD)}, {s(sB)}")
    a(f"s_mul_i32 {s(sB)}, {s(sD1)}, 160")
    a(f"s_mul_i32 {s(sD1)}, {s(sPD)}, 40")
    a(f"s_cmp_eq_u32 {s(sPD)}, 4")
    a(f"s_cselect_b32 {s(sD1)}, 16, {s(sD1)}")
    a(f"s_cselect_b32 {s(sPA)}, 80, 20")
    a(f"s_cselect_b32 {s(sPB)}, 40, 4")
    a(f"s_cselect_b32 {s(sPC)}, 20, 8")
    a(f"s_add_u32 {s(sB)}, {s(sB)}, {s(sD1)}")
    a(f"s_lshl_b32 {s(sD1)}, {s(sK)}, 5")
    a(f"s_mov_b32 {s(sPD)}, {640*1280}")
    a(f"s_cmp_lt_u32 {s(sK)}, 54")
    a(f"s_cselect_b32 {s(SW)}, {s(P_WD)}, {s(P_WO)}")
    a(f"s_cselect_b32 {s(SW+1)}, {s(P_WD+1)}, {s(P_WO+1)}")
    a(f"s_cselect_b32 {s(SW+2)}, {1728*1280}, {s(sPD)}")
    a(f"s_cselect_b32 {s(sPA)}, 8, {s(sPA)}")
    a(f"s_cselect_b32 {s(sPB)}, 4, {s(sPB)}")
    a(f"s_cselect_b32 {s(sPC)}, 16, {s(sPC)}")
    a(f"s_cselect_b32 {s(sB)}, {s(sD1)}, {s(sB)}")
    a(f"s_mul_i32 {s(sB)}, {s(sB)}, 1280")
    a(f"s_mul_i32 {s(sPD)}, {s(sC)}, 160")
    a(f"s_add_u32 {s(sB)}, {s(sB)}, {s(sPD)}")
    a(f"s_movk_i32 {s(sPD)}, 1280")
    for i in range(5):
        r, t = T, T + 1
        a(f"v_and_b32 {v(r)}, 3, {v(IR+i)}")
        a(f"v_lshrrev_b32 {v(t)}, 4, {v(IR+i)}")
        a(f"v_mad_u32_u24 {v(r)}, {v(t)}, {s(sPA)}, {v(r)}")
        a(f"v_bfe_u32 {v(t)}, {v(IR+i)}, 3, 1")
        a(f"v_mad_u32_u24 {v(r)}, {v(t)}, {s(sPB)}, {v(r)}")
        a(f"v_bfe_u32 {v(t)}, {v(IR+i)}, 2, 1")
        a(f"v_mad_u32_u24 {v(r)}, {v(t)}, {s(sPC)}, {v(r)}")
        a(f"s_add_u32 m0, {s(sM)}, {i*1024}")
        a(f"v_mad_u32_u24 {v(r)}, {v(r)}, {s(sPD)}, {v(CH+i)}")
        if Cfg.thl >= 0: a(f"s_waitcnt vmcnt({Cfg.thl})")
        if not Cfg.x_norl & 1: a(f"buffer_load_dwordx4 {v(r)}, {s(SW,4)}, {s(sB)} offen lds")
    a(f"s_mul_i32 {s(sD1)}, {s(sC)}, 74")
    a(f"s_add_u32 {s(sD1)}, {s(sD1)}, {s(sK)}")
    a(f"s_mul_i32 {s(sD1)}, {s(sD1)}, 5120")
    a(f"s_add_u32 {s(sD1)}, {s(sD1)}, {WR_OFF}")
    for z in range(NR):
        a(f"s_cmp_eq_u32 {s(sF1)}, {z}")
        a(f"s_cselect_b32 {s(sDS[z])}, {s(sD1)}, {s(sDS[z])}")
    a(f"s_add_u32 {s(sF1)}, {s(sF1)}, 1")
    a(f"s_add_u32 {s(idreg)}, {s(idreg)}, {STEP}")
    a(f"s_add_u32 {s(sM)}, {s(sM)}, 20480")
    if not Cfg.arl:
        a(f"s_sub_u32 {s(sD0)}, {s(idreg)}, 512")
        a(f"s_cmp_lt_u32 {s(sD0)}, 80")
        a(f"s_cbranch_scc1 {pfx}_rl_loop")
    a(f"s_mul_i32 {s(sM)}, {s(S_WV)}, 5120")
    a(f"v_lshrrev_b32 {v(T)}, 4, {v(vL)}")
    a(f"v_bfe_u32 {v(T+1)}, {v(vL)}, 2, 2")
    a(f"v_lshl_add_u32 {v(T)}, {v(T)}, 3, {v(T+1)}")
    a(f"v_mul_u32_u24 {v(T)}, 160, {v(T)}")
    a(f"v_and_b32 {v(T+1)}, 3, {v(vL)}")
    a(f"v_mad_u32_u24 {v(T)}, {v(T+1)}, 40, {v(T)}")
    a(f"v_add_u32 {v(T)}, {s(sM)}, {v(T)}")
    a(f"v_lshlrev_b32 {v(T+1)}, 4, {v(vL)}")
    a(f"v_add_u32 {v(T+2)}, 4096, {v(T+1)}")
    a("s_waitcnt vmcnt(0)")
    a("s_barrier")
    a(f"s_cmp_lg_u32 {s(S_WV)}, 0")
    a(f"s_cbranch_scc1 {pfx}_rl_np")
    publish(a, sFH)
    a(f"{pfx}_rl_np:")
    pass
    for z in range(NR):
        D = T + 20 + 20 * z
        if z:
            a(f"s_cmp_eq_u32 {s(sF1)}, {z}")
            a(f"s_cbranch_scc1 {pfx}_rl_fin")
        for mt in range(5):
            for u in range(2):
                a(f"ds_read_b64_tr_b16 {v(D+4*mt+2*u,2)}, {v(T)} offset:{z*20480+u*640+8*mt}")
        a("s_waitcnt lgkmcnt(0)")
        for mt in range(5 if not Cfg.x_norl & 2 else 0):
            if Cfg.ths >= 0: a(f"s_waitcnt vmcnt({Cfg.ths})")
            a(f"buffer_store_dwordx4 {v(D+4*mt,4)}, {v(T+1 if mt < 4 else T+2)}, {s(S_WS,4)}, {s(sDS[z])} offen offset:{(mt&3)*1024} sc1")
    a(f"{pfx}_rl_fin:")
    a("s_waitcnt vmcnt(0)")
    a("s_barrier")
    a(f"s_cmp_lg_u32 {s(S_WV)}, 0")
    a(f"s_cbranch_scc1 {pfx}_rl_done")
    publish(a, sFR)
    a(f"{pfx}_rl_done:")
    a(f"s_add_u32 {s(sFR)}, {s(sFR)}, 2048")
    a(f"s_cmp_lt_u32 {s(idreg)}, {592 if Cfg.arl else 512}")
    a(f"s_cbranch_scc1 {pfx}_rl_pass")

class G2:
    vL, vF, vF2, vW4, vXO = 1, 2, 3, 4, 5
    vBA, vBR = 6, 10
    vFl, vOL = 0, 8
    vFA, vFR = 7, 8
    XR, AS, AD, HF = 12, 22, 96, 116
    WFS = (180, 200)
    HFS = (116, 132, 148, 164)
    WRS = (200, 220, 48, 68)
    sRT, sC8, sM, sW, sH, sIT, sC0, sC1, sPB, sFB = 41, 42, 43, 44, 45, 46, 47, 48, 49, 50
    sT0, sT1, sT2, sT3 = 54, 55, 56, 57
    @staticmethod
    def OF(k):
        return (148 + 4 * k if k < 8 else 240 + 4 * (k - 8)) if k < 10 else (116 + 4 * (k - 10) if k < 18 else 248 + 4 * (k - 18))
    @staticmethod
    def wdma(slot):
        g = G2
        o = [[f"s_add_u32 m0, {s(g.sM)}, {slot*20480}", "s_nop 0"]]
        for i in range(4): o.append([f"buffer_load_dwordx4 {v(g.vF)}, {s(S_WS,4)}, {s(g.sW)} offen offset:{i*1024} sc1 lds"])
        o[0] += o.pop(1)
        o.append([f"s_add_u32 m0, {s(g.sM)}, {slot*20480+4096}", "s_nop 0",
                  f"buffer_load_dwordx4 {v(g.vW4)}, {s(S_WS,4)}, {s(g.sW)} offen sc1 lds", f"s_add_u32 {s(g.sW)}, {s(g.sW)}, {0 if Cfg.x_hot & 1 else 20480}"])
        return o
    @staticmethod
    def hload(st):
        g = G2
        o = [[f"buffer_load_dwordx4 {v(g.HF+16*st+4*j,4)}, {v(g.vF)}, {s(S_WS,4)}, {s(g.sH)} offen offset:{j*1024} sc1"] for j in range(4)]
        o[-1].append(f"s_add_u32 {s(g.sH)}, {s(g.sH)}, {0 if Cfg.x_hot & 2 else 4096}")
        return o

def g2_start(a, pfx, valu, stores, pre=False):
    if Cfg.sk:
        assert not (Cfg.wpre or Cfg.lag)
        return k2_start(a, pfx, valu, stores)
    g = G2
    heavy = bool(valu)
    vL, sT0, sT1, sT2 = g.vL, g.sT0, g.sT1, g.sT2
    a(f"s_lshr_b32 {s(g.sC8)}, s2, 5")
    a(f"s_and_b32 {s(sT1)}, s2, 7")
    a(f"s_lshl_b32 {s(g.sRT)}, {s(sT1)}, 2")
    a(f"s_bfe_u32 {s(sT1)}, s2, {3 | (2<<16)}")
    a(f"s_add_u32 {s(g.sRT)}, {s(g.sRT)}, {s(sT1)}")
    a(f"s_lshl_b32 {s(g.sRT)}, {s(g.sRT)}, 2")
    a(f"s_add_u32 {s(g.sRT)}, {s(g.sRT)}, {s(S_WV)}")
    a(f"s_mul_i32 {s(g.sW)}, {s(g.sC8)}, {74*5120}")
    a(f"s_mul_i32 {s(g.sM)}, {s(S_WV)}, 5120")
    a(f"s_add_u32 {s(g.sW)}, {s(g.sW)}, {s(g.sM)}")
    a(f"s_add_u32 {s(g.sW)}, {s(g.sW)}, {WR_OFF}")
    a(f"s_mul_i32 {s(g.sH)}, {s(g.sRT)}, 55296")
    a(f"s_add_u32 {s(g.sH)}, {s(g.sH)}, {H_OFF}")
    a(f"v_lshlrev_b32 {v(g.vF)}, 4, {v(vL)}")
    a(f"v_add_u32 {v(g.vW4)}, 4096, {v(g.vF)}")
    a(f"s_mov_b32 {s(sT0)}, 0")
    a(f"s_cmp_eq_u32 {s(S_WV)}, 0")
    a(f"s_cselect_b32 {s(g.sPB)}, {0 if heavy else -1}, -1")
    if not pre:
        a("s_waitcnt vmcnt(0) lgkmcnt(0)")
        a(f"s_cbranch_scc0 {pfx}_p4_ok")
        a(f"v_cmp_ne_u32 vcc, {v(g.vFR)}, {v(V_NONCE)}")
        a("s_nop 1")
        a(f"s_cbranch_vccz {pfx}_p4_ok")
        poll(a, f"{pfx}_p4", g.vFA, sT0, g.vFR, sT2, Cfg.p4s)
        a("s_barrier")
    stamp(a, "h_go")
    work = list(valu) + [
        f"v_add_u32 {v(g.vF2)}, {3*20480}, {v(g.vF)}",
        f"v_and_b32 {v(g.AD)}, 15, {v(vL)}",
        f"v_mul_u32_u24 {v(g.vXO)}, 1280, {v(g.AD)}",
        f"v_lshrrev_b32 {v(g.AD)}, 4, {v(vL)}",
        f"v_mad_u32_u24 {v(g.vXO)}, {v(g.AD)}, 40, {v(g.vXO)}",
        f"v_and_b32 {v(g.vOL)}, 0xff, {v(g.vF)}",
        f"v_lshl_add_u32 {v(g.vOL)}, {v(g.AD)}, {9 if Cfg.two else 10}, {v(g.vOL)}",
        f"v_and_b32 {v(g.vFl)}, 31, {v(vL)}",
        f"v_lshlrev_b32 {v(g.vFl)}, 6, {v(g.vFl)}",
        f"v_min_u32 {v(g.vBA)}, {11 if Cfg.med else 9}, {v(vL)}",
        f"v_lshlrev_b32 {v(g.vBA)}, 6, {v(g.vBA)}",
        f"s_lshr_b32 {s(g.sFB)}, {s(g.sRT)}, 3", f"s_lshl_b32 {s(g.sFB)}, {s(g.sFB)}, 10", f"s_add_u32 {s(g.sFB)}, {s(g.sFB)}, {F2B_OFF}",
        f"v_add_u32 {v(g.vBA)}, {s(g.sFB)}, {v(g.vBA)}",
        f"s_lshr_b32 {s(g.sFB)}, s2, 7", f"s_lshl_b32 {s(g.sFB)}, {s(g.sFB)}, 12", f"s_add_u32 {s(g.sFB)}, {s(g.sFB)}, {F4_OFF}",
        f"s_mov_b32 exec_lo, 0\nv_lshl_add_u32 {v(g.vBA)}, {v(vL)}, 6, {s(g.sFB)}\ns_mov_b32 exec_lo, -1",
        f"s_mov_b32 {s(g.sFB)}, 0"]
    groups = g.wdma(0) + g.hload(0) + g.wdma(1) + g.hload(1)
    if pre:
        groups = g.hload(0) + g.hload(1)
        a(f"s_add_u32 {s(g.sW)}, {s(g.sW)}, 40960")
        if Cfg.hpre:
            groups = [[]]
            a(f"s_add_u32 {s(g.sH)}, {s(g.sH)}, 8192")
    per = -(-len(work) // len(groups))
    for gr in groups:
        a.ext(gr); a.ext(work[:per]); work = work[per:]
    a.ext(stores)
    a(f"s_waitcnt vmcnt({(0 if Cfg.hpre else 4) + len(stores) if pre else 9 + len(stores)}) lgkmcnt(0)")

def gen_g2(a, pfx):
    g = G2
    vL, vF, vF2, vW4, vXO, XR, AS, AD, HF, WFS, OF = g.vL, g.vF, g.vF2, g.vW4, g.vXO, g.XR, g.AS, g.AD, g.HF, g.WFS, g.OF
    sRT, sC8, sM, sW, sH, sPB, sFB = g.sRT, g.sC8, g.sM, g.sW, g.sH, g.sPB, g.sFB
    sT0, sT1, sT2, sT3 = g.sT0, g.sT1, g.sT2, g.sT3
    sOL, sF3, sFH = 46, 47, 48
    SETS = (WFS[0], WFS[1], 220, 48, 68)
    T = 88; U = 148
    vFl, vOL = g.vFl, g.vOL
    vFr, vTW, vTR, vO = T + 1, T + 3, T + 4, T + 5
    SX, SO = S_A, S_B
    vm, lg = Trk(), Trk()
    CB = 12
    ool = []
    def loc(st):
        return (2, st - 72) if st >= 72 else ((st >> 2) & 3, st & 3)
    def rd(d, st, mt):
        slot, ks = loc(st)
        base, off = (vF2, 0) if slot == 3 else (vF, slot * 20480)
        lg.add((st, mt))
        a(f"ds_read_b128 {v(d+4*mt,4)}, {v(base)} offset:{off+ks*5120+mt*1024}")
    W = lambda st: [(("W", st), x) for x in g.wdma(st & 3)]
    H = lambda st: [(("H", st), x) for x in g.hload(st & 3)]
    def put(it):
        tag, lines = it
        if callable(lines): lines(); return
        if tag and ((tag[0] == "W" and Cfg.x_d & 1) or (tag[0] == "H" and Cfg.x_d & 2)): lines = [x for x in lines if "buffer_load" not in x]
        if tag and tag[0] in "WH" and Cfg.x_d & 4: lines = [x.replace(" sc1", "") for x in lines]
        a.ext(lines)
        if tag: vm.add(tag)
    def wave0(name, cond, body):
        def f():
            a(f"s_cmp_eq_u32 {s(cond)}, 0"); a(f"s_cbranch_scc1 {pfx}_{name}"); a(f"{pfx}_{name}r:")
            b = Asm(); b(f"{pfx}_{name}:"); body(b); b(f"s_branch {pfx}_{name}r"); ool.append(b)
        return f
    def flag_req(name, vaddr, soff, vres):
        def body(b):
            vm.mark(name)
            b(f"buffer_load_dword {v(vres)}, {'off' if vaddr is None else v(vaddr)}, {s(S_WS,4)}, {s(soff)}{'' if vaddr is None else ' offen'} sc1")
        return wave0("q" + name, S_WV, body)
    def flag_chk(name, vaddr, soff, vres, sleep, prio, st):
        def body(b):
            setprio(b, Cfg.prioGv)
            b(f"s_waitcnt vmcnt({vm.n(name)})")
            b(f"v_cmp_ne_u32 vcc, {v(vres)}, {v(V_NONCE)}")
            b("s_nop 1")
            b(f"s_cbranch_vccz {pfx}_p{name}_ok")
            poll(b, f"{pfx}_p{name}", vaddr, soff, vres, sT2, sleep)
            setprio(b, prio)
            if st: stamp(b, st)
        return wave0("c" + name, S_WV, body)
    for st in range(2):
        for x in W(st) + H(st): vm.add(x[0])
    vm.mark("hst")
    setprio(a, Cfg.prioD)
    a("s_barrier")
    for st in range(2):
        for mt in range(5): rd(WFS[st], st, mt)
    stamp(a, "d_issued")
    sal = lambda *l: (None, list(l))
    xl = [(("X", 0), [f"buffer_load_dwordx{n} {v(XR+o,n)}, {v(vXO)}, {s(SX,4)}, {s(sT3)} offen offset:{4*o}"]) for o, n in ((0, 4), (4, 4), (8, 2))]
    if Cfg.xl: xl = []
    first = {st: W(st + 2) for st in range(11)}
    second = {st: H(st + 2) for st in range(11)}
    second[10] = second[10] + W(13)
    first[11] = W(14) + H(13)[:2]; second[11] = W(15)
    first[12] = xl; second[12] = W(16); first[13] = []
    LG0 = 10
    if Cfg.lead == 1:
        first = {st: H(st + 2) for st in range(11)}; second = {st: W(st + 3) for st in range(11)}
        first[0] = W(2) + H(2)
        first[11] = W(14) + H(13)[:2]; second[11] = W(15); first[12] = xl; second[12] = W(16); first[13] = []
    if Cfg.lead == 2:
        first = {st: W(st + 3) for st in range(13)}; second = {st: H(st + 3) for st in range(10)}
        first[0] = W(2) + H(2); second[0] = W(3) + H(3)
        first[5] = []; second[5] = W(8) + H(8)
        second[10] = H(13)[:2] + xl; second[11] = W(15); first[12] = []; second[12] = W(16); first[13] = []
        LG0 = 0
    pre = {}; post = {}
    post[1] = wave0("pb", sPB, lambda b: (publish(b, 100), stamp(b, "pub2")))
    second[4] = second[4] + [(None, flag_req("2", g.vBA, sFB, g.vBR))]
    pre[5] = flag_chk("2", g.vBA, sFB, g.vBR, Cfg.p2s, Cfg.prioD, "h2_go")
    second[7] += [sal(f"s_lshl_b32 {s(sFH)}, s2, 6", f"s_add_u32 {s(sFH)}, {s(sFH)}, {FH_OFF}",
                      f"s_mul_i32 {s(sT3)}, {s(sRT)}, {16*1280}", f"s_mul_i32 {s(sT1)}, {s(sC8)}, 160", f"s_add_u32 {s(sT3)}, {s(sT3)}, {s(sT1)}")]
    t_ = Asm(); srd(t_, SX, P_X, 2048 * 1280); srd(t_, SO, P_OUT, 2048 * 1280)
    second[8] += [sal(*[x.strip() for x in t_.lines])]
    sOH, sOG = 58, 96
    LS = 256 if Cfg.two else 512
    olb = [f"s_lshr_b32 {s(sT1)}, {s(sRT)}, 1", f"s_lshl_b32 {s(sOL)}, {s(sT1)}, 13", f"s_and_b32 {s(sT0)}, {s(sRT)}, 1",
           f"s_lshl3_add_u32 {s(sOL)}, {s(sT0)}, {s(sOL)}"] if Cfg.two else \
          [f"s_lshr_b32 {s(sT1)}, {s(sRT)}, 2", f"s_lshl_b32 {s(sOL)}, {s(sT1)}, 14", f"s_and_b32 {s(sT0)}, {s(S_WV)}, 1", f"s_lshl_b32 {s(sT0)}, {s(sT0)}, 8",
           f"s_add_u32 {s(sOL)}, {s(sOL)}, {s(sT0)}", f"s_lshr_b32 {s(sT0)}, {s(S_WV)}, 1", f"s_lshl3_add_u32 {s(sOL)}, {s(sT0)}, {s(sOL)}"]
    second[6] += [sal(*olb, f"s_lshr_b32 {s(sT1)}, {s(sRT)}, 2",
                      f"s_lshl_b32 {s(sF3)}, {s(sT1)}, 11", f"s_add_u32 {s(sF3)}, {s(sF3)}, {F3_OFF}", f"s_lshl_b32 {s(sT0)}, {s(sRT)}, 14",
                      *[f"s_add_u32 {s(sOH+gq)}, {s(sT0)}, {O_OFF + 4096*gq}" for gq in range(4)],
                      *[f"s_add_u32 {s(sOG+gq)}, {s(sOL)}, {OL_OFF + 8*LS*gq}" for gq in range(4)])]
    def L(gq):
        return [(("O", 5*gq+i), [f"buffer_load_dwordx4 {v(OF(5*gq+i),4)}, {v(vF)}, {s(S_WS,4)}, {s(sOH+gq)} offen offset:{i*1024} sc1"]) for i in range(4)] + \
               [(("O", 5*gq+4), [f"buffer_load_dwordx2 {v(OF(5*gq+4)+2*i,2)}, {v(g.vOL)}, {s(S_WS,4)}, {s(sOG+gq)} offen offset:{i*LS} sc1"]) for i in range(2)]
    if Cfg.two:
        first[CB] = [(None, flag_req("a", g.vFl, sF3, g.vBR))] + first[CB]
        pre[CB] = flag_chk("a", g.vFl, sF3, g.vBR, Cfg.p2s, Cfg.prioD, "o0_go")
        b0 = L(0) + L(1)
        second[12] = second[12] + b0[:4]; first[13] = b0[4:]
    else:
        first[13] = [(None, flag_req("3", vFl, sF3, vFr))]
    if 0 < Cfg.lag < 4:
        ls = 9 + Cfg.lag
        first[ls] = [(None, flag_req("h", None, sFH, g.vBR))] + first[ls]
        pre[ls] = flag_chk("h", None, sFH, g.vBR, 2, Cfg.prioD, None)
    if Cfg.tc & 2:
        def tb(b):
            setprio(b, Cfg.prioGv); b.ext(touch(f"{pfx}_tc1", f"{pfx}_end", 52, g.vFA, g.vFA)); setprio(b, Cfg.prioD)
            b.lines = [l.replace("s_add_u32 s52, s52, g2_tc1-", "s_sub_u32 s52, s52, @").replace("s_addc_u32 s53", "s_subb_u32 s53") for l in b.lines]
            b.lines = [(l.split("@")[0] + l.split("@")[1] + "-g2_tc1") if "@" in l else l for l in b.lines]
        first[8] = first[8] + [(None, wave0("tc", S_WV, tb))]
    extra = []
    a(f"s_waitcnt lgkmcnt({lg.n((0, 0))})")
    for st in range(14):
        for ks in range(4 if st < 13 else 2):
            k = 4 * st + ks
            if k == 48: a(f"{pfx}_tc1:")
            if ks in (0, 2):
                pend = list((first if ks == 0 else second)[st]); npend = len(pend); done = 0
            for mt in range(5):
                d = WFS[k & 1]
                a(mf16(AD + 4 * mt, d + 4 * mt, HF + 16 * (st & 3) + 4 * ks, "0" if k == 0 else None))
                nxt = (k, mt + 1) if mt < 4 else (k + 1, 0)
                w = [f"lgkmcnt({min(14, lg.n(nxt))})"] if nxt[0] < 54 else []
                if ks == 2 and mt == 0:
                    need = [("W", st + 1)] + (["hst"] if st == 1 else []) + ([("W", 14)] if st == 12 else [])
                    w = [f"vmcnt({min(vm.n(x) for x in need)})"] + (["lgkmcnt(0)"] if st >= LG0 else w)
                    a("s_waitcnt " + " ".join(w))
                    if st in pre: pre[st]()
                    a("s_barrier")
                    if st in post: post[st]()
                    if st == 12: extra = [(SETS[j], 54 + j, m) for j in range(2, 5) for m in range(5)]
                else:
                    if ks == 3 and mt == 4: w = [f"vmcnt({vm.n(('H', st + 1))})"] + w
                    if w: a("s_waitcnt " + " ".join(w))
                rd(d, k + 2, mt)
                if extra: rd(*extra.pop(0))
                pos = 5 * (ks & 1) + mt
                while pend and done * 10 <= pos * npend:
                    put(pend.pop(0)); done += 1
            if ks & 1: assert not pend
    assert not extra
    a(f"{pfx}_tc2:")
    setprio(a, Cfg.prioGv)
    stamp(a, "d_done")
    a(f"s_waitcnt vmcnt({vm.n(('W', 16))}) lgkmcnt(0)")
    a("s_barrier")
    work = []
    for r0 in range(0, 20, 4):
        Z = 44
        work += [f"v_mul_f32 {v(Z+i)}, {f2u(-LOG2E)}, {v(AD+r0+i)}" for i in range(4)]
        work += [f"v_exp_f32 {v(Z+i)}, {v(Z+i)}" for i in range(4)]
        work += [f"v_pk_add_f32 {v(Z+i,2)}, {v(Z+i,2)}, 1.0 op_sel_hi:[1,0]" for i in (0, 2)]
        work += [f"v_rcp_f32 {v(Z+i)}, {v(Z+i)}" for i in range(4)]
        work += [pk("mul", AD + r0 + i, [AD + r0 + i, Z + i]) for i in (0, 2)]
    def w18():
        a(f"s_cmp_ge_u32 {s(S_WV)}, 2")
        a(f"s_cbranch_scc1 {pfx}_now5")
        for x in g.wdma(2): a.ext(x)
        a(f"{pfx}_now5:")
        vm.mark("w18")
    if not Cfg.sls:
        for i, it in enumerate(W(17)):
            put(it); a.ext(work[16*i:16*i+16])
        w18(); work = []
    setprio(a, Cfg.prioT)
    SCR = 2 * 20480 + 2 * 5120
    vZ = 42
    adr = [f"s_add_u32 {s(sF3)}, {s(sF3)}, {65536 if Cfg.two else 0}",
           f"v_lshrrev_b32 {v(vTW)}, 4, {v(vL)}", f"v_and_b32 {v(vTR)}, 0xff, {v(vF)}",
           f"s_mul_i32 {s(sT0)}, {s(S_WV)}, 2560", f"s_add_u32 {s(sT0)}, {s(sT0)}, {SCR}",
           f"v_mul_u32_u24 {v(vTR)}, 10, {v(vTR)}", f"v_mad_u32_u24 {v(vTW)}, {v(vTW)}, 40, {v(vTR)}", f"v_add_u32 {v(vTW)}, {s(sT0)}, {v(vTW)}",
           f"v_add_u32 {v(vTR)}, {s(sT0)}, {v(vF)}", f"s_movk_i32 {s(sT1)}, 1120"]
    for i in range(3):
        adr += [f"v_add_u32 {v(vO+i)}, {64*i}, {v(vL)}", f"v_mul_u32_u24 {v(vZ)}, 6554, {v(vO+i)}", f"v_lshrrev_b32 {v(vZ)}, 16, {v(vZ)}",
                f"v_lshlrev_b32 {v(vO+i)}, 4, {v(vO+i)}", f"v_mad_u32_u24 {v(vO+i)}, {v(vZ)}, {s(sT1)}, {v(vO+i)}"]
    stamp(a, "wo_ready")
    ol = W(17) + [(None, w18)] if Cfg.sls else []
    order = [(k, mt) for k in range(15) for mt in range(5)] + [(k, mt) for mt in range(5) for k in range(15, 20)]
    posn = {x: n for n, x in enumerate(order)}
    reads = sorted(((k, mt) for k in range(5, 20) for mt in range(5)), key=lambda x: posn[x])
    NB = Cfg.nb
    unp = [f"v_lshlrev_b32 {v(U+2*j)}, 16, {v(XR+j)}" if h == 0 else f"v_and_b32 {v(U+2*j+1)}, 0xffff0000, {v(XR+j)}" for j in range(10) for h in range(2)]
    def fin(mt):
        return [f"v_fma_f32 {v(U+4*mt+i)}, {v(AS+4*mt+i)}, {v(AD+4*mt+i)}, {v(U+4*mt+i)}" for i in range(4)] + \
               [f"v_cvt_pk_bf16_f32 {v(XR+2*mt+j)}, {v(U+4*mt+2*j)}, {v(U+4*mt+2*j+1)}" for j in range(2)]
    fq = []; nread = 0
    def wr(mt):
        lg.add(("w", mt)); a(f"ds_write_b64 {v(vTW)}, {v(XR+2*mt,2)} offset:{8*mt}")
    if not Cfg.two:
        for it in ol:
            put(it); a.ext(adr[:5]); adr = adr[5:]
        a.ext(adr); adr = []
        flag_chk("3", vFl, sF3, vFr, Cfg.p3s, Cfg.prioGv, None)()
        a("s_barrier")
        stamp(a, "o_go")
        ol = L(0) + L(1) + L(2) + L(3)
        per = -(-len(work) // Cfg.onl)
        for i in range(Cfg.onl):
            put(ol.pop(0))
            if i >= Cfg.sl0: a.ext(work[:per]); work = work[per:]
        a.ext(work)
    a(f"s_waitcnt vmcnt({vm.n(('O', 0))})")
    if not Cfg.two: stamp(a, "o_first")
    seenO = {0, 10} if Cfg.two else {0}
    unp = adr + unp
    XN = 50 if Cfg.two else 56
    for n, (k, mt) in enumerate(order):
        if n == XN and Cfg.xl and not Cfg.two:
            a(f"s_waitcnt vmcnt({vm.n('X')})")
            for m in range(5):
                lg.add(("x", m)); a(f"ds_read_b64 {v(XR+2*m,2)}, {v(vTW)} offset:{8*m}")
        if n == 50 and Cfg.two:
            for x in [x for x in reads if x[0] < 15]:
                reads.remove(x); rd(SETS[x[0] % 5], 54 + x[0], x[1]); nread += 1
            if not Cfg.xl: a.ext(unp); unp = []
            setprio(a, Cfg.prioGv)
            stamp(a, "o_mid")
            flag_chk("3", vFl, sF3, vFr, Cfg.p3s, Cfg.prioGv, None)()
            a("s_barrier")
            stamp(a, "o_go")
            ol = L(2) + L(3)
            per = -(-len(work) // Cfg.onl)
            for i in range(Cfg.onl):
                put(ol.pop(0))
                if i >= Cfg.sl0: a.ext(work[:per]); work = work[per:]
            a.ext(work)
            a(f"s_waitcnt vmcnt({vm.n(('O', 10))})")
            stamp(a, "o_first")
            if Cfg.xl:
                for m in range(5):
                    lg.add(("x", m)); a(f"ds_read_b64 {v(XR+2*m,2)}, {v(vTW)} offset:{8*m}")
        a(mf16(AS + 4 * mt, SETS[k % 5] + 4 * mt, OF(k), "0" if k == 0 else None))
        w = []
        if n < 99:
            k2, m2 = order[n + 1]
            if k2 not in seenO: w.append(f"vmcnt({vm.n(('O', k2))})"); seenO.add(k2)
            if n == NB: w.append(f"vmcnt({vm.n('w18')})")
            if k2 >= 5: w.append(f"lgkmcnt({min(14, lg.n((54 + k2, m2)), lg.n(('x', 4)) if (Cfg.xl and n == XN + 7) else 14)})")
        if w: a("s_waitcnt " + " ".join(w))
        if n == NB: a("s_barrier")
        if n == NB + 1 and Cfg.two: flag_req("3", vFl, sF3, vFr)()
        if Cfg.xl and n in (NB + 2, NB + 4, NB + 6):
            i = (n - NB - 2) // 2
            assert len(unp) <= 20
            a(f"s_add_u32 m0, {s(sT0)}, {i*1024}")
            a("s_mov_b32 exec_hi, 0" if i == 2 else "s_nop 0")
            a(f"buffer_load_dwordx4 {v(vO+i)}, {s(SX,4)}, {s(sT3)} offen lds"); vm.add("X")
            if i == 2: a("s_mov_b32 exec_hi, -1")
        slots = 2
        ok = [x for x in reads if posn[(x[0] - 5, x[1])] <= n and (x[0] < 14 or n >= NB)]
        if ok and ((n >= 50 and Cfg.two) or nread * Cfg.rpn <= n * 10 or posn[ok[0]] - n <= 10):
            x = ok[0]; reads.remove(x); rd(SETS[x[0] % 5], 54 + x[0], x[1]); nread += 1; slots -= 1
        if ol and n % (Cfg.oln if (n >= 50 or not Cfg.two) else 3) == 0:
            put(ol.pop(0)); slots -= 1
        if n >= 83 and (n - 83) % 5 == 0: fq += fin((n - 83) // 5) + [(n - 83) // 5]
        while slots > 0 and ((unp and (len(unp) > 20 or n >= (XN + 7 if Cfg.xl else 26))) or fq):
            x = unp.pop(0) if unp else fq.pop(0)
            if isinstance(x, int): wr(x)
            else: a(x)
            slots -= 1
    assert not reads and not ol and not unp
    stamp(a, "wo_done")
    for x in fq:
        if isinstance(x, int): wr(x)
        else: a(x)
    a("s_nop 2")
    a.ext(fin(4)); wr(4)
    for i in range(3): a(f"ds_read_b128 {v(U+4*i,4)}, {v(vTR)} offset:{i*1024}")
    for i in range(3):
        a(f"s_waitcnt lgkmcnt({2-i})")
        if Cfg.diag and i == 0:
            a(f"s_or_b32 {s(sT0)}, s2, {s(S_WV)}")
            a(f"s_cmp_lg_u32 {s(sT0)}, 0")
            a(f"s_cbranch_scc1 {pfx}_nodiag")
            a("s_waitcnt lgkmcnt(0)")
            a(f"s_add_u32 s52, {s(P_WS)}, 0x8000000")
            a(f"s_addc_u32 s53, {s(P_WS+1)}, 0")
            a("s_load_dwordx2 s[60:61], s[52:53], 0")
            a("s_memrealtime s[58:59]")
            a("s_waitcnt lgkmcnt(0)")
            a("s_cmp_eq_u32 s60, s61")
            a(f"s_cbranch_scc1 {pfx}_nodiag")
            a("s_getreg_b32 s60, hwreg(HW_REG_XCC_ID)")
            a("s_and_b32 s60, s60, 15")
            a(f"v_lshlrev_b32 v200, 6, {v(vL)}")
            a(f"s_mov_b32 s61, {FH_OFF + 4}")
            a(f"buffer_load_dword v201, v200, {s(S_WS,4)}, s61 offen sc1")
            a("s_waitcnt vmcnt(0)")
            for x in range(8): a(f"v_readlane_b32 {s(70+x)}, v201, {x}")
            a("s_nop 3")
            a("s_mov_b32 s80, s70"); a("s_mov_b32 s81, s70"); a("s_mov_b32 s82, 0")
            for x in range(1, 8):
                a(f"s_min_u32 s80, s80, {s(70+x)}")
                a(f"s_cmp_gt_u32 {s(70+x)}, s81"); a(f"s_cselect_b32 s82, {x*100}, s82")
                a(f"s_max_u32 s81, s81, {s(70+x)}")
            d = Cfg.diag
            if d == 1: a("s_mul_i32 s60, s60, 100")
            if d == 2: a("s_sub_u32 s60, 7, s60"); a("s_mul_i32 s60, s60, 100")
            if d == 3: a("s_sub_u32 s60, s81, s80")
            if d == 4: a("s_sub_u32 s60, s70, s80")
            if d == 5: a("s_mov_b32 s60, s82")
            if d == 6: a("s_sub_u32 s60, s58, s80")
            a("s_mov_b64 exec, 1")
            a(f"v_cvt_f32_u32 v200, s60")
            a(f"v_mul_f32 v200, {f2u(0.01)}, v200")
            a(f"v_add_f32 v200, 4.0, v200")
            a(f"v_cvt_pk_bf16_f32 {v(U)}, v200, v200")
            a("s_mov_b64 exec, -1")
            a(f"{pfx}_nodiag:")
        if i == 2: a("s_mov_b32 exec_hi, 0")
        a(f"buffer_store_dwordx4 {v(U+4*i,4)}, {v(vO+i)}, {s(SO,4)}, {s(sT3)} offen" + ("", " sc1", " nt", " sc0 sc1")[Cfg.ost])
    a(f"s_branch {pfx}_end")
    for b in ool: a.lines += b.lines
    a(f"{pfx}_end:")


class K2:
    vL, vF, vF2, vW4, vXO = 1, 2, 3, 4, 5
    vBA, vBR, vFA, vFR, vFl = 6, 10, 7, 8, 0
    vH = 12
    AD, BUF, XR = 16, 96, 240
    sRT, sC8, sM, sW, sH, sPB, sWo = 41, 42, 43, 44, 45, 49, 50
    sT0, sT1, sT2, sT3 = 54, 55, 56, 57
    @staticmethod
    def loads(j):
        g = K2; b = g.BUF + 36 * (j % Cfg.skn); o = []
        for i in range(5):
            o.append([f"buffer_load_dwordx4 {v(b+16+4*i,4)}, {v(g.vF if i < 4 else g.vW4)}, {s(S_WS,4)}, {s(g.sW)} offen offset:{(i&3)*1024 if i < 4 else 0} sc1"])
            if i < 4: o.append([f"buffer_load_dwordx4 {v(b+4*i,4)}, {v(g.vH+i)}, {s(S_WS,4)}, {s(g.sH)} offen sc1"])
        o[-1] += [f"s_add_u32 {s(g.sW)}, {s(g.sW)}, 20480", f"s_add_u32 {s(g.sH)}, {s(g.sH)}, 4096"]
        return o

def k2_start(a, pfx, valu, stores):
    g = K2
    vL, sT0, sT1, sT2 = g.vL, g.sT0, g.sT1, g.sT2
    a(f"s_lshr_b32 {s(g.sC8)}, s2, 5")
    a(f"s_and_b32 {s(sT1)}, s2, 7")
    a(f"s_bfe_u32 {s(sT0)}, s2, {3 | (2<<16)}")
    a(f"s_lshl2_add_u32 {s(g.sRT)}, {s(sT1)}, {s(sT0)}")
    a(f"s_mul_i32 {s(g.sW)}, {s(g.sC8)}, {74*5120}")
    a(f"s_mul_i32 {s(g.sM)}, {s(S_WV)}, 5120")
    a(f"s_add_u32 {s(g.sW)}, {s(g.sW)}, {s(g.sM)}")
    a(f"s_add_u32 {s(g.sW)}, {s(g.sW)}, {WR_OFF}")
    a(f"s_add_u32 {s(g.sWo)}, {s(g.sW)}, {54*5120}")
    a(f"s_mul_i32 {s(g.sH)}, {s(g.sRT)}, {4*55296}")
    a(f"s_lshl_b32 {s(sT0)}, {s(S_WV)}, 10")
    a(f"s_add_u32 {s(g.sH)}, {s(g.sH)}, {s(sT0)}")
    a(f"s_add_u32 {s(g.sH)}, {s(g.sH)}, {H_OFF}")
    a(f"v_lshlrev_b32 {v(g.vF)}, 4, {v(vL)}")
    a(f"v_add_u32 {v(g.vW4)}, 4096, {v(g.vF)}")
    for i in range(4):
        a(f"s_add_u32 {s(sT0)}, {s(S_WV)}, {i}")
        a(f"s_and_b32 {s(sT0)}, {s(sT0)}, 3")
        a(f"s_mul_i32 {s(sT0)}, {s(sT0)}, 55296")
        a(f"v_add_u32 {v(g.vH+i)}, {s(sT0)}, {v(g.vF)}")
    a(f"s_mov_b32 {s(sT0)}, 0")
    a(f"s_cmp_eq_u32 {s(S_WV)}, 0")
    a(f"s_cselect_b32 {s(g.sPB)}, {0 if valu else -1}, -1")
    a("s_waitcnt vmcnt(0) lgkmcnt(0)")
    a(f"s_cbranch_scc0 {pfx}_p4_ok")
    a(f"v_cmp_ne_u32 vcc, {v(g.vFR)}, {v(V_NONCE)}")
    a("s_nop 1")
    a(f"s_cbranch_vccz {pfx}_p4_ok")
    poll(a, f"{pfx}_p4", g.vFA, sT0, g.vFR, sT2, Cfg.p4s)
    a("s_barrier")
    stamp(a, "h_go")
    work = list(valu) + [
        f"v_add_u32 {v(g.vF2)}, {3*20480}, {v(g.vF)}",
        f"v_and_b32 {v(g.vFR)}, 15, {v(vL)}",
        f"v_mul_u32_u24 {v(g.vXO)}, 1280, {v(g.vFR)}",
        f"v_lshrrev_b32 {v(g.vFR)}, 4, {v(vL)}",
        f"v_mad_u32_u24 {v(g.vXO)}, {v(g.vFR)}, 40, {v(g.vXO)}",
        f"v_and_b32 {v(g.vFl)}, 31, {v(vL)}",
        f"v_lshlrev_b32 {v(g.vFl)}, 6, {v(g.vFl)}",
        f"v_min_u32 {v(g.vBA)}, 11, {v(vL)}",
        f"s_lshr_b32 {s(sT0)}, {s(g.sRT)}, 1", f"s_lshl_b32 {s(sT0)}, {s(sT0)}, 10", f"s_add_u32 {s(sT0)}, {s(sT0)}, {F2B_OFF}",
        f"v_lshl_add_u32 {v(g.vBA)}, {v(g.vBA)}, 6, {s(sT0)}",
        f"s_lshr_b32 {s(sT0)}, s2, 7", f"s_lshl_b32 {s(sT0)}, {s(sT0)}, 12", f"s_add_u32 {s(sT0)}, {s(sT0)}, {F4_OFF}",
        f"s_mov_b32 exec_lo, 0\nv_lshl_add_u32 {v(g.vBA)}, {v(vL)}, 6, {s(sT0)}\ns_mov_b32 exec_lo, -1"]
    if Cfg.sks == 0:
        parts = [(g.loads(0) + g.loads(1), work, stores)]
    else:
        parts = [(g.loads(0), work[:len(valu)], stores), (g.loads(1), work[len(valu):], [])]
    for groups, wk, st in parts:
        per = -(-len(wk) // len(groups))
        for gr in groups:
            a.ext(gr); a.ext(wk[:per]); wk = wk[per:]
        a.ext(st)
    a(f"s_waitcnt vmcnt({9 + len(stores)})")

def gen_k2(a, pfx):
    g = K2
    vL, vF, vF2, vW4, vXO, XR, AD, vFl = g.vL, g.vF, g.vF2, g.vW4, g.vXO, g.XR, g.AD, g.vFl
    sRT, sC8, sM, sPB, sWo = g.sRT, g.sC8, g.sM, g.sPB, g.sWo
    sT0, sT1, sT2, sT3 = g.sT0, g.sT1, g.sT2, g.sT3
    sOL, sF3, sZ, sOH, sOG = 46, 47, 48, 58, 96
    AS = 36; RT = 176
    SETS = (96, 116, 136, 156, 76)
    OF = lambda k: 216 + 4 * k if k < 6 else 56 + 4 * (k - 6) if k < 10 else 176 + 4 * (k - 10)
    U = 216; Z = 72
    TWO = Cfg.two; LS = 256 if TWO else 512
    F = Cfg.skf
    if F:
        assert not TWO and Cfg.skn == 3
        SETS = (76, 56, 96, 116, 136); OF = lambda k: 156 + 4 * k; U = 156; Z = 236
    vFr, vOL, vTW, vTR, vO = 8, 9, 250, 251, 252
    SX, SO = S_A, S_B
    NS = Cfg.skn
    vm, lg = Trk(), Trk()
    ool = []
    def put(it):
        tag, lines = it
        if callable(lines): lines(); return
        a.ext(lines)
        if tag: vm.add(tag)
    def wave0(name, cond, body):
        def f():
            a(f"s_cmp_eq_u32 {s(cond)}, 0"); a(f"s_cbranch_scc1 {pfx}_{name}"); a(f"{pfx}_{name}r:")
            b = Asm(); b(f"{pfx}_{name}:"); body(b); b(f"s_branch {pfx}_{name}r"); ool.append(b)
        return f
    def flag_req(name, vaddr, soff, vres):
        def body(b):
            vm.mark(name); b(f"buffer_load_dword {v(vres)}, {v(vaddr)}, {s(S_WS,4)}, {s(soff)} offen sc1")
        return wave0("q" + name, S_WV, body)
    def flag_chk(name, vaddr, soff, vres, sleep, prio, st):
        def body(b):
            setprio(b, Cfg.prioGv)
            b(f"s_waitcnt vmcnt({vm.n(name)})")
            b(f"v_cmp_ne_u32 vcc, {v(vres)}, {v(V_NONCE)}")
            b("s_nop 1")
            b(f"s_cbranch_vccz {pfx}_p{name}_ok")
            poll(b, f"{pfx}_p{name}", vaddr, soff, vres, sT2, sleep, g.vBR if (name == "3" and Cfg.pp3) else None)
            setprio(b, prio)
            if st: stamp(b, st)
        return wave0("c" + name, S_WV, body)
    def wo_dma(stage, slot):
        o = [[f"s_add_u32 m0, {s(sM)}, {slot*20480}", "s_nop 0"]]
        for i in range(4): o.append([f"buffer_load_dwordx4 {v(vF)}, {s(S_WS,4)}, {s(sWo)} offen offset:{i*1024} sc1 lds"])
        o[0] += o.pop(1)
        o.append([f"s_add_u32 m0, {s(sM)}, {slot*20480+4096}", "s_nop 0",
                  f"buffer_load_dwordx4 {v(vW4)}, {s(S_WS,4)}, {s(sWo)} offen sc1 lds", f"s_add_u32 {s(sWo)}, {s(sWo)}, 20480"])
        return [(("wo", stage), x) for x in o]
    def rd(d, j, mt):
        off = (j * 5120 if j < 12 else (j - 16) * 5120 if j >= 16 else (j - 12) * 5120) + mt * 1024
        lg.add((j, mt))
        a(f"ds_read_b128 {v(d+4*mt,4)}, {v(vF2 if ((j >= 16) if F else (12 <= j < 16)) else vF)} offset:{off}")
    B = lambda j: [(("B", j), x) for x in g.loads(j)]
    sal = lambda *l: (None, list(l))
    for j in range(2):
        for x in B(j): vm.add(x[0])
        if j == 1 - min(Cfg.sks, 1): vm.mark("hst")
    setprio(a, Cfg.prioD)
    LD = NS - 1
    PJ = Cfg.skp2
    items = {j: (B(j + LD) if j + LD < 13 else []) for j in range(14)}
    if NS == 4: items[0] = B(2) + B(3)
    def last_loads():
        a(f"s_cmp_ge_u32 {s(S_WV)}, 2"); a(f"s_cbranch_scc1 {pfx}_nl13")
        for x in g.loads(13): a.ext(x)
        a(f"{pfx}_nl13:"); vm.mark("B13")
    items[13 - LD] = [(None, last_loads)]
    if F:
        ll = [sal(f"s_and_b32 {s(sT0)}, {s(S_WV)}, 2", f"s_mul_i32 {s(sT1)}, {s(sT0)}, 5120", f"s_sub_u32 {s(g.sW)}, {s(g.sW)}, {s(sT1)}",
                  f"s_lshl_b32 {s(sT0)}, {s(sT0)}, 10", f"s_sub_u32 {s(g.sH)}, {s(g.sH)}, {s(sT0)}")]
        for n_, x in enumerate(g.loads(13)):
            if n_ in (5, 7): continue
            if n_ in (1, 3): x = [x[0].replace(v(132 + 2 * (n_ - 1), 4), v(140 + 2 * (n_ - 1), 4))]
            ll.append(("B13", x))
        items[11] = ll
    CJ = 8 - LD
    GJ = Cfg.gj
    if Cfg.cj0: CJ = GJ
    t_ = Asm(); srd(t_, SX, P_X, 2048 * 1280); srd(t_, SO, P_OUT, 2048 * 1280)
    setup = [sal(f"s_mov_b32 {s(sZ)}, 0", *[x.strip() for x in t_.lines])]
    setup += [sal(f"s_lshl_b32 {s(sOL)}, {s(sRT)}, 14", f"s_and_b32 {s(sT0)}, {s(S_WV)}, 1", f"s_lshl_b32 {s(sT0)}, {s(sT0)}, {3 if TWO else 8}",
                     f"s_add_u32 {s(sOL)}, {s(sOL)}, {s(sT0)}", f"s_lshr_b32 {s(sT0)}, {s(S_WV)}, 1", f"s_lshl_b32 {s(sT0)}, {s(sT0)}, {13 if TWO else 3}",
                     f"s_add_u32 {s(sOL)}, {s(sOL)}, {s(sT0)}",
                     f"s_lshl_b32 {s(sF3)}, {s(sRT)}, 11", f"s_add_u32 {s(sF3)}, {s(sF3)}, {F3_OFF}",
                     f"s_lshl2_add_u32 {s(sRT)}, {s(sRT)}, {s(S_WV)}", f"s_lshl_b32 {s(sT0)}, {s(sRT)}, 14",
                     *[f"s_add_u32 {s(sOH+q)}, {s(sT0)}, {O_OFF + 4096*q}" for q in range(4)],
                     *[f"s_add_u32 {s(sOG+q)}, {s(sOL)}, {OL_OFF + 8*LS*q}" for q in range(4)],
                     f"s_mul_i32 {s(sT3)}, {s(sRT)}, {16*1280}", f"s_mul_i32 {s(sT1)}, {s(sC8)}, 160", f"s_add_u32 {s(sT3)}, {s(sT3)}, {s(sT1)}")]
    if CJ >= 3:
        items[1].append(setup[0]); items[2].append(setup[1]); setup = []
        items[CJ - 1] = [(None, flag_req("2", g.vBA, sZ, g.vBR))] + items[CJ - 1]
    for it in setup: put(it)
    xl = [(("X", 0), [f"buffer_load_dwordx{n} {v(XR+o,n)}, {v(vXO)}, {s(SX,4)}, {s(sT3)} offen offset:{4*o}"]) for o, n in ((0, 4), (4, 4), (8, 2))]
    late = wo_dma(0, 0) + wo_dma(1, 1) + wo_dma(2, 2) + xl
    if GJ >= CJ: pass
    elif Cfg.skl == 0:
        items[13 - LD] += late[:5]; items[12] += late[5:] if LD == 2 else late[12:]
        if LD == 3: items[11] += late[5:12]
    else:
        js = list(range(CJ + Cfg.skl - 1, 12))
        for i, it in enumerate(late[:15]): items[js[i * len(js) // 15]].append(it)
        items[11 if F else 12] += late[15:]
    def L(q):
        return [(("O", 5*q+i), [f"buffer_load_dwordx4 {v(OF(5*q+i),4)}, {v(vF)}, {s(S_WS,4)}, {s(sOH+q)} offen offset:{i*1024} sc1"]) for i in range(4)] + \
               [(("O", 5*q+4), [f"buffer_load_dwordx2 {v(OF(5*q+4)+2*i,2)}, {v(vOL)}, {s(S_WS,4)}, {s(sOG+q)} offen offset:{i*LS} sc1"]) for i in range(2)]
    if TWO: items[12] = [(None, flag_req("a", vFl, sF3, vFr))] + items[12]
    if Cfg.tc & 2:
        def tb(b):
            setprio(b, Cfg.prioGv); b.ext(touch(f"{pfx}_tc1", f"{pfx}_end", 52, g.vFA, g.vFA)); setprio(b, Cfg.prioD)
            b.lines = [l.replace("s_add_u32 s52, s52, g2_tc1-", "s_sub_u32 s52, s52, @").replace("s_addc_u32 s53", "s_subb_u32 s53") for l in b.lines]
            b.lines = [(l.split("@")[0] + l.split("@")[1] + "-g2_tc1") if "@" in l else l for l in b.lines]
        items[8] += [(None, wave0("tc", S_WV, tb))]
    for j in range(12 if F else 14):
        b = g.BUF + 36 * (j % NS)
        if j == 13:
            a(f"{pfx}_tc1:")
            a(f"s_cmp_ge_u32 {s(S_WV)}, 2"); a(f"s_cbranch_scc1 {pfx}_ddone")
        if j > 0 or PJ == 0:
            a(f"s_waitcnt vmcnt({min(vm.n(('B', j) if j < 13 else 'B13'), vm.n('hst') if j == PJ else 63)})")
        if j == 0: stamp(a, "d_issued")
        if j == PJ:
            a("s_barrier"); wave0("pb", sPB, lambda b_: (publish(b_, 100), stamp(b_, "pub2")))()
        if j == GJ and j < CJ:
            for it in items[j]: put(it)
            items[j] = []
        if j == CJ:
            if CJ < 3: flag_req("2", g.vBA, sZ, g.vBR)()
            flag_chk("2", g.vBA, sZ, g.vBR, Cfg.p2s, Cfg.prioD, "h2_go")(); a("s_barrier")
        if j == GJ:
            for it in items[j] + (late if GJ >= CJ else []): put(it)
            items[j] = []
            def gw(b):
                setprio(b, Cfg.prioGv)
                b(f"s_lshl_b32 {s(sT0)}, s2, 7"); b(f"s_add_u32 {s(sT0)}, {s(sT0)}, {FP_OFF}")
                b("s_mov_b64 exec, 1")
                poll(b, f"{pfx}_pg", None, sT0, g.vBR, sT2, Cfg.phs)
                b("s_mov_b64 exec, -1")
                setprio(b, Cfg.prioD); stamp(b, "g_go")
            wave0("gw", S_WV, gw)(); a("s_barrier")
        pend = list(items[j]); npend = len(pend); done = 0
        prs = [(i, mt) for i in range(4) for mt in range(5)] if Cfg.sko == 0 else [(i, mt) for mt in range(5) for i in range(4)]
        if Cfg.snk:
            prs = [(i, mt if i % 2 == 0 else 4 - mt) for i in range(4) for mt in range(5)]
            if j & 1: prs = prs[::-1]
        if j >= 12: prs = [(i, mt) for i in (1, 2, 3, 0) for mt in range(5)]
        for n, (i, mt) in enumerate(prs):
            a(mf16(AD + 20 * i + 4 * mt, b + 16 + 4 * mt, b + 4 * i, "0" if j == 0 else None))
            while pend and done * 20 <= n * npend:
                put(pend.pop(0)); done += 1
        assert not pend
    if F:
        a(f"{pfx}_tc1:")
        vRA = (vO, vO + 1, vO + 2)
        setprio(a, Cfg.prioGv)
        a(f"v_add_u32 {v(vTW)}, {s(sM)}, {v(vF2)}")
        for r in range(1, 4):
            a(f"s_sub_u32 {s(sT0)}, {s(S_WV)}, {r}")
            a(f"s_and_b32 {s(sT0)}, {s(sT0)}, 3")
            a(f"s_mul_i32 {s(sT0)}, {s(sT0)}, 5120")
            a(f"v_add_u32 {v(vRA[r-1])}, {s(sT0)}, {v(vF2)}")
        setprio(a, Cfg.prioD)
        RR = {3: 176, 2: 196, 1: 216}
        wrt = lambda r: [[f"ds_write_b128 {v(vTW)}, {v(AD+20*r+4*mt,4)} offset:{mt*1024}"] for mt in range(5)]
        rdt = lambda r: [f"ds_read_b128 {v(RR[r]+4*mt,4)}, {v(vRA[r-1])} offset:{mt*1024}" for mt in range(5)]
        bar = ["s_waitcnt lgkmcnt(0)", "s_barrier"]
        def sets(j): return lambda: [rd(SETS[j], j, mt) for mt in range(5)]
        ev = {n_: [] for n_ in range(30)}
        for i_, x in enumerate(wrt(3)): ev[12 + i_ // 2] += x
        ev[15] += [f"s_waitcnt vmcnt({vm.n(('wo', 2))}) lgkmcnt(0)", "s_barrier"] + rdt(3) + [sets(0)]
        ev[18] += bar
        for i_, x in enumerate(wrt(2)): ev[18 + i_ // 2] += x
        ev[19] += [f"s_waitcnt vmcnt({vm.n('B13')})"]
        ev[22] += bar + rdt(2) + [sets(1), sets(2)]
        ev[27] += bar + [sets(3)]
        a(f"s_waitcnt vmcnt({vm.n(('B', 12))})")
        seq = [(96, 96 + 4 * i, i, mt) for i in (3, 2, 1, 0) for mt in range(5)] + [(132, 140 + 4 * i, i, mt) for i in (1, 0) for mt in range(5)]
        for n_, (b, h, i, mt) in enumerate(seq):
            a(mf16(AD + 20 * i + 4 * mt, b + 16 + 4 * mt, h))
            for x in ev[n_]:
                if callable(x): x()
                else: a(x)
        setprio(a, Cfg.prioR)
        stamp(a, "d_done")
        for x in wrt(1): a.ext(x)
        sets(4)()
        flag_req("3", vFl, sF3, vFr)()
        for i in range(0, 20, 2): a(f"v_pk_add_f32 {v(RR[3]+i,2)}, {v(RR[3]+i,2)}, {v(RR[2]+i,2)}")
        a.ext(bar + rdt(1))
        for n_, it in enumerate(wo_dma(3, 0)):
            put(it)
            for i in (4 * n_, 4 * n_ + 2): a(f"v_pk_add_f32 {v(AD+i,2)}, {v(AD+i,2)}, {v(RR[3]+i,2)}")
        a(f"v_lshrrev_b32 {v(vTR)}, 4, {v(vL)}")
        a(f"v_and_b32 {v(vOL)}, 0xff, {v(vF)}")
        a(f"v_lshl_add_u32 {v(vOL)}, {v(vTR)}, 10, {v(vOL)}")
        RT = RR[1]
    else:
        a(f"{pfx}_ddone:")
        setprio(a, Cfg.prioR)
        stamp(a, "d_done")
        a(f"v_add_u32 {v(vTW)}, {s(sM)}, {v(vF2)}")
        a(f"v_lshrrev_b32 {v(vTR)}, 4, {v(vL)}")
        a(f"v_and_b32 {v(vOL)}, 0xff, {v(vF)}")
        a(f"v_lshl_add_u32 {v(vOL)}, {v(vTR)}, {9 if TWO else 10}, {v(vOL)}")
        wr_ = [(j, mt) for j in range(5) for mt in range(5)]
        for r in range(1, 4):
            a(f"s_sub_u32 {s(sT0)}, {s(S_WV)}, {r}")
            a(f"s_and_b32 {s(sT0)}, {s(sT0)}, 3")
            a(f"s_mul_i32 {s(sT0)}, {s(sT0)}, 5120")
            a(f"v_add_u32 {v(vTR)}, {s(sT0)}, {v(vF2)}")
            for mt in range(5): a(f"ds_write_b128 {v(vTW)}, {v(AD+20*r+4*mt,4)} offset:{mt*1024}")
            if r > 1:
                for i in range(0, 20, 2): a(f"v_pk_add_f32 {v(AD+i,2)}, {v(AD+i,2)}, {v(RT+20*(r&1)+i,2)}")
            a("s_waitcnt " + (f"vmcnt({vm.n(('wo', 2))}) " if r == 1 else "") + "lgkmcnt(0)")
            if r == 1 and TWO: flag_chk("a", vFl, sF3, vFr, Cfg.p2s, Cfg.prioR, "o0_go")()
            a("s_barrier")
            for mt in range(5): a(f"ds_read_b128 {v(RT+20*((r+1)&1)+4*mt,4)}, {v(vTR)} offset:{mt*1024}")
            for j, mt in wr_[10*(r-1):10*r]: rd(SETS[j], j, mt)
            if TWO:
                for it in (L(0) + L(1))[4*(r-1):4*r]: put(it)
            if r == 3 and not TWO: flag_req("3", vFl, sF3, vFr)()
            a("s_waitcnt lgkmcnt(0)")
            a("s_barrier")
    SCR = 20480
    adr = [f"v_pk_add_f32 {v(AD+i,2)}, {v(AD+i,2)}, {v(RT+i,2)}" for i in range(0, 20, 2)] + [
           f"v_lshrrev_b32 {v(vTW)}, 4, {v(vL)}", f"v_and_b32 {v(vTR)}, 0xff, {v(vF)}", f"s_add_u32 {s(sF3)}, {s(sF3)}, {65536 if TWO else 0}",
           f"s_mul_i32 {s(sT0)}, {s(S_WV)}, 2560", f"s_add_u32 {s(sT0)}, {s(sT0)}, {SCR}",
           f"v_mul_u32_u24 {v(vTR)}, 10, {v(vTR)}", f"v_mad_u32_u24 {v(vTW)}, {v(vTW)}, 40, {v(vTR)}", f"v_add_u32 {v(vTW)}, {s(sT0)}, {v(vTW)}",
           f"v_add_u32 {v(vTR)}, {s(sT0)}, {v(vF)}", f"s_movk_i32 {s(sT1)}, 1120"]
    for i in range(3):
        adr += [f"v_add_u32 {v(vO+i)}, {64*i}, {v(vL)}", f"v_mul_u32_u24 {v(Z)}, 6554, {v(vO+i)}", f"v_lshrrev_b32 {v(Z)}, 16, {v(Z)}",
                f"v_lshlrev_b32 {v(vO+i)}, 4, {v(vO+i)}", f"v_mad_u32_u24 {v(vO+i)}, {v(Z)}, {s(sT1)}, {v(vO+i)}"]
    wl = wo_dma(3, 3) + wo_dma(4, 0)
    if F:
        a.ext(["s_waitcnt lgkmcnt(0)", "s_barrier"]); wl = wo_dma(4, 3)
    if not TWO:
        for it in wl:
            put(it); a.ext(adr[:40 // len(wl)]); adr = adr[40 // len(wl):]
        a.ext(adr); adr = []; wl = []
    else:
        a.ext(adr[:10]); adr = adr[10:]
    stamp(a, "wo_ready")
    def go(groups, first):
        setprio(a, Cfg.prioGv)
        if TWO: a(f"s_waitcnt vmcnt({vm.n(('wo', 4))})")
        flag_chk("3", vFl, sF3, vFr, Cfg.p3s, Cfg.prioGv, None)()
        a("s_barrier")
        stamp(a, "o_go")
        work = []
        for r0 in range(0, 20, 4):
            work += [f"v_mul_f32 {v(Z+i)}, {f2u(-LOG2E)}, {v(AD+r0+i)}" for i in range(4)]
            work += [f"v_exp_f32 {v(Z+i)}, {v(Z+i)}" for i in range(4)]
            work += [f"v_pk_add_f32 {v(Z+i,2)}, {v(Z+i,2)}, 1.0 op_sel_hi:[1,0]" for i in (0, 2)]
            work += [f"v_rcp_f32 {v(Z+i)}, {v(Z+i)}" for i in range(4)]
            work += [pk("mul", AD + r0 + i, [AD + r0 + i, Z + i]) for i in (0, 2)]
        for q in groups: ol.extend(L(q))
        per = -(-len(work) // (Cfg.onl - Cfg.sl0))
        for i in range(Cfg.onl):
            put(ol.pop(0))
            if TWO and i < 3:
                for mt in range(5): reads.remove((12 + i, mt)); rd(SETS[(12 + i) % 5], 12 + i, mt)
            if i >= Cfg.sl0: a.ext(work[:per]); work = work[per:]
        a.ext(work)
        a(f"s_waitcnt vmcnt({vm.n(('O', first))})")
        stamp(a, "o_first")
    ol = list(wl)
    MJ = Cfg.mj
    order = [(k, mt) for k in range(20 - MJ) for mt in range(5)] + [(k, mt) for mt in range(5) for k in range(20 - MJ, 20)]
    fin_at = {100 - (4 - mt) * MJ + 3: mt for mt in range(4) if 100 - (4 - mt) * MJ + 3 < 100}
    posn = {x: n for n, x in enumerate(order)}
    reads = sorted(((k, mt) for k in range(5, 20) for mt in range(5)), key=lambda x: posn[x])
    NB = 50 if TWO else 31
    unp = [f"v_lshlrev_b32 {v(U+2*j)}, 16, {v(XR+j)}" if h == 0 else f"v_and_b32 {v(U+2*j+1)}, 0xffff0000, {v(XR+j)}" for j in range(10) for h in range(2)]
    def fin(mt):
        return [f"v_fma_f32 {v(U+4*mt+i)}, {v(AS+4*mt+i)}, {v(AD+4*mt+i)}, {v(U+4*mt+i)}" for i in range(4)] + \
               [f"v_cvt_pk_bf16_f32 {v(XR+2*mt+j)}, {v(U+4*mt+2*j)}, {v(U+4*mt+2*j+1)}" for j in range(2)]
    fq = []; nread = 0
    unp = adr + unp
    def wr(mt):
        lg.add(("w", mt)); a(f"ds_write_b64 {v(vTW)}, {v(XR+2*mt,2)} offset:{8*mt}")
    if TWO: a(f"s_waitcnt vmcnt({vm.n(('O', 0))})")
    else: go(range(4), 0)
    seenO = {0, 10} if TWO else {0}
    for n, (k, mt) in enumerate(order):
        if n == 50 and TWO:
            for x in [x for x in reads if x[0] < 12]:
                reads.remove(x); rd(SETS[x[0] % 5], x[0], x[1]); nread += 1
            a.ext(unp); unp = []
            stamp(a, "o_mid")
            go((2, 3), 10)
        a(mf16(AS + 4 * mt, SETS[k % 5] + 4 * mt, OF(k), "0" if k == 0 else None))
        w = []
        if n < 99:
            k2, m2 = order[n + 1]
            if k2 not in seenO: w.append(f"vmcnt({vm.n(('O', k2))})"); seenO.add(k2)
            if k2 >= 5: w.append(f"lgkmcnt({min(14, lg.n((k2, m2)))})")
        if w: a("s_waitcnt " + " ".join(w))
        if n == NB and not TWO: a("s_barrier")
        if n == 33 and TWO: flag_req("3", vFl, sF3, vFr)()
        slots = 2
        ok = [x for x in reads if posn[(x[0] - 5, x[1])] <= n and (x[0] < 12 or n >= NB)]
        if ok and ((TWO and n >= 50) or nread * Cfg.rpn <= n * 10 or posn[ok[0]] - n <= 10):
            x = ok[0]; reads.remove(x); rd(SETS[x[0] % 5], x[0], x[1]); nread += 1; slots -= 1
        if ol and n % (3 if (TWO and n < 50) else Cfg.oln) == 0:
            put(ol.pop(0)); slots -= 1
        if n in fin_at: fq += fin(fin_at[n]) + [fin_at[n]]
        while slots > 0 and ((unp and (len(unp) > 20 or n >= 26)) or fq):
            x = unp.pop(0) if unp else fq.pop(0)
            if isinstance(x, int): wr(x)
            else: a(x)
            slots -= 1
    assert not reads and not ol and not unp
    stamp(a, "wo_done")
    for x in fq:
        if isinstance(x, int): wr(x)
        else: a(x)
    for mt in range(5):
        if mt in fin_at.values(): continue
        if mt == 4 and 3 in fin_at.values(): a("s_nop 2")
        a.ext(fin(mt)); wr(mt)
    for i in range(3): a(f"ds_read_b128 {v(U+4*i,4)}, {v(vTR)} offset:{i*1024}")
    for i in range(3):
        a(f"s_waitcnt lgkmcnt({2-i})")
        if i == 2: a("s_mov_b32 exec_hi, 0")
        a(f"buffer_store_dwordx4 {v(U+4*i,4)}, {v(vO+i)}, {s(SO,4)}, {s(sT3)} offen")
    a(f"s_branch {pfx}_end")
    for b in ool: a.lines += b.lines
    a(f"{pfx}_end:")

def kd(name, nv=256):
    return f""".amdhsa_kernel {name}
  .amdhsa_next_free_vgpr {nv}
  .amdhsa_next_free_sgpr 102
  .amdhsa_accum_offset {nv}
  .amdhsa_group_segment_fixed_size 0
  .amdhsa_kernarg_size 80
  .amdhsa_user_sgpr_count 2
  .amdhsa_user_sgpr_kernarg_segment_ptr 1
  .amdhsa_system_sgpr_workgroup_id_x 1
  .amdhsa_float_denorm_mode_32 3
.end_amdhsa_kernel
"""
def head(a, name, n):
    a(f".globl {name}"); a(".p2align 8"); a(f".type {name},@function"); a(f"{name}:")
    a(f"s_cmp_ge_u32 s2, {n}")
    a(f"s_cbranch_scc1 {name}_end")
    load_args(a)
def tail(a, name):
    a(f"{name}_end:"); a("s_endpgm")

HEADER = """
out = x + (softmax(q k^T / sqrt(20)) v @ wo) * silu((gelu(xn @ wg) * (xn @ wu)) @ wd),  xn = layernorm(x)
kernarg: x, wqkv, wo, (unused), wg, wu, wd, out, debug, ws
One persistent launch, two workgroups per CU (emitted by a hand-written generator script):
  ids   0..255  projections: layernorm statistics, QKV and gate/up strips (x stays in registers, weights stream
                through LDS), weight re-layout, down projection (split K), wo projection, output
  ids 256..511  attention: one head x 256 queries; exp2 without max subtraction, row sums range-checked,
                rows that leave the safe range are redone with the true row maximum
Hand-offs go through ws with write-through stores and flag words that carry a per-launch nonce from debug[0].
"""
def build1():
    Cfg.fused = True
    a = Asm()
    name = NAME + "_kernel"
    for l in HEADER.strip().split("\n"): a("; " + l)
    a("; @launch grid=(512,1,1) block=(256,1,1) lds=81920")
    a('.amdgcn_target "amdgcn-amd-amdhsa--gfx950"')
    a(".text")
    head(a, name, 512)
    if Cfg.cpf == 2:
        a("s_getpc_b64 s[54:55]")
        a("L_pc:")
        a("s_and_b32 s56, s2, 0x1f8")
        a("v_lshrrev_b32 v2, 5, v0")
        a("v_and_b32 v3, 1, v0")
        a("v_add3_u32 v2, v2, v3, s56")
        a("v_lshlrev_b32 v2, 7, v2")
        a(f"v_min_u32 v2, {name}_end-L_pc, v2")
        a("s_mov_b64 exec, 3")
        a("global_load_dword v255, v2, s[54:55]")
        a("s_mov_b64 exec, -1")
    a("s_cmp_ge_u32 s2, 256")
    a("s_cbranch_scc1 L_att")
    stamp_begin(a, 0); stamp(a, "start"); gen_g1(a, "g1"); (gen_k2 if Cfg.sk else gen_g2)(a, "g2"); stamp_end(a, 0, 2)
    a("s_endpgm")
    a("L_att:")
    stamp_begin(a, 1); stamp(a, "start"); (gen_att if Cfg.two else gen_att1)(a, "att", 2); stamp_end(a, 1, 2)
    tail(a, name)
    a('.section .rodata,"a"')
    a(".p2align 6"); a.lines.append(kd(name))
    return a.text()

if __name__ == "__main__":
    if "--stamps" in sys.argv:
        sys.argv.remove("--stamps"); STAMPS = True
    if "--lite" in sys.argv:
        sys.argv.remove("--lite"); STAMPS = True; LITE = True
    if "--cyc" in sys.argv:
        sys.argv.remove("--cyc"); STAMPS = "cyc"
    three = "--three" in sys.argv
    if three: sys.argv.remove("--three")
    for x in list(sys.argv):
        if "=" in x:
            k_, v_ = x.split("="); setattr(Cfg, k_, int(v_)); sys.argv.remove(x)
    t = build1()
    if STAMPS:
        import json; json.dump(St.names, open(sys.argv[1].replace(".s", ".json"), "w"))
    out = sys.argv[1] if len(sys.argv) > 1 else f"cdna_kernels/{NAME}.s"
    body = t[:t.index('.section .rodata')]
    pr = check_hazards(body)
    for p in pr: print("HAZARD", p)
    open(out, "w").write(t)
    print("written", out, len(t), "bytes;", len(pr), "hazards")
```

```python
import sys, math, struct, re
from asmlib import *

NAME = "recurrent_scan__softmax_full_mha__geglu_ffn__prompt"
QK_OFF = 0
V_OFF = 160 * 32768
H_OFF = V_OFF + 32 * 81920
O_OFF = H_OFF + 128 * 55296
OL_OFF = O_OFF + 128 * 16384
FLAG_OFF = O_OFF + 128 * 20480
def f2u(x): return "0x%08x" % struct.unpack("<I", struct.pack("<f", x))[0]
LOG2E = math.log2(math.e)
QSCALE = 20 ** -0.5 * LOG2E
GC0 = -2.0 * LOG2E * math.sqrt(2.0 / math.pi)
GC1 = GC0 * 0.044715
SC1 = " sc1"

P_X, P_WQKV, P_WO, P_WG, P_WU, P_WD, P_OUT, P_DBG, P_WS = 4, 6, 8, 12, 14, 16, 18, 20, 22
S_WS = 24
S_A = 28
S_B = 32
S_C = 36
S_WV = 40

def srd(a, d, p, nbytes):
    a(f"s_mov_b32 {s(d)}, {s(p)}")
    a(f"s_mov_b32 {s(d+1)}, {s(p+1)}")
    a(f"s_mov_b32 {s(d+2)}, {nbytes}")
    a(f"s_mov_b32 {s(d+3)}, 0x00020000")

WR_OFF = FLAG_OFF
FLAG_OFF = WR_OFF + 8 * 74 * 5120
F4_OFF = FLAG_OFF + 32768 + 131072
F2B_OFF = F4_OFF + 8192
F1_OFF = FLAG_OFF
F2_OFF = FLAG_OFF + 16384
F3_OFF = FLAG_OFF + 32768
FH_OFF = F2B_OFF + 16384
F0_OFF = FH_OFF + 16384
F5_OFF = F0_OFF + 16384
FP_OFF = F5_OFF + 8192
FX_OFF = FP_OFF + 32768
WS_BYTES = FX_OFF + 256 * 4352
V_NONCE = 11
class Cfg:
    fused = True
    prioA = 1; prioGm = 0; prioGv = 2; prioD = 0
    rot = 4; adj = 0
    ns = 3; drot = 0; cpf = 2; nw0 = 2; pubk = 3; aord = 1; x_norl = 0; hiN = 0; p3s = 1; p4s = 16; p2s = 2; chks = 3; x_hot = 0; x_nokv = 0; wpf = 0; x_nolo = 0; p0s = 16; p1s = 4; prioS = 2; onl = 12; carry = 2; gap = 2; gap0 = 2; x_body = 0; tch = 0; bal = 0; diag = 0; dsel = 0; ost = 0; tlb = 0; lo = 24; hi = 48; pk = 3; otch = 0; lag = 0; mbu = 1; prioE = 3; thl = 3; ths = 3; early = 0; hiL = 5; hiE = 5; rpn = 12; adw = 1; oln = 4; tc = 2; x_gexit = 0; w0e = 0; pzk = 15; tha = -1; fpos = 0; med = 1; hiR = 6; prioB = 1; thq = -1; dyn = 0; gate = 1; hau = 7; nost = 0; prioT = 2; sls = 1; sl0 = 2; nb = 36; lnn = 1; nsl = 2; two = 0; sk = 1; skn = 3; sko = 0; prioR = 2; skl = 3; sks = 1; skp2 = 1; wsc = 0; xsc = 0; pex = 1; pp3 = 0; pp0 = 0; hint = 0; phs = 4; lpro = 1; fst = 64; spoll = 0; gj = -1; hb = 10; cj0 = 0; skf = 1; wgp = 1; spf = 0; spn = 8; mj = 2; p0g = 0; snk = 1; pat = 0; eh = 0; stg = 4; lead = 1; x_aexit = 0; x_d = 0; wpre = 0; skp = 1; hpre = 0; xl = 0; dry = 0; arl = 0
def setprio(a, p):
    if Cfg.fused: a(f"s_setprio {p}")
def publish(a, soff):
    a("s_mov_b64 exec, 1")
    a(f"buffer_store_dword {v(V_NONCE)}, off, {s(S_WS,4)}, {s(soff)} sc1")
    a("s_mov_b64 exec, -1")
def poll(a, lbl, vaddr, soff, vt, scnt, sleep, vt2=None):
    ld = lambda d: f"buffer_load_dword {v(d)}, {'off' if vaddr is None else v(vaddr)}, {s(S_WS,4)}, {s(soff)}{'' if vaddr is None else ' offen'} sc1"
    a(f"s_mov_b32 {s(scnt)}, 0x20000")
    if vt2 is not None: a(ld(vt2))
    a(f"{lbl}:")
    for i, (new, old) in enumerate(((vt, vt),) if vt2 is None else ((vt, vt2), (vt2, vt))):
        if vt2 is not None and sleep: a(f"s_sleep {sleep}")
        a(ld(new))
        a(f"s_waitcnt vmcnt({0 if vt2 is None else 1})")
        a(f"v_cmp_ne_u32 vcc, {v(old)}, {v(V_NONCE)}")
        a(f"s_sub_u32 {s(scnt)}, {s(scnt)}, 1")
        a(f"s_cbranch_scc1 {lbl}_ok")
        a(f"s_cbranch_vccz {lbl}_ok")
        if Cfg.pex: a("s_mov_b64 exec, vcc")
    if vt2 is None and sleep: a(f"s_sleep {sleep}")
    a(f"s_branch {lbl}")
    a(f"{lbl}_ok:")
    if Cfg.pex: a("s_mov_b64 exec, -1")
def nonce_load(a, vz):
    a(f"global_load_dword {v(V_NONCE)}, {v(vz)}, {s(P_DBG,2)} sc1")
def nonce_check(a, lbl, vz, st, scnt, ok=None):
    ok = ok or f"{lbl}_ok"
    a(f"s_mov_b32 {s(scnt)}, 0x20000")
    a(f"{lbl}:")
    a(f"v_readfirstlane_b32 {s(st)}, {v(V_NONCE)}")
    a(f"s_sub_u32 {s(scnt)}, {s(scnt)}, 1")
    a(f"s_cbranch_scc1 {ok}")
    a(f"s_cmp_lg_u32 {s(st)}, 0")
    a(f"s_cbranch_scc1 {ok}")
    a(f"s_sleep {Cfg.nsl}")
    a(f"v_mov_b32 {v(vz)}, 0")
    nonce_load(a, vz)
    a("s_waitcnt vmcnt(0)")
    a(f"s_branch {lbl}")
    a(f"{lbl}_ok:")

STAMPS = False
class St:
    n = 0; names = {}; cur = None
LITE = False
def stamp(a, name):
    if not STAMPS or (LITE and name not in ("start", "end")): return
    l = St.names.setdefault(St.cur, [])
    if name not in l: l.append(name)
    i = l.index(name)
    a("s_waitcnt lgkmcnt(0)")
    a("s_memtime s[62:63]" if STAMPS == "cyc" else "s_memrealtime s[62:63]")
    a("s_waitcnt lgkmcnt(0)")
    a(f"s_mov_b32 {s(64+i)}, s62")
def stamp_begin(a, role):
    St.cur = role
    if not STAMPS: return
    for i in range(32 if not LITE else 0): a(f"s_mov_b32 {s(64+i)}, 0")
def stamp_end(a, slot, idreg):
    if not STAMPS: return
    a("s_waitcnt vmcnt(0) lgkmcnt(0)")
    stamp(a, "end")
    a("s_mov_b64 exec, -1")
    a("v_mov_b32 v20, 0")
    for i in range(32 if not LITE else 2): a(f"v_writelane_b32 v20, {s(64+i)}, {i}")
    a(f"s_and_b32 s62, {s(idreg)}, 255")
    a("s_lshl_b32 s62, s62, 2")
    a(f"s_add_u32 s62, s62, {s(S_WV)}")
    a(f"s_add_u32 s62, s62, {slot*1024}")
    a("s_lshl_b32 s62, s62, 7")
    a(f"s_add_u32 s62, s62, {WS_BYTES}")
    a(f"s_mov_b32 {s(S_WS+2)}, {WS_BYTES + (1<<20)}")
    a("v_lshlrev_b32 v21, 2, v1")
    a("s_mov_b32 exec_hi, 0")
    a(f"buffer_store_dword v20, v21, {s(S_WS,4)}, s62 offen")

_tc = [0]
def touch(l0, l1, sp, vaddr, vdst, vL=1):
    _tc[0] += 1; t = f"L_tc{_tc[0]}"
    return [f"s_getpc_b64 {s(sp,2)}", f"{t}:", f"s_add_u32 {s(sp)}, {s(sp)}, {l0}-{t}", f"s_addc_u32 {s(sp+1)}, {s(sp+1)}, 0",
            f"v_lshlrev_b32 {v(vaddr)}, 7, {v(vL)}", f"v_min_u32 {v(vaddr)}, {l1}-{l0}, {v(vaddr)}",
            f"global_load_dword {v(vdst)}, {v(vaddr)}, {s(sp,2)}"]

def pk(op, d, srcs):
    ops = []; lo = []; hi = []
    for x in srcs:
        if x >= 0: ops.append(v(x, 2)); lo.append(0); hi.append(1)
        else:
            r = -x - 1; ops.append(v(r & ~1, 2)); lo.append(r & 1); hi.append(r & 1)
    f = lambda l: "[" + ",".join(map(str, l)) + "]"
    return f"v_pk_{op}_f32 {v(d,2)}, " + ", ".join(ops) + f" op_sel:{f(lo)} op_sel_hi:{f(hi)}"

class Trk:
    def __init__(self): self.l = []
    def add(self, tag): self.l.append(tag)
    def mark(self, tag): self.l.append(("opt", tag))
    def n(self, tag):
        i = max(j for j, t in enumerate(self.l) if t == tag or t == ("opt", tag))
        return min(62, sum(1 for t in self.l[i+1:] if not (isinstance(t, tuple) and t[0] == "opt")))

MODS = ("", " sc1", " nt", " sc0")
def WM(): return " sc1" if Cfg.wpre else MODS[Cfg.wsc]
def load_args(a):
    a("s_load_dwordx16 s[4:19], s[0:1], 0")
    a("s_load_dwordx4 s[20:23], s[0:1], 64")

def gen_g1(a, pfx):
    X, ACC, G, WF = 96, 32, 64, 16
    vL = 1
    vTA, vTB, vTA2, vTB2, vD, vDR, vDCo, vST = 2, 3, 4, 5, 6, 7, 8, 9
    CN = (10, 12, 13, 14, 15, 0)
    vA0, vB0, vK0, vA1, vB1, vK1 = CN
    vA, vB, vK = (vA0, vA1), (vB0, vB1), (vK0, vK1)
    VR, VA = G + 16, G + 24
    sRB, sCG, sTT, sM, sN, sNT, sNQ, sP0 = 41, 42, 43, 44, 45, 46, 47, 48
    sO, sDA, sDB, sDC, sS = 49, 50, 51, 52, 53
    sT0, sT1, sT2, sT3, sSO = 54, 55, 56, 57, 58
    sSW, sCHK, sC2, sPB0, sHI, sURG = 59, 97, 36, 37, 98, 3
    NU = 1 if Cfg.two else 2
    sROT, sXB, sXC, sPUB, sF, sU = 96, 97, 98, 99, 100, 101
    SW = S_B
    t0, t1, t2 = G, G + 1, G + 2
    NL = 12 if Cfg.med else 10
    if Cfg.p0g: setprio(a, Cfg.p0g)
    a(f"v_and_b32 {v(vL)}, 63, v0")
    a(f"v_lshrrev_b32 {v(t2)}, 6, v0")
    a(f"s_and_b32 {s(sT0)}, s2, 7")
    a(f"v_readfirstlane_b32 {s(S_WV)}, {v(t2)}")
    a(f"s_lshr_b32 {s(sT1)}, s2, 3")
    a(f"s_lshr_b32 {s(sRB)}, {s(sT0)}, 1")
    a(f"s_lshl_b32 {s(sRB)}, {s(sRB)}, 2")
    a(f"s_and_b32 {s(sROT)}, {s(sT1)}, 3")
    a(f"s_add_u32 {s(sRB)}, {s(sRB)}, {s(sROT)}")
    a(f"s_lshr_b32 {s(sT2)}, {s(sT1)}, 2")
    if Cfg.rot == 2: a(f"s_mov_b32 {s(sROT)}, {s(sT2)}")
    elif Cfg.rot == 3:
        a(f"s_and_b32 {s(sROT)}, {s(sROT)}, 1")
        a(f"s_lshl_b32 {s(sROT)}, {s(sROT)}, 1")
        a(f"s_add_u32 {s(sROT)}, {s(sROT)}, {s(sT2)}")
    else: a(f"s_add_u32 {s(sROT)}, {s(sROT)}, {s(sT2)}")
    if Cfg.rot == 4:
        a(f"s_lshr_b32 {s(sT3)}, {s(sT0)}, 1")
        a(f"s_add_u32 {s(sROT)}, {s(sROT)}, {s(sT3)}")
    if Cfg.rot == 5:
        a(f"s_and_b32 {s(sT3)}, {s(sT0)}, 6")
        a(f"s_add_u32 {s(sROT)}, {s(sROT)}, {s(sT3)}")
    a(f"s_lshl_b32 {s(sTT)}, {s(sRB)}, 2")
    a(f"s_add_u32 {s(sTT)}, {s(sTT)}, {s(S_WV)}")
    a(f"s_mul_i32 {s(sT3)}, {s(sROT)}, 52")
    a(f"s_lshr_b32 {s(sT3)}, {s(sT3)}, 8")
    a(f"s_mul_i32 {s(sT3)}, {s(sT3)}, 5")
    a(f"s_sub_u32 {s(sROT)}, {s(sROT)}, {s(sT3)}")
    if not Cfg.rot: a(f"s_mov_b32 {s(sROT)}, 0")
    vXA = ACC
    a(f"v_lshrrev_b32 {v(t0)}, 4, {v(vL)}")
    a(f"v_mul_u32_u24 {v(vXA)}, 1280, {v(t0)}")
    a(f"v_and_b32 {v(t1)}, 15, {v(vL)}")
    a(f"v_xor_b32 {v(vXA+1)}, {v(t0)}, {v(t1)}")
    a(f"v_lshl_add_u32 {v(vXA)}, {v(vXA+1)}, 4, {v(vXA)}")
    for i in range(1, 4): a(f"v_xor_b32 {v(vXA+i)}, {64*i}, {v(vXA)}")
    a(f"s_lshl_b32 {s(sM)}, {s(S_WV)}, 12")
    a(f"s_mul_i32 {s(sXB)}, {s(sTT)}, 40960")
    a(f"s_lshl_b32 {s(sXC)}, {s(sROT)}, 8")
    XS = (4, 1, 2, 3, 0, 4, 1, 2, 3, 4) if Cfg.w0e else (0, 1, 2, 3, 4, 0, 1, 2, 3, 4)
    def xdma(b):
        out = []
        for i in range(4):
            g = []
            if i == 0:
                g += [f"s_add_u32 m0, {s(sM)}, {XS[b]*16384}", f"s_add_u32 {s(sU)}, {s(sXB)}, {s(sXC)}"]
            g.append(f"buffer_load_dwordx4 {v(vXA+i)}, {s(S_A,4)}, {s(sU)} offen offset:{i*1024}{MODS[Cfg.xsc]} lds")
            if i < 3: g.append(f"s_add_u32 {s(sU)}, {s(sU)}, 4096")
            else:
                g += [f"s_add_u32 {s(sXC)}, {s(sXC)}, 256", f"s_cmp_ge_u32 {s(sXC)}, 1280", f"s_cselect_b32 {s(sXC)}, 0, {s(sXC)}"]
                if b == 4: g.append(f"s_add_u32 {s(sXB)}, {s(sXB)}, 20480")
            out.append(g)
        return out
    su = Asm()
    su(f"s_and_b32 {s(sCG)}, {s(sT0)}, 1")
    su(f"s_add_u32 {s(sCG)}, {s(sCG)}, {s(sT2)}" if Cfg.bal else f"s_lshl_b32 {s(sCG)}, {s(sCG)}, 3")
    su(f"s_add_u32 {s(sCG)}, {s(sCG)}, {s(sT2)}")
    su(f"s_mul_i32 {s(sC2)}, {s(sCG)}, 52")
    su(f"s_lshr_b32 {s(sC2)}, {s(sC2)}, 8")
    su(f"s_mul_i32 {s(sC2)}, {s(sC2)}, 5")
    su(f"s_add_u32 {s(sC2)}, {s(sCG)}, {s(sCG if Cfg.adj else sC2)}")
    srd(su, S_WS, P_WS, WS_BYTES)
    su(f"s_cmp_lt_u32 {s(sCG)}, 15\ns_cselect_b32 {s(sNQ)}, 2, 0\ns_cselect_b32 {s(sSW)}, 1, -1@")
    su(f"s_cmp_lt_u32 {s(sCG)}, {NL}\ns_cselect_b32 {s(sNT)}, 6, 4\ns_cselect_b32 {s(sP0)}, 17, 1@")
    if Cfg.med:
        su(f"s_sub_u32 {s(sT0)}, {s(sCG)}, 7")
        su(f"s_lshr_b32 {s(sT1)}, {s(sT0)}, 1")
        su(f"s_sub_u32 {s(sT0)}, {s(sCG)}, 8")
        su(f"s_cmp_lt_u32 {s(sT0)}, 4\ns_cselect_b32 {s(sT1)}, {s(sT1)}, 0\ns_sub_u32 {s(sP0)}, {s(sP0)}, {s(sT1)}@")
    su(f"s_mov_b32 {s(SW+3)}, 0x00020000")
    su(f"s_mov_b32 {s(sN)}, -1")
    vR0, vR4 = ACC + 4, ACC + 8
    vSm, vGr, vNM, vON = ACC + 12, (ACC + 16, ACC + 20), ACC + 24, ACC + 28
    vSE, vBP, vMu = G + 6, G + 5, (G + 12, G + 13)
    CTS = ((WF, WF + 8, G + 16), (ACC, G + 16, ACC + 8))
    sMA, sMB = 60, 38
    su(f"v_xor_b32 {v(vR0)}, {v(t0)}, {v(t1)}")
    su(f"v_lshlrev_b32 {v(vR0)}, 4, {v(vR0)}")
    su(f"v_lshl_add_u32 {v(vR0)}, {v(t1)}, 8, {v(vR0)}")
    su(f"v_add_u32 {v(vR0)}, {s(sM)}, {v(vR0)}")
    for q in range(1, 4): su(f"v_xor_b32 {v(vR0+q)}, {64*q}, {v(vR0)}")
    for q in range(4): su(f"v_add_u32 {v(vR4+q)}, 0x10000, {v(vR0+q)}")
    for i in range(4): su(f"v_mov_b32 {v(vON+i)}, 0x3f803f80")
    for i in (0, 1, 4, 5): su(f"v_mov_b32 {v(vSE+i)}, 0")
    su(f"s_mov_b32 {s(sMA)}, 0xaaaaaaaa"); su(f"s_mov_b32 {s(sMA+1)}, 0xaaaaaaaa")
    su(f"s_mov_b32 {s(sMB)}, 0xcccccccc"); su(f"s_mov_b32 {s(sMB+1)}, 0xcccccccc")
    su(f"v_and_b32 {v(vBP)}, 1, {v(vL)}")
    su(f"v_lshlrev_b32 {v(vBP)}, 4, {v(vBP)}")
    su(f"v_mov_b32 {v(vSE+2)}, 0x3f80")
    su(f"v_lshlrev_b32 {v(vSE+2)}, {v(vBP)}, {v(vSE+2)}")
    su(f"v_bfe_u32 {v(vBP)}, {v(vL)}, 2, 2")
    su(f"v_cmp_eq_u32 vcc, {v(vBP)}, {v(t0)}")
    su(f"v_lshl_add_u32 {v(vBP)}, {v(vBP)}, 4, {v(t1)}")
    su(f"v_lshlrev_b32 {v(vBP)}, 2, {v(vBP)}")
    su(f"v_cndmask_b32 {v(vSE+2)}, 0, {v(vSE+2)}, vcc")
    su(f"v_cndmask_b32 {v(vSE+3)}, 0, {v(vSE+2)}, {s(sMB,2)}")
    su(f"v_cndmask_b32 {v(vSE+2)}, {v(vSE+2)}, 0, {s(sMB,2)}")
    t3, t4 = G + 3, G + 4
    su(f"v_bfe_u32 {v(t3)}, {v(vL)}, 4, 1")
    su(f"v_bfe_u32 {v(t4)}, {v(vL)}, 2, 2")
    su(f"v_lshl_add_u32 {v(vDR)}, {v(t3)}, 3, {v(t4)}")
    su(f"v_lshl_add_u32 {v(vDR)}, {v(t2)}, 5, {v(vDR)}")
    su(f"v_lshlrev_b32 {v(vDCo)}, 1, {v(t3)}")
    su(f"v_and_b32 {v(vD)}, 3, {v(vL)}")
    su(f"v_xor_b32 {v(vDCo)}, {v(vDCo)}, {v(vD)}")
    su(f"v_lshlrev_b32 {v(vDCo)}, 4, {v(vDCo)}")
    su(f"v_lshrrev_b32 {v(t2)}, 5, {v(vL)}")
    su(f"v_lshl_add_u32 {v(vDCo)}, {v(t2)}, 6, {v(vDCo)}")
    su(f"v_lshlrev_b32 {v(vTA)}, 11, {v(t2)}")
    su(f"v_mad_u32_u24 {v(vTA)}, {v(t3)}, {s(sT3)}, {v(vTA)}")
    su(f"v_lshl_add_u32 {v(vTA)}, {v(t4)}, 6, {v(vTA)}")
    su(f"v_lshl_add_u32 {v(vTA)}, {v(vD)}, 3, {v(vTA)}")
    su(f"v_xor_b32 {v(vTB)}, 32, {v(vTA)}")
    su(f"v_add_u32 {v(vTA2)}, 0x10000, {v(vTA)}")
    su(f"v_add_u32 {v(vTB2)}, 0x10000, {v(vTB)}")
    su(f"v_lshl_add_u32 {v(vST)}, {v(t3)}, 1, {v(t2)}")
    su(f"v_lshlrev_b32 {v(vST)}, 15, {v(vST)}")
    su(f"v_lshl_add_u32 {v(vST)}, {v(t1)}, 4, {v(vST)}")
    su(f"s_lshl_b32 {s(sT1)}, {s(sC2)}, 6")
    su(f"s_sub_u32 {s(sT1)}, {s(sT1)}, 1280")
    su(f"s_and_b32 {s(sT1)}, {s(sT1)}, 1023")
    su(f"s_mov_b32 {s(sT2)}, {81920-320}")
    su(f"v_mul_u32_u24 {v(t0)}, 320, {v(t0)}")
    su(f"v_add_u32 {v(t1)}, {s(sT1)}, {v(t1)}")
    for i in range(8):
        su(f"v_mul_u32_u24 {v(t2)}, 3277, {v(t1)}")
        su(f"v_lshrrev_b32 {v(t2)}, 16, {v(t2)}")
        su(f"v_lshl_add_u32 {v(VA+i)}, {v(t1)}, 4, {v(t0)}")
        su(f"v_mad_u32_u24 {v(VA+i)}, {v(t2)}, {s(sT2)}, {v(VA+i)}")
        if i == 3: su(f"v_add_u32 {v(t1)}, {16 if Cfg.adj else 272}, {v(t1)}")
        elif i < 7: su(f"v_add_u32 {v(t1)}, 16, {v(t1)}")
    def params_a():
        return [f"s_add_u32 {s(sT0)}, {s(sN)}, 1",
                f"s_sub_u32 {s(sT1)}, {s(sT0)}, {s(sNQ)}",
                f"s_lshr_b32 {s(sT1)}, {s(sT1)}, 1",
                f"s_mul_i32 {s(sT1)}, {s(sT1)}, {s(sP0)}",
                f"s_add_u32 {s(sT1)}, {s(sT1)}, {s(sCG)}",
                f"s_mul_i32 {s(sT2)}, {s(sT0)}, {1 if Cfg.adj else 5}",
                f"s_add_u32 {s(sT2)}, {s(sT2)}, {s(sC2)}",
                f"s_movk_i32 {s(sS)}, 3456",
                f"s_cmp_lt_u32 {s(sT0)}, {s(sNQ)}\ns_cselect_b32 {s(sT1)}, {s(sT2)}, {s(sT1)}\ns_cselect_b32 {s(sS)}, 3840, {s(sS)}",
                f"s_mul_i32 {s(sT2)}, {s(sROT)}, {s(sS)}",
                f"s_add_u32 {s(sT1)}, {s(sT1)}, {s(sT2)}"]
    def params_b():
        return [f"s_bitcmp1_b32 {s(sT0)}, 0\ns_cselect_b32 {s(SW)}, {s(P_WU)}, {s(P_WG)}\ns_cselect_b32 {s(SW+1)}, {s(P_WU+1)}, {s(P_WG+1)}",
                f"s_cmp_lt_u32 {s(sT0)}, {s(sNQ)}\ns_cselect_b32 {s(SW)}, {s(P_WQKV)}, {s(SW)}\ns_cselect_b32 {s(SW+1)}, {s(P_WQKV+1)}, {s(SW+1)}",
                f"s_mul_i32 {s(SW+2)}, {s(sS)}, 640",
                f"s_cmp_lt_u32 {s(sT0)}, {s(sNT)}\ns_cselect_b32 {s(SW+2)}, {s(SW+2)}, 0",
                f"s_lshl_b32 {s(sO)}, {s(sT1)}, 7",
                f"s_lshl_b32 {s(sDA)}, {s(sS)}, 2",
                f"s_mul_i32 {s(sDB)}, {s(sS)}, 12",
                f"s_mul_i32 {s(sDC)}, {s(sS)}, 108",
                f"s_sub_u32 {s(sDA)}, {s(sDA)}, 1024",
                f"s_sub_u32 {s(sDB)}, {s(sDB)}, 1024",
                f"s_add_u32 {s(sDC)}, {s(sDC)}, 3072"]
    def params_v(): return f"v_mad_u32_u24 {v(vD)}, {v(vDR)}, {s(sS)}, {v(vDCo)}"
    def wdma(slot):
        out = []
        for i in range(4):
            g = []
            if i == 0: g += [f"s_add_u32 m0, {s(sM)}, {slot*16384}", "s_nop 0"]
            g.append(f"buffer_load_dwordx4 {v(vD)}, {s(SW,4)}, {s(sO)} offen offset:{i*1024}{WM()} lds")
            g.append(f"s_add_u32 {s(sO)}, {s(sO)}, {s((sDA, sDB, sDA, sDC)[i])}")
            if i == 3:
                g += [f"s_cmp_ge_u32 {s(sO)}, {s(SW+2)}", f"s_cselect_b32 {s(sU)}, {s(SW+2)}, 0", f"s_sub_u32 {s(sO)}, {s(sO)}, {s(sU)}"]
            out.append(g)
        return out
    items = []; keep = []
    for l in su.lines:
        l = l.strip()
        if l.startswith("s_cmp"): keep = [l]; continue
        if keep:
            keep.append(l.rstrip("@"))
            if l.endswith("@"): items.append("\n".join(keep)); keep = []
            continue
        items.append(l)
    items += params_a() + params_b() + [params_v()]
    a(f"s_movk_i32 {s(sT3)}, 288")
    a("s_waitcnt lgkmcnt(0)")
    srd(a, S_A, P_X, 2048 * 1280)
    per = -(-len(items) // 16)
    if Cfg.tch & 1:
        a(f"s_mul_i32 {s(sU)}, {s(sT2)}, 2560")
        a(f"s_add_u32 {s(sU)}, {s(sU)}, {s(sXB)}")
        a(f"s_add_u32 {s(sU)}, {s(sU)}, 20480")
        a(f"v_lshlrev_b32 {v(WF)}, 7, {v(vL)}")
        a("s_mov_b64 exec, 0xfffff")
        a(f"buffer_load_dword {v(WF+1)}, {v(WF)}, {s(S_A,4)}, {s(sU)} offen")
        a("s_mov_b64 exec, -1")
    for b in range(5):
        for g in xdma(b):
            a.ext(g)
            if b > 0:
                for _ in range(per):
                    if items: a(items.pop(0))
    assert not items
    if Cfg.tch & 2:
        a(f"s_and_b32 {s(sT0)}, {s(sTT)}, 15")
        a(f"s_mul_i32 {s(sT0)}, {s(sT0)}, 40")
        a(f"s_mul_i32 {s(sT0)}, {s(sT0)}, {s(sS)}")
        a(f"s_mul_i32 {s(sT2)}, {s(sROT)}, {s(sS)}")
        a(f"s_lshl_b32 {s(sT2)}, {s(sT2)}, 7")
        a(f"s_sub_u32 {s(sT2)}, {s(sO)}, {s(sT2)}")
        a(f"s_add_u32 {s(sT0)}, {s(sT0)}, {s(sT2)}")
        a(f"v_mul_u32_u24 {v(WF+2)}, {s(sS)}, {v(vL)}")
        a("s_mov_b32 exec_hi, 0xff")
        a(f"buffer_load_dword {v(WF+3)}, {v(WF+2)}, {s(SW,4)}, {s(sT0)} offen")
        if Cfg.tch & 4: a(f"buffer_load_dword {v(WF+4)}, {v(WF+2)}, {s(SW,4)}, {s(sT0)} offen offset:128")
        a("s_mov_b32 exec_hi, -1")
    def nonce_pub():
        a(f"s_or_b32 {s(sT0)}, s2, {s(S_WV)}")
        a(f"s_cmp_lg_u32 {s(sT0)}, 0")
        a(f"s_cbranch_scc1 {pfx}_nn")
        a(f"s_memrealtime {s(sT0,2)}")
        a("s_waitcnt lgkmcnt(0)")
        a(f"s_or_b32 {s(sT0)}, {s(sT0)}, 1")
        a(f"v_mov_b32 {v(t0)}, 0")
        a(f"v_mov_b32 {v(t1)}, {s(sT0)}")
        a("s_mov_b64 exec, 1")
        a(f"global_store_dword {v(t0)}, {v(t1)}, {s(P_DBG,2)} sc1")
        a("s_mov_b64 exec, -1")
        a(f"{pfx}_nn:")
    if not Cfg.lnn: nonce_pub()
    a(f"s_mov_b32 {s(sN)}, 0")

    def stats(b):
        o = []
        for q in range(4):
            f = X + 16 * b + 4 * q
            first = (b % 5 == 0 and q == 0)
            o.append(mf16(vSm, vON, f, "0" if first else None))
            o.append(mf16(vGr[b // 5], f, f, "0" if first else None))
        return o
    def mean(rt):
        return [f"v_mul_f32 {v(vMu[rt])}, {f2u(-1/640)}, {v(vSm)}",
                f"v_cvt_pk_bf16_f32 {v(vNM)}, {v(vMu[rt])}, {v(vMu[rt])}",
                f"v_lshlrev_b32 {v(vNM)}, 16, {v(vNM)}",
                f"v_mov_b32 {v(vNM+1)}, {v(vNM)}", f"v_mov_b32 {v(vNM+2)}, {v(vNM)}", f"v_mov_b32 {v(vNM+3)}, {v(vNM)}", "s_nop 1"]
    def diag(rt):
        g = vGr[rt]
        return [f"v_cndmask_b32 {v(g)}, {v(g)}, {v(g+1)}, {s(sMA,2)}",
                f"v_cndmask_b32 {v(g+2)}, {v(g+2)}, {v(g+3)}, {s(sMA,2)}",
                f"v_cndmask_b32 {v(g)}, {v(g)}, {v(g+2)}, {s(sMB,2)}",
                f"ds_bpermute_b32 {v(vK[rt])}, {v(vBP)}, {v(g)}"]
    def finalize2(rt):
        k = vK[rt]
        return [f"v_mul_f32 {v(k)}, {f2u(1/640)}, {v(k)}",
                f"v_fma_f32 {v(k)}, -{v(vMu[rt])}, {v(vMu[rt])}, {v(k)}",
                f"v_max_f32 {v(k)}, 0, {v(k)}",
                f"v_cvt_pk_bf16_f32 {v(k)}, {v(k)}, {v(k)}",
                f"v_lshlrev_b32 {v(k)}, 16, {v(k)}",
                f"v_add_f32 {v(k)}, {f2u(1e-5)}, {v(k)}",
                f"v_cvt_pk_bf16_f32 {v(k)}, {v(k)}, {v(k)}",
                f"v_lshlrev_b32 {v(k)}, 16, {v(k)}",
                f"v_sqrt_f32 {v(k)}, {v(k)}", "s_nop 0",
                f"v_cvt_pk_bf16_f32 {v(k)}, {v(k)}, {v(k)}",
                f"v_lshlrev_b32 {v(k)}, 16, {v(k)}",
                f"v_rcp_f32 {v(vA[rt])}, {v(k)}", "s_nop 0",
                f"v_mul_f32 {v(vA[rt])}, {s(sT3)}, {v(vA[rt])}"]
    def center(rt):
        steps = []; CT = CTS[rt]
        for j in range(22):
            m = [[], []]; c = [[], []]
            if j < 20:
                f = X + 80 * rt + 4 * j; d = CT[j % 3]
                m = [[mf16(d, vSE + 2, f, v(vNM, 4))], [mf16(d + 4, vSE, f, v(vNM, 4))]]
            if j >= 2:
                f = X + 80 * rt + 4 * (j - 2); d = CT[(j - 2) % 3]
                cv = [f"v_cvt_pk_bf16_f32 {v(f+i)}, {v(d+2*i)}, {v(d+2*i+1)}" for i in range(4)]
                c = [cv[:2], cv[2:]]
            st = m[0] + c[0] + m[1] + c[1]
            if j in (0, 1): st.append("s_nop 2")
            if j == 20: st.append("s_nop 3")
            steps.append(st)
        return steps
    def weave(steps, groups):
        n = len(groups); done = 0
        for i, st in enumerate(steps):
            a.ext(st[:1])
            while done < n and done * len(steps) <= i * n:
                a.ext(groups[done]); done += 1
            a.ext(st[1:])
        for g in groups[done:]: a.ext(g)
    a(f"s_cmp_lt_u32 {s(sCG)}, 5")
    a(f"s_cselect_b32 {s(sT3)}, {f2u(QSCALE)}, 1.0")
    def xread(b):
        slot = XS[b]
        return [f"ds_read_b128 {v(X+16*b+4*q,4)}, {v((vR4 if slot == 4 else vR0)+q)} offset:{0 if slot == 4 else slot*16384}" for q in range(4)]
    pairs = lambda l: [l[2*i:2*i+2] for i in range(len(l) // 2)]
    NC = Cfg.carry
    wg = [wdma(st) for st in range(4)]
    wg[3] = wg[3][:4 - NC]; wg[3][-1] = wg[3][-1][:-1]
    tk = Trk()
    for b in range(5):
        for _ in range(4): tk.add(("x", b))
    def wx(b): a(f"s_waitcnt vmcnt({tk.n(('x', b))})")
    dq = []
    def popq():
        tag, gr = dq.pop(0); a.ext(gr); tk.add(tag)
    def step(st, pop):
        a.ext(st[:1])
        if pop and dq: popq()
        a.ext(st[1:])
    XD = lambda b: [(("x", b), gr) for gr in xdma(b)]
    WD = lambda st: [(("w", st), gr) for gr in wg[st]]
    E = Cfg.w0e
    wx(0)
    stamp(a, "x0")
    a.ext(xread(0))
    for b in range(5):
        if b < 4:
            wx(b + 1); a.ext(xread(b + 1)); a("s_waitcnt lgkmcnt(4)")
        else:
            a("s_waitcnt lgkmcnt(0)")
        if b < 4 or not E: dq += XD(b + 5)
        for i, st in enumerate(pairs(stats(b))): step(st, i % 2 == 0)
    popq()
    a("s_nop 4")
    a.ext(mean(0))
    c0 = center(0)
    for i, st in enumerate(c0):
        step(st, i % 2 == 1 or (E and i > 9))
        if i == 3: a.ext(diag(0))
        if E and i == 6:
            wx(5); a.ext(xread(5))
        if E and i == 9:
            assert not dq
            a("s_waitcnt lgkmcnt(0)")
            dq += XD(9) + WD(0)
        if i == 17:
            assert not dq
            stamp(a, "p1")
            if not E: wx(5); a.ext(xread(5))
    f0 = finalize2(0)
    for b in range(5, 10):
        if b < 9:
            wx(b + 1); a.ext(xread(b + 1)); a("s_waitcnt lgkmcnt(4)")
            if b > 5 or not E: dq += WD(b - 5)
        else:
            a("s_waitcnt lgkmcnt(0)")
        sts = stats(b)
        if b == 9: sts = sts[0::2] + sts[1::2]
        for i, st in enumerate(pairs(sts)):
            step(st, i % 2 == 0 if b < 9 else i >= 2)
            if i % 2 == 1: a.ext(f0[:2]); f0 = f0[2:]
        if b == 7 and Cfg.lnn: nonce_pub()
    assert not f0
    stamp(a, "p2")
    a(f"v_mov_b32 {v(V_NONCE)}, 0")
    a.ext(mean(1))
    def trd(k, ct):
        kk = k % 20
        slot, ks = kk // 4, kk % 4
        base = ((vTA, vTB), (vTA2, vTB2))[slot == 4][ct & 1]
        off = 0 if slot == 4 else slot * 16384
        return [f"ds_read_b64_tr_b16 {v(WF+4*ct+2*t,2)}, {v(base)} offset:{off+ks*4096+t*1024+(ct>>1)*512}" for t in range(2)]
    sq = [f"s_cmp_eq_u32 {s(sNQ)}, 0", f"s_cselect_b32 {s(sPUB)}, -1, {3 - NU}", f"s_cselect_b32 {s(sURG)}, {NU if Cfg.hint == 1 else -1}, {NU}",
          f"s_lshl4_add_u32 {s(sF)}, {s(sCG)}, {s(sRB)}", f"s_lshl_b32 {s(sF)}, {s(sF)}, 6", f"s_add_u32 {s(sF)}, {s(sF)}, {F1_OFF if Cfg.two else F0_OFF}",
          f"s_cmp_eq_u32 {s(S_WV)}, 0", f"s_cselect_b32 {s(sCHK)}, 5, -1", f"s_cselect_b32 {s(sPUB)}, {s(sPUB)}, -1", f"s_mov_b32 {s(sPB0)}, {s(sSW)}",
          f"s_cmp_lt_u32 {s(sCG)}, 8" if (Cfg.two or Cfg.early != 1) else "s_cmp_lt_u32 s2, 128", f"s_cselect_b32 {s(sHI)}, {Cfg.hiE}, {Cfg.hiL}",
          f"s_cmp_lt_u32 {s(sCG)}, {NL}", f"s_cselect_b32 {s(sHI)}, {s(sHI)}, {Cfg.hiR}", f"s_setprio {Cfg.prioGv}"]
    f1 = [x for x in finalize2(1) if not x.startswith("s_nop")]
    c1 = center(1)
    for i, st in enumerate(c1):
        if dq: step(st, i % 2 == 0)
        else:
            for x in st:
                a(x)
                if "mfma" in x and sq: a(sq.pop(0))
        if i == 1: a.ext(diag(1))
        if i == 5: a("s_waitcnt lgkmcnt(0)")
        if i >= 5 and f1: a(f1.pop(0))
        if i == 15:
            assert not dq
            a(f"s_waitcnt vmcnt({12 - NC})")
            a("s_barrier")
            stamp(a, "w0")
            for ct in range(4): a.ext(trd(0, ct))
            if not Cfg.lnn: nonce_load(a, V_NONCE)
    assert not sq and not f1
    stamp(a, "centered")
    if Cfg.diag:
        a("s_lshl_b32 s62, s2, 6"); a(f"s_add_u32 s62, s62, {FH_OFF + 4}")
        a(f"v_mov_b32 {v(t0)}, s64"); a("s_mov_b64 exec, 1")
        a(f"buffer_store_dword {v(t0)}, off, {s(S_WS,4)}, s62 sc1"); a("s_mov_b64 exec, -1")
    def ffn_consts():
        for rt in range(2):
            a(f"v_rcp_f32 {v(vB[rt])}, {v(vK[rt])}")
            a(f"v_mul_f32 {v(vK[rt])}, {v(vK[rt])}, {v(vK[rt])}")
            a(f"v_mul_f32 {v(vA[rt])}, {f2u(GC0)}, {v(vB[rt])}")
            a(f"v_mul_f32 {v(vB[rt])}, {v(vB[rt])}, {v(vB[rt])}")
            a(f"v_mul_f32 {v(vB[rt])}, {v(vB[rt])}, {v(vA[rt])}")
            a(f"v_mul_f32 {v(vB[rt])}, {f2u(0.044715)}, {v(vB[rt])}")
        a(f"v_lshlrev_b32 {v(vST)}, 4, {v(vL)}")
        a(f"s_lshr_b32 {s(sT0)}, s2, 7")
        a(f"s_lshl_b32 {s(sT0)}, {s(sT0)}, 12")
        a(f"s_add_u32 {s(sT0)}, {s(sT0)}, {F4_OFF}")
        a(f"s_and_b32 {s(sT1)}, s2, 7")
        a(f"s_lshl_b32 {s(sT1)}, {s(sT1)}, 1")
        a(f"s_bfe_u32 {s(sT2)}, s2, {4 | (1<<16)}")
        a(f"s_add_u32 {s(sT1)}, {s(sT1)}, {s(sT2)}")
        a(f"s_lshl_b32 {s(sT1)}, {s(sT1)}, 10")
        a(f"s_add_u32 {s(sT1)}, {s(sT1)}, {F2_OFF - 48*64}")
        a(f"v_mov_b32 {v(vDR)}, {s(sT0)}")
        a("s_mov_b32 exec_lo, 0")
        a("s_mov_b32 exec_hi, 0xffff0000")
        a(f"v_mov_b32 {v(vDR)}, {s(sT1)}")
        a("s_mov_b64 exec, -1")
        a(f"v_lshl_add_u32 {v(vDR)}, {v(vL)}, 6, {v(vDR)}")
        if Cfg.med:
            a("s_mov_b32 exec_lo, 0")
            a("s_mov_b32 exec_hi, 0xffff")
            if Cfg.gate == 1:
                a(f"s_lshl_b32 {s(sT0)}, s2, 6")
                a(f"s_add_u32 {s(sT0)}, {s(sT0)}, {FH_OFF + 32}")
            if Cfg.gate == 2:
                a(f"s_lshl_b32 {s(sT1)}, s2, 6")
                a(f"s_add_u32 {s(sT1)}, {s(sT1)}, {FH_OFF + 32}")
                a(f"s_cmp_lt_u32 {s(sCG)}, 8")
                a(f"s_cselect_b32 {s(sT0)}, {s(sT0)}, {s(sT1)}")
            if Cfg.arl:
                a(f"s_lshr_b32 {s(sT0)}, s2, 5")
                a(f"s_lshl_b32 {s(sT0)}, {s(sT0)}, 10")
                a(f"s_add_u32 {s(sT0)}, {s(sT0)}, {F5_OFF - 32*64}")
                a(f"v_min_u32 {v(vDR)}, 41, {v(vL)}")
                a(f"v_lshl_add_u32 {v(vDR)}, {v(vDR)}, 6, {s(sT0)}")
            else:
                a(f"v_mov_b32 {v(vDR)}, {s(sT0)}")
            a("s_mov_b64 exec, -1")
        a(f"v_mov_b32 {v(vDCo)}, 0")
    def wdma_items(slot):
        ld = lambda i: f"buffer_load_dwordx4 {v(vD)}, {s(SW,4)}, {s(sO)} offen offset:{i*1024}{WM()} lds"
        ad = lambda d: f"s_add_u32 {s(sO)}, {s(sO)}, {s(d)}"
        return [[ld(0)], [ad(sDA), ld(1)], [ad(sDB), ld(2)], [ad(sDA), ld(3)],
                [ad(sDC), f"s_cmp_ge_u32 {s(sO)}, {s(SW+2)}", f"s_cselect_b32 {s(sU)}, {s(SW+2)}, 0"],
                [f"s_sub_u32 {s(sO)}, {s(sO)}, {s(sU)}"]]
    def pack(items, n=3):
        out = []; cur = []
        for it in items:
            l = it.split("\n")
            if len(cur) + len(l) > n: out.append(cur); cur = []
            cur += l
        if cur: out.append(cur)
        return out
    def body(tag, swap):
        if not swap:
            a(f"s_lshl_b32 {s(sT0)}, {s(sN)}, 1")
            a(f"s_cmp_lt_u32 {s(sT0)}, {s(sHI)}")
            a(f"s_cbranch_scc1 {pfx}_hi")
            setprio(a, Cfg.prioGm)
            a(f"{pfx}_hi:")
        a("s_waitcnt lgkmcnt(6)")
        def spread(dma, other, gap):
            out = []; other = list(other)
            for it in dma:
                out.append(it)
                if any(" lds" in x for x in it):
                    for _ in range(gap - 1): out.append(other.pop(0) if other else [])
            return out + other
        q = spread(wdma_items(3)[4 - Cfg.carry:], pack(params_a()), Cfg.gap0)
        for k in range(20):
            for ct in range(4):
                w = WF + 4 * ct
                mm = lambda rt: mf16(ACC + 16 * rt + 4 * ct, X + 80 * rt + 4 * k if swap else w, w if swap else X + 80 * rt + 4 * k, "0" if k == 0 else None)
                a(mm(ct & Cfg.snk))
                if ct == 0 and k % 4 == 3:
                    assert not q, (k, q)
                    if k == Cfg.pubk:
                        a(f"s_cbranch_scc1 {pfx}_pub{tag}")
                    if k == 15 and not swap and Cfg.arl and Cfg.wpre:
                        a(f"s_cbranch_scc1 {pfx}_chk3"); a(f"{pfx}_chk3r:")
                    if not Cfg.x_body & 4: a("s_waitcnt vmcnt(8)")
                    if not Cfg.x_body & 1: a("s_barrier")
                    if k == Cfg.pubk: a(f"{pfx}_pubret{tag}:")
                    if k == 11:
                        a(f"s_cbranch_scc1 {pfx}_pz{tag}"); a(f"{pfx}_pzr{tag}:")
                    dm = wdma_items((k // 4 - 1) % 5); q = []
                    if k == 3:
                        dm = spread(dm[:3], [], 2) + dm[3:4] + pack(params_b()) + [[f"s_cmp_eq_u32 {s(sN)}, {s(sPB0)}", f"s_cbranch_scc1 {pfx}_sw{tag}", f"{pfx}_swr{tag}:"]]
                    if k == 7 and not swap:
                        T0 = sum(x << (3 * i) for i, x in enumerate((1, 4, 2, 3, 0)))
                        T1 = sum(x << (3 * i) for i, x in enumerate((3, 0, 1, 4, 2)))
                        it = [f"s_add_u32 {s(sT0)}, {s(sC2)}, {s(sN)}" if Cfg.adj else f"s_mov_b32 {s(sT0)}, {s(sCG)}", f"s_mul_i32 {s(sT1)}, {s(sT0)}, 52",
                              f"s_lshr_b32 {s(sT1)}, {s(sT1)}, 8", f"s_mul_i32 {s(sT1)}, {s(sT1)}, 5", f"s_sub_u32 {s(sT0)}, {s(sT0)}, {s(sT1)}",
                              f"s_mul_i32 {s(sT0)}, {s(sT0)}, 3"]
                        for tb, m in ((T0, sMA), (T1, sMB)):
                            it += [f"s_lshr_b32 {s(sT1)}, {tb << 4}, {s(sT0)}", f"s_and_b32 {s(sT2)}, {s(sT1)}, 0x30",
                                   f"s_bitcmp1_b32 {s(sT1)}, 6\ns_cselect_b32 {s(m)}, 0, 0xffff\ns_mov_b32 {s(m+1)}, 0",
                                   f"s_lshl_b64 {s(m,2)}, {s(m,2)}, {s(sT2)}"]
                        q += pack(it)
                    if k == 7 and not swap:
                        q += [[f"s_lshl1_add_u32 {s(sT0)}, {s(sN)}, 1", f"s_cmp_eq_u32 {s(sT0)}, {s(sHI)}", f"s_cbranch_scc1 {pfx}_lo", f"{pfx}_lor:"]]
                    if k == 15 and not swap:
                        q += [[f"s_add_u32 {s(sT0)}, {s(sN)}, {Cfg.wpre}"], [f"s_cmp_eq_u32 {s(sT0)}, {s(sCHK)}", f"s_cbranch_scc1 {pfx}_chk", f"{pfx}_chkr:"]]
                    if k == 15 and not swap and Cfg.hpre:
                        for j in range(Cfg.hpre * 2):
                            q += [[f"s_cmp_eq_u32 {s(sN)}, 5", f"s_cbranch_scc1 {pfx}_hp{j}", f"{pfx}_hpr{j}:"]]
                    if k == 11 and not swap and Cfg.arl and Cfg.wpre:
                        q += [[f"s_cmp_eq_u32 {s(sN)}, {s(sCHK)}", f"s_cbranch_scc1 {pfx}_chk2", f"{pfx}_chk2r:"]]
                    if k == 15 and Cfg.lnn:
                        q = [[f"s_cmp_eq_u32 {s(sN)}, 0", f"s_cbranch_scc1 {pfx}_nl{tag}", f"{pfx}_nlr{tag}:"]] + q
                    if k == 11:
                        if swap:
                            q += pack([f"s_mul_i32 {s(sSO)}, {s(sTT)}, 1280", f"s_add_u32 {s(sSO)}, {s(sSO)}, {V_OFF}"])
                        else:
                            q += pack([f"s_sub_u32 {s(sT0)}, {s(sN)}, {s(sNQ)}", f"s_lshr_b32 {s(sT0)}, {s(sT0)}, 1", f"s_mul_i32 {s(sT0)}, {s(sT0)}, {s(sP0)}", f"s_add_u32 {s(sT0)}, {s(sT0)}, {s(sCG)}",
                                f"s_lshl_b32 {s(sT0)}, {s(sT0)}, 11", f"s_mul_i32 {s(sSO)}, {s(sTT)}, {2*55296}", f"s_add_u32 {s(sSO)}, {s(sSO)}, {s(sT0)}",
                                f"s_add_u32 {s(sSO)}, {s(sSO)}, {H_OFF}",
                                f"s_mul_i32 {s(sT0)}, {s(sN)}, {1 if Cfg.adj else 5}", f"s_add_u32 {s(sT0)}, {s(sT0)}, {s(sC2)}", f"s_lshl_b32 {s(sT0)}, {s(sT0)}, 18",
                                f"s_lshl_b32 {s(sT1)}, {s(sTT)}, 9", f"s_add_u32 {s(sT0)}, {s(sT0)}, {s(sT1)}",
                                f"s_mov_b32 {s(sT1)}, 55296",
                                f"s_cmp_lt_u32 {s(sN)}, {s(sNQ)}\ns_cselect_b32 {s(sSO)}, {s(sT0)}, {s(sSO)}\ns_cselect_b32 {s(sT1)}, {4*32768}, {s(sT1)}",
                                f"s_add_u32 {s(sT3)}, {s(sSO)}, {s(sT1)}"])
                    if k == 3: q = dm
                    elif k == 19: q = spread(dm[:4 - Cfg.carry], [], {1: 1, 2: 2, 3: 3}[Cfg.carry])[:3]
                    else:
                        q = spread(dm[:3], q, Cfg.gap)
                        q = q[:3 * Cfg.gap] + dm[3:] + q[3 * Cfg.gap:]
                elif ct == 3 and k % 4 == 2:
                    while q and not q[-1]: q.pop()
                    assert not q, (k, q)
                    a(f"s_add_u32 m0, {s(sM)}, {(((k + 1) // 4 - 1) % 5) * 16384}")
                    if k + 1 == Cfg.pubk: a(f"s_cmp_eq_u32 {s(sN)}, {s(sURG)}")
                    if k + 1 == 11: a(f"s_cmp_eq_u32 {s(sN)}, {s(sPUB)}")
                    if k + 1 == 15 and not swap and Cfg.arl and Cfg.wpre: a(f"s_cmp_eq_u32 {s(sN)}, {s(sCHK)}")
                elif q: a.ext([x for x in q.pop(0) if not (Cfg.x_body & 2 and " lds" in x)])
                a(mm(1 - (ct & Cfg.snk)))
                a("s_waitcnt lgkmcnt(4)")
                a.ext(trd(k + 1, ct))
        assert not q
        setprio(a, Cfg.prioGv)
        if STAMPS and not LITE:
            for n in range(6):
                a(f"s_cmp_lg_u32 {s(sN)}, {n}"); a(f"s_cbranch_scc1 {pfx}_stm{tag}{n}"); stamp(a, f"mm{n}"); a(f"{pfx}_stm{tag}{n}:")
    def ep_stamp(tag):
        if STAMPS and not LITE:
            for n in range(6):
                a(f"s_cmp_lg_u32 {s(sN)}, {n}"); a(f"s_cbranch_scc1 {pfx}_ste{tag}{n}"); stamp(a, f"ep{n}"); a(f"{pfx}_ste{tag}{n}:")
    a(f"s_cmp_lt_u32 {s(sCG)}, 10")
    a(f"s_cbranch_scc1 {pfx}_hi")
    a(f"s_cmp_eq_u32 {s(sNQ)}, 0")
    a(f"s_cbranch_scc1 {pfx}_toffn")
    a(f"v_and_b32 {v(t0)}, 48, {v(vL)}")
    for rt in range(2):
        for i in range(4): a(f"ds_bpermute_b32 {v(VR+4*rt+i)}, {v(t0)}, {v(vA[rt])} offset:{4*i}")
    a(f"{pfx}_vloop:")
    body("v", True)
    for ct in range(4):
        for rt in range(2):
            if Cfg.pk & 2:
                for i in (0, 2): a(pk("mul", ACC+16*rt+4*ct+i, [ACC+16*rt+4*ct+i, VR+4*rt+i]))
            else:
                for i in range(4): a(f"v_mul_f32 {v(ACC+16*rt+4*ct+i)}, {v(ACC+16*rt+4*ct+i)}, {v(VR+4*rt+i)}")
        for rt in range(2):
            for j in range(2): a(f"v_cvt_pk_bf16_f32 {v(G+4*ct+2*rt+j)}, {v(ACC+16*rt+4*ct+2*j)}, {v(ACC+16*rt+4*ct+2*j+1)}")
        a(f"buffer_store_dwordx4 {v(G+4*ct,4)}, {v(VA+ct)}, {s(S_WS,4)}, {s(sSO)} offen{SC1}")
    ep_stamp("v")
    a(f"s_cmp_eq_u32 {s(sN)}, 1")
    a(f"s_cbranch_scc1 {pfx}_qdone")
    for ct in range(4): a(f"v_mov_b32 {v(VA+ct)}, {v(VA+4+ct)}")
    a(f"s_mov_b32 {s(sN)}, 1")
    if Cfg.lnn: a(f"s_waitcnt vmcnt({3 + 4 + 4 - Cfg.carry})")
    nonce_check(a, f"{pfx}_ncv", V_NONCE, sT0, sT1, f"{pfx}_vloop")
    for tag in "vn":
        if Cfg.lnn:
            a(f"{pfx}_nl{tag}:"); nonce_load(a, V_NONCE); a(f"s_branch {pfx}_nlr{tag}")
        a(f"{pfx}_sw{tag}:")
        if tag == "n" and Cfg.wpre:
            a(f"s_cmp_eq_u32 {s(sN)}, 5")
            a(f"s_cbranch_scc1 {pfx}_sww")
            a(f"s_mov_b32 {s(sPB0)}, 5")
        a(params_v()); a(f"s_branch {pfx}_swr{tag}")
        if tag == "n" and Cfg.wpre:
            a(f"{pfx}_sww:")
            a(f"s_mov_b32 {s(SW)}, {s(P_WS)}"); a(f"s_mov_b32 {s(SW+1)}, {s(P_WS+1)}"); a(f"s_mov_b32 {s(SW+2)}, {WS_BYTES}")
            a(f"s_lshr_b32 {s(sO)}, s2, 5")
            a(f"s_mul_i32 {s(sO)}, {s(sO)}, {74*5120}")
            a(f"s_add_u32 {s(sO)}, {s(sO)}, {WR_OFF}")
            a(f"s_add_u32 {s(sO)}, {s(sO)}, {s(sM)}")
            a(f"s_mov_b32 {s(sDA)}, 0"); a(f"s_mov_b32 {s(sDB)}, 0"); a(f"s_movk_i32 {s(sDC)}, 16384")
            setprio(a, Cfg.prioGv)
            a(f"v_mov_b32 {v(vD)}, {v(vST)}")
            setprio(a, Cfg.prioGm)
            a(f"s_branch {pfx}_swr{tag}")
        a(f"{pfx}_pub{tag}:")
        a(f"s_waitcnt vmcnt({ {3: Cfg.carry, 7: 4 + Cfg.carry}[Cfg.pubk] })")
        a("s_barrier")
        a(f"s_cmp_lt_u32 {2 * NU + 1}, {s(sHI)}")
        a(f"s_cbranch_scc1 {pfx}_pubhi{tag}")
        setprio(a, Cfg.prioGm)
        a(f"{pfx}_pubhi{tag}:")
        a(f"s_cmp_lg_u32 {s(S_WV)}, 0")
        a(f"s_cbranch_scc1 {pfx}_pubret{tag}")
        a(f"s_lshl4_add_u32 {s(sU)}, {s(sCG)}, {s(sRB)}")
        a(f"s_mul_i32 {s(sU)}, {s(sU)}, {Cfg.fst}")
        a(f"s_add_u32 {s(sU)}, {s(sU)}, {F0_OFF if Cfg.two else FX_OFF}")
        publish(a, sU)
        if Cfg.hint == 1:
            a(f"s_lshl_b32 {s(sU)}, s2, 7")
            a(f"s_add_u32 {s(sU)}, {s(sU)}, {FP_OFF}")
            publish(a, sU)
        stamp(a, "pub0")
        a(f"s_branch {pfx}_pubret{tag}")
    for j in range(Cfg.hpre * 2):
        a(f"{pfx}_hp{j}:")
        if j == 0:
            a(f"s_and_b32 {s(sT1)}, s2, 7")
            a(f"s_bfe_u32 {s(sT2)}, s2, {3 | (2<<16)}")
            a(f"s_lshl2_add_u32 {s(sT1)}, {s(sT1)}, {s(sT2)}")
            a(f"s_lshl2_add_u32 {s(sT1)}, {s(sT1)}, {s(S_WV)}")
            a(f"s_mul_i32 {s(sT1)}, {s(sT1)}, 55296")
            a(f"s_add_u32 {s(sT1)}, {s(sT1)}, {H_OFF}")
        for i in range(4): a(f"buffer_load_dwordx4 {v(G2.HFS[j]+4*i,4)}, {v(vST)}, {s(S_WS,4)}, {s(sT1)} offen offset:{i*1024} sc1")
        a(f"s_add_u32 {s(sT1)}, {s(sT1)}, 4096")
        a(f"s_branch {pfx}_hpr{j}")
    if Cfg.arl and Cfg.wpre:
        a(f"{pfx}_chk2:")
        a(f"buffer_load_dword {v(vDCo)}, {v(vDR)}, {s(S_WS,4)}, 0 offen sc1")
        a(f"s_branch {pfx}_chk2r")
        a(f"{pfx}_chk3:")
        setprio(a, Cfg.prioGv)
        a("s_waitcnt vmcnt(3)")
        a(f"v_cmp_ne_u32 vcc, {v(vDCo)}, {v(V_NONCE)}")
        a(f"s_mov_b32 {s(sT0)}, 0")
        a("s_nop 0")
        a(f"s_cbranch_vccz {pfx}_px_ok")
        poll(a, f"{pfx}_px", vDR, sT0, vDCo, sT1, Cfg.p4s)
        setprio(a, Cfg.prioGm)
        a(f"s_branch {pfx}_chk3r")
    a(f"{pfx}_lo:"); setprio(a, Cfg.prioGm); a(f"s_branch {pfx}_lor")
    a(f"{pfx}_chk:")
    a(f"buffer_load_dword {v(vDCo)}, {v(vDR)}, {s(S_WS,4)}, 0 offen sc1")
    a(f"s_branch {pfx}_chkr")
    for tag in "vn":
        a(f"{pfx}_pz{tag}:")
        publish(a, sF)
        a(f"s_mov_b32 {s(sPUB)}, 4")
        a(f"s_lshl4_add_u32 {s(sF)}, {s(sRB)}, {s(sCG)}")
        a(f"s_lshl_b32 {s(sF)}, {s(sF)}, 6")
        a(f"s_add_u32 {s(sF)}, {s(sF)}, {F2_OFF}")
        a(f"s_branch {pfx}_pzr{tag}")
    a(f"{pfx}_eq:")
    for j in range(2):
        for rt in range(2):
            b = ACC + 16 * rt + 8 * j; d = G + 8 * j + 4 * rt
            if Cfg.pk & 2:
                for r in range(0, 8, 2): a(pk("mul", b + r, [b + r, -vA[rt] - 1]))
            else:
                for r in range(8): a(f"v_mul_f32 {v(b+r)}, {v(b+r)}, {v(vA[rt])}")
            for r in range(4): a(f"v_cvt_pk_bf16_f32 {v(d+r)}, {v(b+2*r)}, {v(b+2*r+1)}")
            if rt == 1:
                for r2 in range(2):
                    d2 = G + 8 * j + 4 * r2
                    a(f"v_permlane16_swap_b32 {v(d2)}, {v(d2+2)}")
                    a(f"v_permlane16_swap_b32 {v(d2+1)}, {v(d2+3)}")
                a(f"s_mov_b64 exec, {s((sMA, sMB)[j],2)}")
                a(f"v_swap_b32 {v(G+8*j+2)}, {v(G+8*j+4)}")
                a(f"v_swap_b32 {v(G+8*j+3)}, {v(G+8*j+5)}")
                a("s_mov_b64 exec, -1")
                for r2 in range(2):
                    d2 = G + 8 * j + 4 * r2
                    a(f"buffer_store_dwordx4 {v(d2,4)}, {v(vST)}, {s(S_WS,4)}, {s(sT3 if j else sSO)} offen offset:{r2*256}{SC1}")
    ep_stamp("q")
    a(f"s_cmp_eq_u32 {s(sN)}, 1")
    a(f"s_cbranch_scc1 {pfx}_qdone")
    a(f"s_mov_b32 {s(sN)}, 1")
    if Cfg.lnn: a(f"s_waitcnt vmcnt({3 + 4 + 4 - Cfg.carry})")
    nonce_check(a, f"{pfx}_ncq", V_NONCE, sT0, sT1, f"{pfx}_hi")
    a(f"{pfx}_qdone:")
    if Cfg.hint == 2:
        a(f"s_cmp_lg_u32 {s(S_WV)}, 3")
        a(f"s_cbranch_scc1 {pfx}_nh")
        a(f"s_lshl_b32 {s(sT0)}, s2, 7")
        a(f"s_add_u32 {s(sT0)}, {s(sT0)}, {FP_OFF}")
        publish(a, sT0)
        a(f"{pfx}_nh:")
    a(f"s_mov_b32 {s(sN)}, 2")
    a(f"{pfx}_toffn:")
    ffn_consts()
    a(f"{pfx}_loop:")
    body("n", False)
    a(f"s_cmp_lt_u32 {s(sN)}, {s(sNQ)}")
    a(f"s_cbranch_scc1 {pfx}_eq")
    a(f"s_bitcmp1_b32 {s(sN)}, 0")
    a(f"s_cbranch_scc1 {pfx}_eu")
    if Cfg.x_gexit: a("s_branch g2_end")
    for r0 in range(0, 32 if Cfg.pk & 1 else 0, 8):
        R2 = range(r0, r0 + 8, 2); R = range(r0, r0 + 8); rt = r0 // 16
        for r in R2: a(pk("mul", G + r, [ACC + r, ACC + r]))
        for r in R2: a(pk("fma", G + r, [G + r, -vB[rt] - 1, -vA[rt] - 1]))
        for r in R2: a(pk("mul", G + r, [G + r, ACC + r]))
        for r in R: a(f"v_exp_f32 {v(G+r)}, {v(G+r)}")
        for r in R2: a(pk("fma", G + r, [G + r, -vK[rt] - 1, -vK[rt] - 1]))
        for r in R: a(f"v_rcp_f32 {v(G+r)}, {v(G+r)}")
        for r in R2: a(pk("mul", G + r, [G + r, ACC + r]))
    for r0 in range(0, 32 if not Cfg.pk & 1 else 0, 4):
        R = range(r0, r0 + 4); rt = r0 // 16
        for r in R: a(f"v_mul_f32 {v(G+r)}, {v(ACC+r)}, {v(ACC+r)}")
        for r in R: a(f"v_fma_f32 {v(G+r)}, {v(G+r)}, {v(vB[rt])}, {v(vA[rt])}")
        for r in R: a(f"v_mul_f32 {v(G+r)}, {v(G+r)}, {v(ACC+r)}")
        for r in R: a(f"v_exp_f32 {v(G+r)}, {v(G+r)}")
        for r in R: a(f"v_fma_f32 {v(G+r)}, {v(G+r)}, {v(vK[rt])}, {v(vK[rt])}")
        for r in R: a(f"v_rcp_f32 {v(G+r)}, {v(G+r)}")
        for r in R: a(f"v_mul_f32 {v(G+r)}, {v(G+r)}, {v(ACC+r)}")
    if Cfg.tc & 1:
        a(f"s_cmp_lg_u32 {s(S_WV)}, 1")
        a(f"s_cbranch_scc1 {pfx}_ntc1")
        a.ext(touch("att_loopb", "att_fb", sT0, vDCo, vDCo))
        a(f"{pfx}_ntc1:")
        a(f"s_cmp_lg_u32 {s(S_WV)}, 2")
        a(f"s_cbranch_scc1 {pfx}_ntc2")
        a.ext(touch(f"{pfx}_heavy", "g2_tc1", sT0, vDCo, vDCo))
        a(f"{pfx}_ntc2:")
    ep_stamp("g")
    if Cfg.hint == 1:
        a(f"s_cmp_lg_u32 {s(sN)}, 0")
        a(f"s_cbranch_scc1 {pfx}_ncg_ok")
        a(f"s_waitcnt vmcnt({3 + 4 - Cfg.carry})")
        nonce_check(a, f"{pfx}_ncg", V_NONCE, sT0, sT1)
    a(f"s_add_u32 {s(sN)}, {s(sN)}, 1")
    if Cfg.wpre:
        a(f"s_cmp_lg_u32 {s(sN)}, {s(sCHK)}")
        a(f"s_cbranch_scc1 {pfx}_loop")
        a(f"s_waitcnt vmcnt({4 - Cfg.carry})")
        if Cfg.arl:
            a("s_mov_b32 exec_lo, 0"); a("s_mov_b32 exec_hi, 0xffff")
        a(f"v_cmp_ne_u32 vcc, {v(vDCo)}, {v(V_NONCE)}")
        a(f"s_mov_b32 {s(sT0)}, 0")
        a("s_nop 0")
        a(f"s_cbranch_vccz {pfx}_pw_ok")
        poll(a, f"{pfx}_pw", vDR, sT0, vDCo, sT1, Cfg.p4s)
        a("s_mov_b64 exec, -1")
    a(f"s_branch {pfx}_loop")
    a(f"{pfx}_eu:")
    a(f"s_cmp_eq_u32 {s(sN)}, 5")
    a(f"s_cbranch_scc1 {pfx}_heavy")
    upv = []; ups = []
    for p in range(4):
        pv = [f"v_mul_f32 {v(ACC+r)}, {v(ACC+r)}, {v(G+r)}" for r in range(8 * p, 8 * p + 8)]
        if Cfg.pk & 1: pv = [pk("mul", ACC + r, [ACC + r, G + r]) for r in range(8 * p, 8 * p + 8, 2)]
        pv += [f"v_cvt_pk_bf16_f32 {v(G+8*p+j)}, {v(ACC+8*p+2*j)}, {v(ACC+8*p+2*j+1)}" for j in range(4)]
        ps = f"buffer_store_dwordx4 {v(G+8*p,4)}, {v(vST)}, {s(S_WS,4)}, {s(sT3 if p >> 1 else sSO)} offen offset:{(p&1)*1024}{SC1}"
        a.ext(pv); a(ps); upv += pv; ups.append(ps)
    ep_stamp("u")
    a(f"s_add_u32 {s(sN)}, {s(sN)}, 1")
    if Cfg.med:
        a(f"s_sub_u32 {s(sT0)}, {s(sCG)}, 8")
        a(f"s_cmp_lt_u32 {s(sT0)}, 4")
        a(f"s_cbranch_scc1 {pfx}_medium")
    a(f"s_cmp_lt_u32 {s(sN)}, {s(sNT)}")
    a(f"s_cbranch_scc1 {pfx}_loop")
    nonce_check(a, f"{pfx}_nc2", V_NONCE, sT0, sT1)
    a(f"s_lshl_b32 {s(sF)}, {s(sRB)}, 4")
    a(f"s_add_u32 {s(sF)}, {s(sF)}, {s(sCG)}")
    a(f"s_lshl_b32 {s(sF)}, {s(sF)}, 6")
    a(f"s_add_u32 {s(sF)}, {s(sF)}, {F2_OFF}")
    a(f"s_sub_u32 {s(sT0)}, {s(sCG)}, {NL}")
    a(f"s_lshl_b32 {s(sPUB)}, {s(sT0)}, 6")
    a(f"s_add_u32 {s(sPUB)}, {s(sPUB)}, {s(sTT)}")
    if Cfg.arl: a(f"s_add_u32 {s(sPUB)}, {s(sPUB)}, 80")
    a(f"s_lshl_b32 {s(sT0)}, {s(sT0)}, 3")
    a(f"s_lshr_b32 {s(sT1)}, {s(sRB)}, 1")
    a(f"s_add_u32 {s(sT0)}, {s(sT0)}, {s(sT1)}")
    a(f"s_and_b32 {s(sT1)}, {s(sRB)}, 1")
    a(f"s_lshl_b32 {s(sT1)}, {s(sT1)}, 6")
    a(f"s_add_u32 {s(sT0)}, {s(sT0)}, {s(sT1)}")
    a(f"s_lshl_b32 {s(sT0)}, {s(sT0)}, 6")
    a(f"s_add_u32 {s(sT3)}, {s(sT0)}, {F4_OFF}")
    a("s_waitcnt vmcnt(4) lgkmcnt(0)")
    a("s_barrier")
    gen_relayout(a, pfx, sPUB, vL, (58, 59, 60, 61, 96, 97, 98, 101, 47, 48, 49), sF, sT3)
    g2_start(a, "g2l", [], [])
    a(f"s_branch {pfx}_g1end")
    if Cfg.med:
        def trh(k, ct):
            d = WF + 8 * (k & 1) + 4 * ct
            return [l.replace(v(WF + 4 * ct + 2 * t, 2), v(d + 2 * t, 2)) for t, l in enumerate(trd(k, ct))]
        a(f"{pfx}_medium:")
        a(f"s_and_b32 {s(sT0)}, {s(sCG)}, 1")
        a(f"s_lshl_b32 {s(sT1)}, {s(sT0)}, 9")
        for r in (vTA, vTB, vTA2, vTB2): a(f"v_add_u32 {v(r)}, {s(sT1)}, {v(r)}")
        for k in range(2):
            for ct in range(2): a.ext(trh(k, ct))
        a(f"s_add_u32 {s(sT1)}, {s(sCG)}, {s(sP0)}")
        a(f"s_lshl1_add_u32 {s(sT0)}, {s(sT1)}, {s(sT0)}")
        a(f"s_lshl_b32 {s(sT0)}, {s(sT0)}, 10")
        a(f"s_mul_i32 {s(sSO)}, {s(sTT)}, {2*55296}")
        a(f"s_add_u32 {s(sSO)}, {s(sSO)}, {s(sT0)}")
        a(f"s_add_u32 {s(sSO)}, {s(sSO)}, {H_OFF}")
        a(f"s_add_u32 {s(sT3)}, {s(sSO)}, 55296")
        a(f"s_sub_u32 {s(sPUB)}, {s(sCHK)}, 1")
        a(f"{pfx}_hloop:")
        a("s_waitcnt lgkmcnt(6)")
        setprio(a, Cfg.prioGm)
        flat = lambda its: [x for it in its for x in it]
        di = wdma_items(3)[4 - Cfg.carry:]
        q = di[:Cfg.carry] + [flat(di[Cfg.carry:]) + flat(pack(params_a()))]
        for k in range(20):
            for ct in range(2):
                w = WF + 8 * (k & 1) + 4 * ct
                r0_ = ct & Cfg.snk
                a(mf16(ACC + 16 * r0_ + 4 * ct, w, X + 80 * r0_ + 4 * k, "0" if k == 0 else None))
                if ct == 0 and k % 4 == 2:
                    assert not q, (k, q)
                    a(f"s_add_u32 m0, {s(sM)}, {((k // 4 - 1) % 5) * 16384}")
                    a("s_waitcnt vmcnt(8)")
                    a("s_barrier")
                    q = wdma_items((k // 4 - 1) % 5)
                    if k == 2: q = q[:4] + [flat(pack(params_b()))]
                    if k == 10: q = [[f"s_cmp_eq_u32 {s(sN)}, {s(sPUB)}", f"s_cbranch_scc1 {pfx}_hpub", f"{pfx}_hpubr:"]] + q
                    if k == 14: q = [[f"s_cmp_eq_u32 {s(sN)}, {s(sCHK)}", f"s_cbranch_scc1 {pfx}_hchk", f"{pfx}_hchkr:"]] + q
                    if k == 18: q = q[:4 - Cfg.carry]
                elif q: a.ext(q.pop(0))
                a(mf16(ACC + 16 * (1 - r0_) + 4 * ct, w, X + 80 * (1 - r0_) + 4 * k, "0" if k == 0 else None))
                a("s_waitcnt lgkmcnt(4)")
                a.ext(trh(k + 2, ct))
        assert not q
        setprio(a, Cfg.prioGv)
        a(f"s_cmp_eq_u32 {s(sN)}, 5")
        a(f"s_cbranch_scc1 {pfx}_hend")
        a("s_nop 1")
        for r0 in (0, 16):
            R2 = range(r0, r0 + 8, 2); R = range(r0, r0 + 8); rt = r0 // 16
            for r in R2: a(pk("mul", G + r, [ACC + r, ACC + r]))
            for r in R2: a(pk("fma", G + r, [G + r, -vB[rt] - 1, -vA[rt] - 1]))
            for r in R2: a(pk("mul", G + r, [G + r, ACC + r]))
            for r in R: a(f"v_exp_f32 {v(G+r)}, {v(G+r)}")
            for r in R2: a(pk("fma", G + r, [G + r, -vK[rt] - 1, -vK[rt] - 1]))
            for r in R: a(f"v_rcp_f32 {v(G+r)}, {v(G+r)}")
            for r in R2: a(pk("mul", G + r, [G + r, ACC + r]))
        a(f"s_mov_b32 {s(sN)}, 5")
        a(f"s_branch {pfx}_hloop")
        a(f"{pfx}_hpub:")
        publish(a, sF)
        a(f"s_branch {pfx}_hpubr")
        a(f"{pfx}_hchk:")
        a(f"buffer_load_dword {v(vDCo)}, {v(vDR)}, {s(S_WS,4)}, 0 offen sc1")
        a(f"s_branch {pfx}_hchkr")
        a(f"{pfx}_hend:")
        a(f"s_add_u32 {s(sF)}, {s(sF)}, {F2B_OFF - F2_OFF}")
        n_ = len(upv) // 4
        g2_start(a, "g2m", upv[:n_] + upv[2*n_:3*n_], [ups[0], ups[2]])
        a(f"s_branch {pfx}_g1end")
    a(f"{pfx}_heavy:")
    a(f"s_add_u32 {s(sF)}, {s(sF)}, {F2B_OFF - F2_OFF}")
    g2_start(a, "g2h", upv, ups, bool(Cfg.wpre))
    a(f"{pfx}_g1end:")

def att_relayout(a, pfx, idreg, vL, vLin, T, sT0, sT1, sT2, sT3):
    if Cfg.arl:
        a(f"s_and_b32 {s(sT0)}, {s(idreg)}, 255")
        a(f"s_lshl_b32 {s(sT1)}, {s(S_WV)}, 8")
        a(f"s_add_u32 {s(sT0)}, {s(sT0)}, {s(sT1)}")
        a(f"s_sub_u32 {s(sT0)}, {s(sT0)}, 176")
        a(f"s_cmp_ge_u32 {s(sT0)}, 80")
        a(f"s_cbranch_scc1 {pfx}_norl")
        srd(a, S_A, P_WD, 1728 * 1280)
        a(f"s_and_b32 {s(sT1)}, {s(sT0)}, 7")
        a(f"s_lshr_b32 {s(sT0)}, {s(sT0)}, 3")
        a(f"s_mul_i32 {s(sT2)}, {s(sT0)}, {32*1280}")
        a(f"s_mul_i32 {s(sT3)}, {s(sT1)}, 160")
        a(f"s_add_u32 {s(sT2)}, {s(sT2)}, {s(sT3)}")
        a(f"s_movk_i32 {s(sT3)}, 1120")
        for i in range(5):
            a(f"v_add_u32 v12, {64*i}, {v(vL)}")
            a(f"v_mul_u32_u24 v13, 6554, v12")
            a(f"v_lshrrev_b32 v13, 16, v13")
            a(f"v_lshlrev_b32 v12, 4, v12")
            a(f"s_movk_i32 m0, {i*1024}")
            a(f"v_mad_u32_u24 v12, v13, {s(sT3)}, v12")
            a(f"buffer_load_dwordx4 v12, {s(S_A,4)}, {s(sT2)} offen lds")
        a(f"v_lshrrev_b32 v12, 2, {v(vL)}")
        a(f"v_mul_u32_u24 v12, 160, v12")
        a(f"v_and_b32 v13, 3, {v(vL)}")
        a(f"v_mad_u32_u24 v12, v13, 40, v12")
        a(f"v_add_u32 v13, 4096, {v(vLin)}")
        a(f"s_mul_i32 {s(sT2)}, {s(sT1)}, 74")
        a(f"s_add_u32 {s(sT2)}, {s(sT2)}, {s(sT0)}")
        a(f"s_mul_i32 {s(sT2)}, {s(sT2)}, 5120")
        a(f"s_add_u32 {s(sT2)}, {s(sT2)}, {WR_OFF}")
        a(f"s_lshl4_add_u32 {s(sT0)}, {s(sT1)}, {s(sT0)}")
        a(f"s_lshl_b32 {s(sT0)}, {s(sT0)}, 6")
        a(f"s_add_u32 {s(sT0)}, {s(sT0)}, {F5_OFF}")
        a("s_waitcnt vmcnt(0)")
        for mt in range(5):
            for u in range(2): a(f"ds_read_b64_tr_b16 {v(T+4*mt+2*u,2)}, v12 offset:{u*2560+8*mt}")
        a("s_waitcnt lgkmcnt(0)")
        for mt in range(5):
            a(f"buffer_store_dwordx4 {v(T+4*mt,4)}, {v(vLin) if mt < 4 else 'v13'}, {s(S_WS,4)}, {s(sT2)} offen offset:{(mt&3)*1024} sc1")
        a("s_waitcnt vmcnt(0)")
        publish(a, sT0)
        a(f"{pfx}_norl:")

def gen_att1(a, pfx, idreg):
    vL, vK1, vK2, vV0, vV1, vQ1, vQ2 = 1, 2, 3, 4, 5, 20, 21
    P, S, O, Q, KV = 24, 32, 64, 128, 152
    sHD, sQB, sKH, sQH, sK1, sK2, sV, sG, sIT = 41, 42, 43, 44, 45, 46, 47, 48, 49
    sK1b, sK2b, sVb = 50, 51, 52
    sT0, sT1, sT2, sT3 = 54, 55, 56, 57
    sVM = 58
    sQ = 96
    sLB, sDK, sDV, sG4 = 53, 60, 61, 100
    vLin, vLK1, vLK2, vLV, vMB, vMI, vM = 208, 209, 210, 211, 212, 213, 214
    vXW, vXR, vOM, vOL = 215, 216, 217, 218
    vQS, vQA, vQB = 219, 240, 242
    sPQ, sPK, sPV, sPM = 33, 34, 35, 36
    sOM, sOL, sF3, sHX, sHW = 28, 30, 31, 101, 32
    a(f"v_and_b32 {v(vL)}, 63, v0")
    a(f"v_lshrrev_b32 v6, 6, v0")
    a(f"s_and_b32 {s(sT0)}, {s(idreg)}, 7")
    a(f"v_readfirstlane_b32 {s(S_WV)}, v6")
    EARLY = list(range(16)) if Cfg.early else []
    a(f"s_bfe_u32 {s(sT1)}, {s(idreg)}, {6 | (2<<16)}")
    a(f"s_and_b32 {s(sHD)}, {s(sT1)}, 1")
    a(f"s_lshl1_add_u32 {s(sHD)}, {s(sT0)}, {s(sHD)}")
    a(f"s_lshr_b32 {s(sT2)}, {s(sT1)}, 1")
    a(f"s_lshl4_add_u32 {s(sHD)}, {s(sT2)}, {s(sHD)}")
    if Cfg.early == 3:
        a(f"s_lshr_b32 {s(sHD)}, {s(sT0)}, 1")
        a(f"s_lshl2_add_u32 {s(sHD)}, {s(sHD)}, {s(sT1)}")
        a(f"s_and_b32 {s(sT2)}, {s(sT0)}, 1")
        a(f"s_lshl4_add_u32 {s(sHD)}, {s(sT2)}, {s(sHD)}")
    if Cfg.cpf == 1:
        a(f"s_getpc_b64 {s(sT0,2)}")
        a(f"{pfx}_pc:")
        a(f"s_sub_u32 {s(sT0)}, {s(sT0)}, {pfx}_pc-{NAME}_kernel")
        a(f"s_subb_u32 {s(sT1)}, {s(sT1)}, 0")
        a(f"s_bfe_u32 {s(sT2)}, {s(idreg)}, {3 | (5<<16)}")
        a(f"s_lshl_b32 {s(sT2)}, {s(sT2)}, 2")
        a(f"s_add_u32 {s(sT2)}, {s(sT2)}, {s(S_WV)}")
        a(f"s_lshl_b32 {s(sT2)}, {s(sT2)}, 8")
        a(f"s_cmp_ge_u32 {s(sT2)}, {NAME}_kernel_end-{NAME}_kernel-256")
        a(f"s_cbranch_scc1 {pfx}_nopf")
        a(f"v_lshl_add_u32 v12, {v(vL)}, 2, {s(sT2)}")
        a(f"global_load_dword v13, v12, {s(sT0,2)}")
        a(f"{pfx}_nopf:")

    a(f"s_bfe_u32 {s(sQB)}, {s(idreg)}, {3 | (3<<16)}")
    a(f"s_and_b32 {s(sQH)}, {s(S_WV)}, 1")
    a(f"s_lshr_b32 {s(sKH)}, {s(S_WV)}, 1")
    a(f"s_lshr_b32 {s(sT0)}, {s(sHD)}, 1")
    a(f"s_mul_i32 {s(sT0)}, {s(sT0)}, 5")
    a(f"s_and_b32 {s(sT1)}, {s(sHD)}, 1")
    a(f"s_mul_i32 {s(sT2)}, {s(sT1)}, 3")
    a(f"s_add_u32 {s(sT2)}, {s(sT2)}, {s(sT0)}")
    a(f"s_lshl_b32 {s(sK1b)}, {s(sT2)}, 15")
    a(f"s_add_u32 {s(sT0)}, {s(sT0)}, 2")
    a(f"s_lshl_b32 {s(sK2b)}, {s(sT0)}, 15")
    a(f"s_lshl_b32 {s(sT1)}, {s(sT1)}, 8")
    a(f"s_add_u32 {s(sK2b)}, {s(sK2b)}, {s(sT1)}")
    a(f"v_and_b32 v6, 31, {v(vL)}")
    a(f"v_lshrrev_b32 v7, 5, {v(vL)}")
    a(f"v_lshlrev_b32 {v(vQ2)}, 4, v6")
    a(f"v_lshl_add_u32 {v(vQ1)}, v7, 15, {v(vQ2)}")
    a(f"v_and_b32 {v(vK2)}, 7, v6")
    a(f"v_bfe_u32 v8, v6, 3, 1")
    a(f"v_lshl_add_u32 {v(vK2)}, v8, 4, {v(vK2)}")
    a(f"v_lshrrev_b32 v8, 4, v6")
    a(f"v_lshl_add_u32 {v(vK2)}, v8, 3, {v(vK2)}")
    a(f"v_lshlrev_b32 {v(vK2)}, 4, {v(vK2)}")
    a(f"v_lshl_add_u32 {v(vK1)}, v7, 15, {v(vK2)}")
    a(f"v_mul_u32_u24 {v(vV0)}, 320, v7")
    a(f"v_add_u32 {v(vV0)}, {v(vV0)}, {v(vQ2)}")
    for r in (vQ2, vK2):
        a(f"v_lshrrev_b32 v8, 8, {v(r)}")
        a(f"v_and_b32 {v(r)}, 0xff, {v(r)}")
        a(f"v_lshl_add_u32 {v(r)}, v8, 3, {v(r)}")
    a(f"v_add_u32 {v(vV1)}, 640, {v(vV0)}")
    a(f"s_mov_b32 {s(sVM)}, 0xfffff")
    a(f"s_mov_b32 {s(sVM+1)}, 0xfffff")
    if Cfg.dry:
        for r in (vLK1, vLK2, vLV): a(f"v_mov_b32 {v(r)}, 0")
        a(f"s_mov_b32 {s(sHW)}, -1"); a(f"s_mov_b32 {s(sHX)}, -1"); a(f"s_mov_b32 {s(sIT)}, {Cfg.dry}"); a("s_mov_b32 s39, 1")
        a("s_waitcnt lgkmcnt(0)")
        srd(a, S_WS, P_WS, 0)
        a(f"s_branch {pfx}_loopb")
        a(f"{pfx}_dryr:")
        a("s_mov_b32 s39, 0")
        a("s_waitcnt lgkmcnt(0)")
        a("s_nop 11")
    a(f"v_cmp_eq_u32 vcc, 20, v6")
    a(f"v_mov_b32 v8, 0x3f803f80")
    a("s_nop 0")
    a(f"v_cndmask_b32 v10, 0, v8, vcc")
    for u in range(4):
        for r in range(4, 12): a(f"v_mov_b32 {v(KV+14*u+r)}, v10")
    for q in range(4):
        a(f"v_mov_b32 {v(Q+6*q+4)}, 0"); a(f"v_mov_b32 {v(Q+6*q+5)}, 0")
    for r in range(64): a(f"v_mov_b32 {v(O+r)}, 0")
    for r in range(8): a(f"v_mov_b32 {v(P+r)}, 0")
    a("s_waitcnt lgkmcnt(0)")
    srd(a, S_WS, P_WS, WS_BYTES)
    if Cfg.tlb:
        a(f"s_cmp_lg_u32 {s(S_WV)}, 0")
        a(f"s_cbranch_scc1 {pfx}_notlb")
        a(f"v_lshlrev_b32 v12, 21, {v(vL)}")
        a("s_mov_b64 exec, 3")
        for i, (p, nb) in enumerate(((P_WQKV, 640*3840), (P_WG, 640*3456), (P_WU, 640*3456), (P_WD, 1728*1280), (P_OUT, 2048*1280))):
            a(f"global_load_dword {v(240+i)}, v12, {s(p,2)}")
        a("s_mov_b64 exec, 1")
        a(f"global_load_dword v246, v12, {s(P_WO,2)}")
        a(f"s_mov_b64 exec, {(1 << ((WS_BYTES >> 21) + 1)) - 1}")
        a(f"global_load_dword v247, v12, {s(P_WS,2)}")
        a("s_mov_b64 exec, -1")
        a(f"{pfx}_notlb:")
    if Cfg.fused:
        a(f"v_mov_b32 {v(V_NONCE)}, 0")
        a("s_nop 0")
        nonce_check(a, f"{pfx}_nc", 12, sT0, sT1)
        a(f"v_lshlrev_b32 {v(vLin)}, 4, {v(vL)}")
        att_relayout(a, pfx, idreg, vL, vLin, 220, sT0, sT1, sT2, sT3)
        if Cfg.wpf:
            a(f"s_and_b32 {s(sT0)}, {s(idreg)}, 255")
            a(f"s_lshl_b32 {s(sT0)}, {s(sT0)}, 2")
            a(f"s_add_u32 {s(sT0)}, {s(sT0)}, {s(S_WV)}")
            srd(a, S_B, P_WD, 1728 * 1280)
            srd(a, S_C, P_WO, 640 * 1280)
            a(f"s_mul_i32 {s(sT1)}, {s(sT0)}, {17*128}")
            a(f"s_mul_i32 {s(sT2)}, {s(sT0)}, {7*128}")
            a(f"v_lshlrev_b32 v12, 7, {v(vL)}")
            a("s_mov_b64 exec, 0x1ffff")
            a(f"buffer_load_dword v13, v12, {s(S_B,4)}, {s(sT1)} offen")
            a("s_mov_b64 exec, 0x7f")
            a(f"buffer_load_dword v14, v12, {s(S_C,4)}, {s(sT2)} offen")
            a("s_mov_b64 exec, -1")
            a("s_waitcnt vmcnt(0)")
        pass
    a(f"s_lshl_b32 {s(sT0)}, {s(sQB)}, 12")
    a(f"s_lshl_b32 {s(sT1)}, {s(sQH)}, 11")
    a(f"s_add_u32 {s(sT0)}, {s(sT0)}, {s(sT1)}")
    a(f"s_lshl_b32 {s(sT1)}, {s(sKH)}, 10")
    a(f"s_add_u32 {s(sT3)}, {s(sT0)}, {s(sT1)}")
    a(f"s_xor_b32 {s(sT2)}, {s(sT3)}, 1024")
    a(f"s_add_u32 {s(sQ)}, {s(sT2)}, {s(sK1b)}")
    a(f"s_add_u32 {s(sQ+1)}, {s(sT3)}, {s(sK1b)}")
    a(f"s_add_u32 {s(sQ+2)}, {s(sT2)}, {s(sK2b)}")
    a(f"s_add_u32 {s(sQ+3)}, {s(sT3)}, {s(sK2b)}")
    a(f"s_lshl_b32 {s(sT0)}, {s(sKH)}, 14")
    a(f"s_add_u32 {s(sT0)}, {s(sT0)}, {80*32768}")
    a(f"s_add_u32 {s(sK1b)}, {s(sK1b)}, {s(sT0)}")
    a(f"s_add_u32 {s(sK2b)}, {s(sK2b)}, {s(sT0)}")
    a(f"s_mul_i32 {s(sVb)}, {s(sHD)}, 81920")
    a(f"s_mul_i32 {s(sT0)}, {s(sKH)}, 40960")
    a(f"s_add_u32 {s(sVb)}, {s(sVb)}, {s(sT0)}")
    a(f"s_add_u32 {s(sVb)}, {s(sVb)}, {V_OFF}")
    a(f"s_and_b32 {s(sG)}, {s(sQB)}, {Cfg.stg}")
    a(f"s_add_u32 {s(sG)}, {s(sG)}, {s(sHD) if Cfg.stg != 7 else 0}")
    a(f"s_and_b32 {s(sG)}, {s(sG)}, 7")
    def setgrp():
        return [f"s_lshl_b32 {s(sT0)}, {s(sG)}, 11", f"s_add_u32 {s(sK1)}, {s(sK1b)}, {s(sT0)}", f"s_add_u32 {s(sK2)}, {s(sK2b)}, {s(sT0)}",
                f"s_mul_i32 {s(sT0)}, {s(sG)}, 5120", f"s_add_u32 {s(sV)}, {s(sVb)}, {s(sT0)}"]
    a.ext(setgrp())
    a(f"s_mov_b32 {s(sIT)}, {8 if Cfg.nost else 4}")
    a(f"s_mul_i32 {s(sT0)}, {s(sKH)}, 10240")
    a(f"s_mul_i32 {s(sLB)}, {s(sQH)}, 5120")
    a(f"s_add_u32 {s(sLB)}, {s(sLB)}, {s(sT0)}")
    a(f"v_lshlrev_b32 {v(vLin)}, 4, {v(vL)}")
    a(f"v_add_u32 {v(vLK1)}, {s(sT0)}, {v(vLin)}")
    a(f"s_add_u32 {s(sT1)}, {s(sT0)}, 2048")
    a(f"v_add_u32 {v(vLV)}, {s(sT1)}, {v(vV0)}")
    a(f"s_add_u32 {s(sT1)}, {s(sT0)}, 4608")
    a(f"v_add_u32 {v(vLK2)}, {s(sT1)}, {v(vK2)}")
    a(f"s_lshl_b32 {s(sT0)}, {s(sQH)}, 10")
    a(f"s_add_u32 {s(sDK)}, {s(sK1b)}, {s(sT0)}")
    a(f"s_add_u32 {s(sT0)}, {s(sK2b)}, {s(sT0)}")
    a(f"s_mul_i32 {s(sT1)}, {s(sQH)}, 2560")
    a(f"s_add_u32 {s(sDV)}, {s(sVb)}, {s(sT1)}")
    a(f"s_add_u32 {s(sT1)}, {s(sDV)}, 2048")
    a(f"v_add_u32 {v(vMB)}, {s(sT1)}, {v(vLin)}")
    a(f"v_mov_b32 {v(vMI)}, 5120")
    a(f"v_bfe_u32 v8, {v(vL)}, 4, 1")
    a(f"v_and_b32 v9, 15, {v(vL)}")
    a(f"v_lshlrev_b32 v9, 4, v9")
    a(f"v_lshl_add_u32 v8, v8, 9, v9")
    a("s_mov_b32 exec_lo, 0")
    a(f"v_add_u32 {v(vMB)}, {s(sT0)}, v8")
    a(f"v_mov_b32 {v(vMI)}, 2048")
    a("s_mov_b32 exec_lo, -1")
    if Cfg.lpro:
        a(f"v_mov_b32 {v(vQS)}, v8")
        a(f"v_mad_u32_u24 {v(vM)}, {v(vMI)}, {s(sG)}, {v(vMB)}")
        a(f"s_mul_i32 {s(sPQ)}, {s(S_WV)}, 2560")
        a(f"s_add_u32 {s(sPQ)}, {s(sPQ)}, 61440")
        a(f"s_xor_b32 {s(sT0)}, {s(S_WV)}, 2")
        a(f"s_mul_i32 {s(sT0)}, {s(sT0)}, 2560")
        a(f"s_add_u32 {s(sT0)}, {s(sT0)}, 61440")
        for i, r in enumerate((sT0, sPQ)):
            a(f"v_add_u32 {v(vQA+i)}, {s(r)}, {v(vLin)}")
            a(f"v_add_u32 {v(vQB+i)}, {s(r)}, {v(vQ2)}")
        a(f"s_lshl_b32 {s(sPK)}, {s(sG)}, 11")
        a(f"s_add_u32 {s(sPK)}, {s(sPK)}, {s(sDK)}")
        a(f"s_mul_i32 {s(sPV)}, {s(sG)}, 5120")
        a(f"s_add_u32 {s(sPV)}, {s(sPV)}, {s(sDV)}")
        a(f"s_lshl_b32 {s(sT0)}, {s(sQH)}, 4")
        a(f"s_lshl_b32 {s(sPM)}, 0xffff, {s(sT0)}")
        a(f"s_mov_b32 {s(sPM+1)}, 0")
    a(f"s_cmp_eq_u32 {s(S_WV)}, 0")
    a(f"s_cselect_b32 {s(sHW)}, {1 if Cfg.hau < 4 else 5 - Cfg.hau // 4}, -1")
    a(f"s_cselect_b32 {s(sHX)}, {5 - Cfg.hb // 4}, -1")
    a(f"s_mul_i32 {s(sT0)}, {s(S_WV)}, 6144")
    a(f"s_xor_b32 {s(sT1)}, {s(S_WV)}, 2")
    a(f"s_mul_i32 {s(sT1)}, {s(sT1)}, 6144")
    a(f"v_add_u32 {v(vXW)}, {s(sT0)}, {v(vLin)}")
    a(f"v_add_u32 {v(vXR)}, {s(sT1)}, {v(vLin)}")
    a(f"v_bfe_u32 v8, {v(vL)}, 4, 1")
    a(f"v_lshl_add_u32 {v(vOM)}, v8, 14, v9")
    a(f"v_lshl_add_u32 {v(vOM)}, v7, 8, {v(vOM)}")
    a(f"s_lshl_b32 {s(sT0)}, {s(sQB)}, 2")
    a(f"s_lshl_b32 {s(sT1)}, {s(sQH)}, 1")
    a(f"s_add_u32 {s(sT0)}, {s(sT0)}, {s(sT1)}")
    a(f"s_add_u32 {s(sT0)}, {s(sT0)}, {s(sKH)}")
    a(f"s_lshl_b32 {s(sF3)}, {s(sT0)}, 5")
    a(f"s_add_u32 {s(sF3)}, {s(sF3)}, {s(sHD)}")
    a(f"s_lshl_b32 {s(sF3)}, {s(sF3)}, 6")
    a(f"s_add_u32 {s(sF3)}, {s(sF3)}, {F3_OFF}")
    a(f"s_lshl_b32 {s(sT1)}, {s(sHD)}, 9")
    a(f"s_lshl_b32 {s(sT2)}, {s(sT0)}, 16")
    a(f"s_add_u32 {s(sOM)}, {s(sT1)}, {s(sT2)}")
    a(f"s_add_u32 {s(sOM)}, {s(sOM)}, {O_OFF}")
    a(f"s_add_u32 {s(sOM+1)}, {s(sOM)}, 32768")
    a(f"s_lshl_b32 {s(sT2)}, {s(sT0)}, 14")
    a(f"s_add_u32 {s(sOL)}, {s(sT1)}, {s(sT2)}")
    a(f"s_add_u32 {s(sOL)}, {s(sOL)}, {OL_OFF}")
    if Cfg.fused:
        assert not (Cfg.adj and Cfg.early)
        a(f"s_and_b32 {s(sT0)}, {s(sHD)}, {31 if Cfg.adj else 15}")
        a(f"s_mul_i32 {s(sT0)}, {s(sT0)}, 20")
        a(f"s_add_u32 {s(sT1)}, {s(sT0)}, 19")
        a(f"s_lshr_b32 {s(sT0)}, {s(sT0)}, {6 + Cfg.adj}")
        a(f"s_lshr_b32 {s(sT1)}, {s(sT1)}, {6 + Cfg.adj}")
        a(f"s_sub_u32 {s(sT1)}, {s(sT1)}, {s(sT0)}")
        a(f"v_bfe_u32 v12, {v(vL)}, 3, 1")
        a(f"v_mul_u32_u24 v12, {s(sT1)}, v12")
        a(f"v_add_u32 v12, {s(sT0)}, v12")
        a(f"v_bfe_u32 v13, {v(vL)}, 4, 1")
        a(f"v_mad_u32_u24 v13, v13, 5, 5")
        a(f"s_lshl_b32 {s(sT2)}, {s(sKH)}, 3")
        a(f"v_and_b32 v14, 7, {v(vL)}")
        a(f"v_add_u32 v14, {s(sT2)}, v14")
        a(f"s_add_u32 {s(sT2)}, {s(sT2)}, {s(sG)}")
        a(f"v_mov_b32 v15, {s(sT2)}")
        if Cfg.wgp:
            a(f"v_and_b32 v16, 1, {v(vL)}")
            a(f"v_lshl_add_u32 v15, v16, 3, v15")
        a(f"s_lshl_b32 {s(sT2)}, {s(sQB)}, 1")
        a(f"s_add_u32 {s(sT2)}, {s(sT2)}, {s(sQH)}")
        a("s_mov_b32 exec_lo, 0")
        a(f"v_mov_b32 v13, 0")
        a(f"v_mov_b32 v14, {s(sT2)}")
        a(f"v_add_u32 v15, {s(sT2)}, v16" if Cfg.wgp else f"v_mov_b32 v15, {s(sT2)}")
        a("s_mov_b32 exec_lo, -1")
        a(f"v_add_u32 v12, v12, v13")
        a(f"v_lshl_add_u32 v15, v12, 4, v15")
        a(f"v_lshl_add_u32 v12, v12, 4, v14")
        assert Cfg.fst == 64 or not Cfg.early
        a(f"v_mul_u32_u24 v12, {Cfg.fst}, v12")
        a(f"v_mul_u32_u24 v15, {Cfg.fst}, v15")
        a(f"s_mov_b32 {s(sT3)}, {FX_OFF}")
        if Cfg.early == 2:
            a(f"s_and_b32 {s(sT0)}, {s(idreg)}, 0x81")
            a(f"s_cmp_eq_u32 {s(sT0)}, 1")
        else: a(f"s_cmp_lt_u32 {s(sHD)}, {len(EARLY)}")
        a(f"s_cselect_b32 {s(sT3)}, {F0_OFF}, {s(sT3)}")
        if Cfg.spf:
            a(f"s_and_b32 s4, {s(idreg)}, 1"); a(f"s_bfe_u32 s5, {s(idreg)}, {5 | (3<<16)}"); a("s_lshl3_add_u32 s4, s4, s5")
            a("s_lshl_b32 s4, s4, 7")
            a(f"s_bfe_u32 s5, {s(idreg)}, {3 | (2<<16)}"); a(f"s_lshl2_add_u32 s5, s5, {s(S_WV)}")
            a(f"s_mul_i32 s5, s5, {40*3456}"); a("s_add_u32 s4, s4, s5")
            for P_ in ([P_WG] if Cfg.spf & 2 else []) + ([P_WU] if Cfg.spf & 1 else []):
                a("s_mov_b32 s5, s4")
                for i in range(40):
                    a(f"s_load_dword s6, {s(P_,2)}, s5")
                    a("s_add_u32 s5, s5, 3456")
                    if i % Cfg.spn == Cfg.spn - 1: a("s_waitcnt lgkmcnt(0)")
            a("s_waitcnt lgkmcnt(0)")
        stamp(a, "a_ready")
        setprio(a, 3)
        if Cfg.hint and not Cfg.eh:
            a(f"s_and_b32 {s(sT1)}, {s(idreg)}, 255")
            if Cfg.hint == 2:
                a(f"s_and_b32 {s(sT0)}, {s(sT1)}, 0xe1")
                a(f"s_cmp_eq_u32 {s(sT0)}, 0xe1")
                a(f"s_cselect_b32 {s(sT0)}, 32, 0")
                a(f"s_sub_u32 {s(sT1)}, {s(sT1)}, {s(sT0)}")
            if Cfg.early:
                a(f"s_cmp_eq_u32 {s(sT3)}, {F0_OFF}")
                a(f"s_cbranch_scc1 {pfx}_ph_ok")
            a(f"s_lshl_b32 {s(sT1)}, {s(sT1)}, 7")
            a(f"s_add_u32 {s(sT1)}, {s(sT1)}, {FP_OFF}")
            a("s_mov_b64 exec, 1")
            poll(a, f"{pfx}_ph", None, sT1, 16, sT0, Cfg.phs)
            a("s_mov_b64 exec, -1")
        if Cfg.spoll:
            SA, SD = 4, 10
            for i in range(6): a(f"v_readlane_b32 {s(SA+i)}, v15, {8*i}")
            a(f"v_readfirstlane_b32 s16, {v(V_NONCE)}")
            for i in range(6): a(f"s_add_u32 {s(SA+i)}, {s(SA+i)}, {s(sT3)}")
            a(f"s_mov_b32 {s(sT0)}, 0x20000")
            a(f"{pfx}_sp:")
            for i in range(6): a(f"s_load_dword {s(SD+i)}, {s(P_WS,2)}, {s(SA+i)} glc")
            a("s_waitcnt lgkmcnt(0)")
            for i in range(6): a(f"s_xor_b32 {s(SD+i)}, {s(SD+i)}, s16")
            for i in range(1, 6): a(f"s_or_b32 {s(SD)}, {s(SD)}, {s(SD+i)}")
            a(f"s_cbranch_scc0 {pfx}_sp_ok")
            a(f"s_sub_u32 {s(sT0)}, {s(sT0)}, 1")
            a(f"s_cbranch_scc1 {pfx}_sp_ok")
            a(f"s_sleep {Cfg.p0s}")
            a(f"s_branch {pfx}_sp")
            a(f"{pfx}_sp_ok:")
        else:
            if Cfg.wgp:
                a(f"s_cmp_lg_u32 {s(S_WV)}, 0"); a(f"s_cbranch_scc1 {pfx}_p0_ok")
            poll(a, f"{pfx}_p0", 15, sT3, 16, sT0, Cfg.p0s, 17 if Cfg.pp0 else None)
            if Cfg.eh:
                a(f"s_cmp_lg_u32 {s(S_WV)}, 0"); a(f"s_cbranch_scc1 {pfx}_ph_ok")
                a(f"s_cmp_lg_u32 {s(sT3)}, {F0_OFF}"); a(f"s_cbranch_scc1 {pfx}_ph_ok")
                a(f"s_and_b32 {s(sT1)}, {s(idreg)}, 255")
                a(f"s_lshl_b32 {s(sT1)}, {s(sT1)}, 7")
                a(f"s_add_u32 {s(sT1)}, {s(sT1)}, {FP_OFF}")
                a("s_mov_b64 exec, 1")
                poll(a, f"{pfx}_ph", None, sT1, 16, sT0, Cfg.phs)
                a("s_mov_b64 exec, -1")
            if Cfg.wgp: a("s_barrier")
        setprio(a, Cfg.prioB)
        stamp(a, "a_go")
    def kvload(u):
        b = KV + 14 * u
        return [f"buffer_load_dwordx4 {v(b,4)}, {v(vK1)}, {s(S_WS,4)}, {s(sK1)} offen offset:{u*512}{SC1}",
                f"buffer_load_dwordx2 {v(b+12,2)}, {v(vK2)}, {s(S_WS,4)}, {s(sK2)} offen offset:{u*512}{SC1}",
                f"s_mov_b64 exec, {s(sVM,2)}",
                f"buffer_load_dwordx4 {v(b+4,4)}, {v(vV0)}, {s(S_WS,4)}, {s(sV)} offen offset:{u*1280}{SC1}",
                f"buffer_load_dwordx4 {v(b+8,4)}, {v(vV1)}, {s(S_WS,4)}, {s(sV)} offen offset:{u*1280}{SC1}",
                "s_mov_b64 exec, -1"]
    def kvread(u, nxt):
        b = KV + 14 * u; o = nxt * 20480 + (u >> 1) * 5120; sub = u & 1
        return [[f"ds_read_b128 {v(b,4)}, {v(vLK1)} offset:{o+sub*1024}",
                 f"ds_read_b64 {v(b+12,2)}, {v(vLK2)} offset:{o+sub*256}"],
                [f"s_mov_b64 exec, {s(sVM,2)}",
                 f"ds_read_b128 {v(b+4,4)}, {v(vLV)} offset:{o+sub*1280}",
                 f"ds_read_b128 {v(b+8,4)}, {v(vLV)} offset:{o+sub*1280+640}",
                 "s_mov_b64 exec, -1"]]
    if Cfg.lpro:
        dm = lambda va, so, off: f"buffer_load_dwordx4 {v(va)}, {s(S_WS,4)}, {so} offen offset:{off} sc1 lds"
        for m, base, ins in ((40960, sLB, [dm(vK1, s(sPK), 0)]), (0, sPQ, [dm(vQ1, s(sQ+1), 0)]),
                             (40960+512, sLB, [dm(vK1, s(sPK), 512)]), (512, sPQ, [dm(vQ1, s(sQ+1), 512)]),
                             (40960+4096, sLB, [dm(vM, "0", 0)]),
                             (2048, sPQ, ["s_mov_b32 exec_hi, 0", dm(vQS, s(sQ+3), 0), "s_mov_b32 exec_hi, -1"]),
                             (40960+2048, sLB, [dm(vLin, s(sPV), 0), dm(vLin, s(sPV), 1024)])):
            a(f"s_add_u32 m0, {s(base)}, {m}"); a("s_nop 0"); a.ext(ins)
        a(f"s_mov_b64 exec, {s(sPM,2)}")
        a(f"buffer_load_dword v13, v12, {s(S_WS,4)}, {s(sT3)} offen sc1")
        a("s_mov_b64 exec, -1")
        stamp(a, "issued")
        a("s_waitcnt vmcnt(1)")
        stamp(a, "landed")
        a("s_barrier")
        stamp(a, "bar1")
        for q in range(4): a(f"ds_read_b128 {v(Q+6*q,4)}, {v(vQA+(q>>1))} offset:{(q&1)*1024}")
        a("s_mov_b32 exec_hi, 0")
        for q in range(4): a(f"ds_read_b64 {v(Q+6*q+4,2)}, {v(vQB+(q>>1))} offset:{2048+(q&1)*256}")
        a("s_mov_b32 exec_hi, -1")
        for u in range(3):
            if u == 1: a("s_waitcnt lgkmcnt(6)")
            for x in kvread(u, 2): a.ext(x)
        stamp(a, "read")
        a(f"s_mov_b64 exec, {s(sPM,2)}")
        a("s_waitcnt vmcnt(0)")
        a(f"v_cmp_ne_u32 vcc, v13, {v(V_NONCE)}")
        a("s_nop 1")
        a(f"s_cbranch_vccz {pfx}_p1_ok")
        poll(a, f"{pfx}_p1", 12, sT3, 13, sT0, Cfg.p1s)
        a("s_mov_b64 exec, -1")
        a("s_waitcnt lgkmcnt(0)")
        stamp(a, "chk")
        a("s_barrier")
    else:
        for q in range(4):
            a(f"buffer_load_dwordx4 {v(Q+6*q,4)}, {v(vQ1)}, {s(S_WS,4)}, {s(sQ+(q>>1))} offen offset:{(q&1)*512}{SC1}")
        if Cfg.thq >= 0: a(f"s_waitcnt vmcnt({Cfg.thq})")
        a("s_mov_b32 exec_hi, 0")
        for q in range(4):
            a(f"buffer_load_dwordx2 {v(Q+6*q+4,2)}, {v(vQ2)}, {s(S_WS,4)}, {s(sQ+2+(q>>1))} offen offset:{(q&1)*512}{SC1}")
        a("s_mov_b32 exec_hi, -1")
        for u in range(3):
            if Cfg.tha >= 0: a(f"s_waitcnt vmcnt({Cfg.tha})")
            a.ext(kvload(u))
            if u == Cfg.fpos: a(f"buffer_load_dword v13, v12, {s(S_WS,4)}, {s(sT3)} offen sc1")
        stamp(a, "issued")
        a(f"s_waitcnt vmcnt({8 - 4 * Cfg.fpos})")
        a(f"v_cmp_ne_u32 vcc, v13, {v(V_NONCE)}")
        a("s_nop 1")
        a(f"s_cbranch_vccz {pfx}_p1_ok")
        poll(a, f"{pfx}_p1", 12, sT3, 13, sT0, Cfg.p1s)
    setprio(a, Cfg.prioA)
    stamp(a, "q_kv0")
    a(mf32(S, KV, Q, "0"))
    a(mf8(S, KV + 12, Q + 4))
    a("s_nop 11")
    PAT = [("eeee", "eeeecc", "ecceee", "eeeecccc"), ("eeeec", "eeeec", "ecceece", "eeeeccc"), ("eee", "eeeeecc", "eccee", "eeeeecccc"),
           ("eeeee", "eeeccc", "eceeec", "eeeeccc"), ("eee", "eee", "eecceccee", "eeeeecccc"), ("eeeecc", "eee", "ececeeee", "eeecccc")][Cfg.pat]
    def loop(tag, lds):
        a(".p2align 3")
        a(f"{pfx}_loop{tag}:")
        ndma = [0, 0, 0, 0]
        for u in range(4):
            b = KV + 14 * u; bn = KV + 14 * ((u + 1) & 3); bp = KV + 14 * ((u - 1) & 3)
            items = []
            if not lds:
                if u == 0: items = [f"s_xor_b32 {s(sG4)}, {s(sG)}, 4", f"s_add_u32 {s(sG)}, {s(sG)}, 1", f"s_and_b32 {s(sG)}, {s(sG)}, 7"] + setgrp()
                dm = lambda va, so, off: f"buffer_load_dwordx4 {v(va)}, {s(S_WS,4)}, {so} offen offset:{off} sc1 lds"
                if u == 1: items = [f"s_lshl_b32 {s(sT0)}, {s(sG4)}, 11", f"s_mov_b32 m0, {s(sLB)}", [f"s_add_u32 {s(sT0)}, {s(sT0)}, {s(sDK)}", dm(vK1, s(sT0), 0)],
                                    f"s_add_u32 m0, {s(sLB)}, 512", [f"s_mul_i32 {s(sT1)}, {s(sG4)}, 5120", dm(vK1, s(sT0), 512)],
                                    f"s_add_u32 m0, {s(sLB)}, 2048"]
                if u == 2: items = [[f"s_add_u32 {s(sT1)}, {s(sT1)}, {s(sDV)}", dm(vLin, s(sT1), 0)],
                                    [f"v_mad_u32_u24 {v(vM)}, {v(vMI)}, {s(sG4)}, {v(vMB)}"], [dm(vLin, s(sT1), 1024)],
                                    f"s_add_u32 m0, {s(sLB)}, 4096", [f"s_add_u32 {s(sLB)}, {s(sLB)}, 20480", dm(vM, "0", 0)]]
            if Cfg.nost and u in (1, 2): items = []
            if Cfg.gate and lds == (Cfg.hau >= 4) and u == Cfg.hau % 4:
                items += [f"s_cmp_eq_u32 {s(sIT)}, {s(sHW)}", [f"s_cbranch_scc1 {pfx}_ha", f"{pfx}_har:"]]
            if Cfg.gj >= 0 and lds and u == Cfg.hb % 4:
                items += [f"s_cmp_eq_u32 {s(sIT)}, {s(sHX)}", [f"s_cbranch_scc1 {pfx}_hx", f"{pfx}_hxr:"]]
            if lds and u == Cfg.mbu:
                items += [f"s_cmp_eq_u32 {s(sIT)}, 1", [f"s_cbranch_scc1 {pfx}_mb", f"{pfx}_mbr:"]]
            if u == 3:
                items += [f"s_sub_u32 {s(sIT)}, {s(sIT)}, 1", f"s_cmp_lg_u32 {s(sIT)}, 0"]
                if lds: items += [f"v_add_u32 {v(r)}, 0x5000, {v(r)}" for r in (vLK1, vLK2, vLV)]
            ld = kvread((u + 3) & 3, u > 0) if lds else [kvload((u + 3) & 3)[:2], kvload((u + 3) & 3)[2:]]
            if Cfg.x_nokv: ld = [[], []]
            vmw = {0: 8, 1: 10, 2: 13, 3: 11}[u] if not Cfg.nost else 8
            for q in range(4):
                Sc = S + 16 * (q & 1); Sn = S + 16 * ((q + 1) & 1)
                qn, qp = (q + 1) & 3, (q - 1) & 3
                kn = b if q < 3 else bn
                kp = b if q > 0 else bp
                ex = [f"v_exp_f32 {v(Sc+i)}, {v(Sc+i)}" for i in range(16)]
                cv = [f"v_cvt_pk_bf16_f32 {v(P+i)}, {v(Sc+2*i)}, {v(Sc+2*i+1)}" for i in range(8)]
                def seg(i):
                    for ch in PAT[i]: a((ex if ch == "e" else cv).pop(0))
                def free():
                    if items:
                        it = items.pop(0)
                        a.ext(it if isinstance(it, list) else [it])
                a(mf32(Sn, kn, Q + 6 * qn, "0"))
                if q == 0: a.ext(ld[0])
                else: free()
                seg(0)
                a(mf32(O + 16 * qp, kp + 8, P + 4))
                if q == 0: a.ext(ld[1])
                else: free()
                seg(1)
                a(mf8(Sn, kn + 12, Q + 6 * qn + 4))
                seg(2)
                a(mf32(O + 16 * q, b + 4, P))
                if q == 2:
                    assert not any("lds" in str(it) for it in items)
                    a(("s_waitcnt vmcnt(0) lgkmcnt(8)" if u == 0 else "s_waitcnt lgkmcnt(8)") if lds else f"s_waitcnt vmcnt({vmw})")
                else: free()
                seg(3); assert not ex and not cv
            assert not items
        a(f"s_cbranch_scc1 {pfx}_loop{tag}")
    loop("a", False)
    if Cfg.nost: a(f"s_branch {pfx}_epi")
    a(f"s_mov_b32 {s(sIT)}, 4")
    a("s_waitcnt vmcnt(4)")
    a("s_barrier")
    stamp(a, "half")
    a(f"s_branch {pfx}_loopb")
    if Cfg.gj >= 0:
        a(f"{pfx}_hx:")
        a(f"s_and_b32 {s(sHX)}, {s(idreg)}, 255")
        a(f"s_lshl_b32 {s(sHX)}, {s(sHX)}, 7")
        a(f"s_add_u32 {s(sHX)}, {s(sHX)}, {FP_OFF}")
        publish(a, sHX)
        a(f"s_branch {pfx}_hxr")
    if Cfg.gate:
        a(f"{pfx}_ha:")
        a(f"s_and_b32 {s(sHW)}, {s(idreg)}, 255")
        a(f"s_lshl_b32 {s(sHW)}, {s(sHW)}, 6")
        a(f"s_add_u32 {s(sHW)}, {s(sHW)}, {FH_OFF + 32}")
        publish(a, sHW)
        a(f"s_branch {pfx}_har")
    a(f"{pfx}_mb:")
    a("s_barrier")
    if 0 < Cfg.lag < 4:
        a(f"s_cmp_lg_u32 {s(S_WV)}, 0")
        a(f"s_cbranch_scc1 {pfx}_mbr")
        a(f"s_and_b32 {s(sT0)}, {s(idreg)}, 255")
        a(f"s_lshl_b32 {s(sT0)}, {s(sT0)}, 6")
        a(f"s_add_u32 {s(sT0)}, {s(sT0)}, {FH_OFF}")
        publish(a, sT0)
        if Cfg.tc & 4: a.ext(touch(f"{pfx}_epi", f"{pfx}_fb", sT0, vM, vM))
    a(f"s_branch {pfx}_mbr")
    loop("b", True)
    if Cfg.dry:
        a("s_cmp_lg_u32 s39, 0"); a(f"s_cbranch_scc1 {pfx}_dryr")
    a(f"{pfx}_epi:")
    setprio(a, Cfg.prioE)
    for j in range(2): a(f"ds_write_b128 {v(vXW)}, {v(O+4*j,4)} offset:{j*1024}")
    a(mf32(O + 48, KV + 14 * 3 + 8, P + 4))
    stamp(a, "loopdone")
    a(f"ds_write_b128 {v(vXW)}, {v(O+8,4)} offset:2048")
    for j in range(3): a(f"ds_write_b128 {v(vXW)}, {v(O+16+4*j,4)} offset:{3072+j*1024}")
    a("s_waitcnt lgkmcnt(0)")
    a("s_barrier")
    R = S
    for t in range(2):
        for j in (2, 0, 1): a(f"ds_read_b128 {v(R+16*t+4*j,4)}, {v(vXR)} offset:{t*3072+j*1024}")
    a(f"{pfx}_fin:")
    for t in range(2):
        o = O + 32 + 16 * t; r = R + 16 * t; d = (14, P)[t]
        pa = lambda i: f"v_pk_add_f32 {v(o+i,2)}, {v(o+i,2)}, {v(r+i,2)}"
        a(f"s_waitcnt lgkmcnt({5-3*t})")
        a(f"v_add_f32 v12, {v(o+8)}, {v(r+8)}")
        a(f"v_add_f32 {v(22+t)}, {v(o+8)}, {v(r+8)}")
        a(pa(8)); a(pa(10))
        a(f"v_permlane32_swap_b32 v12, {v(22+t)}")
        a(f"s_waitcnt lgkmcnt({3-3*t})")
        a(f"v_rcp_f32 v12, {v(22+t)}")
        for i in range(0, 8, 2): a(pa(i))
        for i in range(0, 12, 2): a(f"v_pk_mul_f32 {v(o+i,2)}, {v(o+i,2)}, v[12:13] op_sel_hi:[1,0]")
        for j in range(6): a(f"v_cvt_pk_bf16_f32 {v(d+j if j < 4 else 18+2*t+j-4)}, {v(o+2*j)}, {v(o+2*j+1)}")
        a(f"buffer_store_dwordx4 {v(d,4)}, {v(vOM)}, {s(S_WS,4)}, {s(sOM+t)} offen{SC1}")
    a("s_mov_b32 exec_hi, 0")
    a(f"buffer_store_dwordx4 v[18:21], {v(vLin)}, {s(S_WS,4)}, {s(sOL)} offen{SC1}")
    stamp(a, "o_stored")
    a("s_mov_b32 exec_hi, -1")
    a(f"s_cmp_lg_u32 {s(sIT)}, 0")
    a(f"s_cbranch_scc1 {pfx}_ok")
    LO, HI = (127 - Cfg.lo) << 23, (127 + Cfg.hi) << 23
    a(f"v_subrev_u32 v22, {LO}, v22")
    a(f"v_subrev_u32 v23, {LO}, v23")
    a("v_max_u32 v22, v22, v23")
    a(f"v_cmp_lt_u32 vcc, {HI - LO}, v22")
    a(f"v_add_f32 v12, {v(O+32)}, {v(O+48)}")
    for i in range(1, 12):
        a(f"v_fma_f32 v12, {v(O+32+i)}, 0, v12")
        a(f"v_fma_f32 v12, {v(O+48+i)}, 0, v12")
    a(f"s_movk_i32 {s(sT0)}, 0x207")
    a(f"v_cmp_class_f32 {s(sT2,2)}, v12, {s(sT0)}")
    a("s_nop 0")
    a(f"s_or_b64 vcc, vcc, {s(sT2,2)}")
    a(f"s_cbranch_scc1 {pfx}_fb")
    a(f"{pfx}_ok:")
    a("s_waitcnt vmcnt(0)")
    publish(a, sF3)
    stamp(a, "o_pub")
    a(f"s_branch {pfx}_done")
    a(f"{pfx}_fb:")
    def rewind():
        a(f"s_lshl_b32 {s(sT0)}, {s(sKH)}, 14")
        a(f"s_sub_u32 {s(sK1)}, {s(sK1b)}, {s(sT0)}")
        a(f"s_sub_u32 {s(sK2)}, {s(sK2b)}, {s(sT0)}")
        a(f"s_mul_i32 {s(sT0)}, {s(sKH)}, 40960")
        a(f"s_sub_u32 {s(sV)}, {s(sVb)}, {s(sT0)}")
        a(f"s_mov_b32 {s(sIT)}, 0")
    def advance(lbl):
        a(f"s_add_u32 {s(sK1)}, {s(sK1)}, 512")
        a(f"s_add_u32 {s(sK2)}, {s(sK2)}, 512")
        a(f"s_add_u32 {s(sV)}, {s(sV)}, 1280")
        a(f"s_add_u32 {s(sIT)}, {s(sIT)}, 1")
        a(f"s_cmp_lt_u32 {s(sIT)}, 64")
        a(f"s_cbranch_scc1 {lbl}")
    rewind()
    a("v_mov_b32 v22, 0xff800000")
    a("v_mov_b32 v23, 0xff800000")
    a(f"{pfx}_fb1:")
    a.ext(kvload(0)[:2])
    a("s_waitcnt vmcnt(0)")
    for t in range(2): a(mf32(S + 16 * t, KV, Q + 12 + 6 * t, "0"))
    for t in range(2): a(mf8(S + 16 * t, KV + 12, Q + 16 + 6 * t))
    a("s_nop 11")
    for t in range(2):
        for i in range(0, 16, 2): a(f"v_max3_f32 {v(22+t)}, {v(S+16*t+i)}, {v(S+16*t+i+1)}, {v(22+t)}")
    advance(f"{pfx}_fb1")
    rewind()
    for t in range(2):
        a(f"v_mov_b32 v12, {v(22+t)}")
        a("s_nop 1")
        a(f"v_permlane32_swap_b32 v12, {v(22+t)}")
        a(f"v_max_f32 v12, v12, {v(22+t)}")
        for i in range(16):
            a(f"v_xor_b32 {v(O+16*t+i)}, 0x80000000, v12")
            a(f"v_mov_b32 {v(O+32+16*t+i)}, 0")
    a(f"{pfx}_fb2:")
    a.ext(kvload(0))
    a("s_waitcnt vmcnt(0)")
    for t in range(2): a(mf32(S + 16 * t, KV, Q + 12 + 6 * t, v(O + 16 * t, 16)))
    for t in range(2): a(mf8(S + 16 * t, KV + 12, Q + 16 + 6 * t))
    a("s_nop 11")
    for t in range(2):
        for i in range(16): a(f"v_exp_f32 {v(S+16*t+i)}, {v(S+16*t+i)}")
        for i in range(8): a(f"v_cvt_pk_bf16_f32 {v(P+i)}, {v(S+16*t+2*i)}, {v(S+16*t+2*i+1)}")
        a("s_nop 1")
        a(mf32(O + 32 + 16 * t, KV + 4, P))
        a(mf32(O + 32 + 16 * t, KV + 8, P + 4))
    advance(f"{pfx}_fb2")
    for i in range(32): a(f"v_mov_b32 {v(S+i)}, 0")
    a(f"s_branch {pfx}_fin")
    a(f"{pfx}_done:")

def gen_att(a, pfx, idreg):
    vL, vK1, vK2, vV0, vV1, vQ1, vQ2, vFA, vFR = 1, 2, 3, 4, 5, 6, 7, 8, 9
    vXW, vOM, vLin = 10, 22, 23
    P, S, O, Q, KV = 24, 32, 64, 128, 152
    RD = (208, 220, 232)
    vXR, vQA, vQB = 244, 247, 251
    QL = 73728
    sHD, sQB, sG0, sN, sK1, sK2, sV, sIT, sPH = 41, 42, 43, 44, 45, 46, 47, 48, 49
    sK1b, sK2b, sVb, sBAD = 50, 51, 52, 53
    sT0, sT1, sT2, sT3 = 54, 55, 56, 57
    sVM = 58
    sQ1, sQ2 = 96, 32
    sOM, sOL, sF3, sFF = 28, 29, 30, 31
    sDRY, sQM = 36, 37
    JK, JV = 40 * 32768, 16 * 81920
    a(f"v_and_b32 {v(vL)}, 63, v0")
    a(f"v_lshrrev_b32 v12, 6, v0")
    a(f"s_and_b32 {s(sT0)}, {s(idreg)}, 7")
    a(f"v_readfirstlane_b32 {s(S_WV)}, v12")
    a(f"s_bfe_u32 {s(sT1)}, {s(idreg)}, {7 | (1<<16)}")
    a(f"s_lshl1_add_u32 {s(sHD)}, {s(sT0)}, {s(sT1)}")
    a(f"s_bfe_u32 {s(sQB)}, {s(idreg)}, {3 | (4<<16)}")
    a(f"s_and_b32 {s(sG0)}, {s(sQB)}, 3")
    a(f"v_and_b32 v12, 31, {v(vL)}")
    a(f"v_lshrrev_b32 v13, 5, {v(vL)}")
    a(f"v_lshlrev_b32 {v(vQ2)}, 4, v12")
    a(f"v_lshl_add_u32 {v(vQ1)}, v13, 15, {v(vQ2)}")
    a(f"v_and_b32 {v(vK2)}, 7, v12")
    a(f"v_bfe_u32 v14, v12, 3, 1")
    a(f"v_lshl_add_u32 {v(vK2)}, v14, 4, {v(vK2)}")
    a(f"v_lshrrev_b32 v14, 4, v12")
    a(f"v_lshl_add_u32 {v(vK2)}, v14, 3, {v(vK2)}")
    a(f"v_lshlrev_b32 {v(vK2)}, 4, {v(vK2)}")
    a(f"v_lshl_add_u32 {v(vK1)}, v13, 15, {v(vK2)}")
    a(f"v_mul_u32_u24 {v(vV0)}, 320, v13")
    a(f"v_add_u32 {v(vV0)}, {v(vV0)}, {v(vQ2)}")
    a(f"v_add_u32 {v(vV1)}, 640, {v(vV0)}")
    for r in (vQ2, vK2):
        a(f"v_lshrrev_b32 v15, 8, {v(r)}")
        a(f"v_and_b32 {v(r)}, 0xff, {v(r)}")
        a(f"v_lshl_add_u32 {v(r)}, v15, 3, {v(r)}")
    a(f"v_lshlrev_b32 {v(vLin)}, 4, {v(vL)}")
    a(f"v_and_b32 {v(vOM)}, 0xff, {v(vLin)}")
    a(f"v_lshl_add_u32 {v(vOM)}, v14, 14, {v(vOM)}")
    a(f"v_lshl_add_u32 {v(vOM)}, v13, 8, {v(vOM)}")
    a(f"s_mov_b32 {s(sVM)}, 0xfffff")
    a(f"s_mov_b32 {s(sVM+1)}, 0xfffff")
    a(f"s_mul_i32 {s(sT0)}, {s(S_WV)}, 9216")
    a(f"v_add_u32 {v(vXW)}, {s(sT0)}, {v(vLin)}")
    for r in range(3):
        a(f"s_sub_u32 {s(sT0)}, {s(S_WV)}, {1 + r}")
        a(f"s_and_b32 {s(sT0)}, {s(sT0)}, 3")
        a(f"s_mul_i32 {s(sT0)}, {s(sT0)}, 9216")
        a(f"s_add_u32 {s(sT0)}, {s(sT0)}, {r*3072}")
        a(f"v_add_u32 {v(vXR+r)}, {s(sT0)}, {v(vLin)}")
    for i in range(4):
        a(f"s_add_u32 {s(sQM)}, {s(S_WV)}, {1 + i}")
        a(f"s_and_b32 {s(sQM)}, {s(sQM)}, 3")
        a(f"s_mul_i32 {s(sQM)}, {s(sQM)}, 1280")
        a(f"s_add_u32 {s(sQM)}, {s(sQM)}, {QL}")
        a(f"v_add_u32 {v(vQA+i)}, {s(sQM)}, {v(vLin)}")
        a(f"v_add_u32 {v(vQB+i)}, {s(sQM)}, {v(vQ2)}")
    a(f"v_mov_b32 {v(V_NONCE)}, 0")
    a(f"v_mov_b32 {v(vFR)}, 0")
    a(f"v_mov_b32 {v(vFA)}, 0")
    a("s_waitcnt lgkmcnt(0)")
    srd(a, S_WS, P_WS, 0)
    if Cfg.dry:
        a(f"s_mov_b32 {s(sDRY)}, 1")
        for r in (sPH, sOM, sOL, sF3, sQ1 + 3, sQ2 + 3): a(f"s_mov_b32 {s(r)}, 0")
        a(f"s_branch {pfx}_glue")
        a(f"{pfx}_dryr:")
        a("s_waitcnt vmcnt(0)")
        setprio(a, 0)
    a(f"s_mov_b32 {s(sDRY)}, 0")
    a(f"s_mov_b32 {s(S_WS+2)}, {WS_BYTES}")
    a(f"v_and_b32 v12, 31, {v(vL)}")
    a(f"v_cmp_eq_u32 vcc, 20, v12")
    a(f"v_mov_b32 v15, 0x3f803f80")
    a("s_nop 0")
    a(f"v_cndmask_b32 v15, 0, v15, vcc")
    for u in range(4):
        for r in range(4, 12): a(f"v_mov_b32 {v(KV+14*u+r)}, v15")
    for q in range(4):
        a(f"v_mov_b64 {v(Q+6*q+4,2)}, 0")
    for r in range(0, 64, 2): a(f"v_mov_b64 {v(O+r,2)}, 0")
    for r in range(0, 8, 2): a(f"v_mov_b64 {v(P+r,2)}, 0")
    nonce_check(a, f"{pfx}_nc", 12, sT0, sT1)
    a(f"s_lshr_b32 {s(sT0)}, {s(sHD)}, 1")
    a(f"s_and_b32 {s(sT1)}, {s(sHD)}, 1")
    a(f"s_mul_i32 {s(sT0)}, {s(sT0)}, 5")
    a(f"s_mul_i32 {s(sT2)}, {s(sT1)}, 3")
    a(f"s_add_u32 {s(sT2)}, {s(sT2)}, {s(sT0)}")
    a(f"s_lshl_b32 {s(sK1b)}, {s(sT2)}, 15")
    a(f"s_add_u32 {s(sT0)}, {s(sT0)}, 2")
    a(f"s_lshl_b32 {s(sK2b)}, {s(sT0)}, 15")
    a(f"s_lshl_b32 {s(sT1)}, {s(sT1)}, 8")
    a(f"s_add_u32 {s(sK2b)}, {s(sK2b)}, {s(sT1)}")
    att_relayout(a, pfx, idreg, vL, vLin, 212, sT0, sT1, sT2, sT3)
    for i in range(4):
        a(f"s_add_u32 {s(sT0)}, {s(S_WV)}, {1 + i}")
        a(f"s_and_b32 {s(sT0)}, {s(sT0)}, 3")
        a(f"s_lshl2_add_u32 {s(sT0)}, {s(sQB)}, {s(sT0)}")
        a(f"s_lshl_b32 {s(sT1)}, {s(sT0)}, 9")
        a(f"s_add_u32 {s(sQ1+i)}, {s(sT1)}, {s(sK1b)}")
        a(f"s_add_u32 {s(sQ2+i)}, {s(sT1)}, {s(sK2b)}")
    a(f"s_lshl_b32 {s(sOM)}, {s(sT0)}, 15")
    a(f"s_lshl_b32 {s(sT1)}, {s(sHD)}, 9")
    a(f"s_add_u32 {s(sOM)}, {s(sOM)}, {s(sT1)}")
    a(f"s_add_u32 {s(sOM)}, {s(sOM)}, {O_OFF}")
    a(f"s_lshl_b32 {s(sOL)}, {s(sT0)}, 13")
    a(f"s_lshl_b32 {s(sT1)}, {s(sHD)}, 8")
    a(f"s_add_u32 {s(sOL)}, {s(sOL)}, {s(sT1)}")
    a(f"s_add_u32 {s(sOL)}, {s(sOL)}, {OL_OFF}")
    a(f"s_lshl4_add_u32 {s(sF3)}, {s(sT0)}, {s(sHD)}")
    a(f"s_lshl_b32 {s(sF3)}, {s(sF3)}, 6")
    a(f"s_add_u32 {s(sF3)}, {s(sF3)}, {F3_OFF}")
    a(f"s_lshl_b32 {s(sT0)}, {s(S_WV)}, 13")
    a(f"s_add_u32 {s(sT0)}, {s(sT0)}, {80*32768}")
    a(f"s_add_u32 {s(sK1b)}, {s(sK1b)}, {s(sT0)}")
    a(f"s_add_u32 {s(sK2b)}, {s(sK2b)}, {s(sT0)}")
    a(f"s_mul_i32 {s(sVb)}, {s(sHD)}, 81920")
    a(f"s_mul_i32 {s(sT0)}, {s(S_WV)}, 20480")
    a(f"s_add_u32 {s(sVb)}, {s(sVb)}, {s(sT0)}")
    a(f"s_add_u32 {s(sVb)}, {s(sVb)}, {V_OFF}")
    a(f"s_mov_b32 {s(sN)}, {s(sG0)}")
    a(f"s_mov_b32 {s(sBAD)}, 0")
    def setgrp():
        return [f"s_lshl_b32 {s(sT0)}, {s(sN)}, 11", f"s_add_u32 {s(sK1)}, {s(sK1b)}, {s(sT0)}", f"s_add_u32 {s(sK2)}, {s(sK2b)}, {s(sT0)}",
                f"s_mul_i32 {s(sT0)}, {s(sN)}, 5120", f"s_add_u32 {s(sV)}, {s(sVb)}, {s(sT0)}"]
    a.ext(setgrp())
    a(f"s_mul_i32 {s(sT0)}, {s(sHD)}, 20")
    a(f"s_add_u32 {s(sT1)}, {s(sT0)}, 19")
    a(f"s_lshr_b32 {s(sT0)}, {s(sT0)}, 6")
    a(f"s_lshr_b32 {s(sT1)}, {s(sT1)}, 6")
    a(f"s_sub_u32 {s(sT1)}, {s(sT1)}, {s(sT0)}")
    a(f"v_bfe_u32 v12, {v(vL)}, 3, 1")
    a(f"v_mul_u32_u24 v12, {s(sT1)}, v12")
    a(f"v_add_u32 v12, {s(sT0)}, v12")
    a(f"v_bfe_u32 v13, {v(vL)}, 4, 1")
    a(f"v_mad_u32_u24 v13, v13, 5, 5")
    a(f"s_lshl_b32 {s(sT2)}, {s(S_WV)}, 2")
    a(f"v_and_b32 v14, 3, {v(vL)}")
    a(f"v_add_u32 v14, {s(sT2)}, v14")
    a(f"s_add_u32 {s(sT2)}, {s(sT2)}, {s(sG0)}")
    a(f"v_mov_b32 v15, {s(sT2)}")
    a("s_mov_b32 exec_lo, 0")
    a(f"v_mov_b32 v13, 0")
    a(f"v_mov_b32 v14, {s(sQB)}")
    a(f"v_mov_b32 v15, {s(sQB)}")
    a("s_mov_b32 exec_lo, -1")
    a(f"v_add_u32 v12, v12, v13")
    a(f"v_lshl_add_u32 v15, v12, 4, v15")
    a(f"v_lshl_add_u32 {v(vFA)}, v12, 4, v14")
    a(f"v_lshlrev_b32 {v(vFA)}, 6, {v(vFA)}")
    a(f"v_lshlrev_b32 v15, 6, v15")
    a(f"s_mov_b32 {s(sFF)}, {F0_OFF}")
    a(f"s_mov_b32 {s(sIT)}, 2")
    a(f"s_mov_b32 {s(sPH)}, 0")
    stamp(a, "a_ready")
    if Cfg.x_aexit:
        publish(a, sF3); a(f"s_add_u32 {s(sF3)}, {s(sF3)}, 65536"); publish(a, sF3); a(f"s_branch {pfx}_done")
    setprio(a, 3)
    if Cfg.hint:
        a(f"s_and_b32 {s(sT1)}, {s(idreg)}, 255")
        a(f"s_lshl_b32 {s(sT1)}, {s(sT1)}, 7")
        a(f"s_add_u32 {s(sT1)}, {s(sT1)}, {FP_OFF}")
        a("s_mov_b64 exec, 1")
        poll(a, f"{pfx}_ph", None, sT1, 16, sT0, Cfg.phs)
        a("s_mov_b64 exec, -1")
    poll(a, f"{pfx}_p0", 15, sFF, 16, sT0, Cfg.p0s, 17 if Cfg.pp0 else None)
    setprio(a, Cfg.prioB)
    stamp(a, "a_go")
    def qload(d, tiles, off=0):
        o = [f"buffer_load_dwordx4 {v(d+6*q,4)}, {v(vQ1)}, {s(S_WS,4)}, {s(sQ1+q)} offen sc1" for q in tiles] + ["s_mov_b32 exec_hi, 0"]
        return o + [f"buffer_load_dwordx2 {v(d+6*q+4,2)}, {v(vQ2)}, {s(S_WS,4)}, {s(sQ2+q)} offen sc1" for q in tiles] + ["s_mov_b32 exec_hi, -1"]
    def kvload(u):
        b = KV + 14 * u
        return [f"buffer_load_dwordx4 {v(b,4)}, {v(vK1)}, {s(S_WS,4)}, {s(sK1)} offen offset:{u*512} sc1",
                f"buffer_load_dwordx2 {v(b+12,2)}, {v(vK2)}, {s(S_WS,4)}, {s(sK2)} offen offset:{u*512} sc1",
                f"s_mov_b64 exec, {s(sVM,2)}",
                f"buffer_load_dwordx4 {v(b+4,4)}, {v(vV0)}, {s(S_WS,4)}, {s(sV)} offen offset:{u*1280} sc1",
                f"buffer_load_dwordx4 {v(b+8,4)}, {v(vV1)}, {s(S_WS,4)}, {s(sV)} offen offset:{u*1280} sc1",
                "s_mov_b64 exec, -1"]
    freq = f"buffer_load_dword {v(vFR)}, {v(vFA)}, {s(S_WS,4)}, {s(sFF)} offen sc1"
    def fchk(tag):
        a(f"v_cmp_ne_u32 vcc, {v(vFR)}, {v(V_NONCE)}")
        a("s_nop 1")
        a(f"s_cbranch_vccz {pfx}_{tag}_ok")
        poll(a, f"{pfx}_{tag}", vFA, sFF, vFR, sT0, Cfg.p1s)
        a("s_mov_b64 vcc, 0")
    a.ext(qload(Q, range(4)))
    for u in range(3):
        a.ext(kvload(u))
        if u == 0: a(freq)
    stamp(a, "issued")
    a("s_waitcnt vmcnt(8)")
    a(mf32(S, KV, Q, "0"))
    fchk("p1")
    setprio(a, Cfg.prioA)
    stamp(a, "q_kv0")
    a(mf8(S, KV + 12, Q + 4))
    a("s_nop 10")
    a(".p2align 3")
    a(f"{pfx}_loop:")
    for u in range(4):
        b = KV + 14 * u; bn = KV + 14 * ((u + 1) & 3); bp = KV + 14 * ((u - 1) & 3)
        items = []
        if u == 0: items = [f"s_add_u32 {s(sN)}, {s(sN)}, 1", f"s_and_b32 {s(sN)}, {s(sN)}, 3"] + setgrp()
        if u == 3: items = [f"s_sub_u32 {s(sIT)}, {s(sIT)}, 1", f"s_cmp_lg_u32 {s(sIT)}, 0"]
        ld = kvload((u + 3) & 3)
        def guarded(l, t):
            if u > 0 and Cfg.skp: a(f"s_cbranch_vccnz {pfx}_sk{t}{u}")
            a.ext(l)
            if u > 0 and Cfg.skp: a(f"{pfx}_sk{t}{u}:")
        for q in range(4):
            Sc = S + 16 * (q & 1); Sn = S + 16 * ((q + 1) & 1)
            qn, qp = (q + 1) & 3, (q - 1) & 3
            kn = b if q < 3 else bn
            kp = b if q > 0 else bp
            ex = [f"v_exp_f32 {v(Sc+i)}, {v(Sc+i)}" for i in range(16)]
            cv = [f"v_cvt_pk_bf16_f32 {v(P+i)}, {v(Sc+2*i)}, {v(Sc+2*i+1)}" for i in range(8)]
            def free():
                if items: a(items.pop(0))
            a(mf32(Sn, kn, Q + 6 * qn, "0"))
            if q == 0: guarded(ld[:2], "k")
            else: free()
            a.ext(ex[0:4])
            a(mf32(O + 16 * qp, kp + 8, P + 4))
            if q == 0: guarded(ld[2:], "v")
            else: free()
            a.ext(ex[4:8] + cv[0:2])
            a(mf8(Sn, kn + 12, Q + 6 * qn + 4))
            a.ext(ex[8:9] + cv[2:4] + ex[9:12])
            a(mf32(O + 16 * q, b + 4, P))
            if q == 2:
                if u in (1, 2) and Cfg.skp:
                    a(f"s_cbranch_vccnz {pfx}_sw{u}"); a("s_waitcnt vmcnt(8)"); a(f"{pfx}_swr{u}:")
                else: a("s_waitcnt vmcnt(8)")
            else: free()
            a.ext(ex[12:16] + cv[4:8])
        assert not items
    a(f"s_cbranch_scc1 {pfx}_loop")
    def send(job): return [f"ds_write_b128 {v(vXW)}, {v(O+16*t+4*j,4)} offset:{job*36864+t*3072+j*1024}" for t in range(3) for j in range(3)]
    def finish(o, job, tag):
        a("s_waitcnt lgkmcnt(0)")
        a("s_barrier")
        def qrd(tiles):
            for q in tiles: a(f"ds_read_b128 {v(Q+6*q,4)}, {v(vQA+q)}")
            a("s_mov_b32 exec_hi, 0")
            for q in tiles: a(f"ds_read_b64 {v(Q+6*q+4,2)}, {v(vQB+q)} offset:1024")
            a("s_mov_b32 exec_hi, -1")
        if job == 0: qrd([0])
        for j in (2, 0, 1):
            for r in range(3): a(f"ds_read_b128 {v(RD[r]+4*j,4)}, {v(vXR+r)} offset:{job*36864+j*1024}")
        pa = lambda d, x: f"v_pk_add_f32 {v(d,2)}, {v(d,2)}, {v(x,2)}"
        def quad(j):
            return [pa(RD[0]+4*j, RD[1]+4*j), pa(RD[0]+4*j+2, RD[1]+4*j+2), pa(o+4*j, RD[2]+4*j), pa(o+4*j+2, RD[2]+4*j+2),
                    pa(o+4*j, RD[0]+4*j), pa(o+4*j+2, RD[0]+4*j+2)]
        a("s_waitcnt lgkmcnt(6)"); a.ext(quad(2))
        a("s_waitcnt lgkmcnt(3)"); a.ext(quad(0))
        a("s_waitcnt lgkmcnt(0)")
        if job == 0: qrd([1, 2, 3])
        a.ext(quad(1))
        a(f"{pfx}_fin{tag}:")
        a(f"v_mov_b32 v12, {v(o+8)}")
        a(f"v_mov_b32 v13, {v(o+8)}")
        a("s_nop 1")
        a("v_permlane32_swap_b32 v12, v13")
        a("v_rcp_f32 v12, v13")
        LO, HI = (127 - Cfg.lo) << 23, (127 + Cfg.hi) << 23
        a(f"v_subrev_u32 v13, {LO}, v13")
        for i in (8, 10, 0, 2, 4, 6): a(f"v_pk_mul_f32 {v(o+i,2)}, {v(o+i,2)}, v[12:13] op_sel_hi:[1,0]")
        if job == 0: a(mf32(S, KV, Q, "0"))
        for j in (4, 5):
            a(f"v_cvt_pk_bf16_f32 {v(14+j)}, {v(o+2*j)}, {v(o+2*j+1)}")
            a(f"v_cvt_pk_bf16_f32 {v(16+j)}, {v(o+2*j)}, {v(o+2*j+1)}")
        for j in range(4): a(f"v_cvt_pk_bf16_f32 {v(14+j)}, {v(o+2*j)}, {v(o+2*j+1)}")
        a(f"buffer_store_dwordx4 v[14:17], {v(vOM)}, {s(S_WS,4)}, {s(sOM)} offen sc1")
        a("v_permlane16_swap_b32 v18, v20")
        a("v_permlane16_swap_b32 v19, v21")
        if job == 0: a(mf8(S, KV + 12, Q + 4))
        a("s_mov_b64 exec, 0xffff")
        a(f"buffer_store_dwordx4 v[18:21], {v(vLin)}, {s(S_WS,4)}, {s(sOL)} offen sc1")
        a("s_mov_b64 exec, -1")
        a(f"v_cmp_lt_u32 vcc, {HI - LO}, v13")
        for i in range(2, 12, 2): a(f"v_pk_fma_f32 {v(o,2)}, {v(o+i,2)}, 0, {v(o,2)} op_sel_hi:[1,0,1]")
        a(f"v_fma_f32 v12, {v(o+1)}, 0, {v(o)}")
        a(f"s_movk_i32 {s(sT0)}, 0x207")
        a(f"v_cmp_class_f32 {s(sT2,2)}, v12, {s(sT0)}")
        a("s_nop 0")
        a(f"s_or_b64 vcc, vcc, {s(sT2,2)}")
    def nextjob(sign):
        op = "s_add_u32" if sign > 0 else "s_sub_u32"
        return [f"{op} {s(r)}, {s(r)}, {JK}" for r in [sK1b, sK2b, sQ1 + 3, sQ2 + 3]] + [f"{op} {s(sVb)}, {s(sVb)}, {JV}"]
    def nextout(sign):
        op = "s_add_u32" if sign > 0 else "s_sub_u32"
        return [f"{op} {s(sOM)}, {s(sOM)}, 8192", f"{op} {s(sOL)}, {s(sOL)}, 4096", f"{op} {s(sF3)}, {s(sF3)}, 65536"]
    def back():
        a(f"s_cmp_eq_u32 {s(sDRY)}, 0")
        a(f"s_cbranch_scc1 {pfx}_loop")
    a(f"s_add_u32 {s(sPH)}, {s(sPH)}, 1")
    a(f"s_cmp_lt_u32 {s(sPH)}, 5")
    a(f"s_cbranch_scc1 {pfx}_glue")
    a(f"{pfx}_epi:")
    setprio(a, Cfg.prioE)
    a(mf32(O + 48, KV + 14 * 3 + 8, P + 4))
    stamp(a, "loopdone")
    a.ext(send(1))
    finish(O + 48, 1, "b")
    a(f"s_cbranch_scc1 {pfx}_fbq")
    a(f"{pfx}_ok:")
    stamp(a, "o_stored")
    a("s_waitcnt vmcnt(0)")
    publish(a, sF3)
    stamp(a, "o_pub")
    if Cfg.dry:
        a(f"s_cmp_lg_u32 {s(sDRY)}, 0")
        a(f"s_cbranch_scc1 {pfx}_dryr")
    a(f"s_cmp_eq_u32 {s(sBAD)}, 0")
    a(f"s_cbranch_scc1 {pfx}_done")
    a(f"s_mov_b32 {s(sBAD)}, 0")
    a.ext(nextjob(-1) + nextout(-1))
    a(f"s_branch {pfx}_fb")
    a(f"{pfx}_glue:")
    a(f"s_mov_b32 {s(sIT)}, 1")
    for ph in (2, 3, 4):
        a(f"s_cmp_eq_u32 {s(sPH)}, {ph}")
        a(f"s_cbranch_scc1 {pfx}_g{ph}")
    a(f"s_mov_b32 {s(sFF)}, {F1_OFF}")
    a(freq)
    back()
    a(f"{pfx}_g2:")
    a(f"s_mov_b32 m0, {s(sQM)}")
    a.ext(nextjob(1))
    fchk("p2")
    a(f"buffer_load_dwordx4 {v(vQ1)}, {s(S_WS,4)}, {s(sQ1+3)} offen sc1 lds")
    a(f"s_add_u32 m0, {s(sQM)}, 1024")
    a("s_mov_b64 exec, 0xffff")
    a(f"buffer_load_dwordx4 {v(vLin)}, {s(S_WS,4)}, {s(sQ2+3)} offen sc1 lds")
    a("s_mov_b64 exec, -1")
    back()
    a(f"{pfx}_g3:")
    stamp(a, "half")
    a(mf32(O + 48, KV + 14 * 3 + 8, P + 4))
    a(f"s_mov_b32 {s(sIT)}, 3")
    a.ext(send(0))
    for r in (4, 6): a(f"v_mov_b64 {v(P+r,2)}, 0")
    for t in range(3):
        for r in range(0, 12, 2): a(f"v_mov_b64 {v(O+16*t+r,2)}, 0")
    finish(O + 48, 0, "a")
    a(f"s_cselect_b32 {s(sBAD)}, 1, 0")
    a("s_mov_b64 vcc, 0")
    for r in range(0, 12, 2): a(f"v_mov_b64 {v(O+48+r,2)}, 0")
    a("s_waitcnt lgkmcnt(0)")
    back()
    a(f"{pfx}_g4:")
    a(f"s_cmp_lg_u32 {s(sBAD)}, 0")
    a(f"s_cbranch_scc1 {pfx}_g4n")
    publish(a, sF3)
    a(f"{pfx}_g4n:")
    a.ext(nextout(1))
    a("s_mov_b64 vcc, -1")
    back()
    a(f"s_branch {pfx}_epi")
    for u in (1, 2):
        a(f"{pfx}_sw{u}:"); a(f"s_waitcnt vmcnt({8 - 4 * u})"); a(f"s_branch {pfx}_swr{u}")
    a(f"{pfx}_fbq:")
    a(f"s_cmp_lg_u32 {s(sIT)}, 0")
    a(f"s_cbranch_scc1 {pfx}_ok")
    a(f"{pfx}_fb:")
    def rewind():
        a(f"s_lshl_b32 {s(sT0)}, {s(S_WV)}, 13")
        a(f"s_sub_u32 {s(sK1)}, {s(sK1b)}, {s(sT0)}")
        a(f"s_sub_u32 {s(sK2)}, {s(sK2b)}, {s(sT0)}")
        a(f"s_mul_i32 {s(sT0)}, {s(S_WV)}, 20480")
        a(f"s_sub_u32 {s(sV)}, {s(sVb)}, {s(sT0)}")
        a(f"s_mov_b32 {s(sIT)}, 0")
    def advance(lbl):
        a(f"s_add_u32 {s(sK1)}, {s(sK1)}, 512")
        a(f"s_add_u32 {s(sK2)}, {s(sK2)}, 512")
        a(f"s_add_u32 {s(sV)}, {s(sV)}, 1280")
        a(f"s_add_u32 {s(sIT)}, {s(sIT)}, 1")
        a(f"s_cmp_lt_u32 {s(sIT)}, 64")
        a(f"s_cbranch_scc1 {lbl}")
    a("s_waitcnt vmcnt(0)")
    a.ext(qload(Q, [3]))
    rewind()
    a("v_mov_b32 v13, 0xff800000")
    a(f"{pfx}_fb1:")
    a.ext(kvload(0)[:2])
    a("s_waitcnt vmcnt(0)")
    a(mf32(S, KV, Q + 18, "0"))
    a(mf8(S, KV + 12, Q + 22))
    a("s_nop 11")
    for i in range(0, 16, 2): a(f"v_max3_f32 v13, {v(S+i)}, {v(S+i+1)}, v13")
    advance(f"{pfx}_fb1")
    rewind()
    a("v_mov_b32 v12, v13")
    a("s_nop 1")
    a("v_permlane32_swap_b32 v12, v13")
    a("v_max_f32 v12, v12, v13")
    for i in range(16):
        a(f"v_xor_b32 {v(O+i)}, 0x80000000, v12")
        a(f"v_mov_b32 {v(O+48+i)}, 0")
    a(f"{pfx}_fb2:")
    a.ext(kvload(0))
    a("s_waitcnt vmcnt(0)")
    a(mf32(S, KV, Q + 18, v(O, 16)))
    a(mf8(S, KV + 12, Q + 22))
    a("s_nop 11")
    for i in range(16): a(f"v_exp_f32 {v(S+i)}, {v(S+i)}")
    for i in range(8): a(f"v_cvt_pk_bf16_f32 {v(P+i)}, {v(S+2*i)}, {v(S+2*i+1)}")
    a("s_nop 1")
    a(mf32(O + 48, KV + 4, P))
    a(mf32(O + 48, KV + 8, P + 4))
    advance(f"{pfx}_fb2")
    a("s_nop 5")
    a(f"s_branch {pfx}_finb")
    a(f"{pfx}_done:")

def gen_relayout(a, pfx, idreg, vL, sT, sFH, sFR):
    sK, sC, sPA, sPB, sPC, sPD, sB, sM, sD0, sD1, sF1 = sT
    assert Cfg.med
    STEP = 256; NR = 1 if Cfg.arl else 2
    sDS = (50, 51, 52)
    SW = S_C
    T = 160
    IR, CH = T + 8, T + 13
    a(f"s_mov_b32 {s(SW+3)}, 0x00020000")
    for i in range(5):
        a(f"v_add_u32 {v(T)}, {64*i}, {v(vL)}")
        a(f"v_mul_u32_u24 {v(IR+i)}, 6554, {v(T)}")
        a(f"v_lshrrev_b32 {v(IR+i)}, 16, {v(IR+i)}")
        a(f"v_mul_u32_u24 {v(CH+i)}, 10, {v(IR+i)}")
        a(f"v_sub_u32 {v(CH+i)}, {v(T)}, {v(CH+i)}")
        a(f"v_lshlrev_b32 {v(CH+i)}, 4, {v(CH+i)}")
    a(f"{pfx}_rl_pass:")
    a(f"s_mul_i32 {s(sM)}, {s(S_WV)}, 5120")
    a(f"s_mov_b32 {s(sF1)}, 0")
    a(f"{pfx}_rl_loop:")
    a(f"s_and_b32 {s(sC)}, {s(idreg)}, 7")
    a(f"s_lshr_b32 {s(sK)}, {s(idreg)}, 3")
    a(f"s_sub_u32 {s(sPD)}, {s(sK)}, 54")
    a(f"s_mul_i32 {s(sD1)}, {s(sPD)}, 52")
    a(f"s_lshr_b32 {s(sD1)}, {s(sD1)}, 8")
    a(f"s_mul_i32 {s(sB)}, {s(sD1)}, 5")
    a(f"s_sub_u32 {s(sPD)}, {s(sPD)}, {s(sB)}")
    a(f"s_mul_i32 {s(sB)}, {s(sD1)}, 160")
    a(f"s_mul_i32 {s(sD1)}, {s(sPD)}, 40")
    a(f"s_cmp_eq_u32 {s(sPD)}, 4")
    a(f"s_cselect_b32 {s(sD1)}, 16, {s(sD1)}")
    a(f"s_cselect_b32 {s(sPA)}, 80, 20")
    a(f"s_cselect_b32 {s(sPB)}, 40, 4")
    a(f"s_cselect_b32 {s(sPC)}, 20, 8")
    a(f"s_add_u32 {s(sB)}, {s(sB)}, {s(sD1)}")
    a(f"s_lshl_b32 {s(sD1)}, {s(sK)}, 5")
    a(f"s_mov_b32 {s(sPD)}, {640*1280}")
    a(f"s_cmp_lt_u32 {s(sK)}, 54")
    a(f"s_cselect_b32 {s(SW)}, {s(P_WD)}, {s(P_WO)}")
    a(f"s_cselect_b32 {s(SW+1)}, {s(P_WD+1)}, {s(P_WO+1)}")
    a(f"s_cselect_b32 {s(SW+2)}, {1728*1280}, {s(sPD)}")
    a(f"s_cselect_b32 {s(sPA)}, 8, {s(sPA)}")
    a(f"s_cselect_b32 {s(sPB)}, 4, {s(sPB)}")
    a(f"s_cselect_b32 {s(sPC)}, 16, {s(sPC)}")
    a(f"s_cselect_b32 {s(sB)}, {s(sD1)}, {s(sB)}")
    a(f"s_mul_i32 {s(sB)}, {s(sB)}, 1280")
    a(f"s_mul_i32 {s(sPD)}, {s(sC)}, 160")
    a(f"s_add_u32 {s(sB)}, {s(sB)}, {s(sPD)}")
    a(f"s_movk_i32 {s(sPD)}, 1280")
    for i in range(5):
        r, t = T, T + 1
        a(f"v_and_b32 {v(r)}, 3, {v(IR+i)}")
        a(f"v_lshrrev_b32 {v(t)}, 4, {v(IR+i)}")
        a(f"v_mad_u32_u24 {v(r)}, {v(t)}, {s(sPA)}, {v(r)}")
        a(f"v_bfe_u32 {v(t)}, {v(IR+i)}, 3, 1")
        a(f"v_mad_u32_u24 {v(r)}, {v(t)}, {s(sPB)}, {v(r)}")
        a(f"v_bfe_u32 {v(t)}, {v(IR+i)}, 2, 1")
        a(f"v_mad_u32_u24 {v(r)}, {v(t)}, {s(sPC)}, {v(r)}")
        a(f"s_add_u32 m0, {s(sM)}, {i*1024}")
        a(f"v_mad_u32_u24 {v(r)}, {v(r)}, {s(sPD)}, {v(CH+i)}")
        if Cfg.thl >= 0: a(f"s_waitcnt vmcnt({Cfg.thl})")
        if not Cfg.x_norl & 1: a(f"buffer_load_dwordx4 {v(r)}, {s(SW,4)}, {s(sB)} offen lds")
    a(f"s_mul_i32 {s(sD1)}, {s(sC)}, 74")
    a(f"s_add_u32 {s(sD1)}, {s(sD1)}, {s(sK)}")
    a(f"s_mul_i32 {s(sD1)}, {s(sD1)}, 5120")
    a(f"s_add_u32 {s(sD1)}, {s(sD1)}, {WR_OFF}")
    for z in range(NR):
        a(f"s_cmp_eq_u32 {s(sF1)}, {z}")
        a(f"s_cselect_b32 {s(sDS[z])}, {s(sD1)}, {s(sDS[z])}")
    a(f"s_add_u32 {s(sF1)}, {s(sF1)}, 1")
    a(f"s_add_u32 {s(idreg)}, {s(idreg)}, {STEP}")
    a(f"s_add_u32 {s(sM)}, {s(sM)}, 20480")
    if not Cfg.arl:
        a(f"s_sub_u32 {s(sD0)}, {s(idreg)}, 512")
        a(f"s_cmp_lt_u32 {s(sD0)}, 80")
        a(f"s_cbranch_scc1 {pfx}_rl_loop")
    a(f"s_mul_i32 {s(sM)}, {s(S_WV)}, 5120")
    a(f"v_lshrrev_b32 {v(T)}, 4, {v(vL)}")
    a(f"v_bfe_u32 {v(T+1)}, {v(vL)}, 2, 2")
    a(f"v_lshl_add_u32 {v(T)}, {v(T)}, 3, {v(T+1)}")
    a(f"v_mul_u32_u24 {v(T)}, 160, {v(T)}")
    a(f"v_and_b32 {v(T+1)}, 3, {v(vL)}")
    a(f"v_mad_u32_u24 {v(T)}, {v(T+1)}, 40, {v(T)}")
    a(f"v_add_u32 {v(T)}, {s(sM)}, {v(T)}")
    a(f"v_lshlrev_b32 {v(T+1)}, 4, {v(vL)}")
    a(f"v_add_u32 {v(T+2)}, 4096, {v(T+1)}")
    a("s_waitcnt vmcnt(0)")
    a("s_barrier")
    a(f"s_cmp_lg_u32 {s(S_WV)}, 0")
    a(f"s_cbranch_scc1 {pfx}_rl_np")
    publish(a, sFH)
    a(f"{pfx}_rl_np:")
    pass
    for z in range(NR):
        D = T + 20 + 20 * z
        if z:
            a(f"s_cmp_eq_u32 {s(sF1)}, {z}")
            a(f"s_cbranch_scc1 {pfx}_rl_fin")
        for mt in range(5):
            for u in range(2):
                a(f"ds_read_b64_tr_b16 {v(D+4*mt+2*u,2)}, {v(T)} offset:{z*20480+u*640+8*mt}")
        a("s_waitcnt lgkmcnt(0)")
        for mt in range(5 if not Cfg.x_norl & 2 else 0):
            if Cfg.ths >= 0: a(f"s_waitcnt vmcnt({Cfg.ths})")
            a(f"buffer_store_dwordx4 {v(D+4*mt,4)}, {v(T+1 if mt < 4 else T+2)}, {s(S_WS,4)}, {s(sDS[z])} offen offset:{(mt&3)*1024} sc1")
    a(f"{pfx}_rl_fin:")
    a("s_waitcnt vmcnt(0)")
    a("s_barrier")
    a(f"s_cmp_lg_u32 {s(S_WV)}, 0")
    a(f"s_cbranch_scc1 {pfx}_rl_done")
    publish(a, sFR)
    a(f"{pfx}_rl_done:")
    a(f"s_add_u32 {s(sFR)}, {s(sFR)}, 2048")
    a(f"s_cmp_lt_u32 {s(idreg)}, {592 if Cfg.arl else 512}")
    a(f"s_cbranch_scc1 {pfx}_rl_pass")

class G2:
    vL, vF, vF2, vW4, vXO = 1, 2, 3, 4, 5
    vBA, vBR = 6, 10
    vFl, vOL = 0, 8
    vFA, vFR = 7, 8
    XR, AS, AD, HF = 12, 22, 96, 116
    WFS = (180, 200)
    HFS = (116, 132, 148, 164)
    WRS = (200, 220, 48, 68)
    sRT, sC8, sM, sW, sH, sIT, sC0, sC1, sPB, sFB = 41, 42, 43, 44, 45, 46, 47, 48, 49, 50
    sT0, sT1, sT2, sT3 = 54, 55, 56, 57
    @staticmethod
    def OF(k):
        return (148 + 4 * k if k < 8 else 240 + 4 * (k - 8)) if k < 10 else (116 + 4 * (k - 10) if k < 18 else 248 + 4 * (k - 18))
    @staticmethod
    def wdma(slot):
        g = G2
        o = [[f"s_add_u32 m0, {s(g.sM)}, {slot*20480}", "s_nop 0"]]
        for i in range(4): o.append([f"buffer_load_dwordx4 {v(g.vF)}, {s(S_WS,4)}, {s(g.sW)} offen offset:{i*1024} sc1 lds"])
        o[0] += o.pop(1)
        o.append([f"s_add_u32 m0, {s(g.sM)}, {slot*20480+4096}", "s_nop 0",
                  f"buffer_load_dwordx4 {v(g.vW4)}, {s(S_WS,4)}, {s(g.sW)} offen sc1 lds", f"s_add_u32 {s(g.sW)}, {s(g.sW)}, {0 if Cfg.x_hot & 1 else 20480}"])
        return o
    @staticmethod
    def hload(st):
        g = G2
        o = [[f"buffer_load_dwordx4 {v(g.HF+16*st+4*j,4)}, {v(g.vF)}, {s(S_WS,4)}, {s(g.sH)} offen offset:{j*1024} sc1"] for j in range(4)]
        o[-1].append(f"s_add_u32 {s(g.sH)}, {s(g.sH)}, {0 if Cfg.x_hot & 2 else 4096}")
        return o

def g2_start(a, pfx, valu, stores, pre=False):
    if Cfg.sk:
        assert not (Cfg.wpre or Cfg.lag)
        return k2_start(a, pfx, valu, stores)
    g = G2
    heavy = bool(valu)
    vL, sT0, sT1, sT2 = g.vL, g.sT0, g.sT1, g.sT2
    a(f"s_lshr_b32 {s(g.sC8)}, s2, 5")
    a(f"s_and_b32 {s(sT1)}, s2, 7")
    a(f"s_lshl_b32 {s(g.sRT)}, {s(sT1)}, 2")
    a(f"s_bfe_u32 {s(sT1)}, s2, {3 | (2<<16)}")
    a(f"s_add_u32 {s(g.sRT)}, {s(g.sRT)}, {s(sT1)}")
    a(f"s_lshl_b32 {s(g.sRT)}, {s(g.sRT)}, 2")
    a(f"s_add_u32 {s(g.sRT)}, {s(g.sRT)}, {s(S_WV)}")
    a(f"s_mul_i32 {s(g.sW)}, {s(g.sC8)}, {74*5120}")
    a(f"s_mul_i32 {s(g.sM)}, {s(S_WV)}, 5120")
    a(f"s_add_u32 {s(g.sW)}, {s(g.sW)}, {s(g.sM)}")
    a(f"s_add_u32 {s(g.sW)}, {s(g.sW)}, {WR_OFF}")
    a(f"s_mul_i32 {s(g.sH)}, {s(g.sRT)}, 55296")
    a(f"s_add_u32 {s(g.sH)}, {s(g.sH)}, {H_OFF}")
    a(f"v_lshlrev_b32 {v(g.vF)}, 4, {v(vL)}")
    a(f"v_add_u32 {v(g.vW4)}, 4096, {v(g.vF)}")
    a(f"s_mov_b32 {s(sT0)}, 0")
    a(f"s_cmp_eq_u32 {s(S_WV)}, 0")
    a(f"s_cselect_b32 {s(g.sPB)}, {0 if heavy else -1}, -1")
    if not pre:
        a("s_waitcnt vmcnt(0) lgkmcnt(0)")
        a(f"s_cbranch_scc0 {pfx}_p4_ok")
        a(f"v_cmp_ne_u32 vcc, {v(g.vFR)}, {v(V_NONCE)}")
        a("s_nop 1")
        a(f"s_cbranch_vccz {pfx}_p4_ok")
        poll(a, f"{pfx}_p4", g.vFA, sT0, g.vFR, sT2, Cfg.p4s)
        a("s_barrier")
    stamp(a, "h_go")
    work = list(valu) + [
        f"v_add_u32 {v(g.vF2)}, {3*20480}, {v(g.vF)}",
        f"v_and_b32 {v(g.AD)}, 15, {v(vL)}",
        f"v_mul_u32_u24 {v(g.vXO)}, 1280, {v(g.AD)}",
        f"v_lshrrev_b32 {v(g.AD)}, 4, {v(vL)}",
        f"v_mad_u32_u24 {v(g.vXO)}, {v(g.AD)}, 40, {v(g.vXO)}",
        f"v_and_b32 {v(g.vOL)}, 0xff, {v(g.vF)}",
        f"v_lshl_add_u32 {v(g.vOL)}, {v(g.AD)}, {9 if Cfg.two else 10}, {v(g.vOL)}",
        f"v_and_b32 {v(g.vFl)}, 31, {v(vL)}",
        f"v_lshlrev_b32 {v(g.vFl)}, 6, {v(g.vFl)}",
        f"v_min_u32 {v(g.vBA)}, {11 if Cfg.med else 9}, {v(vL)}",
        f"v_lshlrev_b32 {v(g.vBA)}, 6, {v(g.vBA)}",
        f"s_lshr_b32 {s(g.sFB)}, {s(g.sRT)}, 3", f"s_lshl_b32 {s(g.sFB)}, {s(g.sFB)}, 10", f"s_add_u32 {s(g.sFB)}, {s(g.sFB)}, {F2B_OFF}",
        f"v_add_u32 {v(g.vBA)}, {s(g.sFB)}, {v(g.vBA)}",
        f"s_lshr_b32 {s(g.sFB)}, s2, 7", f"s_lshl_b32 {s(g.sFB)}, {s(g.sFB)}, 12", f"s_add_u32 {s(g.sFB)}, {s(g.sFB)}, {F4_OFF}",
        f"s_mov_b32 exec_lo, 0\nv_lshl_add_u32 {v(g.vBA)}, {v(vL)}, 6, {s(g.sFB)}\ns_mov_b32 exec_lo, -1",
        f"s_mov_b32 {s(g.sFB)}, 0"]
    groups = g.wdma(0) + g.hload(0) + g.wdma(1) + g.hload(1)
    if pre:
        groups = g.hload(0) + g.hload(1)
        a(f"s_add_u32 {s(g.sW)}, {s(g.sW)}, 40960")
        if Cfg.hpre:
            groups = [[]]
            a(f"s_add_u32 {s(g.sH)}, {s(g.sH)}, 8192")
    per = -(-len(work) // len(groups))
    for gr in groups:
        a.ext(gr); a.ext(work[:per]); work = work[per:]
    a.ext(stores)
    a(f"s_waitcnt vmcnt({(0 if Cfg.hpre else 4) + len(stores) if pre else 9 + len(stores)}) lgkmcnt(0)")

def gen_g2(a, pfx):
    g = G2
    vL, vF, vF2, vW4, vXO, XR, AS, AD, HF, WFS, OF = g.vL, g.vF, g.vF2, g.vW4, g.vXO, g.XR, g.AS, g.AD, g.HF, g.WFS, g.OF
    sRT, sC8, sM, sW, sH, sPB, sFB = g.sRT, g.sC8, g.sM, g.sW, g.sH, g.sPB, g.sFB
    sT0, sT1, sT2, sT3 = g.sT0, g.sT1, g.sT2, g.sT3
    sOL, sF3, sFH = 46, 47, 48
    SETS = (WFS[0], WFS[1], 220, 48, 68)
    T = 88; U = 148
    vFl, vOL = g.vFl, g.vOL
    vFr, vTW, vTR, vO = T + 1, T + 3, T + 4, T + 5
    SX, SO = S_A, S_B
    vm, lg = Trk(), Trk()
    CB = 12
    ool = []
    def loc(st):
        return (2, st - 72) if st >= 72 else ((st >> 2) & 3, st & 3)
    def rd(d, st, mt):
        slot, ks = loc(st)
        base, off = (vF2, 0) if slot == 3 else (vF, slot * 20480)
        lg.add((st, mt))
        a(f"ds_read_b128 {v(d+4*mt,4)}, {v(base)} offset:{off+ks*5120+mt*1024}")
    W = lambda st: [(("W", st), x) for x in g.wdma(st & 3)]
    H = lambda st: [(("H", st), x) for x in g.hload(st & 3)]
    def put(it):
        tag, lines = it
        if callable(lines): lines(); return
        if tag and ((tag[0] == "W" and Cfg.x_d & 1) or (tag[0] == "H" and Cfg.x_d & 2)): lines = [x for x in lines if "buffer_load" not in x]
        if tag and tag[0] in "WH" and Cfg.x_d & 4: lines = [x.replace(" sc1", "") for x in lines]
        a.ext(lines)
        if tag: vm.add(tag)
    def wave0(name, cond, body):
        def f():
            a(f"s_cmp_eq_u32 {s(cond)}, 0"); a(f"s_cbranch_scc1 {pfx}_{name}"); a(f"{pfx}_{name}r:")
            b = Asm(); b(f"{pfx}_{name}:"); body(b); b(f"s_branch {pfx}_{name}r"); ool.append(b)
        return f
    def flag_req(name, vaddr, soff, vres):
        def body(b):
            vm.mark(name)
            b(f"buffer_load_dword {v(vres)}, {'off' if vaddr is None else v(vaddr)}, {s(S_WS,4)}, {s(soff)}{'' if vaddr is None else ' offen'} sc1")
        return wave0("q" + name, S_WV, body)
    def flag_chk(name, vaddr, soff, vres, sleep, prio, st):
        def body(b):
            setprio(b, Cfg.prioGv)
            b(f"s_waitcnt vmcnt({vm.n(name)})")
            b(f"v_cmp_ne_u32 vcc, {v(vres)}, {v(V_NONCE)}")
            b("s_nop 1")
            b(f"s_cbranch_vccz {pfx}_p{name}_ok")
            poll(b, f"{pfx}_p{name}", vaddr, soff, vres, sT2, sleep)
            setprio(b, prio)
            if st: stamp(b, st)
        return wave0("c" + name, S_WV, body)
    for st in range(2):
        for x in W(st) + H(st): vm.add(x[0])
    vm.mark("hst")
    setprio(a, Cfg.prioD)
    a("s_barrier")
    for st in range(2):
        for mt in range(5): rd(WFS[st], st, mt)
    stamp(a, "d_issued")
    sal = lambda *l: (None, list(l))
    xl = [(("X", 0), [f"buffer_load_dwordx{n} {v(XR+o,n)}, {v(vXO)}, {s(SX,4)}, {s(sT3)} offen offset:{4*o}"]) for o, n in ((0, 4), (4, 4), (8, 2))]
    if Cfg.xl: xl = []
    first = {st: W(st + 2) for st in range(11)}
    second = {st: H(st + 2) for st in range(11)}
    second[10] = second[10] + W(13)
    first[11] = W(14) + H(13)[:2]; second[11] = W(15)
    first[12] = xl; second[12] = W(16); first[13] = []
    LG0 = 10
    if Cfg.lead == 1:
        first = {st: H(st + 2) for st in range(11)}; second = {st: W(st + 3) for st in range(11)}
        first[0] = W(2) + H(2)
        first[11] = W(14) + H(13)[:2]; second[11] = W(15); first[12] = xl; second[12] = W(16); first[13] = []
    if Cfg.lead == 2:
        first = {st: W(st + 3) for st in range(13)}; second = {st: H(st + 3) for st in range(10)}
        first[0] = W(2) + H(2); second[0] = W(3) + H(3)
        first[5] = []; second[5] = W(8) + H(8)
        second[10] = H(13)[:2] + xl; second[11] = W(15); first[12] = []; second[12] = W(16); first[13] = []
        LG0 = 0
    pre = {}; post = {}
    post[1] = wave0("pb", sPB, lambda b: (publish(b, 100), stamp(b, "pub2")))
    second[4] = second[4] + [(None, flag_req("2", g.vBA, sFB, g.vBR))]
    pre[5] = flag_chk("2", g.vBA, sFB, g.vBR, Cfg.p2s, Cfg.prioD, "h2_go")
    second[7] += [sal(f"s_lshl_b32 {s(sFH)}, s2, 6", f"s_add_u32 {s(sFH)}, {s(sFH)}, {FH_OFF}",
                      f"s_mul_i32 {s(sT3)}, {s(sRT)}, {16*1280}", f"s_mul_i32 {s(sT1)}, {s(sC8)}, 160", f"s_add_u32 {s(sT3)}, {s(sT3)}, {s(sT1)}")]
    t_ = Asm(); srd(t_, SX, P_X, 2048 * 1280); srd(t_, SO, P_OUT, 2048 * 1280)
    second[8] += [sal(*[x.strip() for x in t_.lines])]
    sOH, sOG = 58, 96
    LS = 256 if Cfg.two else 512
    olb = [f"s_lshr_b32 {s(sT1)}, {s(sRT)}, 1", f"s_lshl_b32 {s(sOL)}, {s(sT1)}, 13", f"s_and_b32 {s(sT0)}, {s(sRT)}, 1",
           f"s_lshl3_add_u32 {s(sOL)}, {s(sT0)}, {s(sOL)}"] if Cfg.two else \
          [f"s_lshr_b32 {s(sT1)}, {s(sRT)}, 2", f"s_lshl_b32 {s(sOL)}, {s(sT1)}, 14", f"s_and_b32 {s(sT0)}, {s(S_WV)}, 1", f"s_lshl_b32 {s(sT0)}, {s(sT0)}, 8",
           f"s_add_u32 {s(sOL)}, {s(sOL)}, {s(sT0)}", f"s_lshr_b32 {s(sT0)}, {s(S_WV)}, 1", f"s_lshl3_add_u32 {s(sOL)}, {s(sT0)}, {s(sOL)}"]
    second[6] += [sal(*olb, f"s_lshr_b32 {s(sT1)}, {s(sRT)}, 2",
                      f"s_lshl_b32 {s(sF3)}, {s(sT1)}, 11", f"s_add_u32 {s(sF3)}, {s(sF3)}, {F3_OFF}", f"s_lshl_b32 {s(sT0)}, {s(sRT)}, 14",
                      *[f"s_add_u32 {s(sOH+gq)}, {s(sT0)}, {O_OFF + 4096*gq}" for gq in range(4)],
                      *[f"s_add_u32 {s(sOG+gq)}, {s(sOL)}, {OL_OFF + 8*LS*gq}" for gq in range(4)])]
    def L(gq):
        return [(("O", 5*gq+i), [f"buffer_load_dwordx4 {v(OF(5*gq+i),4)}, {v(vF)}, {s(S_WS,4)}, {s(sOH+gq)} offen offset:{i*1024} sc1"]) for i in range(4)] + \
               [(("O", 5*gq+4), [f"buffer_load_dwordx2 {v(OF(5*gq+4)+2*i,2)}, {v(g.vOL)}, {s(S_WS,4)}, {s(sOG+gq)} offen offset:{i*LS} sc1"]) for i in range(2)]
    if Cfg.two:
        first[CB] = [(None, flag_req("a", g.vFl, sF3, g.vBR))] + first[CB]
        pre[CB] = flag_chk("a", g.vFl, sF3, g.vBR, Cfg.p2s, Cfg.prioD, "o0_go")
        b0 = L(0) + L(1)
        second[12] = second[12] + b0[:4]; first[13] = b0[4:]
    else:
        first[13] = [(None, flag_req("3", vFl, sF3, vFr))]
    if 0 < Cfg.lag < 4:
        ls = 9 + Cfg.lag
        first[ls] = [(None, flag_req("h", None, sFH, g.vBR))] + first[ls]
        pre[ls] = flag_chk("h", None, sFH, g.vBR, 2, Cfg.prioD, None)
    if Cfg.tc & 2:
        def tb(b):
            setprio(b, Cfg.prioGv); b.ext(touch(f"{pfx}_tc1", f"{pfx}_end", 52, g.vFA, g.vFA)); setprio(b, Cfg.prioD)
            b.lines = [l.replace("s_add_u32 s52, s52, g2_tc1-", "s_sub_u32 s52, s52, @").replace("s_addc_u32 s53", "s_subb_u32 s53") for l in b.lines]
            b.lines = [(l.split("@")[0] + l.split("@")[1] + "-g2_tc1") if "@" in l else l for l in b.lines]
        first[8] = first[8] + [(None, wave0("tc", S_WV, tb))]
    extra = []
    a(f"s_waitcnt lgkmcnt({lg.n((0, 0))})")
    for st in range(14):
        for ks in range(4 if st < 13 else 2):
            k = 4 * st + ks
            if k == 48: a(f"{pfx}_tc1:")
            if ks in (0, 2):
                pend = list((first if ks == 0 else second)[st]); npend = len(pend); done = 0
            for mt in range(5):
                d = WFS[k & 1]
                a(mf16(AD + 4 * mt, d + 4 * mt, HF + 16 * (st & 3) + 4 * ks, "0" if k == 0 else None))
                nxt = (k, mt + 1) if mt < 4 else (k + 1, 0)
                w = [f"lgkmcnt({min(14, lg.n(nxt))})"] if nxt[0] < 54 else []
                if ks == 2 and mt == 0:
                    need = [("W", st + 1)] + (["hst"] if st == 1 else []) + ([("W", 14)] if st == 12 else [])
                    w = [f"vmcnt({min(vm.n(x) for x in need)})"] + (["lgkmcnt(0)"] if st >= LG0 else w)
                    a("s_waitcnt " + " ".join(w))
                    if st in pre: pre[st]()
                    a("s_barrier")
                    if st in post: post[st]()
                    if st == 12: extra = [(SETS[j], 54 + j, m) for j in range(2, 5) for m in range(5)]
                else:
                    if ks == 3 and mt == 4: w = [f"vmcnt({vm.n(('H', st + 1))})"] + w
                    if w: a("s_waitcnt " + " ".join(w))
                rd(d, k + 2, mt)
                if extra: rd(*extra.pop(0))
                pos = 5 * (ks & 1) + mt
                while pend and done * 10 <= pos * npend:
                    put(pend.pop(0)); done += 1
            if ks & 1: assert not pend
    assert not extra
    a(f"{pfx}_tc2:")
    setprio(a, Cfg.prioGv)
    stamp(a, "d_done")
    a(f"s_waitcnt vmcnt({vm.n(('W', 16))}) lgkmcnt(0)")
    a("s_barrier")
    work = []
    for r0 in range(0, 20, 4):
        Z = 44
        work += [f"v_mul_f32 {v(Z+i)}, {f2u(-LOG2E)}, {v(AD+r0+i)}" for i in range(4)]
        work += [f"v_exp_f32 {v(Z+i)}, {v(Z+i)}" for i in range(4)]
        work += [f"v_pk_add_f32 {v(Z+i,2)}, {v(Z+i,2)}, 1.0 op_sel_hi:[1,0]" for i in (0, 2)]
        work += [f"v_rcp_f32 {v(Z+i)}, {v(Z+i)}" for i in range(4)]
        work += [pk("mul", AD + r0 + i, [AD + r0 + i, Z + i]) for i in (0, 2)]
    def w18():
        a(f"s_cmp_ge_u32 {s(S_WV)}, 2")
        a(f"s_cbranch_scc1 {pfx}_now5")
        for x in g.wdma(2): a.ext(x)
        a(f"{pfx}_now5:")
        vm.mark("w18")
    if not Cfg.sls:
        for i, it in enumerate(W(17)):
            put(it); a.ext(work[16*i:16*i+16])
        w18(); work = []
    setprio(a, Cfg.prioT)
    SCR = 2 * 20480 + 2 * 5120
    vZ = 42
    adr = [f"s_add_u32 {s(sF3)}, {s(sF3)}, {65536 if Cfg.two else 0}",
           f"v_lshrrev_b32 {v(vTW)}, 4, {v(vL)}", f"v_and_b32 {v(vTR)}, 0xff, {v(vF)}",
           f"s_mul_i32 {s(sT0)}, {s(S_WV)}, 2560", f"s_add_u32 {s(sT0)}, {s(sT0)}, {SCR}",
           f"v_mul_u32_u24 {v(vTR)}, 10, {v(vTR)}", f"v_mad_u32_u24 {v(vTW)}, {v(vTW)}, 40, {v(vTR)}", f"v_add_u32 {v(vTW)}, {s(sT0)}, {v(vTW)}",
           f"v_add_u32 {v(vTR)}, {s(sT0)}, {v(vF)}", f"s_movk_i32 {s(sT1)}, 1120"]
    for i in range(3):
        adr += [f"v_add_u32 {v(vO+i)}, {64*i}, {v(vL)}", f"v_mul_u32_u24 {v(vZ)}, 6554, {v(vO+i)}", f"v_lshrrev_b32 {v(vZ)}, 16, {v(vZ)}",
                f"v_lshlrev_b32 {v(vO+i)}, 4, {v(vO+i)}", f"v_mad_u32_u24 {v(vO+i)}, {v(vZ)}, {s(sT1)}, {v(vO+i)}"]
    stamp(a, "wo_ready")
    ol = W(17) + [(None, w18)] if Cfg.sls else []
    order = [(k, mt) for k in range(15) for mt in range(5)] + [(k, mt) for mt in range(5) for k in range(15, 20)]
    posn = {x: n for n, x in enumerate(order)}
    reads = sorted(((k, mt) for k in range(5, 20) for mt in range(5)), key=lambda x: posn[x])
    NB = Cfg.nb
    unp = [f"v_lshlrev_b32 {v(U+2*j)}, 16, {v(XR+j)}" if h == 0 else f"v_and_b32 {v(U+2*j+1)}, 0xffff0000, {v(XR+j)}" for j in range(10) for h in range(2)]
    def fin(mt):
        return [f"v_fma_f32 {v(U+4*mt+i)}, {v(AS+4*mt+i)}, {v(AD+4*mt+i)}, {v(U+4*mt+i)}" for i in range(4)] + \
               [f"v_cvt_pk_bf16_f32 {v(XR+2*mt+j)}, {v(U+4*mt+2*j)}, {v(U+4*mt+2*j+1)}" for j in range(2)]
    fq = []; nread = 0
    def wr(mt):
        lg.add(("w", mt)); a(f"ds_write_b64 {v(vTW)}, {v(XR+2*mt,2)} offset:{8*mt}")
    if not Cfg.two:
        for it in ol:
            put(it); a.ext(adr[:5]); adr = adr[5:]
        a.ext(adr); adr = []
        flag_chk("3", vFl, sF3, vFr, Cfg.p3s, Cfg.prioGv, None)()
        a("s_barrier")
        stamp(a, "o_go")
        ol = L(0) + L(1) + L(2) + L(3)
        per = -(-len(work) // Cfg.onl)
        for i in range(Cfg.onl):
            put(ol.pop(0))
            if i >= Cfg.sl0: a.ext(work[:per]); work = work[per:]
        a.ext(work)
    a(f"s_waitcnt vmcnt({vm.n(('O', 0))})")
    if not Cfg.two: stamp(a, "o_first")
    seenO = {0, 10} if Cfg.two else {0}
    unp = adr + unp
    XN = 50 if Cfg.two else 56
    for n, (k, mt) in enumerate(order):
        if n == XN and Cfg.xl and not Cfg.two:
            a(f"s_waitcnt vmcnt({vm.n('X')})")
            for m in range(5):
                lg.add(("x", m)); a(f"ds_read_b64 {v(XR+2*m,2)}, {v(vTW)} offset:{8*m}")
        if n == 50 and Cfg.two:
            for x in [x for x in reads if x[0] < 15]:
                reads.remove(x); rd(SETS[x[0] % 5], 54 + x[0], x[1]); nread += 1
            if not Cfg.xl: a.ext(unp); unp = []
            setprio(a, Cfg.prioGv)
            stamp(a, "o_mid")
            flag_chk("3", vFl, sF3, vFr, Cfg.p3s, Cfg.prioGv, None)()
            a("s_barrier")
            stamp(a, "o_go")
            ol = L(2) + L(3)
            per = -(-len(work) // Cfg.onl)
            for i in range(Cfg.onl):
                put(ol.pop(0))
                if i >= Cfg.sl0: a.ext(work[:per]); work = work[per:]
            a.ext(work)
            a(f"s_waitcnt vmcnt({vm.n(('O', 10))})")
            stamp(a, "o_first")
            if Cfg.xl:
                for m in range(5):
                    lg.add(("x", m)); a(f"ds_read_b64 {v(XR+2*m,2)}, {v(vTW)} offset:{8*m}")
        a(mf16(AS + 4 * mt, SETS[k % 5] + 4 * mt, OF(k), "0" if k == 0 else None))
        w = []
        if n < 99:
            k2, m2 = order[n + 1]
            if k2 not in seenO: w.append(f"vmcnt({vm.n(('O', k2))})"); seenO.add(k2)
            if n == NB: w.append(f"vmcnt({vm.n('w18')})")
            if k2 >= 5: w.append(f"lgkmcnt({min(14, lg.n((54 + k2, m2)), lg.n(('x', 4)) if (Cfg.xl and n == XN + 7) else 14)})")
        if w: a("s_waitcnt " + " ".join(w))
        if n == NB: a("s_barrier")
        if n == NB + 1 and Cfg.two: flag_req("3", vFl, sF3, vFr)()
        if Cfg.xl and n in (NB + 2, NB + 4, NB + 6):
            i = (n - NB - 2) // 2
            assert len(unp) <= 20
            a(f"s_add_u32 m0, {s(sT0)}, {i*1024}")
            a("s_mov_b32 exec_hi, 0" if i == 2 else "s_nop 0")
            a(f"buffer_load_dwordx4 {v(vO+i)}, {s(SX,4)}, {s(sT3)} offen lds"); vm.add("X")
            if i == 2: a("s_mov_b32 exec_hi, -1")
        slots = 2
        ok = [x for x in reads if posn[(x[0] - 5, x[1])] <= n and (x[0] < 14 or n >= NB)]
        if ok and ((n >= 50 and Cfg.two) or nread * Cfg.rpn <= n * 10 or posn[ok[0]] - n <= 10):
            x = ok[0]; reads.remove(x); rd(SETS[x[0] % 5], 54 + x[0], x[1]); nread += 1; slots -= 1
        if ol and n % (Cfg.oln if (n >= 50 or not Cfg.two) else 3) == 0:
            put(ol.pop(0)); slots -= 1
        if n >= 83 and (n - 83) % 5 == 0: fq += fin((n - 83) // 5) + [(n - 83) // 5]
        while slots > 0 and ((unp and (len(unp) > 20 or n >= (XN + 7 if Cfg.xl else 26))) or fq):
            x = unp.pop(0) if unp else fq.pop(0)
            if isinstance(x, int): wr(x)
            else: a(x)
            slots -= 1
    assert not reads and not ol and not unp
    stamp(a, "wo_done")
    for x in fq:
        if isinstance(x, int): wr(x)
        else: a(x)
    a("s_nop 2")
    a.ext(fin(4)); wr(4)
    for i in range(3): a(f"ds_read_b128 {v(U+4*i,4)}, {v(vTR)} offset:{i*1024}")
    for i in range(3):
        a(f"s_waitcnt lgkmcnt({2-i})")
        if Cfg.diag and i == 0:
            a(f"s_or_b32 {s(sT0)}, s2, {s(S_WV)}")
            a(f"s_cmp_lg_u32 {s(sT0)}, 0")
            a(f"s_cbranch_scc1 {pfx}_nodiag")
            a("s_waitcnt lgkmcnt(0)")
            a(f"s_add_u32 s52, {s(P_WS)}, 0x8000000")
            a(f"s_addc_u32 s53, {s(P_WS+1)}, 0")
            a("s_load_dwordx2 s[60:61], s[52:53], 0")
            a("s_memrealtime s[58:59]")
            a("s_waitcnt lgkmcnt(0)")
            a("s_cmp_eq_u32 s60, s61")
            a(f"s_cbranch_scc1 {pfx}_nodiag")
            a("s_getreg_b32 s60, hwreg(HW_REG_XCC_ID)")
            a("s_and_b32 s60, s60, 15")
            a(f"v_lshlrev_b32 v200, 6, {v(vL)}")
            a(f"s_mov_b32 s61, {FH_OFF + 4}")
            a(f"buffer_load_dword v201, v200, {s(S_WS,4)}, s61 offen sc1")
            a("s_waitcnt vmcnt(0)")
            for x in range(8): a(f"v_readlane_b32 {s(70+x)}, v201, {x}")
            a("s_nop 3")
            a("s_mov_b32 s80, s70"); a("s_mov_b32 s81, s70"); a("s_mov_b32 s82, 0")
            for x in range(1, 8):
                a(f"s_min_u32 s80, s80, {s(70+x)}")
                a(f"s_cmp_gt_u32 {s(70+x)}, s81"); a(f"s_cselect_b32 s82, {x*100}, s82")
                a(f"s_max_u32 s81, s81, {s(70+x)}")
            d = Cfg.diag
            if d == 1: a("s_mul_i32 s60, s60, 100")
            if d == 2: a("s_sub_u32 s60, 7, s60"); a("s_mul_i32 s60, s60, 100")
            if d == 3: a("s_sub_u32 s60, s81, s80")
            if d == 4: a("s_sub_u32 s60, s70, s80")
            if d == 5: a("s_mov_b32 s60, s82")
            if d == 6: a("s_sub_u32 s60, s58, s80")
            a("s_mov_b64 exec, 1")
            a(f"v_cvt_f32_u32 v200, s60")
            a(f"v_mul_f32 v200, {f2u(0.01)}, v200")
            a(f"v_add_f32 v200, 4.0, v200")
            a(f"v_cvt_pk_bf16_f32 {v(U)}, v200, v200")
            a("s_mov_b64 exec, -1")
            a(f"{pfx}_nodiag:")
        if i == 2: a("s_mov_b32 exec_hi, 0")
        a(f"buffer_store_dwordx4 {v(U+4*i,4)}, {v(vO+i)}, {s(SO,4)}, {s(sT3)} offen" + ("", " sc1", " nt", " sc0 sc1")[Cfg.ost])
    a(f"s_branch {pfx}_end")
    for b in ool: a.lines += b.lines
    a(f"{pfx}_end:")


class K2:
    vL, vF, vF2, vW4, vXO = 1, 2, 3, 4, 5
    vBA, vBR, vFA, vFR, vFl = 6, 10, 7, 8, 0
    vH = 12
    AD, BUF, XR = 16, 96, 240
    sRT, sC8, sM, sW, sH, sPB, sWo = 41, 42, 43, 44, 45, 49, 50
    sT0, sT1, sT2, sT3 = 54, 55, 56, 57
    @staticmethod
    def loads(j):
        g = K2; b = g.BUF + 36 * (j % Cfg.skn); o = []
        for i in range(5):
            o.append([f"buffer_load_dwordx4 {v(b+16+4*i,4)}, {v(g.vF if i < 4 else g.vW4)}, {s(S_WS,4)}, {s(g.sW)} offen offset:{(i&3)*1024 if i < 4 else 0} sc1"])
            if i < 4: o.append([f"buffer_load_dwordx4 {v(b+4*i,4)}, {v(g.vH+i)}, {s(S_WS,4)}, {s(g.sH)} offen sc1"])
        o[-1] += [f"s_add_u32 {s(g.sW)}, {s(g.sW)}, 20480", f"s_add_u32 {s(g.sH)}, {s(g.sH)}, 4096"]
        return o

def k2_start(a, pfx, valu, stores):
    g = K2
    vL, sT0, sT1, sT2 = g.vL, g.sT0, g.sT1, g.sT2
    a(f"s_lshr_b32 {s(g.sC8)}, s2, 5")
    a(f"s_and_b32 {s(sT1)}, s2, 7")
    a(f"s_bfe_u32 {s(sT0)}, s2, {3 | (2<<16)}")
    a(f"s_lshl2_add_u32 {s(g.sRT)}, {s(sT1)}, {s(sT0)}")
    a(f"s_mul_i32 {s(g.sW)}, {s(g.sC8)}, {74*5120}")
    a(f"s_mul_i32 {s(g.sM)}, {s(S_WV)}, 5120")
    a(f"s_add_u32 {s(g.sW)}, {s(g.sW)}, {s(g.sM)}")
    a(f"s_add_u32 {s(g.sW)}, {s(g.sW)}, {WR_OFF}")
    a(f"s_add_u32 {s(g.sWo)}, {s(g.sW)}, {54*5120}")
    a(f"s_mul_i32 {s(g.sH)}, {s(g.sRT)}, {4*55296}")
    a(f"s_lshl_b32 {s(sT0)}, {s(S_WV)}, 10")
    a(f"s_add_u32 {s(g.sH)}, {s(g.sH)}, {s(sT0)}")
    a(f"s_add_u32 {s(g.sH)}, {s(g.sH)}, {H_OFF}")
    a(f"v_lshlrev_b32 {v(g.vF)}, 4, {v(vL)}")
    a(f"v_add_u32 {v(g.vW4)}, 4096, {v(g.vF)}")
    for i in range(4):
        a(f"s_add_u32 {s(sT0)}, {s(S_WV)}, {i}")
        a(f"s_and_b32 {s(sT0)}, {s(sT0)}, 3")
        a(f"s_mul_i32 {s(sT0)}, {s(sT0)}, 55296")
        a(f"v_add_u32 {v(g.vH+i)}, {s(sT0)}, {v(g.vF)}")
    a(f"s_mov_b32 {s(sT0)}, 0")
    a(f"s_cmp_eq_u32 {s(S_WV)}, 0")
    a(f"s_cselect_b32 {s(g.sPB)}, {0 if valu else -1}, -1")
    a("s_waitcnt vmcnt(0) lgkmcnt(0)")
    a(f"s_cbranch_scc0 {pfx}_p4_ok")
    a(f"v_cmp_ne_u32 vcc, {v(g.vFR)}, {v(V_NONCE)}")
    a("s_nop 1")
    a(f"s_cbranch_vccz {pfx}_p4_ok")
    poll(a, f"{pfx}_p4", g.vFA, sT0, g.vFR, sT2, Cfg.p4s)
    a("s_barrier")
    stamp(a, "h_go")
    work = list(valu) + [
        f"v_add_u32 {v(g.vF2)}, {3*20480}, {v(g.vF)}",
        f"v_and_b32 {v(g.vFR)}, 15, {v(vL)}",
        f"v_mul_u32_u24 {v(g.vXO)}, 1280, {v(g.vFR)}",
        f"v_lshrrev_b32 {v(g.vFR)}, 4, {v(vL)}",
        f"v_mad_u32_u24 {v(g.vXO)}, {v(g.vFR)}, 40, {v(g.vXO)}",
        f"v_and_b32 {v(g.vFl)}, 31, {v(vL)}",
        f"v_lshlrev_b32 {v(g.vFl)}, 6, {v(g.vFl)}",
        f"v_min_u32 {v(g.vBA)}, 11, {v(vL)}",
        f"s_lshr_b32 {s(sT0)}, {s(g.sRT)}, 1", f"s_lshl_b32 {s(sT0)}, {s(sT0)}, 10", f"s_add_u32 {s(sT0)}, {s(sT0)}, {F2B_OFF}",
        f"v_lshl_add_u32 {v(g.vBA)}, {v(g.vBA)}, 6, {s(sT0)}",
        f"s_lshr_b32 {s(sT0)}, s2, 7", f"s_lshl_b32 {s(sT0)}, {s(sT0)}, 12", f"s_add_u32 {s(sT0)}, {s(sT0)}, {F4_OFF}",
        f"s_mov_b32 exec_lo, 0\nv_lshl_add_u32 {v(g.vBA)}, {v(vL)}, 6, {s(sT0)}\ns_mov_b32 exec_lo, -1"]
    if Cfg.sks == 0:
        parts = [(g.loads(0) + g.loads(1), work, stores)]
    else:
        parts = [(g.loads(0), work[:len(valu)], stores), (g.loads(1), work[len(valu):], [])]
    for groups, wk, st in parts:
        per = -(-len(wk) // len(groups))
        for gr in groups:
            a.ext(gr); a.ext(wk[:per]); wk = wk[per:]
        a.ext(st)
    a(f"s_waitcnt vmcnt({9 + len(stores)})")

def gen_k2(a, pfx):
    g = K2
    vL, vF, vF2, vW4, vXO, XR, AD, vFl = g.vL, g.vF, g.vF2, g.vW4, g.vXO, g.XR, g.AD, g.vFl
    sRT, sC8, sM, sPB, sWo = g.sRT, g.sC8, g.sM, g.sPB, g.sWo
    sT0, sT1, sT2, sT3 = g.sT0, g.sT1, g.sT2, g.sT3
    sOL, sF3, sZ, sOH, sOG = 46, 47, 48, 58, 96
    AS = 36; RT = 176
    SETS = (96, 116, 136, 156, 76)
    OF = lambda k: 216 + 4 * k if k < 6 else 56 + 4 * (k - 6) if k < 10 else 176 + 4 * (k - 10)
    U = 216; Z = 72
    TWO = Cfg.two; LS = 256 if TWO else 512
    F = Cfg.skf
    if F:
        assert not TWO and Cfg.skn == 3
        SETS = (76, 56, 96, 116, 136); OF = lambda k: 156 + 4 * k; U = 156; Z = 236
    vFr, vOL, vTW, vTR, vO = 8, 9, 250, 251, 252
    SX, SO = S_A, S_B
    NS = Cfg.skn
    vm, lg = Trk(), Trk()
    ool = []
    def put(it):
        tag, lines = it
        if callable(lines): lines(); return
        a.ext(lines)
        if tag: vm.add(tag)
    def wave0(name, cond, body):
        def f():
            a(f"s_cmp_eq_u32 {s(cond)}, 0"); a(f"s_cbranch_scc1 {pfx}_{name}"); a(f"{pfx}_{name}r:")
            b = Asm(); b(f"{pfx}_{name}:"); body(b); b(f"s_branch {pfx}_{name}r"); ool.append(b)
        return f
    def flag_req(name, vaddr, soff, vres):
        def body(b):
            vm.mark(name); b(f"buffer_load_dword {v(vres)}, {v(vaddr)}, {s(S_WS,4)}, {s(soff)} offen sc1")
        return wave0("q" + name, S_WV, body)
    def flag_chk(name, vaddr, soff, vres, sleep, prio, st):
        def body(b):
            setprio(b, Cfg.prioGv)
            b(f"s_waitcnt vmcnt({vm.n(name)})")
            b(f"v_cmp_ne_u32 vcc, {v(vres)}, {v(V_NONCE)}")
            b("s_nop 1")
            b(f"s_cbranch_vccz {pfx}_p{name}_ok")
            poll(b, f"{pfx}_p{name}", vaddr, soff, vres, sT2, sleep, g.vBR if (name == "3" and Cfg.pp3) else None)
            setprio(b, prio)
            if st: stamp(b, st)
        return wave0("c" + name, S_WV, body)
    def wo_dma(stage, slot):
        o = [[f"s_add_u32 m0, {s(sM)}, {slot*20480}", "s_nop 0"]]
        for i in range(4): o.append([f"buffer_load_dwordx4 {v(vF)}, {s(S_WS,4)}, {s(sWo)} offen offset:{i*1024} sc1 lds"])
        o[0] += o.pop(1)
        o.append([f"s_add_u32 m0, {s(sM)}, {slot*20480+4096}", "s_nop 0",
                  f"buffer_load_dwordx4 {v(vW4)}, {s(S_WS,4)}, {s(sWo)} offen sc1 lds", f"s_add_u32 {s(sWo)}, {s(sWo)}, 20480"])
        return [(("wo", stage), x) for x in o]
    def rd(d, j, mt):
        off = (j * 5120 if j < 12 else (j - 16) * 5120 if j >= 16 else (j - 12) * 5120) + mt * 1024
        lg.add((j, mt))
        a(f"ds_read_b128 {v(d+4*mt,4)}, {v(vF2 if ((j >= 16) if F else (12 <= j < 16)) else vF)} offset:{off}")
    B = lambda j: [(("B", j), x) for x in g.loads(j)]
    sal = lambda *l: (None, list(l))
    for j in range(2):
        for x in B(j): vm.add(x[0])
        if j == 1 - min(Cfg.sks, 1): vm.mark("hst")
    setprio(a, Cfg.prioD)
    LD = NS - 1
    PJ = Cfg.skp2
    items = {j: (B(j + LD) if j + LD < 13 else []) for j in range(14)}
    if NS == 4: items[0] = B(2) + B(3)
    def last_loads():
        a(f"s_cmp_ge_u32 {s(S_WV)}, 2"); a(f"s_cbranch_scc1 {pfx}_nl13")
        for x in g.loads(13): a.ext(x)
        a(f"{pfx}_nl13:"); vm.mark("B13")
    items[13 - LD] = [(None, last_loads)]
    if F:
        ll = [sal(f"s_and_b32 {s(sT0)}, {s(S_WV)}, 2", f"s_mul_i32 {s(sT1)}, {s(sT0)}, 5120", f"s_sub_u32 {s(g.sW)}, {s(g.sW)}, {s(sT1)}",
                  f"s_lshl_b32 {s(sT0)}, {s(sT0)}, 10", f"s_sub_u32 {s(g.sH)}, {s(g.sH)}, {s(sT0)}")]
        for n_, x in enumerate(g.loads(13)):
            if n_ in (5, 7): continue
            if n_ in (1, 3): x = [x[0].replace(v(132 + 2 * (n_ - 1), 4), v(140 + 2 * (n_ - 1), 4))]
            ll.append(("B13", x))
        items[11] = ll
    CJ = 8 - LD
    GJ = Cfg.gj
    if Cfg.cj0: CJ = GJ
    t_ = Asm(); srd(t_, SX, P_X, 2048 * 1280); srd(t_, SO, P_OUT, 2048 * 1280)
    setup = [sal(f"s_mov_b32 {s(sZ)}, 0", *[x.strip() for x in t_.lines])]
    setup += [sal(f"s_lshl_b32 {s(sOL)}, {s(sRT)}, 14", f"s_and_b32 {s(sT0)}, {s(S_WV)}, 1", f"s_lshl_b32 {s(sT0)}, {s(sT0)}, {3 if TWO else 8}",
                     f"s_add_u32 {s(sOL)}, {s(sOL)}, {s(sT0)}", f"s_lshr_b32 {s(sT0)}, {s(S_WV)}, 1", f"s_lshl_b32 {s(sT0)}, {s(sT0)}, {13 if TWO else 3}",
                     f"s_add_u32 {s(sOL)}, {s(sOL)}, {s(sT0)}",
                     f"s_lshl_b32 {s(sF3)}, {s(sRT)}, 11", f"s_add_u32 {s(sF3)}, {s(sF3)}, {F3_OFF}",
                     f"s_lshl2_add_u32 {s(sRT)}, {s(sRT)}, {s(S_WV)}", f"s_lshl_b32 {s(sT0)}, {s(sRT)}, 14",
                     *[f"s_add_u32 {s(sOH+q)}, {s(sT0)}, {O_OFF + 4096*q}" for q in range(4)],
                     *[f"s_add_u32 {s(sOG+q)}, {s(sOL)}, {OL_OFF + 8*LS*q}" for q in range(4)],
                     f"s_mul_i32 {s(sT3)}, {s(sRT)}, {16*1280}", f"s_mul_i32 {s(sT1)}, {s(sC8)}, 160", f"s_add_u32 {s(sT3)}, {s(sT3)}, {s(sT1)}")]
    if CJ >= 3:
        items[1].append(setup[0]); items[2].append(setup[1]); setup = []
        items[CJ - 1] = [(None, flag_req("2", g.vBA, sZ, g.vBR))] + items[CJ - 1]
    for it in setup: put(it)
    xl = [(("X", 0), [f"buffer_load_dwordx{n} {v(XR+o,n)}, {v(vXO)}, {s(SX,4)}, {s(sT3)} offen offset:{4*o}"]) for o, n in ((0, 4), (4, 4), (8, 2))]
    late = wo_dma(0, 0) + wo_dma(1, 1) + wo_dma(2, 2) + xl
    if GJ >= CJ: pass
    elif Cfg.skl == 0:
        items[13 - LD] += late[:5]; items[12] += late[5:] if LD == 2 else late[12:]
        if LD == 3: items[11] += late[5:12]
    else:
        js = list(range(CJ + Cfg.skl - 1, 12))
        for i, it in enumerate(late[:15]): items[js[i * len(js) // 15]].append(it)
        items[11 if F else 12] += late[15:]
    def L(q):
        return [(("O", 5*q+i), [f"buffer_load_dwordx4 {v(OF(5*q+i),4)}, {v(vF)}, {s(S_WS,4)}, {s(sOH+q)} offen offset:{i*1024} sc1"]) for i in range(4)] + \
               [(("O", 5*q+4), [f"buffer_load_dwordx2 {v(OF(5*q+4)+2*i,2)}, {v(vOL)}, {s(S_WS,4)}, {s(sOG+q)} offen offset:{i*LS} sc1"]) for i in range(2)]
    if TWO: items[12] = [(None, flag_req("a", vFl, sF3, vFr))] + items[12]
    if Cfg.tc & 2:
        def tb(b):
            setprio(b, Cfg.prioGv); b.ext(touch(f"{pfx}_tc1", f"{pfx}_end", 52, g.vFA, g.vFA)); setprio(b, Cfg.prioD)
            b.lines = [l.replace("s_add_u32 s52, s52, g2_tc1-", "s_sub_u32 s52, s52, @").replace("s_addc_u32 s53", "s_subb_u32 s53") for l in b.lines]
            b.lines = [(l.split("@")[0] + l.split("@")[1] + "-g2_tc1") if "@" in l else l for l in b.lines]
        items[8] += [(None, wave0("tc", S_WV, tb))]
    for j in range(12 if F else 14):
        b = g.BUF + 36 * (j % NS)
        if j == 13:
            a(f"{pfx}_tc1:")
            a(f"s_cmp_ge_u32 {s(S_WV)}, 2"); a(f"s_cbranch_scc1 {pfx}_ddone")
        if j > 0 or PJ == 0:
            a(f"s_waitcnt vmcnt({min(vm.n(('B', j) if j < 13 else 'B13'), vm.n('hst') if j == PJ else 63)})")
        if j == 0: stamp(a, "d_issued")
        if j == PJ:
            a("s_barrier"); wave0("pb", sPB, lambda b_: (publish(b_, 100), stamp(b_, "pub2")))()
        if j == GJ and j < CJ:
            for it in items[j]: put(it)
            items[j] = []
        if j == CJ:
            if CJ < 3: flag_req("2", g.vBA, sZ, g.vBR)()
            flag_chk("2", g.vBA, sZ, g.vBR, Cfg.p2s, Cfg.prioD, "h2_go")(); a("s_barrier")
        if j == GJ:
            for it in items[j] + (late if GJ >= CJ else []): put(it)
            items[j] = []
            def gw(b):
                setprio(b, Cfg.prioGv)
                b(f"s_lshl_b32 {s(sT0)}, s2, 7"); b(f"s_add_u32 {s(sT0)}, {s(sT0)}, {FP_OFF}")
                b("s_mov_b64 exec, 1")
                poll(b, f"{pfx}_pg", None, sT0, g.vBR, sT2, Cfg.phs)
                b("s_mov_b64 exec, -1")
                setprio(b, Cfg.prioD); stamp(b, "g_go")
            wave0("gw", S_WV, gw)(); a("s_barrier")
        pend = list(items[j]); npend = len(pend); done = 0
        prs = [(i, mt) for i in range(4) for mt in range(5)] if Cfg.sko == 0 else [(i, mt) for mt in range(5) for i in range(4)]
        if Cfg.snk:
            prs = [(i, mt if i % 2 == 0 else 4 - mt) for i in range(4) for mt in range(5)]
            if j & 1: prs = prs[::-1]
        if j >= 12: prs = [(i, mt) for i in (1, 2, 3, 0) for mt in range(5)]
        for n, (i, mt) in enumerate(prs):
            a(mf16(AD + 20 * i + 4 * mt, b + 16 + 4 * mt, b + 4 * i, "0" if j == 0 else None))
            while pend and done * 20 <= n * npend:
                put(pend.pop(0)); done += 1
        assert not pend
    if F:
        a(f"{pfx}_tc1:")
        vRA = (vO, vO + 1, vO + 2)
        setprio(a, Cfg.prioGv)
        a(f"v_add_u32 {v(vTW)}, {s(sM)}, {v(vF2)}")
        for r in range(1, 4):
            a(f"s_sub_u32 {s(sT0)}, {s(S_WV)}, {r}")
            a(f"s_and_b32 {s(sT0)}, {s(sT0)}, 3")
            a(f"s_mul_i32 {s(sT0)}, {s(sT0)}, 5120")
            a(f"v_add_u32 {v(vRA[r-1])}, {s(sT0)}, {v(vF2)}")
        setprio(a, Cfg.prioD)
        RR = {3: 176, 2: 196, 1: 216}
        wrt = lambda r: [[f"ds_write_b128 {v(vTW)}, {v(AD+20*r+4*mt,4)} offset:{mt*1024}"] for mt in range(5)]
        rdt = lambda r: [f"ds_read_b128 {v(RR[r]+4*mt,4)}, {v(vRA[r-1])} offset:{mt*1024}" for mt in range(5)]
        bar = ["s_waitcnt lgkmcnt(0)", "s_barrier"]
        def sets(j): return lambda: [rd(SETS[j], j, mt) for mt in range(5)]
        ev = {n_: [] for n_ in range(30)}
        for i_, x in enumerate(wrt(3)): ev[12 + i_ // 2] += x
        ev[15] += [f"s_waitcnt vmcnt({vm.n(('wo', 2))}) lgkmcnt(0)", "s_barrier"] + rdt(3) + [sets(0)]
        ev[18] += bar
        for i_, x in enumerate(wrt(2)): ev[18 + i_ // 2] += x
        ev[19] += [f"s_waitcnt vmcnt({vm.n('B13')})"]
        ev[22] += bar + rdt(2) + [sets(1), sets(2)]
        ev[27] += bar + [sets(3)]
        a(f"s_waitcnt vmcnt({vm.n(('B', 12))})")
        seq = [(96, 96 + 4 * i, i, mt) for i in (3, 2, 1, 0) for mt in range(5)] + [(132, 140 + 4 * i, i, mt) for i in (1, 0) for mt in range(5)]
        for n_, (b, h, i, mt) in enumerate(seq):
            a(mf16(AD + 20 * i + 4 * mt, b + 16 + 4 * mt, h))
            for x in ev[n_]:
                if callable(x): x()
                else: a(x)
        setprio(a, Cfg.prioR)
        stamp(a, "d_done")
        for x in wrt(1): a.ext(x)
        sets(4)()
        flag_req("3", vFl, sF3, vFr)()
        for i in range(0, 20, 2): a(f"v_pk_add_f32 {v(RR[3]+i,2)}, {v(RR[3]+i,2)}, {v(RR[2]+i,2)}")
        a.ext(bar + rdt(1))
        for n_, it in enumerate(wo_dma(3, 0)):
            put(it)
            for i in (4 * n_, 4 * n_ + 2): a(f"v_pk_add_f32 {v(AD+i,2)}, {v(AD+i,2)}, {v(RR[3]+i,2)}")
        a(f"v_lshrrev_b32 {v(vTR)}, 4, {v(vL)}")
        a(f"v_and_b32 {v(vOL)}, 0xff, {v(vF)}")
        a(f"v_lshl_add_u32 {v(vOL)}, {v(vTR)}, 10, {v(vOL)}")
        RT = RR[1]
    else:
        a(f"{pfx}_ddone:")
        setprio(a, Cfg.prioR)
        stamp(a, "d_done")
        a(f"v_add_u32 {v(vTW)}, {s(sM)}, {v(vF2)}")
        a(f"v_lshrrev_b32 {v(vTR)}, 4, {v(vL)}")
        a(f"v_and_b32 {v(vOL)}, 0xff, {v(vF)}")
        a(f"v_lshl_add_u32 {v(vOL)}, {v(vTR)}, {9 if TWO else 10}, {v(vOL)}")
        wr_ = [(j, mt) for j in range(5) for mt in range(5)]
        for r in range(1, 4):
            a(f"s_sub_u32 {s(sT0)}, {s(S_WV)}, {r}")
            a(f"s_and_b32 {s(sT0)}, {s(sT0)}, 3")
            a(f"s_mul_i32 {s(sT0)}, {s(sT0)}, 5120")
            a(f"v_add_u32 {v(vTR)}, {s(sT0)}, {v(vF2)}")
            for mt in range(5): a(f"ds_write_b128 {v(vTW)}, {v(AD+20*r+4*mt,4)} offset:{mt*1024}")
            if r > 1:
                for i in range(0, 20, 2): a(f"v_pk_add_f32 {v(AD+i,2)}, {v(AD+i,2)}, {v(RT+20*(r&1)+i,2)}")
            a("s_waitcnt " + (f"vmcnt({vm.n(('wo', 2))}) " if r == 1 else "") + "lgkmcnt(0)")
            if r == 1 and TWO: flag_chk("a", vFl, sF3, vFr, Cfg.p2s, Cfg.prioR, "o0_go")()
            a("s_barrier")
            for mt in range(5): a(f"ds_read_b128 {v(RT+20*((r+1)&1)+4*mt,4)}, {v(vTR)} offset:{mt*1024}")
            for j, mt in wr_[10*(r-1):10*r]: rd(SETS[j], j, mt)
            if TWO:
                for it in (L(0) + L(1))[4*(r-1):4*r]: put(it)
            if r == 3 and not TWO: flag_req("3", vFl, sF3, vFr)()
            a("s_waitcnt lgkmcnt(0)")
            a("s_barrier")
    SCR = 20480
    adr = [f"v_pk_add_f32 {v(AD+i,2)}, {v(AD+i,2)}, {v(RT+i,2)}" for i in range(0, 20, 2)] + [
           f"v_lshrrev_b32 {v(vTW)}, 4, {v(vL)}", f"v_and_b32 {v(vTR)}, 0xff, {v(vF)}", f"s_add_u32 {s(sF3)}, {s(sF3)}, {65536 if TWO else 0}",
           f"s_mul_i32 {s(sT0)}, {s(S_WV)}, 2560", f"s_add_u32 {s(sT0)}, {s(sT0)}, {SCR}",
           f"v_mul_u32_u24 {v(vTR)}, 10, {v(vTR)}", f"v_mad_u32_u24 {v(vTW)}, {v(vTW)}, 40, {v(vTR)}", f"v_add_u32 {v(vTW)}, {s(sT0)}, {v(vTW)}",
           f"v_add_u32 {v(vTR)}, {s(sT0)}, {v(vF)}", f"s_movk_i32 {s(sT1)}, 1120"]
    for i in range(3):
        adr += [f"v_add_u32 {v(vO+i)}, {64*i}, {v(vL)}", f"v_mul_u32_u24 {v(Z)}, 6554, {v(vO+i)}", f"v_lshrrev_b32 {v(Z)}, 16, {v(Z)}",
                f"v_lshlrev_b32 {v(vO+i)}, 4, {v(vO+i)}", f"v_mad_u32_u24 {v(vO+i)}, {v(Z)}, {s(sT1)}, {v(vO+i)}"]
    wl = wo_dma(3, 3) + wo_dma(4, 0)
    if F:
        a.ext(["s_waitcnt lgkmcnt(0)", "s_barrier"]); wl = wo_dma(4, 3)
    if not TWO:
        for it in wl:
            put(it); a.ext(adr[:40 // len(wl)]); adr = adr[40 // len(wl):]
        a.ext(adr); adr = []; wl = []
    else:
        a.ext(adr[:10]); adr = adr[10:]
    stamp(a, "wo_ready")
    def go(groups, first):
        setprio(a, Cfg.prioGv)
        if TWO: a(f"s_waitcnt vmcnt({vm.n(('wo', 4))})")
        flag_chk("3", vFl, sF3, vFr, Cfg.p3s, Cfg.prioGv, None)()
        a("s_barrier")
        stamp(a, "o_go")
        work = []
        for r0 in range(0, 20, 4):
            work += [f"v_mul_f32 {v(Z+i)}, {f2u(-LOG2E)}, {v(AD+r0+i)}" for i in range(4)]
            work += [f"v_exp_f32 {v(Z+i)}, {v(Z+i)}" for i in range(4)]
            work += [f"v_pk_add_f32 {v(Z+i,2)}, {v(Z+i,2)}, 1.0 op_sel_hi:[1,0]" for i in (0, 2)]
            work += [f"v_rcp_f32 {v(Z+i)}, {v(Z+i)}" for i in range(4)]
            work += [pk("mul", AD + r0 + i, [AD + r0 + i, Z + i]) for i in (0, 2)]
        for q in groups: ol.extend(L(q))
        per = -(-len(work) // (Cfg.onl - Cfg.sl0))
        for i in range(Cfg.onl):
            put(ol.pop(0))
            if TWO and i < 3:
                for mt in range(5): reads.remove((12 + i, mt)); rd(SETS[(12 + i) % 5], 12 + i, mt)
            if i >= Cfg.sl0: a.ext(work[:per]); work = work[per:]
        a.ext(work)
        a(f"s_waitcnt vmcnt({vm.n(('O', first))})")
        stamp(a, "o_first")
    ol = list(wl)
    MJ = Cfg.mj
    order = [(k, mt) for k in range(20 - MJ) for mt in range(5)] + [(k, mt) for mt in range(5) for k in range(20 - MJ, 20)]
    fin_at = {100 - (4 - mt) * MJ + 3: mt for mt in range(4) if 100 - (4 - mt) * MJ + 3 < 100}
    posn = {x: n for n, x in enumerate(order)}
    reads = sorted(((k, mt) for k in range(5, 20) for mt in range(5)), key=lambda x: posn[x])
    NB = 50 if TWO else 31
    unp = [f"v_lshlrev_b32 {v(U+2*j)}, 16, {v(XR+j)}" if h == 0 else f"v_and_b32 {v(U+2*j+1)}, 0xffff0000, {v(XR+j)}" for j in range(10) for h in range(2)]
    def fin(mt):
        return [f"v_fma_f32 {v(U+4*mt+i)}, {v(AS+4*mt+i)}, {v(AD+4*mt+i)}, {v(U+4*mt+i)}" for i in range(4)] + \
               [f"v_cvt_pk_bf16_f32 {v(XR+2*mt+j)}, {v(U+4*mt+2*j)}, {v(U+4*mt+2*j+1)}" for j in range(2)]
    fq = []; nread = 0
    unp = adr + unp
    def wr(mt):
        lg.add(("w", mt)); a(f"ds_write_b64 {v(vTW)}, {v(XR+2*mt,2)} offset:{8*mt}")
    if TWO: a(f"s_waitcnt vmcnt({vm.n(('O', 0))})")
    else: go(range(4), 0)
    seenO = {0, 10} if TWO else {0}
    for n, (k, mt) in enumerate(order):
        if n == 50 and TWO:
            for x in [x for x in reads if x[0] < 12]:
                reads.remove(x); rd(SETS[x[0] % 5], x[0], x[1]); nread += 1
            a.ext(unp); unp = []
            stamp(a, "o_mid")
            go((2, 3), 10)
        a(mf16(AS + 4 * mt, SETS[k % 5] + 4 * mt, OF(k), "0" if k == 0 else None))
        w = []
        if n < 99:
            k2, m2 = order[n + 1]
            if k2 not in seenO: w.append(f"vmcnt({vm.n(('O', k2))})"); seenO.add(k2)
            if k2 >= 5: w.append(f"lgkmcnt({min(14, lg.n((k2, m2)))})")
        if w: a("s_waitcnt " + " ".join(w))
        if n == NB and not TWO: a("s_barrier")
        if n == 33 and TWO: flag_req("3", vFl, sF3, vFr)()
        slots = 2
        ok = [x for x in reads if posn[(x[0] - 5, x[1])] <= n and (x[0] < 12 or n >= NB)]
        if ok and ((TWO and n >= 50) or nread * Cfg.rpn <= n * 10 or posn[ok[0]] - n <= 10):
            x = ok[0]; reads.remove(x); rd(SETS[x[0] % 5], x[0], x[1]); nread += 1; slots -= 1
        if ol and n % (3 if (TWO and n < 50) else Cfg.oln) == 0:
            put(ol.pop(0)); slots -= 1
        if n in fin_at: fq += fin(fin_at[n]) + [fin_at[n]]
        while slots > 0 and ((unp and (len(unp) > 20 or n >= 26)) or fq):
            x = unp.pop(0) if unp else fq.pop(0)
            if isinstance(x, int): wr(x)
            else: a(x)
            slots -= 1
    assert not reads and not ol and not unp
    stamp(a, "wo_done")
    for x in fq:
        if isinstance(x, int): wr(x)
        else: a(x)
    for mt in range(5):
        if mt in fin_at.values(): continue
        if mt == 4 and 3 in fin_at.values(): a("s_nop 2")
        a.ext(fin(mt)); wr(mt)
    for i in range(3): a(f"ds_read_b128 {v(U+4*i,4)}, {v(vTR)} offset:{i*1024}")
    for i in range(3):
        a(f"s_waitcnt lgkmcnt({2-i})")
        if i == 2: a("s_mov_b32 exec_hi, 0")
        a(f"buffer_store_dwordx4 {v(U+4*i,4)}, {v(vO+i)}, {s(SO,4)}, {s(sT3)} offen")
    a(f"s_branch {pfx}_end")
    for b in ool: a.lines += b.lines
    a(f"{pfx}_end:")

def kd(name, nv=256):
    return f""".amdhsa_kernel {name}
  .amdhsa_next_free_vgpr {nv}
  .amdhsa_next_free_sgpr 102
  .amdhsa_accum_offset {nv}
  .amdhsa_group_segment_fixed_size 0
  .amdhsa_kernarg_size 80
  .amdhsa_user_sgpr_count 2
  .amdhsa_user_sgpr_kernarg_segment_ptr 1
  .amdhsa_system_sgpr_workgroup_id_x 1
  .amdhsa_float_denorm_mode_32 3
.end_amdhsa_kernel
"""
def head(a, name, n):
    a(f".globl {name}"); a(".p2align 8"); a(f".type {name},@function"); a(f"{name}:")
    a(f"s_cmp_ge_u32 s2, {n}")
    a(f"s_cbranch_scc1 {name}_end")
    load_args(a)
def tail(a, name):
    a(f"{name}_end:"); a("s_endpgm")

HEADER = """
out = x + (softmax(q k^T / sqrt(20)) v @ wo) * silu((gelu(xn @ wg) * (xn @ wu)) @ wd),  xn = layernorm(x)
kernarg: x, wqkv, wo, (unused), wg, wu, wd, out, debug, ws
One persistent launch, two workgroups per CU (emitted by a hand-written generator script):
  ids   0..255  projections: layernorm statistics, QKV and gate/up strips (x stays in registers, weights stream
                through LDS), weight re-layout, down projection (split K), wo projection, output
  ids 256..511  attention: one head x 256 queries; exp2 without max subtraction, row sums range-checked,
                rows that leave the safe range are redone with the true row maximum
Hand-offs go through ws with write-through stores and flag words that carry a per-launch nonce from debug[0].
"""
def build1():
    Cfg.fused = True
    a = Asm()
    name = NAME + "_kernel"
    for l in HEADER.strip().split("\n"): a("; " + l)
    a("; @launch grid=(512,1,1) block=(256,1,1) lds=81920")
    a('.amdgcn_target "amdgcn-amd-amdhsa--gfx950"')
    a(".text")
    head(a, name, 512)
    if Cfg.cpf == 2:
        a("s_getpc_b64 s[54:55]")
        a("L_pc:")
        a("s_and_b32 s56, s2, 0x1f8")
        a("v_lshrrev_b32 v2, 5, v0")
        a("v_and_b32 v3, 1, v0")
        a("v_add3_u32 v2, v2, v3, s56")
        a("v_lshlrev_b32 v2, 7, v2")
        a(f"v_min_u32 v2, {name}_end-L_pc, v2")
        a("s_mov_b64 exec, 3")
        a("global_load_dword v255, v2, s[54:55]")
        a("s_mov_b64 exec, -1")
    a("s_cmp_ge_u32 s2, 256")
    a("s_cbranch_scc1 L_att")
    stamp_begin(a, 0); stamp(a, "start"); gen_g1(a, "g1"); (gen_k2 if Cfg.sk else gen_g2)(a, "g2"); stamp_end(a, 0, 2)
    a("s_endpgm")
    a("L_att:")
    stamp_begin(a, 1); stamp(a, "start"); (gen_att if Cfg.two else gen_att1)(a, "att", 2); stamp_end(a, 1, 2)
    tail(a, name)
    a('.section .rodata,"a"')
    a(".p2align 6"); a.lines.append(kd(name))
    return a.text()

if __name__ == "__main__":
    if "--stamps" in sys.argv:
        sys.argv.remove("--stamps"); STAMPS = True
    if "--lite" in sys.argv:
        sys.argv.remove("--lite"); STAMPS = True; LITE = True
    if "--cyc" in sys.argv:
        sys.argv.remove("--cyc"); STAMPS = "cyc"
    three = "--three" in sys.argv
    if three: sys.argv.remove("--three")
    for x in list(sys.argv):
        if "=" in x:
            k_, v_ = x.split("="); setattr(Cfg, k_, int(v_)); sys.argv.remove(x)
    t = build1()
    if STAMPS:
        import json; json.dump(St.names, open(sys.argv[1].replace(".s", ".json"), "w"))
    out = sys.argv[1] if len(sys.argv) > 1 else f"cdna_kernels/{NAME}.s"
    body = t[:t.index('.section .rodata')]
    pr = check_hazards(body)
    for p in pr: print("HAZARD", p)
    open(out, "w").write(t)
    print("written", out, len(t), "bytes;", len(pr), "hazards")
```
